```python
import torch

def _softmax(x, axis=-1):
    return torch.softmax(x, dim=axis)
def _gelu(x):
    return torch.nn.functional.gelu(x, approximate="tanh")
def _silu(x):
    return torch.nn.functional.silu(x)
def _sigmoid(x):
    return torch.sigmoid(x)
def _layernorm(x, axis=-1, eps=1e-5):
    m = x.mean(dim=axis, keepdim=True)
    v = x.var(dim=axis, keepdim=True, unbiased=False)
    return (x - m) / torch.sqrt(v + eps)
def _scatter_add(tgt, idx, src, axis=0):
    return tgt.clone().index_add_(axis, idx, src)
def _segment_sum(src, seg, n):
    out = torch.zeros((n,) + src.shape[1:], dtype=src.dtype)
    return out.index_add_(0, seg, src)
def _pad(x, pw):
    flat = tuple(v for pair in reversed(pw) for v in pair)
    return torch.nn.functional.pad(x, flat)

kernel_name = 'recurrent_scan__ssm_conv_s5__glu_gated_glu__prompt'

def setup_inputs():

    _w = (lambda a: (lambda t: t.to(torch.bfloat16) if t.is_floating_point() else t)(torch.as_tensor(a)))
    def _A_setup():
        B, S, D = 1, 2048, 448
        P = D
        Lambda_re = -0.5 * (lambda _x: torch.exp(torch.as_tensor(_x)))((lambda *s: torch.randn(*s, dtype=torch.bfloat16) * 0.2)(P))
        Lambda_im = (lambda *s: torch.randn(*s, dtype=torch.bfloat16) * 0.4)(P) * 1.0
        B_re = (lambda *s: torch.randn(*s, dtype=torch.bfloat16) * 0.2)(P, D) * (D ** -0.5)
        B_im = (lambda *s: torch.randn(*s, dtype=torch.bfloat16) * 0.2)(P, D) * (D ** -0.5)
        C_re = (lambda *s: torch.randn(*s, dtype=torch.bfloat16) * 0.2)(D, P) * (P ** -0.5)
        C_im = (lambda *s: torch.randn(*s, dtype=torch.bfloat16) * 0.2)(D, P) * (P ** -0.5)
        log_dt = (lambda *s: torch.randn(*s, dtype=torch.bfloat16) * 0.2)(P) * 0.3 - 2.0
        Dskip = (lambda *s: torch.randn(*s, dtype=torch.bfloat16) * 0.05)(D)
        return {
            "x": _w((lambda *s: torch.randn(*s, dtype=torch.bfloat16) * 0.05)(B, S, D)),
            "Lambda_re": _w(Lambda_re),
            "Lambda_im": _w(Lambda_im),
            "B_re": _w(B_re),
            "B_im": _w(B_im),
            "C_re": _w(C_re),
            "C_im": _w(C_im),
            "log_dt": _w(log_dt),
            "Dskip": _w(Dskip),
        }
    _A_in = _A_setup()

    def _B_setup():
        B, S, D, F = 1, 2048, 448, 1792
        return {
            "x": _w((lambda *s: torch.randn(*s, dtype=torch.bfloat16) * 0.05)(B, S, D)),
            "w_gate": _w((lambda *s: torch.randn(*s, dtype=torch.bfloat16) * 0.05)(D, F)),
            "w_up": _w((lambda *s: torch.randn(*s, dtype=torch.bfloat16) * 0.05)(D, F)),
            "w_down": _w((lambda *s: torch.randn(*s, dtype=torch.bfloat16) * 0.05)(F, D)),
        }
    _B_in = _B_setup()

    return {
        "A_x": _A_in["x"],
        "A_Lambda_re": _A_in["Lambda_re"],
        "A_Lambda_im": _A_in["Lambda_im"],
        "A_B_re": _A_in["B_re"],
        "A_B_im": _A_in["B_im"],
        "A_C_re": _A_in["C_re"],
        "A_C_im": _A_in["C_im"],
        "A_log_dt": _A_in["log_dt"],
        "A_Dskip": _A_in["Dskip"],
        "B_x": _B_in["x"],
        "B_w_gate": _B_in["w_gate"],
        "B_w_up": _B_in["w_up"],
        "B_w_down": _B_in["w_down"],
    }

def reference(A_x, A_Lambda_re, A_Lambda_im, A_B_re, A_B_im, A_C_re, A_C_im, A_log_dt, A_Dskip, B_x, B_w_gate, B_w_up, B_w_down):
    def _A_ref(x, Lambda_re, Lambda_im, B_re, B_im, C_re, C_im, log_dt, Dskip):
        Bsz, L, H = x.shape
        Lam = Lambda_re + 1j * Lambda_im
        Bmat = B_re + 1j * B_im
        Cmat = C_re + 1j * C_im
        dt = torch.exp(log_dt)
        Lam_bar = torch.exp(dt * Lam)
        B_bar = ((Lam_bar - 1.0) / Lam)[:, None] * Bmat
        Bu = torch.einsum("bld,pd->blp", x + 0j, B_bar)
        h = torch.zeros_like(Bu[:, 0, :])
        hs = []
        for t in range(L):
            h = Lam_bar[None, :] * h + Bu[:, t, :]
            hs.append(h)
        hseq = torch.stack(hs, 1)
        y = 2.0 * torch.einsum("blp,dp->bld", hseq, Cmat).real + x * Dskip[None, None, :]
        return y

    def _B_ref(x, w_gate, w_up, w_down):
        g = torch.einsum("bsd,df->bsf", x, w_gate)
        u = torch.einsum("bsd,df->bsf", x, w_up)
        h = _sigmoid(g) * u
        return torch.einsum("bsf,fd->bsd", h, w_down)

    x = A_x
    xn = _layernorm(x, axis=-1)
    s = _A_ref(xn, A_Lambda_re, A_Lambda_im, A_B_re, A_B_im, A_C_re, A_C_im, A_log_dt, A_Dskip)
    g = _silu(_B_ref(xn, B_w_gate, B_w_up, B_w_down))
    return x + s * g
```

```python
import re

TRANS = {"v_exp_f32","v_log_f32","v_rcp_f32","v_rsq_f32","v_sqrt_f32","v_sin_f32","v_cos_f32"}
RMW_DST = {"v_fmac_f32","v_dot2c_f32_bf16","v_fmac_f32_e32"}

def regs_of(tok):
    tok = tok.strip()
    neg = tok.startswith("-")
    if neg: tok = tok[1:]
    m = re.fullmatch(r"abs\((.*)\)", tok)
    if m: tok = m.group(1)
    tok = tok.strip("|")
    m = re.fullmatch(r"([vsa])(\d+)", tok)
    if m: return [(m.group(1), int(m.group(2)))]
    m = re.fullmatch(r"([vsa])\[(\d+):(\d+)\]", tok)
    if m: return [(m.group(1), i) for i in range(int(m.group(2)), int(m.group(3)) + 1)]
    if tok == "vcc": return [("s", "vcc")]
    if tok == "exec": return [("s", "exec")]
    if tok == "m0": return [("s", "m0")]
    return []

class Ins:
    __slots__ = ("text","op","cls","wr","rd","passes","srcC","comment","isnop","nstates")
    def __init__(self, text):
        self.text = text
        t = text.split(";")[0].strip()
        self.op = t.split()[0] if t else ""
        rest = t[len(self.op):].strip()
        ops = [o.strip() for o in rest.split(",")] if rest else []
        mods = []
        if ops:
            parts = ops[-1].split()
            ops[-1] = parts[0] if parts else ""
            mods = parts[1:]
        op = self.op
        self.wr = set(); self.rd = set(); self.passes = 0; self.srcC = set(); self.nstates = 1
        self.isnop = False
        R = lambda k: set(regs_of(ops[k])) if k < len(ops) else set()
        allr = lambda a: set().union(*[set(regs_of(o)) for o in ops[a:]]) if len(ops) > a else set()
        if op.endswith(":") or op.startswith("."):
            self.cls = "label"; self.nstates = 0
        elif op == "s_nop":
            self.cls = "salu"; self.isnop = True; self.nstates = int(ops[0], 0) + 1
        elif op.startswith("v_mfma"):
            self.cls = "mfma"; self.wr = R(0); self.rd = R(1) | R(2) | R(3); self.srcC = R(3)
            self.passes = 8 if "32x32x16" in op else (4 if "16x16x32" in op else 16)
        elif op.startswith("v_cmp"):
            self.cls = "valu"; self.wr = R(0); self.rd = allr(1)
        elif op.startswith("v_readfirstlane") or op.startswith("v_readlane"):
            self.cls = "valu"; self.wr = R(0); self.rd = allr(1)
        elif op.startswith("v_permlane") and "swap" in op:
            self.cls = "valu"; self.wr = R(0) | R(1); self.rd = R(0) | R(1)
        elif op.startswith("v_add_co") or op.startswith("v_sub_co") or op.startswith("v_addc_co"):
            self.cls = "valu"; self.wr = R(0) | R(1); self.rd = allr(2)
        elif op.startswith("v_cndmask"):
            self.cls = "valu"; self.wr = R(0); self.rd = allr(1)
            if len(ops) == 3: self.rd |= {("s","vcc")}
        elif op.startswith("v_"):
            self.cls = "valu"; self.wr = R(0); self.rd = allr(1)
            if op in RMW_DST: self.rd |= R(0)
            if any("dpp" in m or m.startswith("quad_perm") or m.startswith("row_") for m in mods) or op.endswith("_dpp"):
                self.cls = "valu"; self.op = op + "#dpp"
        elif op.startswith("ds_read") or op.startswith("ds_bpermute") or op.startswith("ds_swizzle"):
            self.cls = "ds"; self.wr = R(0); self.rd = allr(1)
        elif op.startswith("ds_"):
            self.cls = "ds"; self.rd = allr(0)
        elif op.startswith("buffer_load") or op.startswith("global_load"):
            self.cls = "vmem"
            if "lds" in mods: self.rd = allr(0) | {("s","m0")}; self.op = op + "#lds"
            else: self.wr = R(0); self.rd = allr(1)
        elif op.startswith("buffer_store") or op.startswith("global_store") or op.startswith("buffer_atomic") or op.startswith("global_atomic"):
            self.cls = "vmem"; self.rd = allr(0)
            if "atomic" in op and "sc0" in mods: self.wr = R(0)
        elif op.startswith("s_load") or op.startswith("s_memtime") or op.startswith("s_memrealtime"):
            self.cls = "smem"; self.wr = R(0); self.rd = allr(1)
        elif op.startswith("s_cmp") or op.startswith("s_bitcmp"):
            self.cls = "salu"; self.rd = allr(0); self.wr = {("s","scc")}
        elif op.startswith("s_cbranch") or op in ("s_branch","s_barrier","s_waitcnt","s_endpgm","s_setprio","s_sleep"):
            self.cls = "salu"
        elif op.startswith("s_and_saveexec") or op.startswith("s_or_saveexec"):
            self.cls = "salu"; self.wr = R(0) | {("s","exec")}; self.rd = allr(1) | {("s","exec")}
        elif op.startswith("s_"):
            self.cls = "salu"; self.wr = R(0); self.rd = allr(1)
        else:
            raise ValueError("unknown op: " + text)

def need_states(p, c):
    n = 0
    vw = {r for r in p.wr if r[0] in "va"}
    sw = {r for r in p.wr if r[0] == "s"}
    if p.cls == "valu":
        if c.cls == "mfma" and (vw & c.rd): n = max(n, 2)
        if c.op.startswith("v_permlane") and (vw & c.rd): n = max(n, 2)
        if c.op.endswith("#dpp") and (vw & c.rd): n = max(n, 2)
        if (c.op.startswith("v_readfirstlane") or c.op.startswith("v_readlane")) and (vw & c.rd): n = max(n, 1)
        if p.op in TRANS and c.cls in ("valu","mfma") and (vw & c.rd): n = max(n, 1)
        if sw:
            if c.cls == "valu" and (sw & c.rd): n = max(n, 2)
            if c.cls == "mfma" and (sw & c.rd): n = max(n, 2)
            if c.cls == "vmem" and (sw & c.rd): n = max(n, 5)
            if c.cls in ("salu","smem") and (sw & c.rd): n = max(n, 2)
            if c.op.startswith("s_cbranch_vcc") and ("s","vcc") in sw: n = max(n, 2)
            if ("s","exec") in sw: n = max(n, 5)
    if p.cls == "mfma":
        P = p.passes
        big = {2:5, 4:8, 8:12, 16:20}[P]
        ovl = {2:4, 4:6, 8:10, 16:18}[P]
        if c.cls == "mfma":
            if vw & (c.rd - c.srcC if False else set()): pass
            ab = c.rd - c.srcC
            if vw & (c.rd - c.srcC) : n = max(n, big)
            if vw & c.srcC:
                if c.srcC == p.wr and c.passes == p.passes: n = max(n, 0 if P >= 4 else 2)
                else: n = max(n, ovl)
            if (vw & c.wr) and not (vw & c.srcC): n = max(n, ovl)
        elif c.cls in ("valu","ds","vmem"):
            if vw & (c.rd | c.wr): n = max(n, big)
            if c.cls == "valu" and (p.srcC & c.wr): n = max(n, {2:1,4:3,8:7,16:15}[P])
    if p.cls == "vmem" and ("store" in p.op or "atomic" in p.op) and ("x4" in p.op or "x3" in p.op):
        if c.cls == "valu" and (p.rd & {r for r in c.wr if r[0] == "v"}): n = max(n, 2)
        elif c.cls in ("ds","vmem") and (p.rd & {r for r in c.wr if r[0] == "v"}): n = max(n, 1)
    if p.cls == "salu" and ("s","m0") in p.wr and (c.op.endswith("#lds")): n = max(n, 1)
    if p.cls == "salu" and ("s","exec") in p.wr and c.op.endswith("#dpp"): n = max(n, 0)
    return n

class Emit:
    def __init__(self):
        self.ins = []
        self.lg_issued = 0; self.lg_done = 0
        self.vm_issued = 0; self.vm_done = 0
        self.smem_out = False
        self.uid = 0
    def label(self, base="L"):
        self.uid += 1
        return f"{base}_{self.uid}"
    def raw(self, text):
        self.ins.append(Ins(text)); return self.ins[-1]
    def __call__(self, text):
        i = Ins(text)
        tok = None
        if i.cls == "ds":
            self.lg_issued += 1; tok = ("lg", self.lg_issued)
        elif i.cls == "vmem":
            self.vm_issued += 1; tok = ("vm", self.vm_issued)
        elif i.cls == "smem":
            self.smem_out = True; tok = ("sm", 0)
        self.ins.append(i)
        return tok
    def wait(self, *toks, force=False):
        lg = None; vm = None
        for t in toks:
            if t is None: continue
            if isinstance(t, (list, tuple)) and t and isinstance(t[0], (list, tuple)):
                self.wait(*t); continue
            k, n = t
            if k == "lg":
                if n > self.lg_done: lg = max(lg or 0, n)
            elif k == "vm":
                if n > self.vm_done: vm = max(vm or 0, n)
            elif k == "sm":
                if self.smem_out:
                    lg = self.lg_issued if lg is None else self.lg_issued
                    self._smem_force = True
        parts = []
        if vm is not None:
            c = min(self.vm_issued - vm, 63); parts.append(f"vmcnt({c})"); self.vm_done = max(self.vm_done, self.vm_issued - c)
        if lg is not None or getattr(self, "_smem_force", False):
            if getattr(self, "_smem_force", False) or self.smem_out:
                c = 0; self.smem_out = False; self._smem_force = False
            else:
                c = min(self.lg_issued - lg, 15)
            parts.append(f"lgkmcnt({c})"); self.lg_done = max(self.lg_done, self.lg_issued - c)
        if parts: self.raw("s_waitcnt " + " ".join(parts))
    def cond_begin(self):
        self._cond = getattr(self, "_cond", [])
        self._cond.append((self.vm_issued, self.vm_done, self.lg_issued, self.lg_done))
    def cond_end(self):
        self.vm_issued, self.vm_done, self.lg_issued, self.lg_done = self._cond.pop()
    def wait_all(self, vm=True, lg=True):
        parts = []
        if vm: parts.append("vmcnt(0)"); self.vm_done = self.vm_issued
        if lg: parts.append("lgkmcnt(0)"); self.lg_done = self.lg_issued; self.smem_out = False
        self.raw("s_waitcnt " + " ".join(parts))
    def finish(self):
        out = []
        window = []
        for i in self.ins:
            if i.cls == "label":
                out.append(i)
                if i.op.endswith(":"):
                    pass
                continue
            need = 0
            dist = 0
            for p in reversed(window):
                req = need_states(p, i)
                if req - dist > need: need = req - dist
                dist += p.nstates
                if dist >= 24: break
            while need > 0:
                k = min(need, 16)
                nop = Ins(f"s_nop {k-1}")
                out.append(nop); window.append(nop); need -= k
            out.append(i); window.append(i)
            if len(window) > 40: window = window[-40:]
        return "\n".join(("" if x.cls == "label" and x.op.endswith(":") else "  ") + x.text for x in out)

def vr(a, n=1):
    return f"v{a}" if n == 1 else f"v[{a}:{a+n-1}]"
def sr(a, n=1):
    return f"s{a}" if n == 1 else f"s[{a}:{a+n-1}]"
```

```python
import sys
sys.path.insert(0, "dev")
from asmlib import *
import gen as G
from gen import *

RING = 19 * 8192
MISC = RING
M_ST = MISC
M_CS = MISC + 1024
M_SEG = MISC + 2048
INTERLEAVE = False

PX, PZ, PW, VX0, VX1, VZ, VW = 1, 2, 3, 4, 5, 6, 7
TBX, TBZ, TW0, TW1, TA, TB = 8, 9, 10, 11, 12, 13
LR, LI, CR, CI, L8R, L8I, L128R, L128I, TR, TI = 14, 15, 16, 17, 18, 19, 20, 21, 22, 23
M_, SD, NLR, CSR, CSI, PR, PI, SIG, ER, EI = 24, 25, 26, 27, 28, 29, 30, 31, 32, 33
T = 34
AZ = 48
AG = [64, 80, 96, 112]
XF = 128
FB = 240

def cmul(e, dr, di, ar, ai, br, bi, t):
    e(f"v_mul_f32 v{t}, v{ai}, v{bi}"); yield
    e(f"v_mul_f32 v{t+1}, v{ai}, v{br}"); yield
    e(f"v_fma_f32 v{t}, v{ar}, v{br}, -v{t}"); yield
    e(f"v_fma_f32 v{di}, v{ar}, v{bi}, v{t+1}"); yield
    e(f"v_mov_b32 v{dr}, v{t}"); yield
def csq(e, dr, di, ar, ai, t):
    e(f"v_mul_f32 v{t}, v{ai}, v{ai}"); yield
    e(f"v_mul_f32 v{t+1}, v{ar}, v{ai}"); yield
    e(f"v_fma_f32 v{dr}, v{ar}, v{ar}, -v{t}"); yield
    e(f"v_add_f32 v{di}, v{t+1}, v{t+1}"); yield
def cfma(e, hr, hi, lr, li, br, bi, t):
    e(f"v_fma_f32 v{t}, v{lr}, v{hr}, v{br}"); yield
    e(f"v_fma_f32 v{t+1}, v{lr}, v{hi}, v{bi}"); yield
    e(f"v_fma_f32 v{t}, -v{li}, v{hi}, v{t}"); yield
    e(f"v_fma_f32 v{hi}, v{li}, v{hr}, v{t+1}"); yield
    e(f"v_mov_b32 v{hr}, v{t}"); yield
def cfma_to(e, dr, di, hr, hi, lr, li, br, bi):
    e(f"v_fma_f32 v{dr}, v{lr}, v{hr}, v{br}"); yield
    e(f"v_fma_f32 v{di}, v{lr}, v{hi}, v{bi}"); yield
    e(f"v_fma_f32 v{dr}, -v{li}, v{hi}, v{dr}"); yield
    e(f"v_fma_f32 v{di}, v{li}, v{hr}, v{di}"); yield

def gen_helper(e):
    e.raw("K1_HELPER:")
    e.lg_issued = e.lg_done = 0; e.vm_issued = e.vm_done = 0
    srd(e, 20, 4, 2048*448*2)
    srd(e, 32, 18, WS_END)
    srd(e, 36, 16, 256)
    e("s_lshl_b32 s49, s2, 3")
    e("s_add_u32 s49, s49, s48")
    e("v_lshrrev_b32 v1, 3, v0")
    e("v_and_b32 v2, 7, v0")
    e("v_lshlrev_b32 v2, 4, v2")
    e("s_movk_i32 s50, 896")
    e("v_mul_lo_u32 v3, s50, v1")
    e("v_add_u32 v3, v3, v2")
    e(f"s_mul_i32 s51, s49, {8*896}")
    XL = 16
    xt = [e(f"buffer_load_dwordx4 v[{XL+4*k}:{XL+4*k+3}], v3, s[20:23], s51 offen offset:{128*k}") for k in range(7)]
    e("s_sub_u32 s52, s49, 144")
    e("s_cmp_ge_u32 s49, 200")
    e("s_cselect_b32 s24, s10, s8")
    e("s_cselect_b32 s25, s11, s9")
    e("s_cselect_b32 s53, 56, 0")
    e("s_and_b32 s25, s25, 0xffff")
    e("s_sub_u32 s53, s52, s53")
    e(f"s_mul_i32 s53, s53, {8*896}")
    e("s_cmp_ge_u32 s49, 144")
    e(f"s_cselect_b32 s26, {448*448*2}, 0")
    e("s_cselect_b32 s53, s53, 0")
    e("s_mov_b32 s27, 0x20000")
    BL = 44
    bt = [e(f"buffer_load_dwordx4 v[{BL+4*k}:{BL+4*k+3}], v3, s[24:27], s53 offen offset:{128*k}") for k in range(7)]
    e("s_cmp_ge_u32 s2, 14")
    e("s_cselect_b32 s28, s14, s12")
    e("s_cselect_b32 s29, s15, s13")
    e("s_cselect_b32 s54, 14, 0")
    e("s_cselect_b32 s56, 1792, 0")
    e("s_and_b32 s29, s29, 0xffff")
    e("s_sub_u32 s54, s2, s54")
    e("s_cmp_lt_u32 s2, 28")
    e(f"s_cselect_b32 s30, {448*1792*2}, 0")
    e("s_cselect_b32 s54, s54, 0")
    e("s_mov_b32 s31, 0x20000")
    e("v_lshrrev_b32 v4, 4, v0")
    e("s_movk_i32 s50, 3584")
    e("v_mul_lo_u32 v4, s50, v4")
    e("v_and_b32 v5, 15, v0")
    e("v_lshl_add_u32 v4, v5, 4, v4")
    e(f"s_mul_i32 s55, s48, {56*3584}")
    e("s_lshl_b32 s57, s54, 8")
    e("s_add_u32 s55, s55, s57")
    WL = 72
    wt = []
    for n in range(14):
        e(f"s_add_u32 s57, s55, {n*4*3584}")
        wt.append(e(f"buffer_load_dwordx4 v[{WL+4*n}:{WL+4*n+3}], v4, s[28:31], s57 offen"))
    U = 128
    e.wait(xt)
    for k in range(28):
        e(f"v_lshlrev_b32 v{U+2*k}, 16, v{XL+k}")
        e(f"v_and_b32 v{U+2*k+1}, 0xffff0000, v{XL+k}")
    def red8(reg, tmp):
        e(f"v_add_f32_dpp v{reg}, v{reg}, v{reg} quad_perm:[1,0,3,2] row_mask:0xf bank_mask:0xf")
        e(f"v_add_f32_dpp v{reg}, v{reg}, v{reg} quad_perm:[2,3,0,1] row_mask:0xf bank_mask:0xf")
        e(f"v_add_f32_dpp v{reg}, v{reg}, v{reg} row_half_mirror row_mask:0xf bank_mask:0xf")
    def sum56(acc, base):
        e(f"v_add_f32 v{acc}, v{base}, v{base+1}")
        e(f"v_add_f32 v{acc+1}, v{base+2}, v{base+3}")
        for k in range(4, 56, 2):
            e(f"v_add_f32 v{acc}, v{acc}, v{base+k}")
            e(f"v_add_f32 v{acc+1}, v{acc+1}, v{base+k+1}")
        e(f"v_add_f32 v{acc}, v{acc}, v{acc+1}")
    sum56(6, U)
    red8(6, 7)
    e(f"v_mul_f32 v6, {f32(1.0/448)}, v6")
    for k in range(56): e(f"v_sub_f32 v{U+k}, v{U+k}, v6")
    e(f"v_mul_f32 v8, v{U}, v{U}")
    e(f"v_mul_f32 v9, v{U+1}, v{U+1}")
    for k in range(2, 56, 2):
        e(f"v_fmac_f32 v8, v{U+k}, v{U+k}")
        e(f"v_fmac_f32 v9, v{U+k+1}, v{U+k+1}")
    e("v_add_f32 v8, v8, v9")
    red8(8, 9)
    e(f"v_mul_f32 v8, {f32(1.0/448)}, v8")
    e("v_cvt_pk_bf16_f32 v9, v6, v8")
    e("v_lshlrev_b32 v10, 16, v9")
    e("v_and_b32 v11, 0xffff0000, v9")
    e(f"v_add_f32 v11, {f32(1e-5)}, v11")
    e("v_cvt_pk_bf16_f32 v11, v11, v11")
    e("v_lshlrev_b32 v11, 16, v11")
    e("v_sqrt_f32 v11, v11")
    e("v_cvt_pk_bf16_f32 v11, v11, v11")
    e("v_lshlrev_b32 v11, 16, v11")
    e("s_lshl_b32 s57, s49, 3")
    e("v_add_u32 v12, s57, v1")
    e("v_lshlrev_b32 v12, 3, v12")
    e(f"v_add_u32 v12, {WS_STAT}, v12")
    e("v_cmp_eq_u32 vcc, 0, v2")
    e("s_and_saveexec_b64 s[58:59], vcc")
    e("buffer_store_dwordx2 v[10:11], v12, s[32:35], 0 offen sc1")
    e("s_mov_b64 exec, s[58:59]")
    e.wait(bt)
    for k in range(28):
        e(f"v_lshlrev_b32 v{U+2*k}, 16, v{BL+k}")
        e(f"v_and_b32 v{U+2*k+1}, 0xffff0000, v{BL+k}")
    sum56(6, U)
    red8(6, 7)
    e("s_cmp_lt_u32 s49, 144")
    lab = e.label("K1H_NOB")
    e(f"s_cbranch_scc1 {lab}")
    e.cond_begin()
    e("s_lshl_b32 s57, s52, 3")
    e("v_add_u32 v12, s57, v1")
    e("v_lshlrev_b32 v12, 2, v12")
    e(f"v_add_u32 v12, {WS_CSB}, v12")
    e("v_cmp_eq_u32 vcc, 0, v2")
    e("s_and_saveexec_b64 s[58:59], vcc")
    e("buffer_store_dword v6, v12, s[32:35], 0 offen sc1")
    e("s_mov_b64 exec, s[58:59]")
    e.cond_end()
    e.raw(f"{lab}:")
    e.wait(wt)
    A = 8
    for n in range(14):
        for d in range(4):
            src = WL + 4*n + d
            if n == 0:
                e(f"v_lshlrev_b32 v{A+2*d}, 16, v{src}")
                e(f"v_and_b32 v{A+2*d+1}, 0xffff0000, v{src}")
            else:
                e(f"v_lshlrev_b32 v6, 16, v{src}")
                e(f"v_and_b32 v7, 0xffff0000, v{src}")
                e(f"v_add_f32 v{A+2*d}, v{A+2*d}, v6")
                e(f"v_add_f32 v{A+2*d+1}, v{A+2*d+1}, v7")
    e("v_lshrrev_b32 v6, 4, v0")
    e("s_lshl_b32 s57, s48, 2")
    e("v_add_u32 v6, s57, v6")
    e("v_lshlrev_b32 v6, 9, v6")
    e("v_lshl_add_u32 v6, v5, 5, v6")
    e(f"ds_write_b128 v6, v[{A}:{A+3}]")
    e(f"ds_write_b128 v6, v[{A+4}:{A+7}] offset:16")
    e.wait_all(vm=False)
    e("s_barrier")
    e("s_cmp_ge_u32 s48, 2")
    lab2 = e.label("K1H_NOW")
    e(f"s_cbranch_scc1 {lab2}")
    e("s_cmp_ge_u32 s2, 28")
    e(f"s_cbranch_scc1 {lab2}")
    e.cond_begin()
    e("s_lshl_b32 s57, s48, 6")
    e("v_add_u32 v6, s57, v0")
    e("v_lshlrev_b32 v7, 2, v6")
    for p in range(32): e(f"ds_read_b32 v{U+p}, v7 offset:{p*512}")
    e.wait_all(vm=False)
    for p in range(1, 32): e(f"v_add_f32 v{U}, v{U}, v{U+p}")
    e("s_lshl_b32 s57, s54, 7")
    e("s_add_u32 s57, s57, s56")
    e("v_add_u32 v6, s57, v6")
    e("v_lshlrev_b32 v6, 2, v6")
    e(f"v_add_u32 v6, {WS_CSW}, v6")
    e(f"buffer_store_dword v{U}, v6, s[32:35], 0 offen sc1")
    e.cond_end()
    e.raw(f"{lab2}:")
    e.wait_all()
    e("s_barrier")
    e("s_cmp_lg_u32 s48, 0")
    e("s_cbranch_scc1 K1_END")
    e("v_mov_b32 v6, 1")
    e("v_mov_b32 v7, 128")
    e("v_cmp_eq_u32 vcc, 0, v0")
    e("s_and_saveexec_b64 s[58:59], vcc")
    e("buffer_atomic_add v6, v7, s[36:39], 0 offen sc1")
    e.wait_all()
    e("s_endpgm")

def spin(e, off_v, srd_s, cond_emit, tmpv, name, maxit=200000):
    top = e.label(name); done = e.label(name + "_OK")
    e("s_mov_b32 s61, 0")
    e.raw(f"{top}:")
    e(f"buffer_load_dword v{tmpv}, v{off_v}, s[{srd_s}:{srd_s+3}], 0 offen sc1")
    e.wait_all(lg=False)
    e(f"v_readfirstlane_b32 s60, v{tmpv}")
    cond_emit()
    e(f"s_cbranch_scc1 {done}")
    e("s_add_u32 s61, s61, 1")
    e(f"s_cmp_lt_u32 s61, {maxit}")
    e("s_sleep 1")
    e(f"s_cbranch_scc1 {top}")
    e.raw(f"{done}:")

def gen_k1(e):
    e.raw("k1_kernel:")
    e("s_cmp_ge_u32 s2, 256")
    e("s_cbranch_scc1 K1_END")
    e("s_load_dwordx2 s[4:5], s[0:1], 0")
    e("s_load_dwordx2 s[6:7], s[0:1], 8")
    e("s_load_dwordx2 s[8:9], s[0:1], 24")
    e("s_load_dwordx2 s[10:11], s[0:1], 32")
    e("s_load_dwordx2 s[12:13], s[0:1], 80")
    e("s_load_dwordx2 s[14:15], s[0:1], 88")
    e("s_load_dwordx2 s[16:17], s[0:1], 112")
    e("s_load_dwordx2 s[18:19], s[0:1], 120")
    e("s_load_dwordx2 s[62:63], s[0:1], 16")
    t = e("s_load_dwordx2 s[64:65], s[0:1], 56")
    e("v_lshrrev_b32 v1, 6, v0")
    e("v_and_b32 v0, 63, v0")
    e("v_readfirstlane_b32 s48, v1")
    e.wait(t)
    e("s_cmp_lt_u32 s2, 32")
    e("s_cbranch_scc1 K1_HELPER")
    e("s_sub_u32 s49, s2, 32")
    e("s_and_b32 s50, s49, 7")
    e("s_lshr_b32 s51, s49, 3")
    e("s_and_b32 s52, s50, 3")
    e("s_lshl_b32 s52, s52, 2")
    e("s_and_b32 s53, s51, 3")
    e("s_add_u32 s52, s52, s53")
    e("s_lshr_b32 s53, s50, 2")
    e("s_mul_i32 s53, s53, 7")
    e("s_lshr_b32 s54, s51, 2")
    e("s_add_u32 s53, s53, s54")
    e("s_and_b32 s54, s48, 3")
    e("s_lshr_b32 s55, s48, 2")
    srd(e, 20, 4, 2048*448*2)
    e("s_cmp_eq_u32 s55, 0")
    e("s_cselect_b32 s24, s8, s10")
    e("s_cselect_b32 s25, s9, s11")
    e("s_cselect_b32 s28, s12, s14")
    e("s_cselect_b32 s29, s13, s15")
    e("s_and_b32 s25, s25, 0xffff")
    e(f"s_mov_b32 s26, {448*448*2}")
    e("s_mov_b32 s27, 0x20000")
    e("s_and_b32 s29, s29, 0xffff")
    e(f"s_mov_b32 s30, {448*1792*2}")
    e("s_mov_b32 s31, 0x20000")
    srd(e, 32, 18, WS_END)
    srd(e, 36, 16, 256)
    srd(e, 40, 6, 896)
    srd(e, 44, 62, 896)
    srd(e, 68, 64, 896)
    e("v_lshrrev_b32 v40, 3, v0")
    e("v_and_b32 v41, 7, v0")
    e("v_lshrrev_b32 v42, 4, v0")
    e("s_movk_i32 s56, 896")
    e("s_lshl_b32 s57, s48, 4")
    e("v_add_u32 v43, s57, v40")
    e("v_mul_lo_u32 v43, s56, v43")
    e("v_xor_b32 v44, v41, v42")
    e(f"v_lshl_add_u32 v{VX0}, v44, 4, v43")
    e("v_add_u32 v44, 4, v42")
    e("v_xor_b32 v44, v41, v44")
    e(f"v_lshl_add_u32 v{VX1}, v44, 4, v43")
    e(f"v_add_u32 v{VX1}, {8*896}, v{VX1}")
    e("s_lshl_b32 s57, s54, 3")
    e("v_add_u32 v43, s57, v40")
    e("v_mul_lo_u32 v43, s56, v43")
    e("s_and_b32 s57, s48, 1")
    e("s_lshl_b32 s57, s57, 2")
    e("v_add_u32 v44, s57, v42")
    e("v_xor_b32 v44, v41, v44")
    e(f"v_lshl_add_u32 v{VZ}, v44, 4, v43")
    e("s_lshl_b32 s57, s54, 4")
    e("v_add_u32 v43, s57, v40")
    e("s_movk_i32 s56, 3584")
    e("v_mul_lo_u32 v43, s56, v43")
    e("v_and_b32 v44, 1, v42")
    e("s_lshl_b32 s57, s55, 1")
    e("v_add_u32 v44, s57, v44")
    e("v_lshlrev_b32 v44, 1, v44")
    e("v_xor_b32 v44, v41, v44")
    e(f"v_lshl_add_u32 v{VW}, v44, 4, v43")
    e(f"s_mul_i32 s66, s52, {128*896}")
    e(f"s_mul_i32 s67, s53, {32*896}")
    e("s_lshl_b32 s72, s53, 8")
    e("s_lshl_b32 s73, s48, 11")
    e("s_lshl_b32 s74, s48, 10")
    e("s_lshl_b32 s75, s55, 13")
    e("s_lshl_b32 s76, s54, 11")
    e("s_add_u32 s75, s75, s76")

    ents = []
    for kc in range(7): ents += [("X", kc, 16384), ("Z", kc, 8192), ("WA", kc, 16384)]
    for kc in range(7): ents += [("WB", kc, 16384)]
    def tick_of(en): return en[1] if en[0] != "WB" else 7 + en[1]
    alloc = {}
    issue_at = {}
    live = []
    head = 0; nxt = 0
    def try_alloc(size, now):
        nonlocal head
        for start in ([head, 0] if head + size > RING else [head]):
            if start + size > RING: continue
            ok = all(not (start < o + s and o < start + size) or ft <= now for (o, s, ft) in live)
            if ok:
                head = start + size
                return start
            else:
                return None
        return None
    for now in range(-1, 14):
        lst = []
        while nxt < len(ents):
            en = ents[nxt]
            off = try_alloc(en[2], now)
            if off is None: break
            live.append((off, en[2], tick_of(en) + 1))
            alloc[(en[0], en[1])] = off
            lst.append(en); nxt += 1
        issue_at[now] = lst
    assert nxt == len(ents)
    ent_tok = {}
    def issue_entry(en):
        kind, kc, _ = en; base = alloc[(kind, kc)]
        if kind == "X":
            e(f"s_add_u32 s77, s66, {kc*128}")
            for a in range(2):
                e(f"s_add_u32 m0, s73, {base + a*1024}")
                tok = e(f"buffer_load_dwordx4 v{VX0+a}, s[20:23], s77 offen lds")
        elif kind == "Z":
            e(f"s_add_u32 s77, s67, {kc*128}")
            e(f"s_add_u32 m0, s74, {base}")
            tok = e(f"buffer_load_dwordx4 v{VZ}, s[24:27], s77 offen lds")
        else:
            colb = 0 if kind == "WA" else 128
            for a in range(2):
                e(f"s_add_u32 s77, s72, {(64*kc + 8*a)*3584 + colb}")
                e(f"s_add_u32 m0, s75, {base + a*1024}")
                tok = e(f"buffer_load_dwordx4 v{VW}, s[28:31], s77 offen lds")
        ent_tok[(kind, kc)] = tok
    for en in issue_at[-1]: issue_entry(en)

    e("v_and_b32 v40, 15, v0")
    e("s_lshl_b32 s56, s53, 5")
    e("s_lshl_b32 s57, s55, 4")
    e("s_add_u32 s78, s56, s57")
    e("v_add_u32 v41, s78, v40")
    e("v_lshlrev_b32 v42, 1, v41")
    tp = [e("buffer_load_ushort v43, v42, s[40:43], 0 offen"),
          e("buffer_load_ushort v44, v42, s[44:47], 0 offen"),
          e("buffer_load_ushort v45, v42, s[68:71], 0 offen")]
    e("v_and_b32 v34, 31, v0")
    e("v_lshrrev_b32 v35, 4, v34")
    e("v_bfe_u32 v36, v34, 2, 1")
    e("v_lshl_add_u32 v35, v36, 1, v35")
    e("v_bfe_u32 v36, v34, 3, 1")
    e("v_lshlrev_b32 v35, 3, v35")
    e("v_lshl_add_u32 v35, v36, 2, v35")
    e("v_and_b32 v36, 3, v34")
    e("v_add_u32 v35, v35, v36")
    e("v_lshrrev_b32 v36, 5, v0")
    e("s_lshl_b32 s56, s54, 5")
    e("v_add_u32 v37, s56, v35")
    e("v_mov_b32 v47, v37")
    e(f"v_lshlrev_b32 v{PX}, 7, v37")
    e("v_bfe_u32 v38, v35, 1, 3")
    e("v_xor_b32 v38, v38, v36")
    e(f"v_lshl_add_u32 v{PX}, v38, 4, v{PX}")
    e("v_bfe_u32 v38, v0, 4, 1")
    e(f"v_lshlrev_b32 v{PZ}, 12, v38")
    e("s_lshl_b32 s56, s55, 4")
    e("v_add_u32 v39, s56, v40")
    e(f"v_lshl_add_u32 v{PZ}, v39, 7, v{PZ}")
    e("v_bfe_u32 v39, v40, 1, 3")
    e("v_xor_b32 v39, v39, v36")
    e(f"v_lshl_add_u32 v{PZ}, v39, 4, v{PZ}")
    e(f"v_lshlrev_b32 v{PW}, 13, v38")
    e("v_lshrrev_b32 v39, 2, v40")
    e("v_lshl_add_u32 v39, v36, 3, v39")
    e(f"v_lshl_add_u32 v{PW}, v39, 7, v{PW}")
    e("v_lshrrev_b32 v39, 3, v40")
    e("v_lshl_add_u32 v39, v38, 1, v39")
    e("s_lshl_b32 s56, s55, 1")
    e("v_xor_b32 v39, s56, v39")
    e(f"v_lshl_add_u32 v{PW}, v39, 5, v{PW}")
    e("v_and_b32 v39, 3, v40")
    e(f"v_lshl_add_u32 v{PW}, v39, 3, v{PW}")
    e("v_lshrrev_b32 v39, 4, v0")
    e("s_lshl_b32 s56, s54, 2")
    e(f"v_add_u32 v{SIG}, s56, v39")

    def params():
        e.wait(tp); yield
        e("v_lshlrev_b32 v43, 16, v43"); yield
        e("v_lshlrev_b32 v44, 16, v44"); yield
        e("v_lshlrev_b32 v45, 16, v45"); yield
        e(f"v_mul_f32 v45, {f32(LOG2E)}, v45"); yield
        e("v_exp_f32 v45, v45"); yield
        e("v_cvt_pk_bf16_f32 v45, v45, v45"); yield
        e("v_lshlrev_b32 v45, 16, v45"); yield
        e("v_mul_f32 v34, v45, v43"); yield
        e("v_mul_f32 v35, v45, v44"); yield
        e(f"v_mul_f32 v34, {f32(LOG2E)}, v34"); yield
        e("v_exp_f32 v34, v34"); yield
        e(f"v_mul_f32 v35, {f32(1.0/(2*3.141592653589793))}, v35"); yield
        e("v_fract_f32 v35, v35"); yield
        e("v_cos_f32 v36, v35"); yield
        e("v_sin_f32 v37, v35"); yield
        e(f"v_mul_f32 v{LR}, v34, v36"); yield
        e(f"v_mul_f32 v{LI}, v34, v37"); yield
        e(f"v_add_f32 v36, -1.0, v{LR}"); yield
        e("v_mul_f32 v38, v43, v43"); yield
        e("v_fmac_f32 v38, v44, v44"); yield
        e("v_rcp_f32 v38, v38"); yield
        e("v_mul_f32 v39, v36, v43"); yield
        e(f"v_fmac_f32 v39, v{LI}, v44"); yield
        e(f"v_mul_f32 v34, v{LI}, v43"); yield
        e("v_fma_f32 v34, -v36, v44, v34"); yield
        e("v_add_f32 v38, v38, v38"); yield
        e(f"v_mul_f32 v{CR}, v39, v38"); yield
        e(f"v_mul_f32 v{CI}, v34, v38"); yield
        yield from csq(e, 34, 35, LR, LI, 38)
        yield from csq(e, 36, 37, 34, 35, 38)
        yield from csq(e, L8R, L8I, 36, 37, 38)
        e(f"v_mov_b32 v{TR}, 1.0"); yield
        e(f"v_mov_b32 v{TI}, 0"); yield
        e(f"v_mov_b32 v34, v{L8R}"); yield
        e(f"v_mov_b32 v35, v{L8I}"); yield
        for b in range(4):
            yield from cmul(e, 36, 37, TR, TI, 34, 35, 38)
            e(f"v_and_b32 v40, {1<<b}, v{SIG}"); yield
            e("v_cmp_ne_u32 vcc, 0, v40"); yield
            e(f"v_cndmask_b32 v{TR}, v{TR}, v36, vcc"); yield
            e(f"v_cndmask_b32 v{TI}, v{TI}, v37, vcc"); yield
            e("v_mov_b32 v41, v34"); yield
            e("v_mov_b32 v42, v35"); yield
            yield from csq(e, 34, 35, 41, 42, 38)
        e(f"v_mov_b32 v{L128R}, v34"); yield
        e(f"v_mov_b32 v{L128I}, v35"); yield

    def zbuf(ks): return 96 + (ks & 1)*4
    def wbufA(ks, tl): return 104 + (ks & 1)*8 + tl*4
    def wbufB(ks, tl): return FB + (ks & 1)*8 + tl*4
    first = {}
    def mfma(acc, a, b):
        c = f"v[{acc}:{acc+15}]" if first.get(acc) else "0"
        first[acc] = True
        e(f"v_mfma_f32_32x32x16_bf16 v[{acc}:{acc+15}], v[{a}:{a+3}], v[{b}:{b+3}], {c}")

    rd_tok = {}
    def tick_setup(ph, kc):
        if ph == "A":
            e(f"v_add_u32 v{TBX}, {alloc[('X',kc)]}, v{PX}")
            e(f"v_add_u32 v{TBZ}, {alloc[('Z',kc)]}, v{PZ}")
            e(f"v_add_u32 v{TW0}, {alloc[('WA',kc)]}, v{PW}")
        else:
            e(f"v_add_u32 v{TW0}, {alloc[('WB',kc)]}, v{PW}")
        e(f"v_xor_b32 v{TW1}, 32, v{TW0}")
    def reads(ph, ks):
        kk = ks & 3
        toks = []
        if ph == "A":
            if kk == 0:
                ax, az = TBX, TBZ
            else:
                e(f"v_xor_b32 v{TA}, {kk<<5}, v{TBX}"); e(f"v_xor_b32 v{TB}, {kk<<5}, v{TBZ}")
                ax, az = TA, TB
            toks.append(e(f"ds_read_b128 v[{XF+4*ks}:{XF+4*ks+3}], v{ax}"))
            toks.append(e(f"ds_read_b128 v[{zbuf(ks)}:{zbuf(ks)+3}], v{az}"))
        for tl in range(2):
            w = wbufA(ks, tl) if ph == "A" else wbufB(ks, tl)
            ad = TW0 if tl == 0 else TW1
            toks.append(e(f"ds_read_b64_tr_b16 v[{w}:{w+1}], v{ad} offset:{kk*2048}"))
            toks.append(e(f"ds_read_b64_tr_b16 v[{w+2}:{w+3}], v{ad} offset:{kk*2048+512}"))
        rd_tok[(ph, ks)] = toks

    steps = [("A", ks) for ks in range(28)] + [("B", ks) for ks in range(28)]
    def tick_idx(ph, ks): return (ks >> 2) + (0 if ph == "A" else 7)
    def need_ents(ph, kc): return [("X",kc),("Z",kc),("WA",kc)] if ph == "A" else [("WB",kc)]
    def enter_tick(ph, ks):
        kc = ks >> 2; tk = tick_idx(ph, ks)
        e.wait([ent_tok[x] for x in need_ents(ph, kc)])
        e.wait_all(vm=False)
        e("s_barrier")
        tick_setup(ph, kc)
        reads(ph, ks)
        if tk >= 1:
            for en in issue_at[tk - 1 + 0] if False else []: pass
        for en in issue_at.get(tk, []):
            issue_entry(en)

    def main_stream():
        enter_tick("A", 0)
        for n, (ph, ks) in enumerate(steps):
            if n + 1 < len(steps):
                ph2, ks2 = steps[n+1]
                if (ks2 & 3) == 0: enter_tick(ph2, ks2)
                else: reads(ph2, ks2)
            e.wait(rd_tok[(ph, ks)])
            x = XF + 4*ks
            if ph == "A":
                mfma(AZ, x, zbuf(ks)); yield ("A", ks)
                mfma(AG[0], wbufA(ks,0), x); yield ("A", ks)
                mfma(AG[1], wbufA(ks,1), x); yield ("A", ks)
            else:
                mfma(AG[2], wbufB(ks,0), x); yield ("B", ks)
                mfma(AG[3], wbufB(ks,1), x); yield ("B", ks)

    def aux_load():
        e("v_mov_b32 v34, 128"); yield
        spin(e, 34, 36, lambda: e("s_cmp_ge_u32 s60, 32"), 35, "K1_AUX"); yield
        e("s_lshl_b32 s56, s52, 10")
        e(f"s_add_u32 s56, s56, {WS_STAT}")
        e("v_lshlrev_b32 v34, 4, v0"); yield
        t1 = e("buffer_load_dwordx4 v[36:39], v34, s[32:35], s56 offen sc1"); yield
        e("v_lshrrev_b32 v35, 5, v0"); yield
        e("v_mul_u32_u24 v35, 7168, v35"); yield
        e("v_and_b32 v40, 31, v0"); yield
        e("v_lshl_add_u32 v35, v40, 4, v35"); yield
        e("s_lshl_b32 s56, s53, 9")
        e(f"s_add_u32 s56, s56, {WS_CSW}")
        t2 = e("buffer_load_dwordx4 v[40:43], v35, s[32:35], s56 offen sc1"); yield
        e("v_and_b32 v35, 15, v0"); yield
        e("v_add_u32 v35, s78, v35"); yield
        e("v_lshlrev_b32 v35, 2, v35"); yield
        e(f"s_mov_b32 s56, {WS_CSB}")
        t3 = e(f"buffer_load_dword v{CSR}, v35, s[32:35], s56 offen sc1"); yield
        t4 = e(f"buffer_load_dword v{CSI}, v35, s[32:35], s56 offen offset:1792 sc1"); yield
        e("s_lshl_b32 s56, s52, 10")
        e(f"s_add_u32 s56, s56, {WS_STAT}")
        e("v_lshlrev_b32 v35, 3, v47"); yield
        t5 = e(f"buffer_load_dwordx2 v[{M_}:{M_+1}], v35, s[32:35], s56 offen sc1"); yield
        e.wait(t1, t2); yield
        e("v_rcp_f32 v37, v37"); yield
        e("v_rcp_f32 v39, v39"); yield
        e(f"v_add_u32 v34, {M_ST}, v34"); yield
        e("ds_write_b128 v34, v[36:39]"); yield
        e(f"ds_write_b128 v34, v[40:43] offset:{M_CS - M_ST}"); yield
        e.wait(t3, t4, t5); yield
        e(f"v_rcp_f32 v{NLR}, v{SD}"); yield
        e(f"v_mul_f32 v{NLR}, {f32(-LOG2E)}, v{NLR}"); yield
        e.wait_all(vm=False); yield

    def z_pass1():
        for i in range(8):
            e(f"v_permlane16_swap_b32 v{AZ+i}, v{AZ+8+i}"); yield
        e("v_lshrrev_b32 v34, 4, v0"); yield
        e("s_lshl_b32 s56, s54, 8")
        e(f"s_add_u32 s56, s56, {M_ST}")
        e("v_lshlrev_b32 v34, 6, v34"); yield
        e("v_add_u32 v34, s56, v34"); yield
        for g in range(4):
            tk = e(f"ds_read_b128 v[36:39], v34 offset:{g*16}"); yield
            e.wait(tk); yield
            for u in range(2):
                i = 2*g + u; mm, rr = 36 + 2*u, 37 + 2*u
                zr, zi = AZ + i, AZ + 8 + i
                e(f"v_fma_f32 v40, -v{mm}, v{CSR}, v{zr}"); yield
                e(f"v_fma_f32 v41, -v{mm}, v{CSI}, v{zi}"); yield
                e(f"v_mul_f32 v40, v40, v{rr}"); yield
                e(f"v_mul_f32 v41, v41, v{rr}"); yield
                e(f"v_mul_f32 v42, v{CI}, v41"); yield
                e(f"v_mul_f32 v43, v{CI}, v40"); yield
                e(f"v_fma_f32 v{zr}, v{CR}, v40, -v42"); yield
                e(f"v_fma_f32 v{zi}, v{CR}, v41, v43"); yield
        e(f"v_mov_b32 v{ER}, v{AZ}"); yield
        e(f"v_mov_b32 v{EI}, v{AZ+8}"); yield
        for i in range(1, 8):
            yield from cfma(e, ER, EI, LR, LI, AZ+i, AZ+8+i, 40)
        e("v_and_b32 v34, 15, v0"); yield
        e("s_lshl_b32 s56, s55, 4")
        e("v_add_u32 v34, s56, v34"); yield
        e(f"v_lshl_add_u32 v35, v{SIG}, 5, v34"); yield
        e("v_lshlrev_b32 v35, 3, v35"); yield
        e(f"v_add_u32 v35, {M_SEG}, v35"); yield
        e(f"ds_write_b64 v35, v[{ER}:{EI}]"); yield
        e.wait_all(vm=False); yield
    def z_prefix():
        e("v_and_b32 v34, 15, v0"); yield
        e("s_lshl_b32 s56, s55, 4")
        e("v_add_u32 v34, s56, v34"); yield
        e("v_lshlrev_b32 v34, 3, v34"); yield
        e(f"v_add_u32 v34, {M_SEG}, v34"); yield
        e(f"v_mov_b32 v{PR}, 0"); yield
        e(f"v_mov_b32 v{PI}, 0"); yield
        for half in range(4):
            tk = [e(f"ds_read_b64 v[{36+2*u}:{37+2*u}], v34 offset:{(4*half+u)*256}") for u in range(4)]
            yield
            e.wait(tk); yield
            for u in range(4):
                sp = 4*half + u
                if sp == 15: continue
                e(f"v_cmp_lt_u32 vcc, {sp}, v{SIG}"); yield
                yield from cfma_to(e, 44, 45, PR, PI, L8R, L8I, 36+2*u, 37+2*u)
                e(f"v_cndmask_b32 v{PR}, v{PR}, v44, vcc"); yield
                e(f"v_cndmask_b32 v{PI}, v{PI}, v45, vcc"); yield
        lab = e.label("K1_NOPUB")
        e("s_cmp_lg_u32 s54, 3")
        e(f"s_cbranch_scc1 {lab}")
        e.cond_begin()
        for _ in cfma_to(e, 44, 45, PR, PI, L8R, L8I, ER, EI): pass
        e("v_and_b32 v34, 15, v0")
        e("v_add_u32 v34, s78, v34")
        e("v_lshlrev_b32 v34, 3, v34")
        e(f"s_mul_i32 s56, s52, {448*8}")
        e(f"s_add_u32 s56, s56, {WS_E}")
        e("v_cmp_le_u32 vcc, 48, v0")
        e("s_and_saveexec_b64 s[58:59], vcc")
        e("buffer_store_dwordx2 v[44:45], v34, s[32:35], s56 offen sc1")
        e.wait_all(lg=False)
        e("s_mov_b64 exec, s[58:59]")
        e("s_lshl_b32 s56, 1, s52")
        e("v_mov_b32 v34, s56")
        e("s_lshl_b32 s57, s53, 1")
        e("s_add_u32 s57, s57, s55")
        e("s_lshl_b32 s57, s57, 2")
        e("v_mov_b32 v35, s57")
        e("v_cmp_eq_u32 vcc, 0, v0")
        e("s_and_saveexec_b64 s[58:59], vcc")
        e("buffer_atomic_or v34, v35, s[36:39], 0 offen sc1")
        e("s_mov_b64 exec, s[58:59]")
        e.cond_end()
        e.raw(f"{lab}:")
        yield
    def gu_epi(tl, T0, CSB):
        acc = AG[tl]
        e(f"v_lshrrev_b32 v{T0}, 5, v0"); yield
        e(f"v_lshlrev_b32 v{T0}, 4, v{T0}"); yield
        e("s_lshl_b32 s56, s55, 7")
        e(f"s_add_u32 s56, s56, {M_CS + (tl>>1)*256 + (tl&1)*64}")
        e(f"v_add_u32 v{T0}, s56, v{T0}"); yield
        tk = [e(f"ds_read_b128 v[{CSB}:{CSB+3}], v{T0}"),
              e(f"ds_read_b128 v[{CSB+4}:{CSB+7}], v{T0} offset:32"),
              e(f"ds_read_b128 v[{CSB+8}:{CSB+11}], v{T0} offset:512"),
              e(f"ds_read_b128 v[{CSB+12}:{CSB+15}], v{T0} offset:544")]
        yield
        e.wait(tk); yield
        for i in range(8):
            g, u = acc + i, acc + 8 + i
            e(f"v_fma_f32 v{g}, -v{M_}, v{CSB+i}, v{g}"); yield
            e(f"v_fma_f32 v{u}, -v{M_}, v{CSB+8+i}, v{u}"); yield
            e(f"v_mul_f32 v{g}, v{g}, v{NLR}"); yield
            e(f"v_exp_f32 v{g}, v{g}"); yield
            e(f"v_fma_f32 v{g}, v{g}, v{SD}, v{SD}"); yield
            e(f"v_rcp_f32 v{g}, v{g}"); yield
            e(f"v_mul_f32 v{g}, v{g}, v{u}"); yield
        for p in range(4):
            e(f"v_cvt_pk_bf16_f32 v{acc+8+p}, v{acc+2*p}, v{acc+2*p+1}"); yield
        e(f"v_lshrrev_b32 v{T0}, 5, v0"); yield
        e(f"v_lshlrev_b32 v{T0}, 5, v{T0}"); yield
        e(f"v_and_b32 v{T0+1}, 31, v47"); yield
        e(f"v_add_u32 v{T0}, v{T0}, v{T0+1}"); yield
        e(f"v_lshlrev_b32 v{T0}, 4, v{T0}"); yield
        e(f"s_add_u32 s56, s79, {((tl>>1)*4 + (tl&1))*1024}")
        e(f"buffer_store_dwordx4 v[{acc+8}:{acc+11}], v{T0}, s[32:35], s56 offen"); yield
    def carry_and_pass2():
        EL = XF
        lab0 = e.label("K1_NOCARRY")
        e(f"v_mov_b32 v44, 0"); e(f"v_mov_b32 v45, 0")
        e("s_cmp_eq_u32 s52, 0")
        e(f"s_cbranch_scc1 {lab0}")
        e("s_lshl_b32 s57, s53, 1")
        e("s_add_u32 s57, s57, s55")
        e("s_lshl_b32 s57, s57, 2")
        e("v_mov_b32 v34, s57")
        e("s_lshl_b32 s62, 1, s52")
        e("s_sub_u32 s62, s62, 1")
        def cond():
            e("s_and_b32 s60, s60, s62")
            e("s_cmp_eq_u32 s60, s62")
        spin(e, 34, 36, cond, 35, "K1_E")
        e("v_and_b32 v34, 15, v0")
        e("v_add_u32 v34, s78, v34")
        e("v_lshlrev_b32 v34, 3, v34")
        e(f"s_mov_b32 s56, {WS_E}")
        labl = e.label("K1_ELOADED")
        for ip in range(15):
            if ip > 0:
                e(f"s_cmp_le_u32 s52, {ip}")
                e(f"s_cbranch_scc1 {labl}")
            e(f"buffer_load_dwordx2 v[{EL+2*ip}:{EL+2*ip+1}], v34, s[32:35], s56 offen sc1")
            if ip < 14: e(f"s_add_u32 s56, s56, {448*8}")
        e.raw(f"{labl}:")
        e.wait_all(lg=False)
        for ip in range(15):
            e(f"s_cmp_le_u32 s52, {ip}")
            e(f"s_cbranch_scc1 {lab0}")
            for _ in cfma(e, 44, 45, L128R, L128I, EL+2*ip, EL+2*ip+1, 40): pass
        e.raw(f"{lab0}:")
        e(f"v_fma_f32 v{PR}, v{TR}, v44, v{PR}")
        e(f"v_fma_f32 v{PI}, v{TR}, v45, v{PI}")
        e(f"v_fma_f32 v{PR}, -v{TI}, v45, v{PR}")
        e(f"v_fma_f32 v{PI}, v{TI}, v44, v{PI}")
        pr, pi = PR, PI
        for i in range(8):
            zr, zi = AZ + i, AZ + 8 + i
            e(f"v_fma_f32 v{zr}, v{LR}, v{pr}, v{zr}")
            e(f"v_fma_f32 v{zi}, v{LR}, v{pi}, v{zi}")
            e(f"v_fma_f32 v{zr}, -v{LI}, v{pi}, v{zr}")
            e(f"v_fma_f32 v{zi}, v{LI}, v{pr}, v{zi}")
            pr, pi = zr, zi
        for p in range(4):
            e(f"v_cvt_pk_bf16_f32 v{36+p}, v{AZ+2*p}, v{AZ+2*p+1}")
            e(f"v_cvt_pk_bf16_f32 v{40+p}, -v{AZ+8+2*p}, -v{AZ+8+2*p+1}")
        e("v_and_b32 v34, 15, v0")
        e("v_lshlrev_b32 v34, 6, v34")
        e("v_lshrrev_b32 v35, 4, v0")
        e("v_lshl_add_u32 v34, v35, 4, v34")
        e("v_add_u32 v34, s73, v34")
        e("ds_write_b128 v34, v[36:39]")
        e("ds_write_b128 v34, v[40:43] offset:1024")
        e("v_lshrrev_b32 v35, 5, v0")
        e("v_bfe_u32 v44, v0, 2, 2")
        e("v_lshl_add_u32 v35, v35, 3, v44")
        e("v_lshlrev_b32 v35, 6, v35")
        e("v_bfe_u32 v44, v0, 4, 1")
        e("v_lshl_add_u32 v35, v44, 5, v35")
        e("v_and_b32 v44, 3, v0")
        e("v_lshl_add_u32 v35, v44, 3, v35")
        e("v_add_u32 v35, s73, v35")
        e.wait_all(vm=False)
        tk = [e("ds_read_b64_tr_b16 v[36:37], v35"), e("ds_read_b64_tr_b16 v[38:39], v35 offset:256"),
              e("ds_read_b64_tr_b16 v[40:41], v35 offset:1024"), e("ds_read_b64_tr_b16 v[42:43], v35 offset:1280")]
        e("s_lshl_b32 s56, s53, 1")
        e("s_add_u32 s56, s56, s55")
        e("s_lshr_b32 s57, s56, 2")
        e("s_lshl_b32 s57, s57, 3")
        e("s_and_b32 s56, s56, 3")
        e("s_add_u32 s56, s56, s57")
        e("s_lshl_b32 s57, s52, 2")
        e("s_add_u32 s57, s57, s54")
        e("s_mul_i32 s57, s57, 56")
        e("s_add_u32 s56, s56, s57")
        e("s_lshl_b32 s56, s56, 10")
        e(f"s_add_u32 s56, s56, {WS_hF}")
        e("v_lshlrev_b32 v34, 4, v0")
        e.wait(tk)
        e("buffer_store_dwordx4 v[36:39], v34, s[32:35], s56 offen")
        e("s_add_u32 s56, s56, 4096")
        e("buffer_store_dwordx4 v[40:43], v34, s[32:35], s56 offen")

    e("s_lshl_b32 s56, s52, 2")
    e("s_add_u32 s56, s56, s54")
    e("s_mul_i32 s56, s56, 112")
    e("s_lshl_b32 s57, s53, 3")
    e("s_add_u32 s56, s56, s57")
    e("s_lshl_b32 s57, s55, 1")
    e("s_add_u32 s56, s56, s57")
    e("s_lshl_b32 s79, s56, 10")
    if WS_HF: e(f"s_add_u32 s79, s79, {WS_HF}")

    drain(params())
    ms = main_stream()
    state = "A"
    for (ph, ks) in ms:
        if ph == "B" and state == "A":
            state = "B"
    drain(aux_load())
    drain(z_pass1())
    e("s_barrier")
    drain(z_prefix())
    for tl in range(4):
        drain(gu_epi(tl, 34, 128))
    e("s_barrier")
    carry_and_pass2()
    e.raw("K1_END:")
    e("s_endpgm")
    gen_helper(e)
    return 256
```

```python
import sys
sys.path.insert(0, "dev")
from asmlib import *

NAME = "recurrent_scan__ssm_conv_s5__glu_gated_glu__prompt"
WS_HF   = 0
WS_hF   = 64*112*1024
WS_STAT = WS_hF + 64*56*1024
WS_CSW  = WS_STAT + 2048*8
WS_CSB  = WS_CSW + 3584*4
WS_E    = WS_CSB + 896*4
WS_END  = WS_E + 16*448*8
LOG2E = 1.4426950408889634
import struct
def f32(x): return "0x%08x" % struct.unpack("<I", struct.pack("<f", x))[0]

def srd(e, s, ptr, nbytes):
    e(f"s_mov_b32 s{s}, s{ptr}")
    e(f"s_and_b32 s{s+1}, s{ptr+1}, 0xffff")
    e(f"s_mov_b32 s{s+2}, {nbytes}")
    e(f"s_mov_b32 s{s+3}, 0x20000")

def bf16_round_pair(e, dst_lo, dst_hi, a, b, tmp):
    e(f"v_cvt_pk_bf16_f32 v{tmp}, v{a}, v{b}")
    yield
    e(f"v_lshlrev_b32 v{dst_lo}, 16, v{tmp}")
    yield
    e(f"v_and_b32 v{dst_hi}, 0xffff0000, v{tmp}")
    yield

def pull(gen, n):
    if gen is None: return None
    for _ in range(n):
        try: next(gen)
        except StopIteration: return None
    return gen
def drain(gen):
    if gen is None: return
    for _ in gen: pass

K2_R = 9
K2_STAGE = 16384
def gen_k2(e):
    e.raw("k2_kernel:")
    e("s_cmp_ge_u32 s2, 224")
    e("s_cbranch_scc1 K2_END")
    e("s_load_dwordx2 s[4:5], s[0:1], 0")
    e("s_load_dwordx2 s[6:7], s[0:1], 40")
    e("s_load_dwordx2 s[8:9], s[0:1], 48")
    e("s_load_dwordx2 s[10:11], s[0:1], 64")
    e("s_load_dwordx2 s[12:13], s[0:1], 96")
    e("s_load_dwordx2 s[14:15], s[0:1], 104")
    t = e("s_load_dwordx2 s[16:17], s[0:1], 120")
    e("v_lshrrev_b32 v1, 6, v0")
    e("v_and_b32 v0, 63, v0")
    e("v_readfirstlane_b32 s48, v1")
    e("s_and_b32 s49, s2, 7")
    e("s_lshl_b32 s49, s49, 2")
    e("s_lshr_b32 s50, s2, 3")
    e("s_and_b32 s51, s50, 3")
    e("s_add_u32 s49, s49, s51")
    e("s_lshr_b32 s50, s50, 2")
    e.wait(t)
    srd(e, 20, 4, 2048*448*2)
    srd(e, 24, 6, 448*448*2)
    srd(e, 28, 8, 448*448*2)
    srd(e, 32, 10, 448*2)
    srd(e, 36, 12, 1792*448*2)
    srd(e, 40, 14, 2048*448*4)
    srd(e, 44, 16, WS_END)
    e("s_cmp_ge_u32 s48, 4")
    e("s_cbranch_scc1 K2_LOADER")
    e("s_and_b32 s52, s48, 1")
    e("s_lshr_b32 s53, s48, 1")
    e("v_and_b32 v1, 31, v0")
    e("v_lshrrev_b32 v2, 5, v0")
    e("v_and_b32 v3, 15, v0")
    e("v_lshrrev_b32 v4, 4, v0")
    e("s_lshl_b32 s54, s49, 6")
    e("s_lshl_b32 s55, s52, 5")
    e("s_add_u32 s54, s54, s55")
    e("v_add_u32 v5, s54, v1")
    e("s_lshl_b32 s55, s50, 6")
    e("s_lshl_b32 s56, s53, 5")
    e("s_add_u32 s55, s55, s56")
    e("v_lshlrev_b32 v6, 2, v2")
    e("v_add_u32 v6, s55, v6")
    e("s_movk_i32 s57, 896")
    e("v_mul_lo_u32 v7, s57, v5")
    e("v_lshlrev_b32 v8, 1, v6")
    e("v_add_u32 v7, v7, v8")
    e("v_lshlrev_b32 v9, 3, v5")
    e(f"v_add_u32 v9, {WS_STAT}, v9")
    e("v_lshlrev_b32 v10, 1, v7")
    XR, DK, ST = 16, 24, 32
    toks = []
    for a in range(4): toks.append(e(f"buffer_load_dwordx2 v[{XR+2*a}:{XR+2*a+1}], v7, s[20:23], 0 offen offset:{16*a}"))
    for a in range(4): toks.append(e(f"buffer_load_dwordx2 v[{DK+2*a}:{DK+2*a+1}], v8, s[32:35], 0 offen offset:{16*a}"))
    toks.append(e(f"buffer_load_dwordx2 v[{ST}:{ST+1}], v9, s[44:47], 0 offen"))
    epi_toks = toks
    e("s_lshl_b32 s57, s52, 12")
    e("v_lshlrev_b32 v11, 4, v0")
    e("v_add_u32 v11, s57, v11")
    e("v_lshrrev_b32 v13, 2, v3")
    e("v_lshl_add_u32 v13, v2, 2, v13")
    e("v_lshlrev_b32 v12, 7, v13")
    e("v_and_b32 v13, 1, v4")
    e("s_lshl_b32 s57, s53, 1")
    e("v_add_u32 v13, s57, v13")
    e("v_lshrrev_b32 v14, 3, v3")
    e("v_lshlrev_b32 v14, 1, v14")
    e("v_xor_b32 v13, v13, v14")
    e("v_lshl_add_u32 v12, v13, 5, v12")
    e("v_and_b32 v13, 3, v3")
    e("v_lshl_add_u32 v12, v13, 3, v12")
    e("v_add_u32 v12, 8192, v12")
    e("s_lshl_b32 s57, s53, 5")
    e("v_add_u32 v13, s57, v1")
    e("v_lshlrev_b32 v13, 7, v13")
    e("v_lshrrev_b32 v14, 1, v1")
    e("v_and_b32 v14, 7, v14")
    e("v_xor_b32 v14, v14, v2")
    e("v_lshl_add_u32 v13, v14, 4, v13")
    e("v_add_u32 v13, 8192, v13")
    PH, PW, PC = 11, 12, 13
    TH, TW = 14, 15
    ACCO, ACCY = 64, 80
    FR = 96
    XF, SK, G = 34, 160, 176
    T0 = 50
    def hfrag(set_, kk): return FR + set_*32 + kk*8
    def wfrag(set_, kk): return FR + set_*32 + kk*8 + 4

    def pre_epi():
        e.wait(epi_toks)
        yield
        e(f"v_rcp_f32 v{T0}, v{ST+1}")
        yield
        for p in range(8):
            xa, xb = XF+2*p, XF+2*p+1
            e(f"v_lshlrev_b32 v{xa}, 16, v{XR+p}"); yield
            e(f"v_and_b32 v{xb}, 0xffff0000, v{XR+p}"); yield
            e(f"v_sub_f32 v{T0+1}, v{xa}, v{ST}"); yield
            e(f"v_sub_f32 v{T0+2}, v{xb}, v{ST}"); yield
            yield from bf16_round_pair(e, T0+1, T0+2, T0+1, T0+2, T0+3)
            e(f"v_mul_f32 v{T0+1}, v{T0+1}, v{T0}"); yield
            e(f"v_mul_f32 v{T0+2}, v{T0+2}, v{T0}"); yield
            yield from bf16_round_pair(e, T0+1, T0+2, T0+1, T0+2, T0+3)
            e(f"v_lshlrev_b32 v{T0+4}, 16, v{DK+p}"); yield
            e(f"v_and_b32 v{T0+5}, 0xffff0000, v{DK+p}"); yield
            e(f"v_mul_f32 v{T0+1}, v{T0+1}, v{T0+4}"); yield
            e(f"v_mul_f32 v{T0+2}, v{T0+2}, v{T0+5}"); yield
            yield from bf16_round_pair(e, SK+2*p, SK+2*p+1, T0+1, T0+2, T0+3)
    def silu_epi():
        for p in range(8):
            a, b = T0+1, T0+2
            yield from bf16_round_pair(e, a, b, ACCO+2*p, ACCO+2*p+1, T0+3)
            e(f"v_mul_f32 v{T0+4}, {f32(-LOG2E)}, v{a}"); yield
            e(f"v_mul_f32 v{T0+5}, {f32(-LOG2E)}, v{b}"); yield
            e(f"v_exp_f32 v{T0+4}, v{T0+4}"); yield
            e(f"v_exp_f32 v{T0+5}, v{T0+5}"); yield
            e(f"v_add_f32 v{T0+4}, 1.0, v{T0+4}"); yield
            e(f"v_add_f32 v{T0+5}, 1.0, v{T0+5}"); yield
            e(f"v_rcp_f32 v{T0+4}, v{T0+4}"); yield
            e(f"v_rcp_f32 v{T0+5}, v{T0+5}"); yield
            e(f"v_mul_f32 v{a}, v{a}, v{T0+4}"); yield
            e(f"v_mul_f32 v{b}, v{b}, v{T0+5}"); yield
            yield from bf16_round_pair(e, G+2*p, G+2*p+1, a, b, T0+3)

    NST = 42
    fill = pre_epi()
    first = {ACCO: True, ACCY: True}
    def mfmas(t):
        acc = ACCO if t < 28 else ACCY
        for kk in range(4):
            c = "0" if first[acc] else f"v[{acc}:{acc+15}]"
            first[acc] = False
            e(f"v_mfma_f32_32x32x16_bf16 v[{acc}:{acc+15}], v[{wfrag(t&1,kk)}:{wfrag(t&1,kk)+3}], v[{hfrag(t&1,kk)}:{hfrag(t&1,kk)+3}], {c}")
            yield
    for t in range(NST + 1):
        if t < NST:
            e("s_barrier")
            base = (t % K2_R) * K2_STAGE
            e(f"v_add_u32 v{TH}, {base}, v{PH}")
            if t < 28: e(f"v_add_u32 v{TW}, {base}, v{PW}")
            else:      e(f"v_add_u32 v{TW}, {base}, v{PC}")
        mf = mfmas(t-1) if t >= 1 else None
        for kk in range(4):
            if t < NST:
                e(f"ds_read_b128 v[{hfrag(t&1,kk)}:{hfrag(t&1,kk)+3}], v{TH} offset:{kk*1024}")
                w = wfrag(t&1,kk)
                if t < 28:
                    e(f"ds_read_b64_tr_b16 v[{w}:{w+1}], v{TW} offset:{kk*2048}")
                    e(f"ds_read_b64_tr_b16 v[{w+2}:{w+3}], v{TW} offset:{kk*2048+1024}")
                else:
                    if kk == 0: e(f"ds_read_b128 v[{w}:{w+3}], v{TW}")
                    else:
                        e(f"v_xor_b32 v{T0+8}, {kk<<5}, v{TW}")
                        e(f"ds_read_b128 v[{w}:{w+3}], v{T0+8}")
            if mf is not None: mf = pull(mf, 1)
            fill = pull(fill, 6)
        if t == 29:
            drain(fill); fill = silu_epi()
        if t < NST: e.wait_all(vm=False, lg=True)
    drain(fill)
    for i in range(16):
        e(f"v_add_f32 v{SK+i}, v{ACCY+i}, v{SK+i}")
    for i in range(16):
        e(f"v_fma_f32 v{SK+i}, v{SK+i}, v{G+i}, v{XF+i}")
    for a in range(4):
        e(f"buffer_store_dwordx4 v[{SK+4*a}:{SK+4*a+3}], v10, s[40:43], 0 offen offset:{32*a}")
    e("s_endpgm")
    e2 = e
    e.raw("K2_LOADER:")
    e.lg_issued = e.lg_done = 0; e.vm_issued = e.vm_done = 0
    e("s_sub_u32 s52, s48, 4")
    e("s_and_b32 s53, s52, 1")
    e("s_lshr_b32 s54, s52, 1")
    e("v_lshlrev_b32 v1, 4, v0")
    e("v_lshrrev_b32 v2, 3, v0")
    e("s_lshl_b32 s55, s52, 4")
    e("v_add_u32 v2, s55, v2")
    e("s_movk_i32 s55, 896")
    e("v_mul_lo_u32 v2, s55, v2")
    e("v_and_b32 v3, 7, v0")
    e("v_lshrrev_b32 v4, 4, v0")
    e("v_and_b32 v5, 1, v4")
    e("v_lshlrev_b32 v5, 2, v5")
    e("v_xor_b32 v5, v5, v3")
    e("v_lshl_add_u32 v5, v5, 4, v2")
    e("v_xor_b32 v6, v4, v3")
    e("v_lshl_add_u32 v6, v6, 4, v2")
    e("v_add_u32 v7, 4, v4")
    e("v_xor_b32 v7, v7, v3")
    e("v_lshl_add_u32 v7, v7, 4, v2")
    e(f"v_add_u32 v7, {8*896}, v7")
    e("s_lshl_b32 s58, s49, 1")
    e("s_add_u32 s58, s58, s53")
    e("s_lshl_b32 s59, s54, 1")
    e("s_mul_i32 s56, s58, 112")
    e("s_add_u32 s56, s56, s59")
    e("s_lshl_b32 s56, s56, 10")
    if WS_HF: e(f"s_add_u32 s56, s56, {WS_HF}")
    e("s_mul_i32 s57, s58, 56")
    e("s_add_u32 s57, s57, s59")
    e("s_lshl_b32 s57, s57, 10")
    e(f"s_add_u32 s57, s57, {WS_hF}")
    e("s_lshl_b32 s60, s53, 2")
    e("s_add_u32 s60, s60, s59")
    e("s_lshl_b32 s60, s60, 10")
    e("s_lshl_b32 s61, s52, 11")
    e("s_add_u32 s61, s61, 8192")
    e("s_lshl_b32 s62, s50, 7")
    e(f"s_mul_i32 s63, s50, {64*896}")
    stage_tok = {}
    def issue(t):
        base = (t % K2_R) * K2_STAGE
        for a in range(2):
            if t < 28: e(f"s_add_u32 s64, s56, {(4*t+a)*1024}")
            else:      e(f"s_add_u32 s64, s57, {(4*(t-28)+a)*1024}")
            e(f"s_add_u32 m0, s60, {base + a*1024}")
            e("buffer_load_dwordx4 v1, s[44:47], s64 offen lds")
        for a in range(2):
            e(f"s_add_u32 m0, s61, {base + a*1024}")
            if t < 28:
                e(f"s_add_u32 s64, s62, {64*t*896 + a*7168}")
                tok = e("buffer_load_dwordx4 v5, s[36:39], s64 offen lds")
            else:
                u = t - 28; m = u >> 1; part = u & 1
                e(f"s_add_u32 s64, s63, {128*m}")
                tok = e(f"buffer_load_dwordx4 v{6+a}, s[{24+4*part}:{27+4*part}], s64 offen lds")
        stage_tok[t] = tok
    for t in range(K2_R - 1): issue(t)
    for t in range(NST):
        e.wait(stage_tok[t])
        e("s_barrier")
        if t + K2_R - 1 < NST: issue(t + K2_R - 1)
    e.raw("K2_END:")
    e("s_endpgm")

def kd(name, vgpr, sgpr=102):
    acc = (vgpr + 3)//4*4
    return f""".amdhsa_kernel {name}
  .amdhsa_next_free_vgpr {vgpr}
  .amdhsa_next_free_sgpr {sgpr}
  .amdhsa_accum_offset {acc}
  .amdhsa_group_segment_fixed_size 0
  .amdhsa_kernarg_size 128
  .amdhsa_user_sgpr_count 2
  .amdhsa_user_sgpr_kernarg_segment_ptr 1
  .amdhsa_system_sgpr_workgroup_id_x 1
.end_amdhsa_kernel"""

def main():
    which = sys.argv[2] if len(sys.argv) > 2 else "k2"
    hdr = open(f"cdna_kernels/{NAME}.s.ref").read().split("; Override launch")[0]
    out = [hdr.rstrip()]
    kernels = []
    if "k1" in which:
        out.append("; @launch kernel=k1_kernel grid=(256,1,1) block=(512,1,1) lds=163840")
    if "k2" in which:
        out.append(f"; @launch kernel=k2_kernel grid=(224,1,1) block=(512,1,1) lds={K2_R*K2_STAGE}")
    out.append('.amdgcn_target "amdgcn-amd-amdhsa--gfx950"\n.text')
    kds = []
    if "k1" in which:
        import gen_k1
        e = Emit(); vg = gen_k1.gen_k1(e)
        out.append(".globl k1_kernel\n.p2align 8\n.type k1_kernel,@function"); out.append(e.finish()); kds.append(kd("k1_kernel", vg))
    if "k2" in which:
        e = Emit(); gen_k2(e)
        out.append(".globl k2_kernel\n.p2align 8\n.type k2_kernel,@function"); out.append(e.finish()); kds.append(kd("k2_kernel", 192))
    out.append('.section .rodata,"a"\n.p2align 6')
    out.append("\n.p2align 6\n".join(kds))
    open(sys.argv[1], "w").write("\n".join(out) + "\n")
if __name__ == "__main__": main()
```

```python
import re

TRANS = {"v_exp_f32","v_log_f32","v_rcp_f32","v_rsq_f32","v_sqrt_f32","v_sin_f32","v_cos_f32"}
RMW_DST = {"v_fmac_f32","v_dot2c_f32_bf16","v_fmac_f32_e32"}

def regs_of(tok):
    tok = tok.strip()
    neg = tok.startswith("-")
    if neg: tok = tok[1:]
    m = re.fullmatch(r"abs\((.*)\)", tok)
    if m: tok = m.group(1)
    tok = tok.strip("|")
    m = re.fullmatch(r"([vsa])(\d+)", tok)
    if m: return [(m.group(1), int(m.group(2)))]
    m = re.fullmatch(r"([vsa])\[(\d+):(\d+)\]", tok)
    if m: return [(m.group(1), i) for i in range(int(m.group(2)), int(m.group(3)) + 1)]
    if tok == "vcc": return [("s", "vcc")]
    if tok == "exec": return [("s", "exec")]
    if tok == "m0": return [("s", "m0")]
    return []

class Ins:
    __slots__ = ("text","op","cls","wr","rd","passes","srcC","comment","isnop","nstates")
    def __init__(self, text):
        self.text = text
        t = text.split(";")[0].strip()
        self.op = t.split()[0] if t else ""
        rest = t[len(self.op):].strip()
        ops = [o.strip() for o in rest.split(",")] if rest else []
        mods = []
        if ops:
            parts = ops[-1].split()
            ops[-1] = parts[0] if parts else ""
            mods = parts[1:]
        op = self.op
        self.wr = set(); self.rd = set(); self.passes = 0; self.srcC = set(); self.nstates = 1
        self.isnop = False
        R = lambda k: set(regs_of(ops[k])) if k < len(ops) else set()
        allr = lambda a: set().union(*[set(regs_of(o)) for o in ops[a:]]) if len(ops) > a else set()
        if op.endswith(":") or op.startswith("."):
            self.cls = "label"; self.nstates = 0
        elif op == "s_nop":
            self.cls = "salu"; self.isnop = True; self.nstates = int(ops[0], 0) + 1
        elif op.startswith("v_mfma"):
            self.cls = "mfma"; self.wr = R(0); self.rd = R(1) | R(2) | R(3); self.srcC = R(3)
            self.passes = 8 if "32x32x16" in op else (4 if "16x16x32" in op else 16)
        elif op.startswith("v_cmp"):
            self.cls = "valu"; self.wr = R(0); self.rd = allr(1)
        elif op.startswith("v_readfirstlane") or op.startswith("v_readlane"):
            self.cls = "valu"; self.wr = R(0); self.rd = allr(1)
        elif op.startswith("v_permlane") and "swap" in op:
            self.cls = "valu"; self.wr = R(0) | R(1); self.rd = R(0) | R(1)
        elif op.startswith("v_add_co") or op.startswith("v_sub_co") or op.startswith("v_addc_co"):
            self.cls = "valu"; self.wr = R(0) | R(1); self.rd = allr(2)
        elif op.startswith("v_cndmask"):
            self.cls = "valu"; self.wr = R(0); self.rd = allr(1)
            if len(ops) == 3: self.rd |= {("s","vcc")}
        elif op.startswith("v_"):
            self.cls = "valu"; self.wr = R(0); self.rd = allr(1)
            if op in RMW_DST: self.rd |= R(0)
            if any("dpp" in m or m.startswith("quad_perm") or m.startswith("row_") for m in mods) or op.endswith("_dpp"):
                self.cls = "valu"; self.op = op + "#dpp"
        elif op.startswith("ds_read") or op.startswith("ds_bpermute") or op.startswith("ds_swizzle"):
            self.cls = "ds"; self.wr = R(0); self.rd = allr(1)
        elif op.startswith("ds_"):
            self.cls = "ds"; self.rd = allr(0)
        elif op.startswith("buffer_load") or op.startswith("global_load"):
            self.cls = "vmem"
            if "lds" in mods or op.startswith("global_load_lds"): self.rd = allr(0) | {("s","m0")}; self.op = op + "#lds"
            else: self.wr = R(0); self.rd = allr(1)
        elif op.startswith("buffer_store") or op.startswith("global_store") or op.startswith("buffer_atomic") or op.startswith("global_atomic"):
            self.cls = "vmem"; self.rd = allr(0)
            if "atomic" in op and "sc0" in mods: self.wr = R(0)
        elif op.startswith("s_load") or op.startswith("s_memtime") or op.startswith("s_memrealtime"):
            self.cls = "smem"; self.wr = R(0); self.rd = allr(1)
        elif op.startswith("s_cmp") or op.startswith("s_bitcmp"):
            self.cls = "salu"; self.rd = allr(0); self.wr = {("s","scc")}
        elif op == "s_getpc_b64":
            self.cls = "salu"; self.wr = R(0)
        elif op.startswith("s_cbranch") or op in ("s_branch","s_barrier","s_waitcnt","s_endpgm","s_setprio","s_sleep"):
            self.cls = "salu"
        elif op.startswith("s_and_saveexec") or op.startswith("s_or_saveexec"):
            self.cls = "salu"; self.wr = R(0) | {("s","exec")}; self.rd = allr(1) | {("s","exec")}
        elif op.startswith("s_"):
            self.cls = "salu"; self.wr = R(0); self.rd = allr(1)
        else:
            raise ValueError("unknown op: " + text)

def need_states(p, c):
    n = 0
    vw = {r for r in p.wr if r[0] in "va"}
    sw = {r for r in p.wr if r[0] == "s"}
    if p.cls == "valu":
        if c.cls == "mfma" and (vw & c.rd): n = max(n, 2)
        if c.op.startswith("v_permlane") and (vw & c.rd): n = max(n, 2)
        if c.op.endswith("#dpp") and (vw & c.rd): n = max(n, 2)
        if (c.op.startswith("v_readfirstlane") or c.op.startswith("v_readlane")) and (vw & c.rd): n = max(n, 1)
        if p.op in TRANS and c.cls in ("valu","mfma") and (vw & c.rd): n = max(n, 1)
        if sw:
            if c.cls == "valu" and (sw & c.rd): n = max(n, 2)
            if c.cls == "mfma" and (sw & c.rd): n = max(n, 2)
            if c.cls == "vmem" and (sw & c.rd): n = max(n, 5)
            if c.cls in ("salu","smem") and (sw & c.rd): n = max(n, 2)
            if c.op.startswith("s_cbranch_vcc") and ("s","vcc") in sw: n = max(n, 2)
            if ("s","exec") in sw: n = max(n, 5)
    if p.cls == "mfma":
        P = p.passes
        big = {2:5, 4:8, 8:12, 16:20}[P]
        ovl = {2:4, 4:6, 8:10, 16:18}[P]
        if c.cls == "mfma":
            if vw & (c.rd - c.srcC if False else set()): pass
            ab = c.rd - c.srcC
            if vw & (c.rd - c.srcC) : n = max(n, big)
            if vw & c.srcC:
                if c.srcC == p.wr and c.passes == p.passes: n = max(n, 0 if P >= 4 else 2)
                else: n = max(n, ovl)
            if (vw & c.wr) and not (vw & c.srcC): n = max(n, ovl)
        elif c.cls in ("valu","ds","vmem"):
            if vw & (c.rd | c.wr): n = max(n, big)
            if c.cls == "valu" and (p.srcC & c.wr): n = max(n, {2:1,4:3,8:7,16:15}[P])
    if p.cls == "vmem" and ("store" in p.op or "atomic" in p.op) and ("x4" in p.op or "x3" in p.op):
        if c.cls == "valu" and (p.rd & {r for r in c.wr if r[0] == "v"}): n = max(n, 2)
        elif c.cls in ("ds","vmem") and (p.rd & {r for r in c.wr if r[0] == "v"}): n = max(n, 1)
    if p.cls == "salu" and ("s","m0") in p.wr and (c.op.endswith("#lds")): n = max(n, 1)
    if p.cls == "salu" and ("s","exec") in p.wr and c.op.endswith("#dpp"): n = max(n, 0)
    return n

class Emit:
    def __init__(self):
        self.ins = []
        self.lg_issued = 0; self.lg_done = 0
        self.vm_issued = 0; self.vm_done = 0
        self.smem_out = False
        self.uid = 0
    def label(self, base="L"):
        self.uid += 1
        return f"{base}_{self.uid}"
    def raw(self, text):
        self.ins.append(Ins(text)); return self.ins[-1]
    def __call__(self, text):
        i = Ins(text)
        tok = None
        if i.cls == "ds":
            self.lg_issued += 1; tok = ("lg", self.lg_issued)
        elif i.cls == "vmem":
            self.vm_issued += 1; tok = ("vm", self.vm_issued)
        elif i.cls == "smem":
            self.smem_out = True; tok = ("sm", 0)
        self.ins.append(i)
        return tok
    def wait(self, *toks, force=False):
        lg = None; vm = None
        flat = []
        def fl(x):
            if x is None: return
            if isinstance(x, tuple) and len(x) == 2 and isinstance(x[0], str): flat.append(x)
            else:
                for y in x: fl(y)
        for t in toks: fl(t)
        for t in flat:
            k, n = t
            if k == "lg":
                if n > self.lg_done: lg = max(lg or 0, n)
            elif k == "vm":
                if n > self.vm_done: vm = max(vm or 0, n)
            elif k == "sm":
                if self.smem_out:
                    lg = self.lg_issued if lg is None else self.lg_issued
                    self._smem_force = True
        parts = []
        if vm is not None:
            c = min(self.vm_issued - vm, 63); parts.append(f"vmcnt({c})"); self.vm_done = max(self.vm_done, self.vm_issued - c)
        if lg is not None or getattr(self, "_smem_force", False):
            if getattr(self, "_smem_force", False) or self.smem_out:
                c = 0; self.smem_out = False; self._smem_force = False
            else:
                c = min(self.lg_issued - lg, 15)
            parts.append(f"lgkmcnt({c})"); self.lg_done = max(self.lg_done, self.lg_issued - c)
        if parts: self.raw("s_waitcnt " + " ".join(parts))
    def cond_begin(self):
        self._cond = getattr(self, "_cond", [])
        self._cond.append((self.vm_issued, self.vm_done, self.lg_issued, self.lg_done))
    def cond_end(self):
        self.vm_issued, self.vm_done, self.lg_issued, self.lg_done = self._cond.pop()
    def wait_all(self, vm=True, lg=True):
        parts = []
        if vm: parts.append("vmcnt(0)"); self.vm_done = self.vm_issued
        if lg: parts.append("lgkmcnt(0)"); self.lg_done = self.lg_issued; self.smem_out = False
        self.raw("s_waitcnt " + " ".join(parts))
    def finish(self):
        out = []
        window = []
        labpos = {}
        for k, i in enumerate(self.ins):
            if i.cls == "label" and i.op.endswith(":"): labpos[i.op[:-1]] = k
        INF = 1 << 60
        pos = {}; skip_end = {}
        for k, i in enumerate(self.ins): pos[id(i)] = k; skip_end[id(i)] = INF
        for k, i in enumerate(self.ins):
            if i.op.startswith("s_cbranch") or i.op == "s_branch":
                tgt = i.text.split()[-1]
                if tgt in labpos and labpos[tgt] > k:
                    t = labpos[tgt]
                    for q in range(k + 1, t):
                        j = id(self.ins[q])
                        if t < skip_end[j]: skip_end[j] = t
        for i in self.ins:
            if i.cls == "label":
                out.append(i)
                if i.op.endswith(":"):
                    pass
                continue
            need = 0
            dist = 0
            for p in reversed(window):
                req = need_states(p, i)
                if req - dist > need: need = req - dist
                if skip_end[id(p)] > pos[id(i)]: dist += p.nstates
                if dist >= 24: break
            while need > 0:
                k = min(need, 16)
                nop = Ins(f"s_nop {k-1}")
                pos[id(nop)] = pos[id(i)]; skip_end[id(nop)] = skip_end[id(i)]
                self._keep = getattr(self, "_keep", []); self._keep.append(nop)
                out.append(nop); window.append(nop); need -= k
            out.append(i); window.append(i)
            if len(window) > 120: window = window[-120:]
        return "\n".join(("" if x.cls == "label" and x.op.endswith(":") else "  ") + x.text for x in out)

def vr(a, n=1):
    return f"v{a}" if n == 1 else f"v[{a}:{a+n-1}]"
def sr(a, n=1):
    return f"s{a}" if n == 1 else f"s[{a}:{a+n-1}]"
```

```python
import sys
sys.path.insert(0, "dev")
from asmlib import *
import gen as G
from gen import *

RING = 19 * 8192
MISC = RING
M_ST = MISC
M_CS = MISC + 1024
M_SEG = MISC + 2048
M_N = MISC + 6144
import os
INTERLEAVE = os.environ.get("INTERLEAVE", "1") == "1"
AUX_POLL = int(os.environ.get("AUX_POLL", "56")); AUX_LOAD = int(os.environ.get("AUX_LOAD", "66")); AUX_FIN = int(os.environ.get("AUX_FIN", "80"))
BUDGET_A = float(os.environ.get("BUDGET_A", "4")); BUDGET_B0 = float(os.environ.get("BUDGET_B0", "6")); BUDGET_B = float(os.environ.get("BUDGET_B", "6"))
STAMPS = eval(os.environ.get("STAMPS", '[("A",0),("A",4),("A",27),("B",27)]'))
NOEPI = os.environ.get("NOEPI", "0") == "1"
NODMA = os.environ.get("NODMA", "0") == "1"
NOLDS = os.environ.get("NOLDS", "0") == "1"
NOBAR = os.environ.get("NOBAR", "0") == "1"
PRO_DMAS = int(os.environ.get("PRO_DMAS", "10"))
ROT = os.environ.get("ROT", "1") == "1"
TICKSTAMP = eval(os.environ.get("TICKSTAMP", "[]"))
WB_AHEAD = int(os.environ.get("WB_AHEAD", "2"))
STAGGER = os.environ.get("STAGGER", "1") == "1"

PX, PZ, PW, VX0, VX1, VZ, VW = 1, 2, 3, 4, 5, 6, 7
TBX, TBZ, TW0, TW1, TA, TB = 8, 9, 10, 11, 12, 13
LR, LI, CR, CI, L8R, L8I, L128R, L128I, TR, TI = 14, 15, 16, 17, 18, 19, 20, 21, 22, 23
M_, SD, NLR, CSR, CSI, PR, PI, SIG, ER, EI = 24, 25, 26, 27, 28, 29, 30, 31, 32, 33
T = 34
AZ = 48
AG = [64, 80, 96, 112]
XF = 128
FB = 240

def cmul(e, dr, di, ar, ai, br, bi, t):
    e(f"v_mul_f32 v{t}, v{ai}, v{bi}"); yield
    e(f"v_mul_f32 v{t+1}, v{ai}, v{br}"); yield
    e(f"v_fma_f32 v{t}, v{ar}, v{br}, -v{t}"); yield
    e(f"v_fma_f32 v{di}, v{ar}, v{bi}, v{t+1}"); yield
    e(f"v_mov_b32 v{dr}, v{t}"); yield
def csq(e, dr, di, ar, ai, t):
    e(f"v_mul_f32 v{t}, v{ai}, v{ai}"); yield
    e(f"v_mul_f32 v{t+1}, v{ar}, v{ai}"); yield
    e(f"v_fma_f32 v{dr}, v{ar}, v{ar}, -v{t}"); yield
    e(f"v_add_f32 v{di}, v{t+1}, v{t+1}"); yield
def cfma(e, hr, hi, lr, li, br, bi, t):
    e(f"v_fma_f32 v{t}, v{lr}, v{hr}, v{br}"); yield
    e(f"v_fma_f32 v{t+1}, v{lr}, v{hi}, v{bi}"); yield
    e(f"v_fma_f32 v{t}, -v{li}, v{hi}, v{t}"); yield
    e(f"v_fma_f32 v{hi}, v{li}, v{hr}, v{t+1}"); yield
    e(f"v_mov_b32 v{hr}, v{t}"); yield
def cfma_to(e, dr, di, hr, hi, lr, li, br, bi):
    e(f"v_fma_f32 v{dr}, v{lr}, v{hr}, v{br}"); yield
    e(f"v_fma_f32 v{di}, v{lr}, v{hi}, v{bi}"); yield
    e(f"v_fma_f32 v{dr}, -v{li}, v{hi}, v{dr}"); yield
    e(f"v_fma_f32 v{di}, v{li}, v{hr}, v{di}"); yield

def gen_helper(e):
    e.raw("K1_HELPER:")
    e.lg_issued = e.lg_done = 0; e.vm_issued = e.vm_done = 0
    srd(e, 20, 4, 2048*448*2)
    srd(e, 32, 18, WS_END if not G.PROFILE else (16 << 20))
    pr = G.Prof(e, 0); pr.stamp()
    srd(e, 36, 16, 256)
    nonce_cas(e, 12)
    e("s_lshl_b32 s49, s2, 3")
    e("s_add_u32 s49, s49, s48")
    e("v_lshrrev_b32 v1, 3, v0")
    e("v_and_b32 v2, 7, v0")
    e("v_lshlrev_b32 v2, 4, v2")
    e("s_movk_i32 s50, 896")
    e("v_mul_lo_u32 v3, s50, v1")
    e("v_add_u32 v3, v3, v2")
    e(f"s_mul_i32 s51, s49, {8*896}")
    XL = 16
    xt = [e(f"buffer_load_dwordx4 v[{XL+4*k}:{XL+4*k+3}], v3, s[20:23], s51 offen offset:{128*k}") for k in range(7)]
    e("s_sub_u32 s52, s49, 144")
    e("s_cmp_ge_u32 s49, 200")
    e("s_cselect_b32 s24, s10, s8")
    e("s_cselect_b32 s25, s11, s9")
    e("s_cselect_b32 s53, 56, 0")
    e("s_and_b32 s25, s25, 0xffff")
    e("s_sub_u32 s53, s52, s53")
    e(f"s_mul_i32 s53, s53, {8*896}")
    e("s_cmp_ge_u32 s49, 144")
    e(f"s_cselect_b32 s26, {448*448*2}, 0")
    e("s_cselect_b32 s53, s53, 0")
    e("s_mov_b32 s27, 0x20000")
    BL = 44
    bt = [e(f"buffer_load_dwordx4 v[{BL+4*k}:{BL+4*k+3}], v3, s[24:27], s53 offen offset:{128*k}") for k in range(7)]
    e("s_cmp_ge_u32 s2, 14")
    e("s_cselect_b32 s28, s14, s12")
    e("s_cselect_b32 s29, s15, s13")
    e("s_cselect_b32 s54, 14, 0")
    e("s_cselect_b32 s56, 1792, 0")
    e("s_and_b32 s29, s29, 0xffff")
    e("s_sub_u32 s54, s2, s54")
    e("s_cmp_lt_u32 s2, 28")
    e(f"s_cselect_b32 s30, {448*1792*2}, 0")
    e("s_cselect_b32 s54, s54, 0")
    e("s_mov_b32 s31, 0x20000")
    e("v_lshrrev_b32 v4, 4, v0")
    e("s_movk_i32 s50, 3584")
    e("v_mul_lo_u32 v4, s50, v4")
    e("v_and_b32 v5, 15, v0")
    e("v_lshl_add_u32 v4, v5, 4, v4")
    e(f"s_mul_i32 s55, s48, {56*3584}")
    e("s_lshl_b32 s57, s54, 8")
    e("s_add_u32 s55, s55, s57")
    WL = 72
    wt = []
    for n in range(14):
        e(f"s_add_u32 s57, s55, {n*4*3584}")
        wt.append(e(f"buffer_load_dwordx4 v[{WL+4*n}:{WL+4*n+3}], v4, s[28:31], s57 offen"))
    U = 128
    e.wait(xt)
    pr.stamp()
    nonce_publish(e, 12, 32768)
    e.wait_all(vm=False)
    e("s_barrier")
    nonce_read(e, 13, 32768)
    for k in range(28):
        e(f"v_lshlrev_b32 v{U+2*k}, 16, v{XL+k}")
        e(f"v_and_b32 v{U+2*k+1}, 0xffff0000, v{XL+k}")
    def red8(reg, tmp):
        e(f"v_add_f32_dpp v{reg}, v{reg}, v{reg} quad_perm:[1,0,3,2] row_mask:0xf bank_mask:0xf")
        e(f"v_add_f32_dpp v{reg}, v{reg}, v{reg} quad_perm:[2,3,0,1] row_mask:0xf bank_mask:0xf")
        e(f"v_add_f32_dpp v{reg}, v{reg}, v{reg} row_half_mirror row_mask:0xf bank_mask:0xf")
    def sum56(acc, base):
        e(f"v_add_f32 v{acc}, v{base}, v{base+1}")
        e(f"v_add_f32 v{acc+1}, v{base+2}, v{base+3}")
        for k in range(4, 56, 2):
            e(f"v_add_f32 v{acc}, v{acc}, v{base+k}")
            e(f"v_add_f32 v{acc+1}, v{acc+1}, v{base+k+1}")
        e(f"v_add_f32 v{acc}, v{acc}, v{acc+1}")
    sum56(6, U)
    red8(6, 7)
    e(f"v_mul_f32 v6, {f32(1.0/448)}, v6")
    for k in range(56): e(f"v_sub_f32 v{U+k}, v{U+k}, v6")
    e(f"v_mul_f32 v8, v{U}, v{U}")
    e(f"v_mul_f32 v9, v{U+1}, v{U+1}")
    for k in range(2, 56, 2):
        e(f"v_fmac_f32 v8, v{U+k}, v{U+k}")
        e(f"v_fmac_f32 v9, v{U+k+1}, v{U+k+1}")
    e("v_add_f32 v8, v8, v9")
    red8(8, 9)
    e(f"v_mul_f32 v8, {f32(1.0/448)}, v8")
    e("v_cvt_pk_bf16_f32 v9, v6, v8")
    e("v_lshlrev_b32 v10, 16, v9")
    e("v_and_b32 v11, 0xffff0000, v9")
    e(f"v_add_f32 v11, {f32(1e-5)}, v11")
    e("v_cvt_pk_bf16_f32 v11, v11, v11")
    e("v_lshlrev_b32 v11, 16, v11")
    e("v_sqrt_f32 v11, v11")
    e("v_cvt_pk_bf16_f32 v11, v11, v11")
    e("v_lshlrev_b32 v11, 16, v11")
    e("s_lshl_b32 s57, s49, 3")
    e("v_add_u32 v12, s57, v1")
    e("v_lshlrev_b32 v12, 4, v12")
    e(f"v_add_u32 v12, {WS_STAT}, v12")
    e("v_mov_b32 v184, v10"); e("v_mov_b32 v185, s98"); e("v_mov_b32 v186, v11"); e("v_mov_b32 v187, s98")
    e("v_cmp_eq_u32 vcc, 0, v2")
    e("s_and_saveexec_b64 s[58:59], vcc")
    e("buffer_store_dwordx4 v[184:187], v12, s[32:35], 0 offen sc1")
    e("s_mov_b64 exec, s[58:59]")
    e.wait(bt)
    for k in range(28):
        e(f"v_lshlrev_b32 v{U+2*k}, 16, v{BL+k}")
        e(f"v_and_b32 v{U+2*k+1}, 0xffff0000, v{BL+k}")
    sum56(6, U)
    red8(6, 7)
    e("s_cmp_lt_u32 s49, 144")
    lab = e.label("K1H_NOB")
    e(f"s_cbranch_scc1 {lab}")
    e.cond_begin()
    e("s_lshl_b32 s57, s52, 3")
    e("v_add_u32 v12, s57, v1")
    e("v_lshlrev_b32 v12, 3, v12")
    e(f"v_add_u32 v12, {WS_CSB}, v12")
    e("v_mov_b32 v7, s98")
    e("v_cmp_eq_u32 vcc, 0, v2")
    e("s_and_saveexec_b64 s[58:59], vcc")
    e("buffer_store_dwordx2 v[6:7], v12, s[32:35], 0 offen sc1")
    e("s_mov_b64 exec, s[58:59]")
    e.cond_end()
    e.raw(f"{lab}:")
    e.wait(wt)
    pr.stamp()
    A = 8
    for n in range(14):
        for d in range(4):
            src = WL + 4*n + d
            if n == 0:
                e(f"v_lshlrev_b32 v{A+2*d}, 16, v{src}")
                e(f"v_and_b32 v{A+2*d+1}, 0xffff0000, v{src}")
            else:
                e(f"v_lshlrev_b32 v6, 16, v{src}")
                e(f"v_and_b32 v7, 0xffff0000, v{src}")
                e(f"v_add_f32 v{A+2*d}, v{A+2*d}, v6")
                e(f"v_add_f32 v{A+2*d+1}, v{A+2*d+1}, v7")
    e("v_lshrrev_b32 v6, 4, v0")
    e("s_lshl_b32 s57, s48, 2")
    e("v_add_u32 v6, s57, v6")
    e("v_lshlrev_b32 v6, 9, v6")
    e("v_lshl_add_u32 v6, v5, 5, v6")
    e(f"ds_write_b128 v6, v[{A}:{A+3}]")
    e(f"ds_write_b128 v6, v[{A+4}:{A+7}] offset:16")
    e.wait_all(vm=False)
    e("s_barrier")
    e("s_cmp_ge_u32 s48, 2")
    lab2 = e.label("K1H_NOW")
    e(f"s_cbranch_scc1 {lab2}")
    e("s_cmp_ge_u32 s2, 28")
    e(f"s_cbranch_scc1 {lab2}")
    e.cond_begin()
    e("s_lshl_b32 s57, s48, 6")
    e("v_add_u32 v6, s57, v0")
    e("v_lshlrev_b32 v7, 2, v6")
    for p in range(32): e(f"ds_read_b32 v{U+p}, v7 offset:{p*512}")
    e.wait_all(vm=False)
    for p in range(1, 32): e(f"v_add_f32 v{U}, v{U}, v{U+p}")
    e("s_lshl_b32 s57, s54, 7")
    e("s_add_u32 s57, s57, s56")
    e("v_add_u32 v6, s57, v6")
    e("v_lshlrev_b32 v6, 3, v6")
    e(f"v_add_u32 v6, {WS_CSW}, v6")
    e(f"v_mov_b32 v{U+1}, s98")
    e(f"buffer_store_dwordx2 v[{U}:{U+1}], v6, s[32:35], 0 offen sc1")
    e.cond_end()
    e.raw(f"{lab2}:")
    pr.stamp()
    pr.dump(32, 48)
    e("s_endpgm")

def nonce_cas(e, v):
    lab = e.label("K1_NC")
    e("s_cmp_lg_u32 s48, 0")
    e(f"s_cbranch_scc1 {lab}")
    e.cond_begin()
    e.raw("s_memrealtime s[100:101]")
    e.raw("s_waitcnt lgkmcnt(0)")
    e("s_or_b32 s99, s100, 1")
    e(f"v_mov_b32 v{v}, s99")
    e(f"v_mov_b32 v{v+1}, 0")
    e(f"v_mov_b32 v{v+2}, 0")
    e("s_mov_b64 s[58:59], exec")
    e("s_mov_b64 exec, 1")
    e(f"buffer_atomic_cmpswap v[{v}:{v+1}], v{v+2}, s[36:39], 0 offen sc0")
    e("s_mov_b64 exec, s[58:59]")
    e.cond_end()
    e.raw(f"{lab}:")
def nonce_publish(e, v, lds):
    lab = e.label("K1_NP")
    e("s_cmp_lg_u32 s48, 0")
    e(f"s_cbranch_scc1 {lab}")
    e.cond_begin()
    e(f"v_readfirstlane_b32 s100, v{v}")
    e("s_cmp_eq_u32 s100, 0")
    e("s_cselect_b32 s100, s99, s100")
    e(f"v_mov_b32 v{v}, s100")
    e(f"v_mov_b32 v{v+1}, {lds}")
    e(f"ds_write_b32 v{v+1}, v{v}")
    e.raw("s_waitcnt lgkmcnt(0)")
    e.cond_end()
    e.raw(f"{lab}:")
def nonce_read(e, v, lds):
    e(f"v_mov_b32 v{v}, {lds}")
    t = e(f"ds_read_b32 v{v}, v{v}")
    e.wait(t)
    e(f"v_readfirstlane_b32 s98, v{v}")

def tagged_retry(e, issue, check, name, maxit=100000):
    ok = e.label(name + "_OK"); top = e.label(name + "_RT")
    check()
    e(f"s_cbranch_scc1 {ok}")
    e.cond_begin()
    e("s_mov_b32 s61, 0")
    e.raw(f"{top}:")
    e("s_sleep 2")
    issue()
    e.raw("s_waitcnt vmcnt(0)")
    check()
    e(f"s_cbranch_scc1 {ok}")
    e("s_add_u32 s61, s61, 1")
    e(f"s_cmp_lt_u32 s61, {maxit}")
    e(f"s_cbranch_scc1 {top}")
    e.cond_end()
    e.raw(f"{ok}:")

def spin(e, off_v, srd_s, cond_emit, tmpv, name, maxit=200000):
    top = e.label(name); done = e.label(name + "_OK")
    e("s_mov_b32 s61, 0")
    e.raw(f"{top}:")
    e(f"buffer_load_dword v{tmpv}, v{off_v}, s[{srd_s}:{srd_s+3}], 0 offen sc1")
    e.wait_all(lg=False)
    e(f"v_readfirstlane_b32 s60, v{tmpv}")
    cond_emit()
    e(f"s_cbranch_scc1 {done}")
    e("s_add_u32 s61, s61, 1")
    e(f"s_cmp_lt_u32 s61, {maxit}")
    e("s_sleep 1")
    e(f"s_cbranch_scc1 {top}")
    e.raw(f"{done}:")

def gen_k1(e):
    e.raw("k1_kernel:")
    e("s_cmp_ge_u32 s2, 256")
    e("s_cbranch_scc1 K1_END")
    e("s_load_dwordx2 s[4:5], s[0:1], 0")
    e("s_load_dwordx2 s[6:7], s[0:1], 8")
    e("s_load_dwordx2 s[8:9], s[0:1], 24")
    e("s_load_dwordx2 s[10:11], s[0:1], 32")
    e("s_load_dwordx2 s[12:13], s[0:1], 80")
    e("s_load_dwordx2 s[14:15], s[0:1], 88")
    e("s_load_dwordx2 s[16:17], s[0:1], 112")
    e("s_load_dwordx2 s[18:19], s[0:1], 120")
    e("s_load_dwordx2 s[62:63], s[0:1], 16")
    t = e("s_load_dwordx2 s[64:65], s[0:1], 56")
    e("v_lshrrev_b32 v1, 6, v0")
    e("v_and_b32 v0, 63, v0")
    e("v_readfirstlane_b32 s48, v1")
    e.wait(t)
    e("s_cmp_lt_u32 s2, 32")
    e("s_cbranch_scc1 K1_HELPER")
    e("s_sub_u32 s49, s2, 32")
    e("s_and_b32 s50, s49, 7")
    e("s_lshr_b32 s51, s49, 3")
    e("s_and_b32 s52, s50, 3")
    e("s_lshl_b32 s52, s52, 2")
    e("s_and_b32 s53, s51, 3")
    e("s_add_u32 s52, s52, s53")
    e("s_lshr_b32 s53, s50, 2")
    e("s_mul_i32 s53, s53, 7")
    e("s_lshr_b32 s54, s51, 2")
    e("s_add_u32 s53, s53, s54")
    e("s_and_b32 s54, s48, 3")
    e("s_lshr_b32 s55, s48, 2")
    srd(e, 20, 4, 2048*448*2)
    e("s_cmp_eq_u32 s55, 0")
    e("s_cselect_b32 s24, s8, s10")
    e("s_cselect_b32 s25, s9, s11")
    e("s_cselect_b32 s28, s12, s14")
    e("s_cselect_b32 s29, s13, s15")
    e("s_and_b32 s25, s25, 0xffff")
    e(f"s_mov_b32 s26, {448*448*2}")
    e("s_mov_b32 s27, 0x20000")
    e("s_and_b32 s29, s29, 0xffff")
    e(f"s_mov_b32 s30, {448*1792*2}")
    e("s_mov_b32 s31, 0x20000")
    srd(e, 32, 18, WS_END if not G.PROFILE else (16 << 20))
    pr = G.Prof(e, 0); pr.stamp()
    srd(e, 36, 16, 256)
    srd(e, 40, 6, 896)
    srd(e, 44, 62, 896)
    srd(e, 68, 64, 896)
    e("v_lshrrev_b32 v40, 3, v0")
    e("v_and_b32 v41, 7, v0")
    e("v_lshrrev_b32 v42, 4, v0")
    e("s_movk_i32 s56, 896")
    e("s_lshl_b32 s57, s48, 4")
    e("v_add_u32 v43, s57, v40")
    e("v_mul_lo_u32 v43, s56, v43")
    e("v_xor_b32 v44, v41, v42")
    e(f"v_lshl_add_u32 v{VX0}, v44, 4, v43")
    e("v_add_u32 v44, 4, v42")
    e("v_xor_b32 v44, v41, v44")
    e(f"v_lshl_add_u32 v{VX1}, v44, 4, v43")
    e(f"v_add_u32 v{VX1}, {8*896}, v{VX1}")
    e("s_lshl_b32 s57, s54, 3")
    e("v_add_u32 v43, s57, v40")
    e("v_mul_lo_u32 v43, s56, v43")
    e("s_and_b32 s57, s48, 1")
    e("s_lshl_b32 s57, s57, 2")
    e("v_add_u32 v44, s57, v42")
    e("v_xor_b32 v44, v41, v44")
    e(f"v_lshl_add_u32 v{VZ}, v44, 4, v43")
    e("s_lshl_b32 s57, s54, 4")
    e("v_add_u32 v43, s57, v40")
    e("s_movk_i32 s56, 3584")
    e("v_mul_lo_u32 v43, s56, v43")
    e("v_and_b32 v44, 1, v42")
    e("s_lshl_b32 s57, s55, 1")
    e("v_add_u32 v44, s57, v44")
    e("v_lshlrev_b32 v44, 1, v44")
    e("v_xor_b32 v44, v41, v44")
    e(f"v_lshl_add_u32 v{VW}, v44, 4, v43")
    e(f"s_mul_i32 s66, s52, {128*896}")
    e(f"s_mul_i32 s67, s53, {32*896}")
    e("s_lshl_b32 s72, s53, 8")
    e("s_lshl_b32 s73, s48, 11")
    e("s_lshl_b32 s74, s48, 10")
    e("s_lshl_b32 s75, s55, 13")
    e("s_lshl_b32 s76, s54, 11")
    e("s_add_u32 s75, s75, s76")

    if ROT:
        e("s_and_b32 s56, s51, 3")
        e("s_lshl_b32 s56, s56, 1")
        e("s_lshr_b32 s57, s51, 2")
        e("s_add_u32 s56, s56, s57")
        e("s_cmp_ge_u32 s56, 7")
        e("s_cselect_b32 s57, 7, 0")
        e("s_sub_u32 s56, s56, s57")
    else:
        e("s_mov_b32 s56, 0")
    for t in range(7):
        e(f"s_lshl_b32 s{4+t}, s56, 7")
        e(f"s_mul_i32 s{11+t}, s56, {64*3584}")
        if t < 6:
            e("s_add_u32 s56, s56, 1")
            e("s_cmp_eq_u32 s56, 7")
            e("s_cselect_b32 s56, 0, s56")
    for t in range(7):
        e(f"s_add_u32 s{4+t}, s{4+t}, s66")
        e(f"s_add_u32 s{11+t}, s{11+t}, s72")
    e("s_sub_u32 s67, s67, s66")
    ents = []
    for kc in range(7): ents += [("X", kc, 16384), ("Z", kc, 8192), ("WA", kc, 16384)]
    for kc in range(7): ents += [("WB", kc, 16384)]
    def tick_of(en): return en[1] if en[0] != "WB" else 7 + en[1]
    alloc = {}
    issue_at = {}
    live = []
    head = 0; nxt = 0
    def try_alloc(size, now):
        nonlocal head
        for start in ([head, 0] if head + size > RING else [head]):
            if start + size > RING: continue
            ok = all(not (start < o + s and o < start + size) or ft <= now for (o, s, ft) in live)
            if ok:
                head = start + size
                return start
            else:
                return None
        return None
    for now in range(-1, 14):
        lst = []
        while nxt < len(ents):
            en = ents[nxt]
            if en[0] == "WB" and now < 7 + en[1] - WB_AHEAD: break
            off = try_alloc(en[2], now)
            if off is None: break
            live.append((off, en[2], tick_of(en) + 1))
            alloc[(en[0], en[1])] = off
            lst.append(en); nxt += 1
        issue_at[now] = lst
    assert nxt == len(ents)
    ent_tok = {}
    from collections import deque
    dmaq = deque()
    def entry_dmas(en):
        kind, kc, _ = en; base = alloc[(kind, kc)]
        def mk(a, last):
            def f(probe=False):
                if NODMA:
                    if last and not probe: ent_tok[(kind, kc)] = None
                    return
                if kind == "X":
                    e(f"s_add_u32 m0, s73, {base + a*1024}")
                    e("s_nop 0")
                    tok = e(f"buffer_load_dwordx4 v{VX0+a}, s[20:23], s{4+kc} offen lds")
                elif kind == "Z":
                    e(f"s_add_u32 s77, s67, s{4+kc}")
                    e(f"s_add_u32 m0, s74, {base}")
                    tok = e(f"buffer_load_dwordx4 v{VZ}, s[24:27], s77 offen lds")
                else:
                    colb = 0 if kind == "WA" else 128
                    e(f"s_add_u32 s77, s{11+kc}, {8*a*3584 + colb}")
                    e(f"s_add_u32 m0, s75, {base + a*1024}")
                    tok = e(f"buffer_load_dwordx4 v{VW}, s[28:31], s77 offen lds")
                if last and not probe: ent_tok[(kind, kc)] = tok
            return f
        n = 1 if kind == "Z" else 2
        return [mk(a, a == n - 1) for a in range(n)]
    def queue_entries(lst):
        for en in lst:
            for f in entry_dmas(en): dmaq.append(f)
    queue_entries(issue_at[-1])
    for _ in range(PRO_DMAS): dmaq.popleft()()
    nonce_cas(e, 120)

    e("v_and_b32 v40, 15, v0")
    e("s_lshl_b32 s56, s53, 5")
    e("s_lshl_b32 s57, s55, 4")
    e("s_add_u32 s78, s56, s57")
    e("v_add_u32 v41, s78, v40")
    e("v_lshlrev_b32 v42, 1, v41")
    tp = [e("buffer_load_ushort v43, v42, s[40:43], 0 offen"),
          e("buffer_load_ushort v44, v42, s[44:47], 0 offen"),
          e("buffer_load_ushort v45, v42, s[68:71], 0 offen")]
    e("v_and_b32 v34, 31, v0")
    e("v_lshrrev_b32 v35, 4, v34")
    e("v_bfe_u32 v36, v34, 2, 1")
    e("v_lshl_add_u32 v35, v36, 1, v35")
    e("v_bfe_u32 v36, v34, 3, 1")
    e("v_lshlrev_b32 v35, 3, v35")
    e("v_lshl_add_u32 v35, v36, 2, v35")
    e("v_and_b32 v36, 3, v34")
    e("v_add_u32 v35, v35, v36")
    e("v_lshrrev_b32 v36, 5, v0")
    e("s_lshl_b32 s56, s54, 5")
    e("v_add_u32 v37, s56, v35")
    e("v_mov_b32 v47, v37")
    e(f"v_lshlrev_b32 v{PX}, 7, v37")
    e("v_bfe_u32 v38, v35, 1, 3")
    e("v_xor_b32 v38, v38, v36")
    e(f"v_lshl_add_u32 v{PX}, v38, 4, v{PX}")
    e("v_bfe_u32 v38, v0, 4, 1")
    e(f"v_lshlrev_b32 v{PZ}, 12, v38")
    e("s_lshl_b32 s56, s55, 4")
    e("v_add_u32 v39, s56, v40")
    e(f"v_lshl_add_u32 v{PZ}, v39, 7, v{PZ}")
    e("v_bfe_u32 v39, v40, 1, 3")
    e("v_xor_b32 v39, v39, v36")
    e(f"v_lshl_add_u32 v{PZ}, v39, 4, v{PZ}")
    e(f"v_lshlrev_b32 v{PW}, 13, v38")
    e("v_lshrrev_b32 v39, 2, v40")
    e("v_lshl_add_u32 v39, v36, 3, v39")
    e(f"v_lshl_add_u32 v{PW}, v39, 7, v{PW}")
    e("v_lshrrev_b32 v39, 3, v40")
    e("v_lshl_add_u32 v39, v38, 1, v39")
    e("s_lshl_b32 s56, s55, 1")
    e("v_xor_b32 v39, s56, v39")
    e(f"v_lshl_add_u32 v{PW}, v39, 5, v{PW}")
    e("v_and_b32 v39, 3, v40")
    e(f"v_lshl_add_u32 v{PW}, v39, 3, v{PW}")
    e("v_lshrrev_b32 v39, 4, v0")
    e("s_lshl_b32 s56, s54, 2")
    e(f"v_add_u32 v{SIG}, s56, v39")

    def params():
        e.wait(tp); yield
        e("v_lshlrev_b32 v43, 16, v43"); yield
        e("v_lshlrev_b32 v44, 16, v44"); yield
        e("v_lshlrev_b32 v45, 16, v45"); yield
        e(f"v_mul_f32 v45, {f32(LOG2E)}, v45"); yield
        e("v_exp_f32 v45, v45"); yield
        e("v_cvt_pk_bf16_f32 v45, v45, v45"); yield
        e("v_lshlrev_b32 v45, 16, v45"); yield
        e("v_mul_f32 v34, v45, v43"); yield
        e("v_mul_f32 v35, v45, v44"); yield
        e(f"v_mul_f32 v34, {f32(LOG2E)}, v34"); yield
        e("v_exp_f32 v34, v34"); yield
        e(f"v_mul_f32 v35, {f32(1.0/(2*3.141592653589793))}, v35"); yield
        e("v_fract_f32 v35, v35"); yield
        e("v_cos_f32 v36, v35"); yield
        e("v_sin_f32 v37, v35"); yield
        e(f"v_mul_f32 v{LR}, v34, v36"); yield
        e(f"v_mul_f32 v{LI}, v34, v37"); yield
        e(f"v_add_f32 v36, -1.0, v{LR}"); yield
        e("v_mul_f32 v38, v43, v43"); yield
        e("v_fmac_f32 v38, v44, v44"); yield
        e("v_rcp_f32 v38, v38"); yield
        e("v_mul_f32 v39, v36, v43"); yield
        e(f"v_fmac_f32 v39, v{LI}, v44"); yield
        e(f"v_mul_f32 v34, v{LI}, v43"); yield
        e("v_fma_f32 v34, -v36, v44, v34"); yield
        e("v_add_f32 v38, v38, v38"); yield
        e(f"v_mul_f32 v{CR}, v39, v38"); yield
        e(f"v_mul_f32 v{CI}, v34, v38"); yield
        yield from csq(e, 34, 35, LR, LI, 38)
        yield from csq(e, 36, 37, 34, 35, 38)
        yield from csq(e, L8R, L8I, 36, 37, 38)
        e(f"v_mov_b32 v{TR}, 1.0"); yield
        e(f"v_mov_b32 v{TI}, 0"); yield
        e(f"v_mov_b32 v34, v{L8R}"); yield
        e(f"v_mov_b32 v35, v{L8I}"); yield
        for b in range(4):
            yield from cmul(e, 36, 37, TR, TI, 34, 35, 38)
            e(f"v_and_b32 v40, {1<<b}, v{SIG}"); yield
            e("v_cmp_ne_u32 vcc, 0, v40"); yield
            e(f"v_cndmask_b32 v{TR}, v{TR}, v36, vcc"); yield
            e(f"v_cndmask_b32 v{TI}, v{TI}, v37, vcc"); yield
            e("v_mov_b32 v41, v34"); yield
            e("v_mov_b32 v42, v35"); yield
            yield from csq(e, 34, 35, 41, 42, 38)
        e(f"v_mov_b32 v{L128R}, v34"); yield
        e(f"v_mov_b32 v{L128I}, v35"); yield

    def zbuf(ks): return 96 + (ks & 1)*4
    def wbufA(ks, tl): return 104 + (ks & 1)*8 + tl*4
    def wbufB(ks, tl): return FB + (ks & 1)*8 + tl*4
    first = {}
    def mfma(acc, a, b):
        c = f"v[{acc}:{acc+15}]" if first.get(acc) else "0"
        first[acc] = True
        e(f"v_mfma_f32_32x32x16_bf16 v[{acc}:{acc+15}], v[{a}:{a+3}], v[{b}:{b+3}], {c}")

    rd_tok = {}
    def tick_setup(ph, kc):
        if ph == "A":
            e(f"v_add_u32 v{TBX}, {alloc[('X',kc)]}, v{PX}")
            e(f"v_add_u32 v{TBZ}, {alloc[('Z',kc)]}, v{PZ}")
            e(f"v_add_u32 v{TW0}, {alloc[('WA',kc)]}, v{PW}")
        else:
            e(f"v_add_u32 v{TW0}, {alloc[('WB',kc)]}, v{PW}")
        e(f"v_xor_b32 v{TW1}, 32, v{TW0}")
    def reads_xz(ks):
        kk = ks & 3
        if NOLDS:
            rd_tok[("xz", ks)] = []; return
        if kk == 0:
            ax, az = TBX, TBZ
        else:
            e(f"v_xor_b32 v{TA}, {kk<<5}, v{TBX}"); e(f"v_xor_b32 v{TB}, {kk<<5}, v{TBZ}")
            ax, az = TA, TB
        rd_tok[("xz", ks)] = [e(f"ds_read_b128 v[{XF+4*ks}:{XF+4*ks+3}], v{ax}"),
                              e(f"ds_read_b128 v[{zbuf(ks)}:{zbuf(ks)+3}], v{az}")]
    def reads_w(ph, ks, tl):
        kk = ks & 3
        if NOLDS:
            rd_tok[(ph, ks, tl)] = []; return
        w = wbufA(ks, tl) if ph == "A" else wbufB(ks, tl)
        ad = TW0 if tl == 0 else TW1
        rd_tok[(ph, ks, tl)] = [e(f"ds_read_b64_tr_b16 v[{w}:{w+1}], v{ad} offset:{kk*2048}"),
                                e(f"ds_read_b64_tr_b16 v[{w+2}:{w+3}], v{ad} offset:{kk*2048+512}")]

    steps = [("A", ks) for ks in range(28)] + [("B", ks) for ks in range(28)]
    def tick_idx(ph, ks): return (ks >> 2) + (0 if ph == "A" else 7)
    def need_ents(ph, kc): return [("X",kc),("Z",kc),("WA",kc)] if ph == "A" else [("WB",kc)]
    def enter_tick(ph, ks):
        kc = ks >> 2; tk = tick_idx(ph, ks)
        dma_drain_for(need_ents(ph, kc))
        if TICKSTAMP and tk in TICKSTAMP: pr.stamp()
        e.wait([ent_tok[x] for x in need_ents(ph, kc)])
        if TICKSTAMP and tk in TICKSTAMP: pr.stamp()
        e.wait_all(vm=False)
        if tk == 4: nonce_publish(e, 120, M_N)
        if not NOBAR: e("s_barrier")
        if tk == 4: nonce_read(e, 121, M_N)
        tick_setup(ph, kc)
        queue_entries(issue_at.get(tk, []))

    stag = {"pend": None}
    def dma_slot():
        if not STAGGER:
            if dmaq: dmaq.popleft()()
            return
        if stag["pend"] is None:
            if not dmaq: return
            f = dmaq.popleft(); stag["pend"] = f
            lab = e.label("DS")
            e("s_cmp_lg_u32 s55, 0"); e(f"s_cbranch_scc1 {lab}")
            e.cond_begin(); f(probe=True); e.cond_end()
            e.raw(f"{lab}:")
        else:
            f = stag["pend"]; stag["pend"] = None
            lab = e.label("DS")
            e("s_cmp_eq_u32 s55, 0"); e(f"s_cbranch_scc1 {lab}")
            n0 = e.vm_issued
            f()
            e.raw(f"{lab}:")
    def dma_drain_for(keys):
        while any(x not in ent_tok for x in keys):
            if STAGGER: dma_slot()
            else: dmaq.popleft()()
    def main_stream():
        enter_tick("A", 0)
        reads_xz(0); reads_w("A", 0, 0); reads_w("A", 0, 1)
        for n, (ph, ks) in enumerate(steps):
            nx = steps[n+1] if n + 1 < len(steps) else None
            x = XF + 4*ks
            if ph == "A":
                ops = [(AZ, x, zbuf(ks), ("xz", ks)), (AG[0], wbufA(ks,0), x, (ph, ks, 0)), (AG[1], wbufA(ks,1), x, (ph, ks, 1))]
            else:
                ops = [(AG[2], wbufB(ks,0), x, (ph, ks, 0)), (AG[3], wbufB(ks,1), x, (ph, ks, 1))]
            for si, (acc, a, b, key) in enumerate(ops):
                e.wait(rd_tok[key])
                mfma(acc, a, b)
                if nx is not None:
                    ph2, ks2 = nx
                    if si == 0 and (ks2 & 3) == 0: enter_tick(ph2, ks2)
                    if ph2 == "A":
                        if si == 0: reads_xz(ks2)
                        else: reads_w("A", ks2, si - 1)
                    else:
                        if ph == "A":
                            if si >= 1: reads_w("B", ks2, si - 1)
                        else: reads_w("B", ks2, si)
                dma_slot()
                yield (ph, ks, si)

    aux = {}
    def aux1_issue_raw():
        e("s_lshl_b32 s56, s52, 11")
        e(f"s_add_u32 s56, s56, {WS_STAT}")
        e("v_lshlrev_b32 v34, 4, v0")
        t = [e("buffer_load_dwordx4 v[36:39], v34, s[32:35], s56 offen sc1"),
             e("buffer_load_dwordx4 v[40:43], v34, s[32:35], s56 offen offset:1024 sc1")]
        e("v_lshlrev_b32 v35, 4, v47")
        t.append(e("buffer_load_dwordx4 v[120:123], v35, s[32:35], s56 offen sc1"))
        e("v_and_b32 v35, 15, v0")
        e("v_add_u32 v35, s78, v35")
        e("v_lshlrev_b32 v35, 3, v35")
        e(f"s_mov_b32 s56, {WS_CSB}")
        t.append(e("buffer_load_dwordx2 v[124:125], v35, s[32:35], s56 offen sc1"))
        t.append(e(f"buffer_load_dwordx2 v[126:127], v35, s[32:35], s56 offen offset:{448*8} sc1"))
        return t
    def tagcheck(regs):
        e(f"v_xor_b32 v44, s98, v{regs[0]}")
        for r in regs[1:]:
            e(f"v_xor_b32 v45, s98, v{r}")
            e("v_or_b32 v44, v44, v45")
        e("v_cmp_ne_u32 vcc, 0, v44")
        e("s_cmp_eq_u64 vcc, 0")
    def aux1_issue():
        aux["t"] = aux1_issue_raw(); yield
    def aux1_finish():
        e.wait(aux["t"])
        tagged_retry(e, aux1_issue_raw, lambda: tagcheck([37, 39, 41, 43, 121, 123, 125, 127]), "K1_A1")
        yield
        e("v_rcp_f32 v37, v38"); yield
        e("v_rcp_f32 v41, v42"); yield
        e("v_lshlrev_b32 v34, 3, v0"); yield
        e(f"v_add_u32 v34, {M_ST}, v34"); yield
        e("ds_write_b64 v34, v[36:37]"); yield
        e("ds_write_b64 v34, v[40:41] offset:512"); yield
        e(f"v_mov_b32 v{M_}, v120"); yield
        e(f"v_mov_b32 v{SD}, v122"); yield
        e(f"v_mov_b32 v{CSR}, v124"); yield
        e(f"v_mov_b32 v{CSI}, v126"); yield
        e(f"v_rcp_f32 v{NLR}, v{SD}"); yield
        e(f"v_mul_f32 v{NLR}, {f32(-LOG2E)}, v{NLR}"); yield
        aux["w"] = ("lg", e.lg_issued)
        yield
    def aux2_issue_raw():
        e("s_lshl_b32 s56, s53, 10")
        e(f"s_add_u32 s56, s56, {WS_CSW}")
        e("v_lshlrev_b32 v34, 4, v0")
        t = [e("buffer_load_dwordx4 v[128:131], v34, s[32:35], s56 offen sc1")]
        e(f"s_add_u32 s56, s56, {1792*8}")
        t.append(e("buffer_load_dwordx4 v[132:135], v34, s[32:35], s56 offen sc1"))
        return t
    def aux2_issue():
        aux["t2"] = aux2_issue_raw(); yield
    def aux2_finish():
        e.wait(aux["t2"])
        tagged_retry(e, aux2_issue_raw, lambda: tagcheck([129, 131, 133, 135]), "K1_A2")
        yield
        e("v_mov_b32 v129, v130"); yield
        e("v_mov_b32 v133, v134"); yield
        e("v_lshlrev_b32 v34, 3, v0"); yield
        e(f"v_add_u32 v34, {M_CS}, v34"); yield
        e("ds_write_b64 v34, v[128:129]"); yield
        aux["w2"] = e("ds_write_b64 v34, v[132:133] offset:512"); yield
        e.wait(aux["w2"]); yield

    def z_pass1():
        e.wait(aux["w"]); yield
        for i in range(8):
            e(f"v_permlane16_swap_b32 v{AZ+i}, v{AZ+8+i}"); yield
        e("v_lshrrev_b32 v34, 4, v0"); yield
        e("s_lshl_b32 s56, s54, 8")
        e(f"s_add_u32 s56, s56, {M_ST}")
        e("v_lshlrev_b32 v34, 6, v34"); yield
        e("v_add_u32 v34, s56, v34"); yield
        for g in range(4):
            tk = e(f"ds_read_b128 v[36:39], v34 offset:{g*16}"); yield
            e.wait(tk); yield
            for u in range(2):
                i = 2*g + u; mm, rr = 36 + 2*u, 37 + 2*u
                zr, zi = AZ + i, AZ + 8 + i
                e(f"v_fma_f32 v40, -v{mm}, v{CSR}, v{zr}"); yield
                e(f"v_fma_f32 v41, -v{mm}, v{CSI}, v{zi}"); yield
                e(f"v_mul_f32 v40, v40, v{rr}"); yield
                e(f"v_mul_f32 v41, v41, v{rr}"); yield
                e(f"v_mul_f32 v42, v{CI}, v41"); yield
                e(f"v_mul_f32 v43, v{CI}, v40"); yield
                e(f"v_fma_f32 v{zr}, v{CR}, v40, -v42"); yield
                e(f"v_fma_f32 v{zi}, v{CR}, v41, v43"); yield
        e(f"v_mov_b32 v{ER}, v{AZ}"); yield
        e(f"v_mov_b32 v{EI}, v{AZ+8}"); yield
        for i in range(1, 8):
            yield from cfma(e, ER, EI, LR, LI, AZ+i, AZ+8+i, 40)
        e("v_and_b32 v34, 15, v0"); yield
        e("s_lshl_b32 s56, s55, 4")
        e("v_add_u32 v34, s56, v34"); yield
        e(f"v_lshl_add_u32 v35, v{SIG}, 5, v34"); yield
        e("v_lshlrev_b32 v35, 3, v35"); yield
        e(f"v_add_u32 v35, {M_SEG}, v35"); yield
        aux["seg"] = e(f"ds_write_b64 v35, v[{ER}:{EI}]"); yield
    def z_prefix():
        e("v_and_b32 v34, 15, v0"); yield
        e("s_lshl_b32 s56, s55, 4")
        e("v_add_u32 v34, s56, v34"); yield
        e("v_lshlrev_b32 v34, 3, v34"); yield
        e(f"v_add_u32 v34, {M_SEG}, v34"); yield
        e(f"v_mov_b32 v{PR}, 0"); yield
        e(f"v_mov_b32 v{PI}, 0"); yield
        for half in range(4):
            tk = [e(f"ds_read_b64 v[{36+2*u}:{37+2*u}], v34 offset:{(4*half+u)*256}") for u in range(4)]
            yield
            e.wait(tk); yield
            for u in range(4):
                sp = 4*half + u
                if sp == 15: continue
                e(f"v_cmp_lt_u32 vcc, {sp}, v{SIG}"); yield
                yield from cfma_to(e, 44, 45, PR, PI, L8R, L8I, 36+2*u, 37+2*u)
                e(f"v_cndmask_b32 v{PR}, v{PR}, v44, vcc"); yield
                e(f"v_cndmask_b32 v{PI}, v{PI}, v45, vcc"); yield
        lab = e.label("K1_NOPUB")
        e("s_cmp_lg_u32 s54, 3")
        e(f"s_cbranch_scc1 {lab}")
        e.cond_begin()
        for _ in cfma_to(e, 44, 45, PR, PI, L8R, L8I, ER, EI): pass
        e("v_and_b32 v34, 15, v0")
        e("v_add_u32 v34, s78, v34")
        e("v_lshlrev_b32 v34, 4, v34")
        e(f"s_mul_i32 s56, s52, {448*16}")
        e(f"s_add_u32 s56, s56, {WS_E}")
        e("v_mov_b32 v40, v44"); e("v_mov_b32 v41, s98"); e("v_mov_b32 v42, v45"); e("v_mov_b32 v43, s98")
        e("v_cmp_le_u32 vcc, 48, v0")
        e("s_and_saveexec_b64 s[58:59], vcc")
        e("buffer_store_dwordx4 v[40:43], v34, s[32:35], s56 offen sc1")
        e("s_mov_b64 exec, s[58:59]")
        e.cond_end()
        e.raw(f"{lab}:")
        yield
    def gu_epi(tl, T0, CSB):
        acc = AG[tl]
        e(f"v_lshrrev_b32 v{T0}, 5, v0"); yield
        e(f"v_lshlrev_b32 v{T0}, 4, v{T0}"); yield
        e("s_lshl_b32 s56, s55, 7")
        e(f"s_add_u32 s56, s56, {M_CS + (tl>>1)*256 + (tl&1)*64}")
        e(f"v_add_u32 v{T0}, s56, v{T0}"); yield
        tk = [e(f"ds_read_b128 v[{CSB}:{CSB+3}], v{T0}"),
              e(f"ds_read_b128 v[{CSB+4}:{CSB+7}], v{T0} offset:32"),
              e(f"ds_read_b128 v[{CSB+8}:{CSB+11}], v{T0} offset:512"),
              e(f"ds_read_b128 v[{CSB+12}:{CSB+15}], v{T0} offset:544")]
        yield
        e.wait(tk); yield
        for i in range(8):
            g, u = acc + i, acc + 8 + i
            e(f"v_fma_f32 v{g}, -v{M_}, v{CSB+i}, v{g}"); yield
            e(f"v_fma_f32 v{u}, -v{M_}, v{CSB+8+i}, v{u}"); yield
            e(f"v_mul_f32 v{g}, v{g}, v{NLR}"); yield
            e(f"v_exp_f32 v{g}, v{g}"); yield
            e(f"v_fma_f32 v{g}, v{g}, v{SD}, v{SD}"); yield
            e(f"v_rcp_f32 v{g}, v{g}"); yield
            e(f"v_mul_f32 v{g}, v{g}, v{u}"); yield
        for p in range(4):
            e(f"v_cvt_pk_bf16_f32 v{acc+8+p}, v{acc+2*p}, v{acc+2*p+1}"); yield
        e(f"v_lshrrev_b32 v{T0}, 5, v0"); yield
        e(f"v_lshlrev_b32 v{T0}, 5, v{T0}"); yield
        e(f"v_and_b32 v{T0+1}, 31, v47"); yield
        e(f"v_add_u32 v{T0}, v{T0}, v{T0+1}"); yield
        e(f"v_lshlrev_b32 v{T0}, 4, v{T0}"); yield
        e(f"s_add_u32 s56, s79, {((tl>>1)*4 + (tl&1))*1024}")
        e(f"buffer_store_dwordx4 v[{acc+8}:{acc+11}], v{T0}, s[32:35], s56 offen"); yield
    EL = XF + 16
    def e_issue_raw(done_label):
        e("v_and_b32 v46, 15, v0")
        e("v_add_u32 v46, s78, v46")
        e("v_lshlrev_b32 v46, 4, v46")
        e(f"s_mov_b32 s56, {WS_E}")
        for ip in range(15):
            e(f"s_cmp_le_u32 s52, {ip}")
            e(f"s_cbranch_scc1 {done_label}")
            e(f"buffer_load_dwordx4 v[{EL+4*ip}:{EL+4*ip+3}], v46, s[32:35], s56 offen sc1")
            if ip < 14: e(f"s_add_u32 s56, s56, {448*16}")
    def e_issue():
        lab = e.label("K1_EI")
        e.cond_begin(); e_issue_raw(lab); e.cond_end()
        e.raw(f"{lab}:")
        yield
    def e_check(nafter):
        ok = e.label("K1_EOK"); top = e.label("K1_ERT"); chk = e.label("K1_ECK"); l2 = e.label("K1_EI2"); l3 = e.label("K1_EC2")
        e.raw(f"s_waitcnt vmcnt({nafter})")
        e("s_mov_b32 s61, 0")
        e.raw(f"{chk}:")
        e("v_mov_b32 v44, 0")
        for ip in range(15):
            e(f"s_cmp_le_u32 s52, {ip}")
            e(f"s_cbranch_scc1 {l3}")
            e(f"v_xor_b32 v45, s98, v{EL+4*ip+1}")
            e("v_or_b32 v44, v44, v45")
            e(f"v_xor_b32 v45, s98, v{EL+4*ip+3}")
            e("v_or_b32 v44, v44, v45")
        e.raw(f"{l3}:")
        e("v_cmp_ne_u32 vcc, 0, v44")
        e("s_cmp_eq_u64 vcc, 0")
        e(f"s_cbranch_scc1 {ok}")
        e("s_add_u32 s61, s61, 1")
        e("s_cmp_ge_u32 s61, 100000")
        e(f"s_cbranch_scc1 {ok}")
        e("s_sleep 2")
        e.cond_begin(); e_issue_raw(l2); e.cond_end()
        e.raw(f"{l2}:")
        e.raw("s_waitcnt vmcnt(0)")
        e(f"s_branch {chk}")
        e.raw(f"{ok}:")
    def carry_and_pass2():
        lab0 = e.label("K1_NOCARRY")
        e(f"v_mov_b32 v44, 0"); e(f"v_mov_b32 v45, 0")
        for ip in range(15):
            e(f"s_cmp_le_u32 s52, {ip}")
            e(f"s_cbranch_scc1 {lab0}")
            for _ in cfma(e, 44, 45, L128R, L128I, EL+4*ip, EL+4*ip+2, 40): pass
        e.raw(f"{lab0}:")
        e(f"v_fma_f32 v{PR}, v{TR}, v44, v{PR}")
        e(f"v_fma_f32 v{PI}, v{TR}, v45, v{PI}")
        e(f"v_fma_f32 v{PR}, -v{TI}, v45, v{PR}")
        e(f"v_fma_f32 v{PI}, v{TI}, v44, v{PI}")
        pr, pi = PR, PI
        for i in range(8):
            zr, zi = AZ + i, AZ + 8 + i
            e(f"v_fma_f32 v{zr}, v{LR}, v{pr}, v{zr}")
            e(f"v_fma_f32 v{zi}, v{LR}, v{pi}, v{zi}")
            e(f"v_fma_f32 v{zr}, -v{LI}, v{pi}, v{zr}")
            e(f"v_fma_f32 v{zi}, v{LI}, v{pr}, v{zi}")
            pr, pi = zr, zi
        for p in range(4):
            e(f"v_cvt_pk_bf16_f32 v{36+p}, v{AZ+2*p}, v{AZ+2*p+1}")
            e(f"v_cvt_pk_bf16_f32 v{40+p}, -v{AZ+8+2*p}, -v{AZ+8+2*p+1}")
        e("v_and_b32 v34, 15, v0")
        e("v_lshlrev_b32 v34, 6, v34")
        e("v_lshrrev_b32 v35, 4, v0")
        e("v_lshl_add_u32 v34, v35, 4, v34")
        e("v_add_u32 v34, s73, v34")
        e("ds_write_b128 v34, v[36:39]")
        e("ds_write_b128 v34, v[40:43] offset:1024")
        e("v_lshrrev_b32 v35, 5, v0")
        e("v_bfe_u32 v44, v0, 2, 2")
        e("v_lshl_add_u32 v35, v35, 3, v44")
        e("v_lshlrev_b32 v35, 6, v35")
        e("v_bfe_u32 v44, v0, 4, 1")
        e("v_lshl_add_u32 v35, v44, 5, v35")
        e("v_and_b32 v44, 3, v0")
        e("v_lshl_add_u32 v35, v44, 3, v35")
        e("v_add_u32 v35, s73, v35")
        e.wait_all(vm=False)
        tk = [e("ds_read_b64_tr_b16 v[36:37], v35"), e("ds_read_b64_tr_b16 v[38:39], v35 offset:256"),
              e("ds_read_b64_tr_b16 v[40:41], v35 offset:1024"), e("ds_read_b64_tr_b16 v[42:43], v35 offset:1280")]
        e("s_lshl_b32 s56, s53, 1")
        e("s_add_u32 s56, s56, s55")
        e("s_lshr_b32 s57, s56, 2")
        e("s_lshl_b32 s57, s57, 3")
        e("s_and_b32 s56, s56, 3")
        e("s_add_u32 s56, s56, s57")
        e("s_lshl_b32 s57, s52, 2")
        e("s_add_u32 s57, s57, s54")
        e("s_mul_i32 s57, s57, 56")
        e("s_add_u32 s56, s56, s57")
        e("s_lshl_b32 s56, s56, 10")
        e(f"s_add_u32 s56, s56, {WS_hF}")
        e("v_lshlrev_b32 v34, 4, v0")
        e.wait(tk)
        e("buffer_store_dwordx4 v[36:39], v34, s[32:35], s56 offen")
        e("s_add_u32 s56, s56, 4096")
        e("buffer_store_dwordx4 v[40:43], v34, s[32:35], s56 offen")

    e("s_lshl_b32 s56, s52, 2")
    e("s_add_u32 s56, s56, s54")
    e("s_mul_i32 s56, s56, 112")
    e("s_lshl_b32 s57, s53, 3")
    e("s_add_u32 s56, s56, s57")
    e("s_lshl_b32 s57, s55, 1")
    e("s_add_u32 s56, s56, s57")
    e("s_lshl_b32 s79, s56, 10")
    if WS_HF: e(f"s_add_u32 s79, s79, {WS_HF}")

    def cost(i):
        if i.cls == "valu": return 2.0 if i.op in TRANS else 1.0
        if i.cls in ("ds", "vmem"): return 0.5
        return 0.1
    class Fill:
        def __init__(self): self.q = []; self.cur = None; self.barrier_at = None
        def add(self, *items): self.q += list(items)
        def run(self, budget, tick):
            spent = 0.0
            while spent < budget:
                if self.cur is None:
                    if not self.q: return
                    it = self.q[0]
                    if it == "barrier":
                        if self.barrier_at is None: self.barrier_at = tick
                        if tick <= self.barrier_at: return
                        self.barrier_at = None; self.q.pop(0); continue
                    self.q.pop(0); self.cur = it() if callable(it) else it
                n0 = len(e.ins)
                try: next(self.cur)
                except StopIteration:
                    self.cur = None
                spent += sum(cost(i) for i in e.ins[n0:])
        def flush(self):
            while self.cur is not None or self.q:
                if self.cur is None:
                    it = self.q.pop(0)
                    if it == "barrier":
                        if self.barrier_at is None or True:
                            e.wait_all(vm=False); e("s_barrier")
                        self.barrier_at = None
                        continue
                    self.cur = it() if callable(it) else it
                for _ in self.cur: pass
                self.cur = None
    if not INTERLEAVE:
        drain(params())
    ms = main_stream()
    last = None
    F = Fill()
    if INTERLEAVE: F.add(params)
    slot = {"A": 0, "B": 0}
    for (ph, ks, si) in ms:
        if (ph, ks) != last and (ph, ks) in STAMPS: pr.stamp()
        last = (ph, ks)
        n = slot[ph]; slot[ph] += 1
        if INTERLEAVE and not NOEPI:
            if ph == "A":
                if n == AUX_LOAD: F.flush(); F.add(aux1_issue)
                if n == AUX_FIN: F.flush(); F.add(aux1_finish)
                F.run(BUDGET_A, tick_idx(ph, ks))
            else:
                if n == 0:
                    F.flush()
                    F.add(z_pass1, aux2_issue, "barrier", z_prefix, aux2_finish, lambda: gu_epi(0, 34, 128), lambda: gu_epi(1, 34, 128))
                F.run(BUDGET_B0 if n < 40 else BUDGET_B, tick_idx(ph, ks))
        elif INTERLEAVE and ph == "A":
            F.run(BUDGET_A, 0)
    if NOEPI:
        pr.dump(32, 48)
        e.raw("K1_END:")
        e("s_endpgm")
        gen_helper(e)
        return 256
    if not INTERLEAVE:
        drain(aux1_issue()); drain(aux1_finish()); drain(aux2_issue()); drain(aux2_finish())
        pr.stamp()
        drain(z_pass1())
        e.wait_all(vm=False)
        e("s_barrier")
        drain(z_prefix())
        pr.stamp()
        for tl in range(2): drain(gu_epi(tl, 34, 128))
    else:
        F.flush()
        pr.stamp()
    e.wait_all(vm=False)
    e("s_barrier")
    drain(e_issue())
    drain(gu_epi(2, 34, 128))
    drain(gu_epi(3, 34, 128))
    pr.stamp()
    e_check(2)
    carry_and_pass2()
    pr.stamp()
    if G.PROFILE: e("s_waitcnt vmcnt(0)")
    pr.stamp()
    pr.dump(32, 48)
    e.raw("K1_END:")
    e("s_endpgm")
    gen_helper(e)
    return 256
```

```python
import sys
sys.path.insert(0, "dev")
from asmlib import *

NAME = "recurrent_scan__ssm_conv_s5__glu_gated_glu__prompt"
WS_HF   = 0
WS_hF   = 64*112*1024
WS_STAT = WS_hF + 64*56*1024
WS_CSW  = WS_STAT + 2048*16
WS_CSB  = WS_CSW + 3584*8
WS_E    = WS_CSB + 896*8
WS_END  = WS_E + 16*448*16
LOG2E = 1.4426950408889634
import struct
def f32(x): return "0x%08x" % struct.unpack("<I", struct.pack("<f", x))[0]

def srd(e, s, ptr, nbytes):
    e(f"s_mov_b32 s{s}, s{ptr}")
    e(f"s_and_b32 s{s+1}, s{ptr+1}, 0xffff")
    e(f"s_mov_b32 s{s+2}, {nbytes}")
    e(f"s_mov_b32 s{s+3}, 0x20000")

def bf16_round_pair(e, dst_lo, dst_hi, a, b, tmp):
    e(f"v_cvt_pk_bf16_f32 v{tmp}, v{a}, v{b}")
    yield
    e(f"v_lshlrev_b32 v{dst_lo}, 16, v{tmp}")
    yield
    e(f"v_and_b32 v{dst_hi}, 0xffff0000, v{tmp}")
    yield

PROFILE = False
WS_PROF = 12 << 20
class Prof:
    def __init__(self, e, kern): self.e = e; self.k = kern; self.n = 0
    def stamp(self):
        if not PROFILE: return
        e = self.e
        import os
        e.raw("s_memtime s[96:97]" if os.environ.get("CLK") == "cyc" else "s_memrealtime s[96:97]")
        e.raw("s_waitcnt lgkmcnt(0)"); e.lg_done = e.lg_issued
        e.raw(f"s_mov_b32 s{80+self.n}, s96"); self.n += 1
        assert self.n <= 16
    def dump(self, srd_ws, wave_s):
        if not PROFILE: return
        e = self.e
        e(f"s_lshl_b32 s96, s2, 3"); e(f"s_add_u32 s96, s96, s{wave_s}"); e("s_lshl_b32 s96, s96, 6")
        e(f"s_add_u32 s96, s96, {WS_PROF + self.k*256*8*64}")
        for i in range(16):
            e(f"v_mov_b32 v{200+i}, s{80+i}" if i < self.n else f"v_mov_b32 v{200+i}, 0")
        e("v_mov_b32 v216, 0")
        e("s_mov_b64 exec, 1")
        for q in range(4):
            e(f"buffer_store_dwordx4 v[{200+4*q}:{203+4*q}], v216, s[{srd_ws}:{srd_ws+3}], s96 offen offset:{16*q}")
        e("s_waitcnt vmcnt(0)")

def pull(gen, n):
    if gen is None: return None
    for _ in range(n):
        try: next(gen)
        except StopIteration: return None
    return gen
def drain(gen):
    if gen is None: return
    for _ in gen: pass

K2_R = 9
K2_STAGE = 16384
def gen_k2(e):
    e.raw("k2_kernel:")
    e("s_cmp_ge_u32 s2, 224")
    e("s_cbranch_scc1 K2_END")
    e("s_load_dwordx2 s[4:5], s[0:1], 0")
    e("s_load_dwordx2 s[6:7], s[0:1], 40")
    e("s_load_dwordx2 s[8:9], s[0:1], 48")
    e("s_load_dwordx2 s[10:11], s[0:1], 64")
    e("s_load_dwordx2 s[12:13], s[0:1], 96")
    e("s_load_dwordx2 s[14:15], s[0:1], 104")
    t = e("s_load_dwordx2 s[16:17], s[0:1], 120")
    e("v_lshrrev_b32 v1, 6, v0")
    e("v_and_b32 v0, 63, v0")
    e("v_readfirstlane_b32 s48, v1")
    e("s_and_b32 s49, s2, 7")
    e("s_lshl_b32 s49, s49, 2")
    e("s_lshr_b32 s50, s2, 3")
    e("s_and_b32 s51, s50, 3")
    e("s_add_u32 s49, s49, s51")
    e("s_lshr_b32 s50, s50, 2")
    e.wait(t)
    srd(e, 20, 4, 2048*448*2)
    srd(e, 24, 6, 448*448*2)
    srd(e, 28, 8, 448*448*2)
    srd(e, 32, 10, 448*2)
    srd(e, 36, 12, 1792*448*2)
    srd(e, 40, 14, 2048*448*4)
    srd(e, 44, 16, WS_END if not PROFILE else (16 << 20))
    pr = Prof(e, 1); pr.stamp()
    e("s_cmp_ge_u32 s48, 4")
    e("s_cbranch_scc1 K2_LOADER")
    e("s_and_b32 s52, s48, 1")
    e("s_lshr_b32 s53, s48, 1")
    e("v_and_b32 v1, 31, v0")
    e("v_lshrrev_b32 v2, 5, v0")
    e("v_and_b32 v3, 15, v0")
    e("v_lshrrev_b32 v4, 4, v0")
    e("s_lshl_b32 s54, s49, 6")
    e("s_lshl_b32 s55, s52, 5")
    e("s_add_u32 s54, s54, s55")
    e("v_add_u32 v5, s54, v1")
    e("s_lshl_b32 s55, s50, 6")
    e("s_lshl_b32 s56, s53, 5")
    e("s_add_u32 s55, s55, s56")
    e("v_lshlrev_b32 v6, 2, v2")
    e("v_add_u32 v6, s55, v6")
    e("s_movk_i32 s57, 896")
    e("v_mul_lo_u32 v7, s57, v5")
    e("v_lshlrev_b32 v8, 1, v6")
    e("v_add_u32 v7, v7, v8")
    e("v_lshlrev_b32 v9, 4, v5")
    e(f"v_add_u32 v9, {WS_STAT}, v9")
    e("v_lshlrev_b32 v10, 1, v7")
    XR, DK, ST = 16, 24, 192
    toks = []
    for a in range(4): toks.append(e(f"buffer_load_dwordx2 v[{XR+2*a}:{XR+2*a+1}], v7, s[20:23], 0 offen offset:{16*a}"))
    for a in range(4): toks.append(e(f"buffer_load_dwordx2 v[{DK+2*a}:{DK+2*a+1}], v8, s[32:35], 0 offen offset:{16*a}"))
    toks.append(e(f"buffer_load_dwordx4 v[{ST}:{ST+3}], v9, s[44:47], 0 offen"))
    epi_toks = toks
    e("s_lshl_b32 s57, s52, 12")
    e("v_lshlrev_b32 v11, 4, v0")
    e("v_add_u32 v11, s57, v11")
    e("v_lshrrev_b32 v13, 2, v3")
    e("v_lshl_add_u32 v13, v2, 2, v13")
    e("v_lshlrev_b32 v12, 7, v13")
    e("v_and_b32 v13, 1, v4")
    e("s_lshl_b32 s57, s53, 1")
    e("v_add_u32 v13, s57, v13")
    e("v_lshrrev_b32 v14, 3, v3")
    e("v_lshlrev_b32 v14, 1, v14")
    e("v_xor_b32 v13, v13, v14")
    e("v_lshl_add_u32 v12, v13, 5, v12")
    e("v_and_b32 v13, 3, v3")
    e("v_lshl_add_u32 v12, v13, 3, v12")
    e("v_add_u32 v12, 8192, v12")
    e("s_lshl_b32 s57, s53, 5")
    e("v_add_u32 v13, s57, v1")
    e("v_lshlrev_b32 v13, 7, v13")
    e("v_lshrrev_b32 v14, 1, v1")
    e("v_and_b32 v14, 7, v14")
    e("v_xor_b32 v14, v14, v2")
    e("v_lshl_add_u32 v13, v14, 4, v13")
    e("v_add_u32 v13, 8192, v13")
    PH, PW, PC = 11, 12, 13
    TH, TW = 14, 15
    ACCO, ACCY = 64, 80
    FR = 96
    XF, SK, G = 34, 160, 176
    T0 = 50
    def hfrag(set_, kk): return FR + set_*32 + kk*8
    def wfrag(set_, kk): return FR + set_*32 + kk*8 + 4

    def pre_epi():
        e.wait(epi_toks)
        yield
        e(f"v_rcp_f32 v{T0}, v{ST+2}")
        yield
        for p in range(8):
            xa, xb = XF+2*p, XF+2*p+1
            e(f"v_lshlrev_b32 v{xa}, 16, v{XR+p}"); yield
            e(f"v_and_b32 v{xb}, 0xffff0000, v{XR+p}"); yield
            e(f"v_sub_f32 v{T0+1}, v{xa}, v{ST}"); yield
            e(f"v_sub_f32 v{T0+2}, v{xb}, v{ST}"); yield
            yield from bf16_round_pair(e, T0+1, T0+2, T0+1, T0+2, T0+3)
            e(f"v_mul_f32 v{T0+1}, v{T0+1}, v{T0}"); yield
            e(f"v_mul_f32 v{T0+2}, v{T0+2}, v{T0}"); yield
            yield from bf16_round_pair(e, T0+1, T0+2, T0+1, T0+2, T0+3)
            e(f"v_lshlrev_b32 v{T0+4}, 16, v{DK+p}"); yield
            e(f"v_and_b32 v{T0+5}, 0xffff0000, v{DK+p}"); yield
            e(f"v_mul_f32 v{T0+1}, v{T0+1}, v{T0+4}"); yield
            e(f"v_mul_f32 v{T0+2}, v{T0+2}, v{T0+5}"); yield
            yield from bf16_round_pair(e, SK+2*p, SK+2*p+1, T0+1, T0+2, T0+3)
    def silu_epi():
        for p in range(8):
            a, b = T0+1, T0+2
            yield from bf16_round_pair(e, a, b, ACCO+2*p, ACCO+2*p+1, T0+3)
            e(f"v_mul_f32 v{T0+4}, {f32(-LOG2E)}, v{a}"); yield
            e(f"v_mul_f32 v{T0+5}, {f32(-LOG2E)}, v{b}"); yield
            e(f"v_exp_f32 v{T0+4}, v{T0+4}"); yield
            e(f"v_exp_f32 v{T0+5}, v{T0+5}"); yield
            e(f"v_add_f32 v{T0+4}, 1.0, v{T0+4}"); yield
            e(f"v_add_f32 v{T0+5}, 1.0, v{T0+5}"); yield
            e(f"v_rcp_f32 v{T0+4}, v{T0+4}"); yield
            e(f"v_rcp_f32 v{T0+5}, v{T0+5}"); yield
            e(f"v_mul_f32 v{a}, v{a}, v{T0+4}"); yield
            e(f"v_mul_f32 v{b}, v{b}, v{T0+5}"); yield
            yield from bf16_round_pair(e, G+2*p, G+2*p+1, a, b, T0+3)

    NST = 42
    fill = pre_epi()
    first = {ACCO: True, ACCY: True}
    def mfmas(t):
        acc = ACCO if t < 28 else ACCY
        for kk in range(4):
            c = "0" if first[acc] else f"v[{acc}:{acc+15}]"
            first[acc] = False
            e(f"v_mfma_f32_32x32x16_bf16 v[{acc}:{acc+15}], v[{wfrag(t&1,kk)}:{wfrag(t&1,kk)+3}], v[{hfrag(t&1,kk)}:{hfrag(t&1,kk)+3}], {c}")
            yield
    for t in range(NST + 1):
        if t < NST:
            e("s_barrier")
            if t in (0, 1, 8, 16, 28, 41): pr.stamp()
            base = (t % K2_R) * K2_STAGE
            e(f"v_add_u32 v{TH}, {base}, v{PH}")
            if t < 28: e(f"v_add_u32 v{TW}, {base}, v{PW}")
            else:      e(f"v_add_u32 v{TW}, {base}, v{PC}")
        mf = mfmas(t-1) if t >= 1 else None
        for kk in range(4):
            if t < NST:
                e(f"ds_read_b128 v[{hfrag(t&1,kk)}:{hfrag(t&1,kk)+3}], v{TH} offset:{kk*1024}")
                w = wfrag(t&1,kk)
                if t < 28:
                    e(f"ds_read_b64_tr_b16 v[{w}:{w+1}], v{TW} offset:{kk*2048}")
                    e(f"ds_read_b64_tr_b16 v[{w+2}:{w+3}], v{TW} offset:{kk*2048+1024}")
                else:
                    if kk == 0: e(f"ds_read_b128 v[{w}:{w+3}], v{TW}")
                    else:
                        e(f"v_xor_b32 v{T0+8}, {kk<<5}, v{TW}")
                        e(f"ds_read_b128 v[{w}:{w+3}], v{T0+8}")
            if mf is not None: mf = pull(mf, 1)
            fill = pull(fill, 6)
        if t == 29:
            drain(fill); fill = silu_epi()
        if t < NST: e.wait_all(vm=False, lg=True)
    drain(fill)
    for i in range(16):
        e(f"v_add_f32 v{SK+i}, v{ACCY+i}, v{SK+i}")
    for i in range(16):
        e(f"v_fma_f32 v{SK+i}, v{SK+i}, v{G+i}, v{XF+i}")
    for a in range(4):
        e(f"buffer_store_dwordx4 v[{SK+4*a}:{SK+4*a+3}], v10, s[40:43], 0 offen offset:{32*a}")
    pr.stamp()
    if PROFILE: e("s_waitcnt vmcnt(0)")
    pr.stamp()
    pr.dump(44, 48)
    e("s_endpgm")
    e2 = e
    e.raw("K2_LOADER:")
    e.lg_issued = e.lg_done = 0; e.vm_issued = e.vm_done = 0
    e("s_sub_u32 s52, s48, 4")
    e("s_and_b32 s53, s52, 1")
    e("s_lshr_b32 s54, s52, 1")
    e("v_lshlrev_b32 v1, 4, v0")
    e("v_lshrrev_b32 v2, 3, v0")
    e("s_lshl_b32 s55, s52, 4")
    e("v_add_u32 v2, s55, v2")
    e("s_movk_i32 s55, 896")
    e("v_mul_lo_u32 v2, s55, v2")
    e("v_and_b32 v3, 7, v0")
    e("v_lshrrev_b32 v4, 4, v0")
    e("v_and_b32 v5, 1, v4")
    e("v_lshlrev_b32 v5, 2, v5")
    e("v_xor_b32 v5, v5, v3")
    e("v_lshl_add_u32 v5, v5, 4, v2")
    e("v_xor_b32 v6, v4, v3")
    e("v_lshl_add_u32 v6, v6, 4, v2")
    e("v_add_u32 v7, 4, v4")
    e("v_xor_b32 v7, v7, v3")
    e("v_lshl_add_u32 v7, v7, 4, v2")
    e(f"v_add_u32 v7, {8*896}, v7")
    e("s_lshl_b32 s58, s49, 1")
    e("s_add_u32 s58, s58, s53")
    e("s_lshl_b32 s59, s54, 1")
    e("s_mul_i32 s56, s58, 112")
    e("s_add_u32 s56, s56, s59")
    e("s_lshl_b32 s56, s56, 10")
    if WS_HF: e(f"s_add_u32 s56, s56, {WS_HF}")
    e("s_mul_i32 s57, s58, 56")
    e("s_add_u32 s57, s57, s59")
    e("s_lshl_b32 s57, s57, 10")
    e(f"s_add_u32 s57, s57, {WS_hF}")
    e("s_lshl_b32 s60, s53, 2")
    e("s_add_u32 s60, s60, s59")
    e("s_lshl_b32 s60, s60, 10")
    e("s_lshl_b32 s61, s52, 11")
    e("s_add_u32 s61, s61, 8192")
    e("s_lshl_b32 s62, s50, 7")
    e(f"s_mul_i32 s63, s50, {64*896}")
    import os
    if os.environ.get("K2ROT", "1") == "1":
        e("s_and_b32 s67, s49, 3")
        e("s_mul_i32 s65, s67, 7")
        e("s_lshl_b32 s68, s50, 2")
        e("s_add_u32 s65, s65, s68")
        e("s_cmp_ge_u32 s65, 28")
        e("s_cselect_b32 s68, 28, 0")
        e("s_sub_u32 s65, s65, s68")
        e("s_lshl_b32 s66, s67, 1")
        e("s_add_u32 s66, s66, s50")
        e("s_cmp_ge_u32 s66, 7")
        e("s_cselect_b32 s68, 7, 0")
        e("s_sub_u32 s66, s66, s68")
    else:
        e("s_mov_b32 s65, 0"); e("s_mov_b32 s66, 0")
    stage_tok = {}
    def issue(t):
        base = (t % K2_R) * K2_STAGE
        if t < 28:
            e("s_lshl_b32 s69, s65, 12")
            e("s_add_u32 s69, s69, s56")
            e(f"s_mul_i32 s70, s65, {64*896}")
            e("s_add_u32 s70, s70, s62")
        else:
            u = t - 28; part = u & 1
            e("s_lshl_b32 s69, s66, 13")
            e("s_add_u32 s69, s69, s57")
            if part: e("s_add_u32 s69, s69, 4096")
            e("s_lshl_b32 s70, s66, 7")
            e("s_add_u32 s70, s70, s63")
        for a in range(2):
            if a: e("s_add_u32 s69, s69, 1024")
            e(f"s_add_u32 m0, s60, {base + a*1024}")
            e("buffer_load_dwordx4 v1, s[44:47], s69 offen lds")
        for a in range(2):
            e(f"s_add_u32 m0, s61, {base + a*1024}")
            if t < 28:
                if a: e("s_add_u32 s70, s70, 7168")
                tok = e("buffer_load_dwordx4 v5, s[36:39], s70 offen lds")
            else:
                tok = e(f"buffer_load_dwordx4 v{6+a}, s[{24+4*part}:{27+4*part}], s70 offen lds")
        stage_tok[t] = tok
        if t < 28:
            e("s_add_u32 s65, s65, 1"); e("s_cmp_eq_u32 s65, 28"); e("s_cselect_b32 s65, 0, s65")
        elif (t - 28) & 1:
            e("s_add_u32 s66, s66, 1"); e("s_cmp_eq_u32 s66, 7"); e("s_cselect_b32 s66, 0, s66")
    pr = Prof(e, 1); pr.n = 1
    for t in range(K2_R - 1): issue(t)
    pr.stamp()
    for t in range(NST):
        e.wait(stage_tok[t])
        if t in (0, 1, 8, 16, 28, 41): pr.stamp()
        e("s_barrier")
        if t + K2_R - 1 < NST: issue(t + K2_R - 1)
    pr.dump(44, 48)
    e.raw("K2_END:")
    e("s_endpgm")

def kd(name, vgpr, sgpr=102):
    acc = (vgpr + 3)//4*4
    return f""".amdhsa_kernel {name}
  .amdhsa_next_free_vgpr {vgpr}
  .amdhsa_next_free_sgpr {sgpr}
  .amdhsa_accum_offset {acc}
  .amdhsa_group_segment_fixed_size 0
  .amdhsa_kernarg_size 128
  .amdhsa_user_sgpr_count 2
  .amdhsa_user_sgpr_kernarg_segment_ptr 1
  .amdhsa_system_sgpr_workgroup_id_x 1
.end_amdhsa_kernel"""

def main():
    global PROFILE
    which = sys.argv[2] if len(sys.argv) > 2 else "k2"
    if len(sys.argv) > 3 and "prof" in sys.argv[3]: PROFILE = True
    hdr = open(f"cdna_kernels/{NAME}.s.ref").read().split("; Override launch")[0]
    out = [hdr.rstrip()]
    kernels = []
    if "k1" in which:
        out.append("; @launch kernel=k1_kernel grid=(256,1,1) block=(512,1,1) lds=163840")
    if "k2" in which:
        out.append(f"; @launch kernel=k2_kernel grid=(224,1,1) block=(512,1,1) lds={K2_R*K2_STAGE}")
    out.append('.amdgcn_target "amdgcn-amd-amdhsa--gfx950"\n.text')
    kds = []
    if "k1" in which:
        import gen_k1
        gen_k1.G.PROFILE = PROFILE
        e = Emit(); vg = gen_k1.gen_k1(e)
        out.append(".globl k1_kernel\n.p2align 8\n.type k1_kernel,@function"); out.append(e.finish()); kds.append(kd("k1_kernel", vg))
    if "k2" in which:
        e = Emit(); gen_k2(e)
        out.append(".globl k2_kernel\n.p2align 8\n.type k2_kernel,@function"); out.append(e.finish()); kds.append(kd("k2_kernel", 200 if not PROFILE else 224))
    out.append('.section .rodata,"a"\n.p2align 6')
    out.append("\n.p2align 6\n".join(kds))
    open(sys.argv[1], "w").write("\n".join(out) + "\n")
if __name__ == "__main__": main()
```

```python
import sys, os
sys.path.insert(0, "dev")
from asmlib import *
import gen as G
from gen import *
from k1_common import *
from collections import deque

env = lambda k, d: type(d)(os.environ.get(k, d)) if not isinstance(d, bool) else os.environ.get(k, "1" if d else "0") == "1"
STAMPS = eval(os.environ.get("STAMPS", '[("A",0),("A",27),("B",0),("B",27)]'))
NOEPI = env("NOEPI", False); NODMA = env("NODMA", False)
PRO_DMAS = env("PRO_DMAS", 10); ROT = env("ROT", True)
PF_GAP = env("PF_GAP", 4); PF_SLOT = env("PF_SLOT", 49); AUX2_SLOT = env("AUX2_SLOT", 4); E_SLOT = env("E_SLOT", 48)
AUX_LOAD = env("AUX_LOAD", 40); AUX_FIN = env("AUX_FIN", 76); PUB_SLOT = env("PUB_SLOT", 14)
BUDGET_A = env("BUDGET_A", 4.0); BUDGET_B = env("BUDGET_B", 6.0); BUDGET_B0 = env("BUDGET_B0", 7.0)

DMAFLAG = os.environ.get("DMAFLAG", "")
if DMAFLAG: DMAFLAG = " " + DMAFLAG
PSTAMP = env("PSTAMP", False)
XR, ZR, WR = 0, 49152, 73728
MISC = 139264
M_ST = MISC; M_CS = MISC + 1024; M_SEG = MISC + 2048; M_N = MISC + 3072
M_PART = MISC + 3328
M_PB = MISC + 5376
M_TR = MISC + 6656
AX, AZr, AW0, AW1 = 1, 5, 9, 10
VX0, VX1, VZ, VW = 11, 12, 13, 14
LR, LI, CR, CI, L8R, L8I, L128R, L128I, TR, TI = 15, 16, 17, 18, 19, 20, 21, 22, 23, 24
M_, SD, NLR, CSR, CSI, PR, PI, ER, EI = 25, 26, 27, 28, 29, 30, 31, 32, 33
VH = 47
AZ = 48
AG = [64, 80, 96, 112]
XF = 128
FB = 240

def gen_k1(e):
    e.raw("k1_kernel:")
    e("s_cmp_ge_u32 s2, 256")
    e("s_cbranch_scc1 K1_END")
    e("s_load_dwordx2 s[4:5], s[0:1], 0")
    e("s_load_dwordx2 s[6:7], s[0:1], 8")
    e("s_load_dwordx2 s[8:9], s[0:1], 24")
    e("s_load_dwordx2 s[10:11], s[0:1], 32")
    e("s_load_dwordx2 s[12:13], s[0:1], 80")
    e("s_load_dwordx2 s[14:15], s[0:1], 88")
    e("s_load_dwordx2 s[16:17], s[0:1], 112")
    e("s_load_dwordx2 s[18:19], s[0:1], 120")
    e("s_load_dwordx2 s[62:63], s[0:1], 16")
    e("s_load_dwordx2 s[86:87], s[0:1], 96")
    e("s_load_dwordx2 s[88:89], s[0:1], 40")
    e("s_load_dwordx2 s[90:91], s[0:1], 48")
    t = e("s_load_dwordx2 s[64:65], s[0:1], 56")
    e("v_lshrrev_b32 v1, 6, v0")
    e("v_and_b32 v0, 63, v0")
    e("v_readfirstlane_b32 s48, v1")
    e("s_sub_u32 s49, s2, 32")
    e("s_and_b32 s50, s49, 7")
    e("s_lshr_b32 s51, s49, 3")
    e("s_and_b32 s52, s50, 3")
    e("s_lshl_b32 s52, s52, 2")
    e("s_and_b32 s53, s51, 3")
    e("s_add_u32 s52, s52, s53")
    e("s_lshr_b32 s53, s50, 2")
    e("s_mul_i32 s53, s53, 7")
    e("s_lshr_b32 s54, s51, 2")
    e("s_add_u32 s53, s53, s54")
    e("s_and_b32 s54, s48, 3")
    e("s_lshr_b32 s55, s48, 2")
    e("v_lshrrev_b32 v40, 3, v0")
    e("v_and_b32 v41, 7, v0")
    e("v_lshrrev_b32 v42, 4, v0")
    e("s_movk_i32 s56, 896")
    e("s_lshl_b32 s57, s48, 4")
    e("v_add_u32 v43, s57, v40")
    e("v_mul_lo_u32 v43, s56, v43")
    e("v_xor_b32 v44, v41, v42")
    e(f"v_lshl_add_u32 v{VX0}, v44, 4, v43")
    e("v_add_u32 v44, 4, v42")
    e("v_xor_b32 v44, v41, v44")
    e(f"v_lshl_add_u32 v{VX1}, v44, 4, v43")
    e(f"v_add_u32 v{VX1}, {8*896}, v{VX1}")
    e("s_lshl_b32 s57, s54, 3")
    e("v_add_u32 v43, s57, v40")
    e("v_mul_lo_u32 v43, s56, v43")
    e("s_and_b32 s57, s48, 1")
    e("s_lshl_b32 s57, s57, 2")
    e("v_add_u32 v44, s57, v42")
    e("v_xor_b32 v44, v41, v44")
    e(f"v_lshl_add_u32 v{VZ}, v44, 4, v43")
    e("s_lshl_b32 s57, s54, 4")
    e("v_add_u32 v43, s57, v40")
    e("s_movk_i32 s56, 3584")
    e("v_mul_lo_u32 v43, s56, v43")
    e("v_and_b32 v44, 1, v42")
    e("s_lshl_b32 s57, s55, 1")
    e("v_add_u32 v44, s57, v44")
    e("v_lshlrev_b32 v44, 1, v44")
    e("v_xor_b32 v44, v41, v44")
    e(f"v_lshl_add_u32 v{VW}, v44, 4, v43")
    e(f"s_mul_i32 s66, s52, {128*896}")
    e(f"s_mul_i32 s67, s53, {32*896}")
    e("s_lshl_b32 s72, s53, 8")
    e("s_lshl_b32 s73, s48, 11")
    e("s_lshl_b32 s74, s48, 10")
    e(f"s_add_u32 s74, s74, {ZR}")
    e("s_lshl_b32 s75, s55, 13")
    e("s_lshl_b32 s76, s54, 11")
    e("s_add_u32 s75, s75, s76")
    e(f"s_add_u32 s75, s75, {WR}")
    e.wait(t)
    e("s_cmp_lt_u32 s2, 32")
    e("s_cbranch_scc1 K1_HELPER")
    e("s_cmp_eq_u32 s55, 0")
    e("s_cselect_b32 s24, s8, s10")
    e("s_cselect_b32 s25, s9, s11")
    e("s_cselect_b32 s28, s12, s14")
    e("s_cselect_b32 s29, s13, s15")
    srd(e, 20, 4, 2048*448*2)
    e("s_and_b32 s25, s25, 0xffff")
    e(f"s_mov_b32 s26, {448*448*2}")
    e("s_mov_b32 s27, 0x20000")
    e("s_and_b32 s29, s29, 0xffff")
    e(f"s_mov_b32 s30, {448*1792*2}")
    e("s_mov_b32 s31, 0x20000")
    srd(e, 40, 6, 896)
    srd(e, 44, 62, 896)
    srd(e, 68, 64, 896)
    srd(e, 32, 18, WS_END if not G.PROFILE else (16 << 20))
    srd(e, 36, 16, 256)
    pr = G.Prof(e, 0); pr.stamp()
    e("v_and_b32 v40, 15, v0")
    e("s_lshl_b32 s56, s53, 5")
    e("s_lshl_b32 s57, s55, 4")
    e("s_add_u32 s78, s56, s57")
    e("v_add_u32 v41, s78, v40")
    e("v_lshlrev_b32 v42, 1, v41")
    tp = [e("buffer_load_ushort v43, v42, s[40:43], 0 offen"),
          e("buffer_load_ushort v44, v42, s[44:47], 0 offen"),
          e("buffer_load_ushort v45, v42, s[68:71], 0 offen")]
    e("s_mov_b32 s60, 0")
    e("s_cmp_lt_u32 s48, 2")
    e("s_cselect_b32 s61, 1, 0")
    e("s_cmp_lt_u32 s53, 8")
    e("s_cselect_b32 s60, s61, 0")
    e("s_cmp_eq_u32 s48, 2")
    e("s_cselect_b32 s61, 2, 0")
    e("s_cmp_lt_u32 s52, 8")
    e("s_cselect_b32 s61, s61, 0")
    e("s_or_b32 s60, s60, s61")
    e("s_lshl_b32 s56, s52, 7")
    e("s_lshl_b32 s57, s53, 4")
    e("s_add_u32 s56, s56, s57")
    e("s_lshl_b32 s57, s48, 3")
    e("s_add_u32 s56, s56, s57")
    e("s_lshl_b32 s57, s53, 5")
    e("s_and_b32 s58, s52, 3")
    e("s_lshl_b32 s58, s58, 3")
    e("s_add_u32 s57, s57, s58")
    e("s_cmp_eq_u32 s60, 2")
    e("s_cselect_b32 s59, s57, s56")
    e("s_cmp_ge_u32 s52, 4")
    e("s_cselect_b32 s92, s10, s8")
    e("s_cselect_b32 s93, s11, s9")
    e("s_cselect_b32 s62, 448, 0")
    e("s_cmp_eq_u32 s60, 2")
    e("s_cselect_b32 s92, s92, s4")
    e("s_cselect_b32 s93, s93, s5")
    e(f"s_mov_b32 s94, {2048*448*2}")
    e(f"s_cselect_b32 s94, {448*448*2}, s94")
    e("s_cselect_b32 s62, s62, 0")
    e("s_and_b32 s93, s93, 0xffff")
    e("s_mov_b32 s95, 0x20000")
    e("s_add_u32 s62, s62, s59")
    e("s_mul_i32 s63, s59, 896")
    e("v_lshrrev_b32 v34, 3, v0")
    e("v_and_b32 v35, 7, v0")
    e("v_mul_u32_u24 v36, 896, v34")
    e("v_lshl_add_u32 v36, v35, 4, v36")
    RB = 192
    labrb = e.label("K1_NORB")
    e("s_cmp_eq_u32 s60, 0")
    e(f"s_cbranch_scc1 {labrb}")
    e.cond_begin()
    for k in range(7): e(f"buffer_load_dwordx4 v[{RB+4*k}:{RB+4*k+3}], v36, s[92:95], s63 offen offset:{128*k}")
    e.cond_end()
    e.raw(f"{labrb}:")
    def rowbatch_compute():
        lab = e.label("K1_NORC")
        e("s_cmp_eq_u32 s60, 0")
        e(f"s_cbranch_scc1 {lab}")
        e.cond_begin()
        e.raw(f"s_waitcnt vmcnt({RBWAIT[0]})")
        e("s_mov_b32 s58, 0x3f803f80")
        e("v_mov_b32 v220, 0"); e("v_mov_b32 v221, 0"); e("v_mov_b32 v222, 0"); e("v_mov_b32 v223, 0")
        for k in range(28):
            e(f"v_dot2c_f32_bf16 v{220 + (k&1)}, s58, v{RB+k}")
            e(f"v_dot2c_f32_bf16 v{222 + (k&1)}, v{RB+k}, v{RB+k}")
        e("s_nop 2")
        e("v_add_f32 v220, v220, v221")
        e("v_add_f32 v221, v222, v223")
        for r_ in (220, 221):
            e(f"v_add_f32_dpp v{r_}, v{r_}, v{r_} quad_perm:[1,0,3,2] row_mask:0xf bank_mask:0xf")
            e(f"v_add_f32_dpp v{r_}, v{r_}, v{r_} quad_perm:[2,3,0,1] row_mask:0xf bank_mask:0xf")
            e(f"v_add_f32_dpp v{r_}, v{r_}, v{r_} row_half_mirror row_mask:0xf bank_mask:0xf")
        e("v_mov_b32 v224, v220")
        e(f"v_mul_f32 v220, {f32(1.0/448)}, v220")
        e(f"v_mul_f32 v221, {f32(1.0/448)}, v221")
        e("v_fma_f32 v221, -v220, v220, v221")
        e("v_max_f32 v221, 0, v221")
        e("v_cvt_pk_bf16_f32 v220, v220, v221")
        e("v_and_b32 v221, 0xffff0000, v220")
        e("v_lshlrev_b32 v220, 16, v220")
        e(f"v_add_f32 v221, {f32(1e-5)}, v221")
        e("v_cvt_pk_bf16_f32 v221, v221, v221")
        e("v_lshlrev_b32 v221, 16, v221")
        e("v_sqrt_f32 v221, v221")
        e("v_cvt_pk_bf16_f32 v221, v221, v221")
        e("v_lshlrev_b32 v221, 16, v221")
        e.cond_end()
        e.raw(f"{lab}:")
    def rowbatch_publish():
        lab = e.label("K1_NORP"); labx = e.label("K1_RPX")
        e("s_cmp_eq_u32 s60, 0")
        e(f"s_cbranch_scc1 {lab}")
        e.cond_begin()
        e("v_lshrrev_b32 v34, 3, v0")
        e("v_add_u32 v34, s62, v34")
        e("v_and_b32 v35, 7, v0")
        e("v_cmp_eq_u32 vcc, 0, v35")
        e("s_and_saveexec_b64 s[58:59], vcc")
        e("s_cmp_eq_u32 s60, 1")
        e(f"s_cbranch_scc1 {labx}")
        e("v_lshlrev_b32 v34, 3, v34")
        e("v_mov_b32 v36, v224"); e("v_mov_b32 v37, s98")
        e(f"s_mov_b32 s56, {WS_CSB}")
        e("buffer_store_dwordx2 v[36:37], v34, s[32:35], s56 offen sc1")
        e("s_mov_b64 exec, s[58:59]")
        e(f"s_branch {lab}")
        e.raw(f"{labx}:")
        e("v_lshlrev_b32 v34, 4, v34")
        e("v_mov_b32 v36, v220"); e("v_mov_b32 v37, s98"); e("v_mov_b32 v38, v221"); e("v_mov_b32 v39, s98")
        e(f"s_mov_b32 s56, {WS_STAT}")
        e("buffer_store_dwordx4 v[36:39], v34, s[32:35], s56 offen sc1")
        e("s_mov_b64 exec, s[58:59]")
        e.cond_end()
        e.raw(f"{lab}:")
    RBWAIT = [0]
    vm_at_rb = e.vm_issued
    if ROT:
        e("s_and_b32 s56, s51, 3")
        e("s_lshl_b32 s56, s56, 1")
        e("s_lshr_b32 s57, s51, 2")
        e("s_add_u32 s56, s56, s57")
        e("s_cmp_ge_u32 s56, 7")
        e("s_cselect_b32 s57, 7, 0")
        e("s_sub_u32 s56, s56, s57")
    else:
        e("s_mov_b32 s56, 0")
    def rot_entry(t):
        e(f"s_lshl_b32 s{4+t}, s56, 7")
        e(f"s_mul_i32 s{11+t}, s56, {64*3584}")
        e(f"s_add_u32 s{4+t}, s{4+t}, s66")
        e(f"s_add_u32 s{11+t}, s{11+t}, s72")
        if t < 6:
            e("s_add_u32 s56, s56, 1")
            e("s_cmp_eq_u32 s56, 7")
            e("s_cselect_b32 s56, 0, s56")
    e("s_sub_u32 s67, s67, s66")
    rot_entry(0)

    ent_tok = {}
    dmaq = deque()
    def entry_dmas(kind, kc):
        def mk(a, last):
            def f():
                if NODMA:
                    if last: ent_tok[(kind, kc)] = None
                    return
                if kind == "X":
                    e(f"s_add_u32 m0, s73, {XR + (kc%3)*16384 + a*1024}")
                    tok = e(f"buffer_load_dwordx4 v{VX0+a}, s[20:23], s{4+kc} offen{DMAFLAG} lds")
                elif kind == "Z":
                    e(f"s_add_u32 s77, s67, s{4+kc}")
                    e(f"s_add_u32 m0, s74, {(kc%3)*8192}")
                    tok = e(f"buffer_load_dwordx4 v{VZ}, s[24:27], s77 offen{DMAFLAG} lds")
                else:
                    ch = kc % 7; colb = 0 if kc < 7 else 128
                    e(f"s_add_u32 s77, s{11+ch}, {8*a*3584 + colb}")
                    e(f"s_add_u32 m0, s75, {(kc%4)*16384 + a*1024}")
                    tok = e(f"buffer_load_dwordx4 v{VW}, s[28:31], s77 offen{DMAFLAG} lds")
                if last: ent_tok[(kind, kc)] = tok
            return f
        n = 1 if kind == "Z" else 2
        return [mk(a, a == n - 1) for a in range(n)]
    def queue(*ents):
        for (k, kc) in ents:
            for f in entry_dmas(k, kc): dmaq.append(f)
    queue(("X",0),("Z",0),("W",0))
    for _ in range(5): dmaq.popleft()()
    for t in range(1, 7): rot_entry(t)
    queue(("X",1),("Z",1),("W",1),("X",2),("Z",2),("W",2),("W",3))
    for _ in range(max(0, PRO_DMAS - 5)): dmaq.popleft()()
    RBWAIT[0] = e.vm_issued - vm_at_rb
    if PSTAMP: pr.stamp()
    nonce_cas(e, 120)
    def issue_for_tick(tk):
        l = []
        if tk >= 1:
            if tk + 2 < 7: l += [("X", tk+2), ("Z", tk+2)]
            if tk + 3 < 14: l += [("W", tk+3)]
        return l

    e("v_and_b32 v34, 31, v0")
    e("v_lshrrev_b32 v35, 4, v34")
    e("v_bfe_u32 v36, v34, 2, 1")
    e("v_lshl_add_u32 v35, v36, 1, v35")
    e("v_bfe_u32 v36, v34, 3, 1")
    e("v_lshlrev_b32 v35, 3, v35")
    e("v_lshl_add_u32 v35, v36, 2, v35")
    e("v_and_b32 v36, 3, v34")
    e("v_add_u32 v35, v35, v36")
    e("v_lshrrev_b32 v36, 5, v0")
    e(f"v_lshl_add_u32 v{VH}, v36, 5, v35")
    e(f"v_lshlrev_b32 v{VH}, 4, v{VH}")
    e("s_lshl_b32 s56, s54, 5")
    e("v_add_u32 v37, s56, v35")
    e(f"v_lshlrev_b32 v{AX}, 7, v37")
    e("v_bfe_u32 v38, v35, 1, 3")
    e("v_xor_b32 v38, v38, v36")
    e(f"v_lshl_add_u32 v{AX}, v38, 4, v{AX}")
    for kk in range(1, 4): e(f"v_xor_b32 v{AX+kk}, {kk<<5}, v{AX}")
    e("v_bfe_u32 v38, v0, 4, 1")
    e(f"v_lshlrev_b32 v{AZr}, 12, v38")
    e("s_lshl_b32 s56, s55, 4")
    e("v_and_b32 v40, 15, v0")
    e("v_add_u32 v39, s56, v40")
    e(f"v_lshl_add_u32 v{AZr}, v39, 7, v{AZr}")
    e("v_bfe_u32 v39, v40, 1, 3")
    e("v_xor_b32 v39, v39, v36")
    e(f"v_lshl_add_u32 v{AZr}, v39, 4, v{AZr}")
    e(f"v_add_u32 v{AZr}, {ZR}, v{AZr}")
    for kk in range(1, 4): e(f"v_xor_b32 v{AZr+kk}, {kk<<5}, v{AZr}")
    e(f"v_lshlrev_b32 v{AW0}, 13, v38")
    e("v_lshrrev_b32 v39, 2, v40")
    e("v_lshl_add_u32 v39, v36, 3, v39")
    e(f"v_lshl_add_u32 v{AW0}, v39, 7, v{AW0}")
    e("v_lshrrev_b32 v39, 3, v40")
    e("v_lshl_add_u32 v39, v38, 1, v39")
    e("s_lshl_b32 s56, s55, 1")
    e("v_xor_b32 v39, s56, v39")
    e(f"v_lshl_add_u32 v{AW0}, v39, 5, v{AW0}")
    e("v_and_b32 v39, 3, v40")
    e(f"v_lshl_add_u32 v{AW0}, v39, 3, v{AW0}")
    e(f"v_add_u32 v{AW0}, {WR}, v{AW0}")
    e(f"v_xor_b32 v{AW1}, 32, v{AW0}")
    e("s_lshl_b32 s56, s52, 2")
    e("s_add_u32 s56, s56, s54")
    e("s_mul_i32 s56, s56, 112")
    e("s_lshl_b32 s57, s53, 3")
    e("s_add_u32 s56, s56, s57")
    e("s_lshl_b32 s57, s55, 1")
    e("s_add_u32 s56, s56, s57")
    e("s_lshl_b32 s79, s56, 10")
    if WS_HF: e(f"s_add_u32 s79, s79, {WS_HF}")

    def params():
        e.wait(tp); yield
        e("s_bitcmp1_b32 s54, 0"); e("s_cselect_b64 s[40:41], -1, 0")
        e("s_bitcmp1_b32 s54, 1"); e("s_cselect_b64 s[42:43], -1, 0")
        e("s_mov_b32 s44, 0xffff0000"); e("s_mov_b32 s45, 0xffff0000")
        e("s_mov_b32 s46, 0"); e("s_mov_b32 s47, -1")
        e("v_lshlrev_b32 v43, 16, v43"); yield
        e("v_lshlrev_b32 v44, 16, v44"); yield
        e("v_lshlrev_b32 v45, 16, v45"); yield
        e(f"v_mul_f32 v45, {f32(LOG2E)}, v45"); yield
        e("v_exp_f32 v45, v45"); yield
        e("v_cvt_pk_bf16_f32 v45, v45, v45"); yield
        e("v_lshlrev_b32 v45, 16, v45"); yield
        e("v_mul_f32 v34, v45, v43"); yield
        e("v_mul_f32 v35, v45, v44"); yield
        e(f"v_mul_f32 v34, {f32(LOG2E)}, v34"); yield
        e("v_exp_f32 v34, v34"); yield
        e(f"v_mul_f32 v35, {f32(1.0/(2*3.141592653589793))}, v35"); yield
        e("v_fract_f32 v35, v35"); yield
        e("v_cos_f32 v36, v35"); yield
        e("v_sin_f32 v37, v35"); yield
        e(f"v_mul_f32 v{LR}, v34, v36"); yield
        e(f"v_mul_f32 v{LI}, v34, v37"); yield
        e(f"v_add_f32 v36, -1.0, v{LR}"); yield
        e("v_mul_f32 v38, v43, v43"); yield
        e("v_fmac_f32 v38, v44, v44"); yield
        e("v_rcp_f32 v38, v38"); yield
        e("v_mul_f32 v39, v36, v43"); yield
        e(f"v_fmac_f32 v39, v{LI}, v44"); yield
        e(f"v_mul_f32 v34, v{LI}, v43"); yield
        e("v_fma_f32 v34, -v36, v44, v34"); yield
        e("v_add_f32 v38, v38, v38"); yield
        e(f"v_mul_f32 v{CR}, v39, v38"); yield
        e(f"v_mul_f32 v{CI}, v34, v38"); yield
        yield from csq(e, 34, 35, LR, LI, 38)
        yield from csq(e, 36, 37, 34, 35, 38)
        yield from csq(e, L8R, L8I, 36, 37, 38)
        e(f"v_mov_b32 v{TR}, 1.0"); yield
        e(f"v_mov_b32 v{TI}, 0"); yield
        e(f"v_mov_b32 v34, v{L8R}"); yield
        e(f"v_mov_b32 v35, v{L8I}"); yield
        for b, m in enumerate(("s[44:45]", "s[46:47]", "s[40:41]", "s[42:43]")):
            yield from cmul(e, 36, 37, TR, TI, 34, 35, 38)
            e(f"v_cndmask_b32 v{TR}, v{TR}, v36, {m}"); yield
            e(f"v_cndmask_b32 v{TI}, v{TI}, v37, {m}"); yield
            e("v_mov_b32 v41, v34"); yield
            e("v_mov_b32 v42, v35"); yield
            yield from csq(e, 34, 35, 41, 42, 38)
        e(f"v_mov_b32 v{L128R}, v34"); yield
        e(f"v_mov_b32 v{L128I}, v35"); yield

    def zbuf(ks): return 96 + (ks & 1)*4
    def wbufA(ks, tl): return 104 + (ks & 1)*8 + tl*4
    def wbufB(ks, tl): return FB + (ks & 1)*8 + tl*4
    first = {}
    def mfma(acc, a, b):
        c = f"v[{acc}:{acc+15}]" if first.get(acc) else "0"
        first[acc] = True
        e(f"v_mfma_f32_32x32x16_bf16 v[{acc}:{acc+15}], v[{a}:{a+3}], v[{b}:{b+3}], {c}")
    rd_tok = {}
    def reads_xz(ks):
        kk = ks & 3; kc = ks >> 2
        rd_tok[("xz", ks)] = [e(f"ds_read_b128 v[{XF+4*ks}:{XF+4*ks+3}], v{AX+kk} offset:{(kc%3)*16384}"),
                              e(f"ds_read_b128 v[{zbuf(ks)}:{zbuf(ks)+3}], v{AZr+kk} offset:{(kc%3)*8192}")]
    def reads_w(ph, ks, tl):
        kk = ks & 3; w = (ks >> 2) + (0 if ph == "A" else 7)
        b = wbufA(ks, tl) if ph == "A" else wbufB(ks, tl)
        ad = AW0 if tl == 0 else AW1
        off = (w % 4)*16384 + kk*2048
        rd_tok[(ph, ks, tl)] = [e(f"ds_read_b64_tr_b16 v[{b}:{b+1}], v{ad} offset:{off}"),
                                e(f"ds_read_b64_tr_b16 v[{b+2}:{b+3}], v{ad} offset:{off+512}")]
    steps = [("A", ks) for ks in range(28)] + [("B", ks) for ks in range(28)]
    def tick_idx(ph, ks): return (ks >> 2) + (0 if ph == "A" else 7)
    def need_ents(tk): return [("X",tk),("Z",tk),("W",tk)] if tk < 7 else [("W",tk)]
    def enter_tick(tk):
        while any(x not in ent_tok for x in need_ents(tk)): dmaq.popleft()()
        e.wait([ent_tok[x] for x in need_ents(tk)])
        if tk == 1: nonce_publish(e, 120, M_N)
        e.wait_all(vm=False)
        e("s_barrier")
        if tk == 1: nonce_read(e, 121, M_N)
        queue(*issue_for_tick(tk))

    def main_stream():
        if PSTAMP: pr.stamp()
        rowbatch_compute()
        if PSTAMP: pr.stamp()
        enter_tick(0)
        if PSTAMP: pr.stamp()
        reads_xz(0); reads_w("A", 0, 0); reads_w("A", 0, 1)
        for n, (ph, ks) in enumerate(steps):
            nx = steps[n+1] if n + 1 < len(steps) else None
            x = XF + 4*ks
            if ph == "A":
                ops = [(AZ, x, zbuf(ks), ("xz", ks)), (AG[0], wbufA(ks,0), x, (ph, ks, 0)), (AG[1], wbufA(ks,1), x, (ph, ks, 1))]
            else:
                ops = [(AG[2], wbufB(ks,0), x, (ph, ks, 0)), (AG[3], wbufB(ks,1), x, (ph, ks, 1))]
            for si, (acc, a, b, key) in enumerate(ops):
                e.wait(rd_tok[key])
                mfma(acc, a, b)
                dma_ok = False
                if nx is not None:
                    ph2, ks2 = nx
                    if si == 0 and (ks2 & 3) == 0: enter_tick(tick_idx(ph2, ks2))
                    if ph == "A":
                        if si == 0:
                            if ph2 == "A": reads_xz(ks2)
                            reads_w(ph2, ks2, 0)
                        elif si == 1: reads_w(ph2, ks2, 1)
                        else: dma_ok = True
                    else:
                        if si == 0: reads_w("B", ks2, 0); reads_w("B", ks2, 1)
                        else: dma_ok = True
                did = False
                if dma_ok and dmaq:
                    dmaq.popleft()(); did = True
                    if len(dmaq) > 4: dmaq.popleft()()
                yield (ph, ks, si, did)

    aux = {}
    def tagcheck(regs):
        e(f"v_xor_b32 v44, s98, v{regs[0]}")
        for r in regs[1:]:
            e(f"v_xor_b32 v45, s98, v{r}")
            e("v_or_b32 v44, v44, v45")
        e("v_cmp_ne_u32 vcc, 0, v44")
        e("s_cmp_eq_u64 vcc, 0")
    def aux1_issue_raw():
        e("s_lshl_b32 s56, s52, 11")
        e(f"s_add_u32 s56, s56, {WS_STAT}")
        e("v_lshlrev_b32 v34, 4, v0")
        t = [e("buffer_load_dwordx4 v[36:39], v34, s[32:35], s56 offen sc1"),
             e("buffer_load_dwordx4 v[40:43], v34, s[32:35], s56 offen offset:1024 sc1")]
        e(f"v_and_b32 v35, 0x1f0, v{VH}")
        e("s_lshl_b32 s57, s54, 9")
        e("v_add_u32 v35, s57, v35")
        t.append(e("buffer_load_dwordx4 v[120:123], v35, s[32:35], s56 offen sc1"))
        e("v_and_b32 v35, 15, v0")
        e("v_add_u32 v35, s78, v35")
        e("v_lshlrev_b32 v35, 3, v35")
        e(f"s_mov_b32 s56, {WS_CSB}")
        t.append(e("buffer_load_dwordx2 v[124:125], v35, s[32:35], s56 offen sc1"))
        t.append(e(f"buffer_load_dwordx2 v[126:127], v35, s[32:35], s56 offen offset:{448*8} sc1"))
        return t
    def aux1_issue():
        aux["t"] = aux1_issue_raw(); yield
    def aux1_finish():
        e.wait(aux["t"])
        tagged_retry(e, aux1_issue_raw, lambda: tagcheck([37, 39, 41, 43, 121, 123, 125, 127]), "K1_A1")
        yield
        e("v_rcp_f32 v37, v38"); yield
        e("v_rcp_f32 v41, v42"); yield
        e("v_lshlrev_b32 v34, 3, v0"); yield
        e(f"v_add_u32 v34, {M_ST}, v34"); yield
        e("ds_write_b64 v34, v[36:37]"); yield
        tw = e("ds_write_b64 v34, v[40:41] offset:512"); yield
        e(f"v_mov_b32 v{M_}, v120"); yield
        e(f"v_mov_b32 v{SD}, v122"); yield
        e(f"v_mov_b32 v{CSR}, v124"); yield
        e(f"v_mov_b32 v{CSI}, v126"); yield
        e(f"v_rcp_f32 v{NLR}, v{SD}"); yield
        e("v_lshrrev_b32 v34, 4, v0"); yield
        e("s_lshl_b32 s56, s54, 8")
        e(f"s_add_u32 s56, s56, {M_ST}")
        e("v_lshlrev_b32 v34, 6, v34"); yield
        e(f"v_mul_f32 v{NLR}, {f32(-LOG2E)}, v{NLR}"); yield
        e("v_add_u32 v34, s56, v34"); yield
        e.wait(tw)
        aux["st"] = [e("ds_read_b128 v[36:39], v34"), e("ds_read_b128 v[40:43], v34 offset:16")]
        yield
    def aux2_issue_raw():
        e("s_lshl_b32 s56, s53, 10")
        e(f"s_add_u32 s56, s56, {WS_CSW}")
        e("v_lshlrev_b32 v46, 4, v0")
        t = [e("buffer_load_dwordx4 v[128:131], v46, s[32:35], s56 offen sc1")]
        e(f"s_add_u32 s56, s56, {1792*8}")
        t.append(e("buffer_load_dwordx4 v[132:135], v46, s[32:35], s56 offen sc1"))
        return t
    def aux2_issue():
        aux["t2"] = aux2_issue_raw(); yield
    def aux2_finish():
        e.wait(aux["t2"])
        tagged_retry(e, aux2_issue_raw, lambda: tagcheck([129, 131, 133, 135]), "K1_A2")
        yield
        e("v_mov_b32 v129, v130"); yield
        e("v_mov_b32 v133, v134"); yield
        e("v_lshlrev_b32 v46, 3, v0"); yield
        e(f"v_add_u32 v46, {M_CS}, v46"); yield
        e("ds_write_b64 v46, v[128:129]"); yield
        e("ds_write_b64 v46, v[132:133] offset:512"); yield
        e("v_lshrrev_b32 v46, 5, v0"); yield
        e("v_lshlrev_b32 v46, 4, v46"); yield
        e("s_lshl_b32 s56, s55, 7")
        e(f"s_add_u32 s56, s56, {M_CS}")
        e("v_add_u32 v46, s56, v46"); yield
    def cs_reads(tl, CSB):
        o = (tl >> 1)*256 + (tl & 1)*64
        aux[("cs", tl)] = [e(f"ds_read_b128 v[{CSB}:{CSB+3}], v46 offset:{o}"),
                           e(f"ds_read_b128 v[{CSB+4}:{CSB+7}], v46 offset:{o+32}"),
                           e(f"ds_read_b128 v[{CSB+8}:{CSB+11}], v46 offset:{o+512}"),
                           e(f"ds_read_b128 v[{CSB+12}:{CSB+15}], v46 offset:{o+544}")]
        yield

    def z_pass1():
        for i in range(8):
            e(f"v_permlane16_swap_b32 v{AZ+i}, v{AZ+8+i}"); yield
        st = list(aux["st"])
        for g in range(4):
            b = 36 + (g & 1)*4
            e.wait(st[g]); yield
            for u in range(2):
                i = 2*g + u; mm, rr = b + 2*u, b + 2*u + 1
                zr, zi = AZ + i, AZ + 8 + i
                e(f"v_fma_f32 v{zr}, -v{mm}, v{CSR}, v{zr}"); yield
                e(f"v_fma_f32 v{zi}, -v{mm}, v{CSI}, v{zi}"); yield
                e(f"v_mul_f32 v{zr}, v{zr}, v{rr}"); yield
                e(f"v_mul_f32 v{zi}, v{zi}, v{rr}"); yield
            if g + 2 < 4:
                st.append(e(f"ds_read_b128 v[{b}:{b+3}], v34 offset:{(g+2)*16}")); yield
        pr_, pi_ = AZ, AZ + 8
        for i in range(1, 8):
            d = (44, 45) if (i & 1) else (ER, EI)
            yield from cfma_to(e, d[0], d[1], pr_, pi_, LR, LI, AZ+i, AZ+8+i)
            pr_, pi_ = d
        e(f"v_mul_f32 v36, v{CI}, v45"); yield
        e(f"v_mul_f32 v37, v{CI}, v44"); yield
        e(f"v_fma_f32 v{ER}, v{CR}, v44, -v36"); yield
        e(f"v_fma_f32 v{EI}, v{CR}, v45, v37"); yield
    def hier1():
        e(f"v_mov_b32 v1, v{ER}"); yield
        e(f"v_mov_b32 v2, v{ER}"); yield
        e(f"v_mov_b32 v3, v{EI}"); yield
        e(f"v_mov_b32 v4, v{EI}"); yield
        yield from csq(e, 7, 8, L8R, L8I, 34)
        e("v_permlane16_swap_b32 v1, v2"); yield
        e("v_permlane16_swap_b32 v3, v4"); yield
        yield from cfma_to(e, 5, 6, 1, 3, L8R, L8I, 2, 4)
        e("v_mov_b32 v11, v5"); yield
        e("v_mov_b32 v12, v5"); yield
        e("v_mov_b32 v13, v6"); yield
        e("v_mov_b32 v34, v6"); yield
        e("v_and_b32 v35, 15, v0"); yield
        e("s_lshl_b32 s56, s55, 4")
        e("v_add_u32 v35, s56, v35"); yield
        e("v_lshlrev_b32 v35, 3, v35"); yield
        e("v_permlane32_swap_b32 v11, v12"); yield
        e("v_permlane32_swap_b32 v13, v34"); yield
        e(f"v_add_u32 v35, {M_SEG}, v35"); yield
        yield from cfma_to(e, 5, 6, 11, 13, 7, 8, 12, 34)
        e("s_lshl_b32 s56, s54, 8")
        e("v_add_u32 v34, s56, v35"); yield
        e("v_mov_b32 v44, v5"); yield
        e("v_mov_b32 v45, v6"); yield
        e("ds_write_b64 v34, v[44:45]"); yield
    def hier2():
        tk = [e(f"ds_read_b64 v[{36+2*u}:{37+2*u}], v35 offset:{u*256}") for u in range(3)]
        yield
        yield from csq(e, 42, 43, 7, 8, 44)
        e.wait(tk); yield
        yield from cfma_to(e, 44, 45, 36, 37, 42, 43, 38, 39)
        yield from cfma_to(e, 2, 4, 44, 45, 42, 43, 40, 41)
        e("v_cndmask_b32 v2, v44, v2, s[40:41]"); yield
        e("v_cndmask_b32 v4, v45, v4, s[40:41]"); yield
        e("v_cndmask_b32 v36, 0, v36, s[40:41]"); yield
        e("v_cndmask_b32 v37, 0, v37, s[40:41]"); yield
        e("v_cndmask_b32 v36, v36, v2, s[42:43]"); yield
        e("v_cndmask_b32 v37, v37, v4, s[42:43]"); yield
        lab = e.label("K1_NOPUB")
        e("s_cmp_lg_u32 s54, 3")
        e(f"s_cbranch_scc1 {lab}")
        e.cond_begin()
        for _ in cfma_to(e, 38, 40, 36, 37, 42, 43, 5, 6): pass
        e("v_mov_b32 v39, s98"); e("v_mov_b32 v41, s98")
        e("v_and_b32 v34, 15, v0")
        e("v_add_u32 v34, s78, v34")
        e("v_lshlrev_b32 v34, 4, v34")
        e(f"s_mul_i32 s56, s52, {448*16}")
        e(f"s_add_u32 s56, s56, {WS_E}")
        e("s_mov_b64 s[58:59], exec")
        e("s_mov_b64 exec, 0xffff")
        e("buffer_store_dwordx4 v[38:41], v34, s[32:35], s56 offen sc1")
        e("s_mov_b64 exec, s[58:59]")
        e.cond_end()
        e.raw(f"{lab}:")
        yield
        yield from cfma_to(e, 38, 39, 36, 37, 7, 8, 11, 13)
        e("v_cndmask_b32 v36, v36, v38, s[46:47]"); yield
        e("v_cndmask_b32 v37, v37, v39, s[46:47]"); yield
        yield from cfma_to(e, 38, 39, 36, 37, L8R, L8I, 1, 3)
        e(f"v_cndmask_b32 v{PR}, v36, v38, s[44:45]"); yield
        e(f"v_cndmask_b32 v{PI}, v37, v39, s[44:45]"); yield
    def zscale():
        for i in range(8):
            zr, zi = AZ + i, AZ + 8 + i
            e(f"v_mul_f32 v36, v{CI}, v{zi}"); yield
            e(f"v_mul_f32 v37, v{CI}, v{zr}"); yield
            e(f"v_fma_f32 v{zr}, v{CR}, v{zr}, -v36"); yield
            e(f"v_fma_f32 v{zi}, v{CR}, v{zi}, v37"); yield
    def gu_epi(tl, CSB):
        acc = AG[tl]
        e.wait(aux[("cs", tl)]); yield
        for i in range(8):
            g, u = acc + i, acc + 8 + i
            e(f"v_fma_f32 v{g}, -v{M_}, v{CSB+i}, v{g}"); yield
            e(f"v_fma_f32 v{u}, -v{M_}, v{CSB+8+i}, v{u}"); yield
            e(f"v_mul_f32 v{g}, v{g}, v{NLR}"); yield
            e(f"v_exp_f32 v{g}, v{g}"); yield
            if i > 0:
                e(f"v_mul_f32 v{g-1}, v{g-1}, v{u-1}"); yield
            e(f"v_fma_f32 v{g}, v{g}, v{SD}, v{SD}"); yield
            e(f"v_rcp_f32 v{g}, v{g}"); yield
        e(f"v_mul_f32 v{acc+7}, v{acc+7}, v{acc+15}"); yield
        for p in range(4):
            e(f"v_cvt_pk_bf16_f32 v{acc+8+p}, v{acc+2*p}, v{acc+2*p+1}"); yield
        e(f"s_add_u32 s56, s79, {((tl>>1)*4 + (tl&1))*1024}")
        e(f"buffer_store_dwordx4 v[{acc+8}:{acc+11}], v{VH}, s[32:35], s56 offen"); yield

    def k2_prefetch1():
        e("s_mul_i32 s56, s51, 448")
        e("s_lshl_b32 s57, s48, 6")
        e("s_add_u32 s56, s56, s57")
        e("s_mul_i32 s57, s51, 112")
        e("s_cmp_eq_u32 s48, 7")
        e("s_cselect_b32 s56, s57, s56")
        e("s_cselect_b64 s[58:59], s[88:89], s[86:87]")
        e("v_add_u32 v221, s56, v0")
        e("v_lshlrev_b32 v221, 7, v221")
        e("global_load_dword v222, v221, s[58:59]")
    def k2_prefetch2():
        lab = e.label("K1_PF2")
        e("s_cmp_ge_u32 s48, 3")
        e(f"s_cbranch_scc1 {lab}")
        e.cond_begin()
        e("s_cmp_eq_u32 s48, 0")
        e("s_cselect_b64 s[58:59], s[88:89], s[90:91]")
        e("s_mul_i32 s56, s51, 112")
        e("s_cmp_eq_u32 s48, 1")
        e("s_cselect_b32 s57, 0, 64")
        e("s_add_u32 s56, s56, s57")
        e("v_add_u32 v221, s56, v0")
        e("v_min_u32 v221, 3135, v221")
        e("v_lshlrev_b32 v221, 7, v221")
        e("global_load_dword v223, v221, s[58:59]")
        e.cond_end()
        e.raw(f"{lab}:")
    EL = 160
    def e_issue_raw(done_label):
        e("v_and_b32 v220, 15, v0")
        e("v_add_u32 v220, s78, v220")
        e("v_lshlrev_b32 v220, 4, v220")
        e(f"s_mov_b32 s63, {WS_E}")
        for ip in range(15):
            e(f"s_cmp_le_u32 s52, {ip}")
            e(f"s_cbranch_scc1 {done_label}")
            e(f"buffer_load_dwordx4 v[{EL+4*ip}:{EL+4*ip+3}], v220, s[32:35], s63 offen sc1")
            if ip < 14: e(f"s_add_u32 s63, s63, {448*16}")
    def e_issue():
        lab = e.label("K1_EI")
        e.cond_begin(); e_issue_raw(lab); e.cond_end()
        e.raw(f"{lab}:")
    def e_check(nafter):
        ok = e.label("K1_EOK"); chk = e.label("K1_ECK"); l2 = e.label("K1_EI2"); l3 = e.label("K1_EC2")
        e.raw(f"s_waitcnt vmcnt({nafter})")
        e("s_mov_b32 s61, 0")
        e.raw(f"{chk}:")
        e("v_mov_b32 v44, 0")
        for ip in range(15):
            e(f"s_cmp_le_u32 s52, {ip}")
            e(f"s_cbranch_scc1 {l3}")
            e(f"v_xor_b32 v45, s98, v{EL+4*ip+1}")
            e(f"v_xor_b32 v43, s98, v{EL+4*ip+3}")
            e("v_or3_b32 v44, v44, v45, v43")
        e.raw(f"{l3}:")
        e("v_cmp_ne_u32 vcc, 0, v44")
        e("s_cmp_eq_u64 vcc, 0")
        e(f"s_cbranch_scc1 {ok}")
        e("s_add_u32 s61, s61, 1")
        e("s_cmp_ge_u32 s61, 100000")
        e(f"s_cbranch_scc1 {ok}")
        e("s_sleep 2")
        e.cond_begin(); e_issue_raw(l2); e.cond_end()
        e.raw(f"{l2}:")
        e.raw("s_waitcnt vmcnt(0)")
        e(f"s_branch {chk}")
        e.raw(f"{ok}:")
    def carry_and_pass2():
        lab0 = e.label("K1_NOCARRY")
        e("v_mov_b32 v44, 0"); e("v_mov_b32 v45, 0")
        for ip in range(15):
            e(f"s_cmp_le_u32 s52, {ip}")
            e(f"s_cbranch_scc1 {lab0}")
            for _ in cfma(e, 44, 45, L128R, L128I, EL+4*ip, EL+4*ip+2, 40): pass
        e.raw(f"{lab0}:")
        e(f"v_fma_f32 v{PR}, v{TR}, v44, v{PR}")
        e(f"v_fma_f32 v{PI}, v{TR}, v45, v{PI}")
        e(f"v_fma_f32 v{PR}, -v{TI}, v45, v{PR}")
        e(f"v_fma_f32 v{PI}, v{TI}, v44, v{PI}")
        pr_, pi_ = PR, PI
        for i in range(8):
            zr, zi = AZ + i, AZ + 8 + i
            e(f"v_fma_f32 v{zr}, v{LR}, v{pr_}, v{zr}")
            e(f"v_fma_f32 v{zi}, v{LR}, v{pi_}, v{zi}")
            e(f"v_fma_f32 v{zr}, -v{LI}, v{pi_}, v{zr}")
            e(f"v_fma_f32 v{zi}, v{LI}, v{pr_}, v{zi}")
            pr_, pi_ = zr, zi
        for p in range(4):
            e(f"v_cvt_pk_bf16_f32 v{36+p}, v{AZ+2*p}, v{AZ+2*p+1}")
            e(f"v_cvt_pk_bf16_f32 v{40+p}, -v{AZ+8+2*p}, -v{AZ+8+2*p+1}")
        e("ds_write_b128 v1, v[36:39]")
        e("ds_write_b128 v1, v[40:43] offset:1024")
        e.wait_all(vm=False)
        tk = [e("ds_read_b64_tr_b16 v[36:37], v2"), e("ds_read_b64_tr_b16 v[38:39], v2 offset:256"),
              e("ds_read_b64_tr_b16 v[40:41], v2 offset:1024"), e("ds_read_b64_tr_b16 v[42:43], v2 offset:1280")]
        e.wait(tk)
        e("buffer_store_dwordx4 v[36:39], v3, s[32:35], s76 offen")
        e("s_add_u32 s76, s76, 4096")
        e("buffer_store_dwordx4 v[40:43], v3, s[32:35], s76 offen")
    def tail_addr():
        e("s_lshl_b32 s56, s48, 11")
        e(f"s_add_u32 s56, s56, {M_TR}")
        e("v_and_b32 v1, 15, v0"); yield
        e("v_lshlrev_b32 v1, 6, v1"); yield
        e("v_lshrrev_b32 v2, 4, v0"); yield
        e("v_lshl_add_u32 v1, v2, 4, v1"); yield
        e("v_add_u32 v1, s56, v1"); yield
        e("v_lshrrev_b32 v2, 5, v0"); yield
        e("v_bfe_u32 v3, v0, 2, 2"); yield
        e("v_lshl_add_u32 v2, v2, 3, v3"); yield
        e("v_lshlrev_b32 v2, 6, v2"); yield
        e("v_bfe_u32 v3, v0, 4, 1"); yield
        e("v_lshl_add_u32 v2, v3, 5, v2"); yield
        e("v_and_b32 v3, 3, v0"); yield
        e("v_lshl_add_u32 v2, v3, 3, v2"); yield
        e("v_add_u32 v2, s56, v2"); yield
        e("v_lshlrev_b32 v3, 4, v0"); yield
        e("s_lshl_b32 s56, s53, 1")
        e("s_add_u32 s56, s56, s55")
        e("s_lshr_b32 s57, s56, 2")
        e("s_lshl_b32 s57, s57, 3")
        e("s_and_b32 s56, s56, 3")
        e("s_add_u32 s56, s56, s57")
        e("s_lshl_b32 s57, s52, 2")
        e("s_add_u32 s57, s57, s54")
        e("s_mul_i32 s57, s57, 56")
        e("s_add_u32 s56, s56, s57")
        e("s_lshl_b32 s56, s56, 10")
        e(f"s_add_u32 s76, s56, {WS_hF}")
        yield

    def cost(i):
        if i.cls == "valu": return 2.0 if i.op in TRANS else 1.0
        if i.cls in ("ds", "vmem"): return 0.5
        return 0.1
    class Fill:
        def __init__(self): self.q = []; self.cur = None; self.barrier_at = None
        def add(self, *items): self.q += list(items)
        def run(self, budget, tick):
            spent = 0.0
            while spent < budget:
                if self.cur is None:
                    if not self.q: return
                    it = self.q[0]
                    if it == "barrier":
                        if self.barrier_at is None: self.barrier_at = tick
                        if tick <= self.barrier_at: return
                        self.barrier_at = None; self.q.pop(0); continue
                    self.q.pop(0); self.cur = it() if callable(it) else it
                n0 = len(e.ins)
                try: next(self.cur)
                except StopIteration: self.cur = None
                spent += sum(cost(i) for i in e.ins[n0:])
        def flush(self):
            while self.cur is not None or self.q:
                if self.cur is None:
                    it = self.q.pop(0)
                    if it == "barrier":
                        e.wait_all(vm=False); e("s_barrier"); self.barrier_at = None
                        continue
                    self.cur = it() if callable(it) else it
                for _ in self.cur: pass
                self.cur = None
    F = Fill()
    F.add(params)
    slot = {"A": 0, "B": 0}
    last = None
    for (ph, ks, si, did) in main_stream():
        if (ph, ks) != last and (ph, ks) in STAMPS: pr.stamp()
        last = (ph, ks)
        n = slot[ph]; slot[ph] += 1
        tk = tick_idx(ph, ks)
        if NOEPI:
            if ph == "A" and not did: F.run(BUDGET_A, tk)
            continue
        if ph == "A":
            if n == PUB_SLOT: F.flush(); rowbatch_publish()
            if n == AUX_LOAD: F.flush(); F.add(aux1_issue)
            if n == AUX_FIN: F.flush(); F.add(aux1_finish)
            if not did: F.run(BUDGET_A, tk)
        else:
            if n == 0:
                F.flush()
                F.add(z_pass1, hier1, "barrier", hier2, zscale, aux2_finish,
                      lambda: cs_reads(0, 128), lambda: cs_reads(1, 144), lambda: gu_epi(0, 128),
                      lambda: cs_reads(2, 128), lambda: gu_epi(1, 144), lambda: cs_reads(3, 144), tail_addr)
            if n == AUX2_SLOT: drain(aux2_issue())
            if n == E_SLOT: e_issue(); aux["e_vm"] = e.vm_issued
            if n == PF_SLOT and PF_SLOT >= 0: k2_prefetch1()
            if n == PF_SLOT + PF_GAP and PF_SLOT >= 0: k2_prefetch2()
            if not did: F.run(BUDGET_B0 if n < 30 else BUDGET_B, tk)
    if NOEPI:
        pr.dump(32, 48)
        e.raw("K1_END:")
        e("s_endpgm")
        gen_helper(e)
        return 256
    F.flush()
    pr.stamp()
    drain(gu_epi(2, 128))
    drain(gu_epi(3, 144))
    pr.stamp()
    e_check(e.vm_issued - aux["e_vm"])
    carry_and_pass2()
    pr.stamp()
    if G.PROFILE: e("s_waitcnt vmcnt(0)")
    pr.stamp()
    pr.dump(32, 48)
    e.raw("K1_END:")
    e("s_endpgm")
    gen_helper(e)
    return 256
```

```python
import sys, os
sys.path.insert(0, "dev")
from asmlib import *
import gen as G
from gen import *
from collections import deque

def cmul(e, dr, di, ar, ai, br, bi, t):
    e(f"v_mul_f32 v{t}, v{ai}, v{bi}"); yield
    e(f"v_mul_f32 v{t+1}, v{ai}, v{br}"); yield
    e(f"v_fma_f32 v{t}, v{ar}, v{br}, -v{t}"); yield
    e(f"v_fma_f32 v{di}, v{ar}, v{bi}, v{t+1}"); yield
    e(f"v_mov_b32 v{dr}, v{t}"); yield
def csq(e, dr, di, ar, ai, t):
    e(f"v_mul_f32 v{t}, v{ai}, v{ai}"); yield
    e(f"v_mul_f32 v{t+1}, v{ar}, v{ai}"); yield
    e(f"v_fma_f32 v{dr}, v{ar}, v{ar}, -v{t}"); yield
    e(f"v_add_f32 v{di}, v{t+1}, v{t+1}"); yield
def cfma(e, hr, hi, lr, li, br, bi, t):
    e(f"v_fma_f32 v{t}, v{lr}, v{hr}, v{br}"); yield
    e(f"v_fma_f32 v{t+1}, v{lr}, v{hi}, v{bi}"); yield
    e(f"v_fma_f32 v{t}, -v{li}, v{hi}, v{t}"); yield
    e(f"v_fma_f32 v{hi}, v{li}, v{hr}, v{t+1}"); yield
    e(f"v_mov_b32 v{hr}, v{t}"); yield
def cfma_to(e, dr, di, hr, hi, lr, li, br, bi):
    e(f"v_fma_f32 v{dr}, v{lr}, v{hr}, v{br}"); yield
    e(f"v_fma_f32 v{di}, v{lr}, v{hi}, v{bi}"); yield
    e(f"v_fma_f32 v{dr}, -v{li}, v{hi}, v{dr}"); yield
    e(f"v_fma_f32 v{di}, v{li}, v{hr}, v{di}"); yield

def gen_helper(e):
    e.raw("K1_HELPER:")
    e.lg_issued = e.lg_done = 0; e.vm_issued = e.vm_done = 0
    e("s_cmp_ge_u32 s2, 28")
    e("s_cbranch_scc1 K1_END")
    srd(e, 32, 18, WS_END if not G.PROFILE else (16 << 20))
    pr = G.Prof(e, 0); pr.stamp()
    srd(e, 36, 16, 256)
    e("s_cmp_ge_u32 s2, 14")
    e("s_cselect_b32 s28, s14, s12")
    e("s_cselect_b32 s29, s15, s13")
    e("s_cselect_b32 s54, 14, 0")
    e("s_cselect_b32 s56, 1792, 0")
    e("s_and_b32 s29, s29, 0xffff")
    e("s_sub_u32 s54, s2, s54")
    e(f"s_mov_b32 s30, {448*1792*2}")
    e("s_mov_b32 s31, 0x20000")
    e("v_lshrrev_b32 v4, 4, v0")
    e("s_movk_i32 s50, 3584")
    e("v_mul_lo_u32 v4, s50, v4")
    e("v_and_b32 v5, 15, v0")
    e("v_lshl_add_u32 v4, v5, 4, v4")
    e(f"s_mul_i32 s55, s48, {56*3584}")
    e("s_lshl_b32 s57, s54, 8")
    e("s_add_u32 s55, s55, s57")
    nonce_cas(e, 12)
    WL = 72
    U = 128
    wt = []
    for n in range(14):
        e(f"s_add_u32 s57, s55, {n*4*3584}")
        wt.append(e(f"buffer_load_dwordx4 v[{WL+4*n}:{WL+4*n+3}], v4, s[28:31], s57 offen"))
    A = 16
    for n in range(14):
        e.wait(wt[n])
        if n == 0:
            pr.stamp()
            nonce_publish(e, 12, 32768)
        for d in range(4):
            src = WL + 4*n + d
            if n == 0:
                e(f"v_lshlrev_b32 v{A+2*d}, 16, v{src}")
                e(f"v_and_b32 v{A+2*d+1}, 0xffff0000, v{src}")
            else:
                e(f"v_lshlrev_b32 v6, 16, v{src}")
                e(f"v_and_b32 v7, 0xffff0000, v{src}")
                e(f"v_add_f32 v{A+2*d}, v{A+2*d}, v6")
                e(f"v_add_f32 v{A+2*d+1}, v{A+2*d+1}, v7")
    pr.stamp()
    e("v_lshrrev_b32 v6, 4, v0")
    e("s_lshl_b32 s57, s48, 2")
    e("v_add_u32 v6, s57, v6")
    e("v_lshlrev_b32 v6, 9, v6")
    e("v_lshl_add_u32 v6, v5, 5, v6")
    e(f"ds_write_b128 v6, v[{A}:{A+3}]")
    e(f"ds_write_b128 v6, v[{A+4}:{A+7}] offset:16")
    e.wait_all(vm=False)
    e("s_barrier")
    e("s_cmp_ge_u32 s48, 2")
    e("s_cbranch_scc1 K1_END")
    nonce_read(e, 13, 32768)
    e("s_lshl_b32 s57, s48, 6")
    e("v_add_u32 v6, s57, v0")
    e("v_lshlrev_b32 v7, 2, v6")
    for p in range(32): e(f"ds_read_b32 v{U+p}, v7 offset:{p*512}")
    e.wait_all(vm=False)
    for st in (16, 8, 4, 2, 1):
        for p in range(st): e(f"v_add_f32 v{U+p}, v{U+p}, v{U+p+st}")
    e("s_lshl_b32 s57, s54, 7")
    e("s_add_u32 s57, s57, s56")
    e("v_add_u32 v6, s57, v6")
    e("v_lshlrev_b32 v6, 3, v6")
    e(f"v_add_u32 v6, {WS_CSW}, v6")
    e(f"v_mov_b32 v{U+1}, s98")
    e(f"buffer_store_dwordx2 v[{U}:{U+1}], v6, s[32:35], 0 offen sc1")
    pr.stamp()
    pr.dump(32, 48)
    e("s_endpgm")

def nonce_cas(e, v):
    lab = e.label("K1_NC")
    e("s_cmp_lg_u32 s48, 0")
    e(f"s_cbranch_scc1 {lab}")
    e.cond_begin()
    e.raw("s_memrealtime s[100:101]")
    e.raw("s_waitcnt lgkmcnt(0)")
    e("s_or_b32 s99, s100, 1")
    e(f"v_mov_b32 v{v}, s99")
    e(f"v_mov_b32 v{v+1}, 0")
    e(f"v_mov_b32 v{v+2}, 0")
    e("s_mov_b64 s[58:59], exec")
    e("s_mov_b64 exec, 1")
    e(f"buffer_atomic_cmpswap v[{v}:{v+1}], v{v+2}, s[36:39], 0 offen sc0")
    e("s_mov_b64 exec, s[58:59]")
    e.cond_end()
    e.raw(f"{lab}:")
def nonce_publish(e, v, lds):
    lab = e.label("K1_NP")
    e("s_cmp_lg_u32 s48, 0")
    e(f"s_cbranch_scc1 {lab}")
    e.cond_begin()
    e(f"v_readfirstlane_b32 s100, v{v}")
    e("s_cmp_eq_u32 s100, 0")
    e("s_cselect_b32 s100, s99, s100")
    e(f"v_mov_b32 v{v}, s100")
    e(f"v_mov_b32 v{v+1}, {lds}")
    e(f"ds_write_b32 v{v+1}, v{v}")
    e.raw("s_waitcnt lgkmcnt(0)")
    e.cond_end()
    e.raw(f"{lab}:")
def nonce_read(e, v, lds):
    e(f"v_mov_b32 v{v}, {lds}")
    t = e(f"ds_read_b32 v{v}, v{v}")
    e.wait(t)
    e(f"v_readfirstlane_b32 s98, v{v}")

def tagged_retry(e, issue, check, name, maxit=100000):
    ok = e.label(name + "_OK"); top = e.label(name + "_RT")
    check()
    e(f"s_cbranch_scc1 {ok}")
    e.cond_begin()
    e("s_mov_b32 s61, 0")
    e.raw(f"{top}:")
    e("s_sleep 2")
    issue()
    e.raw("s_waitcnt vmcnt(0)")
    check()
    e(f"s_cbranch_scc1 {ok}")
    e("s_add_u32 s61, s61, 1")
    e(f"s_cmp_lt_u32 s61, {maxit}")
    e(f"s_cbranch_scc1 {top}")
    e.cond_end()
    e.raw(f"{ok}:")
```

```python
import sys
sys.path.insert(0, "dev")
from asmlib import *

NAME = "recurrent_scan__ssm_conv_s5__glu_gated_glu__prompt"
WS_HF   = 0
WS_hF   = 64*112*1024
WS_STAT = WS_hF + 64*56*1024
WS_CSW  = WS_STAT + 2048*16
WS_CSB  = WS_CSW + 3584*8
WS_E    = WS_CSB + 896*8
WS_END  = WS_E + 16*448*16
LOG2E = 1.4426950408889634
import struct
def f32(x): return "0x%08x" % struct.unpack("<I", struct.pack("<f", x))[0]

def srd(e, s, ptr, nbytes):
    e(f"s_mov_b32 s{s}, s{ptr}")
    e(f"s_and_b32 s{s+1}, s{ptr+1}, 0xffff")
    e(f"s_mov_b32 s{s+2}, {nbytes}")
    e(f"s_mov_b32 s{s+3}, 0x20000")

def bf16_round_pair(e, dst_lo, dst_hi, a, b, tmp):
    e(f"v_cvt_pk_bf16_f32 v{tmp}, v{a}, v{b}")
    yield
    e(f"v_lshlrev_b32 v{dst_lo}, 16, v{tmp}")
    yield
    e(f"v_and_b32 v{dst_hi}, 0xffff0000, v{tmp}")
    yield

PROFILE = False
WS_PROF = 12 << 20
class Prof:
    def __init__(self, e, kern): self.e = e; self.k = kern; self.n = 0
    def stamp(self):
        if not PROFILE: return
        e = self.e
        import os
        e.raw("s_memtime s[96:97]" if os.environ.get("CLK") == "cyc" else "s_memrealtime s[96:97]")
        e.raw("s_waitcnt lgkmcnt(0)"); e.lg_done = e.lg_issued
        e.raw(f"s_mov_b32 s{80+self.n}, s96"); self.n += 1
        assert self.n <= (6 if self.k == 0 else 12)
    def dump(self, srd_ws, wave_s):
        if not PROFILE: return
        e = self.e
        e(f"s_lshl_b32 s96, s2, 3"); e(f"s_add_u32 s96, s96, s{wave_s}"); e("s_lshl_b32 s96, s96, 6")
        e(f"s_add_u32 s96, s96, {WS_PROF + self.k*256*8*64}")
        for i in range(16):
            e(f"v_mov_b32 v{200+i}, s{80+i}" if i < self.n else f"v_mov_b32 v{200+i}, 0")
        e("v_mov_b32 v216, 0")
        e("s_mov_b64 exec, 1")
        for q in range(4):
            e(f"buffer_store_dwordx4 v[{200+4*q}:{203+4*q}], v216, s[{srd_ws}:{srd_ws+3}], s96 offen offset:{16*q}")
        e("s_waitcnt vmcnt(0)")

def pull(gen, n):
    if gen is None: return None
    for _ in range(n):
        try: next(gen)
        except StopIteration: return None
    return gen
def drain(gen):
    if gen is None: return
    for _ in gen: pass

K2_R = 9
K2_STAGE = 16384
def gen_k2(e):
    e.raw("k2_kernel:")
    e("s_cmp_ge_u32 s2, 224")
    e("s_cbranch_scc1 K2_END")
    e("s_load_dwordx2 s[4:5], s[0:1], 0")
    e("s_load_dwordx2 s[6:7], s[0:1], 40")
    e("s_load_dwordx2 s[8:9], s[0:1], 48")
    e("s_load_dwordx2 s[10:11], s[0:1], 64")
    e("s_load_dwordx2 s[12:13], s[0:1], 96")
    e("s_load_dwordx2 s[14:15], s[0:1], 104")
    t = e("s_load_dwordx2 s[16:17], s[0:1], 120")
    e("v_lshrrev_b32 v1, 6, v0")
    e("v_and_b32 v0, 63, v0")
    e("v_readfirstlane_b32 s48, v1")
    e("s_and_b32 s49, s2, 7")
    e("s_lshl_b32 s49, s49, 2")
    e("s_lshr_b32 s50, s2, 3")
    e("s_and_b32 s51, s50, 3")
    e("s_add_u32 s49, s49, s51")
    e("s_lshr_b32 s50, s50, 2")
    e.wait(t)
    srd(e, 20, 4, 2048*448*2)
    srd(e, 24, 6, 448*448*2)
    srd(e, 28, 8, 448*448*2)
    srd(e, 32, 10, 448*2)
    srd(e, 36, 12, 1792*448*2)
    srd(e, 40, 14, 2048*448*4)
    srd(e, 44, 16, WS_END if not PROFILE else (16 << 20))
    pr = Prof(e, 1); pr.stamp()
    e("s_cmp_ge_u32 s48, 4")
    e("s_cbranch_scc1 K2_LOADER")
    e("s_and_b32 s52, s48, 1")
    e("s_lshr_b32 s53, s48, 1")
    e("v_and_b32 v1, 31, v0")
    e("v_lshrrev_b32 v2, 5, v0")
    e("v_and_b32 v3, 15, v0")
    e("v_lshrrev_b32 v4, 4, v0")
    e("s_lshl_b32 s54, s49, 6")
    e("s_lshl_b32 s55, s52, 5")
    e("s_add_u32 s54, s54, s55")
    e("v_add_u32 v5, s54, v1")
    e("s_lshl_b32 s55, s50, 6")
    e("s_lshl_b32 s56, s53, 5")
    e("s_add_u32 s55, s55, s56")
    e("v_lshlrev_b32 v6, 2, v2")
    e("v_add_u32 v6, s55, v6")
    e("s_movk_i32 s57, 896")
    e("v_mul_lo_u32 v7, s57, v5")
    e("v_lshlrev_b32 v8, 1, v6")
    e("v_add_u32 v7, v7, v8")
    e("v_lshlrev_b32 v9, 4, v5")
    e(f"v_add_u32 v9, {WS_STAT}, v9")
    e("v_lshlrev_b32 v10, 1, v7")
    XR, DK, ST = 16, 24, 192
    toks = []
    for a in range(4): toks.append(e(f"buffer_load_dwordx2 v[{XR+2*a}:{XR+2*a+1}], v7, s[20:23], 0 offen offset:{16*a}"))
    for a in range(4): toks.append(e(f"buffer_load_dwordx2 v[{DK+2*a}:{DK+2*a+1}], v8, s[32:35], 0 offen offset:{16*a}"))
    toks.append(e(f"buffer_load_dwordx4 v[{ST}:{ST+3}], v9, s[44:47], 0 offen"))
    epi_toks = toks
    e("s_lshl_b32 s57, s52, 12")
    e("v_lshlrev_b32 v11, 4, v0")
    e("v_add_u32 v11, s57, v11")
    e("v_lshrrev_b32 v13, 2, v3")
    e("v_lshl_add_u32 v13, v2, 2, v13")
    e("v_lshlrev_b32 v12, 7, v13")
    e("v_and_b32 v13, 1, v4")
    e("s_lshl_b32 s57, s53, 1")
    e("v_add_u32 v13, s57, v13")
    e("v_lshrrev_b32 v14, 3, v3")
    e("v_lshlrev_b32 v14, 1, v14")
    e("v_xor_b32 v13, v13, v14")
    e("v_lshl_add_u32 v12, v13, 5, v12")
    e("v_and_b32 v13, 3, v3")
    e("v_lshl_add_u32 v12, v13, 3, v12")
    e("v_add_u32 v12, 8192, v12")
    e("s_lshl_b32 s57, s53, 5")
    e("v_add_u32 v13, s57, v1")
    e("v_lshlrev_b32 v13, 7, v13")
    e("v_lshrrev_b32 v14, 1, v1")
    e("v_and_b32 v14, 7, v14")
    e("v_xor_b32 v14, v14, v2")
    e("v_lshl_add_u32 v13, v14, 4, v13")
    e("v_add_u32 v13, 8192, v13")
    PH, PW, PC = 11, 12, 13
    TH, TW = 14, 15
    ACCO, ACCY = 64, 80
    FR = 96
    XF, SK, G = 34, 160, 176
    T0 = 50
    def hfrag(set_, kk): return FR + set_*32 + kk*8
    def wfrag(set_, kk): return FR + set_*32 + kk*8 + 4

    def pre_epi():
        e.wait(epi_toks)
        yield
        e(f"v_rcp_f32 v{T0}, v{ST+2}")
        yield
        for p in range(8):
            xa, xb = XF+2*p, XF+2*p+1
            e(f"v_lshlrev_b32 v{xa}, 16, v{XR+p}"); yield
            e(f"v_and_b32 v{xb}, 0xffff0000, v{XR+p}"); yield
            e(f"v_sub_f32 v{T0+1}, v{xa}, v{ST}"); yield
            e(f"v_sub_f32 v{T0+2}, v{xb}, v{ST}"); yield
            yield from bf16_round_pair(e, T0+1, T0+2, T0+1, T0+2, T0+3)
            e(f"v_mul_f32 v{T0+1}, v{T0+1}, v{T0}"); yield
            e(f"v_mul_f32 v{T0+2}, v{T0+2}, v{T0}"); yield
            yield from bf16_round_pair(e, T0+1, T0+2, T0+1, T0+2, T0+3)
            e(f"v_lshlrev_b32 v{T0+4}, 16, v{DK+p}"); yield
            e(f"v_and_b32 v{T0+5}, 0xffff0000, v{DK+p}"); yield
            e(f"v_mul_f32 v{T0+1}, v{T0+1}, v{T0+4}"); yield
            e(f"v_mul_f32 v{T0+2}, v{T0+2}, v{T0+5}"); yield
            yield from bf16_round_pair(e, SK+2*p, SK+2*p+1, T0+1, T0+2, T0+3)
    def silu_epi():
        for p in range(8):
            a, b = T0+1, T0+2
            yield from bf16_round_pair(e, a, b, ACCO+2*p, ACCO+2*p+1, T0+3)
            e(f"v_mul_f32 v{T0+4}, {f32(-LOG2E)}, v{a}"); yield
            e(f"v_mul_f32 v{T0+5}, {f32(-LOG2E)}, v{b}"); yield
            e(f"v_exp_f32 v{T0+4}, v{T0+4}"); yield
            e(f"v_exp_f32 v{T0+5}, v{T0+5}"); yield
            e(f"v_add_f32 v{T0+4}, 1.0, v{T0+4}"); yield
            e(f"v_add_f32 v{T0+5}, 1.0, v{T0+5}"); yield
            e(f"v_rcp_f32 v{T0+4}, v{T0+4}"); yield
            e(f"v_rcp_f32 v{T0+5}, v{T0+5}"); yield
            e(f"v_mul_f32 v{a}, v{a}, v{T0+4}"); yield
            e(f"v_mul_f32 v{b}, v{b}, v{T0+5}"); yield
            yield from bf16_round_pair(e, G+2*p, G+2*p+1, a, b, T0+3)

    NST = 42
    fill = pre_epi()
    first = {ACCO: True, ACCY: True}
    def mfmas(t):
        acc = ACCO if t < 28 else ACCY
        for kk in range(4):
            c = "0" if first[acc] else f"v[{acc}:{acc+15}]"
            first[acc] = False
            e(f"v_mfma_f32_32x32x16_bf16 v[{acc}:{acc+15}], v[{wfrag(t&1,kk)}:{wfrag(t&1,kk)+3}], v[{hfrag(t&1,kk)}:{hfrag(t&1,kk)+3}], {c}")
            yield
    for t in range(NST + 1):
        if t < NST:
            e("s_barrier")
            if t in (0, 1, 8, 16, 28, 41): pr.stamp()
            base = (t % K2_R) * K2_STAGE
            e(f"v_add_u32 v{TH}, {base}, v{PH}")
            if t < 28: e(f"v_add_u32 v{TW}, {base}, v{PW}")
            else:      e(f"v_add_u32 v{TW}, {base}, v{PC}")
        mf = mfmas(t-1) if t >= 1 else None
        for kk in range(4):
            if t < NST:
                e(f"ds_read_b128 v[{hfrag(t&1,kk)}:{hfrag(t&1,kk)+3}], v{TH} offset:{kk*1024}")
                w = wfrag(t&1,kk)
                if t < 28:
                    e(f"ds_read_b64_tr_b16 v[{w}:{w+1}], v{TW} offset:{kk*2048}")
                    e(f"ds_read_b64_tr_b16 v[{w+2}:{w+3}], v{TW} offset:{kk*2048+1024}")
                else:
                    if kk == 0: e(f"ds_read_b128 v[{w}:{w+3}], v{TW}")
                    else:
                        e(f"v_xor_b32 v{T0+8}, {kk<<5}, v{TW}")
                        e(f"ds_read_b128 v[{w}:{w+3}], v{T0+8}")
            if mf is not None: mf = pull(mf, 1)
            fill = pull(fill, 6)
        if t == 29:
            drain(fill); fill = silu_epi()
        if t < NST: e.wait_all(vm=False, lg=True)
    drain(fill)
    for i in range(16):
        e(f"v_add_f32 v{SK+i}, v{ACCY+i}, v{SK+i}")
    for i in range(16):
        e(f"v_fma_f32 v{SK+i}, v{SK+i}, v{G+i}, v{XF+i}")
    for a in range(4):
        e(f"buffer_store_dwordx4 v[{SK+4*a}:{SK+4*a+3}], v10, s[40:43], 0 offen offset:{32*a}")
    pr.stamp()
    if PROFILE: e("s_waitcnt vmcnt(0)")
    pr.stamp()
    pr.dump(44, 48)
    e("s_endpgm")
    e2 = e
    e.raw("K2_LOADER:")
    e.lg_issued = e.lg_done = 0; e.vm_issued = e.vm_done = 0
    e("s_sub_u32 s52, s48, 4")
    e("s_and_b32 s53, s52, 1")
    e("s_lshr_b32 s54, s52, 1")
    e("v_lshlrev_b32 v1, 4, v0")
    e("v_lshrrev_b32 v2, 3, v0")
    e("s_lshl_b32 s55, s52, 4")
    e("v_add_u32 v2, s55, v2")
    e("s_movk_i32 s55, 896")
    e("v_mul_lo_u32 v2, s55, v2")
    e("v_and_b32 v3, 7, v0")
    e("v_lshrrev_b32 v4, 4, v0")
    e("v_and_b32 v5, 1, v4")
    e("v_lshlrev_b32 v5, 2, v5")
    e("v_xor_b32 v5, v5, v3")
    e("v_lshl_add_u32 v5, v5, 4, v2")
    e("v_xor_b32 v6, v4, v3")
    e("v_lshl_add_u32 v6, v6, 4, v2")
    e("v_add_u32 v7, 4, v4")
    e("v_xor_b32 v7, v7, v3")
    e("v_lshl_add_u32 v7, v7, 4, v2")
    e(f"v_add_u32 v7, {8*896}, v7")
    e("s_lshl_b32 s58, s49, 1")
    e("s_add_u32 s58, s58, s53")
    e("s_lshl_b32 s59, s54, 1")
    e("s_mul_i32 s56, s58, 112")
    e("s_add_u32 s56, s56, s59")
    e("s_lshl_b32 s56, s56, 10")
    if WS_HF: e(f"s_add_u32 s56, s56, {WS_HF}")
    e("s_mul_i32 s57, s58, 56")
    e("s_add_u32 s57, s57, s59")
    e("s_lshl_b32 s57, s57, 10")
    e(f"s_add_u32 s57, s57, {WS_hF}")
    e("s_lshl_b32 s60, s53, 2")
    e("s_add_u32 s60, s60, s59")
    e("s_lshl_b32 s60, s60, 10")
    e("s_lshl_b32 s61, s52, 11")
    e("s_add_u32 s61, s61, 8192")
    e("s_lshl_b32 s62, s50, 7")
    e(f"s_mul_i32 s63, s50, {64*896}")
    import os
    if os.environ.get("K2ROT", "1") == "1":
        e("s_and_b32 s67, s49, 3")
        e("s_mul_i32 s65, s67, 7")
        e("s_lshl_b32 s68, s50, 2")
        e("s_add_u32 s65, s65, s68")
        e("s_cmp_ge_u32 s65, 28")
        e("s_cselect_b32 s68, 28, 0")
        e("s_sub_u32 s65, s65, s68")
        e("s_lshl_b32 s66, s67, 1")
        e("s_add_u32 s66, s66, s50")
        e("s_cmp_ge_u32 s66, 7")
        e("s_cselect_b32 s68, 7, 0")
        e("s_sub_u32 s66, s66, s68")
    else:
        e("s_mov_b32 s65, 0"); e("s_mov_b32 s66, 0")
    stage_tok = {}
    def issue(t):
        base = (t % K2_R) * K2_STAGE
        if t < 28:
            e("s_lshl_b32 s69, s65, 12")
            e("s_add_u32 s69, s69, s56")
            e(f"s_mul_i32 s70, s65, {64*896}")
            e("s_add_u32 s70, s70, s62")
        else:
            u = t - 28; part = u & 1
            e("s_lshl_b32 s69, s66, 13")
            e("s_add_u32 s69, s69, s57")
            if part: e("s_add_u32 s69, s69, 4096")
            e("s_lshl_b32 s70, s66, 7")
            e("s_add_u32 s70, s70, s63")
        for a in range(2):
            if a: e("s_add_u32 s69, s69, 1024")
            e(f"s_add_u32 m0, s60, {base + a*1024}")
            e("buffer_load_dwordx4 v1, s[44:47], s69 offen lds")
        for a in range(2):
            e(f"s_add_u32 m0, s61, {base + a*1024}")
            if t < 28:
                if a: e("s_add_u32 s70, s70, 7168")
                tok = e("buffer_load_dwordx4 v5, s[36:39], s70 offen lds")
            else:
                tok = e(f"buffer_load_dwordx4 v{6+a}, s[{24+4*part}:{27+4*part}], s70 offen lds")
        stage_tok[t] = tok
        if t < 28:
            e("s_add_u32 s65, s65, 1"); e("s_cmp_eq_u32 s65, 28"); e("s_cselect_b32 s65, 0, s65")
        elif (t - 28) & 1:
            e("s_add_u32 s66, s66, 1"); e("s_cmp_eq_u32 s66, 7"); e("s_cselect_b32 s66, 0, s66")
    pr = Prof(e, 1); pr.n = 1
    PRO = int(os.environ.get("K2PRO", "2"))
    nxt = 0
    for t in range(PRO): issue(t); nxt += 1
    pr.stamp()
    for t in range(NST):
        e.wait(stage_tok[t])
        if t in (0, 1, 8, 16, 28, 41): pr.stamp()
        e("s_barrier")
        k = 0
        while nxt < NST and nxt <= t + K2_R - 1 and k < 2:
            issue(nxt); nxt += 1; k += 1
    pr.dump(44, 48)
    e.raw("K2_END:")
    e("s_endpgm")

def kd(name, vgpr, sgpr=102):
    acc = (vgpr + 3)//4*4
    return f""".amdhsa_kernel {name}
  .amdhsa_next_free_vgpr {vgpr}
  .amdhsa_next_free_sgpr {sgpr}
  .amdhsa_accum_offset {acc}
  .amdhsa_group_segment_fixed_size 0
  .amdhsa_kernarg_size 128
  .amdhsa_user_sgpr_count 2
  .amdhsa_user_sgpr_kernarg_segment_ptr 1
  .amdhsa_system_sgpr_workgroup_id_x 1
.end_amdhsa_kernel"""

def main():
    global PROFILE
    which = sys.argv[2] if len(sys.argv) > 2 else "k2"
    if len(sys.argv) > 3 and "prof" in sys.argv[3]: PROFILE = True
    hdr = open(f"cdna_kernels/{NAME}.s.ref").read().split("; Override launch")[0]
    out = [hdr.rstrip()]
    kernels = []
    if "k1" in which:
        out.append("; @launch kernel=k1_kernel grid=(256,1,1) block=(512,1,1) lds=163840")
    if "k2" in which:
        out.append(f"; @launch kernel=k2_kernel grid=(224,1,1) block=(512,1,1) lds={K2_R*K2_STAGE}")
    out.append('.amdgcn_target "amdgcn-amd-amdhsa--gfx950"\n.text')
    kds = []
    if "k1" in which:
        import gen_k1b as gen_k1
        gen_k1.G.PROFILE = PROFILE
        e = Emit(); vg = gen_k1.gen_k1(e)
        out.append(".globl k1_kernel\n.p2align 8\n.type k1_kernel,@function"); out.append(e.finish()); kds.append(kd("k1_kernel", vg))
    if "k2" in which:
        e = Emit(); gen_k2(e)
        out.append(".globl k2_kernel\n.p2align 8\n.type k2_kernel,@function"); out.append(e.finish()); kds.append(kd("k2_kernel", 200 if not PROFILE else 224))
    out.append('.section .rodata,"a"\n.p2align 6')
    out.append("\n.p2align 6\n".join(kds))
    open(sys.argv[1], "w").write("\n".join(out) + "\n")
if __name__ == "__main__": main()
```

```python
import sys, os
sys.path.insert(0, "dev")
from asmlib import *
import gen as G
from gen import *
from k1_common import *
from collections import deque

env = lambda k, d: type(d)(os.environ.get(k, d)) if not isinstance(d, bool) else os.environ.get(k, "1" if d else "0") == "1"
STAMPS = eval(os.environ.get("STAMPS", '[("A",0),("A",27),("B",0),("B",27)]'))
NOEPI = env("NOEPI", False); NODMA = env("NODMA", False)
PRO_DMAS = env("PRO_DMAS", 5); ROT = env("ROT", True)
PF_GAP = env("PF_GAP", 4); PF_SLOT = env("PF_SLOT", 49); AUX2_SLOT = env("AUX2_SLOT", 6); E_SLOT = env("E_SLOT", 48)
AUX2_FIN = env("AUX2_FIN", 26)
AUX_LOAD = env("AUX_LOAD", 50); AUX_FIN = env("AUX_FIN", 68); PUB_SLOT = env("PUB_SLOT", 11)
BUDGET_A = env("BUDGET_A", 4.0); BUDGET_B = env("BUDGET_B", 6.0); BUDGET_B0 = env("BUDGET_B0", 7.0)

DMAFLAG = os.environ.get("DMAFLAG", "")
if DMAFLAG: DMAFLAG = " " + DMAFLAG
TAILST = env("TAILST", True); PSTAMP = env("PSTAMP", False); DMA_HURRY = env("DMA_HURRY", 6); RB_LATE = env("RB_LATE", True); RB_SLOT = env("RB_SLOT", 7)
XR, ZR, WR = 0, 49152, 73728
MISC = 139264
M_ST = MISC; M_CS = MISC + 1024; M_SEG = MISC + 2048; M_N = MISC + 3072
M_SD = MISC + 3328; M_CB = MISC + 3840
M_PART = MISC + 3328
M_PB = MISC + 5376
M_TR = MISC + 6656
AX, AZr, AW0, AW1 = 1, 5, 9, 10
VX0, VX1, VZ, VW = 11, 12, 13, 14
LR, LI, CR, CI, L8R, L8I, L128R, L128I, TR, TI = 15, 16, 17, 18, 19, 20, 21, 22, 23, 24
M_, SD, NLR, CSR, CSI, PR, PI, ER, EI = 25, 26, 27, 28, 29, 30, 31, 32, 33
VH = 47
AZ = 48
AG = [64, 80, 96, 112]
XF = 128
FB = 240

def gen_k1(e, fused=False, kname="k1_kernel"):
    STF = " sc1" if fused else ""
    e.raw(f"{kname}:")
    e("s_cmp_ge_u32 s2, 256")
    e("s_cbranch_scc1 K1_END")
    e("s_load_dwordx2 s[4:5], s[0:1], 0")
    e("s_load_dwordx2 s[6:7], s[0:1], 8")
    e("s_load_dwordx2 s[8:9], s[0:1], 24")
    e("s_load_dwordx2 s[10:11], s[0:1], 32")
    e("s_load_dwordx2 s[12:13], s[0:1], 80")
    e("s_load_dwordx2 s[14:15], s[0:1], 88")
    e("s_load_dwordx2 s[16:17], s[0:1], 112")
    e("s_load_dwordx2 s[18:19], s[0:1], 120")
    e("s_load_dwordx2 s[62:63], s[0:1], 16")
    e("s_load_dwordx2 s[86:87], s[0:1], 96")
    e("s_load_dwordx2 s[88:89], s[0:1], 40")
    e("s_load_dwordx2 s[90:91], s[0:1], 48")
    t = e("s_load_dwordx2 s[64:65], s[0:1], 56")
    e("v_lshrrev_b32 v1, 6, v0")
    e("v_and_b32 v0, 63, v0")
    e("v_readfirstlane_b32 s48, v1")
    e("s_sub_u32 s49, s2, 32")
    e("s_and_b32 s50, s49, 7")
    e("s_lshr_b32 s51, s49, 3")
    e("s_and_b32 s52, s50, 3")
    e("s_lshl_b32 s52, s52, 2")
    e("s_and_b32 s53, s51, 3")
    e("s_add_u32 s52, s52, s53")
    e("s_lshr_b32 s53, s50, 2")
    e("s_mul_i32 s53, s53, 7")
    e("s_lshr_b32 s54, s51, 2")
    e("s_add_u32 s53, s53, s54")
    e("s_and_b32 s54, s48, 3")
    e("s_lshr_b32 s55, s48, 2")
    e("v_lshrrev_b32 v40, 3, v0")
    e("v_and_b32 v41, 7, v0")
    e("v_lshrrev_b32 v42, 4, v0")
    e("s_movk_i32 s56, 896")
    e("s_lshl_b32 s57, s48, 4")
    e("v_add_u32 v43, s57, v40")
    e("v_mul_lo_u32 v43, s56, v43")
    e("v_xor_b32 v44, v41, v42")
    e(f"v_lshl_add_u32 v{VX0}, v44, 4, v43")
    e("v_add_u32 v44, 4, v42")
    e("v_xor_b32 v44, v41, v44")
    e(f"v_lshl_add_u32 v{VX1}, v44, 4, v43")
    e(f"v_add_u32 v{VX1}, {8*896}, v{VX1}")
    e("s_lshl_b32 s57, s54, 3")
    e("v_add_u32 v43, s57, v40")
    e("v_mul_lo_u32 v43, s56, v43")
    e("s_and_b32 s57, s48, 1")
    e("s_lshl_b32 s57, s57, 2")
    e("v_add_u32 v44, s57, v42")
    e("v_xor_b32 v44, v41, v44")
    e(f"v_lshl_add_u32 v{VZ}, v44, 4, v43")
    e("s_lshl_b32 s57, s54, 3")
    e("v_add_u32 v43, s57, v40")
    e("s_movk_i32 s56, 3584")
    e("v_mul_lo_u32 v43, s56, v43")
    e("v_and_b32 v44, 1, v42")
    e("s_lshl_b32 s57, s55, 1")
    e("v_add_u32 v44, s57, v44")
    e("v_lshlrev_b32 v44, 1, v44")
    e("v_xor_b32 v44, v41, v44")
    e(f"v_lshl_add_u32 v{VW}, v44, 4, v43")
    e(f"s_mul_i32 s66, s52, {128*896}")
    e(f"s_mul_i32 s67, s53, {32*896}")
    e("s_lshl_b32 s72, s53, 8")
    e("s_lshl_b32 s73, s48, 11")
    e("s_lshl_b32 s74, s48, 10")
    e(f"s_add_u32 s74, s74, {ZR}")
    e("s_lshl_b32 s75, s55, 13")
    e("s_lshl_b32 s76, s54, 10")
    e("s_add_u32 s75, s75, s76")
    e(f"s_add_u32 s75, s75, {WR}")
    e.wait(t)
    e("s_cmp_lt_u32 s2, 32")
    e("s_cbranch_scc1 K1_HELPER")
    srd(e, 20, 4, 2048*448*2)
    if ROT:
        e("s_and_b32 s56, s51, 3")
        e("s_lshl_b32 s56, s56, 1")
        e("s_lshr_b32 s57, s51, 2")
        e("s_add_u32 s56, s56, s57")
        e("s_cmp_ge_u32 s56, 7")
        e("s_cselect_b32 s57, 7, 0")
        e("s_sub_u32 s77, s56, s57")
    else:
        e("s_mov_b32 s77, 0")
    e("s_mov_b32 s76, s77")
    e("s_lshl_b32 s4, s76, 7")
    e("s_add_u32 s4, s4, s66")
    e("s_sub_u32 s67, s67, s66")
    ent_tok = {}
    dmaq = deque()
    def entry_dmas(kind, kc):
        def mk(a, last):
            def f():
                if NODMA:
                    if last: ent_tok[(kind, kc)] = None
                    return
                if kind == "X":
                    e(f"s_add_u32 m0, s73, {XR + (kc%3)*16384 + a*1024}")
                    tok = e(f"buffer_load_dwordx4 v{VX0+a}, s[20:23], s{4+kc} offen{DMAFLAG} lds")
                elif kind == "Z":
                    e(f"s_add_u32 m0, s74, {(kc%3)*8192}")
                    e(f"s_add_u32 s77, s67, s{4+kc}")
                    tok = e(f"buffer_load_dwordx4 v{VZ}, s[24:27], s77 offen{DMAFLAG} lds")
                else:
                    ch = kc % 7; colb = 0 if kc < 7 else 128
                    e(f"s_add_u32 m0, s75, {(kc%4)*16384 + a*4096}")
                    e(f"s_add_u32 s77, s{11+ch}, {32*a*3584 + colb}")
                    tok = e(f"buffer_load_dwordx4 v{VW}, s[28:31], s77 offen{DMAFLAG} lds")
                if last: ent_tok[(kind, kc)] = tok
            return f
        n = 1 if kind == "Z" else 2
        return [mk(a, a == n - 1) for a in range(n)]
    def queue(*ents):
        for (k, kc) in ents:
            for f in entry_dmas(k, kc): dmaq.append(f)
    queue(("X",0))
    for _ in range(2): dmaq.popleft()()
    e("s_cmp_eq_u32 s55, 0")
    e("s_cselect_b32 s24, s8, s10")
    e("s_cselect_b32 s25, s9, s11")
    e("s_cselect_b32 s28, s12, s14")
    e("s_cselect_b32 s29, s13, s15")
    e("s_and_b32 s25, s25, 0xffff")
    e(f"s_mov_b32 s26, {448*448*2}")
    e("s_mov_b32 s27, 0x20000")
    e("s_and_b32 s29, s29, 0xffff")
    e(f"s_mov_b32 s30, {448*1792*2}")
    e("s_mov_b32 s31, 0x20000")
    queue(("Z",0))
    dmaq.popleft()()
    srd(e, 40, 6, 896)
    srd(e, 44, 62, 896)
    srd(e, 68, 64, 896)
    srd(e, 32, 18, WS_END if not G.PROFILE else (16 << 20))
    srd(e, 36, 16, 256)
    e("s_mov_b32 s60, 0")
    e("s_cmp_lt_u32 s48, 2")
    e("s_cselect_b32 s61, 1, 0")
    e("s_cmp_lt_u32 s53, 8")
    e("s_cselect_b32 s60, s61, 0")
    e("s_cmp_eq_u32 s48, 2")
    e("s_cselect_b32 s61, 2, 0")
    e("s_cmp_lt_u32 s52, 8")
    e("s_cselect_b32 s61, s61, 0")
    e("s_or_b32 s60, s60, s61")
    e("s_lshl_b32 s56, s52, 7")
    e("s_lshl_b32 s57, s53, 4")
    e("s_add_u32 s56, s56, s57")
    e("s_lshl_b32 s57, s48, 3")
    e("s_add_u32 s56, s56, s57")
    e("s_lshl_b32 s57, s53, 5")
    e("s_and_b32 s58, s52, 3")
    e("s_lshl_b32 s58, s58, 3")
    e("s_add_u32 s57, s57, s58")
    e("s_cmp_eq_u32 s60, 2")
    e("s_cselect_b32 s59, s57, s56")
    e("s_cmp_ge_u32 s52, 4")
    e("s_cselect_b32 s92, s10, s8")
    e("s_cselect_b32 s93, s11, s9")
    e("s_cselect_b32 s62, 448, 0")
    e("s_cmp_eq_u32 s60, 2")
    e("s_cselect_b32 s92, s92, s20")
    e("s_cselect_b32 s93, s93, s21")
    e(f"s_mov_b32 s94, {2048*448*2}")
    e(f"s_cselect_b32 s94, {448*448*2}, s94")
    e("s_cselect_b32 s62, s62, 0")
    e("s_and_b32 s93, s93, 0xffff")
    e("s_mov_b32 s95, 0x20000")
    e("s_add_u32 s62, s62, s59")
    e("s_mul_i32 s63, s59, 896")
    e(f"s_mul_i32 s11, s76, {64*3584}")
    e("s_add_u32 s11, s11, s72")
    queue(("W",0))
    for _ in range(2): dmaq.popleft()()
    pr = G.Prof(e, 0); pr.stamp()
    e("v_and_b32 v40, 15, v0")
    e("s_lshl_b32 s56, s53, 5")
    e("s_lshl_b32 s57, s55, 4")
    e("s_add_u32 s78, s56, s57")
    e("v_add_u32 v41, s78, v40")
    e("v_lshlrev_b32 v42, 1, v41")
    tp = [e("buffer_load_ushort v43, v42, s[40:43], 0 offen"),
          e("buffer_load_ushort v44, v42, s[44:47], 0 offen"),
          e("buffer_load_ushort v45, v42, s[68:71], 0 offen")]
    e("v_lshrrev_b32 v34, 3, v0")
    e("v_and_b32 v35, 7, v0")
    e("v_mul_u32_u24 v36, 896, v34")
    e("v_lshl_add_u32 v36, v35, 4, v36")
    RB = 192
    labrb = e.label("K1_NORB")
    e("s_cmp_eq_u32 s60, 0")
    e(f"s_cbranch_scc1 {labrb}")
    e.cond_begin()
    for k in range(7): e(f"buffer_load_dwordx4 v[{RB+4*k}:{RB+4*k+3}], v36, s[92:95], s63 offen offset:{128*k}")
    e.cond_end()
    e.raw(f"{labrb}:")
    def rowbatch_compute():
        lab = e.label("K1_NORC")
        e("s_cmp_eq_u32 s60, 0")
        e(f"s_cbranch_scc1 {lab}")
        e.cond_begin()
        e.raw(f"s_waitcnt vmcnt({min(63, e.vm_issued - vm_at_rb)})")
        e("s_mov_b32 s58, 0x3f803f80")
        e("v_mov_b32 v220, 0"); e("v_mov_b32 v221, 0"); e("v_mov_b32 v222, 0"); e("v_mov_b32 v223, 0")
        for k in range(28):
            e(f"v_dot2c_f32_bf16 v{220 + (k&1)}, s58, v{RB+k}")
            e(f"v_dot2c_f32_bf16 v{222 + (k&1)}, v{RB+k}, v{RB+k}")
        e("s_nop 2")
        e("v_add_f32 v220, v220, v221")
        e("v_add_f32 v221, v222, v223")
        for r_ in (220, 221):
            e(f"v_add_f32_dpp v{r_}, v{r_}, v{r_} quad_perm:[1,0,3,2] row_mask:0xf bank_mask:0xf")
            e(f"v_add_f32_dpp v{r_}, v{r_}, v{r_} quad_perm:[2,3,0,1] row_mask:0xf bank_mask:0xf")
            e(f"v_add_f32_dpp v{r_}, v{r_}, v{r_} row_half_mirror row_mask:0xf bank_mask:0xf")
        e("v_mov_b32 v224, v220")
        e(f"v_mul_f32 v220, {f32(1.0/448)}, v220")
        e(f"v_mul_f32 v221, {f32(1.0/448)}, v221")
        e("v_fma_f32 v221, -v220, v220, v221")
        e("v_max_f32 v221, 0, v221")
        e("v_cvt_pk_bf16_f32 v220, v220, v221")
        e("v_and_b32 v221, 0xffff0000, v220")
        e("v_lshlrev_b32 v220, 16, v220")
        e(f"v_add_f32 v221, {f32(1e-5)}, v221")
        e("v_cvt_pk_bf16_f32 v221, v221, v221")
        e("v_lshlrev_b32 v221, 16, v221")
        e("v_sqrt_f32 v221, v221")
        e("v_cvt_pk_bf16_f32 v221, v221, v221")
        e("v_lshlrev_b32 v221, 16, v221")
        e.cond_end()
        e.raw(f"{lab}:")
    def rowbatch_publish():
        lab = e.label("K1_NORP"); labx = e.label("K1_RPX")
        e("s_cmp_eq_u32 s60, 0")
        e(f"s_cbranch_scc1 {lab}")
        e.cond_begin()
        e("v_lshrrev_b32 v226, 3, v0")
        e("v_add_u32 v226, s62, v226")
        e("v_and_b32 v227, 7, v0")
        e("v_cmp_eq_u32 vcc, 0, v227")
        e("s_and_saveexec_b64 s[58:59], vcc")
        e("s_cmp_eq_u32 s60, 1")
        e(f"s_cbranch_scc1 {labx}")
        e("v_lshlrev_b32 v226, 3, v226")
        e("v_mov_b32 v228, v224"); e("v_mov_b32 v229, s98")
        e(f"s_mov_b32 s61, {WS_CSB}")
        e("buffer_store_dwordx2 v[228:229], v226, s[32:35], s61 offen sc1")
        e("s_mov_b64 exec, s[58:59]")
        e(f"s_branch {lab}")
        e.raw(f"{labx}:")
        e("v_lshlrev_b32 v226, 4, v226")
        e("v_mov_b32 v228, v220"); e("v_mov_b32 v229, s98"); e("v_mov_b32 v230, v221"); e("v_mov_b32 v231, s98")
        e(f"s_mov_b32 s61, {WS_STAT}")
        e("buffer_store_dwordx4 v[228:231], v226, s[32:35], s61 offen sc1")
        e("s_mov_b64 exec, s[58:59]")
        e.cond_end()
        e.raw(f"{lab}:")
    RBWAIT = [0]
    vm_at_rb = e.vm_issued
    def rot_entry(t):
        e("s_add_u32 s76, s76, 1")
        e("s_cmp_eq_u32 s76, 7")
        e("s_cselect_b32 s76, 0, s76")
        e(f"s_lshl_b32 s{4+t}, s76, 7")
        e(f"s_mul_i32 s{11+t}, s76, {64*3584}")
        e(f"s_add_u32 s{4+t}, s{4+t}, s66")
        e(f"s_add_u32 s{11+t}, s{11+t}, s72")
    for t in range(1, 7): rot_entry(t)
    queue(("X",1),("Z",1),("W",1),("X",2),("Z",2),("W",2),("W",3))
    for _ in range(max(0, PRO_DMAS - 5)): dmaq.popleft()()
    if PSTAMP: pr.stamp()
    nonce_cas(e, 120)
    def issue_for_tick(tk):
        l = []
        if tk >= 1:
            if tk + 2 < 7: l += [("X", tk+2), ("Z", tk+2)]
            if tk + 3 < 14: l += [("W", tk+3)]
        return l

    e("v_and_b32 v34, 31, v0")
    e("v_lshrrev_b32 v35, 4, v34")
    e("v_bfe_u32 v36, v34, 2, 1")
    e("v_lshl_add_u32 v35, v36, 1, v35")
    e("v_bfe_u32 v36, v34, 3, 1")
    e("v_lshlrev_b32 v35, 3, v35")
    e("v_lshl_add_u32 v35, v36, 2, v35")
    e("v_and_b32 v36, 3, v34")
    e("v_add_u32 v35, v35, v36")
    e("v_lshrrev_b32 v36, 5, v0")
    e(f"v_lshl_add_u32 v{VH}, v36, 5, v35")
    e(f"v_lshlrev_b32 v{VH}, 4, v{VH}")
    e("s_lshl_b32 s56, s54, 5")
    e("v_add_u32 v37, s56, v35")
    e(f"v_lshlrev_b32 v{AX}, 7, v37")
    e("v_bfe_u32 v38, v35, 1, 3")
    e("v_xor_b32 v38, v38, v36")
    e(f"v_lshl_add_u32 v{AX}, v38, 4, v{AX}")
    for kk in range(1, 4): e(f"v_xor_b32 v{AX+kk}, {kk<<5}, v{AX}")
    e("v_bfe_u32 v38, v0, 4, 1")
    e(f"v_lshlrev_b32 v{AZr}, 12, v38")
    e("s_lshl_b32 s56, s55, 4")
    e("v_and_b32 v40, 15, v0")
    e("v_add_u32 v39, s56, v40")
    e(f"v_lshl_add_u32 v{AZr}, v39, 7, v{AZr}")
    e("v_bfe_u32 v39, v40, 1, 3")
    e("v_xor_b32 v39, v39, v36")
    e(f"v_lshl_add_u32 v{AZr}, v39, 4, v{AZr}")
    e(f"v_add_u32 v{AZr}, {ZR}, v{AZr}")
    for kk in range(1, 4): e(f"v_xor_b32 v{AZr+kk}, {kk<<5}, v{AZr}")
    e(f"v_lshlrev_b32 v{AW0}, 13, v38")
    e("v_lshrrev_b32 v39, 2, v40")
    e("v_lshl_add_u32 v39, v36, 3, v39")
    e(f"v_lshl_add_u32 v{AW0}, v39, 7, v{AW0}")
    e("v_lshrrev_b32 v39, 3, v40")
    e("v_lshl_add_u32 v39, v38, 1, v39")
    e("s_lshl_b32 s56, s55, 1")
    e("v_xor_b32 v39, s56, v39")
    e(f"v_lshl_add_u32 v{AW0}, v39, 5, v{AW0}")
    e("v_and_b32 v39, 3, v40")
    e(f"v_lshl_add_u32 v{AW0}, v39, 3, v{AW0}")
    e(f"v_add_u32 v{AW0}, {WR}, v{AW0}")
    e(f"v_xor_b32 v{AW1}, 32, v{AW0}")
    e("s_lshl_b32 s56, s52, 2")
    e("s_add_u32 s56, s56, s54")
    e("s_mul_i32 s56, s56, 112")
    e("s_lshl_b32 s57, s53, 3")
    e("s_add_u32 s56, s56, s57")
    e("s_lshl_b32 s57, s55, 1")
    e("s_add_u32 s56, s56, s57")
    e("s_lshl_b32 s79, s56, 10")
    if WS_HF: e(f"s_add_u32 s79, s79, {WS_HF}")

    def params():
        e.wait(tp); yield
        e("s_bitcmp1_b32 s54, 0"); e("s_cselect_b64 s[40:41], -1, 0")
        e("s_bitcmp1_b32 s54, 1"); e("s_cselect_b64 s[42:43], -1, 0")
        e("s_mov_b32 s44, 0xffff0000"); e("s_mov_b32 s45, 0xffff0000")
        e("s_mov_b32 s46, 0"); e("s_mov_b32 s47, -1")
        e("v_lshlrev_b32 v43, 16, v43"); yield
        e("v_lshlrev_b32 v44, 16, v44"); yield
        e("v_lshlrev_b32 v45, 16, v45"); yield
        e(f"v_mul_f32 v45, {f32(LOG2E)}, v45"); yield
        e("v_exp_f32 v45, v45"); yield
        e("v_cvt_pk_bf16_f32 v45, v45, v45"); yield
        e("v_lshlrev_b32 v45, 16, v45"); yield
        e("v_mul_f32 v34, v45, v43"); yield
        e("v_mul_f32 v35, v45, v44"); yield
        e(f"v_mul_f32 v34, {f32(LOG2E)}, v34"); yield
        e("v_exp_f32 v34, v34"); yield
        e(f"v_mul_f32 v35, {f32(1.0/(2*3.141592653589793))}, v35"); yield
        e("v_fract_f32 v35, v35"); yield
        e("v_cos_f32 v36, v35"); yield
        e("v_sin_f32 v37, v35"); yield
        e(f"v_mul_f32 v{LR}, v34, v36"); yield
        e(f"v_mul_f32 v{LI}, v34, v37"); yield
        e(f"v_add_f32 v36, -1.0, v{LR}"); yield
        e("v_mul_f32 v38, v43, v43"); yield
        e("v_fmac_f32 v38, v44, v44"); yield
        e("v_rcp_f32 v38, v38"); yield
        e("v_mul_f32 v39, v36, v43"); yield
        e(f"v_fmac_f32 v39, v{LI}, v44"); yield
        e(f"v_mul_f32 v34, v{LI}, v43"); yield
        e("v_fma_f32 v34, -v36, v44, v34"); yield
        e("v_add_f32 v38, v38, v38"); yield
        e(f"v_mul_f32 v{CR}, v39, v38"); yield
        e(f"v_mul_f32 v{CI}, v34, v38"); yield
        yield from csq(e, 34, 35, LR, LI, 38)
        yield from csq(e, 36, 37, 34, 35, 38)
        yield from csq(e, L8R, L8I, 36, 37, 38)
        e(f"v_mov_b32 v{TR}, 1.0"); yield
        e(f"v_mov_b32 v{TI}, 0"); yield
        e(f"v_mov_b32 v34, v{L8R}"); yield
        e(f"v_mov_b32 v35, v{L8I}"); yield
        for b, m in enumerate(("s[44:45]", "s[46:47]", "s[40:41]", "s[42:43]")):
            yield from cmul(e, 36, 37, TR, TI, 34, 35, 38)
            e(f"v_cndmask_b32 v{TR}, v{TR}, v36, {m}"); yield
            e(f"v_cndmask_b32 v{TI}, v{TI}, v37, {m}"); yield
            e("v_mov_b32 v41, v34"); yield
            e("v_mov_b32 v42, v35"); yield
            yield from csq(e, 34, 35, 41, 42, 38)
        e(f"v_mov_b32 v{L128R}, v34"); yield
        e(f"v_mov_b32 v{L128I}, v35"); yield

    def zbuf(ks): return 96 + (ks & 1)*4
    def wbufA(ks, tl): return 104 + (ks & 1)*8 + tl*4
    def wbufB(ks, tl): return FB + (ks & 1)*8 + tl*4
    first = {}
    def mfma(acc, a, b):
        c = f"v[{acc}:{acc+15}]" if first.get(acc) else "0"
        first[acc] = True
        e(f"v_mfma_f32_32x32x16_bf16 v[{acc}:{acc+15}], v[{a}:{a+3}], v[{b}:{b+3}], {c}")
    rd_tok = {}
    def read_x(ks):
        kk = ks & 3; kc = ks >> 2
        rd_tok[("x", ks)] = [e(f"ds_read_b128 v[{XF+4*ks}:{XF+4*ks+3}], v{AX+kk} offset:{(kc%3)*16384}")]
    def read_z(ks):
        kk = ks & 3; kc = ks >> 2
        rd_tok[("z", ks)] = [e(f"ds_read_b128 v[{zbuf(ks)}:{zbuf(ks)+3}], v{AZr+kk} offset:{(kc%3)*8192}")]
    def read_w(ph, ks, tl, half):
        kk = ks & 3; w = (ks >> 2) + (0 if ph == "A" else 7)
        b = wbufA(ks, tl) if ph == "A" else wbufB(ks, tl)
        ad = AW0 if tl == 0 else AW1
        off = (w % 4)*16384 + kk*2048
        t = e(f"ds_read_b64_tr_b16 v[{b+2*half}:{b+2*half+1}], v{ad} offset:{off+512*half}")
        rd_tok.setdefault((ph, ks, tl), []).append(t)
    steps = [("A", ks) for ks in range(28)] + [("B", ks) for ks in range(28)]
    def tick_idx(ph, ks): return (ks >> 2) + (0 if ph == "A" else 7)
    def need_ents(tk): return [("X",tk),("Z",tk),("W",tk)] if tk < 7 else [("W",tk)]
    def enter_tick(tk):
        while any(x not in ent_tok for x in need_ents(tk)): dmaq.popleft()()
        e.wait([ent_tok[x] for x in need_ents(tk)])
        if tk == 1: nonce_publish(e, 120, M_N)
        e.wait_all(vm=False)
        e("s_barrier")
        if tk == 1: nonce_read(e, 121, M_N)
        queue(*issue_for_tick(tk))

    def main_stream():
        if not RB_LATE: rowbatch_compute()
        if PSTAMP: pr.stamp()
        enter_tick(0)
        if PSTAMP: pr.stamp()
        read_x(0); read_w("A", 0, 0, 0); read_w("A", 0, 0, 1); read_z(0); read_w("A", 0, 1, 0); read_w("A", 0, 1, 1)
        for n, (ph, ks) in enumerate(steps):
            nx = steps[n+1] if n + 1 < len(steps) else None
            x = XF + 4*ks
            if ph == "A":
                ops = [(AG[0], wbufA(ks,0), x, [("x", ks), (ph, ks, 0)]), (AZ, x, zbuf(ks), [("z", ks)]), (AG[1], wbufA(ks,1), x, [(ph, ks, 1)])]
            else:
                ops = [(AG[2], wbufB(ks,0), x, [(ph, ks, 0)]), (AG[3], wbufB(ks,1), x, [(ph, ks, 1)])]
            for si, (acc, a, b, keys) in enumerate(ops):
                e.wait([rd_tok[k] for k in keys])
                mfma(acc, a, b)
                dma_ok = False
                if nx is not None:
                    ph2, ks2 = nx
                    if si == 0 and (ks2 & 3) == 0: enter_tick(tick_idx(ph2, ks2))
                    if ph2 == "A":
                        if si == 0: read_x(ks2); read_w("A", ks2, 0, 0)
                        elif si == 1: read_w("A", ks2, 0, 1); read_z(ks2)
                        else: read_w("A", ks2, 1, 0); read_w("A", ks2, 1, 1); dma_ok = True
                    elif ph == "A":
                        if si == 0: read_w("B", ks2, 0, 0); read_w("B", ks2, 0, 1)
                        elif si == 1: read_w("B", ks2, 1, 0); read_w("B", ks2, 1, 1)
                        else: dma_ok = True
                    else:
                        read_w("B", ks2, si, 0); read_w("B", ks2, si, 1)
                        dma_ok = (si == 1)
                did = False
                if (dma_ok or (len(dmaq) > DMA_HURRY)) and dmaq:
                    dmaq.popleft()(); did = True
                yield (ph, ks, si, did)

    aux = {}
    def tagcheck(regs):
        e(f"v_xor_b32 v44, s98, v{regs[0]}")
        for r in regs[1:]:
            e(f"v_xor_b32 v45, s98, v{r}")
            e("v_or_b32 v44, v44, v45")
        e("v_cmp_ne_u32 vcc, 0, v44")
        e("s_cmp_eq_u64 vcc, 0")
    AXW1, AXW2 = 3, 4
    def only_wave(w, name):
        lab = e.label(name)
        e(f"s_cmp_lg_u32 s48, {w}")
        e(f"s_cbranch_scc1 {lab}")
        e.cond_begin()
        return lab
    def end_only(lab):
        e.cond_end()
        e.raw(f"{lab}:")
    def aux1_issue_raw():
        e("s_lshl_b32 s61, s52, 11")
        e(f"s_add_u32 s61, s61, {WS_STAT}")
        e("v_lshlrev_b32 v120, 4, v0")
        e("buffer_load_dwordx4 v[36:39], v120, s[32:35], s61 offen sc1")
        e("buffer_load_dwordx4 v[40:43], v120, s[32:35], s61 offen offset:1024 sc1")
        e("v_lshrrev_b32 v121, 5, v0")
        e("v_mul_u32_u24 v121, 448, v121")
        e("v_and_b32 v122, 31, v0")
        e("v_add_u32 v121, v121, v122")
        e("s_lshl_b32 s61, s53, 5")
        e("v_add_u32 v121, s61, v121")
        e("v_lshlrev_b32 v121, 3, v121")
        e(f"s_mov_b32 s61, {WS_CSB}")
        e("buffer_load_dwordx2 v[124:125], v121, s[32:35], s61 offen sc1")
    def aux1_issue():
        lab = only_wave(AXW1, "K1_A1I")
        aux1_issue_raw()
        end_only(lab)
        aux["a1_vm"] = e.vm_issued
    def aux1_finish():
        lab = only_wave(AXW1, "K1_A1F")
        e.raw(f"s_waitcnt vmcnt({min(63, e.vm_issued - aux['a1_vm'])})")
        tagged_retry(e, aux1_issue_raw, lambda: tagcheck([37, 39, 41, 43, 125]), "K1_A1", cnt="s63")
        e("v_rcp_f32 v37, v38")
        e("v_rcp_f32 v41, v42")
        e("v_lshlrev_b32 v120, 3, v0")
        e(f"v_add_u32 v120, {M_ST}, v120")
        e("ds_write_b64 v120, v[36:37]")
        e("ds_write_b64 v120, v[40:41] offset:512")
        e("v_lshlrev_b32 v120, 2, v0")
        e(f"v_add_u32 v120, {M_SD}, v120")
        e("ds_write_b32 v120, v38")
        e("ds_write_b32 v120, v42 offset:256")
        e(f"ds_write_b32 v120, v124 offset:{M_CB - M_SD}")
        e.raw("s_waitcnt lgkmcnt(0)")
        end_only(lab)
    def aux1_read():
        e(f"v_and_b32 v34, 0x1f0, v{VH}"); yield
        e("v_lshrrev_b32 v34, 1, v34"); yield
        e("s_lshl_b32 s56, s54, 8")
        e(f"s_add_u32 s56, s56, {M_ST}")
        e("v_add_u32 v35, s56, v34"); yield
        t1 = e("ds_read_b64 v[36:37], v35"); yield
        e("v_lshrrev_b32 v34, 1, v34"); yield
        e("s_lshl_b32 s56, s54, 7")
        e(f"s_add_u32 s56, s56, {M_SD}")
        e("v_add_u32 v34, s56, v34"); yield
        t2 = e(f"ds_read_b32 v{SD}, v34"); yield
        e("v_and_b32 v34, 15, v0"); yield
        e("s_lshl_b32 s56, s55, 6")
        e(f"s_add_u32 s56, s56, {M_CB}")
        e("v_lshlrev_b32 v34, 2, v34"); yield
        e("v_add_u32 v34, s56, v34"); yield
        t3 = [e(f"ds_read_b32 v{CSR}, v34"), e(f"ds_read_b32 v{CSI}, v34 offset:128")]; yield
        e("v_lshrrev_b32 v34, 4, v0"); yield
        e("s_lshl_b32 s56, s54, 8")
        e(f"s_add_u32 s56, s56, {M_ST}")
        e("v_lshlrev_b32 v34, 6, v34"); yield
        e("v_add_u32 v34, s56, v34"); yield
        e.wait(t1); yield
        e(f"v_mov_b32 v{M_}, v36"); yield
        e(f"v_mul_f32 v{NLR}, {f32(-LOG2E)}, v37"); yield
        aux["st"] = [e("ds_read_b128 v[36:39], v34"), e("ds_read_b128 v[40:43], v34 offset:16")]
        aux["lane"] = [t2, t3]
        yield
    def aux2_issue_raw():
        e("s_lshl_b32 s61, s53, 10")
        e(f"s_add_u32 s61, s61, {WS_CSW}")
        e("v_lshlrev_b32 v136, 4, v0")
        e("buffer_load_dwordx4 v[128:131], v136, s[32:35], s61 offen sc1")
        e(f"s_add_u32 s61, s61, {1792*8}")
        e("buffer_load_dwordx4 v[132:135], v136, s[32:35], s61 offen sc1")
    def aux2_issue():
        lab = only_wave(AXW2, "K1_A2I")
        aux2_issue_raw()
        end_only(lab)
        aux["a2_vm"] = e.vm_issued
    def tagcheck2(regs):
        e(f"v_xor_b32 v137, s98, v{regs[0]}")
        for r in regs[1:]:
            e(f"v_xor_b32 v138, s98, v{r}")
            e("v_or_b32 v137, v137, v138")
        e("v_cmp_ne_u32 vcc, 0, v137")
        e("s_cmp_eq_u64 vcc, 0")
    def aux2_finish():
        lab = only_wave(AXW2, "K1_A2F")
        e.raw(f"s_waitcnt vmcnt({min(63, e.vm_issued - aux['a2_vm'])})")
        tagged_retry(e, aux2_issue_raw, lambda: tagcheck2([129, 131, 133, 135]), "K1_A2", cnt="s63")
        e("v_mov_b32 v129, v130")
        e("v_mov_b32 v133, v134")
        e("v_lshlrev_b32 v136, 3, v0")
        e(f"v_add_u32 v136, {M_CS}, v136")
        e("ds_write_b64 v136, v[128:129]")
        e("ds_write_b64 v136, v[132:133] offset:512")
        e.raw("s_waitcnt lgkmcnt(0)")
        end_only(lab)
    def cs_base():
        e("v_lshrrev_b32 v46, 5, v0"); yield
        e("v_lshlrev_b32 v46, 4, v46"); yield
        e("s_lshl_b32 s56, s55, 7")
        e(f"s_add_u32 s56, s56, {M_CS}")
        e("v_add_u32 v46, s56, v46"); yield
    def cs_reads(tl, CSB):
        o = (tl >> 1)*256 + (tl & 1)*64
        aux[("cs", tl)] = [e(f"ds_read_b128 v[{CSB}:{CSB+3}], v46 offset:{o}"),
                           e(f"ds_read_b128 v[{CSB+4}:{CSB+7}], v46 offset:{o+32}"),
                           e(f"ds_read_b128 v[{CSB+8}:{CSB+11}], v46 offset:{o+512}"),
                           e(f"ds_read_b128 v[{CSB+12}:{CSB+15}], v46 offset:{o+544}")]
        yield

    def z_pass1():
        e.wait(aux["lane"]); yield
        for i in range(8):
            e(f"v_permlane16_swap_b32 v{AZ+i}, v{AZ+8+i}"); yield
        st = list(aux["st"])
        for g in range(4):
            b = 36 + (g & 1)*4
            e.wait(st[g]); yield
            for u in range(2):
                i = 2*g + u; mm = b + 2*u
                e(f"v_fma_f32 v{AZ+i}, -v{mm}, v{CSR}, v{AZ+i}"); yield
                e(f"v_fma_f32 v{AZ+8+i}, -v{mm}, v{CSI}, v{AZ+8+i}"); yield
            for u in range(2):
                i = 2*g + u; rr = b + 2*u + 1
                e(f"v_mul_f32 v{AZ+i}, v{AZ+i}, v{rr}"); yield
                e(f"v_mul_f32 v{AZ+8+i}, v{AZ+8+i}, v{rr}"); yield
            if g + 2 < 4:
                st.append(e(f"ds_read_b128 v[{b}:{b+3}], v34 offset:{(g+2)*16}")); yield
        pr_, pi_ = AZ, AZ + 8
        for i in range(1, 8):
            d = (44, 45) if (i & 1) else (ER, EI)
            yield from cfma_to(e, d[0], d[1], pr_, pi_, LR, LI, AZ+i, AZ+8+i)
            pr_, pi_ = d
        e(f"v_mul_f32 v36, v{CI}, v45"); yield
        e(f"v_mul_f32 v37, v{CI}, v44"); yield
        e(f"v_fma_f32 v{ER}, v{CR}, v44, -v36"); yield
        e(f"v_fma_f32 v{EI}, v{CR}, v45, v37"); yield
    def hier1():
        e(f"v_mov_b32 v1, v{ER}"); yield
        e(f"v_mov_b32 v2, v{ER}"); yield
        e(f"v_mov_b32 v3, v{EI}"); yield
        e(f"v_mov_b32 v4, v{EI}"); yield
        yield from csq(e, 7, 8, L8R, L8I, 34)
        e("v_permlane16_swap_b32 v1, v2"); yield
        e("v_permlane16_swap_b32 v3, v4"); yield
        yield from cfma_to(e, 5, 6, 1, 3, L8R, L8I, 2, 4)
        e("v_mov_b32 v11, v5"); yield
        e("v_mov_b32 v12, v5"); yield
        e("v_mov_b32 v13, v6"); yield
        e("v_mov_b32 v34, v6"); yield
        e("v_and_b32 v35, 15, v0"); yield
        e("s_lshl_b32 s56, s55, 4")
        e("v_add_u32 v35, s56, v35"); yield
        e("v_lshlrev_b32 v35, 3, v35"); yield
        e("v_permlane32_swap_b32 v11, v12"); yield
        e("v_permlane32_swap_b32 v13, v34"); yield
        e(f"v_add_u32 v35, {M_SEG}, v35"); yield
        yield from cfma_to(e, 5, 6, 11, 13, 7, 8, 12, 34)
        e("s_lshl_b32 s56, s54, 8")
        e("v_add_u32 v34, s56, v35"); yield
        e("v_mov_b32 v44, v5"); yield
        e("v_mov_b32 v45, v6"); yield
        e("ds_write_b64 v34, v[44:45]"); yield
    def hier2():
        tk = [e(f"ds_read_b64 v[{36+2*u}:{37+2*u}], v35 offset:{u*256}") for u in range(3)]
        yield
        yield from csq(e, 42, 43, 7, 8, 44)
        e.wait(tk); yield
        yield from cfma_to(e, 44, 45, 36, 37, 42, 43, 38, 39)
        yield from cfma_to(e, 2, 4, 44, 45, 42, 43, 40, 41)
        e("v_cndmask_b32 v2, v44, v2, s[40:41]"); yield
        e("v_cndmask_b32 v4, v45, v4, s[40:41]"); yield
        e("v_cndmask_b32 v36, 0, v36, s[40:41]"); yield
        e("v_cndmask_b32 v37, 0, v37, s[40:41]"); yield
        e("v_cndmask_b32 v36, v36, v2, s[42:43]"); yield
        e("v_cndmask_b32 v37, v37, v4, s[42:43]"); yield
        lab = e.label("K1_NOPUB")
        e("s_cmp_lg_u32 s54, 3")
        e(f"s_cbranch_scc1 {lab}")
        e.cond_begin()
        for _ in cfma_to(e, 38, 40, 36, 37, 42, 43, 5, 6): pass
        e("v_mov_b32 v39, s98"); e("v_mov_b32 v41, s98")
        e("v_and_b32 v34, 15, v0")
        e("v_add_u32 v34, s78, v34")
        e("v_lshlrev_b32 v34, 4, v34")
        e(f"s_mul_i32 s56, s52, {448*16}")
        e(f"s_add_u32 s56, s56, {WS_E}")
        e("s_mov_b64 s[58:59], exec")
        e("s_mov_b64 exec, 0xffff")
        e("buffer_store_dwordx4 v[38:41], v34, s[32:35], s56 offen sc1")
        e("s_mov_b64 exec, s[58:59]")
        e.cond_end()
        e.raw(f"{lab}:")
        yield
        yield from cfma_to(e, 38, 39, 36, 37, 7, 8, 11, 13)
        e("v_cndmask_b32 v36, v36, v38, s[46:47]"); yield
        e("v_cndmask_b32 v37, v37, v39, s[46:47]"); yield
        yield from cfma_to(e, 38, 39, 36, 37, L8R, L8I, 1, 3)
        e(f"v_cndmask_b32 v{PR}, v36, v38, s[44:45]"); yield
        e(f"v_cndmask_b32 v{PI}, v37, v39, s[44:45]"); yield
    def zscale():
        for i in range(0, 8, 2):
            for u in range(2):
                e(f"v_mul_f32 v{36+2*u}, v{CI}, v{AZ+8+i+u}"); yield
                e(f"v_mul_f32 v{37+2*u}, v{CI}, v{AZ+i+u}"); yield
            for u in range(2):
                e(f"v_fma_f32 v{AZ+i+u}, v{CR}, v{AZ+i+u}, -v{36+2*u}"); yield
                e(f"v_fma_f32 v{AZ+8+i+u}, v{CR}, v{AZ+8+i+u}, v{37+2*u}"); yield
    def gu_math(acc, CSB):
        for i in range(8):
            e(f"v_fma_f32 v{acc+i}, -v{M_}, v{CSB+i}, v{acc+i}"); yield
        for i in range(8):
            e(f"v_mul_f32 v{acc+i}, v{acc+i}, v{NLR}"); yield
        for i in range(8):
            e(f"v_exp_f32 v{acc+i}, v{acc+i}"); yield
            e(f"v_fma_f32 v{acc+8+i}, -v{M_}, v{CSB+8+i}, v{acc+8+i}"); yield
        for i in range(8):
            e(f"v_fma_f32 v{acc+i}, v{acc+i}, v{SD}, v{SD}"); yield
        for i in range(8):
            e(f"v_rcp_f32 v{acc+i}, v{acc+i}"); yield
        for i in range(8):
            e(f"v_mul_f32 v{acc+i}, v{acc+i}, v{acc+8+i}"); yield
        for p in range(4):
            e(f"v_cvt_pk_bf16_f32 v{acc+8+p}, v{acc+2*p}, v{acc+2*p+1}"); yield
    def gu_epi(tl, CSB):
        acc = AG[tl]
        e.wait(aux[("cs", tl)]); yield
        yield from gu_math(acc, CSB)
        e(f"s_add_u32 s56, s79, {((tl>>1)*4 + (tl&1))*1024}")
        e(f"buffer_store_dwordx4 v[{acc+8}:{acc+11}], v{VH}, s[32:35], s56 offen{STF}"); yield

    def k2_prefetch1():
        e("s_mul_i32 s56, s51, 448")
        e("s_lshl_b32 s57, s48, 6")
        e("s_add_u32 s56, s56, s57")
        e("s_mul_i32 s57, s51, 112")
        e("s_cmp_eq_u32 s48, 7")
        e("s_cselect_b32 s56, s57, s56")
        e("s_cselect_b64 s[58:59], s[88:89], s[86:87]")
        e("v_add_u32 v221, s56, v0")
        e("v_lshlrev_b32 v221, 7, v221")
        e("global_load_dword v222, v221, s[58:59]")
    def k2_prefetch2():
        lab = e.label("K1_PF2")
        e("s_cmp_ge_u32 s48, 3")
        e(f"s_cbranch_scc1 {lab}")
        e.cond_begin()
        e("s_cmp_eq_u32 s48, 0")
        e("s_cselect_b64 s[58:59], s[88:89], s[90:91]")
        e("s_mul_i32 s56, s51, 112")
        e("s_cmp_eq_u32 s48, 1")
        e("s_cselect_b32 s57, 0, 64")
        e("s_add_u32 s56, s56, s57")
        e("v_add_u32 v221, s56, v0")
        e("v_min_u32 v221, 3135, v221")
        e("v_lshlrev_b32 v221, 7, v221")
        e("global_load_dword v223, v221, s[58:59]")
        e.cond_end()
        e.raw(f"{lab}:")
    EL = 160
    def e_issue_raw():
        e("v_lshrrev_b32 v180, 4, v0")
        e("v_and_b32 v181, 15, v0")
        e("v_add_u32 v181, s78, v181")
        e("v_lshlrev_b32 v181, 4, v181")
        e("s_sub_u32 s63, s52, 1")
        e(f"s_mov_b32 s61, {WS_E}")
        for m in range(4):
            e(f"v_add_u32 v{176+m}, {4*m}, v180")
            e(f"v_min_u32 v{176+m}, s63, v{176+m}")
            e(f"v_mul_u32_u24 v{176+m}, {448*16}, v{176+m}")
            e(f"v_add_u32 v{176+m}, v{176+m}, v181")
            e(f"buffer_load_dwordx4 v[{EL+4*m}:{EL+4*m+3}], v{176+m}, s[32:35], s61 offen sc1")
    def e_issue():
        lab = e.label("K1_EI")
        e("s_cmp_eq_u32 s52, 0")
        e(f"s_cbranch_scc1 {lab}")
        e.cond_begin(); e_issue_raw(); e.cond_end()
        e.raw(f"{lab}:")
    def e_consts():
        yield from csq(e, 182, 183, L128R, L128I, 188)
        yield from cmul(e, 184, 185, 182, 183, L128R, L128I, 188)
        yield from csq(e, 186, 187, 182, 183, 188)
        e("v_lshrrev_b32 v190, 4, v0"); yield
        e("s_sub_u32 s63, s52, 1")
        e("v_sub_u32 v190, s63, v190"); yield
        e("v_and_b32 v191, 3, v190"); yield
        e("v_ashrrev_i32 v190, 2, v190"); yield
        e("v_mov_b32 v192, 1.0"); yield
        e("v_mov_b32 v193, 0"); yield
        for k, (rr, ii) in enumerate(((L128R, L128I), (182, 183), (184, 185))):
            e(f"v_cmp_eq_u32 vcc, {k+1}, v191"); yield
            e(f"v_cndmask_b32 v192, v192, v{rr}, vcc"); yield
            e(f"v_cndmask_b32 v193, v193, v{ii}, vcc"); yield
    def e_check(nafter):
        skip = e.label("K1_ESK"); ok = e.label("K1_EOK"); chk = e.label("K1_ECK")
        e("s_cmp_eq_u32 s52, 0")
        e(f"s_cbranch_scc1 {skip}")
        e.cond_begin()
        e.raw(f"s_waitcnt vmcnt({nafter})")
        e("s_mov_b32 s62, 0")
        e.raw(f"{chk}:")
        e(f"v_xor_b32 v44, s98, v{EL+1}")
        for r in (EL+3, EL+5, EL+7, EL+9, EL+11, EL+13, EL+15):
            e(f"v_xor_b32 v45, s98, v{r}")
            e("v_or_b32 v44, v44, v45")
        e("v_cmp_ne_u32 vcc, 0, v44")
        e("s_cmp_eq_u64 vcc, 0")
        e(f"s_cbranch_scc1 {ok}")
        e("s_add_u32 s62, s62, 1")
        e("s_cmp_ge_u32 s62, 100000")
        e(f"s_cbranch_scc1 {ok}")
        e_issue_raw()
        e.raw("s_waitcnt vmcnt(0)")
        e(f"s_branch {chk}")
        e.raw(f"{ok}:")
        e.cond_end()
        e.raw(f"{skip}:")
    def carry_and_pass2():
        lab0 = e.label("K1_NOCARRY")
        e("v_mov_b32 v44, 0"); e("v_mov_b32 v45, 0")
        e("s_cmp_eq_u32 s52, 0")
        e(f"s_cbranch_scc1 {lab0}")
        for m in range(4):
            er, ei = EL+4*m, EL+4*m+2
            e(f"v_cmp_le_i32 vcc, {m}, v190")
            e(f"v_fma_f32 v{er}, v186, v44, v{er}")
            e(f"v_fma_f32 v{ei}, v186, v45, v{ei}")
            e(f"v_fma_f32 v{er}, -v187, v45, v{er}")
            e(f"v_fma_f32 v{ei}, v187, v44, v{ei}")
            e(f"v_cndmask_b32 v44, v44, v{er}, vcc")
            e(f"v_cndmask_b32 v45, v45, v{ei}, vcc")
        e("v_mul_f32 v40, v193, v45")
        e("v_mul_f32 v41, v193, v44")
        e("v_fma_f32 v44, v192, v44, -v40")
        e("v_fma_f32 v45, v192, v45, v41")
        e("v_mov_b32 v40, v44"); e("v_mov_b32 v41, v45")
        e("v_permlane16_swap_b32 v44, v40"); e("v_permlane16_swap_b32 v45, v41")
        e("v_add_f32 v44, v44, v40"); e("v_add_f32 v45, v45, v41")
        e("v_mov_b32 v40, v44"); e("v_mov_b32 v41, v45")
        e("v_permlane32_swap_b32 v44, v40"); e("v_permlane32_swap_b32 v45, v41")
        e("v_add_f32 v44, v44, v40"); e("v_add_f32 v45, v45, v41")
        e.raw(f"{lab0}:")
        e(f"v_fma_f32 v{PR}, v{TR}, v44, v{PR}")
        e(f"v_fma_f32 v{PI}, v{TR}, v45, v{PI}")
        e(f"v_fma_f32 v{PR}, -v{TI}, v45, v{PR}")
        e(f"v_fma_f32 v{PI}, v{TI}, v44, v{PI}")
        pr_, pi_ = PR, PI
        for i in range(8):
            zr, zi = AZ + i, AZ + 8 + i
            e(f"v_fma_f32 v{zr}, v{LR}, v{pr_}, v{zr}")
            e(f"v_fma_f32 v{zi}, v{LR}, v{pi_}, v{zi}")
            e(f"v_fma_f32 v{zr}, -v{LI}, v{pi_}, v{zr}")
            e(f"v_fma_f32 v{zi}, v{LI}, v{pr_}, v{zi}")
            pr_, pi_ = zr, zi
        for p in range(4):
            e(f"v_cvt_pk_bf16_f32 v{36+p}, v{AZ+2*p}, v{AZ+2*p+1}")
            e(f"v_cvt_pk_bf16_f32 v{40+p}, -v{AZ+8+2*p}, -v{AZ+8+2*p+1}")
        e("ds_write_b128 v1, v[36:39]")
        e("ds_write_b128 v1, v[40:43] offset:1024")
        e.wait_all(vm=False)
        tk = [e("ds_read_b64_tr_b16 v[36:37], v2"), e("ds_read_b64_tr_b16 v[38:39], v2 offset:256"),
              e("ds_read_b64_tr_b16 v[40:41], v2 offset:1024"), e("ds_read_b64_tr_b16 v[42:43], v2 offset:1280")]
        e.wait(tk)
        e(f"buffer_store_dwordx4 v[36:39], v3, s[32:35], s76 offen{STF}")
        e("s_add_u32 s76, s76, 4096")
        e(f"buffer_store_dwordx4 v[40:43], v3, s[32:35], s76 offen{STF}")
    def tail_addr():
        e("s_lshl_b32 s56, s48, 11")
        e(f"s_add_u32 s56, s56, {M_TR}")
        e("v_and_b32 v1, 15, v0"); yield
        e("v_lshlrev_b32 v1, 6, v1"); yield
        e("v_lshrrev_b32 v2, 4, v0"); yield
        e("v_lshl_add_u32 v1, v2, 4, v1"); yield
        e("v_add_u32 v1, s56, v1"); yield
        e("v_lshrrev_b32 v2, 5, v0"); yield
        e("v_bfe_u32 v3, v0, 2, 2"); yield
        e("v_lshl_add_u32 v2, v2, 3, v3"); yield
        e("v_lshlrev_b32 v2, 6, v2"); yield
        e("v_bfe_u32 v3, v0, 4, 1"); yield
        e("v_lshl_add_u32 v2, v3, 5, v2"); yield
        e("v_and_b32 v3, 3, v0"); yield
        e("v_lshl_add_u32 v2, v3, 3, v2"); yield
        e("v_add_u32 v2, s56, v2"); yield
        e("v_lshlrev_b32 v3, 4, v0"); yield
        e("s_lshl_b32 s56, s53, 1")
        e("s_add_u32 s56, s56, s55")
        e("s_lshr_b32 s57, s56, 2")
        e("s_lshl_b32 s57, s57, 3")
        e("s_and_b32 s56, s56, 3")
        e("s_add_u32 s56, s56, s57")
        e("s_lshl_b32 s57, s52, 2")
        e("s_add_u32 s57, s57, s54")
        e("s_mul_i32 s57, s57, 56")
        e("s_add_u32 s56, s56, s57")
        e("s_lshl_b32 s56, s56, 10")
        e(f"s_add_u32 s76, s56, {WS_hF}")
        yield

    def cost(i):
        if i.cls == "valu": return 2.0 if i.op in TRANS else 1.0
        if i.cls in ("ds", "vmem"): return 0.5
        return 0.1
    class Fill:
        def __init__(self): self.q = []; self.cur = None; self.barrier_at = None
        def add(self, *items): self.q += list(items)
        def run(self, budget, tick):
            spent = 0.0
            while spent < budget:
                if self.cur is None:
                    if not self.q: return
                    it = self.q[0]
                    if it == "barrier":
                        if self.barrier_at is None: self.barrier_at = tick
                        if tick <= self.barrier_at: return
                        self.barrier_at = None; self.q.pop(0); continue
                    if it == "aux2gate":
                        if "a2_tick" not in aux or tick <= aux["a2_tick"]: return
                        self.q.pop(0); continue
                    self.q.pop(0); self.cur = it() if callable(it) else it
                n0 = len(e.ins)
                try: next(self.cur)
                except StopIteration: self.cur = None
                spent += sum(cost(i) for i in e.ins[n0:])
        def flush(self):
            while self.cur is not None or self.q:
                if self.cur is None:
                    it = self.q.pop(0)
                    if it == "barrier" or it == "aux2gate":
                        e.wait_all(vm=False); e("s_barrier"); self.barrier_at = None
                        continue
                    self.cur = it() if callable(it) else it
                for _ in self.cur: pass
                self.cur = None
    F = Fill()
    F.add(params)
    slot = {"A": 0, "B": 0}
    last = None
    for (ph, ks, si, did) in main_stream():
        if (ph, ks) != last and (ph, ks) in STAMPS: pr.stamp()
        last = (ph, ks)
        n = slot[ph]; slot[ph] += 1
        tk = tick_idx(ph, ks)
        if NOEPI:
            if ph == "A" and not did: F.run(BUDGET_A, tk)
            continue
        if ph == "A":
            if n == RB_SLOT and RB_LATE: rowbatch_compute()
            if n == PUB_SLOT: rowbatch_publish()
            if n == AUX_LOAD: F.flush(); aux1_issue()
            if n == AUX_FIN: aux1_finish(); F.add("barrier", aux1_read)
            if not did: F.run(BUDGET_A, tk)
        else:
            if n == 0:
                F.flush()
                F.add(z_pass1, hier1, "barrier", hier2, zscale, cs_base, "aux2gate",
                      lambda: cs_reads(0, 128), lambda: cs_reads(1, 144), lambda: gu_epi(0, 128),
                      lambda: cs_reads(2, 128), lambda: gu_epi(1, 144), lambda: cs_reads(3, 144), tail_addr)
            if n == AUX2_SLOT: aux2_issue()
            if n == AUX2_FIN: aux2_finish(); aux["a2_tick"] = tk
            if n == PF_SLOT and PF_SLOT >= 0: k2_prefetch1()
            if n == PF_SLOT + PF_GAP and PF_SLOT >= 0: k2_prefetch2()
            if not did: F.run(BUDGET_B0 if n < 30 else BUDGET_B, tk)
    if NOEPI:
        pr.dump(32, 48)
        e.raw("K1_END:")
        e("s_endpgm")
        gen_helper(e)
        return 256
    e_issue(); aux["e_vm"] = e.vm_issued
    F.flush()
    drain(e_consts())
    drain(gu_epi(2, 128))
    drain(gu_epi(3, 144))
    if TAILST: pr.stamp()
    e_check(e.vm_issued - aux["e_vm"])
    carry_and_pass2()
    pr.stamp()
    pr.dump(32, 48)
    if fused:
        if G.PROFILE: e("s_mov_b64 exec, -1")
        G.gen_k2(e, fused=True)
    e.raw("K1_END:")
    e("s_endpgm")
    gen_helper(e)
    return 256
```

```python
import sys, os
sys.path.insert(0, "dev")
from asmlib import *
import gen as G
from gen import *
from collections import deque

def cmul(e, dr, di, ar, ai, br, bi, t):
    e(f"v_mul_f32 v{t}, v{ai}, v{bi}"); yield
    e(f"v_mul_f32 v{t+1}, v{ai}, v{br}"); yield
    e(f"v_fma_f32 v{t}, v{ar}, v{br}, -v{t}"); yield
    e(f"v_fma_f32 v{di}, v{ar}, v{bi}, v{t+1}"); yield
    e(f"v_mov_b32 v{dr}, v{t}"); yield
def csq(e, dr, di, ar, ai, t):
    e(f"v_mul_f32 v{t}, v{ai}, v{ai}"); yield
    e(f"v_mul_f32 v{t+1}, v{ar}, v{ai}"); yield
    e(f"v_fma_f32 v{dr}, v{ar}, v{ar}, -v{t}"); yield
    e(f"v_add_f32 v{di}, v{t+1}, v{t+1}"); yield
def cfma(e, hr, hi, lr, li, br, bi, t):
    e(f"v_fma_f32 v{t}, v{lr}, v{hr}, v{br}"); yield
    e(f"v_fma_f32 v{t+1}, v{lr}, v{hi}, v{bi}"); yield
    e(f"v_fma_f32 v{t}, -v{li}, v{hi}, v{t}"); yield
    e(f"v_fma_f32 v{hi}, v{li}, v{hr}, v{t+1}"); yield
    e(f"v_mov_b32 v{hr}, v{t}"); yield
def cfma_to(e, dr, di, hr, hi, lr, li, br, bi):
    e(f"v_fma_f32 v{dr}, v{lr}, v{hr}, v{br}"); yield
    e(f"v_fma_f32 v{di}, v{lr}, v{hi}, v{bi}"); yield
    e(f"v_fma_f32 v{dr}, -v{li}, v{hi}, v{dr}"); yield
    e(f"v_fma_f32 v{di}, v{li}, v{hr}, v{di}"); yield

def gen_helper(e):
    e.raw("K1_HELPER:")
    e.lg_issued = e.lg_done = 0; e.vm_issued = e.vm_done = 0
    e("s_cmp_ge_u32 s2, 28")
    e("s_cbranch_scc1 K1_END")
    srd(e, 32, 18, WS_END if not G.PROFILE else (16 << 20))
    pr = G.Prof(e, 0); pr.stamp()
    srd(e, 36, 16, 256)
    e("s_cmp_ge_u32 s2, 14")
    e("s_cselect_b32 s28, s14, s12")
    e("s_cselect_b32 s29, s15, s13")
    e("s_cselect_b32 s54, 14, 0")
    e("s_cselect_b32 s56, 1792, 0")
    e("s_and_b32 s29, s29, 0xffff")
    e("s_sub_u32 s54, s2, s54")
    e(f"s_mov_b32 s30, {448*1792*2}")
    e("s_mov_b32 s31, 0x20000")
    e("v_lshrrev_b32 v4, 4, v0")
    e("s_movk_i32 s50, 3584")
    e("v_mul_lo_u32 v4, s50, v4")
    e("v_and_b32 v5, 15, v0")
    e("v_lshl_add_u32 v4, v5, 4, v4")
    e(f"s_mul_i32 s55, s48, {56*3584}")
    e("s_lshl_b32 s57, s54, 8")
    e("s_add_u32 s55, s55, s57")
    nonce_cas(e, 12)
    WL = 72
    U = 128
    wt = []
    for n in range(14):
        e(f"s_add_u32 s57, s55, {n*4*3584}")
        wt.append(e(f"buffer_load_dwordx4 v[{WL+4*n}:{WL+4*n+3}], v4, s[28:31], s57 offen"))
    A = 16
    for n in range(14):
        e.wait(wt[n])
        if n == 0:
            pr.stamp()
            nonce_publish(e, 12, 32768)
        for d in range(4):
            src = WL + 4*n + d
            if n == 0:
                e(f"v_lshlrev_b32 v{A+2*d}, 16, v{src}")
                e(f"v_and_b32 v{A+2*d+1}, 0xffff0000, v{src}")
            else:
                e(f"v_lshlrev_b32 v6, 16, v{src}")
                e(f"v_and_b32 v7, 0xffff0000, v{src}")
                e(f"v_add_f32 v{A+2*d}, v{A+2*d}, v6")
                e(f"v_add_f32 v{A+2*d+1}, v{A+2*d+1}, v7")
    pr.stamp()
    e("v_lshrrev_b32 v6, 4, v0")
    e("s_lshl_b32 s57, s48, 2")
    e("v_add_u32 v6, s57, v6")
    e("v_lshlrev_b32 v6, 9, v6")
    e("v_lshl_add_u32 v6, v5, 5, v6")
    e(f"ds_write_b128 v6, v[{A}:{A+3}]")
    e(f"ds_write_b128 v6, v[{A+4}:{A+7}] offset:16")
    e.wait_all(vm=False)
    e("s_barrier")
    e("s_cmp_ge_u32 s48, 2")
    e("s_cbranch_scc1 K1_END")
    nonce_read(e, 13, 32768)
    e("s_lshl_b32 s57, s48, 6")
    e("v_add_u32 v6, s57, v0")
    e("v_lshlrev_b32 v7, 2, v6")
    for p in range(32): e(f"ds_read_b32 v{U+p}, v7 offset:{p*512}")
    e.wait_all(vm=False)
    for st in (16, 8, 4, 2, 1):
        for p in range(st): e(f"v_add_f32 v{U+p}, v{U+p}, v{U+p+st}")
    e("s_lshl_b32 s57, s54, 7")
    e("s_add_u32 s57, s57, s56")
    e("v_add_u32 v6, s57, v6")
    e("v_lshlrev_b32 v6, 3, v6")
    e(f"v_add_u32 v6, {WS_CSW}, v6")
    e(f"v_mov_b32 v{U+1}, s98")
    e(f"buffer_store_dwordx2 v[{U}:{U+1}], v6, s[32:35], 0 offen sc1")
    pr.stamp()
    pr.dump(32, 48)
    e("s_endpgm")

def nonce_cas(e, v):
    lab = e.label("K1_NC")
    e("s_cmp_lg_u32 s48, 0")
    e(f"s_cbranch_scc1 {lab}")
    e.cond_begin()
    e.raw("s_memrealtime s[100:101]")
    e.raw("s_waitcnt lgkmcnt(0)")
    e("s_or_b32 s99, s100, 1")
    e(f"v_mov_b32 v{v}, s99")
    e(f"v_mov_b32 v{v+1}, 0")
    e(f"v_mov_b32 v{v+2}, 0")
    e("s_mov_b64 s[58:59], exec")
    e("s_mov_b64 exec, 1")
    e(f"buffer_atomic_cmpswap v[{v}:{v+1}], v{v+2}, s[36:39], 0 offen sc0")
    e("s_mov_b64 exec, s[58:59]")
    e.cond_end()
    e.raw(f"{lab}:")
def nonce_publish(e, v, lds):
    lab = e.label("K1_NP")
    e("s_cmp_lg_u32 s48, 0")
    e(f"s_cbranch_scc1 {lab}")
    e.cond_begin()
    e(f"v_readfirstlane_b32 s100, v{v}")
    e("s_cmp_eq_u32 s100, 0")
    e("s_cselect_b32 s100, s99, s100")
    e(f"v_mov_b32 v{v}, s100")
    e(f"v_mov_b32 v{v+1}, {lds}")
    e(f"ds_write_b32 v{v+1}, v{v}")
    e.raw("s_waitcnt lgkmcnt(0)")
    e.cond_end()
    e.raw(f"{lab}:")
def nonce_read(e, v, lds):
    e(f"v_mov_b32 v{v}, {lds}")
    t = e(f"ds_read_b32 v{v}, v{v}")
    e.wait(t)
    e(f"v_readfirstlane_b32 s98, v{v}")

def tagged_retry(e, issue, check, name, maxit=100000, cnt="s61"):
    ok = e.label(name + "_OK"); top = e.label(name + "_RT")
    check()
    e(f"s_cbranch_scc1 {ok}")
    e.cond_begin()
    e(f"s_mov_b32 {cnt}, 0")
    e.raw(f"{top}:")
    e("s_sleep 2")
    issue()
    e.raw("s_waitcnt vmcnt(0)")
    check()
    e(f"s_cbranch_scc1 {ok}")
    e(f"s_add_u32 {cnt}, {cnt}, 1")
    e(f"s_cmp_lt_u32 {cnt}, {maxit}")
    e(f"s_cbranch_scc1 {top}")
    e.cond_end()
    e.raw(f"{ok}:")
```

```python
import sys
sys.path.insert(0, "dev")
from asmlib import *

NAME = "recurrent_scan__ssm_conv_s5__glu_gated_glu__prompt"
WS_HF   = 0
WS_hF   = 64*112*1024
WS_STAT = WS_hF + 64*56*1024
WS_CSW  = WS_STAT + 2048*16
WS_CSB  = WS_CSW + 3584*8
WS_E    = WS_CSB + 896*8
WS_DONE = WS_E + 16*448*16
WS_END  = WS_DONE + 16*128
LOG2E = 1.4426950408889634
import struct, os
def f32(x): return "0x%08x" % struct.unpack("<I", struct.pack("<f", x))[0]

def srd(e, s, ptr, nbytes):
    e(f"s_mov_b32 s{s}, s{ptr}")
    e(f"s_and_b32 s{s+1}, s{ptr+1}, 0xffff")
    e(f"s_mov_b32 s{s+2}, {nbytes}")
    e(f"s_mov_b32 s{s+3}, 0x20000")

def bf16_round_pair(e, dst_lo, dst_hi, a, b, tmp):
    e(f"v_cvt_pk_bf16_f32 v{tmp}, v{a}, v{b}")
    yield
    e(f"v_lshlrev_b32 v{dst_lo}, 16, v{tmp}")
    yield
    e(f"v_and_b32 v{dst_hi}, 0xffff0000, v{tmp}")
    yield

PROFILE = False
WS_PROF = 12 << 20
class Prof:
    def __init__(self, e, kern): self.e = e; self.k = kern; self.n = 0
    def stamp(self):
        if not PROFILE: return
        e = self.e
        import os
        e.raw("s_memtime s[96:97]" if os.environ.get("CLK") == "cyc" else "s_memrealtime s[96:97]")
        e.raw("s_waitcnt lgkmcnt(0)"); e.lg_done = e.lg_issued
        e.raw(f"s_mov_b32 s{80+self.n}, s96"); self.n += 1
        assert self.n <= ((6 if not os.environ.get('NOPF') else 12) if self.k == 0 else 12)
    def dump(self, srd_ws, wave_s):
        if not PROFILE: return
        e = self.e
        e(f"s_lshl_b32 s96, s2, 3"); e(f"s_add_u32 s96, s96, s{wave_s}"); e("s_lshl_b32 s96, s96, 6")
        e(f"s_add_u32 s96, s96, {WS_PROF + self.k*256*8*64}")
        for i in range(16):
            e(f"v_mov_b32 v{200+i}, s{80+i}" if i < self.n else f"v_mov_b32 v{200+i}, 0")
        e("v_mov_b32 v216, 0")
        e("s_mov_b64 exec, 1")
        for q in range(4):
            e(f"buffer_store_dwordx4 v[{200+4*q}:{203+4*q}], v216, s[{srd_ws}:{srd_ws+3}], s96 offen offset:{16*q}")
        e("s_waitcnt vmcnt(0)")

def pull(gen, n):
    if gen is None: return None
    for _ in range(n):
        try: next(gen)
        except StopIteration: return None
    return gen
def drain(gen):
    if gen is None: return
    for _ in gen: pass

K2_R = 9
K2_STAGE = 16384
def gen_k2(e, fused=False):
    global K2_R
    R_ = 8 if fused else K2_R
    if not fused:
        e.raw("k2_kernel:")
        e("s_cmp_ge_u32 s2, 224")
        e("s_cbranch_scc1 K2_END")
    else:
        e.raw("s_waitcnt vmcnt(0) lgkmcnt(0)")
        e("s_barrier")
        lab = e.label("F_NOADD")
        e("s_lshl_b32 s76, s52, 7")
        e(f"s_add_u32 s76, s76, {WS_DONE}")
        e("s_cmp_lg_u32 s48, 0")
        e(f"s_cbranch_scc1 {lab}")
        e("s_lshl_b32 s56, s53, 2")
        e("v_mov_b32 v2, s56")
        e("v_mov_b32 v3, s98")
        e("s_mov_b64 exec, 1")
        e("buffer_store_dword v3, v2, s[32:35], s76 offen sc1")
        e("s_mov_b64 exec, -1")
        e.raw(f"{lab}:")
        e("s_and_b32 s71, s52, 3")
        e("s_cmp_ge_u32 s53, 7")
        e("s_cselect_b32 s49, 1, 0")
        e("s_cselect_b32 s50, 7, 0")
        e("s_sub_u32 s50, s53, s50")
        e("s_lshl_b32 s51, s52, 1")
        e("s_add_u32 s49, s49, s51")
        e.lg_issued = e.lg_done = 0; e.vm_issued = e.vm_done = 0
    e("s_load_dwordx2 s[4:5], s[0:1], 0")
    e("s_load_dwordx2 s[6:7], s[0:1], 40")
    e("s_load_dwordx2 s[8:9], s[0:1], 48")
    e("s_load_dwordx2 s[10:11], s[0:1], 64")
    e("s_load_dwordx2 s[12:13], s[0:1], 96")
    e("s_load_dwordx2 s[14:15], s[0:1], 104")
    t = e("s_load_dwordx2 s[16:17], s[0:1], 120")
    if not fused:
        e("v_lshrrev_b32 v1, 6, v0")
        e("v_and_b32 v0, 63, v0")
        e("v_readfirstlane_b32 s48, v1")
        e("s_and_b32 s49, s2, 7")
        e("s_lshl_b32 s49, s49, 2")
        e("s_lshr_b32 s50, s2, 3")
        e("s_and_b32 s51, s50, 3")
        e("s_mov_b32 s71, s51")
        e("s_add_u32 s49, s49, s51")
        e("s_lshr_b32 s50, s50, 2")
    e.wait(t)
    srd(e, 20, 4, 2048*448*2)
    srd(e, 24, 6, 448*448*2)
    srd(e, 28, 8, 448*448*2)
    srd(e, 32, 10, 448*2)
    srd(e, 36, 12, 1792*448*2)
    srd(e, 40, 14, 2048*448*4)
    srd(e, 44, 16, WS_END if not PROFILE else (16 << 20))
    pr = Prof(e, 1); pr.stamp()
    e("s_cmp_ge_u32 s48, 4")
    e("s_cbranch_scc1 K2_LOADER")
    e("s_and_b32 s52, s48, 1")
    e("s_lshr_b32 s53, s48, 1")
    e("v_and_b32 v1, 31, v0")
    e("v_lshrrev_b32 v2, 5, v0")
    e("v_and_b32 v3, 15, v0")
    e("v_lshrrev_b32 v4, 4, v0")
    e("s_lshl_b32 s54, s49, 6")
    e("s_lshl_b32 s55, s52, 5")
    e("s_add_u32 s54, s54, s55")
    e("v_add_u32 v5, s54, v1")
    e("s_lshl_b32 s55, s50, 6")
    e("s_lshl_b32 s56, s53, 5")
    e("s_add_u32 s55, s55, s56")
    e("v_lshlrev_b32 v6, 2, v2")
    e("v_add_u32 v6, s55, v6")
    e("s_movk_i32 s57, 896")
    e("v_mul_lo_u32 v7, s57, v5")
    e("v_lshlrev_b32 v8, 1, v6")
    e("v_add_u32 v7, v7, v8")
    e("v_lshlrev_b32 v9, 4, v5")
    e(f"v_add_u32 v9, {WS_STAT}, v9")
    e("v_lshlrev_b32 v10, 1, v7")
    XR, DK, ST = 16, 24, 192
    toks = []
    for a in range(4): toks.append(e(f"buffer_load_dwordx2 v[{XR+2*a}:{XR+2*a+1}], v7, s[20:23], 0 offen offset:{16*a}"))
    for a in range(4): toks.append(e(f"buffer_load_dwordx2 v[{DK+2*a}:{DK+2*a+1}], v8, s[32:35], 0 offen offset:{16*a}"))
    toks.append(e(f"buffer_load_dwordx4 v[{ST}:{ST+3}], v9, s[44:47], 0 offen" + (" sc1" if fused else "")))
    epi_toks = toks
    e("s_lshl_b32 s57, s52, 12")
    e("v_lshlrev_b32 v11, 4, v0")
    e("v_add_u32 v11, s57, v11")
    e("v_lshrrev_b32 v13, 2, v3")
    e("v_lshl_add_u32 v13, v2, 2, v13")
    e("v_lshlrev_b32 v12, 7, v13")
    e("v_and_b32 v13, 1, v4")
    e("s_lshl_b32 s57, s53, 1")
    e("v_add_u32 v13, s57, v13")
    e("v_lshrrev_b32 v14, 3, v3")
    e("v_lshlrev_b32 v14, 1, v14")
    e("v_xor_b32 v13, v13, v14")
    e("v_lshl_add_u32 v12, v13, 5, v12")
    e("v_and_b32 v13, 3, v3")
    e("v_lshl_add_u32 v12, v13, 3, v12")
    e("v_add_u32 v12, 8192, v12")
    e("s_lshl_b32 s57, s53, 5")
    e("v_add_u32 v13, s57, v1")
    e("v_lshlrev_b32 v13, 7, v13")
    e("v_lshrrev_b32 v14, 1, v1")
    e("v_and_b32 v14, 7, v14")
    e("v_xor_b32 v14, v14, v2")
    e("v_lshl_add_u32 v13, v14, 4, v13")
    e("v_add_u32 v13, 8192, v13")
    PH, PW, PC = 11, 12, 13
    TH, TW = 14, 15
    ACCO, ACCY = 64, 80
    FR = 96
    XF, SK, G = 34, 160, 176
    T0 = 50
    def hfrag(set_, kk): return FR + set_*32 + kk*8
    def wfrag(set_, kk): return FR + set_*32 + kk*8 + 4

    def pre_epi():
        e.wait(epi_toks)
        yield
        e(f"v_rcp_f32 v{T0}, v{ST+2}")
        yield
        for p in range(8):
            xa, xb = XF+2*p, XF+2*p+1
            e(f"v_lshlrev_b32 v{xa}, 16, v{XR+p}"); yield
            e(f"v_and_b32 v{xb}, 0xffff0000, v{XR+p}"); yield
            e(f"v_sub_f32 v{T0+1}, v{xa}, v{ST}"); yield
            e(f"v_sub_f32 v{T0+2}, v{xb}, v{ST}"); yield
            yield from bf16_round_pair(e, T0+1, T0+2, T0+1, T0+2, T0+3)
            e(f"v_mul_f32 v{T0+1}, v{T0+1}, v{T0}"); yield
            e(f"v_mul_f32 v{T0+2}, v{T0+2}, v{T0}"); yield
            yield from bf16_round_pair(e, T0+1, T0+2, T0+1, T0+2, T0+3)
            e(f"v_lshlrev_b32 v{T0+4}, 16, v{DK+p}"); yield
            e(f"v_and_b32 v{T0+5}, 0xffff0000, v{DK+p}"); yield
            e(f"v_mul_f32 v{T0+1}, v{T0+1}, v{T0+4}"); yield
            e(f"v_mul_f32 v{T0+2}, v{T0+2}, v{T0+5}"); yield
            yield from bf16_round_pair(e, SK+2*p, SK+2*p+1, T0+1, T0+2, T0+3)
    def silu_epi():
        for p in range(8):
            a, b = T0+1, T0+2
            yield from bf16_round_pair(e, a, b, ACCO+2*p, ACCO+2*p+1, T0+3)
            e(f"v_mul_f32 v{T0+4}, {f32(-LOG2E)}, v{a}"); yield
            e(f"v_mul_f32 v{T0+5}, {f32(-LOG2E)}, v{b}"); yield
            e(f"v_exp_f32 v{T0+4}, v{T0+4}"); yield
            e(f"v_exp_f32 v{T0+5}, v{T0+5}"); yield
            e(f"v_add_f32 v{T0+4}, 1.0, v{T0+4}"); yield
            e(f"v_add_f32 v{T0+5}, 1.0, v{T0+5}"); yield
            e(f"v_rcp_f32 v{T0+4}, v{T0+4}"); yield
            e(f"v_rcp_f32 v{T0+5}, v{T0+5}"); yield
            e(f"v_mul_f32 v{a}, v{a}, v{T0+4}"); yield
            e(f"v_mul_f32 v{b}, v{b}, v{T0+5}"); yield
            yield from bf16_round_pair(e, G+2*p, G+2*p+1, a, b, T0+3)

    NST = 42
    fill = pre_epi()
    first = {ACCO: True, ACCY: True}
    def mfmas(t):
        acc = ACCO if t < 28 else ACCY
        for kk in range(4):
            c = "0" if first[acc] else f"v[{acc}:{acc+15}]"
            first[acc] = False
            e(f"v_mfma_f32_32x32x16_bf16 v[{acc}:{acc+15}], v[{wfrag(t&1,kk)}:{wfrag(t&1,kk)+3}], v[{hfrag(t&1,kk)}:{hfrag(t&1,kk)+3}], {c}")
            yield
    for t in range(NST + 1):
        if t < NST:
            e("s_barrier")
            if t in (0, 1, 8, 16, 28, 41): pr.stamp()
            base = (t % R_) * K2_STAGE
            e(f"v_add_u32 v{TH}, {base}, v{PH}")
            if t < 28: e(f"v_add_u32 v{TW}, {base}, v{PW}")
            else:      e(f"v_add_u32 v{TW}, {base}, v{PC}")
        mf = mfmas(t-1) if t >= 1 else None
        for kk in range(4):
            if t < NST:
                e(f"ds_read_b128 v[{hfrag(t&1,kk)}:{hfrag(t&1,kk)+3}], v{TH} offset:{kk*1024}")
                w = wfrag(t&1,kk)
                if t < 28:
                    e(f"ds_read_b64_tr_b16 v[{w}:{w+1}], v{TW} offset:{kk*2048}")
                    e(f"ds_read_b64_tr_b16 v[{w+2}:{w+3}], v{TW} offset:{kk*2048+1024}")
                else:
                    if kk == 0: e(f"ds_read_b128 v[{w}:{w+3}], v{TW}")
                    else:
                        e(f"v_xor_b32 v{T0+8}, {kk<<5}, v{TW}")
                        e(f"ds_read_b128 v[{w}:{w+3}], v{T0+8}")
            if mf is not None: mf = pull(mf, 1)
            fill = pull(fill, 6)
        if t == 29:
            drain(fill); fill = silu_epi()
        if t < NST: e.wait_all(vm=False, lg=True)
    drain(fill)
    for i in range(16):
        e(f"v_add_f32 v{SK+i}, v{ACCY+i}, v{SK+i}")
    for i in range(16):
        e(f"v_fma_f32 v{SK+i}, v{SK+i}, v{G+i}, v{XF+i}")
    for a in range(4):
        e(f"buffer_store_dwordx4 v[{SK+4*a}:{SK+4*a+3}], v10, s[40:43], 0 offen offset:{32*a}")
    pr.stamp()
    if PROFILE: e("s_waitcnt vmcnt(0)")
    pr.stamp()
    pr.dump(44, 48)
    e("s_endpgm")
    e2 = e
    e.raw("K2_LOADER:")
    e.lg_issued = e.lg_done = 0; e.vm_issued = e.vm_done = 0
    e("s_sub_u32 s52, s48, 4")
    e("s_and_b32 s53, s52, 1")
    e("s_lshr_b32 s54, s52, 1")
    e("v_lshlrev_b32 v1, 4, v0")
    e("v_lshrrev_b32 v2, 3, v0")
    e("s_lshl_b32 s55, s52, 4")
    e("v_add_u32 v2, s55, v2")
    e("s_movk_i32 s55, 896")
    e("v_mul_lo_u32 v2, s55, v2")
    e("v_and_b32 v3, 7, v0")
    e("v_lshrrev_b32 v4, 4, v0")
    e("v_and_b32 v5, 1, v4")
    e("v_lshlrev_b32 v5, 2, v5")
    e("v_xor_b32 v5, v5, v3")
    e("v_lshl_add_u32 v5, v5, 4, v2")
    e("v_xor_b32 v6, v4, v3")
    e("v_lshl_add_u32 v6, v6, 4, v2")
    e("v_add_u32 v7, 4, v4")
    e("v_xor_b32 v7, v7, v3")
    e("v_lshl_add_u32 v7, v7, 4, v2")
    e(f"v_add_u32 v7, {8*896}, v7")
    e("s_lshl_b32 s58, s49, 1")
    e("s_add_u32 s58, s58, s53")
    e("s_lshl_b32 s59, s54, 1")
    e("s_mul_i32 s56, s58, 112")
    e("s_add_u32 s56, s56, s59")
    e("s_lshl_b32 s56, s56, 10")
    if WS_HF: e(f"s_add_u32 s56, s56, {WS_HF}")
    e("s_mul_i32 s57, s58, 56")
    e("s_add_u32 s57, s57, s59")
    e("s_lshl_b32 s57, s57, 10")
    e(f"s_add_u32 s57, s57, {WS_hF}")
    e("s_lshl_b32 s60, s53, 2")
    e("s_add_u32 s60, s60, s59")
    e("s_lshl_b32 s60, s60, 10")
    e("s_lshl_b32 s61, s52, 11")
    e("s_add_u32 s61, s61, 8192")
    e("s_lshl_b32 s62, s50, 7")
    e(f"s_mul_i32 s63, s50, {64*896}")
    if os.environ.get("K2ROT", "1") == "1":
        e("s_mul_i32 s65, s71, 7")
        e("s_lshl_b32 s68, s50, 2")
        e("s_add_u32 s65, s65, s68")
        e("s_cmp_ge_u32 s65, 28")
        e("s_cselect_b32 s68, 28, 0")
        e("s_sub_u32 s65, s65, s68")
        e("s_lshl_b32 s66, s71, 1")
        e("s_add_u32 s66, s66, s50")
        e("s_cmp_ge_u32 s66, 7")
        e("s_cselect_b32 s68, 7, 0")
        e("s_sub_u32 s66, s66, s68")
    else:
        e("s_mov_b32 s65, 0"); e("s_mov_b32 s66, 0")
    e("s_mov_b32 s77, s65"); e("s_mov_b32 s78, s66")
    stage_tok = {}
    AFL = " sc1" if fused else ""
    def adv(t, o, m):
        if t < 28:
            e(f"s_add_u32 s{o}, s{o}, 1"); e(f"s_cmp_eq_u32 s{o}, 28"); e(f"s_cselect_b32 s{o}, 0, s{o}")
        elif (t - 28) & 1:
            e(f"s_add_u32 s{m}, s{m}, 1"); e(f"s_cmp_eq_u32 s{m}, 7"); e(f"s_cselect_b32 s{m}, 0, s{m}")
    def issueA(t):
        base = (t % R_) * K2_STAGE
        if t < 28:
            e("s_lshl_b32 s69, s65, 12")
            e("s_add_u32 s69, s69, s56")
        else:
            e("s_lshl_b32 s69, s66, 13")
            e("s_add_u32 s69, s69, s57")
            if (t - 28) & 1: e("s_add_u32 s69, s69, 4096")
        for a in range(2):
            e(f"s_add_u32 m0, s60, {base + a*1024}")
            if a: e("s_add_u32 s69, s69, 1024")
            tok = e(f"buffer_load_dwordx4 v1, s[44:47], s69 offen{AFL} lds")
        adv(t, 65, 66)
        return tok
    def issueB(t):
        base = (t % R_) * K2_STAGE
        part = (t - 28) & 1
        if t < 28:
            e(f"s_mul_i32 s70, s77, {64*896}")
            e("s_add_u32 s70, s70, s62")
        else:
            e("s_lshl_b32 s70, s78, 7")
            e("s_add_u32 s70, s70, s63")
        for a in range(2):
            e(f"s_add_u32 m0, s61, {base + a*1024}")
            if t < 28:
                if a: e("s_add_u32 s70, s70, 7168")
                tok = e("buffer_load_dwordx4 v5, s[36:39], s70 offen lds")
            else:
                tok = e(f"buffer_load_dwordx4 v{6+a}, s[{24+4*part}:{27+4*part}], s70 offen lds")
        adv(t, 77, 78)
        return tok
    pr = Prof(e, 1); pr.n = 1
    PRO = int(os.environ.get("K2PRO", "2"))
    nxt = 0
    if fused:
        NB = R_ - 1
        for t in range(NB): issueB(t)
        top = e.label("F_POLL"); ok = e.label("F_POLLOK")
        e("v_and_b32 v8, 15, v0")
        e("v_min_u32 v8, 13, v8")
        e("v_lshlrev_b32 v8, 2, v8")
        e("s_mov_b32 s79, 0")
        e.raw(f"{top}:")
        e("buffer_load_dword v9, v8, s[44:47], s76 offen sc1")
        e.raw("s_waitcnt vmcnt(0)")
        e("v_cmp_ne_u32 vcc, s98, v9")
        e("s_cmp_eq_u64 vcc, 0")
        e(f"s_cbranch_scc1 {ok}")
        e("s_add_u32 s79, s79, 1")
        e("s_cmp_lt_u32 s79, 200000")
        e(f"s_cbranch_scc1 {top}")
        e.raw(f"{ok}:")
        e.vm_done = e.vm_issued
        nB = NB
        for t in range(PRO): stage_tok[t] = issueA(t); nxt += 1
    else:
        nB = 0
        for t in range(PRO):
            issueA(t); stage_tok[t] = issueB(t); nxt += 1; nB += 1
    pr.stamp()
    for t in range(NST):
        e.wait(stage_tok[t])
        if t in (0, 1, 8, 16, 28, 41): pr.stamp()
        e("s_barrier")
        k = 0
        while nxt < NST and nxt <= t + R_ - 1 and k < 2:
            tok = issueA(nxt)
            if nxt >= nB:
                tok = issueB(nxt); nB += 1
            stage_tok[nxt] = tok
            nxt += 1; k += 1
    pr.dump(44, 48)
    e.raw("K2_END:")
    e("s_endpgm")

def kd(name, vgpr, sgpr=102):
    acc = (vgpr + 3)//4*4
    return f""".amdhsa_kernel {name}
  .amdhsa_next_free_vgpr {vgpr}
  .amdhsa_next_free_sgpr {sgpr}
  .amdhsa_accum_offset {acc}
  .amdhsa_group_segment_fixed_size 0
  .amdhsa_kernarg_size 128
  .amdhsa_user_sgpr_count 2
  .amdhsa_user_sgpr_kernarg_segment_ptr 1
  .amdhsa_system_sgpr_workgroup_id_x 1
.end_amdhsa_kernel"""

def main():
    global PROFILE
    which = sys.argv[2] if len(sys.argv) > 2 else "k2"
    if len(sys.argv) > 3 and "prof" in sys.argv[3]: PROFILE = True
    hdr = open(f"cdna_kernels/{NAME}.s.ref").read().split("; Override launch")[0]
    out = [hdr.rstrip()]
    kernels = []
    fused = "fused" in which
    KN = NAME + "_kernel" if fused else "k1_kernel"
    if fused:
        if os.environ.get("PLAIN", "0") == "1": out.append("; @launch grid=(256,1,1) block=(512,1,1) lds=163840")
        else: out.append(f"; @launch kernel={KN} grid=(256,1,1) block=(512,1,1) lds=163840")
    else:
        if "k1" in which:
            out.append("; @launch kernel=k1_kernel grid=(256,1,1) block=(512,1,1) lds=163840")
        if "k2" in which:
            out.append(f"; @launch kernel=k2_kernel grid=(224,1,1) block=(512,1,1) lds={K2_R*K2_STAGE}")
    out.append('.amdgcn_target "amdgcn-amd-amdhsa--gfx950"\n.text')
    kds = []
    if fused:
        import gen_k1b as gen_k1
        gen_k1.G.PROFILE = PROFILE
        e = Emit(); vg = gen_k1.gen_k1(e, fused=True, kname=KN)
        out.append(f".globl {KN}\n.p2align 8\n.type {KN},@function"); out.append(e.finish()); kds.append(kd(KN, vg))
    else:
        if "k1" in which:
            import gen_k1b as gen_k1
            gen_k1.G.PROFILE = PROFILE
            e = Emit(); vg = gen_k1.gen_k1(e)
            out.append(".globl k1_kernel\n.p2align 8\n.type k1_kernel,@function"); out.append(e.finish()); kds.append(kd("k1_kernel", vg))
        if "k2" in which:
            e = Emit(); gen_k2(e)
            out.append(".globl k2_kernel\n.p2align 8\n.type k2_kernel,@function"); out.append(e.finish()); kds.append(kd("k2_kernel", 200 if not PROFILE else 224))
    out.append('.section .rodata,"a"\n.p2align 6')
    out.append("\n.p2align 6\n".join(kds))
    open(sys.argv[1], "w").write("\n".join(out) + "\n")
if __name__ == "__main__": main()
```

```python
import sys, os
sys.path.insert(0, "dev")
from asmlib import *
import gen as G
from gen import *
from k1_common import *
from collections import deque

env = lambda k, d: type(d)(os.environ.get(k, d)) if not isinstance(d, bool) else os.environ.get(k, "1" if d else "0") == "1"
STAMPS = eval(os.environ.get("STAMPS", '[("A",0),("A",27),("B",0),("B",27)]'))
NOEPI = env("NOEPI", False); NODMA = env("NODMA", False)
PRO_DMAS = env("PRO_DMAS", 5); ROT = env("ROT", True)
PF_GAP = env("PF_GAP", 4); PF_SLOT = env("PF_SLOT", 7); AUX2_SLOT = env("AUX2_SLOT", 6); E_SLOT = env("E_SLOT", 48)
AUX2_FIN = env("AUX2_FIN", 14)
AUX_LOAD = env("AUX_LOAD", 50); AUX_FIN = env("AUX_FIN", 68); PUB_SLOT = env("PUB_SLOT", 11)
BUDGET_A = env("BUDGET_A", 4.0); BUDGET_B = env("BUDGET_B", 6.0); BUDGET_B0 = env("BUDGET_B0", 7.0)

DMAFLAG = os.environ.get("DMAFLAG", "")
if DMAFLAG: DMAFLAG = " " + DMAFLAG
ZFIRST = env("ZFIRST", True); TAILST2 = env("TAILST2", False); TAILST = env("TAILST", True); PSTAMP = env("PSTAMP", False); DMA_HURRY = env("DMA_HURRY", 6); RB_LATE = env("RB_LATE", True); RB_SLOT = env("RB_SLOT", 7)
XR, ZR, WR = 0, 49152, 73728
MISC = 139264
M_ST = MISC; M_CS = MISC + 1024; M_SEG = MISC + 2048; M_N = MISC + 3072
M_SD = MISC + 3328; M_CB = MISC + 3840
M_PART = MISC + 3328
M_PB = MISC + 5376
M_TR = MISC + 6656
AX, AZr, AW0, AW1 = 1, 5, 9, 10
VX0, VX1, VZ, VW = 11, 12, 13, 14
LR, LI, CR, CI, L8R, L8I, L128R, L128I, TR, TI = 15, 16, 17, 18, 19, 20, 21, 22, 23, 24
M_, SD, NLR, CSR, CSI, PR, PI, ER, EI = 25, 26, 27, 28, 29, 30, 31, 32, 33
VH = 47

AZ = 48
AG = [64, 80, 96, 112]
XF = 128
FB = 240

def gen_k1(e, fused=False, kname="k1_kernel"):
    STF = " sc1" if fused else ""
    e.raw(f"{kname}:")
    e("s_cmp_ge_u32 s2, 256")
    e("s_cbranch_scc1 K1_END")
    e("s_load_dwordx2 s[4:5], s[0:1], 0")
    e("s_load_dwordx2 s[6:7], s[0:1], 8")
    e("s_load_dwordx2 s[8:9], s[0:1], 24")
    e("s_load_dwordx2 s[10:11], s[0:1], 32")
    e("s_load_dwordx2 s[12:13], s[0:1], 80")
    e("s_load_dwordx2 s[14:15], s[0:1], 88")
    e("s_load_dwordx2 s[16:17], s[0:1], 112")
    e("s_load_dwordx2 s[18:19], s[0:1], 120")
    e("s_load_dwordx2 s[62:63], s[0:1], 16")
    e("s_load_dwordx2 s[86:87], s[0:1], 96")
    e("s_load_dwordx2 s[88:89], s[0:1], 40")
    e("s_load_dwordx2 s[90:91], s[0:1], 48")
    t = e("s_load_dwordx2 s[64:65], s[0:1], 56")
    e("v_lshrrev_b32 v1, 6, v0")
    e("v_and_b32 v0, 63, v0")
    e("v_readfirstlane_b32 s48, v1")
    e("s_sub_u32 s49, s2, 32")
    e("s_and_b32 s50, s49, 7")
    e("s_lshr_b32 s51, s49, 3")
    e("s_and_b32 s52, s50, 3")
    e("s_lshl_b32 s52, s52, 2")
    e("s_and_b32 s53, s51, 3")
    e("s_add_u32 s52, s52, s53")
    e("s_lshr_b32 s53, s50, 2")
    e("s_mul_i32 s53, s53, 7")
    e("s_lshr_b32 s54, s51, 2")
    e("s_add_u32 s53, s53, s54")
    e("s_and_b32 s54, s48, 3")
    e("s_lshr_b32 s55, s48, 2")
    e("v_lshrrev_b32 v40, 3, v0")
    e("v_and_b32 v41, 7, v0")
    e("v_lshrrev_b32 v42, 4, v0")
    e("s_movk_i32 s56, 896")
    e("s_lshl_b32 s57, s48, 4")
    e("v_add_u32 v43, s57, v40")
    e("v_mul_lo_u32 v43, s56, v43")
    e("v_xor_b32 v44, v41, v42")
    e(f"v_lshl_add_u32 v{VX0}, v44, 4, v43")
    e("v_add_u32 v44, 4, v42")
    e("v_xor_b32 v44, v41, v44")
    e(f"v_lshl_add_u32 v{VX1}, v44, 4, v43")
    e(f"v_add_u32 v{VX1}, {8*896}, v{VX1}")
    e("s_lshl_b32 s57, s54, 3")
    e("v_add_u32 v43, s57, v40")
    e("v_mul_lo_u32 v43, s56, v43")
    e("s_and_b32 s57, s48, 1")
    e("s_lshl_b32 s57, s57, 2")
    e("v_add_u32 v44, s57, v42")
    e("v_xor_b32 v44, v41, v44")
    e(f"v_lshl_add_u32 v{VZ}, v44, 4, v43")
    e("s_lshl_b32 s57, s54, 3")
    e("v_add_u32 v43, s57, v40")
    e("s_movk_i32 s56, 3584")
    e("v_mul_lo_u32 v43, s56, v43")
    e("v_and_b32 v44, 1, v42")
    e("s_lshl_b32 s57, s55, 1")
    e("v_add_u32 v44, s57, v44")
    e("v_lshlrev_b32 v44, 1, v44")
    e("v_xor_b32 v44, v41, v44")
    e(f"v_lshl_add_u32 v{VW}, v44, 4, v43")
    e(f"s_mul_i32 s66, s52, {128*896}")
    e(f"s_mul_i32 s67, s53, {32*896}")
    e("s_lshl_b32 s72, s53, 8")
    e("s_lshl_b32 s73, s48, 11")
    e("s_lshl_b32 s74, s48, 10")
    e(f"s_add_u32 s74, s74, {ZR}")
    e("s_lshl_b32 s75, s55, 13")
    e("s_lshl_b32 s76, s54, 10")
    e("s_add_u32 s75, s75, s76")
    e(f"s_add_u32 s75, s75, {WR}")
    e.wait(t)
    e("s_cmp_lt_u32 s2, 32")
    e("s_cbranch_scc1 K1_HELPER")
    srd(e, 20, 4, 2048*448*2)
    if ROT:
        e("s_and_b32 s56, s51, 3")
        e("s_lshl_b32 s56, s56, 1")
        e("s_lshr_b32 s57, s51, 2")
        e("s_add_u32 s56, s56, s57")
        e("s_cmp_ge_u32 s56, 7")
        e("s_cselect_b32 s57, 7, 0")
        e("s_sub_u32 s77, s56, s57")
    else:
        e("s_mov_b32 s77, 0")
    e("s_mov_b32 s76, s77")
    e("s_lshl_b32 s4, s76, 7")
    e("s_add_u32 s4, s4, s66")
    e("s_sub_u32 s67, s67, s66")
    ent_tok = {}
    dmaq = deque()
    def entry_dmas(kind, kc):
        def mk(a, last):
            def f():
                if NODMA:
                    if last: ent_tok[(kind, kc)] = None
                    return
                if kind == "X":
                    e(f"s_add_u32 m0, s73, {XR + (kc%3)*16384 + a*1024}")
                    tok = e(f"buffer_load_dwordx4 v{VX0+a}, s[20:23], s{4+kc} offen{DMAFLAG} lds")
                elif kind == "Z":
                    e(f"s_add_u32 m0, s74, {(kc%3)*8192}")
                    e(f"s_add_u32 s77, s67, s{4+kc}")
                    tok = e(f"buffer_load_dwordx4 v{VZ}, s[24:27], s77 offen{DMAFLAG} lds")
                else:
                    ch = kc % 7; colb = 0 if kc < 7 else 128
                    e(f"s_add_u32 m0, s75, {(kc%4)*16384 + a*4096}")
                    e(f"s_add_u32 s77, s{11+ch}, {32*a*3584 + colb}")
                    tok = e(f"buffer_load_dwordx4 v{VW}, s[28:31], s77 offen{DMAFLAG} lds")
                if last: ent_tok[(kind, kc)] = tok
            return f
        n = 1 if kind == "Z" else 2
        return [mk(a, a == n - 1) for a in range(n)]
    def queue(*ents):
        for (k, kc) in ents:
            for f in entry_dmas(k, kc): dmaq.append(f)
    queue(("X",0))
    for _ in range(2): dmaq.popleft()()
    e("s_cmp_eq_u32 s55, 0")
    e("s_cselect_b32 s24, s8, s10")
    e("s_cselect_b32 s25, s9, s11")
    e("s_cselect_b32 s28, s12, s14")
    e("s_cselect_b32 s29, s13, s15")
    e("s_and_b32 s25, s25, 0xffff")
    e(f"s_mov_b32 s26, {448*448*2}")
    e("s_mov_b32 s27, 0x20000")
    e("s_and_b32 s29, s29, 0xffff")
    e(f"s_mov_b32 s30, {448*1792*2}")
    e("s_mov_b32 s31, 0x20000")
    queue(("Z",0))
    dmaq.popleft()()
    srd(e, 40, 6, 896)
    srd(e, 44, 62, 896)
    srd(e, 68, 64, 896)
    srd(e, 32, 18, WS_END if not G.PROFILE else (16 << 20))
    srd(e, 36, 16, 256)
    e("s_mov_b32 s60, 0")
    e("s_cmp_lt_u32 s48, 2")
    e("s_cselect_b32 s61, 1, 0")
    e("s_cmp_lt_u32 s53, 8")
    e("s_cselect_b32 s60, s61, 0")
    e("s_cmp_eq_u32 s48, 2")
    e("s_cselect_b32 s61, 2, 0")
    e("s_cmp_lt_u32 s52, 8")
    e("s_cselect_b32 s61, s61, 0")
    e("s_or_b32 s60, s60, s61")
    e("s_lshl_b32 s56, s52, 7")
    e("s_lshl_b32 s57, s53, 4")
    e("s_add_u32 s56, s56, s57")
    e("s_lshl_b32 s57, s48, 3")
    e("s_add_u32 s56, s56, s57")
    e("s_lshl_b32 s57, s53, 5")
    e("s_and_b32 s58, s52, 3")
    e("s_lshl_b32 s58, s58, 3")
    e("s_add_u32 s57, s57, s58")
    e("s_cmp_eq_u32 s60, 2")
    e("s_cselect_b32 s59, s57, s56")
    e("s_cmp_ge_u32 s52, 4")
    e("s_cselect_b32 s92, s10, s8")
    e("s_cselect_b32 s93, s11, s9")
    e("s_cselect_b32 s62, 448, 0")
    e("s_cmp_eq_u32 s60, 2")
    e("s_cselect_b32 s92, s92, s20")
    e("s_cselect_b32 s93, s93, s21")
    e(f"s_mov_b32 s94, {2048*448*2}")
    e(f"s_cselect_b32 s94, {448*448*2}, s94")
    e("s_cselect_b32 s62, s62, 0")
    e("s_and_b32 s93, s93, 0xffff")
    e("s_mov_b32 s95, 0x20000")
    e("s_add_u32 s62, s62, s59")
    e("s_mul_i32 s63, s59, 896")
    e(f"s_mul_i32 s11, s76, {64*3584}")
    e("s_add_u32 s11, s11, s72")
    queue(("W",0))
    for _ in range(2): dmaq.popleft()()
    pr = G.Prof(e, 0); pr.stamp()
    e("v_and_b32 v40, 15, v0")
    e("s_lshl_b32 s56, s53, 5")
    e("s_lshl_b32 s57, s55, 4")
    e("s_add_u32 s78, s56, s57")
    e("v_add_u32 v41, s78, v40")
    e("v_lshlrev_b32 v42, 1, v41")
    tp = [e("buffer_load_ushort v43, v42, s[40:43], 0 offen"),
          e("buffer_load_ushort v44, v42, s[44:47], 0 offen"),
          e("buffer_load_ushort v45, v42, s[68:71], 0 offen")]
    e("v_lshrrev_b32 v34, 3, v0")
    e("v_and_b32 v35, 7, v0")
    e("v_mul_u32_u24 v36, 896, v34")
    e("v_lshl_add_u32 v36, v35, 4, v36")
    RB = 192
    labrb = e.label("K1_NORB")
    e("s_cmp_eq_u32 s60, 0")
    e(f"s_cbranch_scc1 {labrb}")
    e.cond_begin()
    for k in range(7): e(f"buffer_load_dwordx4 v[{RB+4*k}:{RB+4*k+3}], v36, s[92:95], s63 offen offset:{128*k}")
    e.cond_end()
    e.raw(f"{labrb}:")
    def rowbatch_compute():
        lab = e.label("K1_NORC")
        e("s_cmp_eq_u32 s60, 0")
        e(f"s_cbranch_scc1 {lab}")
        e.cond_begin()
        e.raw(f"s_waitcnt vmcnt({min(63, e.vm_issued - vm_at_rb)})")
        e("s_mov_b32 s58, 0x3f803f80")
        e("v_mov_b32 v220, 0"); e("v_mov_b32 v221, 0"); e("v_mov_b32 v222, 0"); e("v_mov_b32 v223, 0")
        for k in range(28):
            e(f"v_dot2c_f32_bf16 v{220 + (k&1)}, s58, v{RB+k}")
            e(f"v_dot2c_f32_bf16 v{222 + (k&1)}, v{RB+k}, v{RB+k}")
        e("s_nop 2")
        e("v_add_f32 v220, v220, v221")
        e("v_add_f32 v221, v222, v223")
        for r_ in (220, 221):
            e(f"v_add_f32_dpp v{r_}, v{r_}, v{r_} quad_perm:[1,0,3,2] row_mask:0xf bank_mask:0xf")
            e(f"v_add_f32_dpp v{r_}, v{r_}, v{r_} quad_perm:[2,3,0,1] row_mask:0xf bank_mask:0xf")
            e(f"v_add_f32_dpp v{r_}, v{r_}, v{r_} row_half_mirror row_mask:0xf bank_mask:0xf")
        e("v_mov_b32 v224, v220")
        e(f"v_mul_f32 v220, {f32(1.0/448)}, v220")
        e(f"v_mul_f32 v221, {f32(1.0/448)}, v221")
        e("v_fma_f32 v221, -v220, v220, v221")
        e("v_max_f32 v221, 0, v221")
        e("v_cvt_pk_bf16_f32 v220, v220, v221")
        e("v_and_b32 v221, 0xffff0000, v220")
        e("v_lshlrev_b32 v220, 16, v220")
        e(f"v_add_f32 v221, {f32(1e-5)}, v221")
        e("v_cvt_pk_bf16_f32 v221, v221, v221")
        e("v_lshlrev_b32 v221, 16, v221")
        e("v_sqrt_f32 v221, v221")
        e("v_cvt_pk_bf16_f32 v221, v221, v221")
        e("v_lshlrev_b32 v221, 16, v221")
        e.cond_end()
        e.raw(f"{lab}:")
    def rowbatch_publish():
        lab = e.label("K1_NORP"); labx = e.label("K1_RPX")
        e("s_cmp_eq_u32 s60, 0")
        e(f"s_cbranch_scc1 {lab}")
        e.cond_begin()
        e("v_lshrrev_b32 v226, 3, v0")
        e("v_add_u32 v226, s62, v226")
        e("v_and_b32 v227, 7, v0")
        e("v_cmp_eq_u32 vcc, 0, v227")
        e("s_and_saveexec_b64 s[58:59], vcc")
        e("s_cmp_eq_u32 s60, 1")
        e(f"s_cbranch_scc1 {labx}")
        e("v_lshlrev_b32 v226, 3, v226")
        e("v_mov_b32 v228, v224"); e("v_mov_b32 v229, s98")
        e(f"s_mov_b32 s61, {WS_CSB}")
        e("buffer_store_dwordx2 v[228:229], v226, s[32:35], s61 offen sc1")
        e("s_mov_b64 exec, s[58:59]")
        e(f"s_branch {lab}")
        e.raw(f"{labx}:")
        e("v_lshlrev_b32 v226, 4, v226")
        e("v_mov_b32 v228, v220"); e("v_mov_b32 v229, s98"); e("v_mov_b32 v230, v221"); e("v_mov_b32 v231, s98")
        e(f"s_mov_b32 s61, {WS_STAT}")
        e("buffer_store_dwordx4 v[228:231], v226, s[32:35], s61 offen sc1")
        e("s_mov_b64 exec, s[58:59]")
        e.cond_end()
        e.raw(f"{lab}:")
    RBWAIT = [0]
    vm_at_rb = e.vm_issued
    def rot_entry(t):
        e("s_add_u32 s76, s76, 1")
        e("s_cmp_eq_u32 s76, 7")
        e("s_cselect_b32 s76, 0, s76")
        e(f"s_lshl_b32 s{4+t}, s76, 7")
        e(f"s_mul_i32 s{11+t}, s76, {64*3584}")
        e(f"s_add_u32 s{4+t}, s{4+t}, s66")
        e(f"s_add_u32 s{11+t}, s{11+t}, s72")
    for t in range(1, 7): rot_entry(t)
    queue(("X",1),("Z",1),("W",1),("X",2),("Z",2),("W",2),("W",3))
    for _ in range(max(0, PRO_DMAS - 5)): dmaq.popleft()()
    if PSTAMP: pr.stamp()
    nonce_cas(e, 120)
    def issue_for_tick(tk):
        l = []
        if tk >= 1:
            if tk + 2 < 7: l += [("X", tk+2), ("Z", tk+2)]
            if tk + 3 < 14: l += [("W", tk+3)]
        return l

    e("v_and_b32 v34, 31, v0")
    e("v_lshrrev_b32 v35, 4, v34")
    e("v_bfe_u32 v36, v34, 2, 1")
    e("v_lshl_add_u32 v35, v36, 1, v35")
    e("v_bfe_u32 v36, v34, 3, 1")
    e("v_lshlrev_b32 v35, 3, v35")
    e("v_lshl_add_u32 v35, v36, 2, v35")
    e("v_and_b32 v36, 3, v34")
    e("v_add_u32 v35, v35, v36")
    e("v_lshrrev_b32 v36, 5, v0")
    e(f"v_lshl_add_u32 v{VH}, v36, 5, v35")
    e(f"v_lshlrev_b32 v{VH}, 4, v{VH}")
    e("s_lshl_b32 s56, s54, 5")
    e("v_add_u32 v37, s56, v35")
    e(f"v_lshlrev_b32 v{AX}, 7, v37")
    e("v_bfe_u32 v38, v35, 1, 3")
    e("v_xor_b32 v38, v38, v36")
    e(f"v_lshl_add_u32 v{AX}, v38, 4, v{AX}")
    for kk in range(1, 4): e(f"v_xor_b32 v{AX+kk}, {kk<<5}, v{AX}")
    e("v_bfe_u32 v38, v0, 4, 1")
    e(f"v_lshlrev_b32 v{AZr}, 12, v38")
    e("s_lshl_b32 s56, s55, 4")
    e("v_and_b32 v40, 15, v0")
    e("v_add_u32 v39, s56, v40")
    e(f"v_lshl_add_u32 v{AZr}, v39, 7, v{AZr}")
    e("v_bfe_u32 v39, v40, 1, 3")
    e("v_xor_b32 v39, v39, v36")
    e(f"v_lshl_add_u32 v{AZr}, v39, 4, v{AZr}")
    e(f"v_add_u32 v{AZr}, {ZR}, v{AZr}")
    for kk in range(1, 4): e(f"v_xor_b32 v{AZr+kk}, {kk<<5}, v{AZr}")
    e(f"v_lshlrev_b32 v{AW0}, 13, v38")
    e("v_lshrrev_b32 v39, 2, v40")
    e("v_lshl_add_u32 v39, v36, 3, v39")
    e(f"v_lshl_add_u32 v{AW0}, v39, 7, v{AW0}")
    e("v_lshrrev_b32 v39, 3, v40")
    e("v_lshl_add_u32 v39, v38, 1, v39")
    e("s_lshl_b32 s56, s55, 1")
    e("v_xor_b32 v39, s56, v39")
    e(f"v_lshl_add_u32 v{AW0}, v39, 5, v{AW0}")
    e("v_and_b32 v39, 3, v40")
    e(f"v_lshl_add_u32 v{AW0}, v39, 3, v{AW0}")
    e(f"v_add_u32 v{AW0}, {WR}, v{AW0}")
    e(f"v_xor_b32 v{AW1}, 32, v{AW0}")
    e("s_lshl_b32 s56, s52, 2")
    e("s_add_u32 s56, s56, s54")
    e("s_mul_i32 s56, s56, 112")
    e("s_lshl_b32 s57, s53, 3")
    e("s_add_u32 s56, s56, s57")
    e("s_lshl_b32 s57, s55, 1")
    e("s_add_u32 s56, s56, s57")
    e("s_lshl_b32 s79, s56, 10")
    if WS_HF: e(f"s_add_u32 s79, s79, {WS_HF}")

    def params():
        e.wait(tp); yield
        e("s_bitcmp1_b32 s54, 0"); e("s_cselect_b64 s[40:41], -1, 0")
        e("s_bitcmp1_b32 s54, 1"); e("s_cselect_b64 s[42:43], -1, 0")
        e("s_mov_b32 s44, 0xffff0000"); e("s_mov_b32 s45, 0xffff0000")
        e("s_mov_b32 s46, 0"); e("s_mov_b32 s47, -1")
        e("v_lshlrev_b32 v43, 16, v43"); yield
        e("v_lshlrev_b32 v44, 16, v44"); yield
        e("v_lshlrev_b32 v45, 16, v45"); yield
        e(f"v_mul_f32 v45, {f32(LOG2E)}, v45"); yield
        e("v_exp_f32 v45, v45"); yield
        e("v_cvt_pk_bf16_f32 v45, v45, v45"); yield
        e("v_lshlrev_b32 v45, 16, v45"); yield
        e("v_mul_f32 v34, v45, v43"); yield
        e("v_mul_f32 v35, v45, v44"); yield
        e(f"v_mul_f32 v34, {f32(LOG2E)}, v34"); yield
        e("v_exp_f32 v34, v34"); yield
        e(f"v_mul_f32 v35, {f32(1.0/(2*3.141592653589793))}, v35"); yield
        e("v_fract_f32 v35, v35"); yield
        e("v_cos_f32 v36, v35"); yield
        e("v_sin_f32 v37, v35"); yield
        e(f"v_mul_f32 v{LR}, v34, v36"); yield
        e(f"v_mul_f32 v{LI}, v34, v37"); yield
        e(f"v_add_f32 v36, -1.0, v{LR}"); yield
        e("v_mul_f32 v38, v43, v43"); yield
        e("v_fmac_f32 v38, v44, v44"); yield
        e("v_rcp_f32 v38, v38"); yield
        e("v_mul_f32 v39, v36, v43"); yield
        e(f"v_fmac_f32 v39, v{LI}, v44"); yield
        e(f"v_mul_f32 v34, v{LI}, v43"); yield
        e("v_fma_f32 v34, -v36, v44, v34"); yield
        e("v_add_f32 v38, v38, v38"); yield
        e(f"v_mul_f32 v{CR}, v39, v38"); yield
        e(f"v_mul_f32 v{CI}, v34, v38"); yield
        yield from csq(e, 34, 35, LR, LI, 38)
        yield from csq(e, 36, 37, 34, 35, 38)
        yield from csq(e, L8R, L8I, 36, 37, 38)
        e(f"v_mov_b32 v{TR}, 1.0"); yield
        e(f"v_mov_b32 v{TI}, 0"); yield
        e(f"v_mov_b32 v34, v{L8R}"); yield
        e(f"v_mov_b32 v35, v{L8I}"); yield
        for b, m in enumerate(("s[44:45]", "s[46:47]", "s[40:41]", "s[42:43]")):
            yield from cmul(e, 36, 37, TR, TI, 34, 35, 38)
            e(f"v_cndmask_b32 v{TR}, v{TR}, v36, {m}"); yield
            e(f"v_cndmask_b32 v{TI}, v{TI}, v37, {m}"); yield
            e("v_mov_b32 v41, v34"); yield
            e("v_mov_b32 v42, v35"); yield
            yield from csq(e, 34, 35, 41, 42, 38)
        e(f"v_mov_b32 v{L128R}, v34"); yield
        e(f"v_mov_b32 v{L128I}, v35"); yield

    def zbuf(ks): return 96 + (ks & 1)*4
    def wbufA(ks, tl): return 104 + (ks & 1)*8 + tl*4
    def wbufB(ks, tl): return FB + (ks & 1)*8 + tl*4
    first = {}
    def mfma(acc, a, b):
        c = f"v[{acc}:{acc+15}]" if first.get(acc) else "0"
        first[acc] = True
        e(f"v_mfma_f32_32x32x16_bf16 v[{acc}:{acc+15}], v[{a}:{a+3}], v[{b}:{b+3}], {c}")
    rd_tok = {}
    def read_x(ks):
        kk = ks & 3; kc = ks >> 2
        rd_tok[("x", ks)] = [e(f"ds_read_b128 v[{XF+4*ks}:{XF+4*ks+3}], v{AX+kk} offset:{(kc%3)*16384}")]
    def read_z(ks):
        kk = ks & 3; kc = ks >> 2
        rd_tok[("z", ks)] = [e(f"ds_read_b128 v[{zbuf(ks)}:{zbuf(ks)+3}], v{AZr+kk} offset:{(kc%3)*8192}")]
    def read_w(ph, ks, tl, half):
        kk = ks & 3; w = (ks >> 2) + (0 if ph == "A" else 7)
        b = wbufA(ks, tl) if ph == "A" else wbufB(ks, tl)
        ad = AW0 if tl == 0 else AW1
        off = (w % 4)*16384 + kk*2048
        t = e(f"ds_read_b64_tr_b16 v[{b+2*half}:{b+2*half+1}], v{ad} offset:{off+512*half}")
        rd_tok.setdefault((ph, ks, tl), []).append(t)
    steps = [("A", ks) for ks in range(28)] + [("B", ks) for ks in range(28)]
    def tick_idx(ph, ks): return (ks >> 2) + (0 if ph == "A" else 7)
    def need_ents(tk): return [("X",tk),("Z",tk),("W",tk)] if tk < 7 else [("W",tk)]
    nbar = [0]
    def enter_tick(tk):
        while any(x not in ent_tok for x in need_ents(tk)): dmaq.popleft()()
        e.wait([ent_tok[x] for x in need_ents(tk)])
        if tk == 1: nonce_publish(e, 120, M_N)
        e.wait_all(vm=False)
        e("s_barrier")
        nbar[0] += 1
        if tk == 1: nonce_read(e, 121, M_N)
        queue(*issue_for_tick(tk))

    def main_stream():
        if not RB_LATE: rowbatch_compute()
        if PSTAMP: pr.stamp()
        enter_tick(0)
        if PSTAMP: pr.stamp()
        read_x(0); read_w("A", 0, 0, 0); read_w("A", 0, 0, 1); read_z(0); read_w("A", 0, 1, 0); read_w("A", 0, 1, 1)
        for n, (ph, ks) in enumerate(steps):
            nx = steps[n+1] if n + 1 < len(steps) else None
            x = XF + 4*ks
            if ph == "A":
                ops = [(AG[0], wbufA(ks,0), x, [("x", ks), (ph, ks, 0)]), (AZ, x, zbuf(ks), [("z", ks)]), (AG[1], wbufA(ks,1), x, [(ph, ks, 1)])]
            else:
                ops = [(AG[2], wbufB(ks,0), x, [(ph, ks, 0)]), (AG[3], wbufB(ks,1), x, [(ph, ks, 1)])]
            for si, (acc, a, b, keys) in enumerate(ops):
                e.wait([rd_tok[k] for k in keys])
                mfma(acc, a, b)
                dma_ok = False
                if nx is not None:
                    ph2, ks2 = nx
                    if si == 0 and (ks2 & 3) == 0: enter_tick(tick_idx(ph2, ks2))
                    if ph2 == "A":
                        if si == 0: read_x(ks2); read_w("A", ks2, 0, 0)
                        elif si == 1: read_w("A", ks2, 0, 1); read_z(ks2)
                        else: read_w("A", ks2, 1, 0); read_w("A", ks2, 1, 1); dma_ok = True
                    elif ph == "A":
                        if si == 0: read_w("B", ks2, 0, 0); read_w("B", ks2, 0, 1)
                        elif si == 1: read_w("B", ks2, 1, 0); read_w("B", ks2, 1, 1)
                        else: dma_ok = True
                    else:
                        read_w("B", ks2, si, 0); read_w("B", ks2, si, 1)
                        dma_ok = (si == 1)
                did = False
                if (dma_ok or (len(dmaq) > DMA_HURRY)) and dmaq:
                    dmaq.popleft()(); did = True
                yield (ph, ks, si, did)

    aux = {}
    def tagcheck(regs):
        e(f"v_xor_b32 v44, s98, v{regs[0]}")
        for r in regs[1:]:
            e(f"v_xor_b32 v45, s98, v{r}")
            e("v_or_b32 v44, v44, v45")
        e("v_cmp_ne_u32 vcc, 0, v44")
        e("s_cmp_eq_u64 vcc, 0")
    AXW1, AXW2 = 3, 4
    def only_wave(w, name):
        lab = e.label(name)
        e(f"s_cmp_lg_u32 s48, {w}")
        e(f"s_cbranch_scc1 {lab}")
        e.cond_begin()
        return lab
    def end_only(lab):
        e.cond_end()
        e.raw(f"{lab}:")
    def aux1_issue_raw():
        e("s_lshl_b32 s61, s52, 11")
        e(f"s_add_u32 s61, s61, {WS_STAT}")
        e("v_lshlrev_b32 v120, 4, v0")
        e("buffer_load_dwordx4 v[36:39], v120, s[32:35], s61 offen sc1")
        e("buffer_load_dwordx4 v[40:43], v120, s[32:35], s61 offen offset:1024 sc1")
        e("v_lshrrev_b32 v121, 5, v0")
        e("v_mul_u32_u24 v121, 448, v121")
        e("v_and_b32 v122, 31, v0")
        e("v_add_u32 v121, v121, v122")
        e("s_lshl_b32 s61, s53, 5")
        e("v_add_u32 v121, s61, v121")
        e("v_lshlrev_b32 v121, 3, v121")
        e(f"s_mov_b32 s61, {WS_CSB}")
        e("buffer_load_dwordx2 v[124:125], v121, s[32:35], s61 offen sc1")
    def aux1_issue():
        lab = only_wave(AXW1, "K1_A1I")
        aux1_issue_raw()
        end_only(lab)
        aux["a1_vm"] = e.vm_issued
    def aux1_finish():
        lab = only_wave(AXW1, "K1_A1F")
        e.raw(f"s_waitcnt vmcnt({min(63, e.vm_issued - aux['a1_vm'])})")
        tagged_retry(e, aux1_issue_raw, lambda: tagcheck([37, 39, 41, 43, 125]), "K1_A1", cnt="s63")
        e("v_rcp_f32 v37, v38")
        e("v_rcp_f32 v41, v42")
        e("v_lshlrev_b32 v120, 3, v0")
        e(f"v_add_u32 v120, {M_ST}, v120")
        e("ds_write_b64 v120, v[36:37]")
        e("ds_write_b64 v120, v[40:41] offset:512")
        e("v_lshlrev_b32 v120, 2, v0")
        e(f"v_add_u32 v120, {M_SD}, v120")
        e("ds_write_b32 v120, v38")
        e("ds_write_b32 v120, v42 offset:256")
        e(f"ds_write_b32 v120, v124 offset:{M_CB - M_SD}")
        e.raw("s_waitcnt lgkmcnt(0)")
        end_only(lab)
    def aux1_read():
        e(f"v_and_b32 v34, 0x1f0, v{VH}"); yield
        e("v_lshrrev_b32 v34, 1, v34"); yield
        e("s_lshl_b32 s56, s54, 8")
        e(f"s_add_u32 s56, s56, {M_ST}")
        e("v_add_u32 v35, s56, v34"); yield
        t1 = e("ds_read_b64 v[36:37], v35"); yield
        e("v_lshrrev_b32 v34, 1, v34"); yield
        e("s_lshl_b32 s56, s54, 7")
        e(f"s_add_u32 s56, s56, {M_SD}")
        e("v_add_u32 v34, s56, v34"); yield
        t2 = e(f"ds_read_b32 v{SD}, v34"); yield
        e("v_and_b32 v34, 15, v0"); yield
        e("s_lshl_b32 s56, s55, 6")
        e(f"s_add_u32 s56, s56, {M_CB}")
        e("v_lshlrev_b32 v34, 2, v34"); yield
        e("v_add_u32 v34, s56, v34"); yield
        t3 = [e(f"ds_read_b32 v{CSR}, v34"), e(f"ds_read_b32 v{CSI}, v34 offset:128")]; yield
        e("v_lshrrev_b32 v34, 4, v0"); yield
        e("s_lshl_b32 s56, s54, 8")
        e(f"s_add_u32 s56, s56, {M_ST}")
        e("v_lshlrev_b32 v34, 6, v34"); yield
        e("v_add_u32 v34, s56, v34"); yield
        e.wait(t1); yield
        e(f"v_mov_b32 v{M_}, v36"); yield
        e(f"v_mul_f32 v{NLR}, {f32(-LOG2E)}, v37"); yield
        aux["st"] = [e("ds_read_b128 v[36:39], v34"), e("ds_read_b128 v[40:43], v34 offset:16")]
        aux["lane"] = [t2, t3]
        yield
    def aux2_issue_raw():
        e("s_lshl_b32 s61, s53, 10")
        e(f"s_add_u32 s61, s61, {WS_CSW}")
        e("v_lshlrev_b32 v136, 4, v0")
        e("buffer_load_dwordx4 v[128:131], v136, s[32:35], s61 offen sc1")
        e(f"s_add_u32 s61, s61, {1792*8}")
        e("buffer_load_dwordx4 v[132:135], v136, s[32:35], s61 offen sc1")
    def aux2_issue():
        lab = only_wave(AXW2, "K1_A2I")
        aux2_issue_raw()
        end_only(lab)
        aux["a2_vm"] = e.vm_issued
    def tagcheck2(regs):
        e(f"v_xor_b32 v137, s98, v{regs[0]}")
        for r in regs[1:]:
            e(f"v_xor_b32 v138, s98, v{r}")
            e("v_or_b32 v137, v137, v138")
        e("v_cmp_ne_u32 vcc, 0, v137")
        e("s_cmp_eq_u64 vcc, 0")
    def aux2_finish():
        lab = only_wave(AXW2, "K1_A2F")
        e.raw(f"s_waitcnt vmcnt({min(63, e.vm_issued - aux['a2_vm'])})")
        tagged_retry(e, aux2_issue_raw, lambda: tagcheck2([129, 131, 133, 135]), "K1_A2", cnt="s63")
        e("v_mov_b32 v129, v130")
        e("v_mov_b32 v133, v134")
        e("v_lshlrev_b32 v136, 3, v0")
        e(f"v_add_u32 v136, {M_CS}, v136")
        e("ds_write_b64 v136, v[128:129]")
        e("ds_write_b64 v136, v[132:133] offset:512")
        e.raw("s_waitcnt lgkmcnt(0)")
        end_only(lab)
    def cs_base():
        e("v_lshrrev_b32 v46, 5, v0"); yield
        e("v_lshlrev_b32 v46, 4, v46"); yield
        e("s_lshl_b32 s56, s55, 7")
        e(f"s_add_u32 s56, s56, {M_CS}")
        e("v_add_u32 v46, s56, v46"); yield
    def cs_reads(tl, CSB):
        o = (tl >> 1)*256 + (tl & 1)*64
        aux[("cs", tl)] = [e(f"ds_read_b128 v[{CSB}:{CSB+3}], v46 offset:{o}"),
                           e(f"ds_read_b128 v[{CSB+4}:{CSB+7}], v46 offset:{o+32}"),
                           e(f"ds_read_b128 v[{CSB+8}:{CSB+11}], v46 offset:{o+512}"),
                           e(f"ds_read_b128 v[{CSB+12}:{CSB+15}], v46 offset:{o+544}")]
        yield

    def z_pass1():
        e.wait(aux["lane"]); yield
        for i in range(8):
            e(f"v_permlane16_swap_b32 v{AZ+i}, v{AZ+8+i}"); yield
        st = list(aux["st"])
        for g in range(4):
            b = 36 + (g & 1)*4
            e.wait(st[g]); yield
            for u in range(2):
                i = 2*g + u; mm = b + 2*u
                e(f"v_fma_f32 v{AZ+i}, -v{mm}, v{CSR}, v{AZ+i}"); yield
                e(f"v_fma_f32 v{AZ+8+i}, -v{mm}, v{CSI}, v{AZ+8+i}"); yield
            for u in range(2):
                i = 2*g + u; rr = b + 2*u + 1
                e(f"v_mul_f32 v{AZ+i}, v{AZ+i}, v{rr}"); yield
                e(f"v_mul_f32 v{AZ+8+i}, v{AZ+8+i}, v{rr}"); yield
            if g + 2 < 4:
                st.append(e(f"ds_read_b128 v[{b}:{b+3}], v34 offset:{(g+2)*16}")); yield
        pr_, pi_ = AZ, AZ + 8
        for i in range(1, 8):
            d = (44, 45) if (i & 1) else (ER, EI)
            yield from cfma_to(e, d[0], d[1], pr_, pi_, LR, LI, AZ+i, AZ+8+i)
            pr_, pi_ = d
        e(f"v_mul_f32 v36, v{CI}, v45"); yield
        e(f"v_mul_f32 v37, v{CI}, v44"); yield
        e(f"v_fma_f32 v{ER}, v{CR}, v44, -v36"); yield
        e(f"v_fma_f32 v{EI}, v{CR}, v45, v37"); yield
    def hier1():
        e(f"v_mov_b32 v1, v{ER}"); yield
        e(f"v_mov_b32 v2, v{ER}"); yield
        e(f"v_mov_b32 v3, v{EI}"); yield
        e(f"v_mov_b32 v4, v{EI}"); yield
        yield from csq(e, 7, 8, L8R, L8I, 34)
        e("v_permlane16_swap_b32 v1, v2"); yield
        e("v_permlane16_swap_b32 v3, v4"); yield
        yield from cfma_to(e, 5, 6, 1, 3, L8R, L8I, 2, 4)
        e("v_mov_b32 v11, v5"); yield
        e("v_mov_b32 v12, v5"); yield
        e("v_mov_b32 v13, v6"); yield
        e("v_mov_b32 v34, v6"); yield
        e("v_and_b32 v35, 15, v0"); yield
        e("s_lshl_b32 s56, s55, 4")
        e("v_add_u32 v35, s56, v35"); yield
        e("v_lshlrev_b32 v35, 3, v35"); yield
        e("v_permlane32_swap_b32 v11, v12"); yield
        e("v_permlane32_swap_b32 v13, v34"); yield
        e(f"v_add_u32 v35, {M_SEG}, v35"); yield
        yield from cfma_to(e, 5, 6, 11, 13, 7, 8, 12, 34)
        e("s_lshl_b32 s56, s54, 8")
        e("v_add_u32 v34, s56, v35"); yield
        e("v_mov_b32 v44, v5"); yield
        e("v_mov_b32 v45, v6"); yield
        e("ds_write_b64 v34, v[44:45]"); yield
    def hier2():
        tk = [e(f"ds_read_b64 v[{36+2*u}:{37+2*u}], v35 offset:{u*256}") for u in range(3)]
        yield
        yield from csq(e, 42, 43, 7, 8, 44)
        e.wait(tk); yield
        yield from cfma_to(e, 44, 45, 36, 37, 42, 43, 38, 39)
        yield from cfma_to(e, 2, 4, 44, 45, 42, 43, 40, 41)
        e("v_cndmask_b32 v2, v44, v2, s[40:41]"); yield
        e("v_cndmask_b32 v4, v45, v4, s[40:41]"); yield
        e("v_cndmask_b32 v36, 0, v36, s[40:41]"); yield
        e("v_cndmask_b32 v37, 0, v37, s[40:41]"); yield
        e("v_cndmask_b32 v36, v36, v2, s[42:43]"); yield
        e("v_cndmask_b32 v37, v37, v4, s[42:43]"); yield
        lab = e.label("K1_NOPUB")
        e("s_cmp_lg_u32 s54, 3")
        e(f"s_cbranch_scc1 {lab}")
        e.cond_begin()
        for _ in cfma_to(e, 38, 40, 36, 37, 42, 43, 5, 6): pass
        e("v_mov_b32 v39, s98"); e("v_mov_b32 v41, s98")
        e("v_and_b32 v34, 15, v0")
        e("v_add_u32 v34, s78, v34")
        e("v_lshlrev_b32 v34, 4, v34")
        e(f"s_mul_i32 s56, s52, {448*16}")
        e(f"s_add_u32 s56, s56, {WS_E}")
        e("s_mov_b64 s[58:59], exec")
        e("s_mov_b64 exec, 0xffff")
        e("buffer_store_dwordx4 v[38:41], v34, s[32:35], s56 offen sc1")
        e("s_mov_b64 exec, s[58:59]")
        e.cond_end()
        e.raw(f"{lab}:")
        yield
        yield from cfma_to(e, 38, 39, 36, 37, 7, 8, 11, 13)
        e("v_cndmask_b32 v36, v36, v38, s[46:47]"); yield
        e("v_cndmask_b32 v37, v37, v39, s[46:47]"); yield
        yield from cfma_to(e, 38, 39, 36, 37, L8R, L8I, 1, 3)
        e(f"v_cndmask_b32 v{PR}, v36, v38, s[44:45]"); yield
        e(f"v_cndmask_b32 v{PI}, v37, v39, s[44:45]"); yield
    def zscale():
        for i in range(0, 8, 2):
            for u in range(2):
                e(f"v_mul_f32 v{36+2*u}, v{CI}, v{AZ+8+i+u}"); yield
                e(f"v_mul_f32 v{37+2*u}, v{CI}, v{AZ+i+u}"); yield
            for u in range(2):
                e(f"v_fma_f32 v{AZ+i+u}, v{CR}, v{AZ+i+u}, -v{36+2*u}"); yield
                e(f"v_fma_f32 v{AZ+8+i+u}, v{CR}, v{AZ+8+i+u}, v{37+2*u}"); yield
    def gu_math(acc, CSB):
        for i in range(8):
            e(f"v_fma_f32 v{acc+i}, -v{M_}, v{CSB+i}, v{acc+i}"); yield
        for i in range(8):
            e(f"v_mul_f32 v{acc+i}, v{acc+i}, v{NLR}"); yield
        for i in range(8):
            e(f"v_exp_f32 v{acc+i}, v{acc+i}"); yield
            e(f"v_fma_f32 v{acc+8+i}, -v{M_}, v{CSB+8+i}, v{acc+8+i}"); yield
        for i in range(8):
            e(f"v_fma_f32 v{acc+i}, v{acc+i}, v{SD}, v{SD}"); yield
        for i in range(8):
            e(f"v_rcp_f32 v{acc+i}, v{acc+i}"); yield
        for i in range(8):
            e(f"v_mul_f32 v{acc+i}, v{acc+i}, v{acc+8+i}"); yield
        for p in range(4):
            e(f"v_cvt_pk_bf16_f32 v{acc+8+p}, v{acc+2*p}, v{acc+2*p+1}"); yield
    def gu_epi(tl, CSB):
        acc = AG[tl]
        e.wait(aux[("cs", tl)]); yield
        yield from gu_math(acc, CSB)
        e(f"s_add_u32 s56, s79, {((tl>>1)*4 + (tl&1))*1024}")
        e(f"buffer_store_dwordx4 v[{acc+8}:{acc+11}], v{VH}, s[32:35], s56 offen{STF}"); yield

    M_PF = 162304
    def k2_touch(k, slot):
        PFT = 139 if slot < 18 else 160
        assert slot >= 6
        lab = e.label("K1_PF")
        e(f"s_cmp_lg_u32 s48, {k & 7}")
        e(f"s_cbranch_scc1 {lab}")
        e.cond_begin()
        if k < 7:
            e("s_mul_i32 s61, s51, 448"); e(f"s_add_u32 s61, s61, {64*k}"); base = "s[86:87]"; lim = 12543
        elif k < 9:
            e("s_mul_i32 s61, s51, 112"); e(f"s_add_u32 s61, s61, {64*(k-7)}"); base = "s[88:89]"; lim = 3135
        else:
            e("s_mul_i32 s61, s51, 112"); e(f"s_add_u32 s61, s61, {64*(k-9)}"); base = "s[90:91]"; lim = 3135
        e(f"v_add_u32 v{PFT}, s61, v0")
        e(f"v_min_u32 v{PFT}, {lim}, v{PFT}")
        e(f"s_mov_b32 m0, {M_PF}")
        e(f"v_lshlrev_b32 v{PFT}, 7, v{PFT}")
        e(f"global_load_lds_dword v{PFT}, {base}")
        e.cond_end()
        e.raw(f"{lab}:")
    EL = 160
    def e_issue_raw():
        e("v_lshrrev_b32 v180, 4, v0")
        e("v_and_b32 v181, 15, v0")
        e("v_add_u32 v181, s78, v181")
        e("v_lshlrev_b32 v181, 4, v181")
        e("s_sub_u32 s63, s52, 1")
        e(f"s_mov_b32 s61, {WS_E}")
        for m in range(4):
            e(f"v_add_u32 v{176+m}, {4*m}, v180")
            e(f"v_min_u32 v{176+m}, s63, v{176+m}")
            e(f"v_mul_u32_u24 v{176+m}, {448*16}, v{176+m}")
            e(f"v_add_u32 v{176+m}, v{176+m}, v181")
            e(f"buffer_load_dwordx4 v[{EL+4*m}:{EL+4*m+3}], v{176+m}, s[32:35], s61 offen sc1")
    def e_issue():
        lab = e.label("K1_EI")
        e("s_cmp_eq_u32 s52, 0")
        e(f"s_cbranch_scc1 {lab}")
        e.cond_begin(); e_issue_raw(); e.cond_end()
        e.raw(f"{lab}:")
    def e_consts():
        yield from csq(e, 182, 183, L128R, L128I, 188)
        yield from cmul(e, 184, 185, 182, 183, L128R, L128I, 188)
        yield from csq(e, 186, 187, 182, 183, 188)
        e("v_lshrrev_b32 v190, 4, v0"); yield
        e("s_sub_u32 s63, s52, 1")
        e("v_sub_u32 v190, s63, v190"); yield
        e("v_and_b32 v191, 3, v190"); yield
        e("v_ashrrev_i32 v190, 2, v190"); yield
        e("v_mov_b32 v192, 1.0"); yield
        e("v_mov_b32 v193, 0"); yield
        for k, (rr, ii) in enumerate(((L128R, L128I), (182, 183), (184, 185))):
            e(f"v_cmp_eq_u32 vcc, {k+1}, v191"); yield
            e(f"v_cndmask_b32 v192, v192, v{rr}, vcc"); yield
            e(f"v_cndmask_b32 v193, v193, v{ii}, vcc"); yield
    def e_check(nafter):
        skip = e.label("K1_ESK"); ok = e.label("K1_EOK"); chk = e.label("K1_ECK")
        e("s_cmp_eq_u32 s52, 0")
        e(f"s_cbranch_scc1 {skip}")
        e.cond_begin()
        e.raw(f"s_waitcnt vmcnt({nafter})")
        e("s_mov_b32 s62, 0")
        e.raw(f"{chk}:")
        e(f"v_xor_b32 v44, s98, v{EL+1}")
        for r in (EL+3, EL+5, EL+7, EL+9, EL+11, EL+13, EL+15):
            e(f"v_xor_b32 v45, s98, v{r}")
            e("v_or_b32 v44, v44, v45")
        e("v_cmp_ne_u32 vcc, 0, v44")
        e("s_cmp_eq_u64 vcc, 0")
        e(f"s_cbranch_scc1 {ok}")
        e("s_add_u32 s62, s62, 1")
        e("s_cmp_ge_u32 s62, 100000")
        e(f"s_cbranch_scc1 {ok}")
        e_issue_raw()
        e.raw("s_waitcnt vmcnt(0)")
        e(f"s_branch {chk}")
        e.raw(f"{ok}:")
        e.cond_end()
        e.raw(f"{skip}:")
    def carry_and_pass2():
        lab0 = e.label("K1_NOCARRY")
        e("v_mov_b32 v44, 0"); e("v_mov_b32 v45, 0")
        e("s_cmp_eq_u32 s52, 0")
        e(f"s_cbranch_scc1 {lab0}")
        for m in range(4):
            er, ei = EL+4*m, EL+4*m+2
            e(f"v_cmp_le_i32 vcc, {m}, v190")
            e(f"v_fma_f32 v{er}, v186, v44, v{er}")
            e(f"v_fma_f32 v{ei}, v186, v45, v{ei}")
            e(f"v_fma_f32 v{er}, -v187, v45, v{er}")
            e(f"v_fma_f32 v{ei}, v187, v44, v{ei}")
            e(f"v_cndmask_b32 v44, v44, v{er}, vcc")
            e(f"v_cndmask_b32 v45, v45, v{ei}, vcc")
        e("v_mul_f32 v40, v193, v45")
        e("v_mul_f32 v41, v193, v44")
        e("v_fma_f32 v44, v192, v44, -v40")
        e("v_fma_f32 v45, v192, v45, v41")
        e("v_mov_b32 v40, v44"); e("v_mov_b32 v41, v45")
        e("v_permlane16_swap_b32 v44, v40"); e("v_permlane16_swap_b32 v45, v41")
        e("v_add_f32 v44, v44, v40"); e("v_add_f32 v45, v45, v41")
        e("v_mov_b32 v40, v44"); e("v_mov_b32 v41, v45")
        e("v_permlane32_swap_b32 v44, v40"); e("v_permlane32_swap_b32 v45, v41")
        e("v_add_f32 v44, v44, v40"); e("v_add_f32 v45, v45, v41")
        e.raw(f"{lab0}:")
        e(f"v_fma_f32 v{PR}, v{TR}, v44, v{PR}")
        e(f"v_fma_f32 v{PI}, v{TR}, v45, v{PI}")
        e(f"v_fma_f32 v{PR}, -v{TI}, v45, v{PR}")
        e(f"v_fma_f32 v{PI}, v{TI}, v44, v{PI}")
        pr_, pi_ = PR, PI
        for i in range(8):
            zr, zi = AZ + i, AZ + 8 + i
            e(f"v_fma_f32 v{zr}, v{LR}, v{pr_}, v{zr}")
            e(f"v_fma_f32 v{zi}, v{LR}, v{pi_}, v{zi}")
            e(f"v_fma_f32 v{zr}, -v{LI}, v{pi_}, v{zr}")
            e(f"v_fma_f32 v{zi}, v{LI}, v{pr_}, v{zi}")
            pr_, pi_ = zr, zi
        for p in range(4):
            e(f"v_cvt_pk_bf16_f32 v{36+p}, v{AZ+2*p}, v{AZ+2*p+1}")
            e(f"v_cvt_pk_bf16_f32 v{40+p}, -v{AZ+8+2*p}, -v{AZ+8+2*p+1}")
        e("ds_write_b128 v1, v[36:39]")
        e("ds_write_b128 v1, v[40:43] offset:1024")
        e.wait_all(vm=False)
        tk = [e("ds_read_b64_tr_b16 v[36:37], v2"), e("ds_read_b64_tr_b16 v[38:39], v2 offset:256"),
              e("ds_read_b64_tr_b16 v[40:41], v2 offset:1024"), e("ds_read_b64_tr_b16 v[42:43], v2 offset:1280")]
        e.wait(tk)
        e(f"buffer_store_dwordx4 v[36:39], v3, s[32:35], s76 offen{STF}")
        e("s_add_u32 s76, s76, 4096")
        e(f"buffer_store_dwordx4 v[40:43], v3, s[32:35], s76 offen{STF}")
    def tail_addr():
        e("s_lshl_b32 s56, s48, 11")
        e(f"s_add_u32 s56, s56, {M_TR}")
        e("v_and_b32 v1, 15, v0"); yield
        e("v_lshlrev_b32 v1, 6, v1"); yield
        e("v_lshrrev_b32 v2, 4, v0"); yield
        e("v_lshl_add_u32 v1, v2, 4, v1"); yield
        e("v_add_u32 v1, s56, v1"); yield
        e("v_lshrrev_b32 v2, 5, v0"); yield
        e("v_bfe_u32 v3, v0, 2, 2"); yield
        e("v_lshl_add_u32 v2, v2, 3, v3"); yield
        e("v_lshlrev_b32 v2, 6, v2"); yield
        e("v_bfe_u32 v3, v0, 4, 1"); yield
        e("v_lshl_add_u32 v2, v3, 5, v2"); yield
        e("v_and_b32 v3, 3, v0"); yield
        e("v_lshl_add_u32 v2, v3, 3, v2"); yield
        e("v_add_u32 v2, s56, v2"); yield
        e("v_lshlrev_b32 v3, 4, v0"); yield
        e("s_lshl_b32 s56, s53, 1")
        e("s_add_u32 s56, s56, s55")
        e("s_lshr_b32 s57, s56, 2")
        e("s_lshl_b32 s57, s57, 3")
        e("s_and_b32 s56, s56, 3")
        e("s_add_u32 s56, s56, s57")
        e("s_lshl_b32 s57, s52, 2")
        e("s_add_u32 s57, s57, s54")
        e("s_mul_i32 s57, s57, 56")
        e("s_add_u32 s56, s56, s57")
        e("s_lshl_b32 s56, s56, 10")
        e(f"s_add_u32 s76, s56, {WS_hF}")
        yield

    def cost(i):
        if i.cls == "valu": return 2.0 if i.op in TRANS else 1.0
        if i.cls in ("ds", "vmem"): return 0.5
        return 0.1
    class Fill:
        def __init__(self): self.q = []; self.cur = None; self.barrier_at = None
        def add(self, *items): self.q += list(items)
        def run(self, budget, tick):
            spent = 0.0
            while spent < budget:
                if self.cur is None:
                    if not self.q: return
                    it = self.q[0]
                    if it == "barrier":
                        if self.barrier_at is None: self.barrier_at = tick
                        if tick <= self.barrier_at: return
                        self.barrier_at = None; self.q.pop(0); continue
                    if it == "aux2gate":
                        if "a2_tick" not in aux or tick <= aux["a2_tick"]: return
                        self.q.pop(0); continue
                    if it == "step17":
                        if tick < 13: return
                        self.q.pop(0); continue
                    self.q.pop(0); self.cur = it() if callable(it) else it
                n0 = len(e.ins)
                try: next(self.cur)
                except StopIteration: self.cur = None
                spent += sum(cost(i) for i in e.ins[n0:])
        def flush(self):
            while self.cur is not None or self.q:
                if self.cur is None:
                    it = self.q.pop(0)
                    if it == "step17": continue
                    if it == "barrier" or it == "aux2gate":
                        e.wait_all(vm=False); e("s_barrier"); self.barrier_at = None
                        continue
                    self.cur = it() if callable(it) else it
                for _ in self.cur: pass
                self.cur = None
    F = Fill()
    F.add(params)
    slot = {"A": 0, "B": 0}
    last = None
    for (ph, ks, si, did) in main_stream():
        if (ph, ks) != last and (ph, ks) in STAMPS: pr.stamp()
        last = (ph, ks)
        n = slot[ph]; slot[ph] += 1
        tk = nbar[0]
        if NOEPI:
            if ph == "A" and not did: F.run(BUDGET_A, tk)
            continue
        if ph == "A":
            if n == RB_SLOT and RB_LATE: rowbatch_compute()
            if n == PUB_SLOT: rowbatch_publish()
            if n == AUX_LOAD: F.flush(); aux1_issue()
            if n == AUX_FIN: aux1_finish(); F.add("barrier", aux1_read)
            if not did: F.run(BUDGET_A, tk)
        else:
            if n == 0:
                F.flush()
                if ZFIRST:
                    drain(z_pass1()); drain(hier1())
                    e.wait_all(vm=False); e("s_barrier")
                    drain(hier2())
                    F.add(zscale, cs_base, tail_addr, "aux2gate",
                          lambda: cs_reads(0, 128), lambda: cs_reads(1, 144), lambda: gu_epi(0, 128),
                          lambda: cs_reads(2, 128), lambda: gu_epi(1, 144), lambda: cs_reads(3, 144), "step17", e_consts)
                else:
                  F.add(z_pass1, hier1, "barrier", hier2, zscale, cs_base, "aux2gate",
                      lambda: cs_reads(0, 128), lambda: cs_reads(1, 144), lambda: gu_epi(0, 128),
                      lambda: cs_reads(2, 128), lambda: gu_epi(1, 144), lambda: cs_reads(3, 144), tail_addr)
            if n == AUX2_SLOT: aux2_issue()
            if n == AUX2_FIN: aux2_finish(); aux["a2_tick"] = tk
            if PF_SLOT >= 0 and n >= PF_SLOT and (n - PF_SLOT) % PF_GAP == 0 and (n - PF_SLOT) // PF_GAP < 11: k2_touch((n - PF_SLOT) // PF_GAP, n)
            if not did: F.run(BUDGET_B0 if n < 30 else BUDGET_B, tk)
    if NOEPI:
        pr.dump(32, 48)
        e.raw("K1_END:")
        e("s_endpgm")
        gen_helper(e)
        return 256
    e_issue(); aux["e_vm"] = e.vm_issued
    F.flush()
    if TAILST2: pr.stamp()
    if not ZFIRST: drain(e_consts())
    drain(gu_epi(2, 128))
    if TAILST2: pr.stamp()
    drain(gu_epi(3, 144))
    if TAILST: pr.stamp()
    e_check(e.vm_issued - aux["e_vm"])
    carry_and_pass2()
    pr.stamp()
    pr.dump(32, 48)
    if fused:
        if G.PROFILE: e("s_mov_b64 exec, -1")
        G.gen_k2(e, fused=True)
    e.raw("K1_END:")
    e("s_endpgm")
    gen_helper(e)
    return 256
```

```python
import sys
sys.path.insert(0, "dev")
from asmlib import *

NAME = "recurrent_scan__ssm_conv_s5__glu_gated_glu__prompt"
WS_HF   = 0
WS_hF   = 64*112*1024
WS_STAT = WS_hF + 64*56*1024
WS_CSW  = WS_STAT + 2048*16
WS_CSB  = WS_CSW + 3584*8
WS_E    = WS_CSB + 896*8
WS_DONE = WS_E + 16*448*16
WS_END  = WS_DONE + 16*128
LOG2E = 1.4426950408889634
import struct, os
def f32(x): return "0x%08x" % struct.unpack("<I", struct.pack("<f", x))[0]

def srd(e, s, ptr, nbytes):
    e(f"s_mov_b32 s{s}, s{ptr}")
    e(f"s_and_b32 s{s+1}, s{ptr+1}, 0xffff")
    e(f"s_mov_b32 s{s+2}, {nbytes}")
    e(f"s_mov_b32 s{s+3}, 0x20000")

def bf16_round_pair(e, dst_lo, dst_hi, a, b, tmp):
    e(f"v_cvt_pk_bf16_f32 v{tmp}, v{a}, v{b}")
    yield
    e(f"v_lshlrev_b32 v{dst_lo}, 16, v{tmp}")
    yield
    e(f"v_and_b32 v{dst_hi}, 0xffff0000, v{tmp}")
    yield

PROFILE = False
WS_PROF = 12 << 20
class Prof:
    def __init__(self, e, kern): self.e = e; self.k = kern; self.n = 0
    def stamp(self):
        if not PROFILE: return
        e = self.e
        import os
        e.raw("s_memtime s[96:97]" if os.environ.get("CLK") == "cyc" else "s_memrealtime s[96:97]")
        e.raw("s_waitcnt lgkmcnt(0)"); e.lg_done = e.lg_issued
        e.raw(f"s_mov_b32 s{80+self.n}, s96"); self.n += 1
        assert self.n <= ((6 if not os.environ.get('NOPF') else 12) if self.k == 0 else 12)
    def dump(self, srd_ws, wave_s):
        if not PROFILE: return
        e = self.e
        e(f"s_lshl_b32 s96, s2, 3"); e(f"s_add_u32 s96, s96, s{wave_s}"); e("s_lshl_b32 s96, s96, 6")
        e(f"s_add_u32 s96, s96, {WS_PROF + self.k*256*8*64}")
        for i in range(16):
            e(f"v_mov_b32 v{200+i}, s{80+i}" if i < self.n else f"v_mov_b32 v{200+i}, 0")
        e("v_mov_b32 v216, 0")
        e("s_mov_b64 exec, 1")
        for q in range(4):
            e(f"buffer_store_dwordx4 v[{200+4*q}:{203+4*q}], v216, s[{srd_ws}:{srd_ws+3}], s96 offen offset:{16*q}")
        e("s_waitcnt vmcnt(0)")

def pull(gen, n):
    if gen is None: return None
    for _ in range(n):
        try: next(gen)
        except StopIteration: return None
    return gen
def drain(gen):
    if gen is None: return
    for _ in gen: pass

K2_R = 9
K2_STAGE = 16384
def gen_k2(e, fused=False):
    global K2_R
    R_ = 8 if fused else K2_R
    if not fused:
        e.raw("k2_kernel:")
        e("s_cmp_ge_u32 s2, 224")
        e("s_cbranch_scc1 K2_END")
    else:
        e("s_lshl_b32 s76, s52, 7")
        e(f"s_add_u32 s76, s76, {WS_DONE}")
        e("s_lshl_b32 s79, s53, 2")
        e("s_and_b32 s71, s52, 3")
        e("s_cmp_ge_u32 s53, 7")
        e("s_cselect_b32 s49, 1, 0")
        e("s_cselect_b32 s50, 7, 0")
        e("s_sub_u32 s50, s53, s50")
        e("s_lshl_b32 s51, s52, 1")
        e("s_add_u32 s49, s49, s51")
        e("s_mov_b32 s72, s32"); e("s_mov_b32 s73, s33"); e("s_mov_b32 s74, s34"); e("s_mov_b32 s75, s35")
    e("s_load_dwordx2 s[4:5], s[0:1], 0")
    e("s_load_dwordx2 s[6:7], s[0:1], 40")
    e("s_load_dwordx2 s[8:9], s[0:1], 48")
    e("s_load_dwordx2 s[10:11], s[0:1], 64")
    e("s_load_dwordx2 s[12:13], s[0:1], 96")
    e("s_load_dwordx2 s[14:15], s[0:1], 104")
    t = e("s_load_dwordx2 s[16:17], s[0:1], 120")
    if not fused:
        e("v_lshrrev_b32 v1, 6, v0")
        e("v_and_b32 v0, 63, v0")
        e("v_readfirstlane_b32 s48, v1")
        e("s_and_b32 s49, s2, 7")
        e("s_lshl_b32 s49, s49, 2")
        e("s_lshr_b32 s50, s2, 3")
        e("s_and_b32 s51, s50, 3")
        e("s_mov_b32 s71, s51")
        e("s_add_u32 s49, s49, s51")
        e("s_lshr_b32 s50, s50, 2")
    e.wait(t)
    srd(e, 20, 4, 2048*448*2)
    srd(e, 24, 6, 448*448*2)
    srd(e, 28, 8, 448*448*2)
    srd(e, 32, 10, 448*2)
    srd(e, 36, 12, 1792*448*2)
    srd(e, 40, 14, 2048*448*4)
    srd(e, 44, 16, WS_END if not PROFILE else (16 << 20))
    if fused:
        e.raw("s_waitcnt vmcnt(2) lgkmcnt(0)")
        e("s_barrier")
        lab = e.label("F_NOADD")
        e("s_cmp_lg_u32 s48, 0")
        e(f"s_cbranch_scc1 {lab}")
        e("v_mov_b32 v2, s79")
        e("v_mov_b32 v3, s98")
        e("s_mov_b64 exec, 1")
        e("buffer_store_dword v3, v2, s[72:75], s76 offen sc1")
        e("s_mov_b64 exec, -1")
        e.raw(f"{lab}:")
        e.lg_issued = e.lg_done = 0; e.vm_issued = e.vm_done = 0
    pr = Prof(e, 1); pr.stamp()
    e("s_cmp_ge_u32 s48, 4")
    e("s_cbranch_scc1 K2_LOADER")
    e("s_and_b32 s52, s48, 1")
    e("s_lshr_b32 s53, s48, 1")
    e("v_and_b32 v1, 31, v0")
    e("v_lshrrev_b32 v2, 5, v0")
    e("v_and_b32 v3, 15, v0")
    e("v_lshrrev_b32 v4, 4, v0")
    e("s_lshl_b32 s54, s49, 6")
    e("s_lshl_b32 s55, s52, 5")
    e("s_add_u32 s54, s54, s55")
    e("v_add_u32 v5, s54, v1")
    e("s_lshl_b32 s55, s50, 6")
    e("s_lshl_b32 s56, s53, 5")
    e("s_add_u32 s55, s55, s56")
    e("v_lshlrev_b32 v6, 2, v2")
    e("v_add_u32 v6, s55, v6")
    e("s_movk_i32 s57, 896")
    e("v_mul_lo_u32 v7, s57, v5")
    e("v_lshlrev_b32 v8, 1, v6")
    e("v_add_u32 v7, v7, v8")
    e("v_lshlrev_b32 v9, 4, v5")
    e(f"v_add_u32 v9, {WS_STAT}, v9")
    e("v_lshlrev_b32 v10, 1, v7")
    XR, DK, ST = 16, 24, 192
    toks = []
    for a in range(4): toks.append(e(f"buffer_load_dwordx2 v[{XR+2*a}:{XR+2*a+1}], v7, s[20:23], 0 offen offset:{16*a}"))
    for a in range(4): toks.append(e(f"buffer_load_dwordx2 v[{DK+2*a}:{DK+2*a+1}], v8, s[32:35], 0 offen offset:{16*a}"))
    toks.append(e(f"buffer_load_dwordx4 v[{ST}:{ST+3}], v9, s[44:47], 0 offen" + (" sc1" if fused else "")))
    epi_toks = toks
    e("s_lshl_b32 s57, s52, 12")
    e("v_lshlrev_b32 v11, 4, v0")
    e("v_add_u32 v11, s57, v11")
    e("v_lshrrev_b32 v13, 2, v3")
    e("v_lshl_add_u32 v13, v2, 2, v13")
    e("v_lshlrev_b32 v12, 7, v13")
    e("v_and_b32 v13, 1, v4")
    e("s_lshl_b32 s57, s53, 1")
    e("v_add_u32 v13, s57, v13")
    e("v_lshrrev_b32 v14, 3, v3")
    e("v_lshlrev_b32 v14, 1, v14")
    e("v_xor_b32 v13, v13, v14")
    e("v_lshl_add_u32 v12, v13, 5, v12")
    e("v_and_b32 v13, 3, v3")
    e("v_lshl_add_u32 v12, v13, 3, v12")
    e("v_add_u32 v12, 8192, v12")
    e("s_lshl_b32 s57, s53, 5")
    e("v_add_u32 v13, s57, v1")
    e("v_lshlrev_b32 v13, 7, v13")
    e("v_lshrrev_b32 v14, 1, v1")
    e("v_and_b32 v14, 7, v14")
    e("v_xor_b32 v14, v14, v2")
    e("v_lshl_add_u32 v13, v14, 4, v13")
    e("v_add_u32 v13, 8192, v13")
    PH, PW, PC = 11, 12, 13
    TH, TW = 14, 15
    ACCO, ACCY = 64, 80
    FR = 96
    XF, SK, G = 34, 160, 176
    T0 = 50
    def hfrag(set_, kk): return FR + set_*32 + kk*8
    def wfrag(set_, kk): return FR + set_*32 + kk*8 + 4

    def pre_epi():
        e.wait(epi_toks)
        yield
        e(f"v_rcp_f32 v{T0}, v{ST+2}")
        yield
        for p in range(8):
            xa, xb = XF+2*p, XF+2*p+1
            e(f"v_lshlrev_b32 v{xa}, 16, v{XR+p}"); yield
            e(f"v_and_b32 v{xb}, 0xffff0000, v{XR+p}"); yield
            e(f"v_sub_f32 v{T0+1}, v{xa}, v{ST}"); yield
            e(f"v_sub_f32 v{T0+2}, v{xb}, v{ST}"); yield
            yield from bf16_round_pair(e, T0+1, T0+2, T0+1, T0+2, T0+3)
            e(f"v_mul_f32 v{T0+1}, v{T0+1}, v{T0}"); yield
            e(f"v_mul_f32 v{T0+2}, v{T0+2}, v{T0}"); yield
            yield from bf16_round_pair(e, T0+1, T0+2, T0+1, T0+2, T0+3)
            e(f"v_lshlrev_b32 v{T0+4}, 16, v{DK+p}"); yield
            e(f"v_and_b32 v{T0+5}, 0xffff0000, v{DK+p}"); yield
            e(f"v_mul_f32 v{T0+1}, v{T0+1}, v{T0+4}"); yield
            e(f"v_mul_f32 v{T0+2}, v{T0+2}, v{T0+5}"); yield
            yield from bf16_round_pair(e, SK+2*p, SK+2*p+1, T0+1, T0+2, T0+3)
    def silu_epi():
        for p in range(8):
            a, b = T0+1, T0+2
            yield from bf16_round_pair(e, a, b, ACCO+2*p, ACCO+2*p+1, T0+3)
            e(f"v_mul_f32 v{T0+4}, {f32(-LOG2E)}, v{a}"); yield
            e(f"v_mul_f32 v{T0+5}, {f32(-LOG2E)}, v{b}"); yield
            e(f"v_exp_f32 v{T0+4}, v{T0+4}"); yield
            e(f"v_exp_f32 v{T0+5}, v{T0+5}"); yield
            e(f"v_add_f32 v{T0+4}, 1.0, v{T0+4}"); yield
            e(f"v_add_f32 v{T0+5}, 1.0, v{T0+5}"); yield
            e(f"v_rcp_f32 v{T0+4}, v{T0+4}"); yield
            e(f"v_rcp_f32 v{T0+5}, v{T0+5}"); yield
            e(f"v_mul_f32 v{a}, v{a}, v{T0+4}"); yield
            e(f"v_mul_f32 v{b}, v{b}, v{T0+5}"); yield
            yield from bf16_round_pair(e, G+2*p, G+2*p+1, a, b, T0+3)

    NST = 42
    fill = pre_epi()
    first = {ACCO: True, ACCY: True}
    def mfmas(t):
        acc = ACCO if t < 28 else ACCY
        for kk in range(4):
            c = "0" if first[acc] else f"v[{acc}:{acc+15}]"
            first[acc] = False
            e(f"v_mfma_f32_32x32x16_bf16 v[{acc}:{acc+15}], v[{wfrag(t&1,kk)}:{wfrag(t&1,kk)+3}], v[{hfrag(t&1,kk)}:{hfrag(t&1,kk)+3}], {c}")
            yield
    for t in range(NST + 1):
        if t < NST:
            if fused and t == 3: e.raw("s_waitcnt vmcnt(0)"); e.vm_done = e.vm_issued
            e("s_barrier")
            if fused and t == 3:
                lab = e.label("F_NOH")
                e("s_cmp_lg_u32 s48, 0")
                e(f"s_cbranch_scc1 {lab}")
                e.cond_begin()
                e("v_mov_b32 v56, s79")
                e("v_mov_b32 v57, s98")
                e("s_mov_b64 exec, 1")
                e("buffer_store_dword v57, v56, s[72:75], s76 offen offset:64 sc1")
                e("s_mov_b64 exec, -1")
                e.cond_end()
                e.raw(f"{lab}:")
            if t in (0, 1, 8, 16, 28, 41): pr.stamp()
            base = (t % R_) * K2_STAGE
            e(f"v_add_u32 v{TH}, {base}, v{PH}")
            if t < 28: e(f"v_add_u32 v{TW}, {base}, v{PW}")
            else:      e(f"v_add_u32 v{TW}, {base}, v{PC}")
        mf = mfmas(t-1) if t >= 1 else None
        for kk in range(4):
            if t < NST:
                e(f"ds_read_b128 v[{hfrag(t&1,kk)}:{hfrag(t&1,kk)+3}], v{TH} offset:{kk*1024}")
                w = wfrag(t&1,kk)
                if t < 28:
                    e(f"ds_read_b64_tr_b16 v[{w}:{w+1}], v{TW} offset:{kk*2048}")
                    e(f"ds_read_b64_tr_b16 v[{w+2}:{w+3}], v{TW} offset:{kk*2048+1024}")
                else:
                    if kk == 0: e(f"ds_read_b128 v[{w}:{w+3}], v{TW}")
                    else:
                        e(f"v_xor_b32 v{T0+8}, {kk<<5}, v{TW}")
                        e(f"ds_read_b128 v[{w}:{w+3}], v{T0+8}")
            if mf is not None: mf = pull(mf, 1)
            fill = pull(fill, 6)
        if t == 29:
            drain(fill); fill = silu_epi()
        if t < NST: e.wait_all(vm=False, lg=True)
    drain(fill)
    for i in range(16):
        e(f"v_add_f32 v{SK+i}, v{ACCY+i}, v{SK+i}")
    for i in range(16):
        e(f"v_fma_f32 v{SK+i}, v{SK+i}, v{G+i}, v{XF+i}")
    for a in range(4):
        e(f"buffer_store_dwordx4 v[{SK+4*a}:{SK+4*a+3}], v10, s[40:43], 0 offen offset:{32*a}")
    pr.stamp()
    if PROFILE: e("s_waitcnt vmcnt(0)")
    pr.stamp()
    pr.dump(44, 48)
    e("s_endpgm")
    e2 = e
    e.raw("K2_LOADER:")
    e.lg_issued = e.lg_done = 0; e.vm_issued = e.vm_done = 0
    e("s_sub_u32 s52, s48, 4")
    e("s_and_b32 s53, s52, 1")
    e("s_lshr_b32 s54, s52, 1")
    e("v_lshlrev_b32 v1, 4, v0")
    e("v_lshrrev_b32 v2, 3, v0")
    e("s_lshl_b32 s55, s52, 4")
    e("v_add_u32 v2, s55, v2")
    e("s_movk_i32 s55, 896")
    e("v_mul_lo_u32 v2, s55, v2")
    e("v_and_b32 v3, 7, v0")
    e("v_lshrrev_b32 v4, 4, v0")
    e("v_and_b32 v5, 1, v4")
    e("v_lshlrev_b32 v5, 2, v5")
    e("v_xor_b32 v5, v5, v3")
    e("v_lshl_add_u32 v5, v5, 4, v2")
    e("v_xor_b32 v6, v4, v3")
    e("v_lshl_add_u32 v6, v6, 4, v2")
    e("v_add_u32 v7, 4, v4")
    e("v_xor_b32 v7, v7, v3")
    e("v_lshl_add_u32 v7, v7, 4, v2")
    e(f"v_add_u32 v7, {8*896}, v7")
    e("s_lshl_b32 s58, s49, 1")
    e("s_add_u32 s58, s58, s53")
    e("s_lshl_b32 s59, s54, 1")
    e("s_mul_i32 s56, s58, 112")
    e("s_add_u32 s56, s56, s59")
    e("s_lshl_b32 s56, s56, 10")
    if WS_HF: e(f"s_add_u32 s56, s56, {WS_HF}")
    e("s_mul_i32 s57, s58, 56")
    e("s_add_u32 s57, s57, s59")
    e("s_lshl_b32 s57, s57, 10")
    e(f"s_add_u32 s57, s57, {WS_hF}")
    e("s_lshl_b32 s60, s53, 2")
    e("s_add_u32 s60, s60, s59")
    e("s_lshl_b32 s60, s60, 10")
    e("s_lshl_b32 s61, s52, 11")
    e("s_add_u32 s61, s61, 8192")
    e("s_lshl_b32 s62, s50, 7")
    e(f"s_mul_i32 s63, s50, {64*896}")
    if os.environ.get("K2ROT", "1") == "1":
        e("s_mul_i32 s65, s71, 7")
        e("s_lshl_b32 s68, s50, 2")
        e("s_add_u32 s65, s65, s68")
        e("s_cmp_ge_u32 s65, 28")
        e("s_cselect_b32 s68, 28, 0")
        e("s_sub_u32 s65, s65, s68")
        e("s_lshl_b32 s66, s71, 1")
        e("s_add_u32 s66, s66, s50")
        e("s_cmp_ge_u32 s66, 7")
        e("s_cselect_b32 s68, 7, 0")
        e("s_sub_u32 s66, s66, s68")
    else:
        e("s_mov_b32 s65, 0"); e("s_mov_b32 s66, 0")
    e("s_mov_b32 s77, s65"); e("s_mov_b32 s78, s66")
    stage_tok = {}
    AFL = " sc1" if (fused and os.environ.get("ASC1", "0") == "1") else ""
    def adv(t, o, m):
        if t < 28:
            e(f"s_add_u32 s{o}, s{o}, 1"); e(f"s_cmp_eq_u32 s{o}, 28"); e(f"s_cselect_b32 s{o}, 0, s{o}")
        elif (t - 28) & 1:
            e(f"s_add_u32 s{m}, s{m}, 1"); e(f"s_cmp_eq_u32 s{m}, 7"); e(f"s_cselect_b32 s{m}, 0, s{m}")
    def issueA(t):
        base = (t % R_) * K2_STAGE
        if t < 28:
            e("s_lshl_b32 s69, s65, 12")
            e("s_add_u32 s69, s69, s56")
        else:
            e("s_lshl_b32 s69, s66, 13")
            e("s_add_u32 s69, s69, s57")
            if (t - 28) & 1: e("s_add_u32 s69, s69, 4096")
        for a in range(2):
            e(f"s_add_u32 m0, s60, {base + a*1024}")
            if a: e("s_add_u32 s69, s69, 1024")
            tok = e(f"buffer_load_dwordx4 v1, s[44:47], s69 offen{AFL} lds")
        adv(t, 65, 66)
        return tok
    def issueB(t):
        base = (t % R_) * K2_STAGE
        part = (t - 28) & 1
        if t < 28:
            e(f"s_mul_i32 s70, s77, {64*896}")
            e("s_add_u32 s70, s70, s62")
        else:
            e("s_lshl_b32 s70, s78, 7")
            e("s_add_u32 s70, s70, s63")
        for a in range(2):
            e(f"s_add_u32 m0, s61, {base + a*1024}")
            if t < 28:
                if a: e("s_add_u32 s70, s70, 7168")
                tok = e("buffer_load_dwordx4 v5, s[36:39], s70 offen lds")
            else:
                tok = e(f"buffer_load_dwordx4 v{6+a}, s[{24+4*part}:{27+4*part}], s70 offen lds")
        adv(t, 77, 78)
        return tok
    def poll(off):
        top = e.label("F_POLL"); ok = e.label("F_POLLOK")
        e("v_and_b32 v8, 15, v0")
        e("v_min_u32 v8, 13, v8")
        e("v_lshlrev_b32 v8, 2, v8")
        e("s_mov_b32 s80, 0" if not PROFILE else "s_mov_b32 s95, 0")
        c = "s80" if not PROFILE else "s95"
        e.raw(f"{top}:")
        e(f"buffer_load_dword v9, v8, s[44:47], s76 offen offset:{off} sc1")
        e.raw("s_waitcnt vmcnt(0)")
        e("v_cmp_ne_u32 vcc, s98, v9")
        e("s_cmp_eq_u64 vcc, 0")
        e(f"s_cbranch_scc1 {ok}")
        e(f"s_add_u32 {c}, {c}, 1")
        e(f"s_cmp_lt_u32 {c}, 200000")
        e(f"s_cbranch_scc1 {top}")
        e.raw(f"{ok}:")
        e.vm_done = e.vm_issued
    def poll_issue(off):
        return e(f"buffer_load_dword v9, v8, s[44:47], s76 offen offset:{off} sc1")
    def poll_check(tok, off):
        ok = e.label("F_PCOK")
        e.wait(tok)
        e("v_cmp_ne_u32 vcc, s98, v9")
        e("s_cmp_eq_u64 vcc, 0")
        e(f"s_cbranch_scc1 {ok}")
        e.cond_begin()
        poll(off)
        e.cond_end()
        e.raw(f"{ok}:")
    pr = Prof(e, 1); pr.n = 1
    PRO = int(os.environ.get("K2PRO", "2"))
    nxt = 0
    if fused:
        NB = R_ - 1
        for t in range(NB): issueB(t)
        poll(0)
        e.vm_done = e.vm_issued
        nB = NB
        for t in range(PRO): stage_tok[t] = issueA(t); nxt += 1
    else:
        nB = 0
        for t in range(PRO):
            issueA(t); stage_tok[t] = issueB(t); nxt += 1; nB += 1
    pr.stamp()
    for t in range(NST):
        e.wait(stage_tok[t])
        if t in (0, 1, 8, 16, 28, 41): pr.stamp()
        e("s_barrier")
        k = 0
        while nxt < NST and nxt <= t + R_ - 1 and k < 2:
            if fused and nxt == 24: ptok = poll_issue(64)
            if fused and nxt == 28: poll_check(ptok, 64)
            tok = issueA(nxt)
            if nxt >= nB:
                tok = issueB(nxt); nB += 1
            stage_tok[nxt] = tok
            nxt += 1; k += 1
    pr.dump(44, 48)
    e.raw("K2_END:")
    e("s_endpgm")

def kd(name, vgpr, sgpr=102):
    acc = (vgpr + 3)//4*4
    return f""".amdhsa_kernel {name}
  .amdhsa_next_free_vgpr {vgpr}
  .amdhsa_next_free_sgpr {sgpr}
  .amdhsa_accum_offset {acc}
  .amdhsa_group_segment_fixed_size 0
  .amdhsa_kernarg_size 128
  .amdhsa_user_sgpr_count 2
  .amdhsa_user_sgpr_kernarg_segment_ptr 1
  .amdhsa_system_sgpr_workgroup_id_x 1
.end_amdhsa_kernel"""

def main():
    global PROFILE
    which = sys.argv[2] if len(sys.argv) > 2 else "k2"
    if len(sys.argv) > 3 and "prof" in sys.argv[3]: PROFILE = True
    hdr = open(f"cdna_kernels/{NAME}.s.ref").read().split("; Override launch")[0]
    out = [hdr.rstrip()]
    kernels = []
    fused = "fused" in which
    KN = NAME + "_kernel" if fused else "k1_kernel"
    if fused:
        if os.environ.get("PLAIN", "0") == "1": out.append("; @launch grid=(256,1,1) block=(512,1,1) lds=163840")
        else: out.append(f"; @launch kernel={KN} grid=(256,1,1) block=(512,1,1) lds=163840")
    else:
        if "k1" in which:
            out.append("; @launch kernel=k1_kernel grid=(256,1,1) block=(512,1,1) lds=163840")
        if "k2" in which:
            out.append(f"; @launch kernel=k2_kernel grid=(224,1,1) block=(512,1,1) lds={K2_R*K2_STAGE}")
    out.append('.amdgcn_target "amdgcn-amd-amdhsa--gfx950"\n.text')
    kds = []
    if fused:
        import gen_k1b as gen_k1
        gen_k1.G.PROFILE = PROFILE
        e = Emit(); vg = gen_k1.gen_k1(e, fused=True, kname=KN)
        out.append(f".globl {KN}\n.p2align 8\n.type {KN},@function"); out.append(e.finish()); kds.append(kd(KN, vg))
    else:
        if "k1" in which:
            import gen_k1b as gen_k1
            gen_k1.G.PROFILE = PROFILE
            e = Emit(); vg = gen_k1.gen_k1(e)
            out.append(".globl k1_kernel\n.p2align 8\n.type k1_kernel,@function"); out.append(e.finish()); kds.append(kd("k1_kernel", vg))
        if "k2" in which:
            e = Emit(); gen_k2(e)
            out.append(".globl k2_kernel\n.p2align 8\n.type k2_kernel,@function"); out.append(e.finish()); kds.append(kd("k2_kernel", 200 if not PROFILE else 224))
    out.append('.section .rodata,"a"\n.p2align 6')
    out.append("\n.p2align 6\n".join(kds))
    open(sys.argv[1], "w").write("\n".join(out) + "\n")
if __name__ == "__main__": main()
```

```python
import sys, os
sys.path.insert(0, "dev")
from asmlib import *
import gen as G
from gen import *
from k1_common import *
from collections import deque

env = lambda k, d: type(d)(os.environ.get(k, d)) if not isinstance(d, bool) else os.environ.get(k, "1" if d else "0") == "1"
STAMPS = eval(os.environ.get("STAMPS", '[("A",0),("A",27),("B",0),("B",27)]'))
NOEPI = env("NOEPI", False); NODMA = env("NODMA", False)
PRO_DMAS = env("PRO_DMAS", 10); COOP = env("COOP", False); ROT = env("ROT", not COOP)
CT2 = env("CT2", 1); CT3 = env("CT3", 22); CT4 = env("CT4", 34)
EB_SLOT = env("EB_SLOT", 4); EB_GAP = env("EB_GAP", 6); EBV = 13
PF_GAP = env("PF_GAP", 4); PF_SLOT = env("PF_SLOT", -1); AUX2_SLOT = env("AUX2_SLOT", 6); E_SLOT = env("E_SLOT", 48)
AUX2_FIN = env("AUX2_FIN", 26)
AUX_LOAD = env("AUX_LOAD", 50); AUX_FIN = env("AUX_FIN", 68); PUB_SLOT = env("PUB_SLOT", 11)
BUDGET_A = env("BUDGET_A", 4.0); BUDGET_B = env("BUDGET_B", 6.0); BUDGET_B0 = env("BUDGET_B0", 7.0)

DMAFLAG = os.environ.get("DMAFLAG", "")
if DMAFLAG: DMAFLAG = " " + DMAFLAG
ZFIRST = env("ZFIRST", False); TAILST2 = env("TAILST2", False); TAILST = env("TAILST", True); PSTAMP = env("PSTAMP", False); DMA_HURRY = env("DMA_HURRY", 6); RB_LATE = env("RB_LATE", True); RB_SLOT = env("RB_SLOT", 7)
XR, ZR, WR = 0, 49152, 73728
MISC = 139264
M_ST = MISC; M_CS = MISC + 1024; M_SEG = MISC + 2048; M_N = MISC + 3072
M_SD = MISC + 3328; M_CB = MISC + 3840
M_PART = MISC + 3328
M_PB = MISC + 5376
M_TR = MISC + 6656
AX, AZr, AW0, AW1 = 1, 5, 9, 10
VX0, VX1, VZ, VW = 11, 12, 13, 14
LR, LI, CR, CI, L8R, L8I, L128R, L128I, TR, TI = 15, 16, 17, 18, 19, 20, 21, 22, 23, 24
M_, SD, NLR, CSR, CSI, PR, PI, ER, EI = 25, 26, 27, 28, 29, 30, 31, 32, 33
VH = 47

AZ = 48
AG = [64, 80, 96, 112]
XF = 128
FB = 240

def gen_k1(e, fused=False, kname="k1_kernel"):
    STF = " sc1" if fused else ""
    e.raw(f"{kname}:")
    e("s_cmp_ge_u32 s2, 256")
    e("s_cbranch_scc1 K1_END")
    if env("CODEPF", False): e("s_getpc_b64 s[84:85]")
    e.raw("K1_CODE_FIRST:")
    e("s_load_dwordx2 s[4:5], s[0:1], 0")
    e("s_load_dwordx2 s[6:7], s[0:1], 8")
    e("s_load_dwordx2 s[8:9], s[0:1], 24")
    e("s_load_dwordx2 s[10:11], s[0:1], 32")
    e("s_load_dwordx2 s[12:13], s[0:1], 80")
    e("s_load_dwordx2 s[14:15], s[0:1], 88")
    e("s_load_dwordx2 s[16:17], s[0:1], 112")
    e("s_load_dwordx2 s[18:19], s[0:1], 120")
    e("s_load_dwordx2 s[62:63], s[0:1], 16")
    e("s_load_dwordx2 s[86:87], s[0:1], 96")
    e("s_load_dwordx2 s[88:89], s[0:1], 40")
    e("s_load_dwordx2 s[90:91], s[0:1], 48")
    t = e("s_load_dwordx2 s[64:65], s[0:1], 56")
    e("v_lshrrev_b32 v1, 6, v0")
    e("v_and_b32 v0, 63, v0")
    e("v_readfirstlane_b32 s48, v1")
    e("s_sub_u32 s49, s2, 32")
    e("s_and_b32 s50, s49, 7")
    e("s_lshr_b32 s51, s49, 3")
    e("s_and_b32 s52, s50, 3")
    e("s_lshl_b32 s52, s52, 2")
    e("s_and_b32 s53, s51, 3")
    e("s_add_u32 s52, s52, s53")
    e("s_lshr_b32 s53, s50, 2")
    e("s_mul_i32 s53, s53, 7")
    e("s_lshr_b32 s54, s51, 2")
    e("s_add_u32 s53, s53, s54")
    e("s_and_b32 s54, s48, 3")
    e("s_lshr_b32 s55, s48, 2")
    e("v_lshrrev_b32 v40, 3, v0")
    e("v_and_b32 v41, 7, v0")
    e("v_lshrrev_b32 v42, 4, v0")
    e("s_movk_i32 s56, 896")
    e("s_lshl_b32 s57, s48, 4")
    e("v_add_u32 v43, s57, v40")
    e("v_mul_lo_u32 v43, s56, v43")
    e("v_xor_b32 v44, v41, v42")
    e(f"v_lshl_add_u32 v{VX0}, v44, 4, v43")
    e("v_add_u32 v44, 4, v42")
    e("v_xor_b32 v44, v41, v44")
    e(f"v_lshl_add_u32 v{VX1}, v44, 4, v43")
    e(f"v_add_u32 v{VX1}, {8*896}, v{VX1}")
    e("s_lshl_b32 s57, s54, 3")
    e("v_add_u32 v43, s57, v40")
    e("v_mul_lo_u32 v43, s56, v43")
    e("s_and_b32 s57, s48, 1")
    e("s_lshl_b32 s57, s57, 2")
    e("v_add_u32 v44, s57, v42")
    e("v_xor_b32 v44, v41, v44")
    e(f"v_lshl_add_u32 v{VZ}, v44, 4, v43")
    e("s_lshl_b32 s57, s54, 3")
    e("v_add_u32 v43, s57, v40")
    e("s_movk_i32 s56, 3584")
    e("v_mul_lo_u32 v43, s56, v43")
    e("v_and_b32 v44, 1, v42")
    e("s_lshl_b32 s57, s55, 1")
    e("v_add_u32 v44, s57, v44")
    e("v_lshlrev_b32 v44, 1, v44")
    e("v_xor_b32 v44, v41, v44")
    e(f"v_lshl_add_u32 v{VW}, v44, 4, v43")
    e(f"s_mul_i32 s66, s52, {128*896}")
    e(f"s_mul_i32 s67, s53, {32*896}")
    e("s_lshl_b32 s72, s53, 8")
    e("s_lshl_b32 s73, s48, 11")
    e("s_lshl_b32 s74, s48, 10")
    e(f"s_add_u32 s74, s74, {ZR}")
    e("s_lshl_b32 s75, s55, 13")
    e("s_lshl_b32 s76, s54, 10")
    e("s_add_u32 s75, s75, s76")
    e(f"s_add_u32 s75, s75, {WR}")
    e.wait(t)
    e("s_cmp_lt_u32 s2, 32")
    e("s_cbranch_scc1 K1_HELPER")
    srd(e, 20, 4, 2048*448*2)
    if ROT:
        e("s_and_b32 s56, s51, 3")
        e("s_lshl_b32 s56, s56, 1")
        e("s_lshr_b32 s57, s51, 2")
        e("s_add_u32 s56, s56, s57")
        e("s_cmp_ge_u32 s56, 7")
        e("s_cselect_b32 s57, 7, 0")
        e("s_sub_u32 s77, s56, s57")
    else:
        e("s_mov_b32 s77, 0")
    e("s_mov_b32 s76, s77")
    e("s_lshl_b32 s4, s76, 7")
    e("s_add_u32 s4, s4, s66")
    e("s_sub_u32 s67, s67, s66")
    ent_tok = {}
    dmaq = deque()
    def entry_dmas(kind, kc):
        def mk(a, last):
            def f():
                if NODMA:
                    if last: ent_tok[(kind, kc)] = None
                    return
                if kind == "X":
                    e(f"s_add_u32 m0, s73, {XR + (kc%3)*16384 + a*1024}")
                    tok = e(f"buffer_load_dwordx4 v{VX0+a}, s[20:23], s{4+kc} offen{DMAFLAG} lds")
                elif kind == "Z":
                    e(f"s_add_u32 m0, s74, {(kc%3)*8192}")
                    e(f"s_add_u32 s77, s67, s{4+kc}")
                    tok = e(f"buffer_load_dwordx4 v{VZ}, s[24:27], s77 offen{DMAFLAG} lds")
                else:
                    ch = kc % 7; colb = 0 if kc < 7 else 128
                    e(f"s_add_u32 m0, s75, {(kc%4)*16384 + a*4096}")
                    e(f"s_add_u32 s77, s{11+ch}, {32*a*3584 + colb}")
                    tok = e(f"buffer_load_dwordx4 v{VW}, s[28:31], s77 offen{DMAFLAG} lds")
                if last: ent_tok[(kind, kc)] = tok
            return f
        n = 1 if kind == "Z" else 2
        return [mk(a, a == n - 1) for a in range(n)]
    def queue(*ents):
        for (k, kc) in ents:
            for f in entry_dmas(k, kc): dmaq.append(f)
    def bz_w_srds():
        e("s_cmp_eq_u32 s55, 0")
        e("s_cselect_b32 s24, s8, s10")
        e("s_cselect_b32 s25, s9, s11")
        e("s_cselect_b32 s28, s12, s14")
        e("s_cselect_b32 s29, s13, s15")
        e("s_and_b32 s25, s25, 0xffff")
        e(f"s_mov_b32 s26, {448*448*2}")
        e("s_mov_b32 s27, 0x20000")
        e("s_and_b32 s29, s29, 0xffff")
        e(f"s_mov_b32 s30, {448*1792*2}")
        e("s_mov_b32 s31, 0x20000")
    M_PF0 = 162304
    def coop_setup():
        e("s_and_b32 s56, s51, 3")
        e("s_lshr_b32 s57, s51, 2")
        e("s_mov_b32 s64, 0")
        e("s_cmp_eq_u32 s54, 0"); e("s_cselect_b32 s64, 1, s64")
        e("s_cmp_eq_u32 s54, 1"); e("s_cselect_b32 s64, 2, s64")
        e("s_cmp_eq_u32 s48, 2"); e("s_cselect_b32 s64, 3, s64")
        e("s_or_b32 s58, s57, s48"); e("s_cmp_eq_u32 s58, 3")
        e("s_cmp_eq_u32 s48, 3"); e("s_cselect_b32 s58, 0, 1"); e("s_or_b32 s58, s58, s57")
        e("s_cmp_eq_u32 s58, 0"); e("s_cselect_b32 s64, 3, s64"); e("s_cselect_b32 s57, 7, s57")
        e(f"s_mul_i32 s58, s56, {16*3584}"); e("s_add_u32 s58, s58, s72")
        e(f"s_mul_i32 s59, s53, {32*896}"); e(f"s_mul_i32 s61, s56, {8*896}"); e("s_add_u32 s59, s59, s61")
        e(f"s_mul_i32 s61, s57, {16*896}"); e("s_add_u32 s61, s61, s66")
        e("s_cmp_eq_u32 s64, 1"); e("s_cselect_b32 s65, s58, s61")
        e("s_cselect_b32 s88, s28, s20"); e("s_cselect_b32 s89, s29, s21"); e("s_cselect_b32 s90, s30, s22")
        e("s_cmp_eq_u32 s64, 2"); e("s_cselect_b32 s65, s59, s65")
        e("s_cselect_b32 s88, s24, s88"); e("s_cselect_b32 s89, s25, s89"); e("s_cselect_b32 s90, s26, s90")
        e("s_mov_b32 s91, 0x20000")
    def coop_touch(c0, n, colb, wonly, tv):
        lab = e.label("K1_CT")
        if wonly: e("s_cmp_lg_u32 s64, 1")
        else: e("s_cmp_eq_u32 s64, 0")
        e(f"s_cbranch_scc1 {lab}")
        e.cond_begin()
        e("s_cmp_eq_u32 s64, 2")
        e("s_cselect_b32 s58, 7, 15")
        e("s_cselect_b32 s59, 3, 4")
        e(f"v_and_b32 v{tv}, s58, v0")
        e(f"v_lshrrev_b32 v{tv+1}, s59, v0")
        e(f"v_min_u32 v{tv+1}, {n-1}, v{tv+1}")
        e("s_cmp_eq_u32 s64, 1")
        e("s_movk_i32 s58, 896")
        e("s_cselect_b32 s58, 3584, s58")
        e("s_movk_i32 s59, 128")
        e(f"s_cselect_b32 s59, {64*3584}, s59")
        e(f"s_mov_b32 s61, {c0*128}")
        e(f"s_cselect_b32 s61, {c0*64*3584 + colb}, s61")
        e(f"v_mul_lo_u32 v{tv}, s58, v{tv}")
        e(f"v_mul_lo_u32 v{tv+1}, s59, v{tv+1}")
        e("s_add_u32 s61, s61, s65")
        e(f"s_mov_b32 m0, {M_PF0}")
        e(f"v_add_u32 v{tv}, v{tv}, v{tv+1}")
        e(f"buffer_load_dword v{tv}, s[88:91], s61 offen lds")
        e.cond_end()
        e.raw(f"{lab}:")
    srd(e, 68, 64, 896)
    if COOP:
        bz_w_srds()
        coop_setup()
        coop_touch(0, 3, 0, False, 34)
        queue(("X",0))
        for _ in range(2): dmaq.popleft()()
    else:
        queue(("X",0))
        for _ in range(2): dmaq.popleft()()
        bz_w_srds()
    queue(("Z",0))
    dmaq.popleft()()
    srd(e, 40, 6, 896)
    srd(e, 44, 62, 896)
    srd(e, 32, 18, WS_END if not G.PROFILE else (16 << 20))
    srd(e, 36, 16, 256)
    e("s_mov_b32 s60, 0")
    e("s_cmp_lt_u32 s48, 2")
    e("s_cselect_b32 s61, 1, 0")
    e("s_cmp_lt_u32 s53, 8")
    e("s_cselect_b32 s60, s61, 0")
    e("s_cmp_eq_u32 s48, 2")
    e("s_cselect_b32 s61, 2, 0")
    e("s_cmp_lt_u32 s52, 8")
    e("s_cselect_b32 s61, s61, 0")
    e("s_or_b32 s60, s60, s61")
    e("s_lshl_b32 s56, s52, 7")
    e("s_lshl_b32 s57, s53, 4")
    e("s_add_u32 s56, s56, s57")
    e("s_lshl_b32 s57, s48, 3")
    e("s_add_u32 s56, s56, s57")
    e("s_lshl_b32 s57, s53, 5")
    e("s_and_b32 s58, s52, 3")
    e("s_lshl_b32 s58, s58, 3")
    e("s_add_u32 s57, s57, s58")
    e("s_cmp_eq_u32 s60, 2")
    e("s_cselect_b32 s59, s57, s56")
    e("s_cmp_ge_u32 s52, 4")
    e("s_cselect_b32 s92, s10, s8")
    e("s_cselect_b32 s93, s11, s9")
    e("s_cselect_b32 s62, 448, 0")
    e("s_cmp_eq_u32 s60, 2")
    e("s_cselect_b32 s92, s92, s20")
    e("s_cselect_b32 s93, s93, s21")
    e(f"s_mov_b32 s94, {2048*448*2}")
    e(f"s_cselect_b32 s94, {448*448*2}, s94")
    e("s_cselect_b32 s62, s62, 0")
    e("s_and_b32 s93, s93, 0xffff")
    e("s_mov_b32 s95, 0x20000")
    e("s_add_u32 s62, s62, s59")
    e("s_mul_i32 s63, s59, 896")
    e(f"s_mul_i32 s11, s76, {64*3584}")
    e("s_add_u32 s11, s11, s72")
    queue(("W",0))
    for _ in range(2): dmaq.popleft()()
    pr = G.Prof(e, 0); pr.stamp()
    e("v_and_b32 v40, 15, v0")
    e("s_lshl_b32 s56, s53, 5")
    e("s_lshl_b32 s57, s55, 4")
    e("s_add_u32 s78, s56, s57")
    e("v_add_u32 v41, s78, v40")
    e("v_lshlrev_b32 v42, 1, v41")
    tp = [e("buffer_load_ushort v43, v42, s[40:43], 0 offen"),
          e("buffer_load_ushort v44, v42, s[44:47], 0 offen"),
          e("buffer_load_ushort v45, v42, s[68:71], 0 offen")]
    e("v_lshrrev_b32 v34, 3, v0")
    e("v_and_b32 v35, 7, v0")
    e("v_mul_u32_u24 v36, 896, v34")
    e("v_lshl_add_u32 v36, v35, 4, v36")
    RB = 192
    labrb = e.label("K1_NORB")
    e("s_cmp_eq_u32 s60, 0")
    e(f"s_cbranch_scc1 {labrb}")
    e.cond_begin()
    for k in range(7): e(f"buffer_load_dwordx4 v[{RB+4*k}:{RB+4*k+3}], v36, s[92:95], s63 offen offset:{128*k}")
    e.cond_end()
    e.raw(f"{labrb}:")
    def rowbatch_compute():
        lab = e.label("K1_NORC")
        e("s_cmp_eq_u32 s60, 0")
        e(f"s_cbranch_scc1 {lab}")
        e.cond_begin()
        e.raw(f"s_waitcnt vmcnt({min(63, e.vm_issued - vm_at_rb)})")
        e("s_mov_b32 s58, 0x3f803f80")
        e("v_mov_b32 v220, 0"); e("v_mov_b32 v221, 0"); e("v_mov_b32 v222, 0"); e("v_mov_b32 v223, 0")
        for k in range(28):
            e(f"v_dot2c_f32_bf16 v{220 + (k&1)}, s58, v{RB+k}")
            e(f"v_dot2c_f32_bf16 v{222 + (k&1)}, v{RB+k}, v{RB+k}")
        e("s_nop 2")
        e("v_add_f32 v220, v220, v221")
        e("v_add_f32 v221, v222, v223")
        for r_ in (220, 221):
            e(f"v_add_f32_dpp v{r_}, v{r_}, v{r_} quad_perm:[1,0,3,2] row_mask:0xf bank_mask:0xf")
            e(f"v_add_f32_dpp v{r_}, v{r_}, v{r_} quad_perm:[2,3,0,1] row_mask:0xf bank_mask:0xf")
            e(f"v_add_f32_dpp v{r_}, v{r_}, v{r_} row_half_mirror row_mask:0xf bank_mask:0xf")
        e("v_mov_b32 v224, v220")
        e(f"v_mul_f32 v220, {f32(1.0/448)}, v220")
        e(f"v_mul_f32 v221, {f32(1.0/448)}, v221")
        e("v_fma_f32 v221, -v220, v220, v221")
        e("v_max_f32 v221, 0, v221")
        e("v_cvt_pk_bf16_f32 v220, v220, v221")
        e("v_and_b32 v221, 0xffff0000, v220")
        e("v_lshlrev_b32 v220, 16, v220")
        e(f"v_add_f32 v221, {f32(1e-5)}, v221")
        e("v_cvt_pk_bf16_f32 v221, v221, v221")
        e("v_lshlrev_b32 v221, 16, v221")
        e("v_sqrt_f32 v221, v221")
        e("v_cvt_pk_bf16_f32 v221, v221, v221")
        e("v_lshlrev_b32 v221, 16, v221")
        e.cond_end()
        e.raw(f"{lab}:")
    def rowbatch_publish():
        lab = e.label("K1_NORP"); labx = e.label("K1_RPX")
        e("s_cmp_eq_u32 s60, 0")
        e(f"s_cbranch_scc1 {lab}")
        e.cond_begin()
        e("v_lshrrev_b32 v226, 3, v0")
        e("v_add_u32 v226, s62, v226")
        e("v_and_b32 v227, 7, v0")
        e("v_cmp_eq_u32 vcc, 0, v227")
        e("s_and_saveexec_b64 s[58:59], vcc")
        e("s_cmp_eq_u32 s60, 1")
        e(f"s_cbranch_scc1 {labx}")
        e("v_lshlrev_b32 v226, 3, v226")
        e("v_mov_b32 v228, v224"); e("v_mov_b32 v229, s98")
        e(f"s_mov_b32 s61, {WS_CSB}")
        e("buffer_store_dwordx2 v[228:229], v226, s[32:35], s61 offen sc1")
        e("s_mov_b64 exec, s[58:59]")
        e(f"s_branch {lab}")
        e.raw(f"{labx}:")
        e("v_lshlrev_b32 v226, 4, v226")
        e("v_mov_b32 v228, v220"); e("v_mov_b32 v229, s98"); e("v_mov_b32 v230, v221"); e("v_mov_b32 v231, s98")
        e(f"s_mov_b32 s61, {WS_STAT}")
        e("buffer_store_dwordx4 v[228:231], v226, s[32:35], s61 offen sc1")
        e("s_mov_b64 exec, s[58:59]")
        e.cond_end()
        e.raw(f"{lab}:")
    RBWAIT = [0]
    vm_at_rb = e.vm_issued
    def rot_entry(t):
        e("s_add_u32 s76, s76, 1")
        e("s_cmp_eq_u32 s76, 7")
        e("s_cselect_b32 s76, 0, s76")
        e(f"s_lshl_b32 s{4+t}, s76, 7")
        e(f"s_mul_i32 s{11+t}, s76, {64*3584}")
        e(f"s_add_u32 s{4+t}, s{4+t}, s66")
        e(f"s_add_u32 s{11+t}, s{11+t}, s72")
    for t in range(1, 7): rot_entry(t)
    queue(("X",1),("Z",1),("W",1),("X",2),("Z",2),("W",2),("W",3))
    for _ in range(max(0, PRO_DMAS - 5)): dmaq.popleft()()
    if PSTAMP: pr.stamp()
    nonce_cas(e, 120)
    def issue_for_tick(tk):
        l = []
        if tk >= 1:
            if tk + 2 < 7: l += [("X", tk+2), ("Z", tk+2)]
            if tk + 3 < 14: l += [("W", tk+3)]
        return l

    e("v_and_b32 v34, 31, v0")
    e("v_lshrrev_b32 v35, 4, v34")
    e("v_bfe_u32 v36, v34, 2, 1")
    e("v_lshl_add_u32 v35, v36, 1, v35")
    e("v_bfe_u32 v36, v34, 3, 1")
    e("v_lshlrev_b32 v35, 3, v35")
    e("v_lshl_add_u32 v35, v36, 2, v35")
    e("v_and_b32 v36, 3, v34")
    e("v_add_u32 v35, v35, v36")
    e("v_lshrrev_b32 v36, 5, v0")
    e(f"v_lshl_add_u32 v{VH}, v36, 5, v35")
    e(f"v_lshlrev_b32 v{VH}, 4, v{VH}")
    e("s_lshl_b32 s56, s54, 5")
    e("v_add_u32 v37, s56, v35")
    e(f"v_lshlrev_b32 v{AX}, 7, v37")
    e("v_bfe_u32 v38, v35, 1, 3")
    e("v_xor_b32 v38, v38, v36")
    e(f"v_lshl_add_u32 v{AX}, v38, 4, v{AX}")
    for kk in range(1, 4): e(f"v_xor_b32 v{AX+kk}, {kk<<5}, v{AX}")
    e("v_bfe_u32 v38, v0, 4, 1")
    e(f"v_lshlrev_b32 v{AZr}, 12, v38")
    e("s_lshl_b32 s56, s55, 4")
    e("v_and_b32 v40, 15, v0")
    e("v_add_u32 v39, s56, v40")
    e(f"v_lshl_add_u32 v{AZr}, v39, 7, v{AZr}")
    e("v_bfe_u32 v39, v40, 1, 3")
    e("v_xor_b32 v39, v39, v36")
    e(f"v_lshl_add_u32 v{AZr}, v39, 4, v{AZr}")
    e(f"v_add_u32 v{AZr}, {ZR}, v{AZr}")
    for kk in range(1, 4): e(f"v_xor_b32 v{AZr+kk}, {kk<<5}, v{AZr}")
    e(f"v_lshlrev_b32 v{AW0}, 13, v38")
    e("v_lshrrev_b32 v39, 2, v40")
    e("v_lshl_add_u32 v39, v36, 3, v39")
    e(f"v_lshl_add_u32 v{AW0}, v39, 7, v{AW0}")
    e("v_lshrrev_b32 v39, 3, v40")
    e("v_lshl_add_u32 v39, v38, 1, v39")
    e("s_lshl_b32 s56, s55, 1")
    e("v_xor_b32 v39, s56, v39")
    e(f"v_lshl_add_u32 v{AW0}, v39, 5, v{AW0}")
    e("v_and_b32 v39, 3, v40")
    e(f"v_lshl_add_u32 v{AW0}, v39, 3, v{AW0}")
    e(f"v_add_u32 v{AW0}, {WR}, v{AW0}")
    e(f"v_xor_b32 v{AW1}, 32, v{AW0}")
    e("s_lshl_b32 s56, s52, 2")
    e("s_add_u32 s56, s56, s54")
    e("s_mul_i32 s56, s56, 112")
    e("s_lshl_b32 s57, s53, 3")
    e("s_add_u32 s56, s56, s57")
    e("s_lshl_b32 s57, s55, 1")
    e("s_add_u32 s56, s56, s57")
    e("s_lshl_b32 s79, s56, 10")
    if WS_HF: e(f"s_add_u32 s79, s79, {WS_HF}")

    def params():
        e.wait(tp); yield
        e("s_bitcmp1_b32 s54, 0"); e("s_cselect_b64 s[40:41], -1, 0")
        e("s_bitcmp1_b32 s54, 1"); e("s_cselect_b64 s[42:43], -1, 0")
        e("s_mov_b32 s44, 0xffff0000"); e("s_mov_b32 s45, 0xffff0000")
        e("s_mov_b32 s46, 0"); e("s_mov_b32 s47, -1")
        e("v_lshlrev_b32 v43, 16, v43"); yield
        e("v_lshlrev_b32 v44, 16, v44"); yield
        e("v_lshlrev_b32 v45, 16, v45"); yield
        e(f"v_mul_f32 v45, {f32(LOG2E)}, v45"); yield
        e("v_exp_f32 v45, v45"); yield
        e("v_cvt_pk_bf16_f32 v45, v45, v45"); yield
        e("v_lshlrev_b32 v45, 16, v45"); yield
        e("v_mul_f32 v34, v45, v43"); yield
        e("v_mul_f32 v35, v45, v44"); yield
        e(f"v_mul_f32 v34, {f32(LOG2E)}, v34"); yield
        e("v_exp_f32 v34, v34"); yield
        e(f"v_mul_f32 v35, {f32(1.0/(2*3.141592653589793))}, v35"); yield
        e("v_fract_f32 v35, v35"); yield
        e("v_cos_f32 v36, v35"); yield
        e("v_sin_f32 v37, v35"); yield
        e(f"v_mul_f32 v{LR}, v34, v36"); yield
        e(f"v_mul_f32 v{LI}, v34, v37"); yield
        e(f"v_add_f32 v36, -1.0, v{LR}"); yield
        e("v_mul_f32 v38, v43, v43"); yield
        e("v_fmac_f32 v38, v44, v44"); yield
        e("v_rcp_f32 v38, v38"); yield
        e("v_mul_f32 v39, v36, v43"); yield
        e(f"v_fmac_f32 v39, v{LI}, v44"); yield
        e(f"v_mul_f32 v34, v{LI}, v43"); yield
        e("v_fma_f32 v34, -v36, v44, v34"); yield
        e("v_add_f32 v38, v38, v38"); yield
        e(f"v_mul_f32 v{CR}, v39, v38"); yield
        e(f"v_mul_f32 v{CI}, v34, v38"); yield
        yield from csq(e, 34, 35, LR, LI, 38)
        yield from csq(e, 36, 37, 34, 35, 38)
        yield from csq(e, L8R, L8I, 36, 37, 38)
        e(f"v_mov_b32 v{TR}, 1.0"); yield
        e(f"v_mov_b32 v{TI}, 0"); yield
        e(f"v_mov_b32 v34, v{L8R}"); yield
        e(f"v_mov_b32 v35, v{L8I}"); yield
        for b, m in enumerate(("s[44:45]", "s[46:47]", "s[40:41]", "s[42:43]")):
            yield from cmul(e, 36, 37, TR, TI, 34, 35, 38)
            e(f"v_cndmask_b32 v{TR}, v{TR}, v36, {m}"); yield
            e(f"v_cndmask_b32 v{TI}, v{TI}, v37, {m}"); yield
            e("v_mov_b32 v41, v34"); yield
            e("v_mov_b32 v42, v35"); yield
            yield from csq(e, 34, 35, 41, 42, 38)
        e(f"v_mov_b32 v{L128R}, v34"); yield
        e(f"v_mov_b32 v{L128I}, v35"); yield

    def zbuf(ks): return 96 + (ks & 1)*4
    def wbufA(ks, tl): return 104 + (ks & 1)*8 + tl*4
    def wbufB(ks, tl): return FB + (ks & 1)*8 + tl*4
    first = {}
    def mfma(acc, a, b):
        c = f"v[{acc}:{acc+15}]" if first.get(acc) else "0"
        first[acc] = True
        e(f"v_mfma_f32_32x32x16_bf16 v[{acc}:{acc+15}], v[{a}:{a+3}], v[{b}:{b+3}], {c}")
    rd_tok = {}
    def read_x(ks):
        kk = ks & 3; kc = ks >> 2
        rd_tok[("x", ks)] = [e(f"ds_read_b128 v[{XF+4*ks}:{XF+4*ks+3}], v{AX+kk} offset:{(kc%3)*16384}")]
    def read_z(ks):
        kk = ks & 3; kc = ks >> 2
        rd_tok[("z", ks)] = [e(f"ds_read_b128 v[{zbuf(ks)}:{zbuf(ks)+3}], v{AZr+kk} offset:{(kc%3)*8192}")]
    def read_w(ph, ks, tl, half):
        kk = ks & 3; w = (ks >> 2) + (0 if ph == "A" else 7)
        b = wbufA(ks, tl) if ph == "A" else wbufB(ks, tl)
        ad = AW0 if tl == 0 else AW1
        off = (w % 4)*16384 + kk*2048
        t = e(f"ds_read_b64_tr_b16 v[{b+2*half}:{b+2*half+1}], v{ad} offset:{off+512*half}")
        rd_tok.setdefault((ph, ks, tl), []).append(t)
    steps = [("A", ks) for ks in range(28)] + [("B", ks) for ks in range(28)]
    def tick_idx(ph, ks): return (ks >> 2) + (0 if ph == "A" else 7)
    def need_ents(tk): return [("X",tk),("Z",tk),("W",tk)] if tk < 7 else [("W",tk)]
    nbar = [0]
    def enter_tick(tk):
        while any(x not in ent_tok for x in need_ents(tk)): dmaq.popleft()()
        e.wait([ent_tok[x] for x in need_ents(tk)])
        if tk == 1: nonce_publish(e, 120, M_N)
        e.wait_all(vm=False)
        e("s_barrier")
        nbar[0] += 1
        if tk == 1: nonce_read(e, 121, M_N)
        queue(*issue_for_tick(tk))

    def main_stream():
        if not RB_LATE: rowbatch_compute()
        if PSTAMP: pr.stamp()
        enter_tick(0)
        if PSTAMP: pr.stamp()
        read_x(0); read_w("A", 0, 0, 0); read_w("A", 0, 0, 1); read_z(0); read_w("A", 0, 1, 0); read_w("A", 0, 1, 1)
        for n, (ph, ks) in enumerate(steps):
            nx = steps[n+1] if n + 1 < len(steps) else None
            x = XF + 4*ks
            if ph == "A":
                ops = [(AG[0], wbufA(ks,0), x, [("x", ks), (ph, ks, 0)]), (AZ, x, zbuf(ks), [("z", ks)]), (AG[1], wbufA(ks,1), x, [(ph, ks, 1)])]
            else:
                ops = [(AG[2], wbufB(ks,0), x, [(ph, ks, 0)]), (AG[3], wbufB(ks,1), x, [(ph, ks, 1)])]
            for si, (acc, a, b, keys) in enumerate(ops):
                e.wait([rd_tok[k] for k in keys])
                mfma(acc, a, b)
                dma_ok = False
                if nx is not None:
                    ph2, ks2 = nx
                    if si == 0 and (ks2 & 3) == 0: enter_tick(tick_idx(ph2, ks2))
                    if ph2 == "A":
                        if si == 0: read_x(ks2); read_w("A", ks2, 0, 0)
                        elif si == 1: read_w("A", ks2, 0, 1); read_z(ks2)
                        else: read_w("A", ks2, 1, 0); read_w("A", ks2, 1, 1); dma_ok = True
                    elif ph == "A":
                        if si == 0: read_w("B", ks2, 0, 0); read_w("B", ks2, 0, 1)
                        elif si == 1: read_w("B", ks2, 1, 0); read_w("B", ks2, 1, 1)
                        else: dma_ok = True
                    else:
                        read_w("B", ks2, si, 0); read_w("B", ks2, si, 1)
                        dma_ok = (si == 1)
                did = False
                if (dma_ok or (len(dmaq) > DMA_HURRY)) and dmaq:
                    dmaq.popleft()(); did = True
                yield (ph, ks, si, did)

    aux = {}
    def tagcheck(regs):
        e(f"v_xor_b32 v44, s98, v{regs[0]}")
        for r in regs[1:]:
            e(f"v_xor_b32 v45, s98, v{r}")
            e("v_or_b32 v44, v44, v45")
        e("v_cmp_ne_u32 vcc, 0, v44")
        e("s_cmp_eq_u64 vcc, 0")
    AXW1, AXW2 = 3, 4
    def only_wave(w, name):
        lab = e.label(name)
        e(f"s_cmp_lg_u32 s48, {w}")
        e(f"s_cbranch_scc1 {lab}")
        e.cond_begin()
        return lab
    def end_only(lab):
        e.cond_end()
        e.raw(f"{lab}:")
    def aux1_issue_raw():
        e("s_lshl_b32 s61, s52, 11")
        e(f"s_add_u32 s61, s61, {WS_STAT}")
        e("v_lshlrev_b32 v120, 4, v0")
        e("buffer_load_dwordx4 v[36:39], v120, s[32:35], s61 offen sc1")
        e("buffer_load_dwordx4 v[40:43], v120, s[32:35], s61 offen offset:1024 sc1")
        e("v_lshrrev_b32 v121, 5, v0")
        e("v_mul_u32_u24 v121, 448, v121")
        e("v_and_b32 v122, 31, v0")
        e("v_add_u32 v121, v121, v122")
        e("s_lshl_b32 s61, s53, 5")
        e("v_add_u32 v121, s61, v121")
        e("v_lshlrev_b32 v121, 3, v121")
        e(f"s_mov_b32 s61, {WS_CSB}")
        e("buffer_load_dwordx2 v[124:125], v121, s[32:35], s61 offen sc1")
    def aux1_issue():
        lab = only_wave(AXW1, "K1_A1I")
        aux1_issue_raw()
        end_only(lab)
        aux["a1_vm"] = e.vm_issued
    def aux1_finish():
        lab = only_wave(AXW1, "K1_A1F")
        e.raw(f"s_waitcnt vmcnt({min(63, e.vm_issued - aux['a1_vm'])})")
        tagged_retry(e, aux1_issue_raw, lambda: tagcheck([37, 39, 41, 43, 125]), "K1_A1", cnt="s63")
        e("v_rcp_f32 v37, v38")
        e("v_rcp_f32 v41, v42")
        e("v_lshlrev_b32 v120, 3, v0")
        e(f"v_add_u32 v120, {M_ST}, v120")
        e("ds_write_b64 v120, v[36:37]")
        e("ds_write_b64 v120, v[40:41] offset:512")
        e("v_lshlrev_b32 v120, 2, v0")
        e(f"v_add_u32 v120, {M_SD}, v120")
        e("ds_write_b32 v120, v38")
        e("ds_write_b32 v120, v42 offset:256")
        e(f"ds_write_b32 v120, v124 offset:{M_CB - M_SD}")
        e.raw("s_waitcnt lgkmcnt(0)")
        end_only(lab)
    def aux1_read():
        e(f"v_and_b32 v34, 0x1f0, v{VH}"); yield
        e("v_lshrrev_b32 v34, 1, v34"); yield
        e("s_lshl_b32 s56, s54, 8")
        e(f"s_add_u32 s56, s56, {M_ST}")
        e("v_add_u32 v35, s56, v34"); yield
        t1 = e("ds_read_b64 v[36:37], v35"); yield
        e("v_lshrrev_b32 v34, 1, v34"); yield
        e("s_lshl_b32 s56, s54, 7")
        e(f"s_add_u32 s56, s56, {M_SD}")
        e("v_add_u32 v34, s56, v34"); yield
        t2 = e(f"ds_read_b32 v{SD}, v34"); yield
        e("v_and_b32 v34, 15, v0"); yield
        e("s_lshl_b32 s56, s55, 6")
        e(f"s_add_u32 s56, s56, {M_CB}")
        e("v_lshlrev_b32 v34, 2, v34"); yield
        e("v_add_u32 v34, s56, v34"); yield
        t3 = [e(f"ds_read_b32 v{CSR}, v34"), e(f"ds_read_b32 v{CSI}, v34 offset:128")]; yield
        e("v_lshrrev_b32 v34, 4, v0"); yield
        e("s_lshl_b32 s56, s54, 8")
        e(f"s_add_u32 s56, s56, {M_ST}")
        e("v_lshlrev_b32 v34, 6, v34"); yield
        e("v_add_u32 v34, s56, v34"); yield
        e.wait(t1); yield
        e(f"v_mov_b32 v{M_}, v36"); yield
        e(f"v_mul_f32 v{NLR}, {f32(-LOG2E)}, v37"); yield
        aux["st"] = [e("ds_read_b128 v[36:39], v34"), e("ds_read_b128 v[40:43], v34 offset:16")]
        aux["lane"] = [t2, t3]
        yield
    def aux2_issue_raw():
        e("s_lshl_b32 s61, s53, 10")
        e(f"s_add_u32 s61, s61, {WS_CSW}")
        e("v_lshlrev_b32 v136, 4, v0")
        e("buffer_load_dwordx4 v[128:131], v136, s[32:35], s61 offen sc1")
        e(f"s_add_u32 s61, s61, {1792*8}")
        e("buffer_load_dwordx4 v[132:135], v136, s[32:35], s61 offen sc1")
    def aux2_issue():
        lab = only_wave(AXW2, "K1_A2I")
        aux2_issue_raw()
        end_only(lab)
        aux["a2_vm"] = e.vm_issued
    def tagcheck2(regs):
        e(f"v_xor_b32 v137, s98, v{regs[0]}")
        for r in regs[1:]:
            e(f"v_xor_b32 v138, s98, v{r}")
            e("v_or_b32 v137, v137, v138")
        e("v_cmp_ne_u32 vcc, 0, v137")
        e("s_cmp_eq_u64 vcc, 0")
    def aux2_finish():
        lab = only_wave(AXW2, "K1_A2F")
        e.raw(f"s_waitcnt vmcnt({min(63, e.vm_issued - aux['a2_vm'])})")
        tagged_retry(e, aux2_issue_raw, lambda: tagcheck2([129, 131, 133, 135]), "K1_A2", cnt="s63")
        e("v_mov_b32 v129, v130")
        e("v_mov_b32 v133, v134")
        e("v_lshlrev_b32 v136, 3, v0")
        e(f"v_add_u32 v136, {M_CS}, v136")
        e("ds_write_b64 v136, v[128:129]")
        e("ds_write_b64 v136, v[132:133] offset:512")
        e.raw("s_waitcnt lgkmcnt(0)")
        end_only(lab)
    def cs_base():
        e("v_lshrrev_b32 v46, 5, v0"); yield
        e("v_lshlrev_b32 v46, 4, v46"); yield
        e("s_lshl_b32 s56, s55, 7")
        e(f"s_add_u32 s56, s56, {M_CS}")
        e("v_add_u32 v46, s56, v46"); yield
    def cs_reads(tl, CSB):
        o = (tl >> 1)*256 + (tl & 1)*64
        aux[("cs", tl)] = [e(f"ds_read_b128 v[{CSB}:{CSB+3}], v46 offset:{o}"),
                           e(f"ds_read_b128 v[{CSB+4}:{CSB+7}], v46 offset:{o+32}"),
                           e(f"ds_read_b128 v[{CSB+8}:{CSB+11}], v46 offset:{o+512}"),
                           e(f"ds_read_b128 v[{CSB+12}:{CSB+15}], v46 offset:{o+544}")]
        yield

    def z_pass1():
        e.wait(aux["lane"]); yield
        for i in range(8):
            e(f"v_permlane16_swap_b32 v{AZ+i}, v{AZ+8+i}"); yield
        st = list(aux["st"])
        for g in range(4):
            b = 36 + (g & 1)*4
            e.wait(st[g]); yield
            for u in range(2):
                i = 2*g + u; mm = b + 2*u
                e(f"v_fma_f32 v{AZ+i}, -v{mm}, v{CSR}, v{AZ+i}"); yield
                e(f"v_fma_f32 v{AZ+8+i}, -v{mm}, v{CSI}, v{AZ+8+i}"); yield
            for u in range(2):
                i = 2*g + u; rr = b + 2*u + 1
                e(f"v_mul_f32 v{AZ+i}, v{AZ+i}, v{rr}"); yield
                e(f"v_mul_f32 v{AZ+8+i}, v{AZ+8+i}, v{rr}"); yield
            if g + 2 < 4:
                st.append(e(f"ds_read_b128 v[{b}:{b+3}], v34 offset:{(g+2)*16}")); yield
        pr_, pi_ = AZ, AZ + 8
        for i in range(1, 8):
            d = (44, 45) if (i & 1) else (ER, EI)
            yield from cfma_to(e, d[0], d[1], pr_, pi_, LR, LI, AZ+i, AZ+8+i)
            pr_, pi_ = d
        e(f"v_mul_f32 v36, v{CI}, v45"); yield
        e(f"v_mul_f32 v37, v{CI}, v44"); yield
        e(f"v_fma_f32 v{ER}, v{CR}, v44, -v36"); yield
        e(f"v_fma_f32 v{EI}, v{CR}, v45, v37"); yield
    def hier1():
        e(f"v_mov_b32 v1, v{ER}"); yield
        e(f"v_mov_b32 v2, v{ER}"); yield
        e(f"v_mov_b32 v3, v{EI}"); yield
        e(f"v_mov_b32 v4, v{EI}"); yield
        yield from csq(e, 7, 8, L8R, L8I, 34)
        e("v_permlane16_swap_b32 v1, v2"); yield
        e("v_permlane16_swap_b32 v3, v4"); yield
        yield from cfma_to(e, 5, 6, 1, 3, L8R, L8I, 2, 4)
        e("v_mov_b32 v28, v5"); yield
        e("v_mov_b32 v36, v5"); yield
        e("v_mov_b32 v29, v6"); yield
        e("v_mov_b32 v34, v6"); yield
        e("v_and_b32 v35, 15, v0"); yield
        e("s_lshl_b32 s56, s55, 4")
        e("v_add_u32 v35, s56, v35"); yield
        e("v_lshlrev_b32 v35, 3, v35"); yield
        e("v_permlane32_swap_b32 v28, v36"); yield
        e("v_permlane32_swap_b32 v29, v34"); yield
        e(f"v_add_u32 v35, {M_SEG}, v35"); yield
        yield from cfma_to(e, 5, 6, 28, 29, 7, 8, 36, 34)
        e("s_lshl_b32 s56, s54, 8")
        e("v_add_u32 v34, s56, v35"); yield
        e("v_mov_b32 v44, v5"); yield
        e("v_mov_b32 v45, v6"); yield
        e("ds_write_b64 v34, v[44:45]"); yield
    def hier2():
        tk = [e(f"ds_read_b64 v[{36+2*u}:{37+2*u}], v35 offset:{u*256}") for u in range(3)]
        yield
        yield from csq(e, 42, 43, 7, 8, 44)
        e.wait(tk); yield
        yield from cfma_to(e, 44, 45, 36, 37, 42, 43, 38, 39)
        yield from cfma_to(e, 2, 4, 44, 45, 42, 43, 40, 41)
        e("v_cndmask_b32 v2, v44, v2, s[40:41]"); yield
        e("v_cndmask_b32 v4, v45, v4, s[40:41]"); yield
        e("v_cndmask_b32 v36, 0, v36, s[40:41]"); yield
        e("v_cndmask_b32 v37, 0, v37, s[40:41]"); yield
        e("v_cndmask_b32 v36, v36, v2, s[42:43]"); yield
        e("v_cndmask_b32 v37, v37, v4, s[42:43]"); yield
        lab = e.label("K1_NOPUB")
        e("s_cmp_lg_u32 s54, 3")
        e(f"s_cbranch_scc1 {lab}")
        e.cond_begin()
        for _ in cfma_to(e, 38, 40, 36, 37, 42, 43, 5, 6): pass
        e("v_mov_b32 v39, s98"); e("v_mov_b32 v41, s98")
        e("v_and_b32 v34, 15, v0")
        e("v_add_u32 v34, s78, v34")
        e("v_lshlrev_b32 v34, 4, v34")
        e(f"s_mul_i32 s56, s52, {448*16}")
        e(f"s_add_u32 s56, s56, {WS_E}")
        e("s_mov_b64 s[58:59], exec")
        e("s_mov_b64 exec, 0xffff")
        e("buffer_store_dwordx4 v[38:41], v34, s[32:35], s56 offen sc1")
        e("s_mov_b64 exec, s[58:59]")
        e.cond_end()
        e.raw(f"{lab}:")
        yield
        yield from cfma_to(e, 38, 39, 36, 37, 7, 8, 28, 29)
        e("v_cndmask_b32 v36, v36, v38, s[46:47]"); yield
        e("v_cndmask_b32 v37, v37, v39, s[46:47]"); yield
        yield from cfma_to(e, 38, 39, 36, 37, L8R, L8I, 1, 3)
        e(f"v_cndmask_b32 v{PR}, v36, v38, s[44:45]"); yield
        e(f"v_cndmask_b32 v{PI}, v37, v39, s[44:45]"); yield
    def zscale():
        for i in range(0, 8, 2):
            for u in range(2):
                e(f"v_mul_f32 v{36+2*u}, v{CI}, v{AZ+8+i+u}"); yield
                e(f"v_mul_f32 v{37+2*u}, v{CI}, v{AZ+i+u}"); yield
            for u in range(2):
                e(f"v_fma_f32 v{AZ+i+u}, v{CR}, v{AZ+i+u}, -v{36+2*u}"); yield
                e(f"v_fma_f32 v{AZ+8+i+u}, v{CR}, v{AZ+8+i+u}, v{37+2*u}"); yield
    def gu_math(acc, CSB):
        for i in range(8):
            e(f"v_fma_f32 v{acc+i}, -v{M_}, v{CSB+i}, v{acc+i}"); yield
        for i in range(8):
            e(f"v_mul_f32 v{acc+i}, v{acc+i}, v{NLR}"); yield
        for i in range(8):
            e(f"v_exp_f32 v{acc+i}, v{acc+i}"); yield
            e(f"v_fma_f32 v{acc+8+i}, -v{M_}, v{CSB+8+i}, v{acc+8+i}"); yield
        for i in range(8):
            e(f"v_fma_f32 v{acc+i}, v{acc+i}, v{SD}, v{SD}"); yield
        for i in range(8):
            e(f"v_rcp_f32 v{acc+i}, v{acc+i}"); yield
        for i in range(8):
            e(f"v_mul_f32 v{acc+i}, v{acc+i}, v{acc+8+i}"); yield
        for p in range(4):
            e(f"v_cvt_pk_bf16_f32 v{acc+8+p}, v{acc+2*p}, v{acc+2*p+1}"); yield
    def gu_epi(tl, CSB):
        acc = AG[tl]
        e.wait(aux[("cs", tl)]); yield
        yield from gu_math(acc, CSB)
        e(f"s_add_u32 s56, s79, {((tl>>1)*4 + (tl&1))*1024}")
        e(f"buffer_store_dwordx4 v[{acc+8}:{acc+11}], v{VH}, s[32:35], s56 offen{STF}"); yield

    ebq = deque()
    def early_B_setup():
        e(f"v_lshrrev_b32 v{EBV}, 3, v0")
        e("s_lshl_b32 s57, s48, 3")
        e(f"v_add_u32 v{EBV}, s57, v{EBV}")
        e(f"v_mul_u32_u24 v{EBV}, 896, v{EBV}")
        e("v_and_b32 v11, 7, v0")
        e("v_bfe_u32 v12, v0, 4, 1")
        e("v_lshlrev_b32 v12, 2, v12")
        e("v_xor_b32 v11, v11, v12")
        e(f"v_lshl_add_u32 v{EBV}, v11, 4, v{EBV}")
        e("s_mov_b32 s92, s86"); e("s_and_b32 s93, s87, 0xffff"); e(f"s_mov_b32 s94, {1792*448*2}"); e("s_mov_b32 s95, 0x20000")
        e("s_cmp_ge_u32 s53, 7")
        e("s_cselect_b32 s57, 7, 0")
        e("s_sub_u32 s57, s53, s57")
        e("s_and_b32 s70, s52, 3")
        e("s_mul_i32 s70, s70, 7")
        e("s_lshl_b32 s71, s57, 2")
        e("s_add_u32 s70, s70, s71")
        e("s_cmp_ge_u32 s70, 28")
        e("s_cselect_b32 s71, 28, 0")
        e("s_sub_u32 s70, s70, s71")
        e("s_lshl_b32 s71, s57, 7")
        e("s_lshl_b32 s69, s48, 10")
    def early_B_queue(t0, t1):
        def mk(t):
            def f():
                e(f"s_add_u32 m0, s69, {t*8192}")
                e(f"s_mul_i32 s68, s70, {64*896}")
                e("s_add_u32 s68, s68, s71")
                e(f"buffer_load_dwordx4 v{EBV}, s[92:95], s68 offen lds")
                e("s_add_u32 s70, s70, 1"); e("s_cmp_eq_u32 s70, 28"); e("s_cselect_b32 s70, 0, s70")
            return f
        for t in range(t0, t1): ebq.append(mk(t))
    def drain_eb(gen, every=18):
        k = 0
        for _ in gen:
            k += 1
            if k % every == 0 and ebq: ebq.popleft()()
    M_PF = 162304
    def k2_touch(k, slot):
        PFT = 139 if slot < 18 else 160
        assert slot >= 6
        lab = e.label("K1_PF")
        e(f"s_cmp_lg_u32 s48, {k & 7}")
        e(f"s_cbranch_scc1 {lab}")
        e.cond_begin()
        if k < 7:
            e("s_mul_i32 s61, s51, 448"); e(f"s_add_u32 s61, s61, {64*k}"); base = "s[86:87]"; lim = 12543
        elif k < 9:
            e("s_mul_i32 s61, s51, 112"); e(f"s_add_u32 s61, s61, {64*(k-7)}"); base = "s[88:89]"; lim = 3135
        else:
            e("s_mul_i32 s61, s51, 112"); e(f"s_add_u32 s61, s61, {64*(k-9)}"); base = "s[90:91]"; lim = 3135
        e(f"v_add_u32 v{PFT}, s61, v0")
        e(f"v_min_u32 v{PFT}, {lim}, v{PFT}")
        e(f"s_mov_b32 m0, {M_PF}")
        e(f"v_lshlrev_b32 v{PFT}, 7, v{PFT}")
        e(f"global_load_lds_dword v{PFT}, {base}")
        e.cond_end()
        e.raw(f"{lab}:")
    EL = 160
    def e_issue_raw():
        e("v_lshrrev_b32 v180, 4, v0")
        e("v_and_b32 v181, 15, v0")
        e("v_add_u32 v181, s78, v181")
        e("v_lshlrev_b32 v181, 4, v181")
        e("s_sub_u32 s63, s52, 1")
        e(f"s_mov_b32 s61, {WS_E}")
        for m in range(4):
            e(f"v_add_u32 v{176+m}, {4*m}, v180")
            e(f"v_min_u32 v{176+m}, s63, v{176+m}")
            e(f"v_mul_u32_u24 v{176+m}, {448*16}, v{176+m}")
            e(f"v_add_u32 v{176+m}, v{176+m}, v181")
            e(f"buffer_load_dwordx4 v[{EL+4*m}:{EL+4*m+3}], v{176+m}, s[32:35], s61 offen sc1")
    def e_issue():
        lab = e.label("K1_EI")
        e("s_cmp_eq_u32 s52, 0")
        e(f"s_cbranch_scc1 {lab}")
        e.cond_begin(); e_issue_raw(); e.cond_end()
        e.raw(f"{lab}:")
    def e_consts():
        yield from csq(e, 182, 183, L128R, L128I, 188)
        yield from cmul(e, 184, 185, 182, 183, L128R, L128I, 188)
        yield from csq(e, 186, 187, 182, 183, 188)
        e("v_lshrrev_b32 v190, 4, v0"); yield
        e("s_sub_u32 s63, s52, 1")
        e("v_sub_u32 v190, s63, v190"); yield
        e("v_and_b32 v191, 3, v190"); yield
        e("v_ashrrev_i32 v190, 2, v190"); yield
        e("v_mov_b32 v192, 1.0"); yield
        e("v_mov_b32 v193, 0"); yield
        for k, (rr, ii) in enumerate(((L128R, L128I), (182, 183), (184, 185))):
            e(f"v_cmp_eq_u32 vcc, {k+1}, v191"); yield
            e(f"v_cndmask_b32 v192, v192, v{rr}, vcc"); yield
            e(f"v_cndmask_b32 v193, v193, v{ii}, vcc"); yield
    def e_check(nafter):
        skip = e.label("K1_ESK"); ok = e.label("K1_EOK"); chk = e.label("K1_ECK")
        e("s_cmp_eq_u32 s52, 0")
        e(f"s_cbranch_scc1 {skip}")
        e.cond_begin()
        e.raw(f"s_waitcnt vmcnt({nafter})")
        e("s_mov_b32 s62, 0")
        e.raw(f"{chk}:")
        e(f"v_xor_b32 v44, s98, v{EL+1}")
        for r in (EL+3, EL+5, EL+7, EL+9, EL+11, EL+13, EL+15):
            e(f"v_xor_b32 v45, s98, v{r}")
            e("v_or_b32 v44, v44, v45")
        e("v_cmp_ne_u32 vcc, 0, v44")
        e("s_cmp_eq_u64 vcc, 0")
        e(f"s_cbranch_scc1 {ok}")
        e("s_add_u32 s62, s62, 1")
        e("s_cmp_ge_u32 s62, 100000")
        e(f"s_cbranch_scc1 {ok}")
        e_issue_raw()
        e.raw("s_waitcnt vmcnt(0)")
        e(f"s_branch {chk}")
        e.raw(f"{ok}:")
        e.cond_end()
        e.raw(f"{skip}:")
    def carry_and_pass2():
        lab0 = e.label("K1_NOCARRY")
        e("v_mov_b32 v44, 0"); e("v_mov_b32 v45, 0")
        e("s_cmp_eq_u32 s52, 0")
        e(f"s_cbranch_scc1 {lab0}")
        for m in range(4):
            er, ei = EL+4*m, EL+4*m+2
            e(f"v_cmp_le_i32 vcc, {m}, v190")
            e(f"v_fma_f32 v{er}, v186, v44, v{er}")
            e(f"v_fma_f32 v{ei}, v186, v45, v{ei}")
            e(f"v_fma_f32 v{er}, -v187, v45, v{er}")
            e(f"v_fma_f32 v{ei}, v187, v44, v{ei}")
            e(f"v_cndmask_b32 v44, v44, v{er}, vcc")
            e(f"v_cndmask_b32 v45, v45, v{ei}, vcc")
        e("v_mul_f32 v40, v193, v45")
        e("v_mul_f32 v41, v193, v44")
        e("v_fma_f32 v44, v192, v44, -v40")
        e("v_fma_f32 v45, v192, v45, v41")
        e("v_mov_b32 v40, v44"); e("v_mov_b32 v41, v45")
        e("v_permlane16_swap_b32 v44, v40"); e("v_permlane16_swap_b32 v45, v41")
        e("v_add_f32 v44, v44, v40"); e("v_add_f32 v45, v45, v41")
        e("v_mov_b32 v40, v44"); e("v_mov_b32 v41, v45")
        e("v_permlane32_swap_b32 v44, v40"); e("v_permlane32_swap_b32 v45, v41")
        e("v_add_f32 v44, v44, v40"); e("v_add_f32 v45, v45, v41")
        e.raw(f"{lab0}:")
        e(f"v_fma_f32 v{PR}, v{TR}, v44, v{PR}")
        e(f"v_fma_f32 v{PI}, v{TR}, v45, v{PI}")
        e(f"v_fma_f32 v{PR}, -v{TI}, v45, v{PR}")
        e(f"v_fma_f32 v{PI}, v{TI}, v44, v{PI}")
        pr_, pi_ = PR, PI
        for i in range(8):
            zr, zi = AZ + i, AZ + 8 + i
            e(f"v_fma_f32 v{zr}, v{LR}, v{pr_}, v{zr}")
            e(f"v_fma_f32 v{zi}, v{LR}, v{pi_}, v{zi}")
            e(f"v_fma_f32 v{zr}, -v{LI}, v{pi_}, v{zr}")
            e(f"v_fma_f32 v{zi}, v{LI}, v{pr_}, v{zi}")
            pr_, pi_ = zr, zi
        for p in range(4):
            e(f"v_cvt_pk_bf16_f32 v{36+p}, v{AZ+2*p}, v{AZ+2*p+1}")
            e(f"v_cvt_pk_bf16_f32 v{40+p}, -v{AZ+8+2*p}, -v{AZ+8+2*p+1}")
        e("ds_write_b128 v1, v[36:39]")
        e("ds_write_b128 v1, v[40:43] offset:1024")
        e.wait_all(vm=False)
        tk = [e("ds_read_b64_tr_b16 v[36:37], v2"), e("ds_read_b64_tr_b16 v[38:39], v2 offset:256"),
              e("ds_read_b64_tr_b16 v[40:41], v2 offset:1024"), e("ds_read_b64_tr_b16 v[42:43], v2 offset:1280")]
        e.wait(tk)
        e(f"buffer_store_dwordx4 v[36:39], v3, s[32:35], s76 offen{STF}")
        e("s_add_u32 s76, s76, 4096")
        e(f"buffer_store_dwordx4 v[40:43], v3, s[32:35], s76 offen{STF}")
    def tail_addr():
        e("s_lshl_b32 s56, s48, 11")
        e(f"s_add_u32 s56, s56, {M_TR}")
        e("v_and_b32 v1, 15, v0"); yield
        e("v_lshlrev_b32 v1, 6, v1"); yield
        e("v_lshrrev_b32 v2, 4, v0"); yield
        e("v_lshl_add_u32 v1, v2, 4, v1"); yield
        e("v_add_u32 v1, s56, v1"); yield
        e("v_lshrrev_b32 v2, 5, v0"); yield
        e("v_bfe_u32 v3, v0, 2, 2"); yield
        e("v_lshl_add_u32 v2, v2, 3, v3"); yield
        e("v_lshlrev_b32 v2, 6, v2"); yield
        e("v_bfe_u32 v3, v0, 4, 1"); yield
        e("v_lshl_add_u32 v2, v3, 5, v2"); yield
        e("v_and_b32 v3, 3, v0"); yield
        e("v_lshl_add_u32 v2, v3, 3, v2"); yield
        e("v_add_u32 v2, s56, v2"); yield
        e("v_lshlrev_b32 v3, 4, v0"); yield
        e("s_lshl_b32 s56, s53, 1")
        e("s_add_u32 s56, s56, s55")
        e("s_lshr_b32 s57, s56, 2")
        e("s_lshl_b32 s57, s57, 3")
        e("s_and_b32 s56, s56, 3")
        e("s_add_u32 s56, s56, s57")
        e("s_lshl_b32 s57, s52, 2")
        e("s_add_u32 s57, s57, s54")
        e("s_mul_i32 s57, s57, 56")
        e("s_add_u32 s56, s56, s57")
        e("s_lshl_b32 s56, s56, 10")
        e(f"s_add_u32 s76, s56, {WS_hF}")
        yield

    def cost(i):
        if i.cls == "valu": return 2.0 if i.op in TRANS else 1.0
        if i.cls in ("ds", "vmem"): return 0.5
        return 0.1
    class Fill:
        def __init__(self): self.q = []; self.cur = None; self.barrier_at = None
        def add(self, *items): self.q += list(items)
        def run(self, budget, tick):
            spent = 0.0
            while spent < budget:
                if self.cur is None:
                    if not self.q: return
                    it = self.q[0]
                    if it == "barrier":
                        if self.barrier_at is None: self.barrier_at = tick
                        if tick <= self.barrier_at: return
                        self.barrier_at = None; self.q.pop(0); continue
                    if it == "aux2gate":
                        if "a2_tick" not in aux or tick <= aux["a2_tick"]: return
                        self.q.pop(0); continue
                    if it == "step17":
                        if tick < 13: return
                        self.q.pop(0); continue
                    self.q.pop(0); self.cur = it() if callable(it) else it
                n0 = len(e.ins)
                try: next(self.cur)
                except StopIteration: self.cur = None
                spent += sum(cost(i) for i in e.ins[n0:])
        def flush(self):
            while self.cur is not None or self.q:
                if self.cur is None:
                    it = self.q.pop(0)
                    if it == "step17": continue
                    if it == "barrier" or it == "aux2gate":
                        e.wait_all(vm=False); e("s_barrier"); self.barrier_at = None
                        continue
                    self.cur = it() if callable(it) else it
                for _ in self.cur: pass
                self.cur = None
    F = Fill()
    F.add(params)
    slot = {"A": 0, "B": 0}
    last = None
    for (ph, ks, si, did) in main_stream():
        if (ph, ks) != last and (ph, ks) in STAMPS: pr.stamp()
        last = (ph, ks)
        n = slot[ph]; slot[ph] += 1
        tk = nbar[0]
        if NOEPI:
            if ph == "A" and not did: F.run(BUDGET_A, tk)
            continue
        if ph == "A":
            if COOP and n == CT2: coop_touch(3, 4, 0, False, 226)
            if COOP and n == CT3: coop_touch(0, 4, 128, True, 226)
            if COOP and n == CT4: coop_touch(4, 3, 128, True, 226)
            if n == RB_SLOT and RB_LATE: rowbatch_compute()
            if n == PUB_SLOT: rowbatch_publish()
            if n == AUX_LOAD: F.flush(); aux1_issue()
            if n == AUX_FIN: aux1_finish(); F.add("barrier", aux1_read)
            if not did: F.run(BUDGET_A, tk)
        else:
            if n == 0:
                F.flush()
                if ZFIRST:
                    drain(z_pass1()); drain(hier1())
                    e.wait_all(vm=False); e("s_barrier")
                    drain(hier2())
                    F.add(zscale, cs_base, tail_addr, "aux2gate",
                          lambda: cs_reads(0, 128), lambda: cs_reads(1, 144), lambda: gu_epi(0, 128),
                          lambda: cs_reads(2, 128), lambda: gu_epi(1, 144), lambda: cs_reads(3, 144), "step17", e_consts)
                else:
                  F.add(z_pass1, hier1, "barrier", hier2, zscale, cs_base, "aux2gate",
                      lambda: cs_reads(0, 128), lambda: cs_reads(1, 144), lambda: gu_epi(0, 128),
                      lambda: cs_reads(2, 128), lambda: gu_epi(1, 144), lambda: cs_reads(3, 144), tail_addr)
            if fused and G.EARLY_B and n == 1:
                early_B_setup(); early_B_queue(0, G.EARLY_B1)
            if fused and n >= EB_SLOT and (n - EB_SLOT) % EB_GAP == 0 and ebq and (n & 1) == 0: ebq.popleft()()
            if n == AUX2_SLOT: aux2_issue()
            if n == AUX2_FIN: aux2_finish(); aux["a2_tick"] = tk
            if PF_SLOT >= 0 and n >= PF_SLOT and (n - PF_SLOT) % PF_GAP == 0 and (n - PF_SLOT) // PF_GAP < 11: k2_touch((n - PF_SLOT) // PF_GAP, n)
            if not did: F.run(BUDGET_B0 if n < 30 else BUDGET_B, tk)
    if NOEPI:
        pr.dump(32, 48)
        e.raw("K1_END:")
        e("s_endpgm")
        gen_helper(e)
        return 256
    e_issue(); aux["e_vm"] = e.vm_issued
    if fused and G.EARLY_B > G.EARLY_B1:
        while ebq: ebq.popleft()()
        e.wait_all(vm=False); e("s_barrier")
        early_B_queue(G.EARLY_B1, G.EARLY_B)
    if TAILST2: pr.stamp()
    F.flush()
    if TAILST2: pr.stamp()
    if not ZFIRST: drain_eb(e_consts(), 12)
    drain_eb(gu_epi(2, 128), 10)
    if TAILST2: pr.stamp()
    drain_eb(gu_epi(3, 144), 10)
    while ebq: ebq.popleft()()
    if TAILST: pr.stamp()
    e_check(e.vm_issued - aux["e_vm"])
    if TAILST2: pr.stamp()
    carry_and_pass2()
    pr.stamp()
    pr.dump(32, 48)
    if fused:
        if G.PROFILE: e("s_mov_b64 exec, -1")
        G.gen_k2(e, fused=True)
    e.raw("K1_END:")
    e("s_endpgm")
    gen_helper(e)
    return 256
```

```python
import sys, os
sys.path.insert(0, "dev")
from asmlib import *
import gen as G
from gen import *
from collections import deque

def cmul(e, dr, di, ar, ai, br, bi, t):
    e(f"v_mul_f32 v{t}, v{ai}, v{bi}"); yield
    e(f"v_mul_f32 v{t+1}, v{ai}, v{br}"); yield
    e(f"v_fma_f32 v{t}, v{ar}, v{br}, -v{t}"); yield
    e(f"v_fma_f32 v{di}, v{ar}, v{bi}, v{t+1}"); yield
    e(f"v_mov_b32 v{dr}, v{t}"); yield
def csq(e, dr, di, ar, ai, t):
    e(f"v_mul_f32 v{t}, v{ai}, v{ai}"); yield
    e(f"v_mul_f32 v{t+1}, v{ar}, v{ai}"); yield
    e(f"v_fma_f32 v{dr}, v{ar}, v{ar}, -v{t}"); yield
    e(f"v_add_f32 v{di}, v{t+1}, v{t+1}"); yield
def cfma(e, hr, hi, lr, li, br, bi, t):
    e(f"v_fma_f32 v{t}, v{lr}, v{hr}, v{br}"); yield
    e(f"v_fma_f32 v{t+1}, v{lr}, v{hi}, v{bi}"); yield
    e(f"v_fma_f32 v{t}, -v{li}, v{hi}, v{t}"); yield
    e(f"v_fma_f32 v{hi}, v{li}, v{hr}, v{t+1}"); yield
    e(f"v_mov_b32 v{hr}, v{t}"); yield
def cfma_to(e, dr, di, hr, hi, lr, li, br, bi):
    e(f"v_fma_f32 v{dr}, v{lr}, v{hr}, v{br}"); yield
    e(f"v_fma_f32 v{di}, v{lr}, v{hi}, v{bi}"); yield
    e(f"v_fma_f32 v{dr}, -v{li}, v{hi}, v{dr}"); yield
    e(f"v_fma_f32 v{di}, v{li}, v{hr}, v{di}"); yield

def gen_helper(e):
    e.raw("K1_HELPER:")
    e.lg_issued = e.lg_done = 0; e.vm_issued = e.vm_done = 0
    if os.environ.get("CODEPF", "0") == "1":
        lab = e.label("K1H_CP")
        e("s_cmp_lg_u32 s48, 7")
        e(f"s_cbranch_scc1 {lab}")
        e("v_lshlrev_b32 v10, 7, v0")
        for k in range(4):
            e("v_min_u32 v11, K1_CODE_LAST-K1_CODE_FIRST, v10")
            e(f"global_load_dword v{20+k}, v11, s[84:85]")
            if k < 3: e("v_add_u32 v10, 8192, v10")
        e.raw(f"{lab}:")
    HW = os.environ.get("HWARM", "1") == "1"
    e("s_cmp_ge_u32 s2, 28")
    e("s_cbranch_scc1 K1H_WARM" if HW else "s_cbranch_scc1 K1_END")
    srd(e, 32, 18, WS_END if not G.PROFILE else (16 << 20))
    pr = G.Prof(e, 0); pr.stamp()
    srd(e, 36, 16, 256)
    e("s_cmp_ge_u32 s2, 14")
    e("s_cselect_b32 s28, s14, s12")
    e("s_cselect_b32 s29, s15, s13")
    e("s_cselect_b32 s54, 14, 0")
    e("s_cselect_b32 s56, 1792, 0")
    e("s_and_b32 s29, s29, 0xffff")
    e("s_sub_u32 s54, s2, s54")
    e(f"s_mov_b32 s30, {448*1792*2}")
    e("s_mov_b32 s31, 0x20000")
    e("v_lshrrev_b32 v4, 4, v0")
    e("s_movk_i32 s50, 3584")
    e("v_mul_lo_u32 v4, s50, v4")
    e("v_and_b32 v5, 15, v0")
    e("v_lshl_add_u32 v4, v5, 4, v4")
    e(f"s_mul_i32 s55, s48, {56*3584}")
    e("s_lshl_b32 s57, s54, 8")
    e("s_add_u32 s55, s55, s57")
    nonce_cas(e, 12)
    WL = 72
    U = 128
    wt = []
    for n in range(14):
        e(f"s_add_u32 s57, s55, {n*4*3584}")
        wt.append(e(f"buffer_load_dwordx4 v[{WL+4*n}:{WL+4*n+3}], v4, s[28:31], s57 offen"))
    A = 16
    for n in range(14):
        e.wait(wt[n])
        if n == 0:
            pr.stamp()
            nonce_publish(e, 12, 32768)
        for d in range(4):
            src = WL + 4*n + d
            if n == 0:
                e(f"v_lshlrev_b32 v{A+2*d}, 16, v{src}")
                e(f"v_and_b32 v{A+2*d+1}, 0xffff0000, v{src}")
            else:
                e(f"v_lshlrev_b32 v6, 16, v{src}")
                e(f"v_and_b32 v7, 0xffff0000, v{src}")
                e(f"v_add_f32 v{A+2*d}, v{A+2*d}, v6")
                e(f"v_add_f32 v{A+2*d+1}, v{A+2*d+1}, v7")
    pr.stamp()
    e("v_lshrrev_b32 v6, 4, v0")
    e("s_lshl_b32 s57, s48, 2")
    e("v_add_u32 v6, s57, v6")
    e("v_lshlrev_b32 v6, 9, v6")
    e("v_lshl_add_u32 v6, v5, 5, v6")
    e(f"ds_write_b128 v6, v[{A}:{A+3}]")
    e(f"ds_write_b128 v6, v[{A+4}:{A+7}] offset:16")
    e.wait_all(vm=False)
    e("s_barrier")
    e("s_cmp_ge_u32 s48, 2")
    e("s_cbranch_scc1 K1H_WARM" if HW else "s_cbranch_scc1 K1_END")
    nonce_read(e, 13, 32768)
    e("s_lshl_b32 s57, s48, 6")
    e("v_add_u32 v6, s57, v0")
    e("v_lshlrev_b32 v7, 2, v6")
    for p in range(32): e(f"ds_read_b32 v{U+p}, v7 offset:{p*512}")
    e.wait_all(vm=False)
    for st in (16, 8, 4, 2, 1):
        for p in range(st): e(f"v_add_f32 v{U+p}, v{U+p}, v{U+p+st}")
    e("s_lshl_b32 s57, s54, 7")
    e("s_add_u32 s57, s57, s56")
    e("v_add_u32 v6, s57, v6")
    e("v_lshlrev_b32 v6, 3, v6")
    e(f"v_add_u32 v6, {WS_CSW}, v6")
    e(f"v_mov_b32 v{U+1}, s98")
    e(f"buffer_store_dwordx2 v[{U}:{U+1}], v6, s[32:35], 0 offen sc1")
    pr.stamp()
    pr.dump(32, 48)
    if HW:
        if G.PROFILE: e("s_mov_b64 exec, -1")
        e.raw("K1H_WARM:")
        e("s_lshl_b32 s49, s2, 3"); e("s_add_u32 s49, s49, s48")
        e("s_mul_i32 s50, s49, 49")
        e("v_min_u32 v6, 48, v0")
        e("v_add_u32 v6, s50, v6"); e("v_lshlrev_b32 v6, 7, v6")
        e("global_load_dword v7, v6, s[86:87]")
        e("s_mul_i32 s50, s49, 13")
        e("v_and_b32 v6, 15, v0"); e("v_min_u32 v6, 12, v6")
        e("v_add_u32 v6, s50, v6"); e("v_min_u32 v6, 3135, v6"); e("v_lshlrev_b32 v6, 7, v6")
        e("global_load_dword v8, v6, s[88:89]")
        e("global_load_dword v9, v6, s[90:91]")
        e("s_waitcnt vmcnt(0)")
    e.raw("K1_CODE_LAST:")
    e("s_endpgm")

def nonce_cas(e, v):
    lab = e.label("K1_NC")
    e("s_cmp_lg_u32 s48, 0")
    e(f"s_cbranch_scc1 {lab}")
    e.cond_begin()
    e.raw("s_memrealtime s[100:101]")
    e.raw("s_waitcnt lgkmcnt(0)")
    e("s_or_b32 s99, s100, 1")
    e(f"v_mov_b32 v{v}, s99")
    e(f"v_mov_b32 v{v+1}, 0")
    e(f"v_mov_b32 v{v+2}, 0")
    e("s_mov_b64 s[58:59], exec")
    e("s_mov_b64 exec, 1")
    e(f"buffer_atomic_cmpswap v[{v}:{v+1}], v{v+2}, s[36:39], 0 offen sc0")
    e("s_mov_b64 exec, s[58:59]")
    e.cond_end()
    e.raw(f"{lab}:")
    e.vm_at_cas = e.vm_issued
def nonce_publish(e, v, lds):
    lab = e.label("K1_NP")
    e("s_cmp_lg_u32 s48, 0")
    e(f"s_cbranch_scc1 {lab}")
    e.cond_begin()
    e.raw(f"s_waitcnt vmcnt({min(63, e.vm_issued - e.vm_at_cas)})")
    e(f"v_readfirstlane_b32 s100, v{v}")
    e("s_cmp_eq_u32 s100, 0")
    e("s_cselect_b32 s100, s99, s100")
    e(f"v_mov_b32 v{v}, s100")
    e(f"v_mov_b32 v{v+1}, {lds}")
    e(f"ds_write_b32 v{v+1}, v{v}")
    e.raw("s_waitcnt lgkmcnt(0)")
    e.cond_end()
    e.raw(f"{lab}:")
def nonce_read(e, v, lds):
    e(f"v_mov_b32 v{v}, {lds}")
    t = e(f"ds_read_b32 v{v}, v{v}")
    e.wait(t)
    e(f"v_readfirstlane_b32 s98, v{v}")

def tagged_retry(e, issue, check, name, maxit=100000, cnt="s61"):
    ok = e.label(name + "_OK"); top = e.label(name + "_RT")
    check()
    e(f"s_cbranch_scc1 {ok}")
    e.cond_begin()
    e(f"s_mov_b32 {cnt}, 0")
    e.raw(f"{top}:")
    e("s_sleep 2")
    issue()
    e.raw("s_waitcnt vmcnt(0)")
    check()
    e(f"s_cbranch_scc1 {ok}")
    e(f"s_add_u32 {cnt}, {cnt}, 1")
    e(f"s_cmp_lt_u32 {cnt}, {maxit}")
    e(f"s_cbranch_scc1 {top}")
    e.cond_end()
    e.raw(f"{ok}:")
```

```python
import sys
sys.path.insert(0, "dev")
from asmlib import *

NAME = "recurrent_scan__ssm_conv_s5__glu_gated_glu__prompt"
WS_HF   = 0
WS_hF   = 64*112*1024
WS_STAT = WS_hF + 64*56*1024
WS_CSW  = WS_STAT + 2048*16
WS_CSB  = WS_CSW + 3584*8
WS_E    = WS_CSB + 896*8
WS_DONE = WS_E + 16*448*16
WS_END  = WS_DONE + 16*128
LOG2E = 1.4426950408889634
import struct, os
def f32(x): return "0x%08x" % struct.unpack("<I", struct.pack("<f", x))[0]

def srd(e, s, ptr, nbytes):
    e(f"s_mov_b32 s{s}, s{ptr}")
    e(f"s_and_b32 s{s+1}, s{ptr+1}, 0xffff")
    e(f"s_mov_b32 s{s+2}, {nbytes}")
    e(f"s_mov_b32 s{s+3}, 0x20000")

def bf16_round_pair(e, dst_lo, dst_hi, a, b, tmp):
    e(f"v_cvt_pk_bf16_f32 v{tmp}, v{a}, v{b}")
    yield
    e(f"v_lshlrev_b32 v{dst_lo}, 16, v{tmp}")
    yield
    e(f"v_and_b32 v{dst_hi}, 0xffff0000, v{tmp}")
    yield

PROFILE = False
WS_PROF = 12 << 20
class Prof:
    def __init__(self, e, kern): self.e = e; self.k = kern; self.n = 0
    def stamp(self):
        if not PROFILE: return
        e = self.e
        import os
        e.raw("s_memtime s[96:97]" if os.environ.get("CLK") == "cyc" else "s_memrealtime s[96:97]")
        e.raw("s_waitcnt lgkmcnt(0)"); e.lg_done = e.lg_issued
        e.raw(f"s_mov_b32 s{80+self.n}, s96"); self.n += 1
        assert self.n <= ((6 if not os.environ.get('NOPF') else 12) if self.k == 0 else 12)
    def dump(self, srd_ws, wave_s):
        if not PROFILE: return
        e = self.e
        e(f"s_lshl_b32 s96, s2, 3"); e(f"s_add_u32 s96, s96, s{wave_s}"); e("s_lshl_b32 s96, s96, 6")
        e(f"s_add_u32 s96, s96, {WS_PROF + self.k*256*8*64}")
        for i in range(16):
            e(f"v_mov_b32 v{200+i}, s{80+i}" if i < self.n else f"v_mov_b32 v{200+i}, 0")
        e("v_mov_b32 v216, 0")
        e("s_mov_b64 exec, 1")
        for q in range(4):
            e(f"buffer_store_dwordx4 v[{200+4*q}:{203+4*q}], v216, s[{srd_ws}:{srd_ws+3}], s96 offen offset:{16*q}")
        e("s_waitcnt vmcnt(0)")

def pull(gen, n):
    if gen is None: return None
    for _ in range(n):
        try: next(gen)
        except StopIteration: return None
    return gen
def drain(gen):
    if gen is None: return
    for _ in gen: pass

K2_R = 9
K2_STAGE = 16384
K2RA = int(os.environ.get("K2RA", "5"))
EARLY_B = int(os.environ.get("EARLY_B", "12"))
EARLY_B1 = int(os.environ.get("EARLY_B1", "9"))
def gen_k2(e, fused=False):
    global K2_R
    RA = K2RA if fused else K2_R
    RB = (20 - RA) if fused else K2_R
    if not fused: RA, RB = 9, 9
    def baseB(t): return (t % RB) * 8192
    def baseA(t): return RB * 8192 + (t % RA) * 8192
    if not fused:
        e.raw("k2_kernel:")
        e("s_cmp_ge_u32 s2, 224")
        e("s_cbranch_scc1 K2_END")
    else:
        e("s_lshl_b32 s76, s52, 7")
        e(f"s_add_u32 s76, s76, {WS_DONE}")
        e("s_lshl_b32 s79, s53, 2")
        e("s_and_b32 s71, s52, 3")
        e("s_cmp_ge_u32 s53, 7")
        e("s_cselect_b32 s49, 1, 0")
        e("s_cselect_b32 s50, 7, 0")
        e("s_sub_u32 s50, s53, s50")
        e("s_lshl_b32 s51, s52, 1")
        e("s_add_u32 s49, s49, s51")
        e("s_mov_b32 s72, s32"); e("s_mov_b32 s73, s33"); e("s_mov_b32 s74, s34"); e("s_mov_b32 s75, s35")
    e("s_load_dwordx2 s[4:5], s[0:1], 0")
    e("s_load_dwordx2 s[6:7], s[0:1], 40")
    e("s_load_dwordx2 s[8:9], s[0:1], 48")
    e("s_load_dwordx2 s[10:11], s[0:1], 64")
    e("s_load_dwordx2 s[12:13], s[0:1], 96")
    e("s_load_dwordx2 s[14:15], s[0:1], 104")
    t = e("s_load_dwordx2 s[16:17], s[0:1], 120")
    if not fused:
        e("v_lshrrev_b32 v1, 6, v0")
        e("v_and_b32 v0, 63, v0")
        e("v_readfirstlane_b32 s48, v1")
        e("s_and_b32 s49, s2, 7")
        e("s_lshl_b32 s49, s49, 2")
        e("s_lshr_b32 s50, s2, 3")
        e("s_and_b32 s51, s50, 3")
        e("s_mov_b32 s71, s51")
        e("s_add_u32 s49, s49, s51")
        e("s_lshr_b32 s50, s50, 2")
    e.wait(t)
    srd(e, 20, 4, 2048*448*2)
    srd(e, 24, 6, 448*448*2)
    srd(e, 28, 8, 448*448*2)
    srd(e, 32, 10, 448*2)
    srd(e, 36, 12, 1792*448*2)
    srd(e, 40, 14, 2048*448*4)
    srd(e, 44, 16, WS_END if not PROFILE else (16 << 20))
    if fused:
        e.raw("s_waitcnt vmcnt(2) lgkmcnt(0)")
        e("s_barrier")
        lab = e.label("F_NOADD")
        e("s_cmp_lg_u32 s48, 0")
        e(f"s_cbranch_scc1 {lab}")
        e("v_mov_b32 v2, s79")
        e("v_mov_b32 v3, s98")
        e("s_mov_b64 exec, 1")
        e("buffer_store_dword v3, v2, s[72:75], s76 offen sc1")
        e("s_mov_b64 exec, -1")
        e.raw(f"{lab}:")
        e.lg_issued = e.lg_done = 0; e.vm_issued = e.vm_done = 0
    pr = Prof(e, 1); pr.stamp()
    e("s_cmp_ge_u32 s48, 4")
    e("s_cbranch_scc1 K2_LOADER")
    e("s_and_b32 s52, s48, 1")
    e("s_lshr_b32 s53, s48, 1")
    e("v_and_b32 v1, 31, v0")
    e("v_lshrrev_b32 v2, 5, v0")
    e("v_and_b32 v3, 15, v0")
    e("v_lshrrev_b32 v4, 4, v0")
    e("s_lshl_b32 s54, s49, 6")
    e("s_lshl_b32 s55, s52, 5")
    e("s_add_u32 s54, s54, s55")
    e("v_add_u32 v5, s54, v1")
    e("s_lshl_b32 s55, s50, 6")
    e("s_lshl_b32 s56, s53, 5")
    e("s_add_u32 s55, s55, s56")
    e("v_lshlrev_b32 v6, 2, v2")
    e("v_add_u32 v6, s55, v6")
    e("s_movk_i32 s57, 896")
    e("v_mul_lo_u32 v7, s57, v5")
    e("v_lshlrev_b32 v8, 1, v6")
    e("v_add_u32 v7, v7, v8")
    e("v_lshlrev_b32 v9, 4, v5")
    e(f"v_add_u32 v9, {WS_STAT}, v9")
    e("v_lshlrev_b32 v10, 1, v7")
    XR, DK, ST = 16, 24, 192
    toks = []
    for a in range(4): toks.append(e(f"buffer_load_dwordx2 v[{XR+2*a}:{XR+2*a+1}], v7, s[20:23], 0 offen offset:{16*a}"))
    for a in range(4): toks.append(e(f"buffer_load_dwordx2 v[{DK+2*a}:{DK+2*a+1}], v8, s[32:35], 0 offen offset:{16*a}"))
    toks.append(e(f"buffer_load_dwordx4 v[{ST}:{ST+3}], v9, s[44:47], 0 offen" + (" sc1" if fused else "")))
    epi_toks = toks
    e("s_lshl_b32 s57, s52, 12")
    e("v_lshlrev_b32 v11, 4, v0")
    e("v_add_u32 v11, s57, v11")
    e("v_lshrrev_b32 v13, 2, v3")
    e("v_lshl_add_u32 v13, v2, 2, v13")
    e("v_lshlrev_b32 v12, 7, v13")
    e("v_and_b32 v13, 1, v4")
    e("s_lshl_b32 s57, s53, 1")
    e("v_add_u32 v13, s57, v13")
    e("v_lshrrev_b32 v14, 3, v3")
    e("v_lshlrev_b32 v14, 1, v14")
    e("v_xor_b32 v13, v13, v14")
    e("v_lshl_add_u32 v12, v13, 5, v12")
    e("v_and_b32 v13, 3, v3")
    e("v_lshl_add_u32 v12, v13, 3, v12")
    e("s_lshl_b32 s57, s53, 5")
    e("v_add_u32 v13, s57, v1")
    e("v_lshlrev_b32 v13, 7, v13")
    e("v_lshrrev_b32 v14, 1, v1")
    e("v_and_b32 v14, 7, v14")
    e("v_xor_b32 v14, v14, v2")
    e("v_lshl_add_u32 v13, v14, 4, v13")
    PH, PW, PC = 11, 12, 13
    TH, TW = 14, 15
    ACCO, ACCY = 64, 80
    FR = 96
    XF, SK, G = 34, 160, 176
    T0 = 50
    def hfrag(set_, kk): return FR + set_*32 + kk*8
    def wfrag(set_, kk): return FR + set_*32 + kk*8 + 4

    def pre_epi():
        e.wait(epi_toks)
        yield
        e(f"v_rcp_f32 v{T0}, v{ST+2}")
        yield
        for p in range(8):
            xa, xb = XF+2*p, XF+2*p+1
            e(f"v_lshlrev_b32 v{xa}, 16, v{XR+p}"); yield
            e(f"v_and_b32 v{xb}, 0xffff0000, v{XR+p}"); yield
            e(f"v_sub_f32 v{T0+1}, v{xa}, v{ST}"); yield
            e(f"v_sub_f32 v{T0+2}, v{xb}, v{ST}"); yield
            yield from bf16_round_pair(e, T0+1, T0+2, T0+1, T0+2, T0+3)
            e(f"v_mul_f32 v{T0+1}, v{T0+1}, v{T0}"); yield
            e(f"v_mul_f32 v{T0+2}, v{T0+2}, v{T0}"); yield
            yield from bf16_round_pair(e, T0+1, T0+2, T0+1, T0+2, T0+3)
            e(f"v_lshlrev_b32 v{T0+4}, 16, v{DK+p}"); yield
            e(f"v_and_b32 v{T0+5}, 0xffff0000, v{DK+p}"); yield
            e(f"v_mul_f32 v{T0+1}, v{T0+1}, v{T0+4}"); yield
            e(f"v_mul_f32 v{T0+2}, v{T0+2}, v{T0+5}"); yield
            yield from bf16_round_pair(e, SK+2*p, SK+2*p+1, T0+1, T0+2, T0+3)
    def silu_epi():
        for p in range(8):
            a, b = T0+1, T0+2
            yield from bf16_round_pair(e, a, b, ACCO+2*p, ACCO+2*p+1, T0+3)
            e(f"v_mul_f32 v{T0+4}, {f32(-LOG2E)}, v{a}"); yield
            e(f"v_mul_f32 v{T0+5}, {f32(-LOG2E)}, v{b}"); yield
            e(f"v_exp_f32 v{T0+4}, v{T0+4}"); yield
            e(f"v_exp_f32 v{T0+5}, v{T0+5}"); yield
            e(f"v_add_f32 v{T0+4}, 1.0, v{T0+4}"); yield
            e(f"v_add_f32 v{T0+5}, 1.0, v{T0+5}"); yield
            e(f"v_rcp_f32 v{T0+4}, v{T0+4}"); yield
            e(f"v_rcp_f32 v{T0+5}, v{T0+5}"); yield
            e(f"v_mul_f32 v{a}, v{a}, v{T0+4}"); yield
            e(f"v_mul_f32 v{b}, v{b}, v{T0+5}"); yield
            yield from bf16_round_pair(e, G+2*p, G+2*p+1, a, b, T0+3)

    NST = 42
    fill = pre_epi()
    first = {ACCO: True, ACCY: True}
    def mfmas(t):
        acc = ACCO if t < 28 else ACCY
        for kk in range(4):
            c = "0" if first[acc] else f"v[{acc}:{acc+15}]"
            first[acc] = False
            e(f"v_mfma_f32_32x32x16_bf16 v[{acc}:{acc+15}], v[{wfrag(t&1,kk)}:{wfrag(t&1,kk)+3}], v[{hfrag(t&1,kk)}:{hfrag(t&1,kk)+3}], {c}")
            yield
    for t in range(NST + 1):
        if t < NST:
            if fused and t == 3: e.raw("s_waitcnt vmcnt(0)"); e.vm_done = e.vm_issued
            e("s_barrier")
            if fused and t == 3:
                lab = e.label("F_NOH")
                e("s_cmp_lg_u32 s48, 0")
                e(f"s_cbranch_scc1 {lab}")
                e.cond_begin()
                e("v_mov_b32 v56, s79")
                e("v_mov_b32 v57, s98")
                e("s_mov_b64 exec, 1")
                e("buffer_store_dword v57, v56, s[72:75], s76 offen offset:64 sc1")
                e("s_mov_b64 exec, -1")
                e.cond_end()
                e.raw(f"{lab}:")
            if t in (0, 1, 8, 16, 28, 41): pr.stamp()
            e(f"v_add_u32 v{TH}, {baseA(t)}, v{PH}")
            if t < 28: e(f"v_add_u32 v{TW}, {baseB(t)}, v{PW}")
            else:      e(f"v_add_u32 v{TW}, {baseB(t)}, v{PC}")
        mf = mfmas(t-1) if t >= 1 else None
        for kk in range(4):
            if t < NST:
                e(f"ds_read_b128 v[{hfrag(t&1,kk)}:{hfrag(t&1,kk)+3}], v{TH} offset:{kk*1024}")
                w = wfrag(t&1,kk)
                if t < 28:
                    e(f"ds_read_b64_tr_b16 v[{w}:{w+1}], v{TW} offset:{kk*2048}")
                    e(f"ds_read_b64_tr_b16 v[{w+2}:{w+3}], v{TW} offset:{kk*2048+1024}")
                else:
                    if kk == 0: e(f"ds_read_b128 v[{w}:{w+3}], v{TW}")
                    else:
                        e(f"v_xor_b32 v{T0+8}, {kk<<5}, v{TW}")
                        e(f"ds_read_b128 v[{w}:{w+3}], v{T0+8}")
            if mf is not None: mf = pull(mf, 1)
            fill = pull(fill, 6)
        if t == 29:
            drain(fill); fill = silu_epi()
        if t < NST: e.wait_all(vm=False, lg=True)
    drain(fill)
    for i in range(16):
        e(f"v_add_f32 v{SK+i}, v{ACCY+i}, v{SK+i}")
    for i in range(16):
        e(f"v_fma_f32 v{SK+i}, v{SK+i}, v{G+i}, v{XF+i}")
    for a in range(4):
        e(f"buffer_store_dwordx4 v[{SK+4*a}:{SK+4*a+3}], v10, s[40:43], 0 offen offset:{32*a}")
    pr.stamp()
    if PROFILE: e("s_waitcnt vmcnt(0)")
    pr.stamp()
    pr.dump(44, 48)
    e("s_endpgm")
    e2 = e
    e.raw("K2_LOADER:")
    e.lg_issued = e.lg_done = 0; e.vm_issued = e.vm_done = 0
    e("s_sub_u32 s52, s48, 4")
    e("s_and_b32 s53, s52, 1")
    e("s_lshr_b32 s54, s52, 1")
    e("v_lshlrev_b32 v1, 4, v0")
    e("v_lshrrev_b32 v2, 3, v0")
    e("s_lshl_b32 s55, s52, 4")
    e("v_add_u32 v2, s55, v2")
    e("s_movk_i32 s55, 896")
    e("v_mul_lo_u32 v2, s55, v2")
    e("v_and_b32 v3, 7, v0")
    e("v_lshrrev_b32 v4, 4, v0")
    e("v_and_b32 v5, 1, v4")
    e("v_lshlrev_b32 v5, 2, v5")
    e("v_xor_b32 v5, v5, v3")
    e("v_lshl_add_u32 v5, v5, 4, v2")
    e("v_xor_b32 v6, v4, v3")
    e("v_lshl_add_u32 v6, v6, 4, v2")
    e("v_add_u32 v7, 4, v4")
    e("v_xor_b32 v7, v7, v3")
    e("v_lshl_add_u32 v7, v7, 4, v2")
    e(f"v_add_u32 v7, {8*896}, v7")
    e("s_lshl_b32 s58, s49, 1")
    e("s_add_u32 s58, s58, s53")
    e("s_lshl_b32 s59, s54, 1")
    e("s_mul_i32 s56, s58, 112")
    e("s_add_u32 s56, s56, s59")
    e("s_lshl_b32 s56, s56, 10")
    if WS_HF: e(f"s_add_u32 s56, s56, {WS_HF}")
    e("s_mul_i32 s57, s58, 56")
    e("s_add_u32 s57, s57, s59")
    e("s_lshl_b32 s57, s57, 10")
    e(f"s_add_u32 s57, s57, {WS_hF}")
    e("s_lshl_b32 s60, s53, 2")
    e("s_add_u32 s60, s60, s59")
    e("s_lshl_b32 s60, s60, 10")
    e("s_lshl_b32 s61, s52, 11")
    e("s_lshl_b32 s62, s50, 7")
    e(f"s_mul_i32 s63, s50, {64*896}")
    if os.environ.get("K2ROT", "1") == "1":
        e("s_mul_i32 s65, s71, 7")
        e("s_lshl_b32 s68, s50, 2")
        e("s_add_u32 s65, s65, s68")
        e("s_cmp_ge_u32 s65, 28")
        e("s_cselect_b32 s68, 28, 0")
        e("s_sub_u32 s65, s65, s68")
        e("s_lshl_b32 s66, s71, 1")
        e("s_add_u32 s66, s66, s50")
        e("s_cmp_ge_u32 s66, 7")
        e("s_cselect_b32 s68, 7, 0")
        e("s_sub_u32 s66, s66, s68")
    else:
        e("s_mov_b32 s65, 0"); e("s_mov_b32 s66, 0")
    e("s_mov_b32 s77, s65"); e("s_mov_b32 s78, s66")
    stage_tok = {}
    AFL = " sc1" if (fused and os.environ.get("ASC1", "0") == "1") else ""
    def adv(t, o, m):
        if t < 28:
            e(f"s_add_u32 s{o}, s{o}, 1"); e(f"s_cmp_eq_u32 s{o}, 28"); e(f"s_cselect_b32 s{o}, 0, s{o}")
        elif (t - 28) & 1:
            e(f"s_add_u32 s{m}, s{m}, 1"); e(f"s_cmp_eq_u32 s{m}, 7"); e(f"s_cselect_b32 s{m}, 0, s{m}")
    def issueA(t):
        base = baseA(t)
        if t < 28:
            e("s_lshl_b32 s69, s65, 12")
            e("s_add_u32 s69, s69, s56")
        else:
            e("s_lshl_b32 s69, s66, 13")
            e("s_add_u32 s69, s69, s57")
            if (t - 28) & 1: e("s_add_u32 s69, s69, 4096")
        for a in range(2):
            e(f"s_add_u32 m0, s60, {base + a*1024}")
            if a: e("s_add_u32 s69, s69, 1024")
            tok = e(f"buffer_load_dwordx4 v1, s[44:47], s69 offen{AFL} lds")
        adv(t, 65, 66)
        return tok
    def issueB(t):
        base = baseB(t)
        part = (t - 28) & 1
        if t < 28:
            e(f"s_mul_i32 s70, s77, {64*896}")
            e("s_add_u32 s70, s70, s62")
        else:
            e("s_lshl_b32 s70, s78, 7")
            e("s_add_u32 s70, s70, s63")
        for a in range(2):
            e(f"s_add_u32 m0, s61, {base + a*1024}")
            if t < 28:
                if a: e("s_add_u32 s70, s70, 7168")
                tok = e("buffer_load_dwordx4 v5, s[36:39], s70 offen lds")
            else:
                tok = e(f"buffer_load_dwordx4 v{6+a}, s[{24+4*part}:{27+4*part}], s70 offen lds")
        adv(t, 77, 78)
        return tok
    def poll(off):
        top = e.label("F_POLL"); ok = e.label("F_POLLOK")
        e("v_and_b32 v8, 15, v0")
        e("v_min_u32 v8, 13, v8")
        e("v_lshlrev_b32 v8, 2, v8")
        e("s_mov_b32 s80, 0" if not PROFILE else "s_mov_b32 s95, 0")
        c = "s80" if not PROFILE else "s95"
        e.raw(f"{top}:")
        e(f"buffer_load_dword v9, v8, s[44:47], s76 offen offset:{off} sc1")
        e.raw("s_waitcnt vmcnt(0)")
        e("v_cmp_ne_u32 vcc, s98, v9")
        e("s_cmp_eq_u64 vcc, 0")
        e(f"s_cbranch_scc1 {ok}")
        e(f"s_add_u32 {c}, {c}, 1")
        e(f"s_cmp_lt_u32 {c}, 200000")
        e(f"s_cbranch_scc1 {top}")
        e.raw(f"{ok}:")
        e.vm_done = e.vm_issued
    def poll_issue(off):
        return e(f"buffer_load_dword v9, v8, s[44:47], s76 offen offset:{off} sc1")
    def poll_check(tok, off):
        ok = e.label("F_PCOK")
        e.wait(tok)
        e("v_cmp_ne_u32 vcc, s98, v9")
        e("s_cmp_eq_u64 vcc, 0")
        e(f"s_cbranch_scc1 {ok}")
        e.cond_begin()
        poll(off)
        e.cond_end()
        e.raw(f"{ok}:")
    pr = Prof(e, 1); pr.n = 1
    PRO = int(os.environ.get("K2PRO", "2"))
    tokA = {}; tokB = {}
    nA = 0; nB = 0
    if fused:
        for t in range(EARLY_B):
            tokB[t] = None; nB += 1; adv(t, 77, 78)
        if EARLY_B == 0:
            for t in range(RB - 1): tokB[t] = issueB(t); nB += 1
        poll(0)
        for t in range(PRO): tokA[t] = issueA(t); nA += 1
    else:
        for t in range(PRO):
            tokA[t] = issueA(t); tokB[t] = issueB(t); nA += 1; nB += 1
    pr.stamp()
    ptok = None
    for t in range(NST):
        e.wait(tokA[t], tokB[t])
        if t in (0, 1, 8, 16, 28, 41): pr.stamp()
        e("s_barrier")
        k = 0
        while k < 2:
            did = False
            if nA < NST and nA <= t + RA - 1:
                if fused and nA == 24: ptok = poll_issue(64)
                if fused and nA == 28: poll_check(ptok, 64)
                tokA[nA] = issueA(nA); nA += 1; did = True
            if nB < NST and nB <= t + RB - 1 and nB <= nA + RB:
                tokB[nB] = issueB(nB); nB += 1; did = True
            if not did: break
            k += 1
        assert nA > t + 1 or nA == NST or True
    pr.dump(44, 48)
    e.raw("K2_END:")
    e("s_endpgm")

def kd(name, vgpr, sgpr=102):
    acc = (vgpr + 3)//4*4
    return f""".amdhsa_kernel {name}
  .amdhsa_next_free_vgpr {vgpr}
  .amdhsa_next_free_sgpr {sgpr}
  .amdhsa_accum_offset {acc}
  .amdhsa_group_segment_fixed_size 0
  .amdhsa_kernarg_size 128
  .amdhsa_user_sgpr_count 2
  .amdhsa_user_sgpr_kernarg_segment_ptr 1
  .amdhsa_system_sgpr_workgroup_id_x 1
.end_amdhsa_kernel"""

def main():
    global PROFILE
    which = sys.argv[2] if len(sys.argv) > 2 else "k2"
    if len(sys.argv) > 3 and "prof" in sys.argv[3]: PROFILE = True
    hdr = open(f"cdna_kernels/{NAME}.s.ref").read().split("; Override launch")[0]
    out = [hdr.rstrip()]
    kernels = []
    fused = "fused" in which
    KN = NAME + "_kernel" if fused else "k1_kernel"
    if fused:
        if os.environ.get("PLAIN", "0") == "1": out.append("; @launch grid=(256,1,1) block=(512,1,1) lds=163840")
        else: out.append(f"; @launch kernel={KN} grid=(256,1,1) block=(512,1,1) lds=163840")
    else:
        if "k1" in which:
            out.append("; @launch kernel=k1_kernel grid=(256,1,1) block=(512,1,1) lds=163840")
        if "k2" in which:
            out.append(f"; @launch kernel=k2_kernel grid=(224,1,1) block=(512,1,1) lds={K2_R*K2_STAGE}")
    out.append('.amdgcn_target "amdgcn-amd-amdhsa--gfx950"\n.text')
    kds = []
    if fused:
        import gen_k1b as gen_k1
        gen_k1.G.PROFILE = PROFILE
        e = Emit(); vg = gen_k1.gen_k1(e, fused=True, kname=KN)
        out.append(f".globl {KN}\n.p2align 8\n.type {KN},@function"); out.append(e.finish()); kds.append(kd(KN, vg))
    else:
        if "k1" in which:
            import gen_k1b as gen_k1
            gen_k1.G.PROFILE = PROFILE
            e = Emit(); vg = gen_k1.gen_k1(e)
            out.append(".globl k1_kernel\n.p2align 8\n.type k1_kernel,@function"); out.append(e.finish()); kds.append(kd("k1_kernel", vg))
        if "k2" in which:
            e = Emit(); gen_k2(e)
            out.append(".globl k2_kernel\n.p2align 8\n.type k2_kernel,@function"); out.append(e.finish()); kds.append(kd("k2_kernel", 200 if not PROFILE else 224))
    out.append('.section .rodata,"a"\n.p2align 6')
    out.append("\n.p2align 6\n".join(kds))
    open(sys.argv[1], "w").write("\n".join(out) + "\n")
if __name__ == "__main__": main()
```

```python
import sys, os
sys.path.insert(0, "dev")
from asmlib import *
import gen as G
from gen import *
from k1_common import *
from collections import deque

env = lambda k, d: type(d)(os.environ.get(k, d)) if not isinstance(d, bool) else os.environ.get(k, "1" if d else "0") == "1"
STAMPS = eval(os.environ.get("STAMPS", '[("A",0),("A",27),("B",0),("B",27)]'))
NOEPI = env("NOEPI", False); NODMA = env("NODMA", False)
PRO_DMAS = env("PRO_DMAS", 10); MAP2 = env("MAP2", True); COOP = env("COOP", False); ROT = env("ROT", 1 if not COOP else 0)
CT2 = env("CT2", 1); CT3 = env("CT3", 22); CT4 = env("CT4", 34)
EB_SLOT = env("EB_SLOT", 4); EB_GAP = env("EB_GAP", 6); EBV = 13
PF_GAP = env("PF_GAP", 4); PF_SLOT = env("PF_SLOT", -1); AUX2_SLOT = env("AUX2_SLOT", 6); E_SLOT = env("E_SLOT", 48)
AUX2_FIN = env("AUX2_FIN", 26)
AUX_LOAD = env("AUX_LOAD", 50); AUX_FIN = env("AUX_FIN", 68); PUB_SLOT = env("PUB_SLOT", 11)
BUDGET_A = env("BUDGET_A", 4.0); BUDGET_B = env("BUDGET_B", 6.0); BUDGET_B0 = env("BUDGET_B0", 7.0)

DMAFLAG = os.environ.get("DMAFLAG", "")
if DMAFLAG: DMAFLAG = " " + DMAFLAG
ECLATE = env("ECLATE", True); ZFIRST = env("ZFIRST", False); TAILST2 = env("TAILST2", False); TAILST = env("TAILST", True); PSTAMP = env("PSTAMP", False); DMA_HURRY = env("DMA_HURRY", 6); RB_LATE = env("RB_LATE", True); RB_SLOT = env("RB_SLOT", 7)
XR, ZR, WR = 0, 49152, 73728
MISC = 139264
M_ST = MISC; M_CS = MISC + 1024; M_SEG = MISC + 2048; M_N = MISC + 3072
M_SD = MISC + 3328; M_CB = MISC + 3840
M_PART = MISC + 3328
M_PB = MISC + 5376
M_TR = MISC + 6656
AX, AZr, AW0, AW1 = 1, 5, 9, 10
VX0, VX1, VZ, VW = 11, 12, 13, 14
LR, LI, CR, CI, L8R, L8I, L128R, L128I, TR, TI = 15, 16, 17, 18, 19, 20, 21, 22, 23, 24
M_, SD, NLR, CSR, CSI, PR, PI, ER, EI = 25, 26, 27, 28, 29, 30, 31, 32, 33
VH = 47

AZ = 48
AG = [64, 80, 96, 112]
XF = 128
FB = 240

def gen_k1(e, fused=False, kname="k1_kernel"):
    STF = os.environ.get("STF", " sc1") if fused else ""
    e.raw(f"{kname}:")
    e("s_cmp_ge_u32 s2, 256")
    e("s_cbranch_scc1 K1_END")
    if env("CODEPF", False): e("s_getpc_b64 s[84:85]")
    e.raw("K1_CODE_FIRST:")
    e("s_load_dwordx2 s[4:5], s[0:1], 0")
    e("s_load_dwordx2 s[6:7], s[0:1], 8")
    e("s_load_dwordx2 s[8:9], s[0:1], 24")
    e("s_load_dwordx2 s[10:11], s[0:1], 32")
    e("s_load_dwordx2 s[12:13], s[0:1], 80")
    e("s_load_dwordx2 s[14:15], s[0:1], 88")
    e("s_load_dwordx2 s[16:17], s[0:1], 112")
    e("s_load_dwordx2 s[18:19], s[0:1], 120")
    e("s_load_dwordx2 s[62:63], s[0:1], 16")
    e("s_load_dwordx2 s[86:87], s[0:1], 96")
    e("s_load_dwordx2 s[88:89], s[0:1], 40")
    e("s_load_dwordx2 s[90:91], s[0:1], 48")
    t = e("s_load_dwordx2 s[64:65], s[0:1], 56")
    e("v_lshrrev_b32 v1, 6, v0")
    e("v_and_b32 v0, 63, v0")
    e("v_readfirstlane_b32 s48, v1")
    e("s_sub_u32 s49, s2, 32")
    e("s_and_b32 s50, s49, 7")
    e("s_lshr_b32 s51, s49, 3")
    if MAP2:
        e("s_mul_i32 s54, s51, 37")
        e("s_lshr_b32 s54, s54, 8")
        e("s_mul_i32 s53, s54, 7")
        e("s_sub_u32 s55, s51, s53")
        e("s_and_b32 s52, s50, 3")
        e("s_lshl_b32 s53, s54, 2")
        e("s_add_u32 s52, s52, s53")
        e("s_lshl_b32 s51, s55, 2")
        e("s_add_u32 s51, s51, s54")
        e("s_lshr_b32 s53, s50, 2")
        e("s_mul_i32 s53, s53, 7")
        e("s_add_u32 s53, s53, s55")
    else:
        e("s_and_b32 s52, s50, 3")
        e("s_lshl_b32 s52, s52, 2")
        e("s_and_b32 s53, s51, 3")
        e("s_add_u32 s52, s52, s53")
        e("s_lshr_b32 s53, s50, 2")
        e("s_mul_i32 s53, s53, 7")
        e("s_lshr_b32 s54, s51, 2")
        e("s_add_u32 s53, s53, s54")
    e("s_and_b32 s54, s48, 3")
    e("s_lshr_b32 s55, s48, 2")
    e("v_lshrrev_b32 v40, 3, v0")
    e("v_and_b32 v41, 7, v0")
    e("v_lshrrev_b32 v42, 4, v0")
    e("s_movk_i32 s56, 896")
    e("s_lshl_b32 s57, s48, 4")
    e("v_add_u32 v43, s57, v40")
    e("v_mul_lo_u32 v43, s56, v43")
    e("v_xor_b32 v44, v41, v42")
    e(f"v_lshl_add_u32 v{VX0}, v44, 4, v43")
    e("v_add_u32 v44, 4, v42")
    e("v_xor_b32 v44, v41, v44")
    e(f"v_lshl_add_u32 v{VX1}, v44, 4, v43")
    e(f"v_add_u32 v{VX1}, {8*896}, v{VX1}")
    e("s_lshl_b32 s57, s54, 3")
    e("v_add_u32 v43, s57, v40")
    e("v_mul_lo_u32 v43, s56, v43")
    e("s_and_b32 s57, s48, 1")
    e("s_lshl_b32 s57, s57, 2")
    e("v_add_u32 v44, s57, v42")
    e("v_xor_b32 v44, v41, v44")
    e(f"v_lshl_add_u32 v{VZ}, v44, 4, v43")
    e("s_lshl_b32 s57, s54, 3")
    e("v_add_u32 v43, s57, v40")
    e("s_movk_i32 s56, 3584")
    e("v_mul_lo_u32 v43, s56, v43")
    e("v_and_b32 v44, 1, v42")
    e("s_lshl_b32 s57, s55, 1")
    e("v_add_u32 v44, s57, v44")
    e("v_lshlrev_b32 v44, 1, v44")
    e("v_xor_b32 v44, v41, v44")
    e(f"v_lshl_add_u32 v{VW}, v44, 4, v43")
    e(f"s_mul_i32 s66, s52, {128*896}")
    e(f"s_mul_i32 s67, s53, {32*896}")
    e("s_lshl_b32 s72, s53, 8")
    e("s_lshl_b32 s73, s48, 11")
    e("s_lshl_b32 s74, s48, 10")
    e(f"s_add_u32 s74, s74, {ZR}")
    e("s_lshl_b32 s75, s55, 13")
    e("s_lshl_b32 s76, s54, 10")
    e("s_add_u32 s75, s75, s76")
    e(f"s_add_u32 s75, s75, {WR}")
    e.wait(t)
    e("s_cmp_lt_u32 s2, 32")
    e("s_cbranch_scc1 K1_HELPER")
    srd(e, 20, 4, 2048*448*2)
    if ROT == 1:
        e("s_and_b32 s56, s51, 3")
        e("s_lshl_b32 s56, s56, 1")
        e("s_lshr_b32 s57, s51, 2")
        e("s_add_u32 s56, s56, s57")
        e("s_cmp_ge_u32 s56, 7")
        e("s_cselect_b32 s57, 7, 0")
        e("s_sub_u32 s77, s56, s57")
    else:
        e("s_mov_b32 s77, 0")
    e("s_mov_b32 s76, s77")
    e("s_lshl_b32 s4, s76, 7")
    e("s_add_u32 s4, s4, s66")
    e("s_sub_u32 s67, s67, s66")
    ent_tok = {}
    dmaq = deque()
    def entry_dmas(kind, kc):
        def mk(a, last):
            def f():
                if NODMA:
                    if last: ent_tok[(kind, kc)] = None
                    return
                if kind == "X":
                    e(f"s_add_u32 m0, s73, {XR + (kc%3)*16384 + a*1024}")
                    tok = e(f"buffer_load_dwordx4 v{VX0+a}, s[20:23], s{4+kc} offen{DMAFLAG} lds")
                elif kind == "Z":
                    e(f"s_add_u32 m0, s74, {(kc%3)*8192}")
                    e(f"s_add_u32 s77, s67, s{4+kc}")
                    tok = e(f"buffer_load_dwordx4 v{VZ}, s[24:27], s77 offen{DMAFLAG} lds")
                else:
                    ch = kc % 7; colb = 0 if kc < 7 else 128
                    e(f"s_add_u32 m0, s75, {(kc%4)*16384 + a*4096}")
                    e(f"s_add_u32 s77, s{11+ch}, {32*a*3584 + colb}")
                    tok = e(f"buffer_load_dwordx4 v{VW}, s[28:31], s77 offen{DMAFLAG} lds")
                if last: ent_tok[(kind, kc)] = tok
            return f
        n = 1 if kind == "Z" else 2
        return [mk(a, a == n - 1) for a in range(n)]
    def queue(*ents):
        for (k, kc) in ents:
            for f in entry_dmas(k, kc): dmaq.append(f)
    def bz_w_srds():
        e("s_cmp_eq_u32 s55, 0")
        e("s_cselect_b32 s24, s8, s10")
        e("s_cselect_b32 s25, s9, s11")
        e("s_cselect_b32 s28, s12, s14")
        e("s_cselect_b32 s29, s13, s15")
        e("s_and_b32 s25, s25, 0xffff")
        e(f"s_mov_b32 s26, {448*448*2}")
        e("s_mov_b32 s27, 0x20000")
        e("s_and_b32 s29, s29, 0xffff")
        e(f"s_mov_b32 s30, {448*1792*2}")
        e("s_mov_b32 s31, 0x20000")
    M_PF0 = 162304
    def coop_setup():
        e("s_and_b32 s56, s51, 3")
        e("s_lshr_b32 s57, s51, 2")
        e("s_mov_b32 s64, 0")
        e("s_cmp_eq_u32 s54, 0"); e("s_cselect_b32 s64, 1, s64")
        e("s_cmp_eq_u32 s54, 1"); e("s_cselect_b32 s64, 2, s64")
        e("s_cmp_eq_u32 s48, 2"); e("s_cselect_b32 s64, 3, s64")
        e("s_or_b32 s58, s57, s48"); e("s_cmp_eq_u32 s58, 3")
        e("s_cmp_eq_u32 s48, 3"); e("s_cselect_b32 s58, 0, 1"); e("s_or_b32 s58, s58, s57")
        e("s_cmp_eq_u32 s58, 0"); e("s_cselect_b32 s64, 3, s64"); e("s_cselect_b32 s57, 7, s57")
        e(f"s_mul_i32 s58, s56, {16*3584}"); e("s_add_u32 s58, s58, s72")
        e(f"s_mul_i32 s59, s53, {32*896}"); e(f"s_mul_i32 s61, s56, {8*896}"); e("s_add_u32 s59, s59, s61")
        e(f"s_mul_i32 s61, s57, {16*896}"); e("s_add_u32 s61, s61, s66")
        e("s_cmp_eq_u32 s64, 1"); e("s_cselect_b32 s65, s58, s61")
        e("s_cselect_b32 s88, s28, s20"); e("s_cselect_b32 s89, s29, s21"); e("s_cselect_b32 s90, s30, s22")
        e("s_cmp_eq_u32 s64, 2"); e("s_cselect_b32 s65, s59, s65")
        e("s_cselect_b32 s88, s24, s88"); e("s_cselect_b32 s89, s25, s89"); e("s_cselect_b32 s90, s26, s90")
        e("s_mov_b32 s91, 0x20000")
    def coop_touch(c0, n, colb, wonly, tv):
        lab = e.label("K1_CT")
        if wonly: e("s_cmp_lg_u32 s64, 1")
        else: e("s_cmp_eq_u32 s64, 0")
        e(f"s_cbranch_scc1 {lab}")
        e.cond_begin()
        e("s_cmp_eq_u32 s64, 2")
        e("s_cselect_b32 s58, 7, 15")
        e("s_cselect_b32 s59, 3, 4")
        e(f"v_and_b32 v{tv}, s58, v0")
        e(f"v_lshrrev_b32 v{tv+1}, s59, v0")
        e(f"v_min_u32 v{tv+1}, {n-1}, v{tv+1}")
        e("s_cmp_eq_u32 s64, 1")
        e("s_movk_i32 s58, 896")
        e("s_cselect_b32 s58, 3584, s58")
        e("s_movk_i32 s59, 128")
        e(f"s_cselect_b32 s59, {64*3584}, s59")
        e(f"s_mov_b32 s61, {c0*128}")
        e(f"s_cselect_b32 s61, {c0*64*3584 + colb}, s61")
        e(f"v_mul_lo_u32 v{tv}, s58, v{tv}")
        e(f"v_mul_lo_u32 v{tv+1}, s59, v{tv+1}")
        e("s_add_u32 s61, s61, s65")
        e(f"s_mov_b32 m0, {M_PF0}")
        e(f"v_add_u32 v{tv}, v{tv}, v{tv+1}")
        e(f"buffer_load_dword v{tv}, s[88:91], s61 offen lds")
        e.cond_end()
        e.raw(f"{lab}:")
    srd(e, 68, 64, 896)
    if COOP:
        bz_w_srds()
        coop_setup()
        coop_touch(0, 3, 0, False, 34)
        queue(("X",0))
        for _ in range(2): dmaq.popleft()()
    else:
        queue(("X",0))
        for _ in range(2): dmaq.popleft()()
        bz_w_srds()
    queue(("Z",0))
    dmaq.popleft()()
    srd(e, 40, 6, 896)
    srd(e, 44, 62, 896)
    srd(e, 32, 18, WS_END if not G.PROFILE else (16 << 20))
    srd(e, 36, 16, 256)
    e("s_mov_b32 s60, 0")
    e("s_cmp_lt_u32 s48, 2")
    e("s_cselect_b32 s61, 1, 0")
    e("s_cmp_lt_u32 s53, 8")
    e("s_cselect_b32 s60, s61, 0")
    e("s_cmp_eq_u32 s48, 2")
    e("s_cselect_b32 s61, 2, 0")
    e("s_cmp_lt_u32 s52, 8")
    e("s_cselect_b32 s61, s61, 0")
    e("s_or_b32 s60, s60, s61")
    e("s_lshl_b32 s56, s52, 7")
    e("s_lshl_b32 s57, s53, 4")
    e("s_add_u32 s56, s56, s57")
    e("s_lshl_b32 s57, s48, 3")
    e("s_add_u32 s56, s56, s57")
    e("s_lshl_b32 s57, s53, 5")
    e("s_and_b32 s58, s52, 3")
    e("s_lshl_b32 s58, s58, 3")
    e("s_add_u32 s57, s57, s58")
    e("s_cmp_eq_u32 s60, 2")
    e("s_cselect_b32 s59, s57, s56")
    e("s_cmp_ge_u32 s52, 4")
    e("s_cselect_b32 s92, s10, s8")
    e("s_cselect_b32 s93, s11, s9")
    e("s_cselect_b32 s62, 448, 0")
    e("s_cmp_eq_u32 s60, 2")
    e("s_cselect_b32 s92, s92, s20")
    e("s_cselect_b32 s93, s93, s21")
    e(f"s_mov_b32 s94, {2048*448*2}")
    e(f"s_cselect_b32 s94, {448*448*2}, s94")
    e("s_cselect_b32 s62, s62, 0")
    e("s_and_b32 s93, s93, 0xffff")
    e("s_mov_b32 s95, 0x20000")
    e("s_add_u32 s62, s62, s59")
    e("s_mul_i32 s63, s59, 896")
    e(f"s_mul_i32 s11, s76, {64*3584}")
    e("s_add_u32 s11, s11, s72")
    queue(("W",0))
    for _ in range(2): dmaq.popleft()()
    pr = G.Prof(e, 0); pr.stamp()
    e("v_and_b32 v40, 15, v0")
    e("s_lshl_b32 s56, s53, 5")
    e("s_lshl_b32 s57, s55, 4")
    e("s_add_u32 s78, s56, s57")
    e("v_add_u32 v41, s78, v40")
    e("v_lshlrev_b32 v42, 1, v41")
    tp = [e("buffer_load_ushort v43, v42, s[40:43], 0 offen"),
          e("buffer_load_ushort v44, v42, s[44:47], 0 offen"),
          e("buffer_load_ushort v45, v42, s[68:71], 0 offen")]
    e("v_lshrrev_b32 v34, 3, v0")
    e("v_and_b32 v35, 7, v0")
    e("v_mul_u32_u24 v36, 896, v34")
    e("v_lshl_add_u32 v36, v35, 4, v36")
    RB = 192
    labrb = e.label("K1_NORB")
    e("s_cmp_eq_u32 s60, 0")
    e(f"s_cbranch_scc1 {labrb}")
    e.cond_begin()
    for k in range(7): e(f"buffer_load_dwordx4 v[{RB+4*k}:{RB+4*k+3}], v36, s[92:95], s63 offen offset:{128*k}")
    e.cond_end()
    e.raw(f"{labrb}:")
    def rowbatch_compute():
        lab = e.label("K1_NORC")
        e("s_cmp_eq_u32 s60, 0")
        e(f"s_cbranch_scc1 {lab}")
        e.cond_begin()
        e.raw(f"s_waitcnt vmcnt({min(63, e.vm_issued - vm_at_rb)})")
        e("s_mov_b32 s58, 0x3f803f80")
        e("v_mov_b32 v220, 0"); e("v_mov_b32 v221, 0"); e("v_mov_b32 v222, 0"); e("v_mov_b32 v223, 0")
        for k in range(28):
            e(f"v_dot2c_f32_bf16 v{220 + (k&1)}, s58, v{RB+k}")
            e(f"v_dot2c_f32_bf16 v{222 + (k&1)}, v{RB+k}, v{RB+k}")
        e("s_nop 2")
        e("v_add_f32 v220, v220, v221")
        e("v_add_f32 v221, v222, v223")
        for r_ in (220, 221):
            e(f"v_add_f32_dpp v{r_}, v{r_}, v{r_} quad_perm:[1,0,3,2] row_mask:0xf bank_mask:0xf")
            e(f"v_add_f32_dpp v{r_}, v{r_}, v{r_} quad_perm:[2,3,0,1] row_mask:0xf bank_mask:0xf")
            e(f"v_add_f32_dpp v{r_}, v{r_}, v{r_} row_half_mirror row_mask:0xf bank_mask:0xf")
        e("v_mov_b32 v224, v220")
        e(f"v_mul_f32 v220, {f32(1.0/448)}, v220")
        e(f"v_mul_f32 v221, {f32(1.0/448)}, v221")
        e("v_fma_f32 v221, -v220, v220, v221")
        e("v_max_f32 v221, 0, v221")
        e("v_cvt_pk_bf16_f32 v220, v220, v221")
        e("v_and_b32 v221, 0xffff0000, v220")
        e("v_lshlrev_b32 v220, 16, v220")
        e(f"v_add_f32 v221, {f32(1e-5)}, v221")
        e("v_cvt_pk_bf16_f32 v221, v221, v221")
        e("v_lshlrev_b32 v221, 16, v221")
        e("v_sqrt_f32 v221, v221")
        e("v_cvt_pk_bf16_f32 v221, v221, v221")
        e("v_lshlrev_b32 v221, 16, v221")
        e.cond_end()
        e.raw(f"{lab}:")
    def rowbatch_publish():
        lab = e.label("K1_NORP"); labx = e.label("K1_RPX")
        e("s_cmp_eq_u32 s60, 0")
        e(f"s_cbranch_scc1 {lab}")
        e.cond_begin()
        e("v_lshrrev_b32 v226, 3, v0")
        e("v_add_u32 v226, s62, v226")
        e("v_and_b32 v227, 7, v0")
        e("v_cmp_eq_u32 vcc, 0, v227")
        e("s_and_saveexec_b64 s[58:59], vcc")
        e("s_cmp_eq_u32 s60, 1")
        e(f"s_cbranch_scc1 {labx}")
        e("v_lshlrev_b32 v226, 3, v226")
        e("v_mov_b32 v228, v224"); e("v_mov_b32 v229, s98")
        e(f"s_mov_b32 s61, {WS_CSB}")
        e("buffer_store_dwordx2 v[228:229], v226, s[32:35], s61 offen sc1")
        e("s_mov_b64 exec, s[58:59]")
        e(f"s_branch {lab}")
        e.raw(f"{labx}:")
        e("v_lshlrev_b32 v226, 4, v226")
        e("v_mov_b32 v228, v220"); e("v_mov_b32 v229, s98"); e("v_mov_b32 v230, v221"); e("v_mov_b32 v231, s98")
        e(f"s_mov_b32 s61, {WS_STAT}")
        e("buffer_store_dwordx4 v[228:231], v226, s[32:35], s61 offen sc1")
        e("s_mov_b64 exec, s[58:59]")
        e.cond_end()
        e.raw(f"{lab}:")
    RBWAIT = [0]
    vm_at_rb = e.vm_issued
    def rot_entry(t):
        if ROT == 2 and t == 1:
            e("s_and_b32 s56, s51, 3"); e("s_lshl_b32 s56, s56, 1"); e("s_lshr_b32 s57, s51, 2"); e("s_add_u32 s56, s56, s57")
            e("s_cmp_ge_u32 s56, 6"); e("s_cselect_b32 s57, 6, 0"); e("s_sub_u32 s56, s56, s57")
            e("s_cmp_ge_u32 s56, 6"); e("s_cselect_b32 s57, 6, 0"); e("s_sub_u32 s56, s56, s57")
            e("s_add_u32 s76, s56, 1")
        elif ROT == 2:
            e("s_add_u32 s76, s76, 1"); e("s_cmp_eq_u32 s76, 7"); e("s_cselect_b32 s76, 1, s76")
        else:
            e("s_add_u32 s76, s76, 1")
            e("s_cmp_eq_u32 s76, 7")
            e("s_cselect_b32 s76, 0, s76")
        e(f"s_lshl_b32 s{4+t}, s76, 7")
        e(f"s_mul_i32 s{11+t}, s76, {64*3584}")
        e(f"s_add_u32 s{4+t}, s{4+t}, s66")
        e(f"s_add_u32 s{11+t}, s{11+t}, s72")
    for t in range(1, 7): rot_entry(t)
    queue(("X",1),("Z",1),("W",1),("X",2),("Z",2),("W",2),("W",3))
    for _ in range(max(0, PRO_DMAS - 5)): dmaq.popleft()()
    if PSTAMP: pr.stamp()
    nonce_cas(e, 120)
    def issue_for_tick(tk):
        l = []
        if tk >= 1:
            if tk + 2 < 7: l += [("X", tk+2), ("Z", tk+2)]
            if tk + 3 < 14: l += [("W", tk+3)]
        return l

    e("v_and_b32 v34, 31, v0")
    e("v_lshrrev_b32 v35, 4, v34")
    e("v_bfe_u32 v36, v34, 2, 1")
    e("v_lshl_add_u32 v35, v36, 1, v35")
    e("v_bfe_u32 v36, v34, 3, 1")
    e("v_lshlrev_b32 v35, 3, v35")
    e("v_lshl_add_u32 v35, v36, 2, v35")
    e("v_and_b32 v36, 3, v34")
    e("v_add_u32 v35, v35, v36")
    e("v_lshrrev_b32 v36, 5, v0")
    e(f"v_lshl_add_u32 v{VH}, v36, 5, v35")
    e(f"v_lshlrev_b32 v{VH}, 4, v{VH}")
    e("s_lshl_b32 s56, s54, 5")
    e("v_add_u32 v37, s56, v35")
    e(f"v_lshlrev_b32 v{AX}, 7, v37")
    e("v_bfe_u32 v38, v35, 1, 3")
    e("v_xor_b32 v38, v38, v36")
    e(f"v_lshl_add_u32 v{AX}, v38, 4, v{AX}")
    for kk in range(1, 4): e(f"v_xor_b32 v{AX+kk}, {kk<<5}, v{AX}")
    e("v_bfe_u32 v38, v0, 4, 1")
    e(f"v_lshlrev_b32 v{AZr}, 12, v38")
    e("s_lshl_b32 s56, s55, 4")
    e("v_and_b32 v40, 15, v0")
    e("v_add_u32 v39, s56, v40")
    e(f"v_lshl_add_u32 v{AZr}, v39, 7, v{AZr}")
    e("v_bfe_u32 v39, v40, 1, 3")
    e("v_xor_b32 v39, v39, v36")
    e(f"v_lshl_add_u32 v{AZr}, v39, 4, v{AZr}")
    e(f"v_add_u32 v{AZr}, {ZR}, v{AZr}")
    for kk in range(1, 4): e(f"v_xor_b32 v{AZr+kk}, {kk<<5}, v{AZr}")
    e(f"v_lshlrev_b32 v{AW0}, 13, v38")
    e("v_lshrrev_b32 v39, 2, v40")
    e("v_lshl_add_u32 v39, v36, 3, v39")
    e(f"v_lshl_add_u32 v{AW0}, v39, 7, v{AW0}")
    e("v_lshrrev_b32 v39, 3, v40")
    e("v_lshl_add_u32 v39, v38, 1, v39")
    e("s_lshl_b32 s56, s55, 1")
    e("v_xor_b32 v39, s56, v39")
    e(f"v_lshl_add_u32 v{AW0}, v39, 5, v{AW0}")
    e("v_and_b32 v39, 3, v40")
    e(f"v_lshl_add_u32 v{AW0}, v39, 3, v{AW0}")
    e(f"v_add_u32 v{AW0}, {WR}, v{AW0}")
    e(f"v_xor_b32 v{AW1}, 32, v{AW0}")
    e("s_lshl_b32 s56, s52, 2")
    e("s_add_u32 s56, s56, s54")
    e("s_mul_i32 s56, s56, 112")
    e("s_lshl_b32 s57, s53, 3")
    e("s_add_u32 s56, s56, s57")
    e("s_lshl_b32 s57, s55, 1")
    e("s_add_u32 s56, s56, s57")
    e("s_lshl_b32 s79, s56, 10")
    if WS_HF: e(f"s_add_u32 s79, s79, {WS_HF}")

    def params():
        e.wait(tp); yield
        e("s_bitcmp1_b32 s54, 0"); e("s_cselect_b64 s[40:41], -1, 0")
        e("s_bitcmp1_b32 s54, 1"); e("s_cselect_b64 s[42:43], -1, 0")
        e("s_mov_b32 s44, 0xffff0000"); e("s_mov_b32 s45, 0xffff0000")
        e("s_mov_b32 s46, 0"); e("s_mov_b32 s47, -1")
        e("v_lshlrev_b32 v43, 16, v43"); yield
        e("v_lshlrev_b32 v44, 16, v44"); yield
        e("v_lshlrev_b32 v45, 16, v45"); yield
        e(f"v_mul_f32 v45, {f32(LOG2E)}, v45"); yield
        e("v_exp_f32 v45, v45"); yield
        e("v_cvt_pk_bf16_f32 v45, v45, v45"); yield
        e("v_lshlrev_b32 v45, 16, v45"); yield
        e("v_mul_f32 v34, v45, v43"); yield
        e("v_mul_f32 v35, v45, v44"); yield
        e(f"v_mul_f32 v34, {f32(LOG2E)}, v34"); yield
        e("v_exp_f32 v34, v34"); yield
        e(f"v_mul_f32 v35, {f32(1.0/(2*3.141592653589793))}, v35"); yield
        e("v_fract_f32 v35, v35"); yield
        e("v_cos_f32 v36, v35"); yield
        e("v_sin_f32 v37, v35"); yield
        e(f"v_mul_f32 v{LR}, v34, v36"); yield
        e(f"v_mul_f32 v{LI}, v34, v37"); yield
        e(f"v_add_f32 v36, -1.0, v{LR}"); yield
        e("v_mul_f32 v38, v43, v43"); yield
        e("v_fmac_f32 v38, v44, v44"); yield
        e("v_rcp_f32 v38, v38"); yield
        e("v_mul_f32 v39, v36, v43"); yield
        e(f"v_fmac_f32 v39, v{LI}, v44"); yield
        e(f"v_mul_f32 v34, v{LI}, v43"); yield
        e("v_fma_f32 v34, -v36, v44, v34"); yield
        e("v_add_f32 v38, v38, v38"); yield
        e(f"v_mul_f32 v{CR}, v39, v38"); yield
        e(f"v_mul_f32 v{CI}, v34, v38"); yield
        yield from csq(e, 34, 35, LR, LI, 38)
        yield from csq(e, 36, 37, 34, 35, 38)
        yield from csq(e, L8R, L8I, 36, 37, 38)
        e(f"v_mov_b32 v{TR}, 1.0"); yield
        e(f"v_mov_b32 v{TI}, 0"); yield
        e(f"v_mov_b32 v34, v{L8R}"); yield
        e(f"v_mov_b32 v35, v{L8I}"); yield
        for b, m in enumerate(("s[44:45]", "s[46:47]", "s[40:41]", "s[42:43]")):
            yield from cmul(e, 36, 37, TR, TI, 34, 35, 38)
            e(f"v_cndmask_b32 v{TR}, v{TR}, v36, {m}"); yield
            e(f"v_cndmask_b32 v{TI}, v{TI}, v37, {m}"); yield
            e("v_mov_b32 v41, v34"); yield
            e("v_mov_b32 v42, v35"); yield
            yield from csq(e, 34, 35, 41, 42, 38)
        e(f"v_mov_b32 v{L128R}, v34"); yield
        e(f"v_mov_b32 v{L128I}, v35"); yield

    def zbuf(ks): return 96 + (ks & 1)*4
    def wbufA(ks, tl): return 104 + (ks & 1)*8 + tl*4
    def wbufB(ks, tl): return FB + (ks & 1)*8 + tl*4
    first = {}
    def mfma(acc, a, b):
        c = f"v[{acc}:{acc+15}]" if first.get(acc) else "0"
        first[acc] = True
        e(f"v_mfma_f32_32x32x16_bf16 v[{acc}:{acc+15}], v[{a}:{a+3}], v[{b}:{b+3}], {c}")
    rd_tok = {}
    def read_x(ks):
        kk = ks & 3; kc = ks >> 2
        rd_tok[("x", ks)] = [e(f"ds_read_b128 v[{XF+4*ks}:{XF+4*ks+3}], v{AX+kk} offset:{(kc%3)*16384}")]
    def read_z(ks):
        kk = ks & 3; kc = ks >> 2
        rd_tok[("z", ks)] = [e(f"ds_read_b128 v[{zbuf(ks)}:{zbuf(ks)+3}], v{AZr+kk} offset:{(kc%3)*8192}")]
    def read_w(ph, ks, tl, half):
        kk = ks & 3; w = (ks >> 2) + (0 if ph == "A" else 7)
        b = wbufA(ks, tl) if ph == "A" else wbufB(ks, tl)
        ad = AW0 if tl == 0 else AW1
        off = (w % 4)*16384 + kk*2048
        t = e(f"ds_read_b64_tr_b16 v[{b+2*half}:{b+2*half+1}], v{ad} offset:{off+512*half}")
        rd_tok.setdefault((ph, ks, tl), []).append(t)
    steps = [("A", ks) for ks in range(28)] + [("B", ks) for ks in range(28)]
    def tick_idx(ph, ks): return (ks >> 2) + (0 if ph == "A" else 7)
    def need_ents(tk): return [("X",tk),("Z",tk),("W",tk)] if tk < 7 else [("W",tk)]
    nbar = [0]
    def enter_tick(tk):
        while any(x not in ent_tok for x in need_ents(tk)): dmaq.popleft()()
        e.wait([ent_tok[x] for x in need_ents(tk)])
        if tk == 1: nonce_publish(e, 120, M_N)
        e.wait_all(vm=False)
        e("s_barrier")
        nbar[0] += 1
        if tk == 1: nonce_read(e, 121, M_N)
        queue(*issue_for_tick(tk))

    def main_stream():
        if not RB_LATE: rowbatch_compute()
        if PSTAMP: pr.stamp()
        enter_tick(0)
        if PSTAMP: pr.stamp()
        read_x(0); read_w("A", 0, 0, 0); read_w("A", 0, 0, 1); read_z(0); read_w("A", 0, 1, 0); read_w("A", 0, 1, 1)
        for n, (ph, ks) in enumerate(steps):
            nx = steps[n+1] if n + 1 < len(steps) else None
            x = XF + 4*ks
            if ph == "A":
                ops = [(AG[0], wbufA(ks,0), x, [("x", ks), (ph, ks, 0)]), (AZ, x, zbuf(ks), [("z", ks)]), (AG[1], wbufA(ks,1), x, [(ph, ks, 1)])]
            else:
                ops = [(AG[2], wbufB(ks,0), x, [(ph, ks, 0)]), (AG[3], wbufB(ks,1), x, [(ph, ks, 1)])]
            for si, (acc, a, b, keys) in enumerate(ops):
                e.wait([rd_tok[k] for k in keys])
                mfma(acc, a, b)
                dma_ok = False
                if nx is not None:
                    ph2, ks2 = nx
                    if si == 0 and (ks2 & 3) == 0: enter_tick(tick_idx(ph2, ks2))
                    if ph2 == "A":
                        if si == 0: read_x(ks2); read_w("A", ks2, 0, 0)
                        elif si == 1: read_w("A", ks2, 0, 1); read_z(ks2)
                        else: read_w("A", ks2, 1, 0); read_w("A", ks2, 1, 1); dma_ok = True
                    elif ph == "A":
                        if si == 0: read_w("B", ks2, 0, 0); read_w("B", ks2, 0, 1)
                        elif si == 1: read_w("B", ks2, 1, 0); read_w("B", ks2, 1, 1)
                        else: dma_ok = True
                    else:
                        read_w("B", ks2, si, 0); read_w("B", ks2, si, 1)
                        dma_ok = (si == 1)
                did = False
                if (dma_ok or (len(dmaq) > DMA_HURRY)) and dmaq:
                    dmaq.popleft()(); did = True
                yield (ph, ks, si, did)

    aux = {}
    def tagcheck(regs):
        e(f"v_xor_b32 v44, s98, v{regs[0]}")
        for r in regs[1:]:
            e(f"v_xor_b32 v45, s98, v{r}")
            e("v_or_b32 v44, v44, v45")
        e("v_cmp_ne_u32 vcc, 0, v44")
        e("s_cmp_eq_u64 vcc, 0")
    AXW1, AXW2 = 3, 4
    def only_wave(w, name):
        lab = e.label(name)
        e(f"s_cmp_lg_u32 s48, {w}")
        e(f"s_cbranch_scc1 {lab}")
        e.cond_begin()
        return lab
    def end_only(lab):
        e.cond_end()
        e.raw(f"{lab}:")
    def aux1_issue_raw():
        e("s_lshl_b32 s61, s52, 11")
        e(f"s_add_u32 s61, s61, {WS_STAT}")
        e("v_lshlrev_b32 v120, 4, v0")
        e("buffer_load_dwordx4 v[36:39], v120, s[32:35], s61 offen sc1")
        e("buffer_load_dwordx4 v[40:43], v120, s[32:35], s61 offen offset:1024 sc1")
        e("v_lshrrev_b32 v121, 5, v0")
        e("v_mul_u32_u24 v121, 448, v121")
        e("v_and_b32 v122, 31, v0")
        e("v_add_u32 v121, v121, v122")
        e("s_lshl_b32 s61, s53, 5")
        e("v_add_u32 v121, s61, v121")
        e("v_lshlrev_b32 v121, 3, v121")
        e(f"s_mov_b32 s61, {WS_CSB}")
        e("buffer_load_dwordx2 v[124:125], v121, s[32:35], s61 offen sc1")
    def aux1_issue():
        lab = only_wave(AXW1, "K1_A1I")
        aux1_issue_raw()
        end_only(lab)
        aux["a1_vm"] = e.vm_issued
    def aux1_finish():
        lab = only_wave(AXW1, "K1_A1F")
        e.raw(f"s_waitcnt vmcnt({min(63, e.vm_issued - aux['a1_vm'])})")
        tagged_retry(e, aux1_issue_raw, lambda: tagcheck([37, 39, 41, 43, 125]), "K1_A1", cnt="s63")
        e("v_rcp_f32 v37, v38")
        e("v_rcp_f32 v41, v42")
        e("v_lshlrev_b32 v120, 3, v0")
        e(f"v_add_u32 v120, {M_ST}, v120")
        e("ds_write_b64 v120, v[36:37]")
        e("ds_write_b64 v120, v[40:41] offset:512")
        e("v_lshlrev_b32 v120, 2, v0")
        e(f"v_add_u32 v120, {M_SD}, v120")
        e("ds_write_b32 v120, v38")
        e("ds_write_b32 v120, v42 offset:256")
        e(f"ds_write_b32 v120, v124 offset:{M_CB - M_SD}")
        e.raw("s_waitcnt lgkmcnt(0)")
        end_only(lab)
    def aux1_read():
        e(f"v_and_b32 v34, 0x1f0, v{VH}"); yield
        e("v_lshrrev_b32 v34, 1, v34"); yield
        e("s_lshl_b32 s56, s54, 8")
        e(f"s_add_u32 s56, s56, {M_ST}")
        e("v_add_u32 v35, s56, v34"); yield
        t1 = e("ds_read_b64 v[36:37], v35"); yield
        e("v_lshrrev_b32 v34, 1, v34"); yield
        e("s_lshl_b32 s56, s54, 7")
        e(f"s_add_u32 s56, s56, {M_SD}")
        e("v_add_u32 v34, s56, v34"); yield
        t2 = e(f"ds_read_b32 v{SD}, v34"); yield
        e("v_and_b32 v34, 15, v0"); yield
        e("s_lshl_b32 s56, s55, 6")
        e(f"s_add_u32 s56, s56, {M_CB}")
        e("v_lshlrev_b32 v34, 2, v34"); yield
        e("v_add_u32 v34, s56, v34"); yield
        t3 = [e(f"ds_read_b32 v{CSR}, v34"), e(f"ds_read_b32 v{CSI}, v34 offset:128")]; yield
        e("v_lshrrev_b32 v34, 4, v0"); yield
        e("s_lshl_b32 s56, s54, 8")
        e(f"s_add_u32 s56, s56, {M_ST}")
        e("v_lshlrev_b32 v34, 6, v34"); yield
        e("v_add_u32 v34, s56, v34"); yield
        e.wait(t1); yield
        e(f"v_mov_b32 v{M_}, v36"); yield
        e(f"v_mul_f32 v{NLR}, {f32(-LOG2E)}, v37"); yield
        aux["st"] = [e("ds_read_b128 v[36:39], v34"), e("ds_read_b128 v[40:43], v34 offset:16")]
        aux["lane"] = [t2, t3]
        yield
    def aux2_issue_raw():
        e("s_lshl_b32 s61, s53, 10")
        e(f"s_add_u32 s61, s61, {WS_CSW}")
        e("v_lshlrev_b32 v136, 4, v0")
        e("buffer_load_dwordx4 v[128:131], v136, s[32:35], s61 offen sc1")
        e(f"s_add_u32 s61, s61, {1792*8}")
        e("buffer_load_dwordx4 v[132:135], v136, s[32:35], s61 offen sc1")
    def aux2_issue():
        lab = only_wave(AXW2, "K1_A2I")
        aux2_issue_raw()
        end_only(lab)
        aux["a2_vm"] = e.vm_issued
    def tagcheck2(regs):
        e(f"v_xor_b32 v137, s98, v{regs[0]}")
        for r in regs[1:]:
            e(f"v_xor_b32 v138, s98, v{r}")
            e("v_or_b32 v137, v137, v138")
        e("v_cmp_ne_u32 vcc, 0, v137")
        e("s_cmp_eq_u64 vcc, 0")
    def aux2_finish():
        lab = only_wave(AXW2, "K1_A2F")
        e.raw(f"s_waitcnt vmcnt({min(63, e.vm_issued - aux['a2_vm'])})")
        tagged_retry(e, aux2_issue_raw, lambda: tagcheck2([129, 131, 133, 135]), "K1_A2", cnt="s63")
        e("v_mov_b32 v129, v130")
        e("v_mov_b32 v133, v134")
        e("v_lshlrev_b32 v136, 3, v0")
        e(f"v_add_u32 v136, {M_CS}, v136")
        e("ds_write_b64 v136, v[128:129]")
        e("ds_write_b64 v136, v[132:133] offset:512")
        e.raw("s_waitcnt lgkmcnt(0)")
        end_only(lab)
    def cs_base():
        e("v_lshrrev_b32 v46, 5, v0"); yield
        e("v_lshlrev_b32 v46, 4, v46"); yield
        e("s_lshl_b32 s56, s55, 7")
        e(f"s_add_u32 s56, s56, {M_CS}")
        e("v_add_u32 v46, s56, v46"); yield
    def cs_reads(tl, CSB):
        o = (tl >> 1)*256 + (tl & 1)*64
        aux[("cs", tl)] = [e(f"ds_read_b128 v[{CSB}:{CSB+3}], v46 offset:{o}"),
                           e(f"ds_read_b128 v[{CSB+4}:{CSB+7}], v46 offset:{o+32}"),
                           e(f"ds_read_b128 v[{CSB+8}:{CSB+11}], v46 offset:{o+512}"),
                           e(f"ds_read_b128 v[{CSB+12}:{CSB+15}], v46 offset:{o+544}")]
        yield

    def z_pass1():
        e.wait(aux["lane"]); yield
        for i in range(8):
            e(f"v_permlane16_swap_b32 v{AZ+i}, v{AZ+8+i}"); yield
        st = list(aux["st"])
        for g in range(4):
            b = 36 + (g & 1)*4
            e.wait(st[g]); yield
            for u in range(2):
                i = 2*g + u; mm = b + 2*u
                e(f"v_fma_f32 v{AZ+i}, -v{mm}, v{CSR}, v{AZ+i}"); yield
                e(f"v_fma_f32 v{AZ+8+i}, -v{mm}, v{CSI}, v{AZ+8+i}"); yield
            for u in range(2):
                i = 2*g + u; rr = b + 2*u + 1
                e(f"v_mul_f32 v{AZ+i}, v{AZ+i}, v{rr}"); yield
                e(f"v_mul_f32 v{AZ+8+i}, v{AZ+8+i}, v{rr}"); yield
            if g + 2 < 4:
                st.append(e(f"ds_read_b128 v[{b}:{b+3}], v34 offset:{(g+2)*16}")); yield
        pr_, pi_ = AZ, AZ + 8
        for i in range(1, 8):
            d = (44, 45) if (i & 1) else (ER, EI)
            yield from cfma_to(e, d[0], d[1], pr_, pi_, LR, LI, AZ+i, AZ+8+i)
            pr_, pi_ = d
        e(f"v_mul_f32 v36, v{CI}, v45"); yield
        e(f"v_mul_f32 v37, v{CI}, v44"); yield
        e(f"v_fma_f32 v{ER}, v{CR}, v44, -v36"); yield
        e(f"v_fma_f32 v{EI}, v{CR}, v45, v37"); yield
    def hier1():
        e(f"v_mov_b32 v1, v{ER}"); yield
        e(f"v_mov_b32 v2, v{ER}"); yield
        e(f"v_mov_b32 v3, v{EI}"); yield
        e(f"v_mov_b32 v4, v{EI}"); yield
        yield from csq(e, 7, 8, L8R, L8I, 34)
        e("v_permlane16_swap_b32 v1, v2"); yield
        e("v_permlane16_swap_b32 v3, v4"); yield
        yield from cfma_to(e, 5, 6, 1, 3, L8R, L8I, 2, 4)
        e("v_mov_b32 v28, v5"); yield
        e("v_mov_b32 v36, v5"); yield
        e("v_mov_b32 v29, v6"); yield
        e("v_mov_b32 v34, v6"); yield
        e("v_and_b32 v35, 15, v0"); yield
        e("s_lshl_b32 s56, s55, 4")
        e("v_add_u32 v35, s56, v35"); yield
        e("v_lshlrev_b32 v35, 3, v35"); yield
        e("v_permlane32_swap_b32 v28, v36"); yield
        e("v_permlane32_swap_b32 v29, v34"); yield
        e(f"v_add_u32 v35, {M_SEG}, v35"); yield
        yield from cfma_to(e, 5, 6, 28, 29, 7, 8, 36, 34)
        e("s_lshl_b32 s56, s54, 8")
        e("v_add_u32 v34, s56, v35"); yield
        e("v_mov_b32 v44, v5"); yield
        e("v_mov_b32 v45, v6"); yield
        e("ds_write_b64 v34, v[44:45]"); yield
    def hier2():
        tk = [e(f"ds_read_b64 v[{36+2*u}:{37+2*u}], v35 offset:{u*256}") for u in range(3)]
        yield
        yield from csq(e, 42, 43, 7, 8, 44)
        e.wait(tk); yield
        yield from cfma_to(e, 44, 45, 36, 37, 42, 43, 38, 39)
        yield from cfma_to(e, 2, 4, 44, 45, 42, 43, 40, 41)
        e("v_cndmask_b32 v2, v44, v2, s[40:41]"); yield
        e("v_cndmask_b32 v4, v45, v4, s[40:41]"); yield
        e("v_cndmask_b32 v36, 0, v36, s[40:41]"); yield
        e("v_cndmask_b32 v37, 0, v37, s[40:41]"); yield
        e("v_cndmask_b32 v36, v36, v2, s[42:43]"); yield
        e("v_cndmask_b32 v37, v37, v4, s[42:43]"); yield
        lab = e.label("K1_NOPUB")
        e("s_cmp_lg_u32 s54, 3")
        e(f"s_cbranch_scc1 {lab}")
        e.cond_begin()
        for _ in cfma_to(e, 38, 40, 36, 37, 42, 43, 5, 6): pass
        e("v_mov_b32 v39, s98"); e("v_mov_b32 v41, s98")
        e("v_and_b32 v34, 15, v0")
        e("v_add_u32 v34, s78, v34")
        e("v_lshlrev_b32 v34, 4, v34")
        e(f"s_mul_i32 s56, s52, {448*16}")
        e(f"s_add_u32 s56, s56, {WS_E}")
        e("s_mov_b64 s[58:59], exec")
        e("s_mov_b64 exec, 0xffff")
        e("buffer_store_dwordx4 v[38:41], v34, s[32:35], s56 offen sc1")
        e("s_mov_b64 exec, s[58:59]")
        e.cond_end()
        e.raw(f"{lab}:")
        yield
        yield from cfma_to(e, 38, 39, 36, 37, 7, 8, 28, 29)
        e("v_cndmask_b32 v36, v36, v38, s[46:47]"); yield
        e("v_cndmask_b32 v37, v37, v39, s[46:47]"); yield
        yield from cfma_to(e, 38, 39, 36, 37, L8R, L8I, 1, 3)
        e(f"v_cndmask_b32 v{PR}, v36, v38, s[44:45]"); yield
        e(f"v_cndmask_b32 v{PI}, v37, v39, s[44:45]"); yield
    def zscale():
        for i in range(0, 8, 2):
            for u in range(2):
                e(f"v_mul_f32 v{36+2*u}, v{CI}, v{AZ+8+i+u}"); yield
                e(f"v_mul_f32 v{37+2*u}, v{CI}, v{AZ+i+u}"); yield
            for u in range(2):
                e(f"v_fma_f32 v{AZ+i+u}, v{CR}, v{AZ+i+u}, -v{36+2*u}"); yield
                e(f"v_fma_f32 v{AZ+8+i+u}, v{CR}, v{AZ+8+i+u}, v{37+2*u}"); yield
    def gu_math(acc, CSB):
        for i in range(8):
            e(f"v_fma_f32 v{acc+i}, -v{M_}, v{CSB+i}, v{acc+i}"); yield
        for i in range(8):
            e(f"v_mul_f32 v{acc+i}, v{acc+i}, v{NLR}"); yield
        for i in range(8):
            e(f"v_exp_f32 v{acc+i}, v{acc+i}"); yield
            e(f"v_fma_f32 v{acc+8+i}, -v{M_}, v{CSB+8+i}, v{acc+8+i}"); yield
        for i in range(8):
            e(f"v_fma_f32 v{acc+i}, v{acc+i}, v{SD}, v{SD}"); yield
        for i in range(8):
            e(f"v_rcp_f32 v{acc+i}, v{acc+i}"); yield
        for i in range(8):
            e(f"v_mul_f32 v{acc+i}, v{acc+i}, v{acc+8+i}"); yield
        for p in range(4):
            e(f"v_cvt_pk_bf16_f32 v{acc+8+p}, v{acc+2*p}, v{acc+2*p+1}"); yield
    def gu_epi(tl, CSB):
        acc = AG[tl]
        e.wait(aux[("cs", tl)]); yield
        yield from gu_math(acc, CSB)
        e(f"s_add_u32 s56, s79, {((tl>>1)*4 + (tl&1))*1024}")
        e(f"buffer_store_dwordx4 v[{acc+8}:{acc+11}], v{VH}, s[32:35], s56 offen{STF}"); yield

    ebq = deque()
    def early_B_setup():
        e(f"v_lshrrev_b32 v{EBV}, 3, v0")
        e("s_lshl_b32 s57, s48, 3")
        e(f"v_add_u32 v{EBV}, s57, v{EBV}")
        e(f"v_mul_u32_u24 v{EBV}, 896, v{EBV}")
        e("v_and_b32 v11, 7, v0")
        e("v_bfe_u32 v12, v0, 4, 1")
        e("v_lshlrev_b32 v12, 2, v12")
        e("v_xor_b32 v11, v11, v12")
        e(f"v_lshl_add_u32 v{EBV}, v11, 4, v{EBV}")
        e("s_mov_b32 s92, s86"); e("s_and_b32 s93, s87, 0xffff"); e(f"s_mov_b32 s94, {1792*448*2}"); e("s_mov_b32 s95, 0x20000")
        e("s_cmp_ge_u32 s53, 7")
        e("s_cselect_b32 s57, 7, 0")
        e("s_sub_u32 s57, s53, s57")
        e("s_and_b32 s70, s51, 3")
        e("s_mul_i32 s70, s70, 7")
        e("s_lshl_b32 s71, s57, 2")
        e("s_add_u32 s70, s70, s71")
        e("s_cmp_ge_u32 s70, 28")
        e("s_cselect_b32 s71, 28, 0")
        e("s_sub_u32 s70, s70, s71")
        e("s_lshl_b32 s71, s57, 7")
        e("s_lshl_b32 s69, s48, 10")
    def early_B_queue(t0, t1):
        def mk(t):
            def f():
                e(f"s_add_u32 m0, s69, {t*8192}")
                e(f"s_mul_i32 s68, s70, {64*896}")
                e("s_add_u32 s68, s68, s71")
                e(f"buffer_load_dwordx4 v{EBV}, s[92:95], s68 offen lds")
                e("s_add_u32 s70, s70, 1"); e("s_cmp_eq_u32 s70, 28"); e("s_cselect_b32 s70, 0, s70")
            return f
        for t in range(t0, t1): ebq.append(mk(t))
    def drain_eb(gen, every=18):
        k = 0
        for _ in gen:
            k += 1
            if k % every == 0 and ebq: ebq.popleft()()
    M_PF = 162304
    def k2_touch(k, slot):
        PFT = 139 if slot < 18 else 160
        assert slot >= 6
        lab = e.label("K1_PF")
        e(f"s_cmp_lg_u32 s48, {k & 7}")
        e(f"s_cbranch_scc1 {lab}")
        e.cond_begin()
        if k < 7:
            e("s_mul_i32 s61, s51, 448"); e(f"s_add_u32 s61, s61, {64*k}"); base = "s[86:87]"; lim = 12543
        elif k < 9:
            e("s_mul_i32 s61, s51, 112"); e(f"s_add_u32 s61, s61, {64*(k-7)}"); base = "s[88:89]"; lim = 3135
        else:
            e("s_mul_i32 s61, s51, 112"); e(f"s_add_u32 s61, s61, {64*(k-9)}"); base = "s[90:91]"; lim = 3135
        e(f"v_add_u32 v{PFT}, s61, v0")
        e(f"v_min_u32 v{PFT}, {lim}, v{PFT}")
        e(f"s_mov_b32 m0, {M_PF}")
        e(f"v_lshlrev_b32 v{PFT}, 7, v{PFT}")
        e(f"global_load_lds_dword v{PFT}, {base}")
        e.cond_end()
        e.raw(f"{lab}:")
    EL = 160
    def e_issue_raw():
        e("v_lshrrev_b32 v180, 4, v0")
        e("v_and_b32 v181, 15, v0")
        e("v_add_u32 v181, s78, v181")
        e("v_lshlrev_b32 v181, 4, v181")
        e("s_sub_u32 s63, s52, 1")
        e(f"s_mov_b32 s61, {WS_E}")
        for m in range(4):
            e(f"v_add_u32 v{176+m}, {4*m}, v180")
            e(f"v_min_u32 v{176+m}, s63, v{176+m}")
            e(f"v_mul_u32_u24 v{176+m}, {448*16}, v{176+m}")
            e(f"v_add_u32 v{176+m}, v{176+m}, v181")
            e(f"buffer_load_dwordx4 v[{EL+4*m}:{EL+4*m+3}], v{176+m}, s[32:35], s61 offen sc1")
    def e_issue():
        lab = e.label("K1_EI")
        e("s_cmp_eq_u32 s52, 0")
        e(f"s_cbranch_scc1 {lab}")
        e.cond_begin(); e_issue_raw(); e.cond_end()
        e.raw(f"{lab}:")
    def e_consts():
        yield from csq(e, 182, 183, L128R, L128I, 188)
        yield from cmul(e, 184, 185, 182, 183, L128R, L128I, 188)
        yield from csq(e, 186, 187, 182, 183, 188)
        e("v_lshrrev_b32 v190, 4, v0"); yield
        e("s_sub_u32 s63, s52, 1")
        e("v_sub_u32 v190, s63, v190"); yield
        e("v_and_b32 v191, 3, v190"); yield
        e("v_ashrrev_i32 v190, 2, v190"); yield
        e("v_mov_b32 v192, 1.0"); yield
        e("v_mov_b32 v193, 0"); yield
        for k, (rr, ii) in enumerate(((L128R, L128I), (182, 183), (184, 185))):
            e(f"v_cmp_eq_u32 vcc, {k+1}, v191"); yield
            e(f"v_cndmask_b32 v192, v192, v{rr}, vcc"); yield
            e(f"v_cndmask_b32 v193, v193, v{ii}, vcc"); yield
    def e_check(nafter):
        skip = e.label("K1_ESK"); ok = e.label("K1_EOK"); chk = e.label("K1_ECK")
        e("s_cmp_eq_u32 s52, 0")
        e(f"s_cbranch_scc1 {skip}")
        e.cond_begin()
        e.raw(f"s_waitcnt vmcnt({nafter})")
        e("s_mov_b32 s62, 0")
        e.raw(f"{chk}:")
        e(f"v_xor_b32 v44, s98, v{EL+1}")
        for r in (EL+3, EL+5, EL+7, EL+9, EL+11, EL+13, EL+15):
            e(f"v_xor_b32 v45, s98, v{r}")
            e("v_or_b32 v44, v44, v45")
        e("v_cmp_ne_u32 vcc, 0, v44")
        e("s_cmp_eq_u64 vcc, 0")
        e(f"s_cbranch_scc1 {ok}")
        e("s_add_u32 s62, s62, 1")
        e("s_cmp_ge_u32 s62, 100000")
        e(f"s_cbranch_scc1 {ok}")
        e_issue_raw()
        e.raw("s_waitcnt vmcnt(0)")
        e(f"s_branch {chk}")
        e.raw(f"{ok}:")
        e.cond_end()
        e.raw(f"{skip}:")
    def carry_and_pass2():
        lab0 = e.label("K1_NOCARRY")
        e("v_mov_b32 v44, 0"); e("v_mov_b32 v45, 0")
        e("s_cmp_eq_u32 s52, 0")
        e(f"s_cbranch_scc1 {lab0}")
        for m in range(4):
            er, ei = EL+4*m, EL+4*m+2
            e(f"v_cmp_le_i32 vcc, {m}, v190")
            e(f"v_fma_f32 v{er}, v186, v44, v{er}")
            e(f"v_fma_f32 v{ei}, v186, v45, v{ei}")
            e(f"v_fma_f32 v{er}, -v187, v45, v{er}")
            e(f"v_fma_f32 v{ei}, v187, v44, v{ei}")
            e(f"v_cndmask_b32 v44, v44, v{er}, vcc")
            e(f"v_cndmask_b32 v45, v45, v{ei}, vcc")
        e("v_mul_f32 v40, v193, v45")
        e("v_mul_f32 v41, v193, v44")
        e("v_fma_f32 v44, v192, v44, -v40")
        e("v_fma_f32 v45, v192, v45, v41")
        e("v_mov_b32 v40, v44"); e("v_mov_b32 v41, v45")
        e("v_permlane16_swap_b32 v44, v40"); e("v_permlane16_swap_b32 v45, v41")
        e("v_add_f32 v44, v44, v40"); e("v_add_f32 v45, v45, v41")
        e("v_mov_b32 v40, v44"); e("v_mov_b32 v41, v45")
        e("v_permlane32_swap_b32 v44, v40"); e("v_permlane32_swap_b32 v45, v41")
        e("v_add_f32 v44, v44, v40"); e("v_add_f32 v45, v45, v41")
        e.raw(f"{lab0}:")
        e(f"v_fma_f32 v{PR}, v{TR}, v44, v{PR}")
        e(f"v_fma_f32 v{PI}, v{TR}, v45, v{PI}")
        e(f"v_fma_f32 v{PR}, -v{TI}, v45, v{PR}")
        e(f"v_fma_f32 v{PI}, v{TI}, v44, v{PI}")
        pr_, pi_ = PR, PI
        for i in range(8):
            zr, zi = AZ + i, AZ + 8 + i
            e(f"v_fma_f32 v{zr}, v{LR}, v{pr_}, v{zr}")
            e(f"v_fma_f32 v{zi}, v{LR}, v{pi_}, v{zi}")
            e(f"v_fma_f32 v{zr}, -v{LI}, v{pi_}, v{zr}")
            e(f"v_fma_f32 v{zi}, v{LI}, v{pr_}, v{zi}")
            pr_, pi_ = zr, zi
        for p in range(4):
            e(f"v_cvt_pk_bf16_f32 v{36+p}, v{AZ+2*p}, v{AZ+2*p+1}")
            e(f"v_cvt_pk_bf16_f32 v{40+p}, -v{AZ+8+2*p}, -v{AZ+8+2*p+1}")
        e("ds_write_b128 v1, v[36:39]")
        e("ds_write_b128 v1, v[40:43] offset:1024")
        e.wait_all(vm=False)
        tk = [e("ds_read_b64_tr_b16 v[36:37], v2"), e("ds_read_b64_tr_b16 v[38:39], v2 offset:256"),
              e("ds_read_b64_tr_b16 v[40:41], v2 offset:1024"), e("ds_read_b64_tr_b16 v[42:43], v2 offset:1280")]
        e.wait(tk)
        e(f"buffer_store_dwordx4 v[36:39], v3, s[32:35], s76 offen{STF}")
        e("s_add_u32 s76, s76, 4096")
        e(f"buffer_store_dwordx4 v[40:43], v3, s[32:35], s76 offen{STF}")
    def tail_addr():
        e("s_lshl_b32 s56, s48, 11")
        e(f"s_add_u32 s56, s56, {M_TR}")
        e("v_and_b32 v1, 15, v0"); yield
        e("v_lshlrev_b32 v1, 6, v1"); yield
        e("v_lshrrev_b32 v2, 4, v0"); yield
        e("v_lshl_add_u32 v1, v2, 4, v1"); yield
        e("v_add_u32 v1, s56, v1"); yield
        e("v_lshrrev_b32 v2, 5, v0"); yield
        e("v_bfe_u32 v3, v0, 2, 2"); yield
        e("v_lshl_add_u32 v2, v2, 3, v3"); yield
        e("v_lshlrev_b32 v2, 6, v2"); yield
        e("v_bfe_u32 v3, v0, 4, 1"); yield
        e("v_lshl_add_u32 v2, v3, 5, v2"); yield
        e("v_and_b32 v3, 3, v0"); yield
        e("v_lshl_add_u32 v2, v3, 3, v2"); yield
        e("v_add_u32 v2, s56, v2"); yield
        e("v_lshlrev_b32 v3, 4, v0"); yield
        e("s_lshl_b32 s56, s53, 1")
        e("s_add_u32 s56, s56, s55")
        e("s_lshr_b32 s57, s56, 2")
        e("s_lshl_b32 s57, s57, 3")
        e("s_and_b32 s56, s56, 3")
        e("s_add_u32 s56, s56, s57")
        e("s_lshl_b32 s57, s52, 2")
        e("s_add_u32 s57, s57, s54")
        e("s_mul_i32 s57, s57, 56")
        e("s_add_u32 s56, s56, s57")
        e("s_lshl_b32 s56, s56, 10")
        e(f"s_add_u32 s76, s56, {WS_hF}")
        yield

    def cost(i):
        if i.cls == "valu": return 2.0 if i.op in TRANS else 1.0
        if i.cls in ("ds", "vmem"): return 0.5
        return 0.1
    class Fill:
        def __init__(self): self.q = []; self.cur = None; self.barrier_at = None
        def add(self, *items): self.q += list(items)
        def run(self, budget, tick):
            spent = 0.0
            while spent < budget:
                if self.cur is None:
                    if not self.q: return
                    it = self.q[0]
                    if it == "barrier":
                        if self.barrier_at is None: self.barrier_at = tick
                        if tick <= self.barrier_at: return
                        self.barrier_at = None; self.q.pop(0); continue
                    if it == "aux2gate":
                        if "a2_tick" not in aux or tick <= aux["a2_tick"]: return
                        self.q.pop(0); continue
                    if it == "step17":
                        if tick < 13: return
                        self.q.pop(0); continue
                    self.q.pop(0); self.cur = it() if callable(it) else it
                n0 = len(e.ins)
                try: next(self.cur)
                except StopIteration: self.cur = None
                spent += sum(cost(i) for i in e.ins[n0:])
        def flush(self):
            while self.cur is not None or self.q:
                if self.cur is None:
                    it = self.q.pop(0)
                    if it == "step17": continue
                    if it == "barrier" or it == "aux2gate":
                        e.wait_all(vm=False); e("s_barrier"); self.barrier_at = None
                        continue
                    self.cur = it() if callable(it) else it
                for _ in self.cur: pass
                self.cur = None
    F = Fill()
    F.add(params)
    slot = {"A": 0, "B": 0}
    last = None
    for (ph, ks, si, did) in main_stream():
        if (ph, ks) != last and (ph, ks) in STAMPS: pr.stamp()
        last = (ph, ks)
        n = slot[ph]; slot[ph] += 1
        tk = nbar[0]
        if NOEPI:
            if ph == "A" and not did: F.run(BUDGET_A, tk)
            continue
        if ph == "A":
            if COOP and n == CT2: coop_touch(3, 4, 0, False, 226)
            if COOP and n == CT3: coop_touch(0, 4, 128, True, 226)
            if COOP and n == CT4: coop_touch(4, 3, 128, True, 226)
            if n == RB_SLOT and RB_LATE: rowbatch_compute()
            if n == PUB_SLOT: rowbatch_publish()
            if n == AUX_LOAD: F.flush(); aux1_issue()
            if n == AUX_FIN: aux1_finish(); F.add("barrier", aux1_read)
            if not did: F.run(BUDGET_A, tk)
        else:
            if n == 0:
                F.flush()
                if ZFIRST:
                    drain(z_pass1()); drain(hier1())
                    e.wait_all(vm=False); e("s_barrier")
                    drain(hier2())
                    F.add(zscale, cs_base, tail_addr, "aux2gate",
                          lambda: cs_reads(0, 128), lambda: cs_reads(1, 144), lambda: gu_epi(0, 128),
                          lambda: cs_reads(2, 128), lambda: gu_epi(1, 144), lambda: cs_reads(3, 144), "step17", e_consts)
                else:
                  F.add(z_pass1, hier1, "barrier", hier2, zscale, cs_base, "aux2gate",
                      lambda: cs_reads(0, 128), lambda: cs_reads(1, 144), lambda: gu_epi(0, 128),
                      lambda: cs_reads(2, 128), lambda: gu_epi(1, 144), lambda: cs_reads(3, 144), tail_addr)
            if fused and G.EARLY_B and n == 1:
                early_B_setup(); early_B_queue(0, G.EARLY_B1)
            if fused and n >= EB_SLOT and (n - EB_SLOT) % EB_GAP == 0 and ebq and (n & 1) == 0: ebq.popleft()()
            if n == AUX2_SLOT: aux2_issue()
            if n == AUX2_FIN: aux2_finish(); aux["a2_tick"] = tk
            if PF_SLOT >= 0 and n >= PF_SLOT and (n - PF_SLOT) % PF_GAP == 0 and (n - PF_SLOT) // PF_GAP < 11: k2_touch((n - PF_SLOT) // PF_GAP, n)
            if not did: F.run(BUDGET_B0 if n < 30 else BUDGET_B, tk)
    if NOEPI:
        pr.dump(32, 48)
        e.raw("K1_END:")
        e("s_endpgm")
        gen_helper(e)
        return 256
    e_issue(); aux["e_vm"] = e.vm_issued
    if fused and G.EARLY_B > G.EARLY_B1:
        while ebq: ebq.popleft()()
        e.wait_all(vm=False); e("s_barrier")
        early_B_queue(G.EARLY_B1, G.EARLY_B)
    if TAILST2: pr.stamp()
    F.flush()
    if TAILST2: pr.stamp()
    if not ZFIRST and not ECLATE: drain_eb(e_consts(), 12)
    drain_eb(gu_epi(2, 128), 10)
    if TAILST2: pr.stamp()
    drain_eb(gu_epi(3, 144), 10)
    while ebq: ebq.popleft()()
    if not ZFIRST and ECLATE: drain(e_consts())
    if TAILST: pr.stamp()
    e_check(e.vm_issued - aux["e_vm"])
    if TAILST2: pr.stamp()
    carry_and_pass2()
    pr.stamp()
    pr.dump(32, 48)
    if fused:
        if G.PROFILE: e("s_mov_b64 exec, -1")
        G.gen_k2(e, fused=True)
    e.raw("K1_END:")
    e("s_endpgm")
    gen_helper(e)
    return 256
```

```python
import sys
sys.path.insert(0, "dev")
from asmlib import *

NAME = "recurrent_scan__ssm_conv_s5__glu_gated_glu__prompt"
WS_HF   = 0
WS_hF   = 64*112*1024
WS_STAT = WS_hF + 64*56*1024
WS_CSW  = WS_STAT + 2048*16
WS_CSB  = WS_CSW + 3584*8
WS_E    = WS_CSB + 896*8
WS_DONE = WS_E + 16*448*16
WS_END  = WS_DONE + 16*128
LOG2E = 1.4426950408889634
import struct, os
def f32(x): return "0x%08x" % struct.unpack("<I", struct.pack("<f", x))[0]

def srd(e, s, ptr, nbytes):
    e(f"s_mov_b32 s{s}, s{ptr}")
    e(f"s_and_b32 s{s+1}, s{ptr+1}, 0xffff")
    e(f"s_mov_b32 s{s+2}, {nbytes}")
    e(f"s_mov_b32 s{s+3}, 0x20000")

def bf16_round_pair(e, dst_lo, dst_hi, a, b, tmp):
    e(f"v_cvt_pk_bf16_f32 v{tmp}, v{a}, v{b}")
    yield
    e(f"v_lshlrev_b32 v{dst_lo}, 16, v{tmp}")
    yield
    e(f"v_and_b32 v{dst_hi}, 0xffff0000, v{tmp}")
    yield

PROFILE = False
WS_PROF = 12 << 20
class Prof:
    def __init__(self, e, kern): self.e = e; self.k = kern; self.n = 0
    def stamp(self):
        if not PROFILE: return
        e = self.e
        import os
        e.raw("s_memtime s[96:97]" if os.environ.get("CLK") == "cyc" else "s_memrealtime s[96:97]")
        e.raw("s_waitcnt lgkmcnt(0)"); e.lg_done = e.lg_issued
        e.raw(f"s_mov_b32 s{80+self.n}, s96"); self.n += 1
        assert self.n <= ((6 if not os.environ.get('NOPF') else 12) if self.k == 0 else 12)
    def dump(self, srd_ws, wave_s):
        if not PROFILE: return
        e = self.e
        e(f"s_lshl_b32 s96, s2, 3"); e(f"s_add_u32 s96, s96, s{wave_s}"); e("s_lshl_b32 s96, s96, 6")
        e(f"s_add_u32 s96, s96, {WS_PROF + self.k*256*8*64}")
        for i in range(16):
            e(f"v_mov_b32 v{200+i}, s{80+i}" if i < self.n else f"v_mov_b32 v{200+i}, 0")
        e("v_mov_b32 v216, 0")
        e("s_mov_b64 exec, 1")
        for q in range(4):
            e(f"buffer_store_dwordx4 v[{200+4*q}:{203+4*q}], v216, s[{srd_ws}:{srd_ws+3}], s96 offen offset:{16*q}")
        e("s_waitcnt vmcnt(0)")

def pull(gen, n):
    if gen is None: return None
    for _ in range(n):
        try: next(gen)
        except StopIteration: return None
    return gen
def drain(gen):
    if gen is None: return
    for _ in gen: pass

K2_R = 9
K2_STAGE = 16384
K2RA = int(os.environ.get("K2RA", "5"))
EARLY_B = int(os.environ.get("EARLY_B", "12"))
EARLY_B1 = int(os.environ.get("EARLY_B1", "9"))
def gen_k2(e, fused=False):
    global K2_R
    RA = K2RA if fused else K2_R
    RB = (20 - RA) if fused else K2_R
    if not fused: RA, RB = 9, 9
    def baseB(t): return (t % RB) * 8192
    def baseA(t): return RB * 8192 + (t % RA) * 8192
    if not fused:
        e.raw("k2_kernel:")
        e("s_cmp_ge_u32 s2, 224")
        e("s_cbranch_scc1 K2_END")
    else:
        e("s_lshl_b32 s76, s52, 7")
        e(f"s_add_u32 s76, s76, {WS_DONE}")
        e("s_lshl_b32 s79, s53, 2")
        e("s_and_b32 s71, s51, 3")
        e("s_cmp_ge_u32 s53, 7")
        e("s_cselect_b32 s49, 1, 0")
        e("s_cselect_b32 s50, 7, 0")
        e("s_sub_u32 s50, s53, s50")
        e("s_lshl_b32 s51, s52, 1")
        e("s_add_u32 s49, s49, s51")
        e("s_mov_b32 s72, s32"); e("s_mov_b32 s73, s33"); e("s_mov_b32 s74, s34"); e("s_mov_b32 s75, s35")
    e("s_load_dwordx2 s[4:5], s[0:1], 0")
    e("s_load_dwordx2 s[6:7], s[0:1], 40")
    e("s_load_dwordx2 s[8:9], s[0:1], 48")
    e("s_load_dwordx2 s[10:11], s[0:1], 64")
    e("s_load_dwordx2 s[12:13], s[0:1], 96")
    e("s_load_dwordx2 s[14:15], s[0:1], 104")
    t = e("s_load_dwordx2 s[16:17], s[0:1], 120")
    if not fused:
        e("v_lshrrev_b32 v1, 6, v0")
        e("v_and_b32 v0, 63, v0")
        e("v_readfirstlane_b32 s48, v1")
        e("s_and_b32 s49, s2, 7")
        e("s_lshl_b32 s49, s49, 2")
        e("s_lshr_b32 s50, s2, 3")
        e("s_and_b32 s51, s50, 3")
        e("s_mov_b32 s71, s51")
        e("s_add_u32 s49, s49, s51")
        e("s_lshr_b32 s50, s50, 2")
    e.wait(t)
    srd(e, 20, 4, 2048*448*2)
    srd(e, 24, 6, 448*448*2)
    srd(e, 28, 8, 448*448*2)
    srd(e, 32, 10, 448*2)
    srd(e, 36, 12, 1792*448*2)
    srd(e, 40, 14, 2048*448*4)
    srd(e, 44, 16, WS_END if not PROFILE else (16 << 20))
    if fused:
        e.raw("s_waitcnt vmcnt(2) lgkmcnt(0)")
        e("s_barrier")
        lab = e.label("F_NOADD")
        e("s_cmp_lg_u32 s48, 0")
        e(f"s_cbranch_scc1 {lab}")
        e("v_mov_b32 v2, s79")
        e("v_mov_b32 v3, s98")
        e("s_mov_b64 exec, 1")
        e("buffer_store_dword v3, v2, s[72:75], s76 offen sc1")
        e("s_mov_b64 exec, -1")
        e.raw(f"{lab}:")
        e.lg_issued = e.lg_done = 0; e.vm_issued = e.vm_done = 0
    pr = Prof(e, 1); pr.stamp()
    e("s_cmp_ge_u32 s48, 4")
    e("s_cbranch_scc1 K2_LOADER")
    e("s_and_b32 s52, s48, 1")
    e("s_lshr_b32 s53, s48, 1")
    e("v_and_b32 v1, 31, v0")
    e("v_lshrrev_b32 v2, 5, v0")
    e("v_and_b32 v3, 15, v0")
    e("v_lshrrev_b32 v4, 4, v0")
    e("s_lshl_b32 s54, s49, 6")
    e("s_lshl_b32 s55, s52, 5")
    e("s_add_u32 s54, s54, s55")
    e("v_add_u32 v5, s54, v1")
    e("s_lshl_b32 s55, s50, 6")
    e("s_lshl_b32 s56, s53, 5")
    e("s_add_u32 s55, s55, s56")
    e("v_lshlrev_b32 v6, 2, v2")
    e("v_add_u32 v6, s55, v6")
    e("s_movk_i32 s57, 896")
    e("v_mul_lo_u32 v7, s57, v5")
    e("v_lshlrev_b32 v8, 1, v6")
    e("v_add_u32 v7, v7, v8")
    e("v_lshlrev_b32 v9, 4, v5")
    e(f"v_add_u32 v9, {WS_STAT}, v9")
    e("v_lshlrev_b32 v10, 1, v7")
    XR, DK, ST = 16, 24, 192
    toks = []
    for a in range(4): toks.append(e(f"buffer_load_dwordx2 v[{XR+2*a}:{XR+2*a+1}], v7, s[20:23], 0 offen offset:{16*a}"))
    for a in range(4): toks.append(e(f"buffer_load_dwordx2 v[{DK+2*a}:{DK+2*a+1}], v8, s[32:35], 0 offen offset:{16*a}"))
    toks.append(e(f"buffer_load_dwordx4 v[{ST}:{ST+3}], v9, s[44:47], 0 offen" + (" sc1" if fused else "")))
    epi_toks = toks
    e("s_lshl_b32 s57, s52, 12")
    e("v_lshlrev_b32 v11, 4, v0")
    e("v_add_u32 v11, s57, v11")
    e("v_lshrrev_b32 v13, 2, v3")
    e("v_lshl_add_u32 v13, v2, 2, v13")
    e("v_lshlrev_b32 v12, 7, v13")
    e("v_and_b32 v13, 1, v4")
    e("s_lshl_b32 s57, s53, 1")
    e("v_add_u32 v13, s57, v13")
    e("v_lshrrev_b32 v14, 3, v3")
    e("v_lshlrev_b32 v14, 1, v14")
    e("v_xor_b32 v13, v13, v14")
    e("v_lshl_add_u32 v12, v13, 5, v12")
    e("v_and_b32 v13, 3, v3")
    e("v_lshl_add_u32 v12, v13, 3, v12")
    e("s_lshl_b32 s57, s53, 5")
    e("v_add_u32 v13, s57, v1")
    e("v_lshlrev_b32 v13, 7, v13")
    e("v_lshrrev_b32 v14, 1, v1")
    e("v_and_b32 v14, 7, v14")
    e("v_xor_b32 v14, v14, v2")
    e("v_lshl_add_u32 v13, v14, 4, v13")
    PH, PW, PC = 11, 12, 13
    TH, TW = 14, 15
    ACCO, ACCY = 64, 80
    FR = 96
    XF, SK, G = 34, 160, 176
    T0 = 50
    def hfrag(set_, kk): return FR + set_*32 + kk*8
    def wfrag(set_, kk): return FR + set_*32 + kk*8 + 4

    def pre_epi():
        e.wait(epi_toks)
        yield
        e(f"v_rcp_f32 v{T0}, v{ST+2}")
        yield
        for p in range(8):
            xa, xb = XF+2*p, XF+2*p+1
            e(f"v_lshlrev_b32 v{xa}, 16, v{XR+p}"); yield
            e(f"v_and_b32 v{xb}, 0xffff0000, v{XR+p}"); yield
            e(f"v_sub_f32 v{T0+1}, v{xa}, v{ST}"); yield
            e(f"v_sub_f32 v{T0+2}, v{xb}, v{ST}"); yield
            yield from bf16_round_pair(e, T0+1, T0+2, T0+1, T0+2, T0+3)
            e(f"v_mul_f32 v{T0+1}, v{T0+1}, v{T0}"); yield
            e(f"v_mul_f32 v{T0+2}, v{T0+2}, v{T0}"); yield
            yield from bf16_round_pair(e, T0+1, T0+2, T0+1, T0+2, T0+3)
            e(f"v_lshlrev_b32 v{T0+4}, 16, v{DK+p}"); yield
            e(f"v_and_b32 v{T0+5}, 0xffff0000, v{DK+p}"); yield
            e(f"v_mul_f32 v{T0+1}, v{T0+1}, v{T0+4}"); yield
            e(f"v_mul_f32 v{T0+2}, v{T0+2}, v{T0+5}"); yield
            yield from bf16_round_pair(e, SK+2*p, SK+2*p+1, T0+1, T0+2, T0+3)
    def silu_epi():
        for p in range(8):
            a, b = T0+1, T0+2
            yield from bf16_round_pair(e, a, b, ACCO+2*p, ACCO+2*p+1, T0+3)
            e(f"v_mul_f32 v{T0+4}, {f32(-LOG2E)}, v{a}"); yield
            e(f"v_mul_f32 v{T0+5}, {f32(-LOG2E)}, v{b}"); yield
            e(f"v_exp_f32 v{T0+4}, v{T0+4}"); yield
            e(f"v_exp_f32 v{T0+5}, v{T0+5}"); yield
            e(f"v_add_f32 v{T0+4}, 1.0, v{T0+4}"); yield
            e(f"v_add_f32 v{T0+5}, 1.0, v{T0+5}"); yield
            e(f"v_rcp_f32 v{T0+4}, v{T0+4}"); yield
            e(f"v_rcp_f32 v{T0+5}, v{T0+5}"); yield
            e(f"v_mul_f32 v{a}, v{a}, v{T0+4}"); yield
            e(f"v_mul_f32 v{b}, v{b}, v{T0+5}"); yield
            yield from bf16_round_pair(e, G+2*p, G+2*p+1, a, b, T0+3)

    NST = 42
    REGB = fused and os.environ.get("REGB", "0") == "1"
    AFL = " sc1" if (fused and os.environ.get("ASC1", "0") == "1") else ""
    def cons_poll_setup():
        e("v_and_b32 v58, 15, v0")
        e("v_min_u32 v58, 13, v58")
        e("v_lshlrev_b32 v58, 2, v58")
    def cons_poll(off):
        top = e.label("F_POLL"); ok = e.label("F_POLLOK")
        c = "s80" if not PROFILE else "s95"
        e(f"s_mov_b32 {c}, 0")
        e.raw(f"{top}:")
        e(f"buffer_load_dword v59, v58, s[44:47], s76 offen offset:{off} sc1")
        e.raw("s_waitcnt vmcnt(0)")
        e("v_cmp_ne_u32 vcc, s98, v59")
        e("s_cmp_eq_u64 vcc, 0")
        e(f"s_cbranch_scc1 {ok}")
        e(f"s_add_u32 {c}, {c}, 1")
        e(f"s_cmp_lt_u32 {c}, 200000")
        e(f"s_cbranch_scc1 {top}")
        e.raw(f"{ok}:")
        e.vm_done = e.vm_issued
    tokA = {}
    if REGB:
        e("v_lshlrev_b32 v61, 4, v0")
        e("s_lshl_b32 s58, s49, 1")
        e("s_add_u32 s58, s58, s52")
        e("s_lshl_b32 s59, s53, 1")
        e("s_mul_i32 s56, s58, 112"); e("s_add_u32 s56, s56, s59"); e("s_lshl_b32 s56, s56, 10")
        e("s_mul_i32 s57, s58, 56"); e("s_add_u32 s57, s57, s59"); e("s_lshl_b32 s57, s57, 10"); e(f"s_add_u32 s57, s57, {WS_hF}")
        e("s_lshl_b32 s60, s52, 2"); e("s_add_u32 s60, s60, s59"); e("s_lshl_b32 s60, s60, 10")
        e("s_mul_i32 s65, s71, 7"); e("s_lshl_b32 s68, s50, 2"); e("s_add_u32 s65, s65, s68")
        e("s_cmp_ge_u32 s65, 28"); e("s_cselect_b32 s68, 28, 0"); e("s_sub_u32 s65, s65, s68")
        e("s_lshl_b32 s66, s71, 1"); e("s_add_u32 s66, s66, s50")
        e("s_cmp_ge_u32 s66, 7"); e("s_cselect_b32 s68, 7, 0"); e("s_sub_u32 s66, s66, s68")
        def c_issueA(t):
            base = baseA(t)
            if t < 28:
                e("s_lshl_b32 s69, s65, 12"); e("s_add_u32 s69, s69, s56")
            else:
                e("s_lshl_b32 s69, s66, 13"); e("s_add_u32 s69, s69, s57")
                if (t - 28) & 1: e("s_add_u32 s69, s69, 4096")
            for a in range(2):
                e(f"s_add_u32 m0, s60, {base + a*1024}")
                if a: e("s_add_u32 s69, s69, 1024")
                tok = e(f"buffer_load_dwordx4 v61, s[44:47], s69 offen{AFL} lds")
            if t < 28:
                e("s_add_u32 s65, s65, 1"); e("s_cmp_eq_u32 s65, 28"); e("s_cselect_b32 s65, 0, s65")
            elif (t - 28) & 1:
                e("s_add_u32 s66, s66, 1"); e("s_cmp_eq_u32 s66, 7"); e("s_cselect_b32 s66, 0, s66")
            tokA[t] = tok
        drain(pre_epi())
        cons_poll_setup()
        cons_poll(0)
        for t in range(RA - 2): c_issueA(t)
        nA = RA - 2
        fill = None
    else:
        fill = pre_epi()
    first = {ACCO: True, ACCY: True}
    rtok = {}
    def mfmas(t):
        acc = ACCO if t < 28 else ACCY
        for kk in range(4):
            e.wait(rtok[(t, kk)])
            c = "0" if first[acc] else f"v[{acc}:{acc+15}]"
            first[acc] = False
            e(f"v_mfma_f32_32x32x16_bf16 v[{acc}:{acc+15}], v[{wfrag(t&1,kk)}:{wfrag(t&1,kk)+3}], v[{hfrag(t&1,kk)}:{hfrag(t&1,kk)+3}], {c}")
            yield
    for t in range(NST + 1):
        if t < NST:
            if fused and t == 3 and not REGB: e.raw("s_waitcnt vmcnt(0)"); e.vm_done = e.vm_issued
            if REGB: e.wait(tokA[t])
            e("s_barrier")
            if fused and t == 3:
                lab = e.label("F_NOH")
                e("s_cmp_lg_u32 s48, 0")
                e(f"s_cbranch_scc1 {lab}")
                e.cond_begin()
                e("v_mov_b32 v56, s79")
                e("v_mov_b32 v57, s98")
                e("s_mov_b64 exec, 1")
                e("buffer_store_dword v57, v56, s[72:75], s76 offen offset:64 sc1")
                e("s_mov_b64 exec, -1")
                e.cond_end()
                e.raw(f"{lab}:")
            if t in (0, 1, 8, 16, 28, 41): pr.stamp()
            if REGB and nA < NST and nA <= t + RA - 2:
                if nA == 25: cptok = e("buffer_load_dword v59, v58, s[44:47], s76 offen offset:64 sc1")
                if nA == 28:
                    ok = e.label("F_PCOK")
                    e.wait(cptok)
                    e("v_cmp_ne_u32 vcc, s98, v59"); e("s_cmp_eq_u64 vcc, 0"); e(f"s_cbranch_scc1 {ok}")
                    e.cond_begin(); cons_poll(64); e.cond_end()
                    e.raw(f"{ok}:")
                c_issueA(nA); nA += 1
            e(f"v_add_u32 v{TH}, {baseA(t)}, v{PH}")
            if t < 28: e(f"v_add_u32 v{TW}, {baseB(t)}, v{PW}")
            else:      e(f"v_add_u32 v{TW}, {baseB(t)}, v{PC}")
        mf = mfmas(t-1) if t >= 1 else None
        for kk in range(4):
            if t < NST:
                if mf is not None: mf = pull(mf, 1)
                tk_ = [e(f"ds_read_b128 v[{hfrag(t&1,kk)}:{hfrag(t&1,kk)+3}], v{TH} offset:{kk*1024}")]
                w = wfrag(t&1,kk)
                if t < 28:
                    tk_.append(e(f"ds_read_b64_tr_b16 v[{w}:{w+1}], v{TW} offset:{kk*2048}"))
                    tk_.append(e(f"ds_read_b64_tr_b16 v[{w+2}:{w+3}], v{TW} offset:{kk*2048+1024}"))
                else:
                    if kk == 0: tk_.append(e(f"ds_read_b128 v[{w}:{w+3}], v{TW}"))
                    else:
                        e(f"v_xor_b32 v{T0+8}, {kk<<5}, v{TW}")
                        tk_.append(e(f"ds_read_b128 v[{w}:{w+3}], v{T0+8}"))
                rtok[(t, kk)] = tk_
            elif mf is not None: mf = pull(mf, 1)
            fill = pull(fill, 6 if not REGB else 3)
        if t == 29:
            drain(fill); fill = silu_epi()
        if t < NST and not REGB: e.wait_all(vm=False, lg=True)
    drain(fill)
    for i in range(16):
        e(f"v_add_f32 v{SK+i}, v{ACCY+i}, v{SK+i}")
    for i in range(16):
        e(f"v_fma_f32 v{SK+i}, v{SK+i}, v{G+i}, v{XF+i}")
    for a in range(4):
        e(f"buffer_store_dwordx4 v[{SK+4*a}:{SK+4*a+3}], v10, s[40:43], 0 offen offset:{32*a}")
    pr.stamp()
    if PROFILE: e("s_waitcnt vmcnt(0)")
    pr.stamp()
    pr.dump(44, 48)
    e("s_endpgm")
    e2 = e
    e.raw("K2_LOADER:")
    e.lg_issued = e.lg_done = 0; e.vm_issued = e.vm_done = 0
    e("s_sub_u32 s52, s48, 4")
    e("s_and_b32 s53, s52, 1")
    e("s_lshr_b32 s54, s52, 1")
    e("v_lshlrev_b32 v1, 4, v0")
    e("v_lshrrev_b32 v2, 3, v0")
    e("s_lshl_b32 s55, s52, 4")
    e("v_add_u32 v2, s55, v2")
    e("s_movk_i32 s55, 896")
    e("v_mul_lo_u32 v2, s55, v2")
    e("v_and_b32 v3, 7, v0")
    e("v_lshrrev_b32 v4, 4, v0")
    e("v_and_b32 v5, 1, v4")
    e("v_lshlrev_b32 v5, 2, v5")
    e("v_xor_b32 v5, v5, v3")
    e("v_lshl_add_u32 v5, v5, 4, v2")
    e("v_xor_b32 v6, v4, v3")
    e("v_lshl_add_u32 v6, v6, 4, v2")
    e("v_add_u32 v7, 4, v4")
    e("v_xor_b32 v7, v7, v3")
    e("v_lshl_add_u32 v7, v7, 4, v2")
    e(f"v_add_u32 v7, {8*896}, v7")
    e("s_lshl_b32 s58, s49, 1")
    e("s_add_u32 s58, s58, s53")
    e("s_lshl_b32 s59, s54, 1")
    e("s_mul_i32 s56, s58, 112")
    e("s_add_u32 s56, s56, s59")
    e("s_lshl_b32 s56, s56, 10")
    if WS_HF: e(f"s_add_u32 s56, s56, {WS_HF}")
    e("s_mul_i32 s57, s58, 56")
    e("s_add_u32 s57, s57, s59")
    e("s_lshl_b32 s57, s57, 10")
    e(f"s_add_u32 s57, s57, {WS_hF}")
    e("s_lshl_b32 s60, s53, 2")
    e("s_add_u32 s60, s60, s59")
    e("s_lshl_b32 s60, s60, 10")
    e("s_lshl_b32 s61, s52, 11")
    e("s_lshl_b32 s62, s50, 7")
    e(f"s_mul_i32 s63, s50, {64*896}")
    if REGB:
        assert EARLY_B == 12
        e("s_mul_i32 s77, s71, 7"); e("s_lshl_b32 s68, s50, 2"); e("s_add_u32 s77, s77, s68")
        e("s_cmp_ge_u32 s77, 28"); e("s_cselect_b32 s68, 28, 0"); e("s_sub_u32 s77, s77, s68")
        e(f"s_add_u32 s77, s77, {EARLY_B}"); e("s_cmp_ge_u32 s77, 28"); e("s_cselect_b32 s68, 28, 0"); e("s_sub_u32 s77, s77, s68")
        e("s_lshl_b32 s78, s71, 1"); e("s_add_u32 s78, s78, s50")
        e("s_cmp_ge_u32 s78, 7"); e("s_cselect_b32 s68, 7, 0"); e("s_sub_u32 s78, s78, s68")
        def breg(t): return 16 + 8*(t - EARLY_B)
        tokR = {}
        def bload(t):
            part = (t - 28) & 1
            if t < 28:
                e(f"s_mul_i32 s70, s77, {64*896}"); e("s_add_u32 s70, s70, s62")
            else:
                e("s_lshl_b32 s70, s78, 7"); e("s_add_u32 s70, s70, s63")
            for a in range(2):
                r = breg(t) + 4*a
                if t < 28:
                    if a: e("s_add_u32 s70, s70, 7168")
                    tokR[t] = e(f"buffer_load_dwordx4 v[{r}:{r+3}], v5, s[36:39], s70 offen")
                else:
                    tokR[t] = e(f"buffer_load_dwordx4 v[{r}:{r+3}], v{6+a}, s[{24+4*part}:{27+4*part}], s70 offen")
            if t < 28:
                e("s_add_u32 s77, s77, 1"); e("s_cmp_eq_u32 s77, 28"); e("s_cselect_b32 s77, 0, s77")
            elif part:
                e("s_add_u32 s78, s78, 1"); e("s_cmp_eq_u32 s78, 7"); e("s_cselect_b32 s78, 0, s78")
        NINIT = int(os.environ.get("BINIT", "28"))
        nL = EARLY_B
        while nL < NINIT: bload(nL); nL += 1
        e("v_add_u32 v1, s61, v1")
        def bwrite(t):
            e.wait(tokR[t])
            base = baseB(t)
            e(f"v_add_u32 v2, {base}, v1")
            e(f"ds_write_b128 v2, v[{breg(t)}:{breg(t)+3}]")
            e(f"ds_write_b128 v2, v[{breg(t)+4}:{breg(t)+7}] offset:1024")
        pr = Prof(e, 1); pr.n = 1
        pr.stamp()
        for t in range(EARLY_B, RB - 2): bwrite(t)
        for t in range(NST):
            e.wait_all(vm=False, lg=True)
            if t in (0, 1, 8, 16, 28, 41): pr.stamp()
            e("s_barrier")
            if nL < NST and t >= int(os.environ.get("BSTART", "2")): bload(nL); nL += 1
            s_ = t + RB - 2
            if EARLY_B <= s_ < NST and s_ >= RB - 2: bwrite(s_)
        pr.dump(44, 48)
        e.raw("K2_END:")
        e("s_endpgm")
        return
    if os.environ.get("K2ROT", "1") == "1":
        e("s_mul_i32 s65, s71, 7")
        e("s_lshl_b32 s68, s50, 2")
        e("s_add_u32 s65, s65, s68")
        e("s_cmp_ge_u32 s65, 28")
        e("s_cselect_b32 s68, 28, 0")
        e("s_sub_u32 s65, s65, s68")
        e("s_lshl_b32 s66, s71, 1")
        e("s_add_u32 s66, s66, s50")
        e("s_cmp_ge_u32 s66, 7")
        e("s_cselect_b32 s68, 7, 0")
        e("s_sub_u32 s66, s66, s68")
    else:
        e("s_mov_b32 s65, 0"); e("s_mov_b32 s66, 0")
    e("s_mov_b32 s77, s65"); e("s_mov_b32 s78, s66")
    stage_tok = {}
    AFL = " sc1" if (fused and os.environ.get("ASC1", "0") == "1") else ""
    def adv(t, o, m):
        if t < 28:
            e(f"s_add_u32 s{o}, s{o}, 1"); e(f"s_cmp_eq_u32 s{o}, 28"); e(f"s_cselect_b32 s{o}, 0, s{o}")
        elif (t - 28) & 1:
            e(f"s_add_u32 s{m}, s{m}, 1"); e(f"s_cmp_eq_u32 s{m}, 7"); e(f"s_cselect_b32 s{m}, 0, s{m}")
    def issueA(t):
        base = baseA(t)
        if t < 28:
            e("s_lshl_b32 s69, s65, 12")
            e("s_add_u32 s69, s69, s56")
        else:
            e("s_lshl_b32 s69, s66, 13")
            e("s_add_u32 s69, s69, s57")
            if (t - 28) & 1: e("s_add_u32 s69, s69, 4096")
        for a in range(2):
            e(f"s_add_u32 m0, s60, {base + a*1024}")
            if a: e("s_add_u32 s69, s69, 1024")
            tok = e(f"buffer_load_dwordx4 v1, s[44:47], s69 offen{AFL} lds")
        adv(t, 65, 66)
        return tok
    def issueB(t):
        base = baseB(t)
        part = (t - 28) & 1
        if t < 28:
            e(f"s_mul_i32 s70, s77, {64*896}")
            e("s_add_u32 s70, s70, s62")
        else:
            e("s_lshl_b32 s70, s78, 7")
            e("s_add_u32 s70, s70, s63")
        for a in range(2):
            e(f"s_add_u32 m0, s61, {base + a*1024}")
            if t < 28:
                if a: e("s_add_u32 s70, s70, 7168")
                tok = e("buffer_load_dwordx4 v5, s[36:39], s70 offen lds")
            else:
                tok = e(f"buffer_load_dwordx4 v{6+a}, s[{24+4*part}:{27+4*part}], s70 offen lds")
        adv(t, 77, 78)
        return tok
    def poll(off):
        top = e.label("F_POLL"); ok = e.label("F_POLLOK")
        e("v_and_b32 v8, 15, v0")
        e("v_min_u32 v8, 13, v8")
        e("v_lshlrev_b32 v8, 2, v8")
        e("s_mov_b32 s80, 0" if not PROFILE else "s_mov_b32 s95, 0")
        c = "s80" if not PROFILE else "s95"
        e.raw(f"{top}:")
        e(f"buffer_load_dword v9, v8, s[44:47], s76 offen offset:{off} sc1")
        e.raw("s_waitcnt vmcnt(0)")
        e("v_cmp_ne_u32 vcc, s98, v9")
        e("s_cmp_eq_u64 vcc, 0")
        e(f"s_cbranch_scc1 {ok}")
        e(f"s_add_u32 {c}, {c}, 1")
        e(f"s_cmp_lt_u32 {c}, 200000")
        e(f"s_cbranch_scc1 {top}")
        e.raw(f"{ok}:")
        e.vm_done = e.vm_issued
    def poll_issue(off):
        return e(f"buffer_load_dword v9, v8, s[44:47], s76 offen offset:{off} sc1")
    def poll_check(tok, off):
        ok = e.label("F_PCOK")
        e.wait(tok)
        e("v_cmp_ne_u32 vcc, s98, v9")
        e("s_cmp_eq_u64 vcc, 0")
        e(f"s_cbranch_scc1 {ok}")
        e.cond_begin()
        poll(off)
        e.cond_end()
        e.raw(f"{ok}:")
    pr = Prof(e, 1); pr.n = 1
    PRO = int(os.environ.get("K2PRO", "2"))
    tokA = {}; tokB = {}
    nA = 0; nB = 0
    if fused:
        for t in range(EARLY_B):
            tokB[t] = None; nB += 1; adv(t, 77, 78)
        if EARLY_B == 0:
            for t in range(RB - 1): tokB[t] = issueB(t); nB += 1
        poll(0)
        for t in range(PRO): tokA[t] = issueA(t); nA += 1
    else:
        for t in range(PRO):
            tokA[t] = issueA(t); tokB[t] = issueB(t); nA += 1; nB += 1
    pr.stamp()
    ptok = None
    for t in range(NST):
        e.wait(tokA[t], tokB[t])
        if t in (0, 1, 8, 16, 28, 41): pr.stamp()
        e("s_barrier")
        k = 0
        while k < 2:
            did = False
            if nA < NST and nA <= t + RA - 1:
                if fused and nA == 24: ptok = poll_issue(64)
                if fused and nA == 28: poll_check(ptok, 64)
                tokA[nA] = issueA(nA); nA += 1; did = True
            if nB < NST and nB <= t + RB - 1 and nB <= nA + RB:
                tokB[nB] = issueB(nB); nB += 1; did = True
            if not did: break
            k += 1
        assert nA > t + 1 or nA == NST or True
    pr.dump(44, 48)
    e.raw("K2_END:")
    e("s_endpgm")

def kd(name, vgpr, sgpr=102):
    acc = (vgpr + 3)//4*4
    return f""".amdhsa_kernel {name}
  .amdhsa_next_free_vgpr {vgpr}
  .amdhsa_next_free_sgpr {sgpr}
  .amdhsa_accum_offset {acc}
  .amdhsa_group_segment_fixed_size 0
  .amdhsa_kernarg_size 128
  .amdhsa_user_sgpr_count 2
  .amdhsa_user_sgpr_kernarg_segment_ptr 1
  .amdhsa_system_sgpr_workgroup_id_x 1
.end_amdhsa_kernel"""

def main():
    global PROFILE
    which = sys.argv[2] if len(sys.argv) > 2 else "k2"
    if len(sys.argv) > 3 and "prof" in sys.argv[3]: PROFILE = True
    hdr = open(f"cdna_kernels/{NAME}.s.ref").read().split("; Override launch")[0]
    out = [hdr.rstrip()]
    kernels = []
    fused = "fused" in which
    KN = NAME + "_kernel" if fused else "k1_kernel"
    if fused:
        if os.environ.get("PLAIN", "0") == "1": out.append("; @launch grid=(256,1,1) block=(512,1,1) lds=163840")
        else: out.append(f"; @launch kernel={KN} grid=(256,1,1) block=(512,1,1) lds=163840")
    else:
        if "k1" in which:
            out.append("; @launch kernel=k1_kernel grid=(256,1,1) block=(512,1,1) lds=163840")
        if "k2" in which:
            out.append(f"; @launch kernel=k2_kernel grid=(224,1,1) block=(512,1,1) lds={K2_R*K2_STAGE}")
    out.append('.amdgcn_target "amdgcn-amd-amdhsa--gfx950"\n.text')
    kds = []
    if fused:
        import gen_k1b as gen_k1
        gen_k1.G.PROFILE = PROFILE
        e = Emit(); vg = gen_k1.gen_k1(e, fused=True, kname=KN)
        out.append(f".globl {KN}\n.p2align 8\n.type {KN},@function"); out.append(e.finish()); kds.append(kd(KN, vg))
    else:
        if "k1" in which:
            import gen_k1b as gen_k1
            gen_k1.G.PROFILE = PROFILE
            e = Emit(); vg = gen_k1.gen_k1(e)
            out.append(".globl k1_kernel\n.p2align 8\n.type k1_kernel,@function"); out.append(e.finish()); kds.append(kd("k1_kernel", vg))
        if "k2" in which:
            e = Emit(); gen_k2(e)
            out.append(".globl k2_kernel\n.p2align 8\n.type k2_kernel,@function"); out.append(e.finish()); kds.append(kd("k2_kernel", 200 if not PROFILE else 224))
    out.append('.section .rodata,"a"\n.p2align 6')
    out.append("\n.p2align 6\n".join(kds))
    open(sys.argv[1], "w").write("\n".join(out) + "\n")
if __name__ == "__main__": main()
```

```python
import sys, os
sys.path.insert(0, "dev")
from asmlib import *
import gen as G
from gen import *
from collections import deque

def cmul(e, dr, di, ar, ai, br, bi, t):
    e(f"v_mul_f32 v{t}, v{ai}, v{bi}"); yield
    e(f"v_mul_f32 v{t+1}, v{ai}, v{br}"); yield
    e(f"v_fma_f32 v{t}, v{ar}, v{br}, -v{t}"); yield
    e(f"v_fma_f32 v{di}, v{ar}, v{bi}, v{t+1}"); yield
    e(f"v_mov_b32 v{dr}, v{t}"); yield
def csq(e, dr, di, ar, ai, t):
    e(f"v_mul_f32 v{t}, v{ai}, v{ai}"); yield
    e(f"v_mul_f32 v{t+1}, v{ar}, v{ai}"); yield
    e(f"v_fma_f32 v{dr}, v{ar}, v{ar}, -v{t}"); yield
    e(f"v_add_f32 v{di}, v{t+1}, v{t+1}"); yield
def cfma(e, hr, hi, lr, li, br, bi, t):
    e(f"v_fma_f32 v{t}, v{lr}, v{hr}, v{br}"); yield
    e(f"v_fma_f32 v{t+1}, v{lr}, v{hi}, v{bi}"); yield
    e(f"v_fma_f32 v{t}, -v{li}, v{hi}, v{t}"); yield
    e(f"v_fma_f32 v{hi}, v{li}, v{hr}, v{t+1}"); yield
    e(f"v_mov_b32 v{hr}, v{t}"); yield
def cfma_to(e, dr, di, hr, hi, lr, li, br, bi):
    e(f"v_fma_f32 v{dr}, v{lr}, v{hr}, v{br}"); yield
    e(f"v_fma_f32 v{di}, v{lr}, v{hi}, v{bi}"); yield
    e(f"v_fma_f32 v{dr}, -v{li}, v{hi}, v{dr}"); yield
    e(f"v_fma_f32 v{di}, v{li}, v{hr}, v{di}"); yield

def gen_helper(e):
    e.raw("K1_HELPER:")
    e.lg_issued = e.lg_done = 0; e.vm_issued = e.vm_done = 0
    if os.environ.get("CODEPF", "0") == "1":
        lab = e.label("K1H_CP")
        e("s_cmp_lg_u32 s48, 7")
        e(f"s_cbranch_scc1 {lab}")
        e("v_lshlrev_b32 v10, 7, v0")
        for k in range(4):
            e("v_min_u32 v11, K1_CODE_LAST-K1_CODE_FIRST, v10")
            e(f"global_load_dword v{20+k}, v11, s[84:85]")
            if k < 3: e("v_add_u32 v10, 8192, v10")
        e.raw(f"{lab}:")
    HW = os.environ.get("HWARM", "1") == "1"
    e("s_cmp_ge_u32 s2, 28")
    e("s_cbranch_scc1 K1H_WARM" if HW else "s_cbranch_scc1 K1_END")
    srd(e, 32, 18, WS_END if not G.PROFILE else (16 << 20))
    pr = G.Prof(e, 0); pr.stamp()
    srd(e, 36, 16, 256)
    e("s_cmp_ge_u32 s2, 14")
    e("s_cselect_b32 s28, s14, s12")
    e("s_cselect_b32 s29, s15, s13")
    e("s_cselect_b32 s54, 14, 0")
    e("s_cselect_b32 s56, 1792, 0")
    e("s_and_b32 s29, s29, 0xffff")
    e("s_sub_u32 s54, s2, s54")
    e(f"s_mov_b32 s30, {448*1792*2}")
    e("s_mov_b32 s31, 0x20000")
    e("v_lshrrev_b32 v4, 4, v0")
    e("s_movk_i32 s50, 3584")
    e("v_mul_lo_u32 v4, s50, v4")
    e("v_and_b32 v5, 15, v0")
    e("v_lshl_add_u32 v4, v5, 4, v4")
    e(f"s_mul_i32 s55, s48, {56*3584}")
    e("s_lshl_b32 s57, s54, 8")
    e("s_add_u32 s55, s55, s57")
    nonce_cas(e, 12)
    if os.environ.get("HDELAY", "0") == "1":
        nonce_publish(e, 12, 32768)
        e("s_barrier")
    WL = 72
    U = 128
    wt = []
    for n in range(14):
        e(f"s_add_u32 s57, s55, {n*4*3584}")
        wt.append(e(f"buffer_load_dwordx4 v[{WL+4*n}:{WL+4*n+3}], v4, s[28:31], s57 offen"))
    A = 16
    for n in range(14):
        e.wait(wt[n])
        if n == 0:
            pr.stamp()
            if os.environ.get("HDELAY", "0") != "1": nonce_publish(e, 12, 32768)
        for d in range(4):
            src = WL + 4*n + d
            if n == 0:
                e(f"v_lshlrev_b32 v{A+2*d}, 16, v{src}")
                e(f"v_and_b32 v{A+2*d+1}, 0xffff0000, v{src}")
            else:
                e(f"v_lshlrev_b32 v6, 16, v{src}")
                e(f"v_and_b32 v7, 0xffff0000, v{src}")
                e(f"v_add_f32 v{A+2*d}, v{A+2*d}, v6")
                e(f"v_add_f32 v{A+2*d+1}, v{A+2*d+1}, v7")
    pr.stamp()
    e("v_lshrrev_b32 v6, 4, v0")
    e("s_lshl_b32 s57, s48, 2")
    e("v_add_u32 v6, s57, v6")
    e("v_lshlrev_b32 v6, 9, v6")
    e("v_lshl_add_u32 v6, v5, 5, v6")
    e(f"ds_write_b128 v6, v[{A}:{A+3}]")
    e(f"ds_write_b128 v6, v[{A+4}:{A+7}] offset:16")
    e.wait_all(vm=False)
    e("s_barrier")
    e("s_cmp_ge_u32 s48, 2")
    e("s_cbranch_scc1 K1H_WARM" if HW else "s_cbranch_scc1 K1_END")
    nonce_read(e, 13, 32768)
    e("s_lshl_b32 s57, s48, 6")
    e("v_add_u32 v6, s57, v0")
    e("v_lshlrev_b32 v7, 2, v6")
    for p in range(32): e(f"ds_read_b32 v{U+p}, v7 offset:{p*512}")
    e.wait_all(vm=False)
    for st in (16, 8, 4, 2, 1):
        for p in range(st): e(f"v_add_f32 v{U+p}, v{U+p}, v{U+p+st}")
    e("s_lshl_b32 s57, s54, 7")
    e("s_add_u32 s57, s57, s56")
    e("v_add_u32 v6, s57, v6")
    e("v_lshlrev_b32 v6, 3, v6")
    e(f"v_add_u32 v6, {WS_CSW}, v6")
    e(f"v_mov_b32 v{U+1}, s98")
    e(f"buffer_store_dwordx2 v[{U}:{U+1}], v6, s[32:35], 0 offen sc1")
    pr.stamp()
    pr.dump(32, 48)
    if HW:
        if G.PROFILE: e("s_mov_b64 exec, -1")
        e.raw("K1H_WARM:")
        e("s_lshl_b32 s49, s2, 3"); e("s_add_u32 s49, s49, s48")
        e("s_mul_i32 s50, s49, 49")
        e("v_min_u32 v6, 48, v0")
        e("v_add_u32 v6, s50, v6"); e("v_lshlrev_b32 v6, 7, v6")
        e("global_load_dword v7, v6, s[86:87]")
        e("s_mul_i32 s50, s49, 13")
        e("v_and_b32 v6, 15, v0"); e("v_min_u32 v6, 12, v6")
        e("v_add_u32 v6, s50, v6"); e("v_min_u32 v6, 3135, v6"); e("v_lshlrev_b32 v6, 7, v6")
        e("global_load_dword v8, v6, s[88:89]")
        e("global_load_dword v9, v6, s[90:91]")
        e("s_waitcnt vmcnt(0)")
    e.raw("K1_CODE_LAST:")
    e("s_endpgm")

NW = 7
def nonce_cas(e, v, srd="s[36:39]"):
    lab = e.label("K1_NC"); lab2 = e.label("K1_NC2")
    e(f"v_mov_b32 v{v+1}, 0")
    e(f"s_cmp_lg_u32 s48, {NW}")
    e(f"s_cbranch_scc1 {lab}")
    e.cond_begin()
    e("s_cmp_lg_u32 s2, 0")
    e(f"s_cbranch_scc1 {lab2}")
    e.raw("s_memrealtime s[100:101]")
    e.raw("s_waitcnt lgkmcnt(0)")
    e("s_or_b32 s99, s100, 1")
    e(f"v_mov_b32 v{v}, s99")
    e("s_mov_b64 s[58:59], exec")
    e("s_mov_b64 exec, 1")
    e(f"buffer_store_dword v{v}, v{v+1}, {srd}, 0 offen sc1")
    e("s_mov_b64 exec, s[58:59]")
    e.raw("s_waitcnt vmcnt(0)")
    e.raw(f"{lab2}:")
    e(f"buffer_load_dword v{v}, v{v+1}, {srd}, 0 offen sc1")
    e.cond_end()
    e.raw(f"{lab}:")
    e.vm_at_cas = e.vm_issued
def nonce_publish(e, v, lds, srd="s[36:39]"):
    lab = e.label("K1_NP"); top = e.label("K1_NPT"); ok = e.label("K1_NPO")
    e(f"s_cmp_lg_u32 s48, {NW}")
    e(f"s_cbranch_scc1 {lab}")
    e.cond_begin()
    e.raw(f"s_waitcnt vmcnt({min(63, e.vm_issued - e.vm_at_cas)})")
    e("s_mov_b32 s101, 0")
    e.raw(f"{top}:")
    e(f"v_readfirstlane_b32 s100, v{v}")
    e("s_cmp_lg_u32 s100, 0")
    e(f"s_cbranch_scc1 {ok}")
    e(f"buffer_load_dword v{v}, v{v+1}, {srd}, 0 offen sc1")
    e.raw("s_waitcnt vmcnt(0)")
    e("s_add_u32 s101, s101, 1")
    e("s_cmp_lt_u32 s101, 200000")
    e(f"s_cbranch_scc1 {top}")
    e.raw(f"{ok}:")
    e(f"v_mov_b32 v{v}, s100")
    e(f"v_mov_b32 v{v+1}, {lds}")
    e(f"ds_write_b32 v{v+1}, v{v}")
    e.raw("s_waitcnt lgkmcnt(0)")
    e.cond_end()
    e.raw(f"{lab}:")
def nonce_read(e, v, lds):
    e(f"v_mov_b32 v{v}, {lds}")
    t = e(f"ds_read_b32 v{v}, v{v}")
    e.wait(t)
    e(f"v_readfirstlane_b32 s98, v{v}")

def tagged_retry(e, issue, check, name, maxit=100000, cnt="s61"):
    ok = e.label(name + "_OK"); top = e.label(name + "_RT")
    check()
    e(f"s_cbranch_scc1 {ok}")
    e.cond_begin()
    e(f"s_mov_b32 {cnt}, 0")
    e.raw(f"{top}:")
    e("s_sleep 2")
    issue()
    e.raw("s_waitcnt vmcnt(0)")
    check()
    e(f"s_cbranch_scc1 {ok}")
    e(f"s_add_u32 {cnt}, {cnt}, 1")
    e(f"s_cmp_lt_u32 {cnt}, {maxit}")
    e(f"s_cbranch_scc1 {top}")
    e.cond_end()
    e.raw(f"{ok}:")
```

```python
import sys, os
sys.path.insert(0, "dev")
from asmlib import *
import gen as G
from gen import *
from collections import deque

def cmul(e, dr, di, ar, ai, br, bi, t):
    e(f"v_mul_f32 v{t}, v{ai}, v{bi}"); yield
    e(f"v_mul_f32 v{t+1}, v{ai}, v{br}"); yield
    e(f"v_fma_f32 v{t}, v{ar}, v{br}, -v{t}"); yield
    e(f"v_fma_f32 v{di}, v{ar}, v{bi}, v{t+1}"); yield
    e(f"v_mov_b32 v{dr}, v{t}"); yield
def csq(e, dr, di, ar, ai, t):
    e(f"v_mul_f32 v{t}, v{ai}, v{ai}"); yield
    e(f"v_mul_f32 v{t+1}, v{ar}, v{ai}"); yield
    e(f"v_fma_f32 v{dr}, v{ar}, v{ar}, -v{t}"); yield
    e(f"v_add_f32 v{di}, v{t+1}, v{t+1}"); yield
def cfma(e, hr, hi, lr, li, br, bi, t):
    e(f"v_fma_f32 v{t}, v{lr}, v{hr}, v{br}"); yield
    e(f"v_fma_f32 v{t+1}, v{lr}, v{hi}, v{bi}"); yield
    e(f"v_fma_f32 v{t}, -v{li}, v{hi}, v{t}"); yield
    e(f"v_fma_f32 v{hi}, v{li}, v{hr}, v{t+1}"); yield
    e(f"v_mov_b32 v{hr}, v{t}"); yield
def cfma_to(e, dr, di, hr, hi, lr, li, br, bi):
    e(f"v_fma_f32 v{dr}, v{lr}, v{hr}, v{br}"); yield
    e(f"v_fma_f32 v{di}, v{lr}, v{hi}, v{bi}"); yield
    e(f"v_fma_f32 v{dr}, -v{li}, v{hi}, v{dr}"); yield
    e(f"v_fma_f32 v{di}, v{li}, v{hr}, v{di}"); yield

def gen_helper(e):
    e.raw("K1_HELPER:")
    e.lg_issued = e.lg_done = 0; e.vm_issued = e.vm_done = 0
    if os.environ.get("CODEPF", "0") == "1":
        lab = e.label("K1H_CP")
        e("s_cmp_lg_u32 s48, 7")
        e(f"s_cbranch_scc1 {lab}")
        e("v_lshlrev_b32 v10, 7, v0")
        for k in range(4):
            e("v_min_u32 v11, K1_CODE_LAST-K1_CODE_FIRST, v10")
            e(f"global_load_dword v{20+k}, v11, s[84:85]")
            if k < 3: e("v_add_u32 v10, 8192, v10")
        e.raw(f"{lab}:")
    HW = os.environ.get("HWARM", "1") == "1"
    e("s_cmp_ge_u32 s2, 28")
    e("s_cbranch_scc1 K1H_WARM" if HW else "s_cbranch_scc1 K1_END")
    srd(e, 32, 18, WS_END if not G.PROFILE else (16 << 20))
    pr = G.Prof(e, 0); pr.stamp()
    srd(e, 36, 16, 256)
    e("s_cmp_ge_u32 s2, 14")
    e("s_cselect_b32 s28, s14, s12")
    e("s_cselect_b32 s29, s15, s13")
    e("s_cselect_b32 s54, 14, 0")
    e("s_cselect_b32 s56, 1792, 0")
    e("s_and_b32 s29, s29, 0xffff")
    e("s_sub_u32 s54, s2, s54")
    e(f"s_mov_b32 s30, {448*1792*2}")
    e("s_mov_b32 s31, 0x20000")
    e("v_lshrrev_b32 v4, 4, v0")
    e("s_movk_i32 s50, 3584")
    e("v_mul_lo_u32 v4, s50, v4")
    e("v_and_b32 v5, 15, v0")
    e("v_lshl_add_u32 v4, v5, 4, v4")
    e(f"s_mul_i32 s55, s48, {56*3584}")
    e("s_lshl_b32 s57, s54, 8")
    e("s_add_u32 s55, s55, s57")
    nonce_cas(e, 12)
    if os.environ.get("HDELAY", "0") == "1":
        nonce_publish(e, 12, 32768)
        e("s_barrier")
    WL = 72
    U = 128
    wt = []
    for n in range(14):
        e(f"s_add_u32 s57, s55, {n*4*3584}")
        wt.append(e(f"buffer_load_dwordx4 v[{WL+4*n}:{WL+4*n+3}], v4, s[28:31], s57 offen"))
    A = 16
    for n in range(14):
        e.wait(wt[n])
        if n == 0:
            pr.stamp()
            if os.environ.get("HDELAY", "0") != "1": nonce_publish(e, 12, 32768)
        for d in range(4):
            src = WL + 4*n + d
            if n == 0:
                e(f"v_lshlrev_b32 v{A+2*d}, 16, v{src}")
                e(f"v_and_b32 v{A+2*d+1}, 0xffff0000, v{src}")
            else:
                e(f"v_lshlrev_b32 v6, 16, v{src}")
                e(f"v_and_b32 v7, 0xffff0000, v{src}")
                e(f"v_add_f32 v{A+2*d}, v{A+2*d}, v6")
                e(f"v_add_f32 v{A+2*d+1}, v{A+2*d+1}, v7")
    pr.stamp()
    e("v_lshrrev_b32 v6, 4, v0")
    e("s_lshl_b32 s57, s48, 2")
    e("v_add_u32 v6, s57, v6")
    e("v_lshlrev_b32 v6, 9, v6")
    e("v_lshl_add_u32 v6, v5, 5, v6")
    e(f"ds_write_b128 v6, v[{A}:{A+3}]")
    e(f"ds_write_b128 v6, v[{A+4}:{A+7}] offset:16")
    e.wait_all(vm=False)
    e("s_barrier")
    e("s_cmp_ge_u32 s48, 2")
    e("s_cbranch_scc1 K1H_WARM" if HW else "s_cbranch_scc1 K1_END")
    nonce_read(e, 13, 32768)
    e("s_lshl_b32 s57, s48, 6")
    e("v_add_u32 v6, s57, v0")
    e("v_lshlrev_b32 v7, 2, v6")
    for p in range(32): e(f"ds_read_b32 v{U+p}, v7 offset:{p*512}")
    e.wait_all(vm=False)
    for st in (16, 8, 4, 2, 1):
        for p in range(st): e(f"v_add_f32 v{U+p}, v{U+p}, v{U+p+st}")
    e("s_lshl_b32 s57, s54, 7")
    e("s_add_u32 s57, s57, s56")
    e("v_add_u32 v6, s57, v6")
    e("v_lshlrev_b32 v6, 3, v6")
    e(f"v_add_u32 v6, {WS_CSW}, v6")
    e(f"v_mov_b32 v{U+1}, s98")
    e(f"buffer_store_dwordx2 v[{U}:{U+1}], v6, s[32:35], 0 offen sc1")
    pr.stamp()
    pr.dump(32, 48)
    if HW:
        if G.PROFILE: e("s_mov_b64 exec, -1")
        e.raw("K1H_WARM:")
        e("s_lshl_b32 s49, s2, 3"); e("s_add_u32 s49, s49, s48")
        e("s_mul_i32 s50, s49, 49")
        e("v_min_u32 v6, 48, v0")
        e("v_add_u32 v6, s50, v6"); e("v_lshlrev_b32 v6, 7, v6")
        e("global_load_dword v7, v6, s[86:87]")
        e("s_mul_i32 s50, s49, 13")
        e("v_and_b32 v6, 15, v0"); e("v_min_u32 v6, 12, v6")
        e("v_add_u32 v6, s50, v6"); e("v_min_u32 v6, 3135, v6"); e("v_lshlrev_b32 v6, 7, v6")
        e("global_load_dword v8, v6, s[88:89]")
        e("global_load_dword v9, v6, s[90:91]")
        e("s_waitcnt vmcnt(0)")
    e.raw("K1_CODE_LAST:")
    e("s_endpgm")

NW = 7
def nonce_cas(e, v, srd="s[36:39]"):
    lab = e.label("K1_NC"); lab2 = e.label("K1_NC2")
    e(f"v_mov_b32 v{v+1}, 0")
    e(f"s_cmp_lg_u32 s48, {NW}")
    e(f"s_cbranch_scc1 {lab}")
    e.cond_begin()
    e("s_cmp_lg_u32 s2, 0")
    e(f"s_cbranch_scc1 {lab2}")
    e(f"buffer_load_dword v{v}, v{v+1}, {srd}, 0 offen sc1")
    e.raw("s_memrealtime s[100:101]")
    e.raw("s_waitcnt vmcnt(0) lgkmcnt(0)")
    e(f"v_readfirstlane_b32 s99, v{v}")
    e("s_cmp_lg_u32 s99, 0")
    e(f"s_cbranch_scc1 {lab2}")
    e("s_or_b32 s99, s100, 1")
    e(f"v_mov_b32 v{v}, s99")
    e("s_mov_b64 s[58:59], exec")
    e("s_mov_b64 exec, 1")
    e(f"buffer_store_dword v{v}, v{v+1}, {srd}, 0 offen sc1")
    e("s_mov_b64 exec, s[58:59]")
    e.raw("s_waitcnt vmcnt(0)")
    e.raw(f"{lab2}:")
    e(f"buffer_load_dword v{v}, v{v+1}, {srd}, 0 offen sc1")
    e.cond_end()
    e.raw(f"{lab}:")
    e.vm_at_cas = e.vm_issued
def nonce_publish(e, v, lds, srd="s[36:39]"):
    lab = e.label("K1_NP"); top = e.label("K1_NPT"); ok = e.label("K1_NPO")
    e(f"s_cmp_lg_u32 s48, {NW}")
    e(f"s_cbranch_scc1 {lab}")
    e.cond_begin()
    e.raw(f"s_waitcnt vmcnt({min(63, e.vm_issued - e.vm_at_cas)})")
    e("s_mov_b32 s101, 0")
    e.raw(f"{top}:")
    e(f"v_readfirstlane_b32 s100, v{v}")
    e("s_cmp_lg_u32 s100, 0")
    e(f"s_cbranch_scc1 {ok}")
    e(f"buffer_load_dword v{v}, v{v+1}, {srd}, 0 offen sc1")
    e.raw("s_waitcnt vmcnt(0)")
    e("s_add_u32 s101, s101, 1")
    e("s_cmp_lt_u32 s101, 200000")
    e(f"s_cbranch_scc1 {top}")
    e.raw(f"{ok}:")
    e(f"v_mov_b32 v{v}, s100")
    e(f"v_mov_b32 v{v+1}, {lds}")
    e(f"ds_write_b32 v{v+1}, v{v}")
    e.raw("s_waitcnt lgkmcnt(0)")
    e.cond_end()
    e.raw(f"{lab}:")
def nonce_read(e, v, lds):
    e(f"v_mov_b32 v{v}, {lds}")
    t = e(f"ds_read_b32 v{v}, v{v}")
    e.wait(t)
    e(f"v_readfirstlane_b32 s98, v{v}")

def tagged_retry(e, issue, check, name, maxit=100000, cnt="s61"):
    ok = e.label(name + "_OK"); top = e.label(name + "_RT")
    check()
    e(f"s_cbranch_scc1 {ok}")
    e.cond_begin()
    e(f"s_mov_b32 {cnt}, 0")
    e.raw(f"{top}:")
    e("s_sleep 2")
    issue()
    e.raw("s_waitcnt vmcnt(0)")
    check()
    e(f"s_cbranch_scc1 {ok}")
    e(f"s_add_u32 {cnt}, {cnt}, 1")
    e(f"s_cmp_lt_u32 {cnt}, {maxit}")
    e(f"s_cbranch_scc1 {top}")
    e.cond_end()
    e.raw(f"{ok}:")
```

```python
import sys, os
sys.path.insert(0, "dev")
from asmlib import *
import gen as G
from gen import *
from k1_common import *
from collections import deque

env = lambda k, d: type(d)(os.environ.get(k, d)) if not isinstance(d, bool) else os.environ.get(k, "1" if d else "0") == "1"
STAMPS = eval(os.environ.get("STAMPS", '[("A",0),("A",27),("B",0),("B",27)]'))
NOEPI = env("NOEPI", False); NODMA = env("NODMA", False)
PRO_DMAS = env("PRO_DMAS", 10); MAP2 = env("MAP2", True); COOP = env("COOP", False); ROT = env("ROT", 1 if not COOP else 0)
CT2 = env("CT2", 1); CT3 = env("CT3", 22); CT4 = env("CT4", 34)
EB_SLOT = env("EB_SLOT", 4); EB_GAP = env("EB_GAP", 6); EBV = 13
PF_GAP = env("PF_GAP", 4); PF_SLOT = env("PF_SLOT", -1); AUX2_SLOT = env("AUX2_SLOT", 6); E_SLOT = env("E_SLOT", 48)
AUX2_FIN = env("AUX2_FIN", 26)
AUX_LOAD = env("AUX_LOAD", 50); AUX_FIN = env("AUX_FIN", 68); PUB_SLOT = env("PUB_SLOT", 11)
BUDGET_A = env("BUDGET_A", 4.0); BUDGET_B = env("BUDGET_B", 6.0); BUDGET_B0 = env("BUDGET_B0", 7.0)

DMAFLAG = os.environ.get("DMAFLAG", "")
if DMAFLAG: DMAFLAG = " " + DMAFLAG
BSW = env("BSW", 30); ECLATE = env("ECLATE", True); ZFIRST = env("ZFIRST", False); TAILST2 = env("TAILST2", False); TAILST = env("TAILST", True); PSTAMP = env("PSTAMP", False); DMA_HURRY = env("DMA_HURRY", 6); RB_LATE = env("RB_LATE", True); RB_SLOT = env("RB_SLOT", 7)
XR, ZR, WR = 0, 49152, 73728
MISC = 139264
M_ST = MISC; M_CS = MISC + 1024; M_SEG = MISC + 2048; M_N = MISC + 3072
M_SD = MISC + 3328; M_CB = MISC + 3840
M_PART = MISC + 3328
M_PB = MISC + 5376
M_TR = MISC + 6656
AX, AZr, AW0, AW1 = 1, 5, 9, 10
VX0, VX1, VZ, VW = 11, 12, 13, 14
LR, LI, CR, CI, L8R, L8I, L128R, L128I, TR, TI = 15, 16, 17, 18, 19, 20, 21, 22, 23, 24
M_, SD, NLR, CSR, CSI, PR, PI, ER, EI = 25, 26, 27, 28, 29, 30, 31, 32, 33
VH = 47

AZ = 48
AG = [64, 80, 96, 112]
XF = 128
FB = 240

def gen_k1(e, fused=False, kname="k1_kernel"):
    STF = os.environ.get("STF", " sc1") if fused else ""
    e.raw(f"{kname}:")
    e("s_cmp_ge_u32 s2, 256")
    e("s_cbranch_scc1 K1_END")
    if env("CODEPF", False): e("s_getpc_b64 s[84:85]")
    e.raw("K1_CODE_FIRST:")
    e("s_load_dwordx2 s[4:5], s[0:1], 0")
    e("s_load_dwordx2 s[6:7], s[0:1], 8")
    e("s_load_dwordx2 s[8:9], s[0:1], 24")
    e("s_load_dwordx2 s[10:11], s[0:1], 32")
    e("s_load_dwordx2 s[12:13], s[0:1], 80")
    e("s_load_dwordx2 s[14:15], s[0:1], 88")
    e("s_load_dwordx2 s[16:17], s[0:1], 112")
    e("s_load_dwordx2 s[18:19], s[0:1], 120")
    e("s_load_dwordx2 s[62:63], s[0:1], 16")
    e("s_load_dwordx2 s[86:87], s[0:1], 96")
    e("s_load_dwordx2 s[88:89], s[0:1], 40")
    e("s_load_dwordx2 s[90:91], s[0:1], 48")
    t = e("s_load_dwordx2 s[64:65], s[0:1], 56")
    e("v_lshrrev_b32 v1, 6, v0")
    e("v_and_b32 v0, 63, v0")
    e("v_readfirstlane_b32 s48, v1")
    e("s_sub_u32 s49, s2, 32")
    e("s_and_b32 s50, s49, 7")
    e("s_lshr_b32 s51, s49, 3")
    if MAP2:
        e("s_mul_i32 s54, s51, 37")
        e("s_lshr_b32 s54, s54, 8")
        e("s_mul_i32 s53, s54, 7")
        e("s_sub_u32 s55, s51, s53")
        e("s_and_b32 s52, s50, 3")
        e("s_lshl_b32 s53, s54, 2")
        e("s_add_u32 s52, s52, s53")
        e("s_lshl_b32 s51, s55, 2")
        e("s_add_u32 s51, s51, s54")
        e("s_lshr_b32 s53, s50, 2")
        e("s_mul_i32 s53, s53, 7")
        e("s_add_u32 s53, s53, s55")
    else:
        e("s_and_b32 s52, s50, 3")
        e("s_lshl_b32 s52, s52, 2")
        e("s_and_b32 s53, s51, 3")
        e("s_add_u32 s52, s52, s53")
        e("s_lshr_b32 s53, s50, 2")
        e("s_mul_i32 s53, s53, 7")
        e("s_lshr_b32 s54, s51, 2")
        e("s_add_u32 s53, s53, s54")
    e("s_and_b32 s54, s48, 3")
    e("s_lshr_b32 s55, s48, 2")
    e("v_lshrrev_b32 v40, 3, v0")
    e("v_and_b32 v41, 7, v0")
    e("v_lshrrev_b32 v42, 4, v0")
    e("s_movk_i32 s56, 896")
    e("s_lshl_b32 s57, s48, 4")
    e("v_add_u32 v43, s57, v40")
    e("v_mul_lo_u32 v43, s56, v43")
    e("v_xor_b32 v44, v41, v42")
    e(f"v_lshl_add_u32 v{VX0}, v44, 4, v43")
    e("v_add_u32 v44, 4, v42")
    e("v_xor_b32 v44, v41, v44")
    e(f"v_lshl_add_u32 v{VX1}, v44, 4, v43")
    e(f"v_add_u32 v{VX1}, {8*896}, v{VX1}")
    e("s_lshl_b32 s57, s54, 3")
    e("v_add_u32 v43, s57, v40")
    e("v_mul_lo_u32 v43, s56, v43")
    e("s_and_b32 s57, s48, 1")
    e("s_lshl_b32 s57, s57, 2")
    e("v_add_u32 v44, s57, v42")
    e("v_xor_b32 v44, v41, v44")
    e(f"v_lshl_add_u32 v{VZ}, v44, 4, v43")
    e("s_lshl_b32 s57, s54, 3")
    e("v_add_u32 v43, s57, v40")
    e("s_movk_i32 s56, 3584")
    e("v_mul_lo_u32 v43, s56, v43")
    e("v_and_b32 v44, 1, v42")
    e("s_lshl_b32 s57, s55, 1")
    e("v_add_u32 v44, s57, v44")
    e("v_lshlrev_b32 v44, 1, v44")
    e("v_xor_b32 v44, v41, v44")
    e(f"v_lshl_add_u32 v{VW}, v44, 4, v43")
    e(f"s_mul_i32 s66, s52, {128*896}")
    e(f"s_mul_i32 s67, s53, {32*896}")
    e("s_lshl_b32 s72, s53, 8")
    e("s_lshl_b32 s73, s48, 11")
    e("s_lshl_b32 s74, s48, 10")
    e(f"s_add_u32 s74, s74, {ZR}")
    e("s_lshl_b32 s75, s55, 13")
    e("s_lshl_b32 s76, s54, 10")
    e("s_add_u32 s75, s75, s76")
    e(f"s_add_u32 s75, s75, {WR}")
    e.wait(t)
    e("s_cmp_lt_u32 s2, 32")
    e("s_cbranch_scc1 K1_HELPER")
    srd(e, 20, 4, 2048*448*2)
    if ROT == 1:
        e("s_and_b32 s56, s51, 3")
        e("s_lshl_b32 s56, s56, 1")
        e("s_lshr_b32 s57, s51, 2")
        e("s_add_u32 s56, s56, s57")
        e("s_cmp_ge_u32 s56, 7")
        e("s_cselect_b32 s57, 7, 0")
        e("s_sub_u32 s77, s56, s57")
    else:
        e("s_mov_b32 s77, 0")
    e("s_mov_b32 s76, s77")
    e("s_lshl_b32 s4, s76, 7")
    e("s_add_u32 s4, s4, s66")
    e("s_sub_u32 s67, s67, s66")
    ent_tok = {}
    dmaq = deque()
    def entry_dmas(kind, kc):
        def mk(a, last):
            def f():
                if NODMA:
                    if last: ent_tok[(kind, kc)] = None
                    return
                if kind == "X":
                    e(f"s_add_u32 m0, s73, {XR + (kc%3)*16384 + a*1024}")
                    tok = e(f"buffer_load_dwordx4 v{VX0+a}, s[20:23], s{4+kc} offen{DMAFLAG} lds")
                elif kind == "Z":
                    e(f"s_add_u32 m0, s74, {(kc%3)*8192}")
                    e(f"s_add_u32 s77, s67, s{4+kc}")
                    tok = e(f"buffer_load_dwordx4 v{VZ}, s[24:27], s77 offen{DMAFLAG} lds")
                else:
                    ch = kc % 7; colb = 0 if kc < 7 else 128
                    e(f"s_add_u32 m0, s75, {(kc%4)*16384 + a*4096}")
                    e(f"s_add_u32 s77, s{11+ch}, {32*a*3584 + colb}")
                    tok = e(f"buffer_load_dwordx4 v{VW}, s[28:31], s77 offen{DMAFLAG} lds")
                if last: ent_tok[(kind, kc)] = tok
            return f
        n = 1 if kind == "Z" else 2
        return [mk(a, a == n - 1) for a in range(n)]
    def queue(*ents):
        for (k, kc) in ents:
            for f in entry_dmas(k, kc): dmaq.append(f)
    def bz_w_srds():
        e("s_cmp_eq_u32 s55, 0")
        e("s_cselect_b32 s24, s8, s10")
        e("s_cselect_b32 s25, s9, s11")
        e("s_cselect_b32 s28, s12, s14")
        e("s_cselect_b32 s29, s13, s15")
        e("s_and_b32 s25, s25, 0xffff")
        e(f"s_mov_b32 s26, {448*448*2}")
        e("s_mov_b32 s27, 0x20000")
        e("s_and_b32 s29, s29, 0xffff")
        e(f"s_mov_b32 s30, {448*1792*2}")
        e("s_mov_b32 s31, 0x20000")
    M_PF0 = 162304
    def coop_setup():
        e("s_and_b32 s56, s51, 3")
        e("s_lshr_b32 s57, s51, 2")
        e("s_mov_b32 s64, 0")
        e("s_cmp_eq_u32 s54, 0"); e("s_cselect_b32 s64, 1, s64")
        e("s_cmp_eq_u32 s54, 1"); e("s_cselect_b32 s64, 2, s64")
        e("s_cmp_eq_u32 s48, 2"); e("s_cselect_b32 s64, 3, s64")
        e("s_or_b32 s58, s57, s48"); e("s_cmp_eq_u32 s58, 3")
        e("s_cmp_eq_u32 s48, 3"); e("s_cselect_b32 s58, 0, 1"); e("s_or_b32 s58, s58, s57")
        e("s_cmp_eq_u32 s58, 0"); e("s_cselect_b32 s64, 3, s64"); e("s_cselect_b32 s57, 7, s57")
        e(f"s_mul_i32 s58, s56, {16*3584}"); e("s_add_u32 s58, s58, s72")
        e(f"s_mul_i32 s59, s53, {32*896}"); e(f"s_mul_i32 s61, s56, {8*896}"); e("s_add_u32 s59, s59, s61")
        e(f"s_mul_i32 s61, s57, {16*896}"); e("s_add_u32 s61, s61, s66")
        e("s_cmp_eq_u32 s64, 1"); e("s_cselect_b32 s65, s58, s61")
        e("s_cselect_b32 s88, s28, s20"); e("s_cselect_b32 s89, s29, s21"); e("s_cselect_b32 s90, s30, s22")
        e("s_cmp_eq_u32 s64, 2"); e("s_cselect_b32 s65, s59, s65")
        e("s_cselect_b32 s88, s24, s88"); e("s_cselect_b32 s89, s25, s89"); e("s_cselect_b32 s90, s26, s90")
        e("s_mov_b32 s91, 0x20000")
    def coop_touch(c0, n, colb, wonly, tv):
        lab = e.label("K1_CT")
        if wonly: e("s_cmp_lg_u32 s64, 1")
        else: e("s_cmp_eq_u32 s64, 0")
        e(f"s_cbranch_scc1 {lab}")
        e.cond_begin()
        e("s_cmp_eq_u32 s64, 2")
        e("s_cselect_b32 s58, 7, 15")
        e("s_cselect_b32 s59, 3, 4")
        e(f"v_and_b32 v{tv}, s58, v0")
        e(f"v_lshrrev_b32 v{tv+1}, s59, v0")
        e(f"v_min_u32 v{tv+1}, {n-1}, v{tv+1}")
        e("s_cmp_eq_u32 s64, 1")
        e("s_movk_i32 s58, 896")
        e("s_cselect_b32 s58, 3584, s58")
        e("s_movk_i32 s59, 128")
        e(f"s_cselect_b32 s59, {64*3584}, s59")
        e(f"s_mov_b32 s61, {c0*128}")
        e(f"s_cselect_b32 s61, {c0*64*3584 + colb}, s61")
        e(f"v_mul_lo_u32 v{tv}, s58, v{tv}")
        e(f"v_mul_lo_u32 v{tv+1}, s59, v{tv+1}")
        e("s_add_u32 s61, s61, s65")
        e(f"s_mov_b32 m0, {M_PF0}")
        e(f"v_add_u32 v{tv}, v{tv}, v{tv+1}")
        e(f"buffer_load_dword v{tv}, s[88:91], s61 offen lds")
        e.cond_end()
        e.raw(f"{lab}:")
    srd(e, 68, 64, 896)
    if COOP:
        bz_w_srds()
        coop_setup()
        coop_touch(0, 3, 0, False, 34)
        queue(("X",0))
        for _ in range(2): dmaq.popleft()()
    else:
        queue(("X",0))
        for _ in range(2): dmaq.popleft()()
        bz_w_srds()
    queue(("Z",0))
    dmaq.popleft()()
    srd(e, 40, 6, 896)
    srd(e, 44, 62, 896)
    srd(e, 32, 18, WS_END if not G.PROFILE else (16 << 20))
    srd(e, 36, 16, 256)
    e("s_mov_b32 s60, 0")
    e("s_cmp_lt_u32 s48, 2")
    e("s_cselect_b32 s61, 1, 0")
    e("s_cmp_lt_u32 s53, 8")
    e("s_cselect_b32 s60, s61, 0")
    e("s_cmp_eq_u32 s48, 2")
    e("s_cselect_b32 s61, 2, 0")
    e("s_cmp_lt_u32 s52, 8")
    e("s_cselect_b32 s61, s61, 0")
    e("s_or_b32 s60, s60, s61")
    e("s_lshl_b32 s56, s52, 7")
    e("s_lshl_b32 s57, s53, 4")
    e("s_add_u32 s56, s56, s57")
    e("s_lshl_b32 s57, s48, 3")
    e("s_add_u32 s56, s56, s57")
    e("s_lshl_b32 s57, s53, 5")
    e("s_and_b32 s58, s52, 3")
    e("s_lshl_b32 s58, s58, 3")
    e("s_add_u32 s57, s57, s58")
    e("s_cmp_eq_u32 s60, 2")
    e("s_cselect_b32 s59, s57, s56")
    e("s_cmp_ge_u32 s52, 4")
    e("s_cselect_b32 s92, s10, s8")
    e("s_cselect_b32 s93, s11, s9")
    e("s_cselect_b32 s62, 448, 0")
    e("s_cmp_eq_u32 s60, 2")
    e("s_cselect_b32 s92, s92, s20")
    e("s_cselect_b32 s93, s93, s21")
    e(f"s_mov_b32 s94, {2048*448*2}")
    e(f"s_cselect_b32 s94, {448*448*2}, s94")
    e("s_cselect_b32 s62, s62, 0")
    e("s_and_b32 s93, s93, 0xffff")
    e("s_mov_b32 s95, 0x20000")
    e("s_add_u32 s62, s62, s59")
    e("s_mul_i32 s63, s59, 896")
    e(f"s_mul_i32 s11, s76, {64*3584}")
    e("s_add_u32 s11, s11, s72")
    queue(("W",0))
    for _ in range(2): dmaq.popleft()()
    pr = G.Prof(e, 0); pr.stamp()
    e("v_and_b32 v40, 15, v0")
    e("s_lshl_b32 s56, s53, 5")
    e("s_lshl_b32 s57, s55, 4")
    e("s_add_u32 s78, s56, s57")
    e("v_add_u32 v41, s78, v40")
    e("v_lshlrev_b32 v42, 1, v41")
    tp = [e("buffer_load_ushort v43, v42, s[40:43], 0 offen"),
          e("buffer_load_ushort v44, v42, s[44:47], 0 offen"),
          e("buffer_load_ushort v45, v42, s[68:71], 0 offen")]
    e("v_lshrrev_b32 v34, 3, v0")
    e("v_and_b32 v35, 7, v0")
    e("v_mul_u32_u24 v36, 896, v34")
    e("v_lshl_add_u32 v36, v35, 4, v36")
    RB = 192
    labrb = e.label("K1_NORB")
    e("s_cmp_eq_u32 s60, 0")
    e(f"s_cbranch_scc1 {labrb}")
    e.cond_begin()
    for k in range(7): e(f"buffer_load_dwordx4 v[{RB+4*k}:{RB+4*k+3}], v36, s[92:95], s63 offen offset:{128*k}")
    e.cond_end()
    e.raw(f"{labrb}:")
    def rowbatch_compute():
        lab = e.label("K1_NORC")
        e("s_cmp_eq_u32 s60, 0")
        e(f"s_cbranch_scc1 {lab}")
        e.cond_begin()
        e.raw(f"s_waitcnt vmcnt({min(63, e.vm_issued - vm_at_rb)})")
        e("s_mov_b32 s58, 0x3f803f80")
        e("v_mov_b32 v220, 0"); e("v_mov_b32 v221, 0"); e("v_mov_b32 v222, 0"); e("v_mov_b32 v223, 0")
        for k in range(28):
            e(f"v_dot2c_f32_bf16 v{220 + (k&1)}, s58, v{RB+k}")
            e(f"v_dot2c_f32_bf16 v{222 + (k&1)}, v{RB+k}, v{RB+k}")
        e("s_nop 2")
        e("v_add_f32 v220, v220, v221")
        e("v_add_f32 v221, v222, v223")
        for r_ in (220, 221):
            e(f"v_add_f32_dpp v{r_}, v{r_}, v{r_} quad_perm:[1,0,3,2] row_mask:0xf bank_mask:0xf")
            e(f"v_add_f32_dpp v{r_}, v{r_}, v{r_} quad_perm:[2,3,0,1] row_mask:0xf bank_mask:0xf")
            e(f"v_add_f32_dpp v{r_}, v{r_}, v{r_} row_half_mirror row_mask:0xf bank_mask:0xf")
        e("v_mov_b32 v224, v220")
        e(f"v_mul_f32 v220, {f32(1.0/448)}, v220")
        e(f"v_mul_f32 v221, {f32(1.0/448)}, v221")
        e("v_fma_f32 v221, -v220, v220, v221")
        e("v_max_f32 v221, 0, v221")
        e("v_cvt_pk_bf16_f32 v220, v220, v221")
        e("v_and_b32 v221, 0xffff0000, v220")
        e("v_lshlrev_b32 v220, 16, v220")
        e(f"v_add_f32 v221, {f32(1e-5)}, v221")
        e("v_cvt_pk_bf16_f32 v221, v221, v221")
        e("v_lshlrev_b32 v221, 16, v221")
        e("v_sqrt_f32 v221, v221")
        e("v_cvt_pk_bf16_f32 v221, v221, v221")
        e("v_lshlrev_b32 v221, 16, v221")
        e.cond_end()
        e.raw(f"{lab}:")
    def rowbatch_publish():
        lab = e.label("K1_NORP"); labx = e.label("K1_RPX")
        e("s_cmp_eq_u32 s60, 0")
        e(f"s_cbranch_scc1 {lab}")
        e.cond_begin()
        e("v_lshrrev_b32 v226, 3, v0")
        e("v_add_u32 v226, s62, v226")
        e("v_and_b32 v227, 7, v0")
        e("v_cmp_eq_u32 vcc, 0, v227")
        e("s_and_saveexec_b64 s[58:59], vcc")
        e("s_cmp_eq_u32 s60, 1")
        e(f"s_cbranch_scc1 {labx}")
        e("v_lshlrev_b32 v226, 3, v226")
        e("v_mov_b32 v228, v224"); e("v_mov_b32 v229, s98")
        e(f"s_mov_b32 s61, {WS_CSB}")
        e("buffer_store_dwordx2 v[228:229], v226, s[32:35], s61 offen sc1")
        e("s_mov_b64 exec, s[58:59]")
        e(f"s_branch {lab}")
        e.raw(f"{labx}:")
        e("v_lshlrev_b32 v226, 4, v226")
        e("v_mov_b32 v228, v220"); e("v_mov_b32 v229, s98"); e("v_mov_b32 v230, v221"); e("v_mov_b32 v231, s98")
        e(f"s_mov_b32 s61, {WS_STAT}")
        e("buffer_store_dwordx4 v[228:231], v226, s[32:35], s61 offen sc1")
        e("s_mov_b64 exec, s[58:59]")
        e.cond_end()
        e.raw(f"{lab}:")
    RBWAIT = [0]
    vm_at_rb = e.vm_issued
    def rot_entry(t):
        if ROT == 2 and t == 1:
            e("s_and_b32 s56, s51, 3"); e("s_lshl_b32 s56, s56, 1"); e("s_lshr_b32 s57, s51, 2"); e("s_add_u32 s56, s56, s57")
            e("s_cmp_ge_u32 s56, 6"); e("s_cselect_b32 s57, 6, 0"); e("s_sub_u32 s56, s56, s57")
            e("s_cmp_ge_u32 s56, 6"); e("s_cselect_b32 s57, 6, 0"); e("s_sub_u32 s56, s56, s57")
            e("s_add_u32 s76, s56, 1")
        elif ROT == 2:
            e("s_add_u32 s76, s76, 1"); e("s_cmp_eq_u32 s76, 7"); e("s_cselect_b32 s76, 1, s76")
        else:
            e("s_add_u32 s76, s76, 1")
            e("s_cmp_eq_u32 s76, 7")
            e("s_cselect_b32 s76, 0, s76")
        e(f"s_lshl_b32 s{4+t}, s76, 7")
        e(f"s_mul_i32 s{11+t}, s76, {64*3584}")
        e(f"s_add_u32 s{4+t}, s{4+t}, s66")
        e(f"s_add_u32 s{11+t}, s{11+t}, s72")
    for t in range(1, 7): rot_entry(t)
    queue(("X",1),("Z",1),("W",1),("X",2),("Z",2),("W",2),("W",3))
    for _ in range(max(0, PRO_DMAS - 5)): dmaq.popleft()()
    if PSTAMP: pr.stamp()
    nonce_cas(e, 120)
    def issue_for_tick(tk):
        l = []
        if tk >= 1:
            if tk + 2 < 7: l += [("X", tk+2), ("Z", tk+2)]
            if tk + 3 < 14: l += [("W", tk+3)]
        return l

    e("v_and_b32 v34, 31, v0")
    e("v_lshrrev_b32 v35, 4, v34")
    e("v_bfe_u32 v36, v34, 2, 1")
    e("v_lshl_add_u32 v35, v36, 1, v35")
    e("v_bfe_u32 v36, v34, 3, 1")
    e("v_lshlrev_b32 v35, 3, v35")
    e("v_lshl_add_u32 v35, v36, 2, v35")
    e("v_and_b32 v36, 3, v34")
    e("v_add_u32 v35, v35, v36")
    e("v_lshrrev_b32 v36, 5, v0")
    e(f"v_lshl_add_u32 v{VH}, v36, 5, v35")
    e(f"v_lshlrev_b32 v{VH}, 4, v{VH}")
    e("s_lshl_b32 s56, s54, 5")
    e("v_add_u32 v37, s56, v35")
    e(f"v_lshlrev_b32 v{AX}, 7, v37")
    e("v_bfe_u32 v38, v35, 1, 3")
    e("v_xor_b32 v38, v38, v36")
    e(f"v_lshl_add_u32 v{AX}, v38, 4, v{AX}")
    for kk in range(1, 4): e(f"v_xor_b32 v{AX+kk}, {kk<<5}, v{AX}")
    e("v_bfe_u32 v38, v0, 4, 1")
    e(f"v_lshlrev_b32 v{AZr}, 12, v38")
    e("s_lshl_b32 s56, s55, 4")
    e("v_and_b32 v40, 15, v0")
    e("v_add_u32 v39, s56, v40")
    e(f"v_lshl_add_u32 v{AZr}, v39, 7, v{AZr}")
    e("v_bfe_u32 v39, v40, 1, 3")
    e("v_xor_b32 v39, v39, v36")
    e(f"v_lshl_add_u32 v{AZr}, v39, 4, v{AZr}")
    e(f"v_add_u32 v{AZr}, {ZR}, v{AZr}")
    for kk in range(1, 4): e(f"v_xor_b32 v{AZr+kk}, {kk<<5}, v{AZr}")
    e(f"v_lshlrev_b32 v{AW0}, 13, v38")
    e("v_lshrrev_b32 v39, 2, v40")
    e("v_lshl_add_u32 v39, v36, 3, v39")
    e(f"v_lshl_add_u32 v{AW0}, v39, 7, v{AW0}")
    e("v_lshrrev_b32 v39, 3, v40")
    e("v_lshl_add_u32 v39, v38, 1, v39")
    e("s_lshl_b32 s56, s55, 1")
    e("v_xor_b32 v39, s56, v39")
    e(f"v_lshl_add_u32 v{AW0}, v39, 5, v{AW0}")
    e("v_and_b32 v39, 3, v40")
    e(f"v_lshl_add_u32 v{AW0}, v39, 3, v{AW0}")
    e(f"v_add_u32 v{AW0}, {WR}, v{AW0}")
    e(f"v_xor_b32 v{AW1}, 32, v{AW0}")
    e("s_lshl_b32 s56, s52, 2")
    e("s_add_u32 s56, s56, s54")
    e("s_mul_i32 s56, s56, 112")
    e("s_lshl_b32 s57, s53, 3")
    e("s_add_u32 s56, s56, s57")
    e("s_lshl_b32 s57, s55, 1")
    e("s_add_u32 s56, s56, s57")
    e("s_lshl_b32 s79, s56, 10")
    if WS_HF: e(f"s_add_u32 s79, s79, {WS_HF}")

    def params():
        e.wait(tp); yield
        e("s_bitcmp1_b32 s54, 0"); e("s_cselect_b64 s[40:41], -1, 0")
        e("s_bitcmp1_b32 s54, 1"); e("s_cselect_b64 s[42:43], -1, 0")
        e("s_mov_b32 s44, 0xffff0000"); e("s_mov_b32 s45, 0xffff0000")
        e("s_mov_b32 s46, 0"); e("s_mov_b32 s47, -1")
        e("v_lshlrev_b32 v43, 16, v43"); yield
        e("v_lshlrev_b32 v44, 16, v44"); yield
        e("v_lshlrev_b32 v45, 16, v45"); yield
        e(f"v_mul_f32 v45, {f32(LOG2E)}, v45"); yield
        e("v_exp_f32 v45, v45"); yield
        e("v_cvt_pk_bf16_f32 v45, v45, v45"); yield
        e("v_lshlrev_b32 v45, 16, v45"); yield
        e("v_mul_f32 v34, v45, v43"); yield
        e("v_mul_f32 v35, v45, v44"); yield
        e(f"v_mul_f32 v34, {f32(LOG2E)}, v34"); yield
        e("v_exp_f32 v34, v34"); yield
        e(f"v_mul_f32 v35, {f32(1.0/(2*3.141592653589793))}, v35"); yield
        e("v_fract_f32 v35, v35"); yield
        e("v_cos_f32 v36, v35"); yield
        e("v_sin_f32 v37, v35"); yield
        e(f"v_mul_f32 v{LR}, v34, v36"); yield
        e(f"v_mul_f32 v{LI}, v34, v37"); yield
        e(f"v_add_f32 v36, -1.0, v{LR}"); yield
        e("v_mul_f32 v38, v43, v43"); yield
        e("v_fmac_f32 v38, v44, v44"); yield
        e("v_rcp_f32 v38, v38"); yield
        e("v_mul_f32 v39, v36, v43"); yield
        e(f"v_fmac_f32 v39, v{LI}, v44"); yield
        e(f"v_mul_f32 v34, v{LI}, v43"); yield
        e("v_fma_f32 v34, -v36, v44, v34"); yield
        e("v_add_f32 v38, v38, v38"); yield
        e(f"v_mul_f32 v{CR}, v39, v38"); yield
        e(f"v_mul_f32 v{CI}, v34, v38"); yield
        yield from csq(e, 34, 35, LR, LI, 38)
        yield from csq(e, 36, 37, 34, 35, 38)
        yield from csq(e, L8R, L8I, 36, 37, 38)
        e(f"v_mov_b32 v{TR}, 1.0"); yield
        e(f"v_mov_b32 v{TI}, 0"); yield
        e(f"v_mov_b32 v34, v{L8R}"); yield
        e(f"v_mov_b32 v35, v{L8I}"); yield
        for b, m in enumerate(("s[44:45]", "s[46:47]", "s[40:41]", "s[42:43]")):
            yield from cmul(e, 36, 37, TR, TI, 34, 35, 38)
            e(f"v_cndmask_b32 v{TR}, v{TR}, v36, {m}"); yield
            e(f"v_cndmask_b32 v{TI}, v{TI}, v37, {m}"); yield
            e("v_mov_b32 v41, v34"); yield
            e("v_mov_b32 v42, v35"); yield
            yield from csq(e, 34, 35, 41, 42, 38)
        e(f"v_mov_b32 v{L128R}, v34"); yield
        e(f"v_mov_b32 v{L128I}, v35"); yield

    def zbuf(ks): return 96 + (ks & 1)*4
    def wbufA(ks, tl): return 104 + (ks & 1)*8 + tl*4
    def wbufB(ks, tl): return FB + (ks & 1)*8 + tl*4
    first = {}
    def mfma(acc, a, b):
        c = f"v[{acc}:{acc+15}]" if first.get(acc) else "0"
        first[acc] = True
        e(f"v_mfma_f32_32x32x16_bf16 v[{acc}:{acc+15}], v[{a}:{a+3}], v[{b}:{b+3}], {c}")
    rd_tok = {}
    def read_x(ks):
        kk = ks & 3; kc = ks >> 2
        rd_tok[("x", ks)] = [e(f"ds_read_b128 v[{XF+4*ks}:{XF+4*ks+3}], v{AX+kk} offset:{(kc%3)*16384}")]
    def read_z(ks):
        kk = ks & 3; kc = ks >> 2
        rd_tok[("z", ks)] = [e(f"ds_read_b128 v[{zbuf(ks)}:{zbuf(ks)+3}], v{AZr+kk} offset:{(kc%3)*8192}")]
    def read_w(ph, ks, tl, half):
        kk = ks & 3; w = (ks >> 2) + (0 if ph == "A" else 7)
        b = wbufA(ks, tl) if ph == "A" else wbufB(ks, tl)
        ad = AW0 if tl == 0 else AW1
        off = (w % 4)*16384 + kk*2048
        t = e(f"ds_read_b64_tr_b16 v[{b+2*half}:{b+2*half+1}], v{ad} offset:{off+512*half}")
        rd_tok.setdefault((ph, ks, tl), []).append(t)
    steps = [("A", ks) for ks in range(28)] + [("B", ks) for ks in range(28)]
    def tick_idx(ph, ks): return (ks >> 2) + (0 if ph == "A" else 7)
    def need_ents(tk): return [("X",tk),("Z",tk),("W",tk)] if tk < 7 else [("W",tk)]
    nbar = [0]
    def enter_tick(tk):
        while any(x not in ent_tok for x in need_ents(tk)): dmaq.popleft()()
        e.wait([ent_tok[x] for x in need_ents(tk)])
        if tk == 1: nonce_publish(e, 120, M_N)
        e.wait_all(vm=False)
        e("s_barrier")
        nbar[0] += 1
        if tk == 1: nonce_read(e, 121, M_N)
        queue(*issue_for_tick(tk))

    def main_stream():
        sp = env("SETPRIO", 0)
        if sp:
            lab = e.label("K1_SP")
            e("s_cmp_lt_u32 s48, 4" if sp == 1 else "s_cmp_ge_u32 s48, 4")
            e(f"s_cbranch_scc1 {lab}")
            e("s_setprio 1")
            e.raw(f"{lab}:")
        if not RB_LATE: rowbatch_compute()
        if PSTAMP: pr.stamp()
        enter_tick(0)
        if PSTAMP: pr.stamp()
        read_x(0); read_w("A", 0, 0, 0); read_w("A", 0, 0, 1); read_z(0); read_w("A", 0, 1, 0); read_w("A", 0, 1, 1)
        for n, (ph, ks) in enumerate(steps):
            nx = steps[n+1] if n + 1 < len(steps) else None
            x = XF + 4*ks
            if ph == "A":
                ops = [(AG[0], wbufA(ks,0), x, [("x", ks), (ph, ks, 0)]), (AZ, x, zbuf(ks), [("z", ks)]), (AG[1], wbufA(ks,1), x, [(ph, ks, 1)])]
            else:
                ops = [(AG[2], wbufB(ks,0), x, [(ph, ks, 0)]), (AG[3], wbufB(ks,1), x, [(ph, ks, 1)])]
            for si, (acc, a, b, keys) in enumerate(ops):
                e.wait([rd_tok[k] for k in keys])
                mfma(acc, a, b)
                dma_ok = False
                if nx is not None:
                    ph2, ks2 = nx
                    if si == 0 and (ks2 & 3) == 0: enter_tick(tick_idx(ph2, ks2))
                    if ph2 == "A":
                        if si == 0: read_x(ks2); read_w("A", ks2, 0, 0)
                        elif si == 1: read_w("A", ks2, 0, 1); read_z(ks2)
                        else: read_w("A", ks2, 1, 0); read_w("A", ks2, 1, 1); dma_ok = True
                    elif ph == "A":
                        if si == 0: read_w("B", ks2, 0, 0); read_w("B", ks2, 0, 1)
                        elif si == 1: read_w("B", ks2, 1, 0); read_w("B", ks2, 1, 1)
                        else: dma_ok = True
                    else:
                        read_w("B", ks2, si, 0); read_w("B", ks2, si, 1)
                        dma_ok = (si == 1)
                did = False
                if (dma_ok or (len(dmaq) > DMA_HURRY)) and dmaq:
                    dmaq.popleft()(); did = True
                yield (ph, ks, si, did)

    aux = {}
    def tagcheck(regs):
        e(f"v_xor_b32 v44, s98, v{regs[0]}")
        for r in regs[1:]:
            e(f"v_xor_b32 v45, s98, v{r}")
            e("v_or_b32 v44, v44, v45")
        e("v_cmp_ne_u32 vcc, 0, v44")
        e("s_cmp_eq_u64 vcc, 0")
    AXW1, AXW2 = 3, 4
    def only_wave(w, name):
        lab = e.label(name)
        e(f"s_cmp_lg_u32 s48, {w}")
        e(f"s_cbranch_scc1 {lab}")
        e.cond_begin()
        return lab
    def end_only(lab):
        e.cond_end()
        e.raw(f"{lab}:")
    def aux1_issue_raw():
        e("s_lshl_b32 s61, s52, 11")
        e(f"s_add_u32 s61, s61, {WS_STAT}")
        e("v_lshlrev_b32 v120, 4, v0")
        e("buffer_load_dwordx4 v[36:39], v120, s[32:35], s61 offen sc1")
        e("buffer_load_dwordx4 v[40:43], v120, s[32:35], s61 offen offset:1024 sc1")
        e("v_lshrrev_b32 v121, 5, v0")
        e("v_mul_u32_u24 v121, 448, v121")
        e("v_and_b32 v122, 31, v0")
        e("v_add_u32 v121, v121, v122")
        e("s_lshl_b32 s61, s53, 5")
        e("v_add_u32 v121, s61, v121")
        e("v_lshlrev_b32 v121, 3, v121")
        e(f"s_mov_b32 s61, {WS_CSB}")
        e("buffer_load_dwordx2 v[124:125], v121, s[32:35], s61 offen sc1")
    def aux1_issue():
        lab = only_wave(AXW1, "K1_A1I")
        aux1_issue_raw()
        end_only(lab)
        aux["a1_vm"] = e.vm_issued
    def aux1_finish():
        lab = only_wave(AXW1, "K1_A1F")
        e.raw(f"s_waitcnt vmcnt({min(63, e.vm_issued - aux['a1_vm'])})")
        tagged_retry(e, aux1_issue_raw, lambda: tagcheck([37, 39, 41, 43, 125]), "K1_A1", cnt="s63")
        e("v_rcp_f32 v37, v38")
        e("v_rcp_f32 v41, v42")
        e("v_lshlrev_b32 v120, 3, v0")
        e(f"v_add_u32 v120, {M_ST}, v120")
        e("ds_write_b64 v120, v[36:37]")
        e("ds_write_b64 v120, v[40:41] offset:512")
        e("v_lshlrev_b32 v120, 2, v0")
        e(f"v_add_u32 v120, {M_SD}, v120")
        e("ds_write_b32 v120, v38")
        e("ds_write_b32 v120, v42 offset:256")
        e(f"ds_write_b32 v120, v124 offset:{M_CB - M_SD}")
        e.raw("s_waitcnt lgkmcnt(0)")
        end_only(lab)
    def aux1_read():
        e(f"v_and_b32 v34, 0x1f0, v{VH}"); yield
        e("v_lshrrev_b32 v34, 1, v34"); yield
        e("s_lshl_b32 s56, s54, 8")
        e(f"s_add_u32 s56, s56, {M_ST}")
        e("v_add_u32 v35, s56, v34"); yield
        t1 = e("ds_read_b64 v[36:37], v35"); yield
        e("v_lshrrev_b32 v34, 1, v34"); yield
        e("s_lshl_b32 s56, s54, 7")
        e(f"s_add_u32 s56, s56, {M_SD}")
        e("v_add_u32 v34, s56, v34"); yield
        t2 = e(f"ds_read_b32 v{SD}, v34"); yield
        e("v_and_b32 v34, 15, v0"); yield
        e("s_lshl_b32 s56, s55, 6")
        e(f"s_add_u32 s56, s56, {M_CB}")
        e("v_lshlrev_b32 v34, 2, v34"); yield
        e("v_add_u32 v34, s56, v34"); yield
        t3 = [e(f"ds_read_b32 v{CSR}, v34"), e(f"ds_read_b32 v{CSI}, v34 offset:128")]; yield
        e("v_lshrrev_b32 v34, 4, v0"); yield
        e("s_lshl_b32 s56, s54, 8")
        e(f"s_add_u32 s56, s56, {M_ST}")
        e("v_lshlrev_b32 v34, 6, v34"); yield
        e("v_add_u32 v34, s56, v34"); yield
        e.wait(t1); yield
        e(f"v_mov_b32 v{M_}, v36"); yield
        e(f"v_mul_f32 v{NLR}, {f32(-LOG2E)}, v37"); yield
        aux["st"] = [e("ds_read_b128 v[36:39], v34"), e("ds_read_b128 v[40:43], v34 offset:16")]
        aux["lane"] = [t2, t3]
        yield
    def aux2_issue_raw():
        e("s_lshl_b32 s61, s53, 10")
        e(f"s_add_u32 s61, s61, {WS_CSW}")
        e("v_lshlrev_b32 v136, 4, v0")
        e("buffer_load_dwordx4 v[128:131], v136, s[32:35], s61 offen sc1")
        e(f"s_add_u32 s61, s61, {1792*8}")
        e("buffer_load_dwordx4 v[132:135], v136, s[32:35], s61 offen sc1")
    def aux2_issue():
        lab = only_wave(AXW2, "K1_A2I")
        aux2_issue_raw()
        end_only(lab)
        aux["a2_vm"] = e.vm_issued
    def tagcheck2(regs):
        e(f"v_xor_b32 v137, s98, v{regs[0]}")
        for r in regs[1:]:
            e(f"v_xor_b32 v138, s98, v{r}")
            e("v_or_b32 v137, v137, v138")
        e("v_cmp_ne_u32 vcc, 0, v137")
        e("s_cmp_eq_u64 vcc, 0")
    def aux2_finish():
        lab = only_wave(AXW2, "K1_A2F")
        e.raw(f"s_waitcnt vmcnt({min(63, e.vm_issued - aux['a2_vm'])})")
        tagged_retry(e, aux2_issue_raw, lambda: tagcheck2([129, 131, 133, 135]), "K1_A2", cnt="s63")
        e("v_mov_b32 v129, v130")
        e("v_mov_b32 v133, v134")
        e("v_lshlrev_b32 v136, 3, v0")
        e(f"v_add_u32 v136, {M_CS}, v136")
        e("ds_write_b64 v136, v[128:129]")
        e("ds_write_b64 v136, v[132:133] offset:512")
        e.raw("s_waitcnt lgkmcnt(0)")
        end_only(lab)
    def cs_base():
        e("v_lshrrev_b32 v46, 5, v0"); yield
        e("v_lshlrev_b32 v46, 4, v46"); yield
        e("s_lshl_b32 s56, s55, 7")
        e(f"s_add_u32 s56, s56, {M_CS}")
        e("v_add_u32 v46, s56, v46"); yield
    def cs_reads(tl, CSB):
        o = (tl >> 1)*256 + (tl & 1)*64
        aux[("cs", tl)] = [e(f"ds_read_b128 v[{CSB}:{CSB+3}], v46 offset:{o}"),
                           e(f"ds_read_b128 v[{CSB+4}:{CSB+7}], v46 offset:{o+32}"),
                           e(f"ds_read_b128 v[{CSB+8}:{CSB+11}], v46 offset:{o+512}"),
                           e(f"ds_read_b128 v[{CSB+12}:{CSB+15}], v46 offset:{o+544}")]
        yield

    def z_pass1():
        e.wait(aux["lane"]); yield
        for i in range(8):
            e(f"v_permlane16_swap_b32 v{AZ+i}, v{AZ+8+i}"); yield
        st = list(aux["st"])
        for g in range(4):
            b = 36 + (g & 1)*4
            e.wait(st[g]); yield
            for u in range(2):
                i = 2*g + u; mm = b + 2*u
                e(f"v_fma_f32 v{AZ+i}, -v{mm}, v{CSR}, v{AZ+i}"); yield
                e(f"v_fma_f32 v{AZ+8+i}, -v{mm}, v{CSI}, v{AZ+8+i}"); yield
            for u in range(2):
                i = 2*g + u; rr = b + 2*u + 1
                e(f"v_mul_f32 v{AZ+i}, v{AZ+i}, v{rr}"); yield
                e(f"v_mul_f32 v{AZ+8+i}, v{AZ+8+i}, v{rr}"); yield
            if g + 2 < 4:
                st.append(e(f"ds_read_b128 v[{b}:{b+3}], v34 offset:{(g+2)*16}")); yield
        pr_, pi_ = AZ, AZ + 8
        for i in range(1, 8):
            d = (44, 45) if (i & 1) else (ER, EI)
            yield from cfma_to(e, d[0], d[1], pr_, pi_, LR, LI, AZ+i, AZ+8+i)
            pr_, pi_ = d
        e(f"v_mul_f32 v36, v{CI}, v45"); yield
        e(f"v_mul_f32 v37, v{CI}, v44"); yield
        e(f"v_fma_f32 v{ER}, v{CR}, v44, -v36"); yield
        e(f"v_fma_f32 v{EI}, v{CR}, v45, v37"); yield
    def hier1():
        e(f"v_mov_b32 v1, v{ER}"); yield
        e(f"v_mov_b32 v2, v{ER}"); yield
        e(f"v_mov_b32 v3, v{EI}"); yield
        e(f"v_mov_b32 v4, v{EI}"); yield
        yield from csq(e, 7, 8, L8R, L8I, 34)
        e("v_permlane16_swap_b32 v1, v2"); yield
        e("v_permlane16_swap_b32 v3, v4"); yield
        yield from cfma_to(e, 5, 6, 1, 3, L8R, L8I, 2, 4)
        e("v_mov_b32 v28, v5"); yield
        e("v_mov_b32 v36, v5"); yield
        e("v_mov_b32 v29, v6"); yield
        e("v_mov_b32 v34, v6"); yield
        e("v_and_b32 v35, 15, v0"); yield
        e("s_lshl_b32 s56, s55, 4")
        e("v_add_u32 v35, s56, v35"); yield
        e("v_lshlrev_b32 v35, 3, v35"); yield
        e("v_permlane32_swap_b32 v28, v36"); yield
        e("v_permlane32_swap_b32 v29, v34"); yield
        e(f"v_add_u32 v35, {M_SEG}, v35"); yield
        yield from cfma_to(e, 5, 6, 28, 29, 7, 8, 36, 34)
        e("s_lshl_b32 s56, s54, 8")
        e("v_add_u32 v34, s56, v35"); yield
        e("v_mov_b32 v44, v5"); yield
        e("v_mov_b32 v45, v6"); yield
        e("ds_write_b64 v34, v[44:45]"); yield
    def hier2():
        tk = [e(f"ds_read_b64 v[{36+2*u}:{37+2*u}], v35 offset:{u*256}") for u in range(3)]
        yield
        yield from csq(e, 42, 43, 7, 8, 44)
        e.wait(tk); yield
        yield from cfma_to(e, 44, 45, 36, 37, 42, 43, 38, 39)
        yield from cfma_to(e, 2, 4, 44, 45, 42, 43, 40, 41)
        e("v_cndmask_b32 v2, v44, v2, s[40:41]"); yield
        e("v_cndmask_b32 v4, v45, v4, s[40:41]"); yield
        e("v_cndmask_b32 v36, 0, v36, s[40:41]"); yield
        e("v_cndmask_b32 v37, 0, v37, s[40:41]"); yield
        e("v_cndmask_b32 v36, v36, v2, s[42:43]"); yield
        e("v_cndmask_b32 v37, v37, v4, s[42:43]"); yield
        lab = e.label("K1_NOPUB")
        e("s_cmp_lg_u32 s54, 3")
        e(f"s_cbranch_scc1 {lab}")
        e.cond_begin()
        for _ in cfma_to(e, 38, 40, 36, 37, 42, 43, 5, 6): pass
        e("v_mov_b32 v39, s98"); e("v_mov_b32 v41, s98")
        e("v_and_b32 v34, 15, v0")
        e("v_add_u32 v34, s78, v34")
        e("v_lshlrev_b32 v34, 4, v34")
        e(f"s_mul_i32 s56, s52, {448*16}")
        e(f"s_add_u32 s56, s56, {WS_E}")
        e("s_mov_b64 s[58:59], exec")
        e("s_mov_b64 exec, 0xffff")
        e("buffer_store_dwordx4 v[38:41], v34, s[32:35], s56 offen sc1")
        e("s_mov_b64 exec, s[58:59]")
        e.cond_end()
        e.raw(f"{lab}:")
        yield
        yield from cfma_to(e, 38, 39, 36, 37, 7, 8, 28, 29)
        e("v_cndmask_b32 v36, v36, v38, s[46:47]"); yield
        e("v_cndmask_b32 v37, v37, v39, s[46:47]"); yield
        yield from cfma_to(e, 38, 39, 36, 37, L8R, L8I, 1, 3)
        e(f"v_cndmask_b32 v{PR}, v36, v38, s[44:45]"); yield
        e(f"v_cndmask_b32 v{PI}, v37, v39, s[44:45]"); yield
    def zscale():
        for i in range(0, 8, 2):
            for u in range(2):
                e(f"v_mul_f32 v{36+2*u}, v{CI}, v{AZ+8+i+u}"); yield
                e(f"v_mul_f32 v{37+2*u}, v{CI}, v{AZ+i+u}"); yield
            for u in range(2):
                e(f"v_fma_f32 v{AZ+i+u}, v{CR}, v{AZ+i+u}, -v{36+2*u}"); yield
                e(f"v_fma_f32 v{AZ+8+i+u}, v{CR}, v{AZ+8+i+u}, v{37+2*u}"); yield
    def gu_math(acc, CSB):
        for i in range(8):
            e(f"v_fma_f32 v{acc+i}, -v{M_}, v{CSB+i}, v{acc+i}"); yield
        for i in range(8):
            e(f"v_mul_f32 v{acc+i}, v{acc+i}, v{NLR}"); yield
        for i in range(8):
            e(f"v_exp_f32 v{acc+i}, v{acc+i}"); yield
            e(f"v_fma_f32 v{acc+8+i}, -v{M_}, v{CSB+8+i}, v{acc+8+i}"); yield
        for i in range(8):
            e(f"v_fma_f32 v{acc+i}, v{acc+i}, v{SD}, v{SD}"); yield
        for i in range(8):
            e(f"v_rcp_f32 v{acc+i}, v{acc+i}"); yield
        for i in range(8):
            e(f"v_mul_f32 v{acc+i}, v{acc+i}, v{acc+8+i}"); yield
        for p in range(4):
            e(f"v_cvt_pk_bf16_f32 v{acc+8+p}, v{acc+2*p}, v{acc+2*p+1}"); yield
    def gu_epi(tl, CSB):
        acc = AG[tl]
        e.wait(aux[("cs", tl)]); yield
        yield from gu_math(acc, CSB)
        e(f"s_add_u32 s56, s79, {((tl>>1)*4 + (tl&1))*1024}")
        e(f"buffer_store_dwordx4 v[{acc+8}:{acc+11}], v{VH}, s[32:35], s56 offen{STF}"); yield

    ebq = deque()
    def early_B_setup():
        e(f"v_lshrrev_b32 v{EBV}, 3, v0")
        e("s_lshl_b32 s57, s48, 3")
        e(f"v_add_u32 v{EBV}, s57, v{EBV}")
        e(f"v_mul_u32_u24 v{EBV}, 896, v{EBV}")
        e("v_and_b32 v11, 7, v0")
        e("v_bfe_u32 v12, v0, 4, 1")
        e("v_lshlrev_b32 v12, 2, v12")
        e("v_xor_b32 v11, v11, v12")
        e(f"v_lshl_add_u32 v{EBV}, v11, 4, v{EBV}")
        e("s_mov_b32 s92, s86"); e("s_and_b32 s93, s87, 0xffff"); e(f"s_mov_b32 s94, {1792*448*2}"); e("s_mov_b32 s95, 0x20000")
        e("s_cmp_ge_u32 s53, 7")
        e("s_cselect_b32 s57, 7, 0")
        e("s_sub_u32 s57, s53, s57")
        e("s_and_b32 s70, s51, 3")
        e("s_mul_i32 s70, s70, 7")
        e("s_lshl_b32 s71, s57, 2")
        e("s_add_u32 s70, s70, s71")
        e("s_cmp_ge_u32 s70, 28")
        e("s_cselect_b32 s71, 28, 0")
        e("s_sub_u32 s70, s70, s71")
        e("s_lshl_b32 s71, s57, 7")
        e("s_lshl_b32 s69, s48, 10")
    def early_B_queue(t0, t1):
        def mk(t):
            def f():
                e(f"s_add_u32 m0, s69, {t*8192}")
                e(f"s_mul_i32 s68, s70, {64*896}")
                e("s_add_u32 s68, s68, s71")
                e(f"buffer_load_dwordx4 v{EBV}, s[92:95], s68 offen lds")
                e("s_add_u32 s70, s70, 1"); e("s_cmp_eq_u32 s70, 28"); e("s_cselect_b32 s70, 0, s70")
            return f
        for t in range(t0, t1): ebq.append(mk(t))
    def drain_eb(gen, every=18):
        k = 0
        for _ in gen:
            k += 1
            if k % every == 0 and ebq: ebq.popleft()()
    M_PF = 162304
    def k2_touch(k, slot):
        PFT = 139 if slot < 18 else 160
        assert slot >= 6
        lab = e.label("K1_PF")
        e(f"s_cmp_lg_u32 s48, {k & 7}")
        e(f"s_cbranch_scc1 {lab}")
        e.cond_begin()
        if k < 7:
            e("s_mul_i32 s61, s51, 448"); e(f"s_add_u32 s61, s61, {64*k}"); base = "s[86:87]"; lim = 12543
        elif k < 9:
            e("s_mul_i32 s61, s51, 112"); e(f"s_add_u32 s61, s61, {64*(k-7)}"); base = "s[88:89]"; lim = 3135
        else:
            e("s_mul_i32 s61, s51, 112"); e(f"s_add_u32 s61, s61, {64*(k-9)}"); base = "s[90:91]"; lim = 3135
        e(f"v_add_u32 v{PFT}, s61, v0")
        e(f"v_min_u32 v{PFT}, {lim}, v{PFT}")
        e(f"s_mov_b32 m0, {M_PF}")
        e(f"v_lshlrev_b32 v{PFT}, 7, v{PFT}")
        e(f"global_load_lds_dword v{PFT}, {base}")
        e.cond_end()
        e.raw(f"{lab}:")
    EL = 160
    def e_issue_raw():
        e("v_lshrrev_b32 v180, 4, v0")
        e("v_and_b32 v181, 15, v0")
        e("v_add_u32 v181, s78, v181")
        e("v_lshlrev_b32 v181, 4, v181")
        e("s_sub_u32 s63, s52, 1")
        e(f"s_mov_b32 s61, {WS_E}")
        for m in range(4):
            e(f"v_add_u32 v{176+m}, {4*m}, v180")
            e(f"v_min_u32 v{176+m}, s63, v{176+m}")
            e(f"v_mul_u32_u24 v{176+m}, {448*16}, v{176+m}")
            e(f"v_add_u32 v{176+m}, v{176+m}, v181")
            e(f"buffer_load_dwordx4 v[{EL+4*m}:{EL+4*m+3}], v{176+m}, s[32:35], s61 offen sc1")
    def e_issue():
        lab = e.label("K1_EI")
        e("s_cmp_eq_u32 s52, 0")
        e(f"s_cbranch_scc1 {lab}")
        e.cond_begin(); e_issue_raw(); e.cond_end()
        e.raw(f"{lab}:")
    def e_consts():
        yield from csq(e, 182, 183, L128R, L128I, 188)
        yield from cmul(e, 184, 185, 182, 183, L128R, L128I, 188)
        yield from csq(e, 186, 187, 182, 183, 188)
        e("v_lshrrev_b32 v190, 4, v0"); yield
        e("s_sub_u32 s63, s52, 1")
        e("v_sub_u32 v190, s63, v190"); yield
        e("v_and_b32 v191, 3, v190"); yield
        e("v_ashrrev_i32 v190, 2, v190"); yield
        e("v_mov_b32 v192, 1.0"); yield
        e("v_mov_b32 v193, 0"); yield
        for k, (rr, ii) in enumerate(((L128R, L128I), (182, 183), (184, 185))):
            e(f"v_cmp_eq_u32 vcc, {k+1}, v191"); yield
            e(f"v_cndmask_b32 v192, v192, v{rr}, vcc"); yield
            e(f"v_cndmask_b32 v193, v193, v{ii}, vcc"); yield
    def e_check(nafter):
        skip = e.label("K1_ESK"); ok = e.label("K1_EOK"); chk = e.label("K1_ECK")
        e("s_cmp_eq_u32 s52, 0")
        e(f"s_cbranch_scc1 {skip}")
        e.cond_begin()
        e.raw(f"s_waitcnt vmcnt({nafter})")
        e("s_mov_b32 s62, 0")
        e.raw(f"{chk}:")
        e(f"v_xor_b32 v44, s98, v{EL+1}")
        for r in (EL+3, EL+5, EL+7, EL+9, EL+11, EL+13, EL+15):
            e(f"v_xor_b32 v45, s98, v{r}")
            e("v_or_b32 v44, v44, v45")
        e("v_cmp_ne_u32 vcc, 0, v44")
        e("s_cmp_eq_u64 vcc, 0")
        e(f"s_cbranch_scc1 {ok}")
        e("s_add_u32 s62, s62, 1")
        e("s_cmp_ge_u32 s62, 100000")
        e(f"s_cbranch_scc1 {ok}")
        e_issue_raw()
        e.raw("s_waitcnt vmcnt(0)")
        e(f"s_branch {chk}")
        e.raw(f"{ok}:")
        e.cond_end()
        e.raw(f"{skip}:")
    def carry_and_pass2():
        lab0 = e.label("K1_NOCARRY")
        e("v_mov_b32 v44, 0"); e("v_mov_b32 v45, 0")
        e("s_cmp_eq_u32 s52, 0")
        e(f"s_cbranch_scc1 {lab0}")
        for m in range(4):
            er, ei = EL+4*m, EL+4*m+2
            e(f"v_cmp_le_i32 vcc, {m}, v190")
            e(f"v_fma_f32 v{er}, v186, v44, v{er}")
            e(f"v_fma_f32 v{ei}, v186, v45, v{ei}")
            e(f"v_fma_f32 v{er}, -v187, v45, v{er}")
            e(f"v_fma_f32 v{ei}, v187, v44, v{ei}")
            e(f"v_cndmask_b32 v44, v44, v{er}, vcc")
            e(f"v_cndmask_b32 v45, v45, v{ei}, vcc")
        e("v_mul_f32 v40, v193, v45")
        e("v_mul_f32 v41, v193, v44")
        e("v_fma_f32 v44, v192, v44, -v40")
        e("v_fma_f32 v45, v192, v45, v41")
        e("v_mov_b32 v40, v44"); e("v_mov_b32 v41, v45")
        e("v_permlane16_swap_b32 v44, v40"); e("v_permlane16_swap_b32 v45, v41")
        e("v_add_f32 v44, v44, v40"); e("v_add_f32 v45, v45, v41")
        e("v_mov_b32 v40, v44"); e("v_mov_b32 v41, v45")
        e("v_permlane32_swap_b32 v44, v40"); e("v_permlane32_swap_b32 v45, v41")
        e("v_add_f32 v44, v44, v40"); e("v_add_f32 v45, v45, v41")
        e.raw(f"{lab0}:")
        e(f"v_fma_f32 v{PR}, v{TR}, v44, v{PR}")
        e(f"v_fma_f32 v{PI}, v{TR}, v45, v{PI}")
        e(f"v_fma_f32 v{PR}, -v{TI}, v45, v{PR}")
        e(f"v_fma_f32 v{PI}, v{TI}, v44, v{PI}")
        pr_, pi_ = PR, PI
        for i in range(8):
            zr, zi = AZ + i, AZ + 8 + i
            e(f"v_fma_f32 v{zr}, v{LR}, v{pr_}, v{zr}")
            e(f"v_fma_f32 v{zi}, v{LR}, v{pi_}, v{zi}")
            e(f"v_fma_f32 v{zr}, -v{LI}, v{pi_}, v{zr}")
            e(f"v_fma_f32 v{zi}, v{LI}, v{pr_}, v{zi}")
            pr_, pi_ = zr, zi
        for p in range(4):
            e(f"v_cvt_pk_bf16_f32 v{36+p}, v{AZ+2*p}, v{AZ+2*p+1}")
            e(f"v_cvt_pk_bf16_f32 v{40+p}, -v{AZ+8+2*p}, -v{AZ+8+2*p+1}")
        e("ds_write_b128 v1, v[36:39]")
        e("ds_write_b128 v1, v[40:43] offset:1024")
        e.wait_all(vm=False)
        tk = [e("ds_read_b64_tr_b16 v[36:37], v2"), e("ds_read_b64_tr_b16 v[38:39], v2 offset:256"),
              e("ds_read_b64_tr_b16 v[40:41], v2 offset:1024"), e("ds_read_b64_tr_b16 v[42:43], v2 offset:1280")]
        e.wait(tk)
        e(f"buffer_store_dwordx4 v[36:39], v3, s[32:35], s76 offen{STF}")
        e("s_add_u32 s76, s76, 4096")
        e(f"buffer_store_dwordx4 v[40:43], v3, s[32:35], s76 offen{STF}")
    def tail_addr():
        e("s_lshl_b32 s56, s48, 11")
        e(f"s_add_u32 s56, s56, {M_TR}")
        e("v_and_b32 v1, 15, v0"); yield
        e("v_lshlrev_b32 v1, 6, v1"); yield
        e("v_lshrrev_b32 v2, 4, v0"); yield
        e("v_lshl_add_u32 v1, v2, 4, v1"); yield
        e("v_add_u32 v1, s56, v1"); yield
        e("v_lshrrev_b32 v2, 5, v0"); yield
        e("v_bfe_u32 v3, v0, 2, 2"); yield
        e("v_lshl_add_u32 v2, v2, 3, v3"); yield
        e("v_lshlrev_b32 v2, 6, v2"); yield
        e("v_bfe_u32 v3, v0, 4, 1"); yield
        e("v_lshl_add_u32 v2, v3, 5, v2"); yield
        e("v_and_b32 v3, 3, v0"); yield
        e("v_lshl_add_u32 v2, v3, 3, v2"); yield
        e("v_add_u32 v2, s56, v2"); yield
        e("v_lshlrev_b32 v3, 4, v0"); yield
        e("s_lshl_b32 s56, s53, 1")
        e("s_add_u32 s56, s56, s55")
        e("s_lshr_b32 s57, s56, 2")
        e("s_lshl_b32 s57, s57, 3")
        e("s_and_b32 s56, s56, 3")
        e("s_add_u32 s56, s56, s57")
        e("s_lshl_b32 s57, s52, 2")
        e("s_add_u32 s57, s57, s54")
        e("s_mul_i32 s57, s57, 56")
        e("s_add_u32 s56, s56, s57")
        e("s_lshl_b32 s56, s56, 10")
        e(f"s_add_u32 s76, s56, {WS_hF}")
        yield

    def cost(i):
        if i.cls == "valu": return 2.0 if i.op in TRANS else 1.0
        if i.cls in ("ds", "vmem"): return 0.5
        return 0.1
    class Fill:
        def __init__(self): self.q = []; self.cur = None; self.barrier_at = None
        def add(self, *items): self.q += list(items)
        def run(self, budget, tick):
            spent = 0.0
            while spent < budget:
                if self.cur is None:
                    if not self.q: return
                    it = self.q[0]
                    if it == "barrier":
                        if self.barrier_at is None: self.barrier_at = tick
                        if tick <= self.barrier_at: return
                        self.barrier_at = None; self.q.pop(0); continue
                    if it == "aux2gate":
                        if "a2_tick" not in aux or tick <= aux["a2_tick"]: return
                        self.q.pop(0); continue
                    if it == "step17":
                        if tick < 13: return
                        self.q.pop(0); continue
                    self.q.pop(0); self.cur = it() if callable(it) else it
                n0 = len(e.ins)
                try: next(self.cur)
                except StopIteration: self.cur = None
                spent += sum(cost(i) for i in e.ins[n0:])
        def flush(self):
            while self.cur is not None or self.q:
                if self.cur is None:
                    it = self.q.pop(0)
                    if it == "step17": continue
                    if it == "barrier" or it == "aux2gate":
                        e.wait_all(vm=False); e("s_barrier"); self.barrier_at = None
                        continue
                    self.cur = it() if callable(it) else it
                for _ in self.cur: pass
                self.cur = None
    F = Fill()
    F.add(params)
    slot = {"A": 0, "B": 0}
    last = None
    for (ph, ks, si, did) in main_stream():
        if (ph, ks) != last and (ph, ks) in STAMPS: pr.stamp()
        last = (ph, ks)
        n = slot[ph]; slot[ph] += 1
        tk = nbar[0]
        if NOEPI:
            if ph == "A" and not did: F.run(BUDGET_A, tk)
            continue
        if ph == "A":
            if COOP and n == CT2: coop_touch(3, 4, 0, False, 226)
            if COOP and n == CT3: coop_touch(0, 4, 128, True, 226)
            if COOP and n == CT4: coop_touch(4, 3, 128, True, 226)
            if n == RB_SLOT and RB_LATE: rowbatch_compute()
            if n == PUB_SLOT: rowbatch_publish()
            if n == AUX_LOAD: F.flush(); aux1_issue()
            if n == AUX_FIN: aux1_finish(); F.add("barrier", aux1_read)
            if not did: F.run(BUDGET_A, tk)
        else:
            if n == 0:
                F.flush()
                if ZFIRST:
                    drain(z_pass1()); drain(hier1())
                    e.wait_all(vm=False); e("s_barrier")
                    drain(hier2())
                    F.add(zscale, cs_base, tail_addr, "aux2gate",
                          lambda: cs_reads(0, 128), lambda: cs_reads(1, 144), lambda: gu_epi(0, 128),
                          lambda: cs_reads(2, 128), lambda: gu_epi(1, 144), lambda: cs_reads(3, 144), "step17", e_consts)
                else:
                  F.add(z_pass1, hier1, "barrier", hier2, zscale, cs_base, "aux2gate",
                      lambda: cs_reads(0, 128), lambda: cs_reads(1, 144), lambda: gu_epi(0, 128),
                      lambda: cs_reads(2, 128), lambda: gu_epi(1, 144), lambda: cs_reads(3, 144), tail_addr)
            if fused and G.EARLY_B and n == 1:
                early_B_setup(); early_B_queue(0, G.EARLY_B1)
            if fused and n >= EB_SLOT and (n - EB_SLOT) % EB_GAP == 0 and ebq and (n & 1) == 0: ebq.popleft()()
            if n == AUX2_SLOT: aux2_issue()
            if n == AUX2_FIN: aux2_finish(); aux["a2_tick"] = tk
            if PF_SLOT >= 0 and n >= PF_SLOT and (n - PF_SLOT) % PF_GAP == 0 and (n - PF_SLOT) // PF_GAP < 11: k2_touch((n - PF_SLOT) // PF_GAP, n)
            if not did: F.run(BUDGET_B0 if n < BSW else BUDGET_B, tk)
    if NOEPI:
        pr.dump(32, 48)
        e.raw("K1_END:")
        e("s_endpgm")
        gen_helper(e)
        return 256
    e_issue(); aux["e_vm"] = e.vm_issued
    if fused and G.EARLY_B > G.EARLY_B1:
        while ebq: ebq.popleft()()
        e.wait_all(vm=False); e("s_barrier")
        early_B_queue(G.EARLY_B1, G.EARLY_B)
    if TAILST2: pr.stamp()
    F.flush()
    if TAILST2: pr.stamp()
    if not ZFIRST and not ECLATE: drain_eb(e_consts(), 12)
    drain_eb(gu_epi(2, 128), 10)
    if TAILST2: pr.stamp()
    drain_eb(gu_epi(3, 144), 10)
    while ebq: ebq.popleft()()
    if not ZFIRST and ECLATE: drain(e_consts())
    if TAILST: pr.stamp()
    e_check(e.vm_issued - aux["e_vm"])
    if TAILST2: pr.stamp()
    carry_and_pass2()
    pr.stamp()
    pr.dump(32, 48)
    if fused:
        if G.PROFILE: e("s_mov_b64 exec, -1")
        G.gen_k2(e, fused=True)
    e.raw("K1_END:")
    e("s_endpgm")
    gen_helper(e)
    return 256
```

```python
import sys, os
sys.path.insert(0, "dev")
from asmlib import *
import gen as G
from gen import *
from collections import deque

def cmul(e, dr, di, ar, ai, br, bi, t):
    e(f"v_mul_f32 v{t}, v{ai}, v{bi}"); yield
    e(f"v_mul_f32 v{t+1}, v{ai}, v{br}"); yield
    e(f"v_fma_f32 v{t}, v{ar}, v{br}, -v{t}"); yield
    e(f"v_fma_f32 v{di}, v{ar}, v{bi}, v{t+1}"); yield
    e(f"v_mov_b32 v{dr}, v{t}"); yield
def csq(e, dr, di, ar, ai, t):
    e(f"v_mul_f32 v{t}, v{ai}, v{ai}"); yield
    e(f"v_mul_f32 v{t+1}, v{ar}, v{ai}"); yield
    e(f"v_fma_f32 v{dr}, v{ar}, v{ar}, -v{t}"); yield
    e(f"v_add_f32 v{di}, v{t+1}, v{t+1}"); yield
def cfma(e, hr, hi, lr, li, br, bi, t):
    e(f"v_fma_f32 v{t}, v{lr}, v{hr}, v{br}"); yield
    e(f"v_fma_f32 v{t+1}, v{lr}, v{hi}, v{bi}"); yield
    e(f"v_fma_f32 v{t}, -v{li}, v{hi}, v{t}"); yield
    e(f"v_fma_f32 v{hi}, v{li}, v{hr}, v{t+1}"); yield
    e(f"v_mov_b32 v{hr}, v{t}"); yield
def cfma_to(e, dr, di, hr, hi, lr, li, br, bi):
    e(f"v_fma_f32 v{dr}, v{lr}, v{hr}, v{br}"); yield
    e(f"v_fma_f32 v{di}, v{lr}, v{hi}, v{bi}"); yield
    e(f"v_fma_f32 v{dr}, -v{li}, v{hi}, v{dr}"); yield
    e(f"v_fma_f32 v{di}, v{li}, v{hr}, v{di}"); yield

def gen_helper(e):
    e.raw("K1_HELPER:")
    e.lg_issued = e.lg_done = 0; e.vm_issued = e.vm_done = 0
    if os.environ.get("CODEPF", "0") == "1":
        lab = e.label("K1H_CP")
        e("s_cmp_lg_u32 s48, 7")
        e(f"s_cbranch_scc1 {lab}")
        e("v_lshlrev_b32 v10, 7, v0")
        for k in range(4):
            e("v_min_u32 v11, K1_CODE_LAST-K1_CODE_FIRST, v10")
            e(f"global_load_dword v{20+k}, v11, s[84:85]")
            if k < 3: e("v_add_u32 v10, 8192, v10")
        e.raw(f"{lab}:")
    if os.environ.get("TLBW", "0") == "1":
        lab = e.label("K1H_TW")
        e("s_cmp_lg_u32 s48, 6")
        e(f"s_cbranch_scc1 {lab}")
        tl = e("s_load_dwordx2 s[82:83], s[0:1], 104")
        e.raw("s_waitcnt lgkmcnt(0)"); e.smem_out = False
        e("v_lshlrev_b32 v10, 16, v0")
        e(f"v_min_u32 v11, {2048*448*4 - 4}, v10")
        e("global_load_dword v20, v11, s[82:83]")
        for k in range(3):
            e(f"v_min_u32 v11, {WS_END - 4}, v10")
            e(f"global_load_dword v{21+k}, v11, s[18:19]")
            if k < 2: e(f"v_add_u32 v10, {64*65536}, v10")
        e.raw(f"{lab}:")
    HW = os.environ.get("HWARM", "1") == "1"
    e("s_cmp_ge_u32 s2, 28")
    e("s_cbranch_scc1 K1H_WARM" if HW else "s_cbranch_scc1 K1_END")
    srd(e, 32, 18, WS_END if not G.PROFILE else (16 << 20))
    pr = G.Prof(e, 0); pr.stamp()
    srd(e, 36, 16, 256)
    e("s_cmp_ge_u32 s2, 14")
    e("s_cselect_b32 s28, s14, s12")
    e("s_cselect_b32 s29, s15, s13")
    e("s_cselect_b32 s54, 14, 0")
    e("s_cselect_b32 s56, 1792, 0")
    e("s_and_b32 s29, s29, 0xffff")
    e("s_sub_u32 s54, s2, s54")
    e(f"s_mov_b32 s30, {448*1792*2}")
    e("s_mov_b32 s31, 0x20000")
    e("v_lshrrev_b32 v4, 4, v0")
    e("s_movk_i32 s50, 3584")
    e("v_mul_lo_u32 v4, s50, v4")
    e("v_and_b32 v5, 15, v0")
    e("v_lshl_add_u32 v4, v5, 4, v4")
    e(f"s_mul_i32 s55, s48, {56*3584}")
    e("s_lshl_b32 s57, s54, 8")
    e("s_add_u32 s55, s55, s57")
    nonce_cas(e, 12)
    if os.environ.get("HDELAY", "0") == "1":
        nonce_publish(e, 12, 32768)
        e("s_barrier")
    WL = 72
    U = 128
    wt = []
    for n in range(14):
        e(f"s_add_u32 s57, s55, {n*4*3584}")
        wt.append(e(f"buffer_load_dwordx4 v[{WL+4*n}:{WL+4*n+3}], v4, s[28:31], s57 offen"))
    A = 16
    for n in range(14):
        e.wait(wt[n])
        if n == 0:
            pr.stamp()
            if os.environ.get("HDELAY", "0") != "1": nonce_publish(e, 12, 32768)
        for d in range(4):
            src = WL + 4*n + d
            if n == 0:
                e(f"v_lshlrev_b32 v{A+2*d}, 16, v{src}")
                e(f"v_and_b32 v{A+2*d+1}, 0xffff0000, v{src}")
            else:
                e(f"v_lshlrev_b32 v6, 16, v{src}")
                e(f"v_and_b32 v7, 0xffff0000, v{src}")
                e(f"v_add_f32 v{A+2*d}, v{A+2*d}, v6")
                e(f"v_add_f32 v{A+2*d+1}, v{A+2*d+1}, v7")
    pr.stamp()
    e("v_lshrrev_b32 v6, 4, v0")
    e("s_lshl_b32 s57, s48, 2")
    e("v_add_u32 v6, s57, v6")
    e("v_lshlrev_b32 v6, 9, v6")
    e("v_lshl_add_u32 v6, v5, 5, v6")
    e(f"ds_write_b128 v6, v[{A}:{A+3}]")
    e(f"ds_write_b128 v6, v[{A+4}:{A+7}] offset:16")
    e.wait_all(vm=False)
    e("s_barrier")
    e("s_cmp_ge_u32 s48, 2")
    e("s_cbranch_scc1 K1H_WARM" if HW else "s_cbranch_scc1 K1_END")
    nonce_read(e, 13, 32768)
    e("s_lshl_b32 s57, s48, 6")
    e("v_add_u32 v6, s57, v0")
    e("v_lshlrev_b32 v7, 2, v6")
    for p in range(32): e(f"ds_read_b32 v{U+p}, v7 offset:{p*512}")
    e.wait_all(vm=False)
    for st in (16, 8, 4, 2, 1):
        for p in range(st): e(f"v_add_f32 v{U+p}, v{U+p}, v{U+p+st}")
    e("s_lshl_b32 s57, s54, 7")
    e("s_add_u32 s57, s57, s56")
    e("v_add_u32 v6, s57, v6")
    e("v_lshlrev_b32 v6, 3, v6")
    e(f"v_add_u32 v6, {WS_CSW}, v6")
    e(f"v_mov_b32 v{U+1}, s98")
    e(f"buffer_store_dwordx2 v[{U}:{U+1}], v6, s[32:35], 0 offen sc1")
    pr.stamp()
    pr.dump(32, 48)
    if HW:
        if G.PROFILE: e("s_mov_b64 exec, -1")
        e.raw("K1H_WARM:")
        e("s_lshl_b32 s49, s2, 3"); e("s_add_u32 s49, s49, s48")
        e("s_mul_i32 s50, s49, 49")
        e("v_min_u32 v6, 48, v0")
        e("v_add_u32 v6, s50, v6"); e("v_lshlrev_b32 v6, 7, v6")
        e("global_load_dword v7, v6, s[86:87]")
        e("s_mul_i32 s50, s49, 13")
        e("v_and_b32 v6, 15, v0"); e("v_min_u32 v6, 12, v6")
        e("v_add_u32 v6, s50, v6"); e("v_min_u32 v6, 3135, v6"); e("v_lshlrev_b32 v6, 7, v6")
        e("global_load_dword v8, v6, s[88:89]")
        e("global_load_dword v9, v6, s[90:91]")
        e("s_waitcnt vmcnt(0)")
    e.raw("K1_CODE_LAST:")
    e("s_endpgm")

NW = 7
def nonce_cas(e, v, srd="s[36:39]"):
    lab = e.label("K1_NC")
    e(f"v_mov_b32 v{v+2}, 0")
    e(f"s_cmp_lg_u32 s48, {NW}")
    e(f"s_cbranch_scc1 {lab}")
    e.cond_begin()
    e.raw("s_memrealtime s[100:101]")
    e.raw("s_waitcnt lgkmcnt(0)")
    e("s_or_b32 s99, s100, 1")
    e(f"v_mov_b32 v{v}, s99")
    e(f"v_mov_b32 v{v+1}, 0")
    e("s_mov_b64 s[58:59], exec")
    e("s_mov_b64 exec, 1")
    e(f"buffer_atomic_cmpswap v[{v}:{v+1}], v{v+2}, {srd}, 0 offen sc0")
    e("s_mov_b64 exec, s[58:59]")
    e.cond_end()
    e.raw(f"{lab}:")
    e.vm_at_cas = e.vm_issued
def nonce_publish(e, v, lds, srd="s[36:39]"):
    lab = e.label("K1_NP")
    e(f"s_cmp_lg_u32 s48, {NW}")
    e(f"s_cbranch_scc1 {lab}")
    e.cond_begin()
    e.raw(f"s_waitcnt vmcnt({min(63, e.vm_issued - e.vm_at_cas)})")
    e(f"v_readfirstlane_b32 s100, v{v}")
    e("s_cmp_eq_u32 s100, 0")
    e("s_cselect_b32 s100, s99, s100")
    e(f"v_mov_b32 v{v}, s100")
    e(f"v_mov_b32 v{v+1}, {lds}")
    e(f"ds_write_b32 v{v+1}, v{v}")
    e.raw("s_waitcnt lgkmcnt(0)")
    e.cond_end()
    e.raw(f"{lab}:")
def nonce_read(e, v, lds):
    e(f"v_mov_b32 v{v}, {lds}")
    t = e(f"ds_read_b32 v{v}, v{v}")
    e.wait(t)
    e(f"v_readfirstlane_b32 s98, v{v}")

def tagged_retry(e, issue, check, name, maxit=100000, cnt="s61"):
    ok = e.label(name + "_OK"); top = e.label(name + "_RT")
    check()
    e(f"s_cbranch_scc1 {ok}")
    e.cond_begin()
    e(f"s_mov_b32 {cnt}, 0")
    e.raw(f"{top}:")
    issue()
    e.raw("s_waitcnt vmcnt(0)")
    check()
    e(f"s_cbranch_scc1 {ok}")
    e(f"s_add_u32 {cnt}, {cnt}, 1")
    e(f"s_cmp_lt_u32 {cnt}, {maxit}")
    e(f"s_cbranch_scc1 {top}")
    e.cond_end()
    e.raw(f"{ok}:")
```

```python
import sys
sys.path.insert(0, "dev")
from asmlib import *

NAME = "recurrent_scan__ssm_conv_s5__glu_gated_glu__prompt"
WS_HF   = 0
WS_hF   = 64*112*1024
WS_STAT = WS_hF + 64*56*1024
WS_CSW  = WS_STAT + 2048*16
WS_CSB  = WS_CSW + 3584*8
WS_E    = WS_CSB + 896*8
WS_DONE = WS_E + 16*448*16
WS_END  = WS_DONE + 16*128
LOG2E = 1.4426950408889634
import struct, os
def f32(x): return "0x%08x" % struct.unpack("<I", struct.pack("<f", x))[0]

def srd(e, s, ptr, nbytes):
    e(f"s_mov_b32 s{s}, s{ptr}")
    e(f"s_and_b32 s{s+1}, s{ptr+1}, 0xffff")
    e(f"s_mov_b32 s{s+2}, {nbytes}")
    e(f"s_mov_b32 s{s+3}, 0x20000")

def bf16_round_pair(e, dst_lo, dst_hi, a, b, tmp):
    e(f"v_cvt_pk_bf16_f32 v{tmp}, v{a}, v{b}")
    yield
    e(f"v_lshlrev_b32 v{dst_lo}, 16, v{tmp}")
    yield
    e(f"v_and_b32 v{dst_hi}, 0xffff0000, v{tmp}")
    yield

PROFILE = False
WS_PROF = 12 << 20
class Prof:
    def __init__(self, e, kern): self.e = e; self.k = kern; self.n = 0
    def stamp(self):
        if not PROFILE: return
        e = self.e
        import os
        e.raw("s_memtime s[96:97]" if os.environ.get("CLK") == "cyc" else "s_memrealtime s[96:97]")
        e.raw("s_waitcnt lgkmcnt(0)"); e.lg_done = e.lg_issued
        e.raw(f"s_mov_b32 s{80+self.n}, s96"); self.n += 1
        assert self.n <= ((6 if not os.environ.get('NOPF') else 12) if self.k == 0 else 12)
    def dump(self, srd_ws, wave_s):
        if not PROFILE: return
        e = self.e
        e(f"s_lshl_b32 s96, s2, 3"); e(f"s_add_u32 s96, s96, s{wave_s}"); e("s_lshl_b32 s96, s96, 6")
        e(f"s_add_u32 s96, s96, {WS_PROF + self.k*256*8*64}")
        for i in range(16):
            e(f"v_mov_b32 v{200+i}, s{80+i}" if i < self.n else f"v_mov_b32 v{200+i}, 0")
        e("v_mov_b32 v216, 0")
        e("s_mov_b64 exec, 1")
        for q in range(4):
            e(f"buffer_store_dwordx4 v[{200+4*q}:{203+4*q}], v216, s[{srd_ws}:{srd_ws+3}], s96 offen offset:{16*q}")
        e("s_waitcnt vmcnt(0)")

def pull(gen, n):
    if gen is None: return None
    for _ in range(n):
        try: next(gen)
        except StopIteration: return None
    return gen
def drain(gen):
    if gen is None: return
    for _ in gen: pass

K2_R = 9
K2_STAGE = 16384
K2RA = int(os.environ.get("K2RA", "5"))
EARLY_B = int(os.environ.get("EARLY_B", "12"))
EARLY_B1 = int(os.environ.get("EARLY_B1", "9"))
def gen_k2(e, fused=False):
    global K2_R
    RA = K2RA if fused else K2_R
    RB = (20 - RA) if fused else K2_R
    if not fused: RA, RB = 9, 9
    def baseB(t): return (t % RB) * 8192
    def baseA(t): return RB * 8192 + (t % RA) * 8192
    if not fused:
        e.raw("k2_kernel:")
        e("s_cmp_ge_u32 s2, 224")
        e("s_cbranch_scc1 K2_END")
    else:
        e("s_setprio 0")
        e("s_lshl_b32 s76, s52, 7")
        e(f"s_add_u32 s76, s76, {WS_DONE}")
        e("s_lshl_b32 s79, s53, 2")
        e("s_and_b32 s71, s51, 3")
        e("s_cmp_ge_u32 s53, 7")
        e("s_cselect_b32 s49, 1, 0")
        e("s_cselect_b32 s50, 7, 0")
        e("s_sub_u32 s50, s53, s50")
        e("s_lshl_b32 s51, s52, 1")
        e("s_add_u32 s49, s49, s51")
        e("s_mov_b32 s72, s32"); e("s_mov_b32 s73, s33"); e("s_mov_b32 s74, s34"); e("s_mov_b32 s75, s35")
    e("s_load_dwordx2 s[4:5], s[0:1], 0")
    e("s_load_dwordx2 s[6:7], s[0:1], 40")
    e("s_load_dwordx2 s[8:9], s[0:1], 48")
    e("s_load_dwordx2 s[10:11], s[0:1], 64")
    e("s_load_dwordx2 s[12:13], s[0:1], 96")
    e("s_load_dwordx2 s[14:15], s[0:1], 104")
    t = e("s_load_dwordx2 s[16:17], s[0:1], 120")
    if not fused:
        e("v_lshrrev_b32 v1, 6, v0")
        e("v_and_b32 v0, 63, v0")
        e("v_readfirstlane_b32 s48, v1")
        e("s_and_b32 s49, s2, 7")
        e("s_lshl_b32 s49, s49, 2")
        e("s_lshr_b32 s50, s2, 3")
        e("s_and_b32 s51, s50, 3")
        e("s_mov_b32 s71, s51")
        e("s_add_u32 s49, s49, s51")
        e("s_lshr_b32 s50, s50, 2")
    e.wait(t)
    srd(e, 20, 4, 2048*448*2)
    srd(e, 24, 6, 448*448*2)
    srd(e, 28, 8, 448*448*2)
    srd(e, 32, 10, 448*2)
    srd(e, 36, 12, 1792*448*2)
    srd(e, 40, 14, 2048*448*4)
    srd(e, 44, 16, WS_END if not PROFILE else (16 << 20))
    if fused:
        e.raw("s_waitcnt vmcnt(2) lgkmcnt(0)")
        e("s_barrier")
        lab = e.label("F_NOADD")
        e("s_cmp_lg_u32 s48, 0")
        e(f"s_cbranch_scc1 {lab}")
        e("v_mov_b32 v2, s79")
        e("v_mov_b32 v3, s98")
        e("s_mov_b64 exec, 1")
        e("buffer_store_dword v3, v2, s[72:75], s76 offen sc1")
        e("s_mov_b64 exec, -1")
        e.raw(f"{lab}:")
        e.lg_issued = e.lg_done = 0; e.vm_issued = e.vm_done = 0
    pr = Prof(e, 1); pr.stamp()
    e("s_cmp_ge_u32 s48, 4")
    e("s_cbranch_scc1 K2_LOADER")
    e("s_and_b32 s52, s48, 1")
    e("s_lshr_b32 s53, s48, 1")
    e("v_and_b32 v1, 31, v0")
    e("v_lshrrev_b32 v2, 5, v0")
    e("v_and_b32 v3, 15, v0")
    e("v_lshrrev_b32 v4, 4, v0")
    e("s_lshl_b32 s54, s49, 6")
    e("s_lshl_b32 s55, s52, 5")
    e("s_add_u32 s54, s54, s55")
    e("v_add_u32 v5, s54, v1")
    e("s_lshl_b32 s55, s50, 6")
    e("s_lshl_b32 s56, s53, 5")
    e("s_add_u32 s55, s55, s56")
    e("v_lshlrev_b32 v6, 2, v2")
    e("v_add_u32 v6, s55, v6")
    e("s_movk_i32 s57, 896")
    e("v_mul_lo_u32 v7, s57, v5")
    e("v_lshlrev_b32 v8, 1, v6")
    e("v_add_u32 v7, v7, v8")
    e("v_lshlrev_b32 v9, 4, v5")
    e(f"v_add_u32 v9, {WS_STAT}, v9")
    e("v_lshlrev_b32 v10, 1, v7")
    XR, DK, ST = 16, 24, 192
    toks = []
    for a in range(4): toks.append(e(f"buffer_load_dwordx2 v[{XR+2*a}:{XR+2*a+1}], v7, s[20:23], 0 offen offset:{16*a}"))
    for a in range(4): toks.append(e(f"buffer_load_dwordx2 v[{DK+2*a}:{DK+2*a+1}], v8, s[32:35], 0 offen offset:{16*a}"))
    toks.append(e(f"buffer_load_dwordx4 v[{ST}:{ST+3}], v9, s[44:47], 0 offen" + (" sc1" if fused else "")))
    epi_toks = toks
    e("s_lshl_b32 s57, s52, 12")
    e("v_lshlrev_b32 v11, 4, v0")
    e("v_add_u32 v11, s57, v11")
    e("v_lshrrev_b32 v13, 2, v3")
    e("v_lshl_add_u32 v13, v2, 2, v13")
    e("v_lshlrev_b32 v12, 7, v13")
    e("v_and_b32 v13, 1, v4")
    e("s_lshl_b32 s57, s53, 1")
    e("v_add_u32 v13, s57, v13")
    e("v_lshrrev_b32 v14, 3, v3")
    e("v_lshlrev_b32 v14, 1, v14")
    e("v_xor_b32 v13, v13, v14")
    e("v_lshl_add_u32 v12, v13, 5, v12")
    e("v_and_b32 v13, 3, v3")
    e("v_lshl_add_u32 v12, v13, 3, v12")
    e("s_lshl_b32 s57, s53, 5")
    e("v_add_u32 v13, s57, v1")
    e("v_lshlrev_b32 v13, 7, v13")
    e("v_lshrrev_b32 v14, 1, v1")
    e("v_and_b32 v14, 7, v14")
    e("v_xor_b32 v14, v14, v2")
    e("v_lshl_add_u32 v13, v14, 4, v13")
    PH, PW, PC = 11, 12, 13
    TH, TW = 14, 15
    ACCO, ACCY = 64, 80
    FR = 96
    XF, SK, G = 34, 160, 176
    T0 = 50
    def hfrag(set_, kk): return FR + set_*32 + kk*8
    def wfrag(set_, kk): return FR + set_*32 + kk*8 + 4

    def pre_epi():
        e.wait(epi_toks)
        yield
        e(f"v_rcp_f32 v{T0}, v{ST+2}")
        yield
        for p in range(8):
            xa, xb = XF+2*p, XF+2*p+1
            e(f"v_lshlrev_b32 v{xa}, 16, v{XR+p}"); yield
            e(f"v_and_b32 v{xb}, 0xffff0000, v{XR+p}"); yield
            e(f"v_sub_f32 v{T0+1}, v{xa}, v{ST}"); yield
            e(f"v_sub_f32 v{T0+2}, v{xb}, v{ST}"); yield
            yield from bf16_round_pair(e, T0+1, T0+2, T0+1, T0+2, T0+3)
            e(f"v_mul_f32 v{T0+1}, v{T0+1}, v{T0}"); yield
            e(f"v_mul_f32 v{T0+2}, v{T0+2}, v{T0}"); yield
            yield from bf16_round_pair(e, T0+1, T0+2, T0+1, T0+2, T0+3)
            e(f"v_lshlrev_b32 v{T0+4}, 16, v{DK+p}"); yield
            e(f"v_and_b32 v{T0+5}, 0xffff0000, v{DK+p}"); yield
            e(f"v_mul_f32 v{T0+1}, v{T0+1}, v{T0+4}"); yield
            e(f"v_mul_f32 v{T0+2}, v{T0+2}, v{T0+5}"); yield
            yield from bf16_round_pair(e, SK+2*p, SK+2*p+1, T0+1, T0+2, T0+3)
    def silu_epi():
        for p in range(8):
            a, b = T0+1, T0+2
            yield from bf16_round_pair(e, a, b, ACCO+2*p, ACCO+2*p+1, T0+3)
            e(f"v_mul_f32 v{T0+4}, {f32(-LOG2E)}, v{a}"); yield
            e(f"v_mul_f32 v{T0+5}, {f32(-LOG2E)}, v{b}"); yield
            e(f"v_exp_f32 v{T0+4}, v{T0+4}"); yield
            e(f"v_exp_f32 v{T0+5}, v{T0+5}"); yield
            e(f"v_add_f32 v{T0+4}, 1.0, v{T0+4}"); yield
            e(f"v_add_f32 v{T0+5}, 1.0, v{T0+5}"); yield
            e(f"v_rcp_f32 v{T0+4}, v{T0+4}"); yield
            e(f"v_rcp_f32 v{T0+5}, v{T0+5}"); yield
            e(f"v_mul_f32 v{a}, v{a}, v{T0+4}"); yield
            e(f"v_mul_f32 v{b}, v{b}, v{T0+5}"); yield
            yield from bf16_round_pair(e, G+2*p, G+2*p+1, a, b, T0+3)

    NST = 42
    REGB = fused and os.environ.get("REGB", "0") == "1"
    NREG = int(os.environ.get("NREG", "0")) if fused else 0
    HYB = fused and NREG > 0 and not REGB
    AFL = " sc1" if (fused and os.environ.get("ASC1", "0") == "1") else ""
    def cons_poll_setup():
        e("v_and_b32 v58, 15, v0")
        e("v_min_u32 v58, 13, v58")
        e("v_lshlrev_b32 v58, 2, v58")
    def cons_poll(off):
        top = e.label("F_POLL"); ok = e.label("F_POLLOK")
        c = "s80" if not PROFILE else "s95"
        e(f"s_mov_b32 {c}, 0")
        e.raw(f"{top}:")
        e(f"buffer_load_dword v59, v58, s[44:47], s76 offen offset:{off} sc1")
        e.raw("s_waitcnt vmcnt(0)")
        e("v_cmp_ne_u32 vcc, s98, v59")
        e("s_cmp_eq_u64 vcc, 0")
        e(f"s_cbranch_scc1 {ok}")
        e(f"s_add_u32 {c}, {c}, 1")
        e(f"s_cmp_lt_u32 {c}, 200000")
        e(f"s_cbranch_scc1 {top}")
        e.raw(f"{ok}:")
        e.vm_done = e.vm_issued
    tokA = {}
    if REGB:
        e("v_lshlrev_b32 v61, 4, v0")
        e("s_lshl_b32 s58, s49, 1")
        e("s_add_u32 s58, s58, s52")
        e("s_lshl_b32 s59, s53, 1")
        e("s_mul_i32 s56, s58, 112"); e("s_add_u32 s56, s56, s59"); e("s_lshl_b32 s56, s56, 10")
        e("s_mul_i32 s57, s58, 56"); e("s_add_u32 s57, s57, s59"); e("s_lshl_b32 s57, s57, 10"); e(f"s_add_u32 s57, s57, {WS_hF}")
        e("s_lshl_b32 s60, s52, 2"); e("s_add_u32 s60, s60, s59"); e("s_lshl_b32 s60, s60, 10")
        e("s_mul_i32 s65, s71, 7"); e("s_lshl_b32 s68, s50, 2"); e("s_add_u32 s65, s65, s68")
        e("s_cmp_ge_u32 s65, 28"); e("s_cselect_b32 s68, 28, 0"); e("s_sub_u32 s65, s65, s68")
        e("s_lshl_b32 s66, s71, 1"); e("s_add_u32 s66, s66, s50")
        e("s_cmp_ge_u32 s66, 7"); e("s_cselect_b32 s68, 7, 0"); e("s_sub_u32 s66, s66, s68")
        def c_issueA(t):
            base = baseA(t)
            if t < 28:
                e("s_lshl_b32 s69, s65, 12"); e("s_add_u32 s69, s69, s56")
            else:
                e("s_lshl_b32 s69, s66, 13"); e("s_add_u32 s69, s69, s57")
                if (t - 28) & 1: e("s_add_u32 s69, s69, 4096")
            for a in range(2):
                e(f"s_add_u32 m0, s60, {base + a*1024}")
                if a: e("s_add_u32 s69, s69, 1024")
                tok = e(f"buffer_load_dwordx4 v61, s[44:47], s69 offen{AFL} lds")
            if t < 28:
                e("s_add_u32 s65, s65, 1"); e("s_cmp_eq_u32 s65, 28"); e("s_cselect_b32 s65, 0, s65")
            elif (t - 28) & 1:
                e("s_add_u32 s66, s66, 1"); e("s_cmp_eq_u32 s66, 7"); e("s_cselect_b32 s66, 0, s66")
            tokA[t] = tok
        drain(pre_epi())
        cons_poll_setup()
        cons_poll(0)
        for t in range(RA - 2): c_issueA(t)
        nA = RA - 2
        fill = None
    else:
        fill = pre_epi()
        if HYB:
            cons_poll_setup()
            lab = e.label("F_GO")
            e("s_cmp_lg_u32 s48, 0")
            e(f"s_cbranch_scc1 {lab}")
            e.cond_begin(); cons_poll(0); e.cond_end()
            e.raw(f"{lab}:")
            e("s_barrier")
    first = {ACCO: True, ACCY: True}
    rtok = {}
    def mfmas(t):
        acc = ACCO if t < 28 else ACCY
        for kk in range(4):
            e.wait(rtok[(t, kk)])
            c = "0" if first[acc] else f"v[{acc}:{acc+15}]"
            first[acc] = False
            e(f"v_mfma_f32_32x32x16_bf16 v[{acc}:{acc+15}], v[{wfrag(t&1,kk)}:{wfrag(t&1,kk)+3}], v[{hfrag(t&1,kk)}:{hfrag(t&1,kk)+3}], {c}")
            yield
    for t in range(NST + 1):
        if t < NST:
            if fused and t == 3 and not REGB: e.raw("s_waitcnt vmcnt(0)"); e.vm_done = e.vm_issued
            if REGB: e.wait(tokA[t])
            e("s_barrier")
            if fused and t == 3:
                lab = e.label("F_NOH")
                e("s_cmp_lg_u32 s48, 0")
                e(f"s_cbranch_scc1 {lab}")
                e.cond_begin()
                e("v_mov_b32 v56, s79")
                e("v_mov_b32 v57, s98")
                e("s_mov_b64 exec, 1")
                e("buffer_store_dword v57, v56, s[72:75], s76 offen offset:64 sc1")
                e("s_mov_b64 exec, -1")
                e.cond_end()
                e.raw(f"{lab}:")
            if t in (0, 1, 8, 16, 28, 41): pr.stamp()
            if REGB and nA < NST and nA <= t + RA - 2:
                if nA == 25: cptok = e("buffer_load_dword v59, v58, s[44:47], s76 offen offset:64 sc1")
                if nA == 28:
                    ok = e.label("F_PCOK")
                    e.wait(cptok)
                    e("v_cmp_ne_u32 vcc, s98, v59"); e("s_cmp_eq_u64 vcc, 0"); e(f"s_cbranch_scc1 {ok}")
                    e.cond_begin(); cons_poll(64); e.cond_end()
                    e.raw(f"{ok}:")
                c_issueA(nA); nA += 1
            e(f"v_add_u32 v{TH}, {baseA(t)}, v{PH}")
            if t < 28: e(f"v_add_u32 v{TW}, {baseB(t)}, v{PW}")
            else:      e(f"v_add_u32 v{TW}, {baseB(t)}, v{PC}")
        mf = mfmas(t-1) if t >= 1 else None
        for kk in range(4):
            if t < NST:
                if mf is not None: mf = pull(mf, 1)
                tk_ = [e(f"ds_read_b128 v[{hfrag(t&1,kk)}:{hfrag(t&1,kk)+3}], v{TH} offset:{kk*1024}")]
                w = wfrag(t&1,kk)
                if t < 28:
                    tk_.append(e(f"ds_read_b64_tr_b16 v[{w}:{w+1}], v{TW} offset:{kk*2048}"))
                    tk_.append(e(f"ds_read_b64_tr_b16 v[{w+2}:{w+3}], v{TW} offset:{kk*2048+1024}"))
                else:
                    if kk == 0: tk_.append(e(f"ds_read_b128 v[{w}:{w+3}], v{TW}"))
                    else:
                        e(f"v_xor_b32 v{T0+8}, {kk<<5}, v{TW}")
                        tk_.append(e(f"ds_read_b128 v[{w}:{w+3}], v{T0+8}"))
                rtok[(t, kk)] = tk_
            elif mf is not None: mf = pull(mf, 1)
            fill = pull(fill, 6 if not REGB else 3)
        if t == 29:
            drain(fill); fill = silu_epi()
        if t < NST and not REGB: e.wait_all(vm=False, lg=True)
    drain(fill)
    for i in range(16):
        e(f"v_add_f32 v{SK+i}, v{ACCY+i}, v{SK+i}")
    for i in range(16):
        e(f"v_fma_f32 v{SK+i}, v{SK+i}, v{G+i}, v{XF+i}")
    for a in range(4):
        e(f"buffer_store_dwordx4 v[{SK+4*a}:{SK+4*a+3}], v10, s[40:43], 0 offen offset:{32*a}" + os.environ.get("OUTF", ""))
    pr.stamp()
    if PROFILE: e("s_waitcnt vmcnt(0)")
    pr.stamp()
    pr.dump(44, 48)
    e("s_endpgm")
    e2 = e
    e.raw("K2_LOADER:")
    e.lg_issued = e.lg_done = 0; e.vm_issued = e.vm_done = 0
    e("s_sub_u32 s52, s48, 4")
    e("s_and_b32 s53, s52, 1")
    e("s_lshr_b32 s54, s52, 1")
    e("v_lshlrev_b32 v1, 4, v0")
    e("v_lshrrev_b32 v2, 3, v0")
    e("s_lshl_b32 s55, s52, 4")
    e("v_add_u32 v2, s55, v2")
    e("s_movk_i32 s55, 896")
    e("v_mul_lo_u32 v2, s55, v2")
    e("v_and_b32 v3, 7, v0")
    e("v_lshrrev_b32 v4, 4, v0")
    e("v_and_b32 v5, 1, v4")
    e("v_lshlrev_b32 v5, 2, v5")
    e("v_xor_b32 v5, v5, v3")
    e("v_lshl_add_u32 v5, v5, 4, v2")
    e("v_xor_b32 v6, v4, v3")
    e("v_lshl_add_u32 v6, v6, 4, v2")
    e("v_add_u32 v7, 4, v4")
    e("v_xor_b32 v7, v7, v3")
    e("v_lshl_add_u32 v7, v7, 4, v2")
    e(f"v_add_u32 v7, {8*896}, v7")
    e("s_lshl_b32 s58, s49, 1")
    e("s_add_u32 s58, s58, s53")
    e("s_lshl_b32 s59, s54, 1")
    e("s_mul_i32 s56, s58, 112")
    e("s_add_u32 s56, s56, s59")
    e("s_lshl_b32 s56, s56, 10")
    if WS_HF: e(f"s_add_u32 s56, s56, {WS_HF}")
    e("s_mul_i32 s57, s58, 56")
    e("s_add_u32 s57, s57, s59")
    e("s_lshl_b32 s57, s57, 10")
    e(f"s_add_u32 s57, s57, {WS_hF}")
    e("s_lshl_b32 s60, s53, 2")
    e("s_add_u32 s60, s60, s59")
    e("s_lshl_b32 s60, s60, 10")
    e("s_lshl_b32 s61, s52, 11")
    e("s_lshl_b32 s62, s50, 7")
    e(f"s_mul_i32 s63, s50, {64*896}")
    if REGB:
        assert EARLY_B == 12
        e("s_mul_i32 s77, s71, 7"); e("s_lshl_b32 s68, s50, 2"); e("s_add_u32 s77, s77, s68")
        e("s_cmp_ge_u32 s77, 28"); e("s_cselect_b32 s68, 28, 0"); e("s_sub_u32 s77, s77, s68")
        e(f"s_add_u32 s77, s77, {EARLY_B}"); e("s_cmp_ge_u32 s77, 28"); e("s_cselect_b32 s68, 28, 0"); e("s_sub_u32 s77, s77, s68")
        e("s_lshl_b32 s78, s71, 1"); e("s_add_u32 s78, s78, s50")
        e("s_cmp_ge_u32 s78, 7"); e("s_cselect_b32 s68, 7, 0"); e("s_sub_u32 s78, s78, s68")
        def breg(t): return 16 + 8*(t - EARLY_B)
        tokR = {}
        def bload(t):
            part = (t - 28) & 1
            if t < 28:
                e(f"s_mul_i32 s70, s77, {64*896}"); e("s_add_u32 s70, s70, s62")
            else:
                e("s_lshl_b32 s70, s78, 7"); e("s_add_u32 s70, s70, s63")
            for a in range(2):
                r = breg(t) + 4*a
                if t < 28:
                    if a: e("s_add_u32 s70, s70, 7168")
                    tokR[t] = e(f"buffer_load_dwordx4 v[{r}:{r+3}], v5, s[36:39], s70 offen")
                else:
                    tokR[t] = e(f"buffer_load_dwordx4 v[{r}:{r+3}], v{6+a}, s[{24+4*part}:{27+4*part}], s70 offen")
            if t < 28:
                e("s_add_u32 s77, s77, 1"); e("s_cmp_eq_u32 s77, 28"); e("s_cselect_b32 s77, 0, s77")
            elif part:
                e("s_add_u32 s78, s78, 1"); e("s_cmp_eq_u32 s78, 7"); e("s_cselect_b32 s78, 0, s78")
        NINIT = int(os.environ.get("BINIT", "28"))
        nL = EARLY_B
        while nL < NINIT: bload(nL); nL += 1
        e("v_add_u32 v1, s61, v1")
        def bwrite(t):
            e.wait(tokR[t])
            base = baseB(t)
            e(f"v_add_u32 v2, {base}, v1")
            e(f"ds_write_b128 v2, v[{breg(t)}:{breg(t)+3}]")
            e(f"ds_write_b128 v2, v[{breg(t)+4}:{breg(t)+7}] offset:1024")
        pr = Prof(e, 1); pr.n = 1
        pr.stamp()
        for t in range(EARLY_B, RB - 2): bwrite(t)
        for t in range(NST):
            e.wait_all(vm=False, lg=True)
            if t in (0, 1, 8, 16, 28, 41): pr.stamp()
            e("s_barrier")
            if nL < NST and t >= int(os.environ.get("BSTART", "2")): bload(nL); nL += 1
            s_ = t + RB - 2
            if EARLY_B <= s_ < NST and s_ >= RB - 2: bwrite(s_)
        pr.dump(44, 48)
        e.raw("K2_END:")
        e("s_endpgm")
        return
    if os.environ.get("K2ROT", "1") == "1":
        e("s_mul_i32 s65, s71, 7")
        e("s_lshl_b32 s68, s50, 2")
        e("s_add_u32 s65, s65, s68")
        e("s_cmp_ge_u32 s65, 28")
        e("s_cselect_b32 s68, 28, 0")
        e("s_sub_u32 s65, s65, s68")
        e("s_lshl_b32 s66, s71, 1")
        e("s_add_u32 s66, s66, s50")
        e("s_cmp_ge_u32 s66, 7")
        e("s_cselect_b32 s68, 7, 0")
        e("s_sub_u32 s66, s66, s68")
    else:
        e("s_mov_b32 s65, 0"); e("s_mov_b32 s66, 0")
    e("s_mov_b32 s77, s65"); e("s_mov_b32 s78, s66")
    stage_tok = {}
    AFL = " sc1" if (fused and os.environ.get("ASC1", "0") == "1") else ""
    def adv(t, o, m):
        if t < 28:
            e(f"s_add_u32 s{o}, s{o}, 1"); e(f"s_cmp_eq_u32 s{o}, 28"); e(f"s_cselect_b32 s{o}, 0, s{o}")
        elif (t - 28) & 1:
            e(f"s_add_u32 s{m}, s{m}, 1"); e(f"s_cmp_eq_u32 s{m}, 7"); e(f"s_cselect_b32 s{m}, 0, s{m}")
    def issueA(t):
        base = baseA(t)
        if t < 28:
            e("s_lshl_b32 s69, s65, 12")
            e("s_add_u32 s69, s69, s56")
        else:
            e("s_lshl_b32 s69, s66, 13")
            e("s_add_u32 s69, s69, s57")
            if (t - 28) & 1: e("s_add_u32 s69, s69, 4096")
        for a in range(2):
            e(f"s_add_u32 m0, s60, {base + a*1024}")
            if a: e("s_add_u32 s69, s69, 1024")
            tok = e(f"buffer_load_dwordx4 v1, s[44:47], s69 offen{AFL} lds")
        adv(t, 65, 66)
        return tok
    def issueB(t):
        base = baseB(t)
        part = (t - 28) & 1
        if t < 28:
            e(f"s_mul_i32 s70, s77, {64*896}")
            e("s_add_u32 s70, s70, s62")
        else:
            e("s_lshl_b32 s70, s78, 7")
            e("s_add_u32 s70, s70, s63")
        for a in range(2):
            e(f"s_add_u32 m0, s61, {base + a*1024}")
            if t < 28:
                if a: e("s_add_u32 s70, s70, 7168")
                tok = e("buffer_load_dwordx4 v5, s[36:39], s70 offen lds")
            else:
                tok = e(f"buffer_load_dwordx4 v{6+a}, s[{24+4*part}:{27+4*part}], s70 offen lds")
        adv(t, 77, 78)
        return tok
    def poll(off):
        top = e.label("F_POLL"); ok = e.label("F_POLLOK")
        e("v_and_b32 v8, 15, v0")
        e("v_min_u32 v8, 13, v8")
        e("v_lshlrev_b32 v8, 2, v8")
        e("s_mov_b32 s80, 0" if not PROFILE else "s_mov_b32 s95, 0")
        c = "s80" if not PROFILE else "s95"
        e.raw(f"{top}:")
        e(f"buffer_load_dword v9, v8, s[44:47], s76 offen offset:{off} sc1")
        e.raw("s_waitcnt vmcnt(0)")
        e("v_cmp_ne_u32 vcc, s98, v9")
        e("s_cmp_eq_u64 vcc, 0")
        e(f"s_cbranch_scc1 {ok}")
        e(f"s_add_u32 {c}, {c}, 1")
        e(f"s_cmp_lt_u32 {c}, 200000")
        e(f"s_cbranch_scc1 {top}")
        e.raw(f"{ok}:")
        e.vm_done = e.vm_issued
    def poll_issue(off):
        return e(f"buffer_load_dword v9, v8, s[44:47], s76 offen offset:{off} sc1")
    def poll_check(tok, off):
        ok = e.label("F_PCOK")
        e.wait(tok)
        e("v_cmp_ne_u32 vcc, s98, v9")
        e("s_cmp_eq_u64 vcc, 0")
        e(f"s_cbranch_scc1 {ok}")
        e.cond_begin()
        poll(off)
        e.cond_end()
        e.raw(f"{ok}:")
    pr = Prof(e, 1); pr.n = 1
    PRO = int(os.environ.get("K2PRO", "2"))
    tokA = {}; tokB = {}
    nA = 0; nB = 0
    if fused:
        for t in range(EARLY_B):
            tokB[t] = None; nB += 1; adv(t, 77, 78)
        if EARLY_B == 0:
            for t in range(RB - 1): tokB[t] = issueB(t); nB += 1
        if HYB:
            assert EARLY_B + NREG <= 28
            e("v_and_b32 v8, 15, v0"); e("v_min_u32 v8, 13, v8"); e("v_lshlrev_b32 v8, 2, v8")
            tokR = {}
            for t in range(EARLY_B, EARLY_B + NREG):
                e(f"s_mul_i32 s70, s77, {64*896}"); e("s_add_u32 s70, s70, s62")
                for a in range(2):
                    r = 16 + 8*(t - EARLY_B) + 4*a
                    if a: e("s_add_u32 s70, s70, 7168")
                    tokR[t] = e(f"buffer_load_dwordx4 v[{r}:{r+3}], v5, s[36:39], s70 offen")
                adv(t, 77, 78)
            e("v_add_u32 v10, s61, v1")
            e("s_barrier")
        else:
            poll(0)
        for t in range(PRO): tokA[t] = issueA(t); nA += 1
    else:
        for t in range(PRO):
            tokA[t] = issueA(t); tokB[t] = issueB(t); nA += 1; nB += 1
    pr.stamp()
    ptok = None
    for t in range(NST):
        e.wait(tokA[t], tokB[t])
        if HYB: e.wait_all(vm=False, lg=True) if e.lg_done < e.lg_issued else None
        if t in (0, 1, 8, 16, 28, 41): pr.stamp()
        e("s_barrier")
        k = 0
        while k < 2:
            did = False
            if nA < NST and nA <= t + RA - 1:
                if fused and nA == 24: ptok = poll_issue(64)
                if fused and nA == 28: poll_check(ptok, 64)
                tokA[nA] = issueA(nA); nA += 1; did = True
            if nB < NST and nB <= t + RB - 1 and nB <= nA + RB:
                if HYB and EARLY_B <= nB < EARLY_B + NREG:
                    e.wait(tokR[nB])
                    r = 16 + 8*(nB - EARLY_B)
                    e(f"v_add_u32 v11, {baseB(nB)}, v10")
                    e(f"ds_write_b128 v11, v[{r}:{r+3}]")
                    e(f"ds_write_b128 v11, v[{r+4}:{r+7}] offset:1024")
                    tokB[nB] = None
                else:
                    tokB[nB] = issueB(nB)
                nB += 1; did = True
            if not did: break
            k += 1
        assert nA > t + 1 or nA == NST or True
    pr.dump(44, 48)
    e.raw("K2_END:")
    e("s_endpgm")

def kd(name, vgpr, sgpr=102):
    acc = (vgpr + 3)//4*4
    return f""".amdhsa_kernel {name}
  .amdhsa_next_free_vgpr {vgpr}
  .amdhsa_next_free_sgpr {sgpr}
  .amdhsa_accum_offset {acc}
  .amdhsa_group_segment_fixed_size 0
  .amdhsa_kernarg_size 128
  .amdhsa_user_sgpr_count 2
  .amdhsa_user_sgpr_kernarg_segment_ptr 1
  .amdhsa_system_sgpr_workgroup_id_x 1
.end_amdhsa_kernel"""

def main():
    global PROFILE
    which = sys.argv[2] if len(sys.argv) > 2 else "k2"
    if len(sys.argv) > 3 and "prof" in sys.argv[3]: PROFILE = True
    hdr = open(f"cdna_kernels/{NAME}.s.ref").read().split("; Override launch")[0]
    out = [hdr.rstrip()]
    kernels = []
    fused = "fused" in which
    KN = NAME + "_kernel" if fused else "k1_kernel"
    if fused:
        if os.environ.get("PLAIN", "0") == "1": out.append("; @launch grid=(256,1,1) block=(512,1,1) lds=163840")
        else: out.append(f"; @launch kernel={KN} grid=(256,1,1) block=(512,1,1) lds=163840")
    else:
        if "k1" in which:
            out.append("; @launch kernel=k1_kernel grid=(256,1,1) block=(512,1,1) lds=163840")
        if "k2" in which:
            out.append(f"; @launch kernel=k2_kernel grid=(224,1,1) block=(512,1,1) lds={K2_R*K2_STAGE}")
    out.append('.amdgcn_target "amdgcn-amd-amdhsa--gfx950"\n.text')
    kds = []
    if fused:
        import gen_k1b as gen_k1
        gen_k1.G.PROFILE = PROFILE
        e = Emit(); vg = gen_k1.gen_k1(e, fused=True, kname=KN)
        out.append(f".globl {KN}\n.p2align 8\n.type {KN},@function"); out.append(e.finish()); kds.append(kd(KN, vg))
    else:
        if "k1" in which:
            import gen_k1b as gen_k1
            gen_k1.G.PROFILE = PROFILE
            e = Emit(); vg = gen_k1.gen_k1(e)
            out.append(".globl k1_kernel\n.p2align 8\n.type k1_kernel,@function"); out.append(e.finish()); kds.append(kd("k1_kernel", vg))
        if "k2" in which:
            e = Emit(); gen_k2(e)
            out.append(".globl k2_kernel\n.p2align 8\n.type k2_kernel,@function"); out.append(e.finish()); kds.append(kd("k2_kernel", 200 if not PROFILE else 224))
    out.append('.section .rodata,"a"\n.p2align 6')
    out.append("\n.p2align 6\n".join(kds))
    open(sys.argv[1], "w").write("\n".join(out) + "\n")
if __name__ == "__main__": main()
```

```python
import sys, os
sys.path.insert(0, "dev")
from asmlib import *
import gen as G
from gen import *
from k1_common import *
from collections import deque

env = lambda k, d: type(d)(os.environ.get(k, d)) if not isinstance(d, bool) else os.environ.get(k, "1" if d else "0") == "1"
STAMPS = eval(os.environ.get("STAMPS", '[("A",0),("A",27),("B",0),("B",27)]'))
NOEPI = env("NOEPI", False); NODMA = env("NODMA", False)
PRO_DMAS = env("PRO_DMAS", 10); MAP2 = env("MAP2", True); COOP = env("COOP", False); ROT = env("ROT", 1 if not COOP else 0)
CT2 = env("CT2", 1); CT3 = env("CT3", 22); CT4 = env("CT4", 34)
EB_SLOT = env("EB_SLOT", 4); EB_GAP = env("EB_GAP", 6); EBV = 13
PF_GAP = env("PF_GAP", 4); PF_SLOT = env("PF_SLOT", -1); AUX2_SLOT = env("AUX2_SLOT", 6); E_SLOT = env("E_SLOT", 48)
AUX2_FIN = env("AUX2_FIN", 18)
AUX_LOAD = env("AUX_LOAD", 50); AUX_FIN = env("AUX_FIN", 68); PUB_SLOT = env("PUB_SLOT", 11)
BUDGET_A = env("BUDGET_A", 4.0); BUDGET_B = env("BUDGET_B", 5.0); BUDGET_B0 = env("BUDGET_B0", 5.0)

DMAFLAG = os.environ.get("DMAFLAG", "")
if DMAFLAG: DMAFLAG = " " + DMAFLAG
BSW = env("BSW", 30); ECLATE = env("ECLATE", True); ZFIRST = env("ZFIRST", True); TAILST2 = env("TAILST2", False); TAILST = env("TAILST", True); PSTAMP = env("PSTAMP", False); DMA_HURRY = env("DMA_HURRY", 6); RB_LATE = env("RB_LATE", True); RB_SLOT = env("RB_SLOT", 7)
XR, ZR, WR = 0, 49152, 73728
MISC = 139264
M_ST = MISC; M_CS = MISC + 1024; M_SEG = MISC + 2048; M_N = MISC + 3072
M_SD = MISC + 3328; M_CB = MISC + 3840
M_PART = MISC + 3328
M_PB = MISC + 5376
M_TR = MISC + 6656
AX, AZr, AW0, AW1 = 1, 5, 9, 10
VX0, VX1, VZ, VW = 11, 12, 13, 14
LR, LI, CR, CI, L8R, L8I, L128R, L128I, TR, TI = 15, 16, 17, 18, 19, 20, 21, 22, 23, 24
M_, SD, NLR, CSR, CSI, PR, PI, ER, EI = 25, 26, 27, 28, 29, 30, 31, 32, 33
VH = 47

AZ = 48
AG = [64, 80, 96, 112]
XF = 128
FB = 240

def gen_k1(e, fused=False, kname="k1_kernel"):
    STF = os.environ.get("STF", " sc1") if fused else ""
    e.raw(f"{kname}:")
    e("s_cmp_ge_u32 s2, 256")
    e("s_cbranch_scc1 K1_END")
    if env("CODEPF", False): e("s_getpc_b64 s[84:85]")
    e.raw("K1_CODE_FIRST:")
    e("s_load_dwordx2 s[4:5], s[0:1], 0")
    e("s_load_dwordx2 s[6:7], s[0:1], 8")
    e("s_load_dwordx2 s[8:9], s[0:1], 24")
    e("s_load_dwordx2 s[10:11], s[0:1], 32")
    e("s_load_dwordx2 s[12:13], s[0:1], 80")
    e("s_load_dwordx2 s[14:15], s[0:1], 88")
    e("s_load_dwordx2 s[16:17], s[0:1], 112")
    e("s_load_dwordx2 s[18:19], s[0:1], 120")
    e("s_load_dwordx2 s[62:63], s[0:1], 16")
    e("s_load_dwordx2 s[86:87], s[0:1], 96")
    e("s_load_dwordx2 s[88:89], s[0:1], 40")
    e("s_load_dwordx2 s[90:91], s[0:1], 48")
    t = e("s_load_dwordx2 s[64:65], s[0:1], 56")
    e("v_lshrrev_b32 v1, 6, v0")
    e("v_and_b32 v0, 63, v0")
    e("v_readfirstlane_b32 s48, v1")
    e("s_sub_u32 s49, s2, 32")
    e("s_and_b32 s50, s49, 7")
    e("s_lshr_b32 s51, s49, 3")
    if MAP2:
        e("s_mul_i32 s54, s51, 37")
        e("s_lshr_b32 s54, s54, 8")
        e("s_mul_i32 s53, s54, 7")
        e("s_sub_u32 s55, s51, s53")
        e("s_and_b32 s52, s50, 3")
        e("s_lshl_b32 s53, s54, 2")
        e("s_add_u32 s52, s52, s53")
        e("s_lshl_b32 s51, s55, 2")
        e("s_add_u32 s51, s51, s54")
        e("s_lshr_b32 s53, s50, 2")
        e("s_mul_i32 s53, s53, 7")
        e("s_add_u32 s53, s53, s55")
    else:
        e("s_and_b32 s52, s50, 3")
        e("s_lshl_b32 s52, s52, 2")
        e("s_and_b32 s53, s51, 3")
        e("s_add_u32 s52, s52, s53")
        e("s_lshr_b32 s53, s50, 2")
        e("s_mul_i32 s53, s53, 7")
        e("s_lshr_b32 s54, s51, 2")
        e("s_add_u32 s53, s53, s54")
    e("s_and_b32 s54, s48, 3")
    e("s_lshr_b32 s55, s48, 2")
    e("v_lshrrev_b32 v40, 3, v0")
    e("v_and_b32 v41, 7, v0")
    e("v_lshrrev_b32 v42, 4, v0")
    e("s_movk_i32 s56, 896")
    e("s_lshl_b32 s57, s48, 4")
    e("v_add_u32 v43, s57, v40")
    e("v_mul_lo_u32 v43, s56, v43")
    e("v_xor_b32 v44, v41, v42")
    e(f"v_lshl_add_u32 v{VX0}, v44, 4, v43")
    e("v_add_u32 v44, 4, v42")
    e("v_xor_b32 v44, v41, v44")
    e(f"v_lshl_add_u32 v{VX1}, v44, 4, v43")
    e(f"v_add_u32 v{VX1}, {8*896}, v{VX1}")
    e("s_lshl_b32 s57, s54, 3")
    e("v_add_u32 v43, s57, v40")
    e("v_mul_lo_u32 v43, s56, v43")
    e("s_and_b32 s57, s48, 1")
    e("s_lshl_b32 s57, s57, 2")
    e("v_add_u32 v44, s57, v42")
    e("v_xor_b32 v44, v41, v44")
    e(f"v_lshl_add_u32 v{VZ}, v44, 4, v43")
    e("s_lshl_b32 s57, s54, 3")
    e("v_add_u32 v43, s57, v40")
    e("s_movk_i32 s56, 3584")
    e("v_mul_lo_u32 v43, s56, v43")
    e("v_and_b32 v44, 1, v42")
    e("s_lshl_b32 s57, s55, 1")
    e("v_add_u32 v44, s57, v44")
    e("v_lshlrev_b32 v44, 1, v44")
    e("v_xor_b32 v44, v41, v44")
    e(f"v_lshl_add_u32 v{VW}, v44, 4, v43")
    e(f"s_mul_i32 s66, s52, {128*896}")
    e(f"s_mul_i32 s67, s53, {32*896}")
    e("s_lshl_b32 s72, s53, 8")
    e("s_lshl_b32 s73, s48, 11")
    e("s_lshl_b32 s74, s48, 10")
    e(f"s_add_u32 s74, s74, {ZR}")
    e("s_lshl_b32 s75, s55, 13")
    e("s_lshl_b32 s76, s54, 10")
    e("s_add_u32 s75, s75, s76")
    e(f"s_add_u32 s75, s75, {WR}")
    e.wait(t)
    e("s_cmp_lt_u32 s2, 32")
    e("s_cbranch_scc1 K1_HELPER")
    srd(e, 20, 4, 2048*448*2)
    if ROT == 1:
        e("s_and_b32 s56, s51, 3")
        e("s_lshl_b32 s56, s56, 1")
        e("s_lshr_b32 s57, s51, 2")
        e("s_add_u32 s56, s56, s57")
        e("s_cmp_ge_u32 s56, 7")
        e("s_cselect_b32 s57, 7, 0")
        e("s_sub_u32 s77, s56, s57")
    else:
        e("s_mov_b32 s77, 0")
    e("s_mov_b32 s76, s77")
    e("s_lshl_b32 s4, s76, 7")
    e("s_add_u32 s4, s4, s66")
    e("s_sub_u32 s67, s67, s66")
    ent_tok = {}
    dmaq = deque()
    def entry_dmas(kind, kc):
        def mk(a, last):
            def f():
                if NODMA:
                    if last: ent_tok[(kind, kc)] = None
                    return
                if kind == "X":
                    e(f"s_add_u32 m0, s73, {XR + (kc%3)*16384 + a*1024}")
                    tok = e(f"buffer_load_dwordx4 v{VX0+a}, s[20:23], s{4+kc} offen{DMAFLAG} lds")
                elif kind == "Z":
                    e(f"s_add_u32 m0, s74, {(kc%3)*8192}")
                    e(f"s_add_u32 s77, s67, s{4+kc}")
                    tok = e(f"buffer_load_dwordx4 v{VZ}, s[24:27], s77 offen{DMAFLAG} lds")
                else:
                    ch = kc % 7; colb = 0 if kc < 7 else 128
                    e(f"s_add_u32 m0, s75, {(kc%4)*16384 + a*4096}")
                    e(f"s_add_u32 s77, s{11+ch}, {32*a*3584 + colb}")
                    tok = e(f"buffer_load_dwordx4 v{VW}, s[28:31], s77 offen{DMAFLAG} lds")
                if last: ent_tok[(kind, kc)] = tok
            return f
        n = 1 if kind == "Z" else 2
        return [mk(a, a == n - 1) for a in range(n)]
    def queue(*ents):
        for (k, kc) in ents:
            for f in entry_dmas(k, kc): dmaq.append(f)
    def bz_w_srds():
        e("s_cmp_eq_u32 s55, 0")
        e("s_cselect_b32 s24, s8, s10")
        e("s_cselect_b32 s25, s9, s11")
        e("s_cselect_b32 s28, s12, s14")
        e("s_cselect_b32 s29, s13, s15")
        e("s_and_b32 s25, s25, 0xffff")
        e(f"s_mov_b32 s26, {448*448*2}")
        e("s_mov_b32 s27, 0x20000")
        e("s_and_b32 s29, s29, 0xffff")
        e(f"s_mov_b32 s30, {448*1792*2}")
        e("s_mov_b32 s31, 0x20000")
    M_PF0 = 162304
    def coop_setup():
        e("s_and_b32 s56, s51, 3")
        e("s_lshr_b32 s57, s51, 2")
        e("s_mov_b32 s64, 0")
        e("s_cmp_eq_u32 s54, 0"); e("s_cselect_b32 s64, 1, s64")
        e("s_cmp_eq_u32 s54, 1"); e("s_cselect_b32 s64, 2, s64")
        e("s_cmp_eq_u32 s48, 2"); e("s_cselect_b32 s64, 3, s64")
        e("s_or_b32 s58, s57, s48"); e("s_cmp_eq_u32 s58, 3")
        e("s_cmp_eq_u32 s48, 3"); e("s_cselect_b32 s58, 0, 1"); e("s_or_b32 s58, s58, s57")
        e("s_cmp_eq_u32 s58, 0"); e("s_cselect_b32 s64, 3, s64"); e("s_cselect_b32 s57, 7, s57")
        e(f"s_mul_i32 s58, s56, {16*3584}"); e("s_add_u32 s58, s58, s72")
        e(f"s_mul_i32 s59, s53, {32*896}"); e(f"s_mul_i32 s61, s56, {8*896}"); e("s_add_u32 s59, s59, s61")
        e(f"s_mul_i32 s61, s57, {16*896}"); e("s_add_u32 s61, s61, s66")
        e("s_cmp_eq_u32 s64, 1"); e("s_cselect_b32 s65, s58, s61")
        e("s_cselect_b32 s88, s28, s20"); e("s_cselect_b32 s89, s29, s21"); e("s_cselect_b32 s90, s30, s22")
        e("s_cmp_eq_u32 s64, 2"); e("s_cselect_b32 s65, s59, s65")
        e("s_cselect_b32 s88, s24, s88"); e("s_cselect_b32 s89, s25, s89"); e("s_cselect_b32 s90, s26, s90")
        e("s_mov_b32 s91, 0x20000")
    def coop_touch(c0, n, colb, wonly, tv):
        lab = e.label("K1_CT")
        if wonly: e("s_cmp_lg_u32 s64, 1")
        else: e("s_cmp_eq_u32 s64, 0")
        e(f"s_cbranch_scc1 {lab}")
        e.cond_begin()
        e("s_cmp_eq_u32 s64, 2")
        e("s_cselect_b32 s58, 7, 15")
        e("s_cselect_b32 s59, 3, 4")
        e(f"v_and_b32 v{tv}, s58, v0")
        e(f"v_lshrrev_b32 v{tv+1}, s59, v0")
        e(f"v_min_u32 v{tv+1}, {n-1}, v{tv+1}")
        e("s_cmp_eq_u32 s64, 1")
        e("s_movk_i32 s58, 896")
        e("s_cselect_b32 s58, 3584, s58")
        e("s_movk_i32 s59, 128")
        e(f"s_cselect_b32 s59, {64*3584}, s59")
        e(f"s_mov_b32 s61, {c0*128}")
        e(f"s_cselect_b32 s61, {c0*64*3584 + colb}, s61")
        e(f"v_mul_lo_u32 v{tv}, s58, v{tv}")
        e(f"v_mul_lo_u32 v{tv+1}, s59, v{tv+1}")
        e("s_add_u32 s61, s61, s65")
        e(f"s_mov_b32 m0, {M_PF0}")
        e(f"v_add_u32 v{tv}, v{tv}, v{tv+1}")
        e(f"buffer_load_dword v{tv}, s[88:91], s61 offen lds")
        e.cond_end()
        e.raw(f"{lab}:")
    srd(e, 68, 64, 896)
    if COOP:
        bz_w_srds()
        coop_setup()
        coop_touch(0, 3, 0, False, 34)
        queue(("X",0))
        for _ in range(2): dmaq.popleft()()
    else:
        queue(("X",0))
        for _ in range(2): dmaq.popleft()()
        bz_w_srds()
    queue(("Z",0))
    dmaq.popleft()()
    srd(e, 40, 6, 896)
    srd(e, 44, 62, 896)
    srd(e, 32, 18, WS_END if not G.PROFILE else (16 << 20))
    srd(e, 36, 16, 256)
    e("s_mov_b32 s60, 0")
    e("s_cmp_lt_u32 s48, 2")
    e("s_cselect_b32 s61, 1, 0")
    e("s_cmp_lt_u32 s53, 8")
    e("s_cselect_b32 s60, s61, 0")
    e("s_cmp_eq_u32 s48, 2")
    e("s_cselect_b32 s61, 2, 0")
    e("s_cmp_lt_u32 s52, 8")
    e("s_cselect_b32 s61, s61, 0")
    e("s_or_b32 s60, s60, s61")
    e("s_lshl_b32 s56, s52, 7")
    e("s_lshl_b32 s57, s53, 4")
    e("s_add_u32 s56, s56, s57")
    e("s_lshl_b32 s57, s48, 3")
    e("s_add_u32 s56, s56, s57")
    e("s_lshl_b32 s57, s53, 5")
    e("s_and_b32 s58, s52, 3")
    e("s_lshl_b32 s58, s58, 3")
    e("s_add_u32 s57, s57, s58")
    e("s_cmp_eq_u32 s60, 2")
    e("s_cselect_b32 s59, s57, s56")
    e("s_cmp_ge_u32 s52, 4")
    e("s_cselect_b32 s92, s10, s8")
    e("s_cselect_b32 s93, s11, s9")
    e("s_cselect_b32 s62, 448, 0")
    e("s_cmp_eq_u32 s60, 2")
    e("s_cselect_b32 s92, s92, s20")
    e("s_cselect_b32 s93, s93, s21")
    e(f"s_mov_b32 s94, {2048*448*2}")
    e(f"s_cselect_b32 s94, {448*448*2}, s94")
    e("s_cselect_b32 s62, s62, 0")
    e("s_and_b32 s93, s93, 0xffff")
    e("s_mov_b32 s95, 0x20000")
    e("s_add_u32 s62, s62, s59")
    e("s_mul_i32 s63, s59, 896")
    e(f"s_mul_i32 s11, s76, {64*3584}")
    e("s_add_u32 s11, s11, s72")
    queue(("W",0))
    for _ in range(2): dmaq.popleft()()
    pr = G.Prof(e, 0); pr.stamp()
    e("v_and_b32 v40, 15, v0")
    e("s_lshl_b32 s56, s53, 5")
    e("s_lshl_b32 s57, s55, 4")
    e("s_add_u32 s78, s56, s57")
    e("v_add_u32 v41, s78, v40")
    e("v_lshlrev_b32 v42, 1, v41")
    tp = [e("buffer_load_ushort v43, v42, s[40:43], 0 offen"),
          e("buffer_load_ushort v44, v42, s[44:47], 0 offen"),
          e("buffer_load_ushort v45, v42, s[68:71], 0 offen")]
    e("v_lshrrev_b32 v34, 3, v0")
    e("v_and_b32 v35, 7, v0")
    e("v_mul_u32_u24 v36, 896, v34")
    e("v_lshl_add_u32 v36, v35, 4, v36")
    RB = 192
    labrb = e.label("K1_NORB")
    e("s_cmp_eq_u32 s60, 0")
    e(f"s_cbranch_scc1 {labrb}")
    e.cond_begin()
    for k in range(7): e(f"buffer_load_dwordx4 v[{RB+4*k}:{RB+4*k+3}], v36, s[92:95], s63 offen offset:{128*k}")
    e.cond_end()
    e.raw(f"{labrb}:")
    def rowbatch_compute():
        lab = e.label("K1_NORC")
        e("s_cmp_eq_u32 s60, 0")
        e(f"s_cbranch_scc1 {lab}")
        e.cond_begin()
        e.raw(f"s_waitcnt vmcnt({min(63, e.vm_issued - vm_at_rb)})")
        e("s_mov_b32 s58, 0x3f803f80")
        e("v_mov_b32 v220, 0"); e("v_mov_b32 v221, 0"); e("v_mov_b32 v222, 0"); e("v_mov_b32 v223, 0")
        for k in range(28):
            e(f"v_dot2c_f32_bf16 v{220 + (k&1)}, s58, v{RB+k}")
            e(f"v_dot2c_f32_bf16 v{222 + (k&1)}, v{RB+k}, v{RB+k}")
        e("s_nop 2")
        e("v_add_f32 v220, v220, v221")
        e("v_add_f32 v221, v222, v223")
        for r_ in (220, 221):
            e(f"v_add_f32_dpp v{r_}, v{r_}, v{r_} quad_perm:[1,0,3,2] row_mask:0xf bank_mask:0xf")
            e(f"v_add_f32_dpp v{r_}, v{r_}, v{r_} quad_perm:[2,3,0,1] row_mask:0xf bank_mask:0xf")
            e(f"v_add_f32_dpp v{r_}, v{r_}, v{r_} row_half_mirror row_mask:0xf bank_mask:0xf")
        e("v_mov_b32 v224, v220")
        e(f"v_mul_f32 v220, {f32(1.0/448)}, v220")
        e(f"v_mul_f32 v221, {f32(1.0/448)}, v221")
        e("v_fma_f32 v221, -v220, v220, v221")
        e("v_max_f32 v221, 0, v221")
        e("v_cvt_pk_bf16_f32 v220, v220, v221")
        e("v_and_b32 v221, 0xffff0000, v220")
        e("v_lshlrev_b32 v220, 16, v220")
        e(f"v_add_f32 v221, {f32(1e-5)}, v221")
        e("v_cvt_pk_bf16_f32 v221, v221, v221")
        e("v_lshlrev_b32 v221, 16, v221")
        e("v_sqrt_f32 v221, v221")
        e("v_cvt_pk_bf16_f32 v221, v221, v221")
        e("v_lshlrev_b32 v221, 16, v221")
        e.cond_end()
        e.raw(f"{lab}:")
    def rowbatch_publish():
        lab = e.label("K1_NORP"); labx = e.label("K1_RPX")
        e("s_cmp_eq_u32 s60, 0")
        e(f"s_cbranch_scc1 {lab}")
        e.cond_begin()
        e("v_lshrrev_b32 v226, 3, v0")
        e("v_add_u32 v226, s62, v226")
        e("v_and_b32 v227, 7, v0")
        e("v_cmp_eq_u32 vcc, 0, v227")
        e("s_and_saveexec_b64 s[58:59], vcc")
        e("s_cmp_eq_u32 s60, 1")
        e(f"s_cbranch_scc1 {labx}")
        e("v_lshlrev_b32 v226, 3, v226")
        e("v_mov_b32 v228, v224"); e("v_mov_b32 v229, s98")
        e(f"s_mov_b32 s61, {WS_CSB}")
        e("buffer_store_dwordx2 v[228:229], v226, s[32:35], s61 offen sc1")
        e("s_mov_b64 exec, s[58:59]")
        e(f"s_branch {lab}")
        e.raw(f"{labx}:")
        e("v_lshlrev_b32 v226, 4, v226")
        e("v_mov_b32 v228, v220"); e("v_mov_b32 v229, s98"); e("v_mov_b32 v230, v221"); e("v_mov_b32 v231, s98")
        e(f"s_mov_b32 s61, {WS_STAT}")
        e("buffer_store_dwordx4 v[228:231], v226, s[32:35], s61 offen sc1")
        e("s_mov_b64 exec, s[58:59]")
        e.cond_end()
        e.raw(f"{lab}:")
    RBWAIT = [0]
    vm_at_rb = e.vm_issued
    def rot_entry(t):
        if ROT == 2 and t == 1:
            e("s_and_b32 s56, s51, 3"); e("s_lshl_b32 s56, s56, 1"); e("s_lshr_b32 s57, s51, 2"); e("s_add_u32 s56, s56, s57")
            e("s_cmp_ge_u32 s56, 6"); e("s_cselect_b32 s57, 6, 0"); e("s_sub_u32 s56, s56, s57")
            e("s_cmp_ge_u32 s56, 6"); e("s_cselect_b32 s57, 6, 0"); e("s_sub_u32 s56, s56, s57")
            e("s_add_u32 s76, s56, 1")
        elif ROT == 2:
            e("s_add_u32 s76, s76, 1"); e("s_cmp_eq_u32 s76, 7"); e("s_cselect_b32 s76, 1, s76")
        else:
            e("s_add_u32 s76, s76, 1")
            e("s_cmp_eq_u32 s76, 7")
            e("s_cselect_b32 s76, 0, s76")
        e(f"s_lshl_b32 s{4+t}, s76, 7")
        e(f"s_mul_i32 s{11+t}, s76, {64*3584}")
        e(f"s_add_u32 s{4+t}, s{4+t}, s66")
        e(f"s_add_u32 s{11+t}, s{11+t}, s72")
    for t in range(1, 7): rot_entry(t)
    queue(("X",1),("Z",1),("W",1),("X",2),("Z",2),("W",2),("W",3))
    for _ in range(max(0, PRO_DMAS - 5)): dmaq.popleft()()
    if PSTAMP: pr.stamp()
    nonce_cas(e, 120)
    def issue_for_tick(tk):
        l = []
        if tk >= 1:
            if tk + 2 < 7: l += [("X", tk+2), ("Z", tk+2)]
            if tk + 3 < 14: l += [("W", tk+3)]
        return l

    e("v_and_b32 v34, 31, v0")
    e("v_lshrrev_b32 v35, 4, v34")
    e("v_bfe_u32 v36, v34, 2, 1")
    e("v_lshl_add_u32 v35, v36, 1, v35")
    e("v_bfe_u32 v36, v34, 3, 1")
    e("v_lshlrev_b32 v35, 3, v35")
    e("v_lshl_add_u32 v35, v36, 2, v35")
    e("v_and_b32 v36, 3, v34")
    e("v_add_u32 v35, v35, v36")
    e("v_lshrrev_b32 v36, 5, v0")
    e(f"v_lshl_add_u32 v{VH}, v36, 5, v35")
    e(f"v_lshlrev_b32 v{VH}, 4, v{VH}")
    e("s_lshl_b32 s56, s54, 5")
    e("v_add_u32 v37, s56, v35")
    e(f"v_lshlrev_b32 v{AX}, 7, v37")
    e("v_bfe_u32 v38, v35, 1, 3")
    e("v_xor_b32 v38, v38, v36")
    e(f"v_lshl_add_u32 v{AX}, v38, 4, v{AX}")
    for kk in range(1, 4): e(f"v_xor_b32 v{AX+kk}, {kk<<5}, v{AX}")
    e("v_bfe_u32 v38, v0, 4, 1")
    e(f"v_lshlrev_b32 v{AZr}, 12, v38")
    e("s_lshl_b32 s56, s55, 4")
    e("v_and_b32 v40, 15, v0")
    e("v_add_u32 v39, s56, v40")
    e(f"v_lshl_add_u32 v{AZr}, v39, 7, v{AZr}")
    e("v_bfe_u32 v39, v40, 1, 3")
    e("v_xor_b32 v39, v39, v36")
    e(f"v_lshl_add_u32 v{AZr}, v39, 4, v{AZr}")
    e(f"v_add_u32 v{AZr}, {ZR}, v{AZr}")
    for kk in range(1, 4): e(f"v_xor_b32 v{AZr+kk}, {kk<<5}, v{AZr}")
    e(f"v_lshlrev_b32 v{AW0}, 13, v38")
    e("v_lshrrev_b32 v39, 2, v40")
    e("v_lshl_add_u32 v39, v36, 3, v39")
    e(f"v_lshl_add_u32 v{AW0}, v39, 7, v{AW0}")
    e("v_lshrrev_b32 v39, 3, v40")
    e("v_lshl_add_u32 v39, v38, 1, v39")
    e("s_lshl_b32 s56, s55, 1")
    e("v_xor_b32 v39, s56, v39")
    e(f"v_lshl_add_u32 v{AW0}, v39, 5, v{AW0}")
    e("v_and_b32 v39, 3, v40")
    e(f"v_lshl_add_u32 v{AW0}, v39, 3, v{AW0}")
    e(f"v_add_u32 v{AW0}, {WR}, v{AW0}")
    e(f"v_xor_b32 v{AW1}, 32, v{AW0}")
    e("s_lshl_b32 s56, s52, 2")
    e("s_add_u32 s56, s56, s54")
    e("s_mul_i32 s56, s56, 112")
    e("s_lshl_b32 s57, s53, 3")
    e("s_add_u32 s56, s56, s57")
    e("s_lshl_b32 s57, s55, 1")
    e("s_add_u32 s56, s56, s57")
    e("s_lshl_b32 s79, s56, 10")
    if WS_HF: e(f"s_add_u32 s79, s79, {WS_HF}")

    def params():
        e.wait(tp); yield
        e("s_bitcmp1_b32 s54, 0"); e("s_cselect_b64 s[40:41], -1, 0")
        e("s_bitcmp1_b32 s54, 1"); e("s_cselect_b64 s[42:43], -1, 0")
        e("s_mov_b32 s44, 0xffff0000"); e("s_mov_b32 s45, 0xffff0000")
        e("s_mov_b32 s46, 0"); e("s_mov_b32 s47, -1")
        e("v_lshlrev_b32 v43, 16, v43"); yield
        e("v_lshlrev_b32 v44, 16, v44"); yield
        e("v_lshlrev_b32 v45, 16, v45"); yield
        e(f"v_mul_f32 v45, {f32(LOG2E)}, v45"); yield
        e("v_exp_f32 v45, v45"); yield
        e("v_cvt_pk_bf16_f32 v45, v45, v45"); yield
        e("v_lshlrev_b32 v45, 16, v45"); yield
        e("v_mul_f32 v34, v45, v43"); yield
        e("v_mul_f32 v35, v45, v44"); yield
        e(f"v_mul_f32 v34, {f32(LOG2E)}, v34"); yield
        e("v_exp_f32 v34, v34"); yield
        e(f"v_mul_f32 v35, {f32(1.0/(2*3.141592653589793))}, v35"); yield
        e("v_fract_f32 v35, v35"); yield
        e("v_cos_f32 v36, v35"); yield
        e("v_sin_f32 v37, v35"); yield
        e(f"v_mul_f32 v{LR}, v34, v36"); yield
        e(f"v_mul_f32 v{LI}, v34, v37"); yield
        e(f"v_add_f32 v36, -1.0, v{LR}"); yield
        e("v_mul_f32 v38, v43, v43"); yield
        e("v_fmac_f32 v38, v44, v44"); yield
        e("v_rcp_f32 v38, v38"); yield
        e("v_mul_f32 v39, v36, v43"); yield
        e(f"v_fmac_f32 v39, v{LI}, v44"); yield
        e(f"v_mul_f32 v34, v{LI}, v43"); yield
        e("v_fma_f32 v34, -v36, v44, v34"); yield
        e("v_add_f32 v38, v38, v38"); yield
        e(f"v_mul_f32 v{CR}, v39, v38"); yield
        e(f"v_mul_f32 v{CI}, v34, v38"); yield
        yield from csq(e, 34, 35, LR, LI, 38)
        yield from csq(e, 36, 37, 34, 35, 38)
        yield from csq(e, L8R, L8I, 36, 37, 38)
        e(f"v_mov_b32 v{TR}, 1.0"); yield
        e(f"v_mov_b32 v{TI}, 0"); yield
        e(f"v_mov_b32 v34, v{L8R}"); yield
        e(f"v_mov_b32 v35, v{L8I}"); yield
        for b, m in enumerate(("s[44:45]", "s[46:47]", "s[40:41]", "s[42:43]")):
            yield from cmul(e, 36, 37, TR, TI, 34, 35, 38)
            e(f"v_cndmask_b32 v{TR}, v{TR}, v36, {m}"); yield
            e(f"v_cndmask_b32 v{TI}, v{TI}, v37, {m}"); yield
            e("v_mov_b32 v41, v34"); yield
            e("v_mov_b32 v42, v35"); yield
            yield from csq(e, 34, 35, 41, 42, 38)
        e(f"v_mov_b32 v{L128R}, v34"); yield
        e(f"v_mov_b32 v{L128I}, v35"); yield

    def zbuf(ks): return 96 + (ks & 1)*4
    def wbufA(ks, tl): return 104 + (ks & 1)*8 + tl*4
    def wbufB(ks, tl): return FB + (ks & 1)*8 + tl*4
    first = {}
    def mfma(acc, a, b):
        c = f"v[{acc}:{acc+15}]" if first.get(acc) else "0"
        first[acc] = True
        e(f"v_mfma_f32_32x32x16_bf16 v[{acc}:{acc+15}], v[{a}:{a+3}], v[{b}:{b+3}], {c}")
    rd_tok = {}
    def read_x(ks):
        kk = ks & 3; kc = ks >> 2
        rd_tok[("x", ks)] = [e(f"ds_read_b128 v[{XF+4*ks}:{XF+4*ks+3}], v{AX+kk} offset:{(kc%3)*16384}")]
    def read_z(ks):
        kk = ks & 3; kc = ks >> 2
        rd_tok[("z", ks)] = [e(f"ds_read_b128 v[{zbuf(ks)}:{zbuf(ks)+3}], v{AZr+kk} offset:{(kc%3)*8192}")]
    def read_w(ph, ks, tl, half):
        kk = ks & 3; w = (ks >> 2) + (0 if ph == "A" else 7)
        b = wbufA(ks, tl) if ph == "A" else wbufB(ks, tl)
        ad = AW0 if tl == 0 else AW1
        off = (w % 4)*16384 + kk*2048
        t = e(f"ds_read_b64_tr_b16 v[{b+2*half}:{b+2*half+1}], v{ad} offset:{off+512*half}")
        rd_tok.setdefault((ph, ks, tl), []).append(t)
    steps = [("A", ks) for ks in range(28)] + [("B", ks) for ks in range(28)]
    def tick_idx(ph, ks): return (ks >> 2) + (0 if ph == "A" else 7)
    def need_ents(tk): return [("X",tk),("Z",tk),("W",tk)] if tk < 7 else [("W",tk)]
    nbar = [0]
    def enter_tick(tk):
        while any(x not in ent_tok for x in need_ents(tk)): dmaq.popleft()()
        e.wait([ent_tok[x] for x in need_ents(tk)])
        if tk == 1: nonce_publish(e, 120, M_N)
        e.wait_all(vm=False)
        e("s_barrier")
        nbar[0] += 1
        if tk == 1: nonce_read(e, 121, M_N)
        queue(*issue_for_tick(tk))

    def main_stream():
        sp = env("SETPRIO", 0)
        if sp:
            lab = e.label("K1_SP")
            e("s_cmp_lt_u32 s48, 4" if sp == 1 else "s_cmp_ge_u32 s48, 4")
            e(f"s_cbranch_scc1 {lab}")
            e("s_setprio 1")
            e.raw(f"{lab}:")
        if not RB_LATE: rowbatch_compute()
        if PSTAMP: pr.stamp()
        enter_tick(0)
        if PSTAMP: pr.stamp()
        read_x(0); read_w("A", 0, 0, 0); read_w("A", 0, 0, 1); read_z(0); read_w("A", 0, 1, 0); read_w("A", 0, 1, 1)
        for n, (ph, ks) in enumerate(steps):
            nx = steps[n+1] if n + 1 < len(steps) else None
            x = XF + 4*ks
            if ph == "A":
                ops = [(AG[0], wbufA(ks,0), x, [("x", ks), (ph, ks, 0)]), (AZ, x, zbuf(ks), [("z", ks)]), (AG[1], wbufA(ks,1), x, [(ph, ks, 1)])]
            else:
                ops = [(AG[2], wbufB(ks,0), x, [(ph, ks, 0)]), (AG[3], wbufB(ks,1), x, [(ph, ks, 1)])]
            for si, (acc, a, b, keys) in enumerate(ops):
                e.wait([rd_tok[k] for k in keys])
                mfma(acc, a, b)
                dma_ok = False
                if nx is not None:
                    ph2, ks2 = nx
                    if si == 0 and (ks2 & 3) == 0: enter_tick(tick_idx(ph2, ks2))
                    if ph2 == "A":
                        if si == 0: read_x(ks2); read_w("A", ks2, 0, 0)
                        elif si == 1: read_w("A", ks2, 0, 1); read_z(ks2)
                        else: read_w("A", ks2, 1, 0); read_w("A", ks2, 1, 1); dma_ok = True
                    elif ph == "A":
                        if si == 0: read_w("B", ks2, 0, 0); read_w("B", ks2, 0, 1)
                        elif si == 1: read_w("B", ks2, 1, 0); read_w("B", ks2, 1, 1)
                        else: dma_ok = True
                    else:
                        read_w("B", ks2, si, 0); read_w("B", ks2, si, 1)
                        dma_ok = (si == 1)
                did = False
                if (dma_ok or (len(dmaq) > DMA_HURRY)) and dmaq:
                    dmaq.popleft()(); did = True
                yield (ph, ks, si, did)

    aux = {}
    def tagcheck(regs):
        e(f"v_xor_b32 v44, s98, v{regs[0]}")
        for r in regs[1:]:
            e(f"v_xor_b32 v45, s98, v{r}")
            e("v_or_b32 v44, v44, v45")
        e("v_cmp_ne_u32 vcc, 0, v44")
        e("s_cmp_eq_u64 vcc, 0")
    AXW1, AXW2 = 3, 4
    def only_wave(w, name):
        lab = e.label(name)
        e(f"s_cmp_lg_u32 s48, {w}")
        e(f"s_cbranch_scc1 {lab}")
        e.cond_begin()
        return lab
    def end_only(lab):
        e.cond_end()
        e.raw(f"{lab}:")
    def aux1_issue_raw():
        e("s_lshl_b32 s61, s52, 11")
        e(f"s_add_u32 s61, s61, {WS_STAT}")
        e("v_lshlrev_b32 v120, 4, v0")
        e("buffer_load_dwordx4 v[36:39], v120, s[32:35], s61 offen sc1")
        e("buffer_load_dwordx4 v[40:43], v120, s[32:35], s61 offen offset:1024 sc1")
        e("v_lshrrev_b32 v121, 5, v0")
        e("v_mul_u32_u24 v121, 448, v121")
        e("v_and_b32 v122, 31, v0")
        e("v_add_u32 v121, v121, v122")
        e("s_lshl_b32 s61, s53, 5")
        e("v_add_u32 v121, s61, v121")
        e("v_lshlrev_b32 v121, 3, v121")
        e(f"s_mov_b32 s61, {WS_CSB}")
        e("buffer_load_dwordx2 v[124:125], v121, s[32:35], s61 offen sc1")
    def aux1_issue():
        lab = only_wave(AXW1, "K1_A1I")
        aux1_issue_raw()
        end_only(lab)
        aux["a1_vm"] = e.vm_issued
    def aux1_finish():
        lab = only_wave(AXW1, "K1_A1F")
        e.raw(f"s_waitcnt vmcnt({min(63, e.vm_issued - aux['a1_vm'])})")
        tagged_retry(e, aux1_issue_raw, lambda: tagcheck([37, 39, 41, 43, 125]), "K1_A1", cnt="s63")
        e("v_rcp_f32 v37, v38")
        e("v_rcp_f32 v41, v42")
        e("v_lshlrev_b32 v120, 3, v0")
        e(f"v_add_u32 v120, {M_ST}, v120")
        e("ds_write_b64 v120, v[36:37]")
        e("ds_write_b64 v120, v[40:41] offset:512")
        e("v_lshlrev_b32 v120, 2, v0")
        e(f"v_add_u32 v120, {M_SD}, v120")
        e("ds_write_b32 v120, v38")
        e("ds_write_b32 v120, v42 offset:256")
        e(f"ds_write_b32 v120, v124 offset:{M_CB - M_SD}")
        e.raw("s_waitcnt lgkmcnt(0)")
        end_only(lab)
    def aux1_read():
        e(f"v_and_b32 v34, 0x1f0, v{VH}"); yield
        e("v_lshrrev_b32 v34, 1, v34"); yield
        e("s_lshl_b32 s56, s54, 8")
        e(f"s_add_u32 s56, s56, {M_ST}")
        e("v_add_u32 v35, s56, v34"); yield
        t1 = e("ds_read_b64 v[36:37], v35"); yield
        e("v_lshrrev_b32 v34, 1, v34"); yield
        e("s_lshl_b32 s56, s54, 7")
        e(f"s_add_u32 s56, s56, {M_SD}")
        e("v_add_u32 v34, s56, v34"); yield
        t2 = e(f"ds_read_b32 v{SD}, v34"); yield
        e("v_and_b32 v34, 15, v0"); yield
        e("s_lshl_b32 s56, s55, 6")
        e(f"s_add_u32 s56, s56, {M_CB}")
        e("v_lshlrev_b32 v34, 2, v34"); yield
        e("v_add_u32 v34, s56, v34"); yield
        t3 = [e(f"ds_read_b32 v{CSR}, v34"), e(f"ds_read_b32 v{CSI}, v34 offset:128")]; yield
        e("v_lshrrev_b32 v34, 4, v0"); yield
        e("s_lshl_b32 s56, s54, 8")
        e(f"s_add_u32 s56, s56, {M_ST}")
        e("v_lshlrev_b32 v34, 6, v34"); yield
        e("v_add_u32 v34, s56, v34"); yield
        e.wait(t1); yield
        e(f"v_mov_b32 v{M_}, v36"); yield
        e(f"v_mul_f32 v{NLR}, {f32(-LOG2E)}, v37"); yield
        aux["st"] = [e("ds_read_b128 v[36:39], v34"), e("ds_read_b128 v[40:43], v34 offset:16")]
        aux["lane"] = [t2, t3]
        yield
    def aux2_issue_raw():
        e("s_lshl_b32 s61, s53, 10")
        e(f"s_add_u32 s61, s61, {WS_CSW}")
        e("v_lshlrev_b32 v136, 4, v0")
        e("buffer_load_dwordx4 v[128:131], v136, s[32:35], s61 offen sc1")
        e(f"s_add_u32 s61, s61, {1792*8}")
        e("buffer_load_dwordx4 v[132:135], v136, s[32:35], s61 offen sc1")
    def aux2_issue():
        lab = only_wave(AXW2, "K1_A2I")
        aux2_issue_raw()
        end_only(lab)
        aux["a2_vm"] = e.vm_issued
    def tagcheck2(regs):
        e(f"v_xor_b32 v137, s98, v{regs[0]}")
        for r in regs[1:]:
            e(f"v_xor_b32 v138, s98, v{r}")
            e("v_or_b32 v137, v137, v138")
        e("v_cmp_ne_u32 vcc, 0, v137")
        e("s_cmp_eq_u64 vcc, 0")
    def aux2_finish():
        lab = only_wave(AXW2, "K1_A2F")
        e.raw(f"s_waitcnt vmcnt({min(63, e.vm_issued - aux['a2_vm'])})")
        tagged_retry(e, aux2_issue_raw, lambda: tagcheck2([129, 131, 133, 135]), "K1_A2", cnt="s63")
        e("v_mov_b32 v129, v130")
        e("v_mov_b32 v133, v134")
        e("v_lshlrev_b32 v136, 3, v0")
        e(f"v_add_u32 v136, {M_CS}, v136")
        e("ds_write_b64 v136, v[128:129]")
        e("ds_write_b64 v136, v[132:133] offset:512")
        e.raw("s_waitcnt lgkmcnt(0)")
        end_only(lab)
    def cs_base():
        e("v_lshrrev_b32 v46, 5, v0"); yield
        e("v_lshlrev_b32 v46, 4, v46"); yield
        e("s_lshl_b32 s56, s55, 7")
        e(f"s_add_u32 s56, s56, {M_CS}")
        e("v_add_u32 v46, s56, v46"); yield
    def cs_reads(tl, CSB):
        o = (tl >> 1)*256 + (tl & 1)*64
        aux[("cs", tl)] = [e(f"ds_read_b128 v[{CSB}:{CSB+3}], v46 offset:{o}"),
                           e(f"ds_read_b128 v[{CSB+4}:{CSB+7}], v46 offset:{o+32}"),
                           e(f"ds_read_b128 v[{CSB+8}:{CSB+11}], v46 offset:{o+512}"),
                           e(f"ds_read_b128 v[{CSB+12}:{CSB+15}], v46 offset:{o+544}")]
        yield

    def z_pass1():
        e.wait(aux["lane"]); yield
        for i in range(8):
            e(f"v_permlane16_swap_b32 v{AZ+i}, v{AZ+8+i}"); yield
        st = list(aux["st"])
        for g in range(4):
            b = 36 + (g & 1)*4
            e.wait(st[g]); yield
            for u in range(2):
                i = 2*g + u; mm = b + 2*u
                e(f"v_fma_f32 v{AZ+i}, -v{mm}, v{CSR}, v{AZ+i}"); yield
                e(f"v_fma_f32 v{AZ+8+i}, -v{mm}, v{CSI}, v{AZ+8+i}"); yield
            for u in range(2):
                i = 2*g + u; rr = b + 2*u + 1
                e(f"v_mul_f32 v{AZ+i}, v{AZ+i}, v{rr}"); yield
                e(f"v_mul_f32 v{AZ+8+i}, v{AZ+8+i}, v{rr}"); yield
            if g + 2 < 4:
                st.append(e(f"ds_read_b128 v[{b}:{b+3}], v34 offset:{(g+2)*16}")); yield
        pr_, pi_ = AZ, AZ + 8
        for i in range(1, 8):
            d = (44, 45) if (i & 1) else (ER, EI)
            yield from cfma_to(e, d[0], d[1], pr_, pi_, LR, LI, AZ+i, AZ+8+i)
            pr_, pi_ = d
        e(f"v_mul_f32 v36, v{CI}, v45"); yield
        e(f"v_mul_f32 v37, v{CI}, v44"); yield
        e(f"v_fma_f32 v{ER}, v{CR}, v44, -v36"); yield
        e(f"v_fma_f32 v{EI}, v{CR}, v45, v37"); yield
    def hier1():
        e(f"v_mov_b32 v1, v{ER}"); yield
        e(f"v_mov_b32 v2, v{ER}"); yield
        e(f"v_mov_b32 v3, v{EI}"); yield
        e(f"v_mov_b32 v4, v{EI}"); yield
        yield from csq(e, 7, 8, L8R, L8I, 34)
        e("v_permlane16_swap_b32 v1, v2"); yield
        e("v_permlane16_swap_b32 v3, v4"); yield
        yield from cfma_to(e, 5, 6, 1, 3, L8R, L8I, 2, 4)
        e("v_mov_b32 v28, v5"); yield
        e("v_mov_b32 v36, v5"); yield
        e("v_mov_b32 v29, v6"); yield
        e("v_mov_b32 v34, v6"); yield
        e("v_and_b32 v35, 15, v0"); yield
        e("s_lshl_b32 s56, s55, 4")
        e("v_add_u32 v35, s56, v35"); yield
        e("v_lshlrev_b32 v35, 3, v35"); yield
        e("v_permlane32_swap_b32 v28, v36"); yield
        e("v_permlane32_swap_b32 v29, v34"); yield
        e(f"v_add_u32 v35, {M_SEG}, v35"); yield
        yield from cfma_to(e, 5, 6, 28, 29, 7, 8, 36, 34)
        e("s_lshl_b32 s56, s54, 8")
        e("v_add_u32 v34, s56, v35"); yield
        e("v_mov_b32 v44, v5"); yield
        e("v_mov_b32 v45, v6"); yield
        e("ds_write_b64 v34, v[44:45]"); yield
    def hier2():
        tk = [e(f"ds_read_b64 v[{36+2*u}:{37+2*u}], v35 offset:{u*256}") for u in range(3)]
        yield
        yield from csq(e, 42, 43, 7, 8, 44)
        e.wait(tk); yield
        yield from cfma_to(e, 44, 45, 36, 37, 42, 43, 38, 39)
        yield from cfma_to(e, 2, 4, 44, 45, 42, 43, 40, 41)
        e("v_cndmask_b32 v2, v44, v2, s[40:41]"); yield
        e("v_cndmask_b32 v4, v45, v4, s[40:41]"); yield
        e("v_cndmask_b32 v36, 0, v36, s[40:41]"); yield
        e("v_cndmask_b32 v37, 0, v37, s[40:41]"); yield
        e("v_cndmask_b32 v36, v36, v2, s[42:43]"); yield
        e("v_cndmask_b32 v37, v37, v4, s[42:43]"); yield
        lab = e.label("K1_NOPUB")
        e("s_cmp_lg_u32 s54, 3")
        e(f"s_cbranch_scc1 {lab}")
        e.cond_begin()
        for _ in cfma_to(e, 38, 40, 36, 37, 42, 43, 5, 6): pass
        e("v_mov_b32 v39, s98"); e("v_mov_b32 v41, s98")
        e("v_and_b32 v34, 15, v0")
        e("v_add_u32 v34, s78, v34")
        e("v_lshlrev_b32 v34, 4, v34")
        e(f"s_mul_i32 s56, s52, {448*16}")
        e(f"s_add_u32 s56, s56, {WS_E}")
        e("s_mov_b64 s[58:59], exec")
        e("s_mov_b64 exec, 0xffff")
        e("buffer_store_dwordx4 v[38:41], v34, s[32:35], s56 offen sc1")
        e("s_mov_b64 exec, s[58:59]")
        e.cond_end()
        e.raw(f"{lab}:")
        yield
        yield from cfma_to(e, 38, 39, 36, 37, 7, 8, 28, 29)
        e("v_cndmask_b32 v36, v36, v38, s[46:47]"); yield
        e("v_cndmask_b32 v37, v37, v39, s[46:47]"); yield
        yield from cfma_to(e, 38, 39, 36, 37, L8R, L8I, 1, 3)
        e(f"v_cndmask_b32 v{PR}, v36, v38, s[44:45]"); yield
        e(f"v_cndmask_b32 v{PI}, v37, v39, s[44:45]"); yield
    def zscale():
        for i in range(0, 8, 2):
            for u in range(2):
                e(f"v_mul_f32 v{36+2*u}, v{CI}, v{AZ+8+i+u}"); yield
                e(f"v_mul_f32 v{37+2*u}, v{CI}, v{AZ+i+u}"); yield
            for u in range(2):
                e(f"v_fma_f32 v{AZ+i+u}, v{CR}, v{AZ+i+u}, -v{36+2*u}"); yield
                e(f"v_fma_f32 v{AZ+8+i+u}, v{CR}, v{AZ+8+i+u}, v{37+2*u}"); yield
    def gu_math(acc, CSB):
        for i in range(8):
            e(f"v_fma_f32 v{acc+i}, -v{M_}, v{CSB+i}, v{acc+i}"); yield
        for i in range(8):
            e(f"v_mul_f32 v{acc+i}, v{acc+i}, v{NLR}"); yield
        for i in range(8):
            e(f"v_exp_f32 v{acc+i}, v{acc+i}"); yield
            e(f"v_fma_f32 v{acc+8+i}, -v{M_}, v{CSB+8+i}, v{acc+8+i}"); yield
        for i in range(8):
            e(f"v_fma_f32 v{acc+i}, v{acc+i}, v{SD}, v{SD}"); yield
        for i in range(8):
            e(f"v_rcp_f32 v{acc+i}, v{acc+i}"); yield
        for i in range(8):
            e(f"v_mul_f32 v{acc+i}, v{acc+i}, v{acc+8+i}"); yield
        for p in range(4):
            e(f"v_cvt_pk_bf16_f32 v{acc+8+p}, v{acc+2*p}, v{acc+2*p+1}"); yield
    def gu_epi(tl, CSB):
        acc = AG[tl]
        e.wait(aux[("cs", tl)]); yield
        yield from gu_math(acc, CSB)
        e(f"s_add_u32 s56, s79, {((tl>>1)*4 + (tl&1))*1024}")
        e(f"buffer_store_dwordx4 v[{acc+8}:{acc+11}], v{VH}, s[32:35], s56 offen{STF}"); yield

    ebq = deque()
    def early_B_setup():
        e(f"v_lshrrev_b32 v{EBV}, 3, v0")
        e("s_lshl_b32 s57, s48, 3")
        e(f"v_add_u32 v{EBV}, s57, v{EBV}")
        e(f"v_mul_u32_u24 v{EBV}, 896, v{EBV}")
        e("v_and_b32 v11, 7, v0")
        e("v_bfe_u32 v12, v0, 4, 1")
        e("v_lshlrev_b32 v12, 2, v12")
        e("v_xor_b32 v11, v11, v12")
        e(f"v_lshl_add_u32 v{EBV}, v11, 4, v{EBV}")
        if os.environ.get("NOPF"):
            e("s_load_dwordx2 s[92:93], s[0:1], 96"); e.raw("s_waitcnt lgkmcnt(0)"); e.smem_out = False; e.lg_done = e.lg_issued
            e("s_and_b32 s93, s93, 0xffff")
        else:
            e("s_mov_b32 s92, s86"); e("s_and_b32 s93, s87, 0xffff")
        e(f"s_mov_b32 s94, {1792*448*2}"); e("s_mov_b32 s95, 0x20000")
        e("s_cmp_ge_u32 s53, 7")
        e("s_cselect_b32 s57, 7, 0")
        e("s_sub_u32 s57, s53, s57")
        e("s_and_b32 s70, s51, 3")
        e("s_mul_i32 s70, s70, 7")
        e("s_lshl_b32 s71, s57, 2")
        e("s_add_u32 s70, s70, s71")
        e("s_cmp_ge_u32 s70, 28")
        e("s_cselect_b32 s71, 28, 0")
        e("s_sub_u32 s70, s70, s71")
        e("s_lshl_b32 s71, s57, 7")
        e("s_lshl_b32 s69, s48, 10")
    def early_B_queue(t0, t1):
        def mk(t):
            def f():
                e(f"s_add_u32 m0, s69, {t*8192}")
                e(f"s_mul_i32 s68, s70, {64*896}")
                e("s_add_u32 s68, s68, s71")
                e(f"buffer_load_dwordx4 v{EBV}, s[92:95], s68 offen lds")
                e("s_add_u32 s70, s70, 1"); e("s_cmp_eq_u32 s70, 28"); e("s_cselect_b32 s70, 0, s70")
            return f
        for t in range(t0, t1): ebq.append(mk(t))
    def drain_eb(gen, every=18):
        k = 0
        for _ in gen:
            k += 1
            if k % every == 0 and ebq: ebq.popleft()()
    M_PF = 162304
    def k2_touch(k, slot):
        PFT = 139 if slot < 18 else 160
        assert slot >= 6
        lab = e.label("K1_PF")
        e(f"s_cmp_lg_u32 s48, {k & 7}")
        e(f"s_cbranch_scc1 {lab}")
        e.cond_begin()
        if k < 7:
            e("s_mul_i32 s61, s51, 448"); e(f"s_add_u32 s61, s61, {64*k}"); base = "s[86:87]"; lim = 12543
        elif k < 9:
            e("s_mul_i32 s61, s51, 112"); e(f"s_add_u32 s61, s61, {64*(k-7)}"); base = "s[88:89]"; lim = 3135
        else:
            e("s_mul_i32 s61, s51, 112"); e(f"s_add_u32 s61, s61, {64*(k-9)}"); base = "s[90:91]"; lim = 3135
        e(f"v_add_u32 v{PFT}, s61, v0")
        e(f"v_min_u32 v{PFT}, {lim}, v{PFT}")
        e(f"s_mov_b32 m0, {M_PF}")
        e(f"v_lshlrev_b32 v{PFT}, 7, v{PFT}")
        e(f"global_load_lds_dword v{PFT}, {base}")
        e.cond_end()
        e.raw(f"{lab}:")
    EL = 160
    def e_issue_raw():
        e("v_lshrrev_b32 v180, 4, v0")
        e("v_and_b32 v181, 15, v0")
        e("v_add_u32 v181, s78, v181")
        e("v_lshlrev_b32 v181, 4, v181")
        e("s_sub_u32 s63, s52, 1")
        e(f"s_mov_b32 s61, {WS_E}")
        for m in range(4):
            e(f"v_add_u32 v{176+m}, {4*m}, v180")
            e(f"v_min_u32 v{176+m}, s63, v{176+m}")
            e(f"v_mul_u32_u24 v{176+m}, {448*16}, v{176+m}")
            e(f"v_add_u32 v{176+m}, v{176+m}, v181")
            e(f"buffer_load_dwordx4 v[{EL+4*m}:{EL+4*m+3}], v{176+m}, s[32:35], s61 offen sc1")
    def e_issue():
        lab = e.label("K1_EI")
        e("s_cmp_eq_u32 s52, 0")
        e(f"s_cbranch_scc1 {lab}")
        e.cond_begin(); e_issue_raw(); e.cond_end()
        e.raw(f"{lab}:")
    def e_consts():
        yield from csq(e, 182, 183, L128R, L128I, 188)
        yield from cmul(e, 184, 185, 182, 183, L128R, L128I, 188)
        yield from csq(e, 186, 187, 182, 183, 188)
        e("v_lshrrev_b32 v190, 4, v0"); yield
        e("s_sub_u32 s63, s52, 1")
        e("v_sub_u32 v190, s63, v190"); yield
        e("v_and_b32 v191, 3, v190"); yield
        e("v_ashrrev_i32 v190, 2, v190"); yield
        e("v_mov_b32 v192, 1.0"); yield
        e("v_mov_b32 v193, 0"); yield
        for k, (rr, ii) in enumerate(((L128R, L128I), (182, 183), (184, 185))):
            e(f"v_cmp_eq_u32 vcc, {k+1}, v191"); yield
            e(f"v_cndmask_b32 v192, v192, v{rr}, vcc"); yield
            e(f"v_cndmask_b32 v193, v193, v{ii}, vcc"); yield
    def e_check(nafter):
        skip = e.label("K1_ESK"); ok = e.label("K1_EOK"); chk = e.label("K1_ECK")
        e("s_cmp_eq_u32 s52, 0")
        e(f"s_cbranch_scc1 {skip}")
        e.cond_begin()
        e.raw(f"s_waitcnt vmcnt({nafter})")
        e("s_mov_b32 s62, 0")
        e.raw(f"{chk}:")
        e(f"v_xor_b32 v44, s98, v{EL+1}")
        for r in (EL+3, EL+5, EL+7, EL+9, EL+11, EL+13, EL+15):
            e(f"v_xor_b32 v45, s98, v{r}")
            e("v_or_b32 v44, v44, v45")
        e("v_cmp_ne_u32 vcc, 0, v44")
        e("s_cmp_eq_u64 vcc, 0")
        e(f"s_cbranch_scc1 {ok}")
        e("s_add_u32 s62, s62, 1")
        e("s_cmp_ge_u32 s62, 100000")
        e(f"s_cbranch_scc1 {ok}")
        e_issue_raw()
        e.raw("s_waitcnt vmcnt(0)")
        e(f"s_branch {chk}")
        e.raw(f"{ok}:")
        e.cond_end()
        e.raw(f"{skip}:")
    def carry_and_pass2():
        lab0 = e.label("K1_NOCARRY")
        e("v_mov_b32 v44, 0"); e("v_mov_b32 v45, 0")
        e("s_cmp_eq_u32 s52, 0")
        e(f"s_cbranch_scc1 {lab0}")
        for m in range(4):
            er, ei = EL+4*m, EL+4*m+2
            e(f"v_cmp_le_i32 vcc, {m}, v190")
            e(f"v_fma_f32 v{er}, v186, v44, v{er}")
            e(f"v_fma_f32 v{ei}, v186, v45, v{ei}")
            e(f"v_fma_f32 v{er}, -v187, v45, v{er}")
            e(f"v_fma_f32 v{ei}, v187, v44, v{ei}")
            e(f"v_cndmask_b32 v44, v44, v{er}, vcc")
            e(f"v_cndmask_b32 v45, v45, v{ei}, vcc")
        e("v_mul_f32 v40, v193, v45")
        e("v_mul_f32 v41, v193, v44")
        e("v_fma_f32 v44, v192, v44, -v40")
        e("v_fma_f32 v45, v192, v45, v41")
        e("v_mov_b32 v40, v44"); e("v_mov_b32 v41, v45")
        e("v_permlane16_swap_b32 v44, v40"); e("v_permlane16_swap_b32 v45, v41")
        e("v_add_f32 v44, v44, v40"); e("v_add_f32 v45, v45, v41")
        e("v_mov_b32 v40, v44"); e("v_mov_b32 v41, v45")
        e("v_permlane32_swap_b32 v44, v40"); e("v_permlane32_swap_b32 v45, v41")
        e("v_add_f32 v44, v44, v40"); e("v_add_f32 v45, v45, v41")
        e.raw(f"{lab0}:")
        e(f"v_fma_f32 v{PR}, v{TR}, v44, v{PR}")
        e(f"v_fma_f32 v{PI}, v{TR}, v45, v{PI}")
        e(f"v_fma_f32 v{PR}, -v{TI}, v45, v{PR}")
        e(f"v_fma_f32 v{PI}, v{TI}, v44, v{PI}")
        pr_, pi_ = PR, PI
        for i in range(8):
            zr, zi = AZ + i, AZ + 8 + i
            e(f"v_fma_f32 v{zr}, v{LR}, v{pr_}, v{zr}")
            e(f"v_fma_f32 v{zi}, v{LR}, v{pi_}, v{zi}")
            e(f"v_fma_f32 v{zr}, -v{LI}, v{pi_}, v{zr}")
            e(f"v_fma_f32 v{zi}, v{LI}, v{pr_}, v{zi}")
            pr_, pi_ = zr, zi
        for p in range(4):
            e(f"v_cvt_pk_bf16_f32 v{36+p}, v{AZ+2*p}, v{AZ+2*p+1}")
            e(f"v_cvt_pk_bf16_f32 v{40+p}, -v{AZ+8+2*p}, -v{AZ+8+2*p+1}")
        e("ds_write_b128 v1, v[36:39]")
        e("ds_write_b128 v1, v[40:43] offset:1024")
        e.wait_all(vm=False)
        tk = [e("ds_read_b64_tr_b16 v[36:37], v2"), e("ds_read_b64_tr_b16 v[38:39], v2 offset:256"),
              e("ds_read_b64_tr_b16 v[40:41], v2 offset:1024"), e("ds_read_b64_tr_b16 v[42:43], v2 offset:1280")]
        e.wait(tk)
        e(f"buffer_store_dwordx4 v[36:39], v3, s[32:35], s76 offen{STF}")
        e("s_add_u32 s76, s76, 4096")
        e(f"buffer_store_dwordx4 v[40:43], v3, s[32:35], s76 offen{STF}")
    def tail_addr():
        e("s_lshl_b32 s56, s48, 11")
        e(f"s_add_u32 s56, s56, {M_TR}")
        e("v_and_b32 v1, 15, v0"); yield
        e("v_lshlrev_b32 v1, 6, v1"); yield
        e("v_lshrrev_b32 v2, 4, v0"); yield
        e("v_lshl_add_u32 v1, v2, 4, v1"); yield
        e("v_add_u32 v1, s56, v1"); yield
        e("v_lshrrev_b32 v2, 5, v0"); yield
        e("v_bfe_u32 v3, v0, 2, 2"); yield
        e("v_lshl_add_u32 v2, v2, 3, v3"); yield
        e("v_lshlrev_b32 v2, 6, v2"); yield
        e("v_bfe_u32 v3, v0, 4, 1"); yield
        e("v_lshl_add_u32 v2, v3, 5, v2"); yield
        e("v_and_b32 v3, 3, v0"); yield
        e("v_lshl_add_u32 v2, v3, 3, v2"); yield
        e("v_add_u32 v2, s56, v2"); yield
        e("v_lshlrev_b32 v3, 4, v0"); yield
        e("s_lshl_b32 s56, s53, 1")
        e("s_add_u32 s56, s56, s55")
        e("s_lshr_b32 s57, s56, 2")
        e("s_lshl_b32 s57, s57, 3")
        e("s_and_b32 s56, s56, 3")
        e("s_add_u32 s56, s56, s57")
        e("s_lshl_b32 s57, s52, 2")
        e("s_add_u32 s57, s57, s54")
        e("s_mul_i32 s57, s57, 56")
        e("s_add_u32 s56, s56, s57")
        e("s_lshl_b32 s56, s56, 10")
        e(f"s_add_u32 s76, s56, {WS_hF}")
        yield

    def cost(i):
        if i.cls == "valu": return 2.0 if i.op in TRANS else 1.0
        if i.cls in ("ds", "vmem"): return 0.5
        return 0.1
    class Fill:
        def __init__(self): self.q = []; self.cur = None; self.barrier_at = None
        def add(self, *items): self.q += list(items)
        def run(self, budget, tick):
            spent = 0.0
            while spent < budget:
                if self.cur is None:
                    if not self.q: return
                    it = self.q[0]
                    if it == "barrier":
                        if self.barrier_at is None: self.barrier_at = tick
                        if tick <= self.barrier_at: return
                        self.barrier_at = None; self.q.pop(0); continue
                    if it == "aux2gate":
                        if "a2_tick" not in aux or tick <= aux["a2_tick"]: return
                        self.q.pop(0); continue
                    if it == "step17":
                        if tick < 13: return
                        self.q.pop(0); continue
                    self.q.pop(0); self.cur = it() if callable(it) else it
                n0 = len(e.ins)
                try: next(self.cur)
                except StopIteration: self.cur = None
                spent += sum(cost(i) for i in e.ins[n0:])
        def flush(self):
            while self.cur is not None or self.q:
                if self.cur is None:
                    it = self.q.pop(0)
                    if it == "step17": continue
                    if it == "barrier" or it == "aux2gate":
                        e.wait_all(vm=False); e("s_barrier"); self.barrier_at = None
                        continue
                    self.cur = it() if callable(it) else it
                for _ in self.cur: pass
                self.cur = None
    F = Fill()
    F.add(params)
    slot = {"A": 0, "B": 0}
    last = None
    for (ph, ks, si, did) in main_stream():
        if (ph, ks) != last and (ph, ks) in STAMPS: pr.stamp()
        last = (ph, ks)
        n = slot[ph]; slot[ph] += 1
        tk = nbar[0]
        if NOEPI:
            if ph == "A" and not did: F.run(BUDGET_A, tk)
            continue
        if ph == "A":
            if COOP and n == CT2: coop_touch(3, 4, 0, False, 226)
            if COOP and n == CT3: coop_touch(0, 4, 128, True, 226)
            if COOP and n == CT4: coop_touch(4, 3, 128, True, 226)
            if n == RB_SLOT and RB_LATE: rowbatch_compute()
            if n == PUB_SLOT: rowbatch_publish()
            if n == AUX_LOAD: F.flush(); aux1_issue()
            if n == AUX_FIN: aux1_finish(); F.add("barrier", aux1_read)
            if not did: F.run(BUDGET_A, tk)
        else:
            if n == 0:
                F.flush()
                if ZFIRST:
                    drain(z_pass1()); drain(hier1())
                    e.wait_all(vm=False); e("s_barrier")
                    drain(hier2())
                    F.add(zscale, cs_base, tail_addr, "aux2gate",
                          lambda: cs_reads(0, 128), lambda: cs_reads(1, 144), lambda: gu_epi(0, 128),
                          lambda: cs_reads(2, 128), lambda: gu_epi(1, 144), lambda: cs_reads(3, 144), "step17", e_consts)
                else:
                  F.add(z_pass1, hier1, "barrier", hier2, zscale, cs_base, "aux2gate",
                      lambda: cs_reads(0, 128), lambda: cs_reads(1, 144), lambda: gu_epi(0, 128),
                      lambda: cs_reads(2, 128), lambda: gu_epi(1, 144), lambda: cs_reads(3, 144), tail_addr)
            if fused and G.EARLY_B and n == 1:
                early_B_setup(); early_B_queue(0, G.EARLY_B1)
            if fused and n >= EB_SLOT and (n - EB_SLOT) % EB_GAP == 0 and ebq and (n & 1) == 0: ebq.popleft()()
            if n == AUX2_SLOT: aux2_issue()
            if n == AUX2_FIN: aux2_finish(); aux["a2_tick"] = tk
            if PF_SLOT >= 0 and n >= PF_SLOT and (n - PF_SLOT) % PF_GAP == 0 and (n - PF_SLOT) // PF_GAP < 11: k2_touch((n - PF_SLOT) // PF_GAP, n)
            if not did: F.run(BUDGET_B0 if n < BSW else BUDGET_B, tk)
    if NOEPI:
        pr.dump(32, 48)
        e.raw("K1_END:")
        e("s_endpgm")
        gen_helper(e)
        return 256
    e_issue(); aux["e_vm"] = e.vm_issued
    if fused and G.EARLY_B > G.EARLY_B1:
        while ebq: ebq.popleft()()
        e.wait_all(vm=False); e("s_barrier")
        early_B_queue(G.EARLY_B1, G.EARLY_B)
    if TAILST2: pr.stamp()
    F.flush()
    if TAILST2: pr.stamp()
    if not ZFIRST and not ECLATE: drain_eb(e_consts(), 12)
    drain_eb(gu_epi(2, 128), 10)
    if TAILST2: pr.stamp()
    drain_eb(gu_epi(3, 144), 10)
    while ebq: ebq.popleft()()
    if not ZFIRST and ECLATE: drain(e_consts())
    if TAILST: pr.stamp()
    e_check(e.vm_issued - aux["e_vm"])
    if TAILST2: pr.stamp()
    carry_and_pass2()
    pr.stamp()
    pr.dump(32, 48)
    if fused:
        if G.PROFILE: e("s_mov_b64 exec, -1")
        G.gen_k2(e, fused=True)
    e.raw("K1_END:")
    e("s_endpgm")
    gen_helper(e)
    return 256
```

```python
import sys, os
sys.path.insert(0, "dev")
from asmlib import *
import gen as G
from gen import *
from collections import deque

def cmul(e, dr, di, ar, ai, br, bi, t):
    e(f"v_mul_f32 v{t}, v{ai}, v{bi}"); yield
    e(f"v_mul_f32 v{t+1}, v{ai}, v{br}"); yield
    e(f"v_fma_f32 v{t}, v{ar}, v{br}, -v{t}"); yield
    e(f"v_fma_f32 v{di}, v{ar}, v{bi}, v{t+1}"); yield
    e(f"v_mov_b32 v{dr}, v{t}"); yield
def csq(e, dr, di, ar, ai, t):
    e(f"v_mul_f32 v{t}, v{ai}, v{ai}"); yield
    e(f"v_mul_f32 v{t+1}, v{ar}, v{ai}"); yield
    e(f"v_fma_f32 v{dr}, v{ar}, v{ar}, -v{t}"); yield
    e(f"v_add_f32 v{di}, v{t+1}, v{t+1}"); yield
def cfma(e, hr, hi, lr, li, br, bi, t):
    e(f"v_fma_f32 v{t}, v{lr}, v{hr}, v{br}"); yield
    e(f"v_fma_f32 v{t+1}, v{lr}, v{hi}, v{bi}"); yield
    e(f"v_fma_f32 v{t}, -v{li}, v{hi}, v{t}"); yield
    e(f"v_fma_f32 v{hi}, v{li}, v{hr}, v{t+1}"); yield
    e(f"v_mov_b32 v{hr}, v{t}"); yield
def cfma_to(e, dr, di, hr, hi, lr, li, br, bi):
    e(f"v_fma_f32 v{dr}, v{lr}, v{hr}, v{br}"); yield
    e(f"v_fma_f32 v{di}, v{lr}, v{hi}, v{bi}"); yield
    e(f"v_fma_f32 v{dr}, -v{li}, v{hi}, v{dr}"); yield
    e(f"v_fma_f32 v{di}, v{li}, v{hr}, v{di}"); yield

def gen_helper(e):
    e.raw("K1_HELPER:")
    e.lg_issued = e.lg_done = 0; e.vm_issued = e.vm_done = 0
    if os.environ.get("CODEPF", "0") == "1":
        lab = e.label("K1H_CP")
        e("s_cmp_lg_u32 s48, 7")
        e(f"s_cbranch_scc1 {lab}")
        e("v_lshlrev_b32 v10, 7, v0")
        for k in range(4):
            e("v_min_u32 v11, K1_CODE_LAST-K1_CODE_FIRST, v10")
            e(f"global_load_dword v{20+k}, v11, s[84:85]")
            if k < 3: e("v_add_u32 v10, 8192, v10")
        e.raw(f"{lab}:")
    if os.environ.get("TLBW", "0") == "1":
        lab = e.label("K1H_TW")
        e("s_cmp_lg_u32 s48, 6")
        e(f"s_cbranch_scc1 {lab}")
        tl = e("s_load_dwordx2 s[82:83], s[0:1], 104")
        e.raw("s_waitcnt lgkmcnt(0)"); e.smem_out = False
        e("v_lshlrev_b32 v10, 16, v0")
        e(f"v_min_u32 v11, {2048*448*4 - 4}, v10")
        e("global_load_dword v20, v11, s[82:83]")
        for k in range(3):
            e(f"v_min_u32 v11, {WS_END - 4}, v10")
            e(f"global_load_dword v{21+k}, v11, s[18:19]")
            if k < 2: e(f"v_add_u32 v10, {64*65536}, v10")
        e.raw(f"{lab}:")
    HW = os.environ.get("HWARM", "1") == "1"
    e("s_cmp_ge_u32 s2, 28")
    e("s_cbranch_scc1 K1H_WARM" if HW else "s_cbranch_scc1 K1_END")
    srd(e, 32, 18, WS_END if not G.PROFILE else (16 << 20))
    pr = G.Prof(e, 0); pr.stamp()
    srd(e, 36, 16, 256)
    e("s_cmp_ge_u32 s2, 14")
    e("s_cselect_b32 s28, s14, s12")
    e("s_cselect_b32 s29, s15, s13")
    e("s_cselect_b32 s54, 14, 0")
    e("s_cselect_b32 s56, 1792, 0")
    e("s_and_b32 s29, s29, 0xffff")
    e("s_sub_u32 s54, s2, s54")
    e(f"s_mov_b32 s30, {448*1792*2}")
    e("s_mov_b32 s31, 0x20000")
    e("v_lshrrev_b32 v4, 4, v0")
    e("s_movk_i32 s50, 3584")
    e("v_mul_lo_u32 v4, s50, v4")
    e("v_and_b32 v5, 15, v0")
    e("v_lshl_add_u32 v4, v5, 4, v4")
    e(f"s_mul_i32 s55, s48, {56*3584}")
    e("s_lshl_b32 s57, s54, 8")
    e("s_add_u32 s55, s55, s57")
    nonce_cas(e, 12)
    if os.environ.get("HDELAY", "0") == "1":
        nonce_publish(e, 12, 32768)
        e("s_barrier")
    WL = 72
    U = 128
    wt = []
    for n in range(14):
        e(f"s_add_u32 s57, s55, {n*4*3584}")
        wt.append(e(f"buffer_load_dwordx4 v[{WL+4*n}:{WL+4*n+3}], v4, s[28:31], s57 offen"))
    A = 16
    for n in range(14):
        e.wait(wt[n])
        if n == 0:
            pr.stamp()
            if os.environ.get("HDELAY", "0") != "1": nonce_publish(e, 12, 32768)
        for d in range(4):
            src = WL + 4*n + d
            if n == 0:
                e(f"v_lshlrev_b32 v{A+2*d}, 16, v{src}")
                e(f"v_and_b32 v{A+2*d+1}, 0xffff0000, v{src}")
            else:
                e(f"v_lshlrev_b32 v6, 16, v{src}")
                e(f"v_and_b32 v7, 0xffff0000, v{src}")
                e(f"v_add_f32 v{A+2*d}, v{A+2*d}, v6")
                e(f"v_add_f32 v{A+2*d+1}, v{A+2*d+1}, v7")
    pr.stamp()
    e("v_lshrrev_b32 v6, 4, v0")
    e("s_lshl_b32 s57, s48, 2")
    e("v_add_u32 v6, s57, v6")
    e("v_lshlrev_b32 v6, 9, v6")
    e("v_lshl_add_u32 v6, v5, 5, v6")
    e(f"ds_write_b128 v6, v[{A}:{A+3}]")
    e(f"ds_write_b128 v6, v[{A+4}:{A+7}] offset:16")
    e.wait_all(vm=False)
    e("s_barrier")
    e("s_cmp_ge_u32 s48, 2")
    e("s_cbranch_scc1 K1H_WARM" if HW else "s_cbranch_scc1 K1_END")
    nonce_read(e, 13, 32768)
    e("s_lshl_b32 s57, s48, 6")
    e("v_add_u32 v6, s57, v0")
    e("v_lshlrev_b32 v7, 2, v6")
    for p in range(32): e(f"ds_read_b32 v{U+p}, v7 offset:{p*512}")
    e.wait_all(vm=False)
    for st in (16, 8, 4, 2, 1):
        for p in range(st): e(f"v_add_f32 v{U+p}, v{U+p}, v{U+p+st}")
    e("s_lshl_b32 s57, s54, 7")
    e("s_add_u32 s57, s57, s56")
    e("v_add_u32 v6, s57, v6")
    e("v_lshlrev_b32 v6, 3, v6")
    e(f"v_add_u32 v6, {WS_CSW}, v6")
    e(f"v_mov_b32 v{U+1}, s98")
    e(f"buffer_store_dwordx2 v[{U}:{U+1}], v6, s[32:35], 0 offen sc1")
    pr.stamp()
    pr.dump(32, 48)
    if HW:
        if G.PROFILE: e("s_mov_b64 exec, -1")
        e.raw("K1H_WARM:")
        e("s_lshl_b32 s49, s2, 3"); e("s_add_u32 s49, s49, s48")
        e("s_mul_i32 s50, s49, 49")
        e("v_min_u32 v6, 48, v0")
        e("v_add_u32 v6, s50, v6"); e("v_lshlrev_b32 v6, 7, v6")
        e("global_load_dword v7, v6, s[86:87]")
        e("s_mul_i32 s50, s49, 13")
        e("v_and_b32 v6, 15, v0"); e("v_min_u32 v6, 12, v6")
        e("v_add_u32 v6, s50, v6"); e("v_min_u32 v6, 3135, v6"); e("v_lshlrev_b32 v6, 7, v6")
        e("global_load_dword v8, v6, s[88:89]")
        e("global_load_dword v9, v6, s[90:91]")
        e("s_waitcnt vmcnt(0)")
    e.raw("K1_CODE_LAST:")
    e("s_endpgm")

NW = 7
def nonce_cas(e, v, srd="s[36:39]"):
    lab = e.label("K1_NC"); lab2 = e.label("K1_NC2")
    e(f"v_mov_b32 v{v+1}, 0")
    e(f"s_cmp_lg_u32 s48, {NW}")
    e(f"s_cbranch_scc1 {lab}")
    e.cond_begin()
    e.raw("s_memrealtime s[100:101]")
    e.raw("s_waitcnt lgkmcnt(0)")
    e("s_mov_b32 s99, s100")
    e("s_cmp_lg_u32 s2, 0")
    e(f"s_cbranch_scc1 {lab2}")
    e("s_or_b32 s100, s100, 1")
    e(f"v_mov_b32 v{v}, s100")
    e("s_mov_b64 s[58:59], exec")
    e("s_mov_b64 exec, 1")
    e(f"buffer_store_dword v{v}, v{v+1}, {srd}, 0 offen sc1")
    e("s_mov_b64 exec, s[58:59]")
    e.raw("s_waitcnt vmcnt(0)")
    e.raw(f"{lab2}:")
    e(f"buffer_load_dword v{v}, v{v+1}, {srd}, 0 offen sc1")
    e.cond_end()
    e.raw(f"{lab}:")
    e.vm_at_cas = e.vm_issued
def nonce_publish(e, v, lds, srd="s[36:39]"):
    lab = e.label("K1_NP"); top = e.label("K1_NPT"); ok = e.label("K1_NPO"); again = e.label("K1_NPA")
    e(f"s_cmp_lg_u32 s48, {NW}")
    e(f"s_cbranch_scc1 {lab}")
    e.cond_begin()
    e.raw(f"s_waitcnt vmcnt({min(63, e.vm_issued - e.vm_at_cas)})")
    e("s_mov_b32 s101, 0")
    e.raw(f"{top}:")
    e(f"v_readfirstlane_b32 s100, v{v}")
    e("s_cmp_eq_u32 s100, 0")
    e(f"s_cbranch_scc1 {again}")
    e("s_sub_u32 s58, s99, s100")
    e("s_add_u32 s58, s58, 0x10000")
    e("s_cmp_lt_u32 s58, 0x20000")
    e(f"s_cbranch_scc1 {ok}")
    e.raw(f"{again}:")
    e(f"buffer_load_dword v{v}, v{v+1}, {srd}, 0 offen sc1")
    e.raw("s_waitcnt vmcnt(0)")
    e("s_add_u32 s101, s101, 1")
    e("s_cmp_lt_u32 s101, 200000")
    e(f"s_cbranch_scc1 {top}")
    e.raw(f"{ok}:")
    e(f"v_mov_b32 v{v}, s100")
    e(f"v_mov_b32 v{v+1}, {lds}")
    e(f"ds_write_b32 v{v+1}, v{v}")
    e.raw("s_waitcnt lgkmcnt(0)")
    e.cond_end()
    e.raw(f"{lab}:")
def nonce_read(e, v, lds):
    e(f"v_mov_b32 v{v}, {lds}")
    t = e(f"ds_read_b32 v{v}, v{v}")
    e.wait(t)
    e(f"v_readfirstlane_b32 s98, v{v}")

def tagged_retry(e, issue, check, name, maxit=100000, cnt="s61"):
    ok = e.label(name + "_OK"); top = e.label(name + "_RT")
    check()
    e(f"s_cbranch_scc1 {ok}")
    e.cond_begin()
    e(f"s_mov_b32 {cnt}, 0")
    e.raw(f"{top}:")
    issue()
    e.raw("s_waitcnt vmcnt(0)")
    check()
    e(f"s_cbranch_scc1 {ok}")
    e(f"s_add_u32 {cnt}, {cnt}, 1")
    e(f"s_cmp_lt_u32 {cnt}, {maxit}")
    e(f"s_cbranch_scc1 {top}")
    e.cond_end()
    e.raw(f"{ok}:")
```

```python
import sys, os
sys.path.insert(0, "dev")
from asmlib import *
import gen as G
from gen import *
from k1_common import *
from collections import deque

env = lambda k, d: type(d)(os.environ.get(k, d)) if not isinstance(d, bool) else os.environ.get(k, "1" if d else "0") == "1"
STAMPS = eval(os.environ.get("STAMPS", '[("A",0),("A",27),("B",0),("B",27)]'))
NOEPI = env("NOEPI", False); NODMA = env("NODMA", False)
PRO_DMAS = env("PRO_DMAS", 10); MAP2 = env("MAP2", True); COOP = env("COOP", False); ROT = env("ROT", 1 if not COOP else 0)
CT2 = env("CT2", 1); CT3 = env("CT3", 22); CT4 = env("CT4", 34)
EB_SLOT = env("EB_SLOT", 4); EB_GAP = env("EB_GAP", 6); EBV = 13
PF_GAP = env("PF_GAP", 4); PF_SLOT = env("PF_SLOT", -1); AUX2_SLOT = env("AUX2_SLOT", 6); E_SLOT = env("E_SLOT", 48)
AUX2_FIN = env("AUX2_FIN", 26)
AUX_LOAD = env("AUX_LOAD", 50); AUX_FIN = env("AUX_FIN", 68); PUB_SLOT = env("PUB_SLOT", 11)
BUDGET_A = env("BUDGET_A", 4.0); BUDGET_B = env("BUDGET_B", 6.0); BUDGET_B0 = env("BUDGET_B0", 7.0)

DMAFLAG = os.environ.get("DMAFLAG", "")
if DMAFLAG: DMAFLAG = " " + DMAFLAG
BSW = env("BSW", 30); ECLATE = env("ECLATE", False); ZFIRST = env("ZFIRST", False); TAILST2 = env("TAILST2", False); TAILST = env("TAILST", True); PSTAMP = env("PSTAMP", False); DMA_HURRY = env("DMA_HURRY", 6); RB_LATE = env("RB_LATE", True); RB_SLOT = env("RB_SLOT", 7)
XR, ZR, WR = 0, 49152, 73728
MISC = 139264
M_ST = MISC; M_CS = MISC + 1024; M_SEG = MISC + 2048; M_N = MISC + 3072
M_SD = MISC + 3328; M_CB = MISC + 3840
M_PART = MISC + 3328
M_PB = MISC + 5376
M_TR = MISC + 6656
AX, AZr, AW0, AW1 = 1, 5, 9, 10
VX0, VX1, VZ, VW = 11, 12, 13, 14
LR, LI, CR, CI, L8R, L8I, L128R, L128I, TR, TI = 15, 16, 17, 18, 19, 20, 21, 22, 23, 24
M_, SD, NLR, CSR, CSI, PR, PI, ER, EI = 25, 26, 27, 28, 29, 30, 31, 32, 33
VH = 47

AZ = 48
AG = [64, 80, 96, 112]
XF = 128
FB = 240

def gen_k1(e, fused=False, kname="k1_kernel"):
    STF = os.environ.get("STF", " sc1") if fused else ""
    e.raw(f"{kname}:")
    e("s_cmp_ge_u32 s2, 256")
    e("s_cbranch_scc1 K1_END")
    if env("CODEPF", False): e("s_getpc_b64 s[84:85]")
    e.raw("K1_CODE_FIRST:")
    e("s_load_dwordx2 s[4:5], s[0:1], 0")
    e("s_load_dwordx2 s[6:7], s[0:1], 8")
    e("s_load_dwordx2 s[8:9], s[0:1], 24")
    e("s_load_dwordx2 s[10:11], s[0:1], 32")
    e("s_load_dwordx2 s[12:13], s[0:1], 80")
    e("s_load_dwordx2 s[14:15], s[0:1], 88")
    e("s_load_dwordx2 s[16:17], s[0:1], 112")
    e("s_load_dwordx2 s[18:19], s[0:1], 120")
    e("s_load_dwordx2 s[62:63], s[0:1], 16")
    e("s_load_dwordx2 s[86:87], s[0:1], 96")
    e("s_load_dwordx2 s[88:89], s[0:1], 40")
    e("s_load_dwordx2 s[90:91], s[0:1], 48")
    t = e("s_load_dwordx2 s[64:65], s[0:1], 56")
    e("v_lshrrev_b32 v1, 6, v0")
    e("v_and_b32 v0, 63, v0")
    e("v_readfirstlane_b32 s48, v1")
    e("s_sub_u32 s49, s2, 32")
    e("s_and_b32 s50, s49, 7")
    e("s_lshr_b32 s51, s49, 3")
    if MAP2:
        e("s_mul_i32 s54, s51, 37")
        e("s_lshr_b32 s54, s54, 8")
        e("s_mul_i32 s53, s54, 7")
        e("s_sub_u32 s55, s51, s53")
        e("s_and_b32 s52, s50, 3")
        e("s_lshl_b32 s53, s54, 2")
        e("s_add_u32 s52, s52, s53")
        e("s_lshl_b32 s51, s55, 2")
        e("s_add_u32 s51, s51, s54")
        e("s_lshr_b32 s53, s50, 2")
        e("s_mul_i32 s53, s53, 7")
        e("s_add_u32 s53, s53, s55")
    else:
        e("s_and_b32 s52, s50, 3")
        e("s_lshl_b32 s52, s52, 2")
        e("s_and_b32 s53, s51, 3")
        e("s_add_u32 s52, s52, s53")
        e("s_lshr_b32 s53, s50, 2")
        e("s_mul_i32 s53, s53, 7")
        e("s_lshr_b32 s54, s51, 2")
        e("s_add_u32 s53, s53, s54")
    e("s_and_b32 s54, s48, 3")
    e("s_lshr_b32 s55, s48, 2")
    e("v_lshrrev_b32 v40, 3, v0")
    e("v_and_b32 v41, 7, v0")
    e("v_lshrrev_b32 v42, 4, v0")
    e("s_movk_i32 s56, 896")
    e("s_lshl_b32 s57, s48, 4")
    e("v_add_u32 v43, s57, v40")
    e("v_mul_lo_u32 v43, s56, v43")
    e("v_xor_b32 v44, v41, v42")
    e(f"v_lshl_add_u32 v{VX0}, v44, 4, v43")
    e("v_add_u32 v44, 4, v42")
    e("v_xor_b32 v44, v41, v44")
    e(f"v_lshl_add_u32 v{VX1}, v44, 4, v43")
    e(f"v_add_u32 v{VX1}, {8*896}, v{VX1}")
    e("s_lshl_b32 s57, s54, 3")
    e("v_add_u32 v43, s57, v40")
    e("v_mul_lo_u32 v43, s56, v43")
    e("s_and_b32 s57, s48, 1")
    e("s_lshl_b32 s57, s57, 2")
    e("v_add_u32 v44, s57, v42")
    e("v_xor_b32 v44, v41, v44")
    e(f"v_lshl_add_u32 v{VZ}, v44, 4, v43")
    e("s_lshl_b32 s57, s54, 3")
    e("v_add_u32 v43, s57, v40")
    e("s_movk_i32 s56, 3584")
    e("v_mul_lo_u32 v43, s56, v43")
    e("v_and_b32 v44, 1, v42")
    e("s_lshl_b32 s57, s55, 1")
    e("v_add_u32 v44, s57, v44")
    e("v_lshlrev_b32 v44, 1, v44")
    e("v_xor_b32 v44, v41, v44")
    e(f"v_lshl_add_u32 v{VW}, v44, 4, v43")
    e(f"s_mul_i32 s66, s52, {128*896}")
    e(f"s_mul_i32 s67, s53, {32*896}")
    e("s_lshl_b32 s72, s53, 8")
    e("s_lshl_b32 s73, s48, 11")
    e("s_lshl_b32 s74, s48, 10")
    e(f"s_add_u32 s74, s74, {ZR}")
    e("s_lshl_b32 s75, s55, 13")
    e("s_lshl_b32 s76, s54, 10")
    e("s_add_u32 s75, s75, s76")
    e(f"s_add_u32 s75, s75, {WR}")
    e.wait(t)
    e("s_cmp_lt_u32 s2, 32")
    e("s_cbranch_scc1 K1_HELPER")
    srd(e, 20, 4, 2048*448*2)
    if ROT == 1:
        e("s_and_b32 s56, s51, 3")
        e("s_lshl_b32 s56, s56, 1")
        e("s_lshr_b32 s57, s51, 2")
        e("s_add_u32 s56, s56, s57")
        e("s_cmp_ge_u32 s56, 7")
        e("s_cselect_b32 s57, 7, 0")
        e("s_sub_u32 s77, s56, s57")
    else:
        e("s_mov_b32 s77, 0")
    e("s_mov_b32 s76, s77")
    e("s_lshl_b32 s4, s76, 7")
    e("s_add_u32 s4, s4, s66")
    e("s_sub_u32 s67, s67, s66")
    ent_tok = {}
    dmaq = deque()
    def entry_dmas(kind, kc):
        def mk(a, last):
            def f():
                if NODMA:
                    if last: ent_tok[(kind, kc)] = None
                    return
                if kind == "X":
                    e(f"s_add_u32 m0, s73, {XR + (kc%3)*16384 + a*1024}")
                    tok = e(f"buffer_load_dwordx4 v{VX0+a}, s[20:23], s{4+kc} offen{DMAFLAG} lds")
                elif kind == "Z":
                    e(f"s_add_u32 m0, s74, {(kc%3)*8192}")
                    e(f"s_add_u32 s77, s67, s{4+kc}")
                    tok = e(f"buffer_load_dwordx4 v{VZ}, s[24:27], s77 offen{DMAFLAG} lds")
                else:
                    ch = kc % 7; colb = 0 if kc < 7 else 128
                    e(f"s_add_u32 m0, s75, {(kc%4)*16384 + a*4096}")
                    e(f"s_add_u32 s77, s{11+ch}, {32*a*3584 + colb}")
                    tok = e(f"buffer_load_dwordx4 v{VW}, s[28:31], s77 offen{DMAFLAG} lds")
                if last: ent_tok[(kind, kc)] = tok
            return f
        n = 1 if kind == "Z" else 2
        return [mk(a, a == n - 1) for a in range(n)]
    def queue(*ents):
        for (k, kc) in ents:
            for f in entry_dmas(k, kc): dmaq.append(f)
    def bz_w_srds():
        e("s_cmp_eq_u32 s55, 0")
        e("s_cselect_b32 s24, s8, s10")
        e("s_cselect_b32 s25, s9, s11")
        e("s_cselect_b32 s28, s12, s14")
        e("s_cselect_b32 s29, s13, s15")
        e("s_and_b32 s25, s25, 0xffff")
        e(f"s_mov_b32 s26, {448*448*2}")
        e("s_mov_b32 s27, 0x20000")
        e("s_and_b32 s29, s29, 0xffff")
        e(f"s_mov_b32 s30, {448*1792*2}")
        e("s_mov_b32 s31, 0x20000")
    M_PF0 = 162304
    def coop_setup():
        e("s_and_b32 s56, s51, 3")
        e("s_lshr_b32 s57, s51, 2")
        e("s_mov_b32 s64, 0")
        e("s_cmp_eq_u32 s54, 0"); e("s_cselect_b32 s64, 1, s64")
        e("s_cmp_eq_u32 s54, 1"); e("s_cselect_b32 s64, 2, s64")
        e("s_cmp_eq_u32 s48, 2"); e("s_cselect_b32 s64, 3, s64")
        e("s_or_b32 s58, s57, s48"); e("s_cmp_eq_u32 s58, 3")
        e("s_cmp_eq_u32 s48, 3"); e("s_cselect_b32 s58, 0, 1"); e("s_or_b32 s58, s58, s57")
        e("s_cmp_eq_u32 s58, 0"); e("s_cselect_b32 s64, 3, s64"); e("s_cselect_b32 s57, 7, s57")
        e(f"s_mul_i32 s58, s56, {16*3584}"); e("s_add_u32 s58, s58, s72")
        e(f"s_mul_i32 s59, s53, {32*896}"); e(f"s_mul_i32 s61, s56, {8*896}"); e("s_add_u32 s59, s59, s61")
        e(f"s_mul_i32 s61, s57, {16*896}"); e("s_add_u32 s61, s61, s66")
        e("s_cmp_eq_u32 s64, 1"); e("s_cselect_b32 s65, s58, s61")
        e("s_cselect_b32 s88, s28, s20"); e("s_cselect_b32 s89, s29, s21"); e("s_cselect_b32 s90, s30, s22")
        e("s_cmp_eq_u32 s64, 2"); e("s_cselect_b32 s65, s59, s65")
        e("s_cselect_b32 s88, s24, s88"); e("s_cselect_b32 s89, s25, s89"); e("s_cselect_b32 s90, s26, s90")
        e("s_mov_b32 s91, 0x20000")
    def coop_touch(c0, n, colb, wonly, tv):
        lab = e.label("K1_CT")
        if wonly: e("s_cmp_lg_u32 s64, 1")
        else: e("s_cmp_eq_u32 s64, 0")
        e(f"s_cbranch_scc1 {lab}")
        e.cond_begin()
        e("s_cmp_eq_u32 s64, 2")
        e("s_cselect_b32 s58, 7, 15")
        e("s_cselect_b32 s59, 3, 4")
        e(f"v_and_b32 v{tv}, s58, v0")
        e(f"v_lshrrev_b32 v{tv+1}, s59, v0")
        e(f"v_min_u32 v{tv+1}, {n-1}, v{tv+1}")
        e("s_cmp_eq_u32 s64, 1")
        e("s_movk_i32 s58, 896")
        e("s_cselect_b32 s58, 3584, s58")
        e("s_movk_i32 s59, 128")
        e(f"s_cselect_b32 s59, {64*3584}, s59")
        e(f"s_mov_b32 s61, {c0*128}")
        e(f"s_cselect_b32 s61, {c0*64*3584 + colb}, s61")
        e(f"v_mul_lo_u32 v{tv}, s58, v{tv}")
        e(f"v_mul_lo_u32 v{tv+1}, s59, v{tv+1}")
        e("s_add_u32 s61, s61, s65")
        e(f"s_mov_b32 m0, {M_PF0}")
        e(f"v_add_u32 v{tv}, v{tv}, v{tv+1}")
        e(f"buffer_load_dword v{tv}, s[88:91], s61 offen lds")
        e.cond_end()
        e.raw(f"{lab}:")
    srd(e, 68, 64, 896)
    if COOP:
        bz_w_srds()
        coop_setup()
        coop_touch(0, 3, 0, False, 34)
        queue(("X",0))
        for _ in range(2): dmaq.popleft()()
    else:
        queue(("X",0))
        for _ in range(2): dmaq.popleft()()
        bz_w_srds()
    queue(("Z",0))
    dmaq.popleft()()
    srd(e, 40, 6, 896)
    srd(e, 44, 62, 896)
    srd(e, 32, 18, WS_END if not G.PROFILE else (16 << 20))
    srd(e, 36, 16, 256)
    e("s_mov_b32 s60, 0")
    e("s_cmp_lt_u32 s48, 2")
    e("s_cselect_b32 s61, 1, 0")
    e("s_cmp_lt_u32 s53, 8")
    e("s_cselect_b32 s60, s61, 0")
    e("s_cmp_eq_u32 s48, 2")
    e("s_cselect_b32 s61, 2, 0")
    e("s_cmp_lt_u32 s52, 8")
    e("s_cselect_b32 s61, s61, 0")
    e("s_or_b32 s60, s60, s61")
    e("s_lshl_b32 s56, s52, 7")
    e("s_lshl_b32 s57, s53, 4")
    e("s_add_u32 s56, s56, s57")
    e("s_lshl_b32 s57, s48, 3")
    e("s_add_u32 s56, s56, s57")
    e("s_lshl_b32 s57, s53, 5")
    e("s_and_b32 s58, s52, 3")
    e("s_lshl_b32 s58, s58, 3")
    e("s_add_u32 s57, s57, s58")
    e("s_cmp_eq_u32 s60, 2")
    e("s_cselect_b32 s59, s57, s56")
    e("s_cmp_ge_u32 s52, 4")
    e("s_cselect_b32 s92, s10, s8")
    e("s_cselect_b32 s93, s11, s9")
    e("s_cselect_b32 s62, 448, 0")
    e("s_cmp_eq_u32 s60, 2")
    e("s_cselect_b32 s92, s92, s20")
    e("s_cselect_b32 s93, s93, s21")
    e(f"s_mov_b32 s94, {2048*448*2}")
    e(f"s_cselect_b32 s94, {448*448*2}, s94")
    e("s_cselect_b32 s62, s62, 0")
    e("s_and_b32 s93, s93, 0xffff")
    e("s_mov_b32 s95, 0x20000")
    e("s_add_u32 s62, s62, s59")
    e("s_mul_i32 s63, s59, 896")
    e(f"s_mul_i32 s11, s76, {64*3584}")
    e("s_add_u32 s11, s11, s72")
    queue(("W",0))
    for _ in range(2): dmaq.popleft()()
    pr = G.Prof(e, 0); pr.stamp()
    e("v_and_b32 v40, 15, v0")
    e("s_lshl_b32 s56, s53, 5")
    e("s_lshl_b32 s57, s55, 4")
    e("s_add_u32 s78, s56, s57")
    e("v_add_u32 v41, s78, v40")
    e("v_lshlrev_b32 v42, 1, v41")
    tp = [e("buffer_load_ushort v43, v42, s[40:43], 0 offen"),
          e("buffer_load_ushort v44, v42, s[44:47], 0 offen"),
          e("buffer_load_ushort v45, v42, s[68:71], 0 offen")]
    e("v_lshrrev_b32 v34, 3, v0")
    e("v_and_b32 v35, 7, v0")
    e("v_mul_u32_u24 v36, 896, v34")
    e("v_lshl_add_u32 v36, v35, 4, v36")
    RB = 192
    labrb = e.label("K1_NORB")
    e("s_cmp_eq_u32 s60, 0")
    e(f"s_cbranch_scc1 {labrb}")
    e.cond_begin()
    for k in range(7): e(f"buffer_load_dwordx4 v[{RB+4*k}:{RB+4*k+3}], v36, s[92:95], s63 offen offset:{128*k}")
    e.cond_end()
    e.raw(f"{labrb}:")
    def rowbatch_compute():
        lab = e.label("K1_NORC")
        e("s_cmp_eq_u32 s60, 0")
        e(f"s_cbranch_scc1 {lab}")
        e.cond_begin()
        e.raw(f"s_waitcnt vmcnt({min(63, e.vm_issued - vm_at_rb)})")
        e("s_mov_b32 s58, 0x3f803f80")
        e("v_mov_b32 v220, 0"); e("v_mov_b32 v221, 0"); e("v_mov_b32 v222, 0"); e("v_mov_b32 v223, 0")
        for k in range(28):
            e(f"v_dot2c_f32_bf16 v{220 + (k&1)}, s58, v{RB+k}")
            e(f"v_dot2c_f32_bf16 v{222 + (k&1)}, v{RB+k}, v{RB+k}")
        e("s_nop 2")
        e("v_add_f32 v220, v220, v221")
        e("v_add_f32 v221, v222, v223")
        for r_ in (220, 221):
            e(f"v_add_f32_dpp v{r_}, v{r_}, v{r_} quad_perm:[1,0,3,2] row_mask:0xf bank_mask:0xf")
            e(f"v_add_f32_dpp v{r_}, v{r_}, v{r_} quad_perm:[2,3,0,1] row_mask:0xf bank_mask:0xf")
            e(f"v_add_f32_dpp v{r_}, v{r_}, v{r_} row_half_mirror row_mask:0xf bank_mask:0xf")
        e("v_mov_b32 v224, v220")
        e(f"v_mul_f32 v220, {f32(1.0/448)}, v220")
        e(f"v_mul_f32 v221, {f32(1.0/448)}, v221")
        e("v_fma_f32 v221, -v220, v220, v221")
        e("v_max_f32 v221, 0, v221")
        e("v_cvt_pk_bf16_f32 v220, v220, v221")
        e("v_and_b32 v221, 0xffff0000, v220")
        e("v_lshlrev_b32 v220, 16, v220")
        e(f"v_add_f32 v221, {f32(1e-5)}, v221")
        e("v_cvt_pk_bf16_f32 v221, v221, v221")
        e("v_lshlrev_b32 v221, 16, v221")
        e("v_sqrt_f32 v221, v221")
        e("v_cvt_pk_bf16_f32 v221, v221, v221")
        e("v_lshlrev_b32 v221, 16, v221")
        e.cond_end()
        e.raw(f"{lab}:")
    def rowbatch_publish():
        lab = e.label("K1_NORP"); labx = e.label("K1_RPX")
        e("s_cmp_eq_u32 s60, 0")
        e(f"s_cbranch_scc1 {lab}")
        e.cond_begin()
        e("v_lshrrev_b32 v226, 3, v0")
        e("v_add_u32 v226, s62, v226")
        e("v_and_b32 v227, 7, v0")
        e("v_cmp_eq_u32 vcc, 0, v227")
        e("s_and_saveexec_b64 s[58:59], vcc")
        e("s_cmp_eq_u32 s60, 1")
        e(f"s_cbranch_scc1 {labx}")
        e("v_lshlrev_b32 v226, 3, v226")
        e("v_mov_b32 v228, v224"); e("v_mov_b32 v229, s98")
        e(f"s_mov_b32 s61, {WS_CSB}")
        e("buffer_store_dwordx2 v[228:229], v226, s[32:35], s61 offen sc1")
        e("s_mov_b64 exec, s[58:59]")
        e(f"s_branch {lab}")
        e.raw(f"{labx}:")
        e("v_lshlrev_b32 v226, 4, v226")
        e("v_mov_b32 v228, v220"); e("v_mov_b32 v229, s98"); e("v_mov_b32 v230, v221"); e("v_mov_b32 v231, s98")
        e(f"s_mov_b32 s61, {WS_STAT}")
        e("buffer_store_dwordx4 v[228:231], v226, s[32:35], s61 offen sc1")
        e("s_mov_b64 exec, s[58:59]")
        e.cond_end()
        e.raw(f"{lab}:")
    RBWAIT = [0]
    vm_at_rb = e.vm_issued
    def rot_entry(t):
        if ROT == 2 and t == 1:
            e("s_and_b32 s56, s51, 3"); e("s_lshl_b32 s56, s56, 1"); e("s_lshr_b32 s57, s51, 2"); e("s_add_u32 s56, s56, s57")
            e("s_cmp_ge_u32 s56, 6"); e("s_cselect_b32 s57, 6, 0"); e("s_sub_u32 s56, s56, s57")
            e("s_cmp_ge_u32 s56, 6"); e("s_cselect_b32 s57, 6, 0"); e("s_sub_u32 s56, s56, s57")
            e("s_add_u32 s76, s56, 1")
        elif ROT == 2:
            e("s_add_u32 s76, s76, 1"); e("s_cmp_eq_u32 s76, 7"); e("s_cselect_b32 s76, 1, s76")
        else:
            e("s_add_u32 s76, s76, 1")
            e("s_cmp_eq_u32 s76, 7")
            e("s_cselect_b32 s76, 0, s76")
        e(f"s_lshl_b32 s{4+t}, s76, 7")
        e(f"s_mul_i32 s{11+t}, s76, {64*3584}")
        e(f"s_add_u32 s{4+t}, s{4+t}, s66")
        e(f"s_add_u32 s{11+t}, s{11+t}, s72")
    for t in range(1, 7): rot_entry(t)
    queue(("X",1),("Z",1),("W",1),("X",2),("Z",2),("W",2),("W",3))
    for _ in range(max(0, PRO_DMAS - 5)): dmaq.popleft()()
    if PSTAMP: pr.stamp()
    nonce_cas(e, 120)
    def issue_for_tick(tk):
        l = []
        if tk >= 1:
            if tk + 2 < 7: l += [("X", tk+2), ("Z", tk+2)]
            if tk + 3 < 14: l += [("W", tk+3)]
        return l

    e("v_and_b32 v34, 31, v0")
    e("v_lshrrev_b32 v35, 4, v34")
    e("v_bfe_u32 v36, v34, 2, 1")
    e("v_lshl_add_u32 v35, v36, 1, v35")
    e("v_bfe_u32 v36, v34, 3, 1")
    e("v_lshlrev_b32 v35, 3, v35")
    e("v_lshl_add_u32 v35, v36, 2, v35")
    e("v_and_b32 v36, 3, v34")
    e("v_add_u32 v35, v35, v36")
    e("v_lshrrev_b32 v36, 5, v0")
    e(f"v_lshl_add_u32 v{VH}, v36, 5, v35")
    e(f"v_lshlrev_b32 v{VH}, 4, v{VH}")
    e("s_lshl_b32 s56, s54, 5")
    e("v_add_u32 v37, s56, v35")
    e(f"v_lshlrev_b32 v{AX}, 7, v37")
    e("v_bfe_u32 v38, v35, 1, 3")
    e("v_xor_b32 v38, v38, v36")
    e(f"v_lshl_add_u32 v{AX}, v38, 4, v{AX}")
    for kk in range(1, 4): e(f"v_xor_b32 v{AX+kk}, {kk<<5}, v{AX}")
    e("v_bfe_u32 v38, v0, 4, 1")
    e(f"v_lshlrev_b32 v{AZr}, 12, v38")
    e("s_lshl_b32 s56, s55, 4")
    e("v_and_b32 v40, 15, v0")
    e("v_add_u32 v39, s56, v40")
    e(f"v_lshl_add_u32 v{AZr}, v39, 7, v{AZr}")
    e("v_bfe_u32 v39, v40, 1, 3")
    e("v_xor_b32 v39, v39, v36")
    e(f"v_lshl_add_u32 v{AZr}, v39, 4, v{AZr}")
    e(f"v_add_u32 v{AZr}, {ZR}, v{AZr}")
    for kk in range(1, 4): e(f"v_xor_b32 v{AZr+kk}, {kk<<5}, v{AZr}")
    e(f"v_lshlrev_b32 v{AW0}, 13, v38")
    e("v_lshrrev_b32 v39, 2, v40")
    e("v_lshl_add_u32 v39, v36, 3, v39")
    e(f"v_lshl_add_u32 v{AW0}, v39, 7, v{AW0}")
    e("v_lshrrev_b32 v39, 3, v40")
    e("v_lshl_add_u32 v39, v38, 1, v39")
    e("s_lshl_b32 s56, s55, 1")
    e("v_xor_b32 v39, s56, v39")
    e(f"v_lshl_add_u32 v{AW0}, v39, 5, v{AW0}")
    e("v_and_b32 v39, 3, v40")
    e(f"v_lshl_add_u32 v{AW0}, v39, 3, v{AW0}")
    e(f"v_add_u32 v{AW0}, {WR}, v{AW0}")
    e(f"v_xor_b32 v{AW1}, 32, v{AW0}")
    e("s_lshl_b32 s56, s52, 2")
    e("s_add_u32 s56, s56, s54")
    e("s_mul_i32 s56, s56, 112")
    e("s_lshl_b32 s57, s53, 3")
    e("s_add_u32 s56, s56, s57")
    e("s_lshl_b32 s57, s55, 1")
    e("s_add_u32 s56, s56, s57")
    e("s_lshl_b32 s79, s56, 10")
    if WS_HF: e(f"s_add_u32 s79, s79, {WS_HF}")

    def params():
        e.wait(tp); yield
        e("s_bitcmp1_b32 s54, 0"); e("s_cselect_b64 s[40:41], -1, 0")
        e("s_bitcmp1_b32 s54, 1"); e("s_cselect_b64 s[42:43], -1, 0")
        e("s_mov_b32 s44, 0xffff0000"); e("s_mov_b32 s45, 0xffff0000")
        e("s_mov_b32 s46, 0"); e("s_mov_b32 s47, -1")
        e("v_lshlrev_b32 v43, 16, v43"); yield
        e("v_lshlrev_b32 v44, 16, v44"); yield
        e("v_lshlrev_b32 v45, 16, v45"); yield
        e(f"v_mul_f32 v45, {f32(LOG2E)}, v45"); yield
        e("v_exp_f32 v45, v45"); yield
        e("v_cvt_pk_bf16_f32 v45, v45, v45"); yield
        e("v_lshlrev_b32 v45, 16, v45"); yield
        e("v_mul_f32 v34, v45, v43"); yield
        e("v_mul_f32 v35, v45, v44"); yield
        e(f"v_mul_f32 v34, {f32(LOG2E)}, v34"); yield
        e("v_exp_f32 v34, v34"); yield
        e(f"v_mul_f32 v35, {f32(1.0/(2*3.141592653589793))}, v35"); yield
        e("v_fract_f32 v35, v35"); yield
        e("v_cos_f32 v36, v35"); yield
        e("v_sin_f32 v37, v35"); yield
        e(f"v_mul_f32 v{LR}, v34, v36"); yield
        e(f"v_mul_f32 v{LI}, v34, v37"); yield
        e(f"v_add_f32 v36, -1.0, v{LR}"); yield
        e("v_mul_f32 v38, v43, v43"); yield
        e("v_fmac_f32 v38, v44, v44"); yield
        e("v_rcp_f32 v38, v38"); yield
        e("v_mul_f32 v39, v36, v43"); yield
        e(f"v_fmac_f32 v39, v{LI}, v44"); yield
        e(f"v_mul_f32 v34, v{LI}, v43"); yield
        e("v_fma_f32 v34, -v36, v44, v34"); yield
        e("v_add_f32 v38, v38, v38"); yield
        e(f"v_mul_f32 v{CR}, v39, v38"); yield
        e(f"v_mul_f32 v{CI}, v34, v38"); yield
        yield from csq(e, 34, 35, LR, LI, 38)
        yield from csq(e, 36, 37, 34, 35, 38)
        yield from csq(e, L8R, L8I, 36, 37, 38)
        e(f"v_mov_b32 v{TR}, 1.0"); yield
        e(f"v_mov_b32 v{TI}, 0"); yield
        e(f"v_mov_b32 v34, v{L8R}"); yield
        e(f"v_mov_b32 v35, v{L8I}"); yield
        for b, m in enumerate(("s[44:45]", "s[46:47]", "s[40:41]", "s[42:43]")):
            yield from cmul(e, 36, 37, TR, TI, 34, 35, 38)
            e(f"v_cndmask_b32 v{TR}, v{TR}, v36, {m}"); yield
            e(f"v_cndmask_b32 v{TI}, v{TI}, v37, {m}"); yield
            e("v_mov_b32 v41, v34"); yield
            e("v_mov_b32 v42, v35"); yield
            yield from csq(e, 34, 35, 41, 42, 38)
        e(f"v_mov_b32 v{L128R}, v34"); yield
        e(f"v_mov_b32 v{L128I}, v35"); yield

    def zbuf(ks): return 96 + (ks & 1)*4
    def wbufA(ks, tl): return 104 + (ks & 1)*8 + tl*4
    def wbufB(ks, tl): return FB + (ks & 1)*8 + tl*4
    first = {}
    def mfma(acc, a, b):
        c = f"v[{acc}:{acc+15}]" if first.get(acc) else "0"
        first[acc] = True
        e(f"v_mfma_f32_32x32x16_bf16 v[{acc}:{acc+15}], v[{a}:{a+3}], v[{b}:{b+3}], {c}")
    rd_tok = {}
    def read_x(ks):
        kk = ks & 3; kc = ks >> 2
        rd_tok[("x", ks)] = [e(f"ds_read_b128 v[{XF+4*ks}:{XF+4*ks+3}], v{AX+kk} offset:{(kc%3)*16384}")]
    def read_z(ks):
        kk = ks & 3; kc = ks >> 2
        rd_tok[("z", ks)] = [e(f"ds_read_b128 v[{zbuf(ks)}:{zbuf(ks)+3}], v{AZr+kk} offset:{(kc%3)*8192}")]
    def read_w(ph, ks, tl, half):
        kk = ks & 3; w = (ks >> 2) + (0 if ph == "A" else 7)
        b = wbufA(ks, tl) if ph == "A" else wbufB(ks, tl)
        ad = AW0 if tl == 0 else AW1
        off = (w % 4)*16384 + kk*2048
        t = e(f"ds_read_b64_tr_b16 v[{b+2*half}:{b+2*half+1}], v{ad} offset:{off+512*half}")
        rd_tok.setdefault((ph, ks, tl), []).append(t)
    steps = [("A", ks) for ks in range(28)] + [("B", ks) for ks in range(28)]
    def tick_idx(ph, ks): return (ks >> 2) + (0 if ph == "A" else 7)
    def need_ents(tk): return [("X",tk),("Z",tk),("W",tk)] if tk < 7 else [("W",tk)]
    nbar = [0]
    def enter_tick(tk):
        while any(x not in ent_tok for x in need_ents(tk)): dmaq.popleft()()
        e.wait([ent_tok[x] for x in need_ents(tk)])
        if tk == 1: nonce_publish(e, 120, M_N)
        e.wait_all(vm=False)
        e("s_barrier")
        nbar[0] += 1
        if tk == 1: nonce_read(e, 121, M_N)
        queue(*issue_for_tick(tk))

    def main_stream():
        sp = env("SETPRIO", 0)
        if sp:
            lab = e.label("K1_SP")
            e("s_cmp_lt_u32 s48, 4" if sp == 1 else "s_cmp_ge_u32 s48, 4")
            e(f"s_cbranch_scc1 {lab}")
            e("s_setprio 1")
            e.raw(f"{lab}:")
        if not RB_LATE: rowbatch_compute()
        if PSTAMP: pr.stamp()
        enter_tick(0)
        if PSTAMP: pr.stamp()
        read_x(0); read_w("A", 0, 0, 0); read_w("A", 0, 0, 1); read_z(0); read_w("A", 0, 1, 0); read_w("A", 0, 1, 1)
        for n, (ph, ks) in enumerate(steps):
            nx = steps[n+1] if n + 1 < len(steps) else None
            x = XF + 4*ks
            if ph == "A":
                ops = [(AG[0], wbufA(ks,0), x, [("x", ks), (ph, ks, 0)]), (AZ, x, zbuf(ks), [("z", ks)]), (AG[1], wbufA(ks,1), x, [(ph, ks, 1)])]
            else:
                ops = [(AG[2], wbufB(ks,0), x, [(ph, ks, 0)]), (AG[3], wbufB(ks,1), x, [(ph, ks, 1)])]
            for si, (acc, a, b, keys) in enumerate(ops):
                e.wait([rd_tok[k] for k in keys])
                mfma(acc, a, b)
                dma_ok = False
                if nx is not None:
                    ph2, ks2 = nx
                    if si == 0 and (ks2 & 3) == 0: enter_tick(tick_idx(ph2, ks2))
                    if ph2 == "A":
                        if si == 0: read_x(ks2); read_w("A", ks2, 0, 0)
                        elif si == 1: read_w("A", ks2, 0, 1); read_z(ks2)
                        else: read_w("A", ks2, 1, 0); read_w("A", ks2, 1, 1); dma_ok = True
                    elif ph == "A":
                        if si == 0: read_w("B", ks2, 0, 0); read_w("B", ks2, 0, 1)
                        elif si == 1: read_w("B", ks2, 1, 0); read_w("B", ks2, 1, 1)
                        else: dma_ok = True
                    else:
                        read_w("B", ks2, si, 0); read_w("B", ks2, si, 1)
                        dma_ok = (si == 1)
                did = False
                if (dma_ok or (len(dmaq) > DMA_HURRY)) and dmaq:
                    dmaq.popleft()(); did = True
                yield (ph, ks, si, did)

    aux = {}
    def tagcheck(regs):
        e(f"v_xor_b32 v44, s98, v{regs[0]}")
        for r in regs[1:]:
            e(f"v_xor_b32 v45, s98, v{r}")
            e("v_or_b32 v44, v44, v45")
        e("v_cmp_ne_u32 vcc, 0, v44")
        e("s_cmp_eq_u64 vcc, 0")
    AXW1, AXW2 = 3, 4
    def only_wave(w, name):
        lab = e.label(name)
        e(f"s_cmp_lg_u32 s48, {w}")
        e(f"s_cbranch_scc1 {lab}")
        e.cond_begin()
        return lab
    def end_only(lab):
        e.cond_end()
        e.raw(f"{lab}:")
    def aux1_issue_raw():
        e("s_lshl_b32 s61, s52, 11")
        e(f"s_add_u32 s61, s61, {WS_STAT}")
        e("v_lshlrev_b32 v120, 4, v0")
        e("buffer_load_dwordx4 v[36:39], v120, s[32:35], s61 offen sc1")
        e("buffer_load_dwordx4 v[40:43], v120, s[32:35], s61 offen offset:1024 sc1")
        e("v_lshrrev_b32 v121, 5, v0")
        e("v_mul_u32_u24 v121, 448, v121")
        e("v_and_b32 v122, 31, v0")
        e("v_add_u32 v121, v121, v122")
        e("s_lshl_b32 s61, s53, 5")
        e("v_add_u32 v121, s61, v121")
        e("v_lshlrev_b32 v121, 3, v121")
        e(f"s_mov_b32 s61, {WS_CSB}")
        e("buffer_load_dwordx2 v[124:125], v121, s[32:35], s61 offen sc1")
    def aux1_issue():
        lab = only_wave(AXW1, "K1_A1I")
        aux1_issue_raw()
        end_only(lab)
        aux["a1_vm"] = e.vm_issued
    def aux1_finish():
        lab = only_wave(AXW1, "K1_A1F")
        e.raw(f"s_waitcnt vmcnt({min(63, e.vm_issued - aux['a1_vm'])})")
        tagged_retry(e, aux1_issue_raw, lambda: tagcheck([37, 39, 41, 43, 125]), "K1_A1", cnt="s63")
        e("v_rcp_f32 v37, v38")
        e("v_rcp_f32 v41, v42")
        e("v_lshlrev_b32 v120, 3, v0")
        e(f"v_add_u32 v120, {M_ST}, v120")
        e("ds_write_b64 v120, v[36:37]")
        e("ds_write_b64 v120, v[40:41] offset:512")
        e("v_lshlrev_b32 v120, 2, v0")
        e(f"v_add_u32 v120, {M_SD}, v120")
        e("ds_write_b32 v120, v38")
        e("ds_write_b32 v120, v42 offset:256")
        e(f"ds_write_b32 v120, v124 offset:{M_CB - M_SD}")
        e.raw("s_waitcnt lgkmcnt(0)")
        end_only(lab)
    def aux1_read():
        e(f"v_and_b32 v34, 0x1f0, v{VH}"); yield
        e("v_lshrrev_b32 v34, 1, v34"); yield
        e("s_lshl_b32 s56, s54, 8")
        e(f"s_add_u32 s56, s56, {M_ST}")
        e("v_add_u32 v35, s56, v34"); yield
        t1 = e("ds_read_b64 v[36:37], v35"); yield
        e("v_lshrrev_b32 v34, 1, v34"); yield
        e("s_lshl_b32 s56, s54, 7")
        e(f"s_add_u32 s56, s56, {M_SD}")
        e("v_add_u32 v34, s56, v34"); yield
        t2 = e(f"ds_read_b32 v{SD}, v34"); yield
        e("v_and_b32 v34, 15, v0"); yield
        e("s_lshl_b32 s56, s55, 6")
        e(f"s_add_u32 s56, s56, {M_CB}")
        e("v_lshlrev_b32 v34, 2, v34"); yield
        e("v_add_u32 v34, s56, v34"); yield
        t3 = [e(f"ds_read_b32 v{CSR}, v34"), e(f"ds_read_b32 v{CSI}, v34 offset:128")]; yield
        e("v_lshrrev_b32 v34, 4, v0"); yield
        e("s_lshl_b32 s56, s54, 8")
        e(f"s_add_u32 s56, s56, {M_ST}")
        e("v_lshlrev_b32 v34, 6, v34"); yield
        e("v_add_u32 v34, s56, v34"); yield
        e.wait(t1); yield
        e(f"v_mov_b32 v{M_}, v36"); yield
        e(f"v_mul_f32 v{NLR}, {f32(-LOG2E)}, v37"); yield
        aux["st"] = [e("ds_read_b128 v[36:39], v34"), e("ds_read_b128 v[40:43], v34 offset:16")]
        aux["lane"] = [t2, t3]
        yield
    def aux2_issue_raw():
        e("s_lshl_b32 s61, s53, 10")
        e(f"s_add_u32 s61, s61, {WS_CSW}")
        e("v_lshlrev_b32 v136, 4, v0")
        e("buffer_load_dwordx4 v[128:131], v136, s[32:35], s61 offen sc1")
        e(f"s_add_u32 s61, s61, {1792*8}")
        e("buffer_load_dwordx4 v[132:135], v136, s[32:35], s61 offen sc1")
    def aux2_issue():
        lab = only_wave(AXW2, "K1_A2I")
        aux2_issue_raw()
        end_only(lab)
        aux["a2_vm"] = e.vm_issued
    def tagcheck2(regs):
        e(f"v_xor_b32 v137, s98, v{regs[0]}")
        for r in regs[1:]:
            e(f"v_xor_b32 v138, s98, v{r}")
            e("v_or_b32 v137, v137, v138")
        e("v_cmp_ne_u32 vcc, 0, v137")
        e("s_cmp_eq_u64 vcc, 0")
    def aux2_finish():
        lab = only_wave(AXW2, "K1_A2F")
        e.raw(f"s_waitcnt vmcnt({min(63, e.vm_issued - aux['a2_vm'])})")
        tagged_retry(e, aux2_issue_raw, lambda: tagcheck2([129, 131, 133, 135]), "K1_A2", cnt="s63")
        e("v_mov_b32 v129, v130")
        e("v_mov_b32 v133, v134")
        e("v_lshlrev_b32 v136, 3, v0")
        e(f"v_add_u32 v136, {M_CS}, v136")
        e("ds_write_b64 v136, v[128:129]")
        e("ds_write_b64 v136, v[132:133] offset:512")
        e.raw("s_waitcnt lgkmcnt(0)")
        end_only(lab)
    def cs_base():
        e("v_lshrrev_b32 v46, 5, v0"); yield
        e("v_lshlrev_b32 v46, 4, v46"); yield
        e("s_lshl_b32 s56, s55, 7")
        e(f"s_add_u32 s56, s56, {M_CS}")
        e("v_add_u32 v46, s56, v46"); yield
    def cs_reads(tl, CSB):
        o = (tl >> 1)*256 + (tl & 1)*64
        aux[("cs", tl)] = [e(f"ds_read_b128 v[{CSB}:{CSB+3}], v46 offset:{o}"),
                           e(f"ds_read_b128 v[{CSB+4}:{CSB+7}], v46 offset:{o+32}"),
                           e(f"ds_read_b128 v[{CSB+8}:{CSB+11}], v46 offset:{o+512}"),
                           e(f"ds_read_b128 v[{CSB+12}:{CSB+15}], v46 offset:{o+544}")]
        yield

    def z_pass1():
        e.wait(aux["lane"]); yield
        for i in range(8):
            e(f"v_permlane16_swap_b32 v{AZ+i}, v{AZ+8+i}"); yield
        st = list(aux["st"])
        for g in range(4):
            b = 36 + (g & 1)*4
            e.wait(st[g]); yield
            for u in range(2):
                i = 2*g + u; mm = b + 2*u
                e(f"v_fma_f32 v{AZ+i}, -v{mm}, v{CSR}, v{AZ+i}"); yield
                e(f"v_fma_f32 v{AZ+8+i}, -v{mm}, v{CSI}, v{AZ+8+i}"); yield
            for u in range(2):
                i = 2*g + u; rr = b + 2*u + 1
                e(f"v_mul_f32 v{AZ+i}, v{AZ+i}, v{rr}"); yield
                e(f"v_mul_f32 v{AZ+8+i}, v{AZ+8+i}, v{rr}"); yield
            if g + 2 < 4:
                st.append(e(f"ds_read_b128 v[{b}:{b+3}], v34 offset:{(g+2)*16}")); yield
        pr_, pi_ = AZ, AZ + 8
        for i in range(1, 8):
            d = (44, 45) if (i & 1) else (ER, EI)
            yield from cfma_to(e, d[0], d[1], pr_, pi_, LR, LI, AZ+i, AZ+8+i)
            pr_, pi_ = d
        e(f"v_mul_f32 v36, v{CI}, v45"); yield
        e(f"v_mul_f32 v37, v{CI}, v44"); yield
        e(f"v_fma_f32 v{ER}, v{CR}, v44, -v36"); yield
        e(f"v_fma_f32 v{EI}, v{CR}, v45, v37"); yield
    def hier1():
        e(f"v_mov_b32 v1, v{ER}"); yield
        e(f"v_mov_b32 v2, v{ER}"); yield
        e(f"v_mov_b32 v3, v{EI}"); yield
        e(f"v_mov_b32 v4, v{EI}"); yield
        yield from csq(e, 7, 8, L8R, L8I, 34)
        e("v_permlane16_swap_b32 v1, v2"); yield
        e("v_permlane16_swap_b32 v3, v4"); yield
        yield from cfma_to(e, 5, 6, 1, 3, L8R, L8I, 2, 4)
        e("v_mov_b32 v28, v5"); yield
        e("v_mov_b32 v36, v5"); yield
        e("v_mov_b32 v29, v6"); yield
        e("v_mov_b32 v34, v6"); yield
        e("v_and_b32 v35, 15, v0"); yield
        e("s_lshl_b32 s56, s55, 4")
        e("v_add_u32 v35, s56, v35"); yield
        e("v_lshlrev_b32 v35, 3, v35"); yield
        e("v_permlane32_swap_b32 v28, v36"); yield
        e("v_permlane32_swap_b32 v29, v34"); yield
        e(f"v_add_u32 v35, {M_SEG}, v35"); yield
        yield from cfma_to(e, 5, 6, 28, 29, 7, 8, 36, 34)
        e("s_lshl_b32 s56, s54, 8")
        e("v_add_u32 v34, s56, v35"); yield
        e("v_mov_b32 v44, v5"); yield
        e("v_mov_b32 v45, v6"); yield
        e("ds_write_b64 v34, v[44:45]"); yield
    def hier2():
        tk = [e(f"ds_read_b64 v[{36+2*u}:{37+2*u}], v35 offset:{u*256}") for u in range(3)]
        yield
        yield from csq(e, 42, 43, 7, 8, 44)
        e.wait(tk); yield
        yield from cfma_to(e, 44, 45, 36, 37, 42, 43, 38, 39)
        yield from cfma_to(e, 2, 4, 44, 45, 42, 43, 40, 41)
        e("v_cndmask_b32 v2, v44, v2, s[40:41]"); yield
        e("v_cndmask_b32 v4, v45, v4, s[40:41]"); yield
        e("v_cndmask_b32 v36, 0, v36, s[40:41]"); yield
        e("v_cndmask_b32 v37, 0, v37, s[40:41]"); yield
        e("v_cndmask_b32 v36, v36, v2, s[42:43]"); yield
        e("v_cndmask_b32 v37, v37, v4, s[42:43]"); yield
        lab = e.label("K1_NOPUB")
        e("s_cmp_lg_u32 s54, 3")
        e(f"s_cbranch_scc1 {lab}")
        e.cond_begin()
        for _ in cfma_to(e, 38, 40, 36, 37, 42, 43, 5, 6): pass
        e("v_mov_b32 v39, s98"); e("v_mov_b32 v41, s98")
        e("v_and_b32 v34, 15, v0")
        e("v_add_u32 v34, s78, v34")
        e("v_lshlrev_b32 v34, 4, v34")
        e(f"s_mul_i32 s56, s52, {448*16}")
        e(f"s_add_u32 s56, s56, {WS_E}")
        e("s_mov_b64 s[58:59], exec")
        e("s_mov_b64 exec, 0xffff")
        e("buffer_store_dwordx4 v[38:41], v34, s[32:35], s56 offen sc1")
        e("s_mov_b64 exec, s[58:59]")
        e.cond_end()
        e.raw(f"{lab}:")
        yield
        yield from cfma_to(e, 38, 39, 36, 37, 7, 8, 28, 29)
        e("v_cndmask_b32 v36, v36, v38, s[46:47]"); yield
        e("v_cndmask_b32 v37, v37, v39, s[46:47]"); yield
        yield from cfma_to(e, 38, 39, 36, 37, L8R, L8I, 1, 3)
        e(f"v_cndmask_b32 v{PR}, v36, v38, s[44:45]"); yield
        e(f"v_cndmask_b32 v{PI}, v37, v39, s[44:45]"); yield
    def zscale():
        for i in range(0, 8, 2):
            for u in range(2):
                e(f"v_mul_f32 v{36+2*u}, v{CI}, v{AZ+8+i+u}"); yield
                e(f"v_mul_f32 v{37+2*u}, v{CI}, v{AZ+i+u}"); yield
            for u in range(2):
                e(f"v_fma_f32 v{AZ+i+u}, v{CR}, v{AZ+i+u}, -v{36+2*u}"); yield
                e(f"v_fma_f32 v{AZ+8+i+u}, v{CR}, v{AZ+8+i+u}, v{37+2*u}"); yield
    def gu_math(acc, CSB):
        for i in range(8):
            e(f"v_fma_f32 v{acc+i}, -v{M_}, v{CSB+i}, v{acc+i}"); yield
        for i in range(8):
            e(f"v_mul_f32 v{acc+i}, v{acc+i}, v{NLR}"); yield
        for i in range(8):
            e(f"v_exp_f32 v{acc+i}, v{acc+i}"); yield
            e(f"v_fma_f32 v{acc+8+i}, -v{M_}, v{CSB+8+i}, v{acc+8+i}"); yield
        for i in range(8):
            e(f"v_fma_f32 v{acc+i}, v{acc+i}, v{SD}, v{SD}"); yield
        for i in range(8):
            e(f"v_rcp_f32 v{acc+i}, v{acc+i}"); yield
        for i in range(8):
            e(f"v_mul_f32 v{acc+i}, v{acc+i}, v{acc+8+i}"); yield
        for p in range(4):
            e(f"v_cvt_pk_bf16_f32 v{acc+8+p}, v{acc+2*p}, v{acc+2*p+1}"); yield
    def gu_epi(tl, CSB):
        acc = AG[tl]
        e.wait(aux[("cs", tl)]); yield
        yield from gu_math(acc, CSB)
        e(f"s_add_u32 s56, s79, {((tl>>1)*4 + (tl&1))*1024}")
        e(f"buffer_store_dwordx4 v[{acc+8}:{acc+11}], v{VH}, s[32:35], s56 offen{STF}"); yield

    ebq = deque()
    def early_B_setup():
        e(f"v_lshrrev_b32 v{EBV}, 3, v0")
        e("s_lshl_b32 s57, s48, 3")
        e(f"v_add_u32 v{EBV}, s57, v{EBV}")
        e(f"v_mul_u32_u24 v{EBV}, 896, v{EBV}")
        e("v_and_b32 v11, 7, v0")
        e("v_bfe_u32 v12, v0, 4, 1")
        e("v_lshlrev_b32 v12, 2, v12")
        e("v_xor_b32 v11, v11, v12")
        e(f"v_lshl_add_u32 v{EBV}, v11, 4, v{EBV}")
        if os.environ.get("NOPF"):
            e("s_load_dwordx2 s[92:93], s[0:1], 96"); e.raw("s_waitcnt lgkmcnt(0)"); e.smem_out = False; e.lg_done = e.lg_issued
            e("s_and_b32 s93, s93, 0xffff")
        else:
            e("s_mov_b32 s92, s86"); e("s_and_b32 s93, s87, 0xffff")
        e(f"s_mov_b32 s94, {1792*448*2}"); e("s_mov_b32 s95, 0x20000")
        e("s_cmp_ge_u32 s53, 7")
        e("s_cselect_b32 s57, 7, 0")
        e("s_sub_u32 s57, s53, s57")
        e("s_and_b32 s70, s51, 3")
        e("s_mul_i32 s70, s70, 7")
        e("s_lshl_b32 s71, s57, 2")
        e("s_add_u32 s70, s70, s71")
        e("s_cmp_ge_u32 s70, 28")
        e("s_cselect_b32 s71, 28, 0")
        e("s_sub_u32 s70, s70, s71")
        e("s_lshl_b32 s71, s57, 7")
        e("s_lshl_b32 s69, s48, 10")
    def early_B_queue(t0, t1):
        def mk(t):
            def f():
                e(f"s_add_u32 m0, s69, {t*8192}")
                e(f"s_mul_i32 s68, s70, {64*896}")
                e("s_add_u32 s68, s68, s71")
                e(f"buffer_load_dwordx4 v{EBV}, s[92:95], s68 offen lds")
                e("s_add_u32 s70, s70, 1"); e("s_cmp_eq_u32 s70, 28"); e("s_cselect_b32 s70, 0, s70")
            return f
        for t in range(t0, t1): ebq.append(mk(t))
    def drain_eb(gen, every=18):
        k = 0
        for _ in gen:
            k += 1
            if k % every == 0 and ebq: ebq.popleft()()
    M_PF = 162304
    def k2_touch(k, slot):
        PFT = 139 if slot < 18 else 160
        assert slot >= 6
        lab = e.label("K1_PF")
        e(f"s_cmp_lg_u32 s48, {k & 7}")
        e(f"s_cbranch_scc1 {lab}")
        e.cond_begin()
        if k < 7:
            e("s_mul_i32 s61, s51, 448"); e(f"s_add_u32 s61, s61, {64*k}"); base = "s[86:87]"; lim = 12543
        elif k < 9:
            e("s_mul_i32 s61, s51, 112"); e(f"s_add_u32 s61, s61, {64*(k-7)}"); base = "s[88:89]"; lim = 3135
        else:
            e("s_mul_i32 s61, s51, 112"); e(f"s_add_u32 s61, s61, {64*(k-9)}"); base = "s[90:91]"; lim = 3135
        e(f"v_add_u32 v{PFT}, s61, v0")
        e(f"v_min_u32 v{PFT}, {lim}, v{PFT}")
        e(f"s_mov_b32 m0, {M_PF}")
        e(f"v_lshlrev_b32 v{PFT}, 7, v{PFT}")
        e(f"global_load_lds_dword v{PFT}, {base}")
        e.cond_end()
        e.raw(f"{lab}:")
    EL = 160
    def e_issue_raw():
        e("v_lshrrev_b32 v180, 4, v0")
        e("v_and_b32 v181, 15, v0")
        e("v_add_u32 v181, s78, v181")
        e("v_lshlrev_b32 v181, 4, v181")
        e("s_sub_u32 s63, s52, 1")
        e(f"s_mov_b32 s61, {WS_E}")
        for m in range(4):
            e(f"v_add_u32 v{176+m}, {4*m}, v180")
            e(f"v_min_u32 v{176+m}, s63, v{176+m}")
            e(f"v_mul_u32_u24 v{176+m}, {448*16}, v{176+m}")
            e(f"v_add_u32 v{176+m}, v{176+m}, v181")
            e(f"buffer_load_dwordx4 v[{EL+4*m}:{EL+4*m+3}], v{176+m}, s[32:35], s61 offen sc1")
    def e_issue():
        lab = e.label("K1_EI")
        e("s_cmp_eq_u32 s52, 0")
        e(f"s_cbranch_scc1 {lab}")
        e.cond_begin(); e_issue_raw(); e.cond_end()
        e.raw(f"{lab}:")
    def e_consts():
        yield from csq(e, 182, 183, L128R, L128I, 188)
        yield from cmul(e, 184, 185, 182, 183, L128R, L128I, 188)
        yield from csq(e, 186, 187, 182, 183, 188)
        e("v_lshrrev_b32 v190, 4, v0"); yield
        e("s_sub_u32 s63, s52, 1")
        e("v_sub_u32 v190, s63, v190"); yield
        e("v_and_b32 v191, 3, v190"); yield
        e("v_ashrrev_i32 v190, 2, v190"); yield
        e("v_mov_b32 v192, 1.0"); yield
        e("v_mov_b32 v193, 0"); yield
        for k, (rr, ii) in enumerate(((L128R, L128I), (182, 183), (184, 185))):
            e(f"v_cmp_eq_u32 vcc, {k+1}, v191"); yield
            e(f"v_cndmask_b32 v192, v192, v{rr}, vcc"); yield
            e(f"v_cndmask_b32 v193, v193, v{ii}, vcc"); yield
    def e_check(nafter):
        skip = e.label("K1_ESK"); ok = e.label("K1_EOK"); chk = e.label("K1_ECK")
        e("s_cmp_eq_u32 s52, 0")
        e(f"s_cbranch_scc1 {skip}")
        e.cond_begin()
        e.raw(f"s_waitcnt vmcnt({nafter})")
        e("s_mov_b32 s62, 0")
        e.raw(f"{chk}:")
        e(f"v_xor_b32 v44, s98, v{EL+1}")
        for r in (EL+3, EL+5, EL+7, EL+9, EL+11, EL+13, EL+15):
            e(f"v_xor_b32 v45, s98, v{r}")
            e("v_or_b32 v44, v44, v45")
        e("v_cmp_ne_u32 vcc, 0, v44")
        e("s_cmp_eq_u64 vcc, 0")
        e(f"s_cbranch_scc1 {ok}")
        e("s_add_u32 s62, s62, 1")
        e("s_cmp_ge_u32 s62, 100000")
        e(f"s_cbranch_scc1 {ok}")
        e_issue_raw()
        e.raw("s_waitcnt vmcnt(0)")
        e(f"s_branch {chk}")
        e.raw(f"{ok}:")
        e.cond_end()
        e.raw(f"{skip}:")
    def carry_and_pass2():
        lab0 = e.label("K1_NOCARRY")
        e("v_mov_b32 v44, 0"); e("v_mov_b32 v45, 0")
        e("s_cmp_eq_u32 s52, 0")
        e(f"s_cbranch_scc1 {lab0}")
        for m in range(4):
            er, ei = EL+4*m, EL+4*m+2
            e(f"v_cmp_le_i32 vcc, {m}, v190")
            e(f"v_fma_f32 v{er}, v186, v44, v{er}")
            e(f"v_fma_f32 v{ei}, v186, v45, v{ei}")
            e(f"v_fma_f32 v{er}, -v187, v45, v{er}")
            e(f"v_fma_f32 v{ei}, v187, v44, v{ei}")
            e(f"v_cndmask_b32 v44, v44, v{er}, vcc")
            e(f"v_cndmask_b32 v45, v45, v{ei}, vcc")
        e("v_mul_f32 v40, v193, v45")
        e("v_mul_f32 v41, v193, v44")
        e("v_fma_f32 v44, v192, v44, -v40")
        e("v_fma_f32 v45, v192, v45, v41")
        e("v_mov_b32 v40, v44"); e("v_mov_b32 v41, v45")
        e("v_permlane16_swap_b32 v44, v40"); e("v_permlane16_swap_b32 v45, v41")
        e("v_add_f32 v44, v44, v40"); e("v_add_f32 v45, v45, v41")
        e("v_mov_b32 v40, v44"); e("v_mov_b32 v41, v45")
        e("v_permlane32_swap_b32 v44, v40"); e("v_permlane32_swap_b32 v45, v41")
        e("v_add_f32 v44, v44, v40"); e("v_add_f32 v45, v45, v41")
        e.raw(f"{lab0}:")
        e(f"v_fma_f32 v{PR}, v{TR}, v44, v{PR}")
        e(f"v_fma_f32 v{PI}, v{TR}, v45, v{PI}")
        e(f"v_fma_f32 v{PR}, -v{TI}, v45, v{PR}")
        e(f"v_fma_f32 v{PI}, v{TI}, v44, v{PI}")
        pr_, pi_ = PR, PI
        for i in range(8):
            zr, zi = AZ + i, AZ + 8 + i
            e(f"v_fma_f32 v{zr}, v{LR}, v{pr_}, v{zr}")
            e(f"v_fma_f32 v{zi}, v{LR}, v{pi_}, v{zi}")
            e(f"v_fma_f32 v{zr}, -v{LI}, v{pi_}, v{zr}")
            e(f"v_fma_f32 v{zi}, v{LI}, v{pr_}, v{zi}")
            pr_, pi_ = zr, zi
        for p in range(4):
            e(f"v_cvt_pk_bf16_f32 v{36+p}, v{AZ+2*p}, v{AZ+2*p+1}")
            e(f"v_cvt_pk_bf16_f32 v{40+p}, -v{AZ+8+2*p}, -v{AZ+8+2*p+1}")
        e("ds_write_b128 v1, v[36:39]")
        e("ds_write_b128 v1, v[40:43] offset:1024")
        e.wait_all(vm=False)
        tk = [e("ds_read_b64_tr_b16 v[36:37], v2"), e("ds_read_b64_tr_b16 v[38:39], v2 offset:256"),
              e("ds_read_b64_tr_b16 v[40:41], v2 offset:1024"), e("ds_read_b64_tr_b16 v[42:43], v2 offset:1280")]
        e.wait(tk)
        e(f"buffer_store_dwordx4 v[36:39], v3, s[32:35], s76 offen{STF}")
        e("s_add_u32 s76, s76, 4096")
        e(f"buffer_store_dwordx4 v[40:43], v3, s[32:35], s76 offen{STF}")
    def tail_addr():
        e("s_lshl_b32 s56, s48, 11")
        e(f"s_add_u32 s56, s56, {M_TR}")
        e("v_and_b32 v1, 15, v0"); yield
        e("v_lshlrev_b32 v1, 6, v1"); yield
        e("v_lshrrev_b32 v2, 4, v0"); yield
        e("v_lshl_add_u32 v1, v2, 4, v1"); yield
        e("v_add_u32 v1, s56, v1"); yield
        e("v_lshrrev_b32 v2, 5, v0"); yield
        e("v_bfe_u32 v3, v0, 2, 2"); yield
        e("v_lshl_add_u32 v2, v2, 3, v3"); yield
        e("v_lshlrev_b32 v2, 6, v2"); yield
        e("v_bfe_u32 v3, v0, 4, 1"); yield
        e("v_lshl_add_u32 v2, v3, 5, v2"); yield
        e("v_and_b32 v3, 3, v0"); yield
        e("v_lshl_add_u32 v2, v3, 3, v2"); yield
        e("v_add_u32 v2, s56, v2"); yield
        e("v_lshlrev_b32 v3, 4, v0"); yield
        e("s_lshl_b32 s56, s53, 1")
        e("s_add_u32 s56, s56, s55")
        e("s_lshr_b32 s57, s56, 2")
        e("s_lshl_b32 s57, s57, 3")
        e("s_and_b32 s56, s56, 3")
        e("s_add_u32 s56, s56, s57")
        e("s_lshl_b32 s57, s52, 2")
        e("s_add_u32 s57, s57, s54")
        e("s_mul_i32 s57, s57, 56")
        e("s_add_u32 s56, s56, s57")
        e("s_lshl_b32 s56, s56, 10")
        e(f"s_add_u32 s76, s56, {WS_hF}")
        yield

    def cost(i):
        if i.cls == "valu": return 2.0 if i.op in TRANS else 1.0
        if i.cls in ("ds", "vmem"): return 0.5
        return 0.1
    class Fill:
        def __init__(self): self.q = []; self.cur = None; self.barrier_at = None
        def add(self, *items): self.q += list(items)
        def run(self, budget, tick):
            spent = 0.0
            while spent < budget:
                if self.cur is None:
                    if not self.q: return
                    it = self.q[0]
                    if it == "barrier":
                        if self.barrier_at is None: self.barrier_at = tick
                        if tick <= self.barrier_at: return
                        self.barrier_at = None; self.q.pop(0); continue
                    if it == "aux2gate":
                        if "a2_tick" not in aux or tick <= aux["a2_tick"]: return
                        self.q.pop(0); continue
                    if it == "step17":
                        if tick < 13: return
                        self.q.pop(0); continue
                    self.q.pop(0); self.cur = it() if callable(it) else it
                n0 = len(e.ins)
                try: next(self.cur)
                except StopIteration: self.cur = None
                spent += sum(cost(i) for i in e.ins[n0:])
        def flush(self):
            while self.cur is not None or self.q:
                if self.cur is None:
                    it = self.q.pop(0)
                    if it == "step17": continue
                    if it == "barrier" or it == "aux2gate":
                        e.wait_all(vm=False); e("s_barrier"); self.barrier_at = None
                        continue
                    self.cur = it() if callable(it) else it
                for _ in self.cur: pass
                self.cur = None
    F = Fill()
    F.add(params)
    slot = {"A": 0, "B": 0}
    last = None
    for (ph, ks, si, did) in main_stream():
        if (ph, ks) != last and (ph, ks) in STAMPS: pr.stamp()
        last = (ph, ks)
        n = slot[ph]; slot[ph] += 1
        tk = nbar[0]
        if NOEPI:
            if ph == "A" and not did: F.run(BUDGET_A, tk)
            continue
        if ph == "A":
            if COOP and n == CT2: coop_touch(3, 4, 0, False, 226)
            if COOP and n == CT3: coop_touch(0, 4, 128, True, 226)
            if COOP and n == CT4: coop_touch(4, 3, 128, True, 226)
            if n == RB_SLOT and RB_LATE: rowbatch_compute()
            if n == PUB_SLOT: rowbatch_publish()
            if n == AUX_LOAD: F.flush(); aux1_issue()
            if n == AUX_FIN: aux1_finish(); F.add("barrier", aux1_read)
            if not did: F.run(BUDGET_A, tk)
        else:
            if n == 0:
                F.flush()
                if ZFIRST:
                    drain(z_pass1()); drain(hier1())
                    e.wait_all(vm=False); e("s_barrier")
                    drain(hier2())
                    F.add(zscale, cs_base, tail_addr, "aux2gate",
                          lambda: cs_reads(0, 128), lambda: cs_reads(1, 144), lambda: gu_epi(0, 128),
                          lambda: cs_reads(2, 128), lambda: gu_epi(1, 144), lambda: cs_reads(3, 144), "step17", e_consts)
                else:
                  F.add(z_pass1, hier1, "barrier", hier2, zscale, cs_base, "aux2gate",
                      lambda: cs_reads(0, 128), lambda: cs_reads(1, 144), lambda: gu_epi(0, 128),
                      lambda: cs_reads(2, 128), lambda: gu_epi(1, 144), lambda: cs_reads(3, 144), tail_addr)
            if fused and G.EARLY_B and n == 1:
                early_B_setup(); early_B_queue(0, G.EARLY_B1)
            if fused and n >= EB_SLOT and (n - EB_SLOT) % EB_GAP == 0 and ebq and (n & 1) == 0: ebq.popleft()()
            if n == AUX2_SLOT: aux2_issue()
            if n == AUX2_FIN: aux2_finish(); aux["a2_tick"] = tk
            if PF_SLOT >= 0 and n >= PF_SLOT and (n - PF_SLOT) % PF_GAP == 0 and (n - PF_SLOT) // PF_GAP < 11: k2_touch((n - PF_SLOT) // PF_GAP, n)
            if not did: F.run(BUDGET_B0 if n < BSW else BUDGET_B, tk)
    if NOEPI:
        pr.dump(32, 48)
        e.raw("K1_END:")
        e("s_endpgm")
        gen_helper(e)
        return 256
    e_issue(); aux["e_vm"] = e.vm_issued
    if fused and G.EARLY_B > G.EARLY_B1:
        while ebq: ebq.popleft()()
        e.wait_all(vm=False); e("s_barrier")
        early_B_queue(G.EARLY_B1, G.EARLY_B)
    if TAILST2: pr.stamp()
    F.flush()
    if TAILST2: pr.stamp()
    if not ZFIRST and not ECLATE: drain_eb(e_consts(), 12)
    drain_eb(gu_epi(2, 128), 10)
    if TAILST2: pr.stamp()
    drain_eb(gu_epi(3, 144), 10)
    while ebq: ebq.popleft()()
    if not ZFIRST and ECLATE: drain(e_consts())
    if TAILST: pr.stamp()
    e_check(e.vm_issued - aux["e_vm"])
    if TAILST2: pr.stamp()
    carry_and_pass2()
    pr.stamp()
    pr.dump(32, 48)
    if fused:
        if G.PROFILE: e("s_mov_b64 exec, -1")
        G.gen_k2(e, fused=True)
    e.raw("K1_END:")
    e("s_endpgm")
    gen_helper(e)
    return 256
```

```python
import sys, os
sys.path.insert(0, "dev")
from asmlib import *
import gen as G
from gen import *
from k1_common import *
from collections import deque

env = lambda k, d: type(d)(os.environ.get(k, d)) if not isinstance(d, bool) else os.environ.get(k, "1" if d else "0") == "1"
STAMPS = eval(os.environ.get("STAMPS", '[("A",0),("A",27),("B",0),("B",27)]'))
NOEPI = env("NOEPI", False); NODMA = env("NODMA", False)
PRO_DMAS = env("PRO_DMAS", 10); MAP2 = env("MAP2", True); COOP = env("COOP", False); ROT = env("ROT", 1 if not COOP else 0)
CT2 = env("CT2", 1); CT3 = env("CT3", 22); CT4 = env("CT4", 34)
EB_SLOT = env("EB_SLOT", 4); EB_GAP = env("EB_GAP", 6); EBV = 13
PF_GAP = env("PF_GAP", 4); PF_SLOT = env("PF_SLOT", -1); AUX2_SLOT = env("AUX2_SLOT", 6); E_SLOT = env("E_SLOT", 48)
AUX2_FIN = env("AUX2_FIN", 26)
AUX_LOAD = env("AUX_LOAD", 50); AUX_FIN = env("AUX_FIN", 68); PUB_SLOT = env("PUB_SLOT", 11)
BUDGET_A = env("BUDGET_A", 4.0); BUDGET_B = env("BUDGET_B", 6.0); BUDGET_B0 = env("BUDGET_B0", 7.0)

DMAFLAG = os.environ.get("DMAFLAG", "")
if DMAFLAG: DMAFLAG = " " + DMAFLAG
BSW = env("BSW", 30); ECLATE = env("ECLATE", False); ZFIRST = env("ZFIRST", False); TAILST2 = env("TAILST2", False); TAILST = env("TAILST", True); PSTAMP = env("PSTAMP", False); DMA_HURRY = env("DMA_HURRY", 6); RB_LATE = env("RB_LATE", True); RB_SLOT = env("RB_SLOT", 7)
XR, ZR, WR = 0, 49152, 73728
MISC = 139264
M_ST = MISC; M_CS = MISC + 1024; M_SEG = MISC + 2048; M_N = MISC + 3072
M_SD = MISC + 3328; M_CB = MISC + 3840
M_PART = MISC + 3328
M_PB = MISC + 5376
M_TR = MISC + 6656
AX, AZr, AW0, AW1 = 1, 5, 9, 10
VX0, VX1, VZ, VW = 11, 12, 13, 14
LR, LI, CR, CI, L8R, L8I, L128R, L128I, TR, TI = 15, 16, 17, 18, 19, 20, 21, 22, 23, 24
M_, SD, NLR, CSR, CSI, PR, PI, ER, EI = 25, 26, 27, 28, 29, 30, 31, 32, 33
VH = 47

AZ = 48
AG = [64, 80, 96, 112]
XF = 128
FB = 240

def gen_k1(e, fused=False, kname="k1_kernel"):
    STF = os.environ.get("STF", " sc1") if fused else ""
    e.raw(f"{kname}:")
    e("s_cmp_ge_u32 s2, 256")
    e("s_cbranch_scc1 K1_END")
    if env("CODEPF", False): e("s_getpc_b64 s[84:85]")
    e.raw("K1_CODE_FIRST:")
    e("s_load_dwordx2 s[4:5], s[0:1], 0")
    e("s_load_dwordx2 s[6:7], s[0:1], 8")
    e("s_load_dwordx2 s[8:9], s[0:1], 24")
    e("s_load_dwordx2 s[10:11], s[0:1], 32")
    e("s_load_dwordx2 s[12:13], s[0:1], 80")
    e("s_load_dwordx2 s[14:15], s[0:1], 88")
    e("s_load_dwordx2 s[16:17], s[0:1], 112")
    e("s_load_dwordx2 s[18:19], s[0:1], 120")
    e("s_load_dwordx2 s[62:63], s[0:1], 16")
    e("s_load_dwordx2 s[86:87], s[0:1], 96")
    e("s_load_dwordx2 s[88:89], s[0:1], 40")
    e("s_load_dwordx2 s[90:91], s[0:1], 48")
    t = e("s_load_dwordx2 s[64:65], s[0:1], 56")
    e("v_lshrrev_b32 v1, 6, v0")
    e("v_and_b32 v0, 63, v0")
    e("v_readfirstlane_b32 s48, v1")
    e("s_sub_u32 s49, s2, 32")
    e("s_and_b32 s50, s49, 7")
    e("s_lshr_b32 s51, s49, 3")
    if MAP2:
        e("s_mul_i32 s54, s51, 37")
        e("s_lshr_b32 s54, s54, 8")
        e("s_mul_i32 s53, s54, 7")
        e("s_sub_u32 s55, s51, s53")
        e("s_and_b32 s52, s50, 3")
        e("s_lshl_b32 s53, s54, 2")
        e("s_add_u32 s52, s52, s53")
        e("s_lshl_b32 s51, s55, 2")
        e("s_add_u32 s51, s51, s54")
        e("s_lshr_b32 s53, s50, 2")
        e("s_mul_i32 s53, s53, 7")
        e("s_add_u32 s53, s53, s55")
    else:
        e("s_and_b32 s52, s50, 3")
        e("s_lshl_b32 s52, s52, 2")
        e("s_and_b32 s53, s51, 3")
        e("s_add_u32 s52, s52, s53")
        e("s_lshr_b32 s53, s50, 2")
        e("s_mul_i32 s53, s53, 7")
        e("s_lshr_b32 s54, s51, 2")
        e("s_add_u32 s53, s53, s54")
    e("s_and_b32 s54, s48, 3")
    e("s_lshr_b32 s55, s48, 2")
    e("v_lshrrev_b32 v40, 3, v0")
    e("v_and_b32 v41, 7, v0")
    e("v_lshrrev_b32 v42, 4, v0")
    e("s_movk_i32 s56, 896")
    e("s_lshl_b32 s57, s48, 4")
    e("v_add_u32 v43, s57, v40")
    e("v_mul_lo_u32 v43, s56, v43")
    e("v_xor_b32 v44, v41, v42")
    e(f"v_lshl_add_u32 v{VX0}, v44, 4, v43")
    e("v_add_u32 v44, 4, v42")
    e("v_xor_b32 v44, v41, v44")
    e(f"v_lshl_add_u32 v{VX1}, v44, 4, v43")
    e(f"v_add_u32 v{VX1}, {8*896}, v{VX1}")
    e("s_lshl_b32 s57, s54, 3")
    e("v_add_u32 v43, s57, v40")
    e("v_mul_lo_u32 v43, s56, v43")
    e("s_and_b32 s57, s48, 1")
    e("s_lshl_b32 s57, s57, 2")
    e("v_add_u32 v44, s57, v42")
    e("v_xor_b32 v44, v41, v44")
    e(f"v_lshl_add_u32 v{VZ}, v44, 4, v43")
    e("s_lshl_b32 s57, s54, 3")
    e("v_add_u32 v43, s57, v40")
    e("s_movk_i32 s56, 3584")
    e("v_mul_lo_u32 v43, s56, v43")
    e("v_and_b32 v44, 1, v42")
    e("s_lshl_b32 s57, s55, 1")
    e("v_add_u32 v44, s57, v44")
    e("v_lshlrev_b32 v44, 1, v44")
    e("v_xor_b32 v44, v41, v44")
    e(f"v_lshl_add_u32 v{VW}, v44, 4, v43")
    e(f"s_mul_i32 s66, s52, {128*896}")
    e(f"s_mul_i32 s67, s53, {32*896}")
    e("s_lshl_b32 s72, s53, 8")
    e("s_lshl_b32 s73, s48, 11")
    e("s_lshl_b32 s74, s48, 10")
    e(f"s_add_u32 s74, s74, {ZR}")
    e("s_lshl_b32 s75, s55, 13")
    e("s_lshl_b32 s76, s54, 10")
    e("s_add_u32 s75, s75, s76")
    e(f"s_add_u32 s75, s75, {WR}")
    e.wait(t)
    e("s_cmp_lt_u32 s2, 32")
    e("s_cbranch_scc1 K1_HELPER")
    srd(e, 20, 4, 2048*448*2)
    if ROT == 1:
        e("s_and_b32 s56, s51, 3")
        e("s_lshl_b32 s56, s56, 1")
        e("s_lshr_b32 s57, s51, 2")
        e("s_add_u32 s56, s56, s57")
        e("s_cmp_ge_u32 s56, 7")
        e("s_cselect_b32 s57, 7, 0")
        e("s_sub_u32 s77, s56, s57")
    else:
        e("s_mov_b32 s77, 0")
    e("s_mov_b32 s76, s77")
    e("s_lshl_b32 s4, s76, 7")
    e("s_add_u32 s4, s4, s66")
    e("s_sub_u32 s67, s67, s66")
    ent_tok = {}
    dmaq = deque()
    def entry_dmas(kind, kc):
        def mk(a, last):
            def f():
                if NODMA:
                    if last: ent_tok[(kind, kc)] = None
                    return
                if kind == "X":
                    e(f"s_add_u32 m0, s73, {XR + (kc%3)*16384 + a*1024}")
                    tok = e(f"buffer_load_dwordx4 v{VX0+a}, s[20:23], s{4+kc} offen{DMAFLAG} lds")
                elif kind == "Z":
                    e(f"s_add_u32 m0, s74, {(kc%3)*8192}")
                    e(f"s_add_u32 s77, s67, s{4+kc}")
                    tok = e(f"buffer_load_dwordx4 v{VZ}, s[24:27], s77 offen{DMAFLAG} lds")
                else:
                    ch = kc % 7; colb = 0 if kc < 7 else 128
                    e(f"s_add_u32 m0, s75, {(kc%4)*16384 + a*4096}")
                    e(f"s_add_u32 s77, s{11+ch}, {32*a*3584 + colb}")
                    tok = e(f"buffer_load_dwordx4 v{VW}, s[28:31], s77 offen{DMAFLAG} lds")
                if last: ent_tok[(kind, kc)] = tok
            return f
        n = 1 if kind == "Z" else 2
        return [mk(a, a == n - 1) for a in range(n)]
    def queue(*ents):
        for (k, kc) in ents:
            for f in entry_dmas(k, kc): dmaq.append(f)
    def bz_w_srds():
        e("s_cmp_eq_u32 s55, 0")
        e("s_cselect_b32 s24, s8, s10")
        e("s_cselect_b32 s25, s9, s11")
        e("s_cselect_b32 s28, s12, s14")
        e("s_cselect_b32 s29, s13, s15")
        e("s_and_b32 s25, s25, 0xffff")
        e(f"s_mov_b32 s26, {448*448*2}")
        e("s_mov_b32 s27, 0x20000")
        e("s_and_b32 s29, s29, 0xffff")
        e(f"s_mov_b32 s30, {448*1792*2}")
        e("s_mov_b32 s31, 0x20000")
    M_PF0 = 162304
    def coop_setup():
        e("s_and_b32 s56, s51, 3")
        e("s_lshr_b32 s57, s51, 2")
        e("s_mov_b32 s64, 0")
        e("s_cmp_eq_u32 s54, 0"); e("s_cselect_b32 s64, 1, s64")
        e("s_cmp_eq_u32 s54, 1"); e("s_cselect_b32 s64, 2, s64")
        e("s_cmp_eq_u32 s48, 2"); e("s_cselect_b32 s64, 3, s64")
        e("s_or_b32 s58, s57, s48"); e("s_cmp_eq_u32 s58, 3")
        e("s_cmp_eq_u32 s48, 3"); e("s_cselect_b32 s58, 0, 1"); e("s_or_b32 s58, s58, s57")
        e("s_cmp_eq_u32 s58, 0"); e("s_cselect_b32 s64, 3, s64"); e("s_cselect_b32 s57, 7, s57")
        e(f"s_mul_i32 s58, s56, {16*3584}"); e("s_add_u32 s58, s58, s72")
        e(f"s_mul_i32 s59, s53, {32*896}"); e(f"s_mul_i32 s61, s56, {8*896}"); e("s_add_u32 s59, s59, s61")
        e(f"s_mul_i32 s61, s57, {16*896}"); e("s_add_u32 s61, s61, s66")
        e("s_cmp_eq_u32 s64, 1"); e("s_cselect_b32 s65, s58, s61")
        e("s_cselect_b32 s88, s28, s20"); e("s_cselect_b32 s89, s29, s21"); e("s_cselect_b32 s90, s30, s22")
        e("s_cmp_eq_u32 s64, 2"); e("s_cselect_b32 s65, s59, s65")
        e("s_cselect_b32 s88, s24, s88"); e("s_cselect_b32 s89, s25, s89"); e("s_cselect_b32 s90, s26, s90")
        e("s_mov_b32 s91, 0x20000")
    def coop_touch(c0, n, colb, wonly, tv):
        lab = e.label("K1_CT")
        if wonly: e("s_cmp_lg_u32 s64, 1")
        else: e("s_cmp_eq_u32 s64, 0")
        e(f"s_cbranch_scc1 {lab}")
        e.cond_begin()
        e("s_cmp_eq_u32 s64, 2")
        e("s_cselect_b32 s58, 7, 15")
        e("s_cselect_b32 s59, 3, 4")
        e(f"v_and_b32 v{tv}, s58, v0")
        e(f"v_lshrrev_b32 v{tv+1}, s59, v0")
        e(f"v_min_u32 v{tv+1}, {n-1}, v{tv+1}")
        e("s_cmp_eq_u32 s64, 1")
        e("s_movk_i32 s58, 896")
        e("s_cselect_b32 s58, 3584, s58")
        e("s_movk_i32 s59, 128")
        e(f"s_cselect_b32 s59, {64*3584}, s59")
        e(f"s_mov_b32 s61, {c0*128}")
        e(f"s_cselect_b32 s61, {c0*64*3584 + colb}, s61")
        e(f"v_mul_lo_u32 v{tv}, s58, v{tv}")
        e(f"v_mul_lo_u32 v{tv+1}, s59, v{tv+1}")
        e("s_add_u32 s61, s61, s65")
        e(f"s_mov_b32 m0, {M_PF0}")
        e(f"v_add_u32 v{tv}, v{tv}, v{tv+1}")
        e(f"buffer_load_dword v{tv}, s[88:91], s61 offen lds")
        e.cond_end()
        e.raw(f"{lab}:")
    srd(e, 68, 64, 896)
    if COOP:
        bz_w_srds()
        coop_setup()
        coop_touch(0, 3, 0, False, 34)
        queue(("X",0))
        for _ in range(2): dmaq.popleft()()
    else:
        queue(("X",0))
        for _ in range(2): dmaq.popleft()()
        bz_w_srds()
    queue(("Z",0))
    dmaq.popleft()()
    srd(e, 40, 6, 896)
    srd(e, 44, 62, 896)
    srd(e, 32, 18, WS_END if not G.PROFILE else (16 << 20))
    srd(e, 36, 16, 256)
    e("s_mov_b32 s60, 0")
    e("s_cmp_lt_u32 s48, 2")
    e("s_cselect_b32 s61, 1, 0")
    e("s_cmp_lt_u32 s53, 8")
    e("s_cselect_b32 s60, s61, 0")
    e("s_cmp_eq_u32 s48, 2")
    e("s_cselect_b32 s61, 2, 0")
    e("s_cmp_lt_u32 s52, 8")
    e("s_cselect_b32 s61, s61, 0")
    e("s_or_b32 s60, s60, s61")
    e("s_lshl_b32 s56, s52, 7")
    e("s_lshl_b32 s57, s53, 4")
    e("s_add_u32 s56, s56, s57")
    e("s_lshl_b32 s57, s48, 3")
    e("s_add_u32 s56, s56, s57")
    e("s_lshl_b32 s57, s53, 5")
    e("s_and_b32 s58, s52, 3")
    e("s_lshl_b32 s58, s58, 3")
    e("s_add_u32 s57, s57, s58")
    e("s_cmp_eq_u32 s60, 2")
    e("s_cselect_b32 s59, s57, s56")
    e("s_cmp_ge_u32 s52, 4")
    e("s_cselect_b32 s92, s10, s8")
    e("s_cselect_b32 s93, s11, s9")
    e("s_cselect_b32 s62, 448, 0")
    e("s_cmp_eq_u32 s60, 2")
    e("s_cselect_b32 s92, s92, s20")
    e("s_cselect_b32 s93, s93, s21")
    e(f"s_mov_b32 s94, {2048*448*2}")
    e(f"s_cselect_b32 s94, {448*448*2}, s94")
    e("s_cselect_b32 s62, s62, 0")
    e("s_and_b32 s93, s93, 0xffff")
    e("s_mov_b32 s95, 0x20000")
    e("s_add_u32 s62, s62, s59")
    e("s_mul_i32 s63, s59, 896")
    e(f"s_mul_i32 s11, s76, {64*3584}")
    e("s_add_u32 s11, s11, s72")
    queue(("W",0))
    for _ in range(2): dmaq.popleft()()
    pr = G.Prof(e, 0); pr.stamp()
    e("v_and_b32 v40, 15, v0")
    e("s_lshl_b32 s56, s53, 5")
    e("s_lshl_b32 s57, s55, 4")
    e("s_add_u32 s78, s56, s57")
    e("v_add_u32 v41, s78, v40")
    e("v_lshlrev_b32 v42, 1, v41")
    tp = [e("buffer_load_ushort v43, v42, s[40:43], 0 offen"),
          e("buffer_load_ushort v44, v42, s[44:47], 0 offen"),
          e("buffer_load_ushort v45, v42, s[68:71], 0 offen")]
    e("v_lshrrev_b32 v34, 3, v0")
    e("v_and_b32 v35, 7, v0")
    e("v_mul_u32_u24 v36, 896, v34")
    e("v_lshl_add_u32 v36, v35, 4, v36")
    RB = 192
    labrb = e.label("K1_NORB")
    e("s_cmp_eq_u32 s60, 0")
    e(f"s_cbranch_scc1 {labrb}")
    e.cond_begin()
    for k in range(7): e(f"buffer_load_dwordx4 v[{RB+4*k}:{RB+4*k+3}], v36, s[92:95], s63 offen offset:{128*k}")
    e.cond_end()
    e.raw(f"{labrb}:")
    def rowbatch_compute():
        lab = e.label("K1_NORC")
        e("s_cmp_eq_u32 s60, 0")
        e(f"s_cbranch_scc1 {lab}")
        e.cond_begin()
        e.raw(f"s_waitcnt vmcnt({min(63, e.vm_issued - vm_at_rb)})")
        e("s_mov_b32 s58, 0x3f803f80")
        e("v_mov_b32 v220, 0"); e("v_mov_b32 v221, 0"); e("v_mov_b32 v222, 0"); e("v_mov_b32 v223, 0")
        for k in range(28):
            e(f"v_dot2c_f32_bf16 v{220 + (k&1)}, s58, v{RB+k}")
            e(f"v_dot2c_f32_bf16 v{222 + (k&1)}, v{RB+k}, v{RB+k}")
        e("s_nop 2")
        e("v_add_f32 v220, v220, v221")
        e("v_add_f32 v221, v222, v223")
        for r_ in (220, 221):
            e(f"v_add_f32_dpp v{r_}, v{r_}, v{r_} quad_perm:[1,0,3,2] row_mask:0xf bank_mask:0xf")
            e(f"v_add_f32_dpp v{r_}, v{r_}, v{r_} quad_perm:[2,3,0,1] row_mask:0xf bank_mask:0xf")
            e(f"v_add_f32_dpp v{r_}, v{r_}, v{r_} row_half_mirror row_mask:0xf bank_mask:0xf")
        e("v_mov_b32 v224, v220")
        e(f"v_mul_f32 v220, {f32(1.0/448)}, v220")
        e(f"v_mul_f32 v221, {f32(1.0/448)}, v221")
        e("v_fma_f32 v221, -v220, v220, v221")
        e("v_max_f32 v221, 0, v221")
        e("v_cvt_pk_bf16_f32 v220, v220, v221")
        e("v_and_b32 v221, 0xffff0000, v220")
        e("v_lshlrev_b32 v220, 16, v220")
        e(f"v_add_f32 v221, {f32(1e-5)}, v221")
        e("v_cvt_pk_bf16_f32 v221, v221, v221")
        e("v_lshlrev_b32 v221, 16, v221")
        e("v_sqrt_f32 v221, v221")
        e("v_cvt_pk_bf16_f32 v221, v221, v221")
        e("v_lshlrev_b32 v221, 16, v221")
        e.cond_end()
        e.raw(f"{lab}:")
    def rowbatch_publish():
        lab = e.label("K1_NORP"); labx = e.label("K1_RPX")
        e("s_cmp_eq_u32 s60, 0")
        e(f"s_cbranch_scc1 {lab}")
        e.cond_begin()
        e("v_lshrrev_b32 v226, 3, v0")
        e("v_add_u32 v226, s62, v226")
        e("v_and_b32 v227, 7, v0")
        e("v_cmp_eq_u32 vcc, 0, v227")
        e("s_and_saveexec_b64 s[58:59], vcc")
        e("s_cmp_eq_u32 s60, 1")
        e(f"s_cbranch_scc1 {labx}")
        e("v_lshlrev_b32 v226, 3, v226")
        e("v_mov_b32 v228, v224"); e("v_mov_b32 v229, s98")
        e(f"s_mov_b32 s61, {WS_CSB}")
        e("buffer_store_dwordx2 v[228:229], v226, s[32:35], s61 offen sc1")
        e("s_mov_b64 exec, s[58:59]")
        e(f"s_branch {lab}")
        e.raw(f"{labx}:")
        e("v_lshlrev_b32 v226, 4, v226")
        e("v_mov_b32 v228, v220"); e("v_mov_b32 v229, s98"); e("v_mov_b32 v230, v221"); e("v_mov_b32 v231, s98")
        e(f"s_mov_b32 s61, {WS_STAT}")
        e("buffer_store_dwordx4 v[228:231], v226, s[32:35], s61 offen sc1")
        e("s_mov_b64 exec, s[58:59]")
        e.cond_end()
        e.raw(f"{lab}:")
    RBWAIT = [0]
    vm_at_rb = e.vm_issued
    def rot_entry(t):
        if ROT == 2 and t == 1:
            e("s_and_b32 s56, s51, 3"); e("s_lshl_b32 s56, s56, 1"); e("s_lshr_b32 s57, s51, 2"); e("s_add_u32 s56, s56, s57")
            e("s_cmp_ge_u32 s56, 6"); e("s_cselect_b32 s57, 6, 0"); e("s_sub_u32 s56, s56, s57")
            e("s_cmp_ge_u32 s56, 6"); e("s_cselect_b32 s57, 6, 0"); e("s_sub_u32 s56, s56, s57")
            e("s_add_u32 s76, s56, 1")
        elif ROT == 2:
            e("s_add_u32 s76, s76, 1"); e("s_cmp_eq_u32 s76, 7"); e("s_cselect_b32 s76, 1, s76")
        else:
            e("s_add_u32 s76, s76, 1")
            e("s_cmp_eq_u32 s76, 7")
            e("s_cselect_b32 s76, 0, s76")
        e(f"s_lshl_b32 s{4+t}, s76, 7")
        e(f"s_mul_i32 s{11+t}, s76, {64*3584}")
        e(f"s_add_u32 s{4+t}, s{4+t}, s66")
        e(f"s_add_u32 s{11+t}, s{11+t}, s72")
    for t in range(1, 7): rot_entry(t)
    queue(("X",1),("Z",1),("W",1),("X",2),("Z",2),("W",2),("W",3))
    for _ in range(max(0, PRO_DMAS - 5)): dmaq.popleft()()
    if PSTAMP: pr.stamp()
    nonce_cas(e, 120)
    def issue_for_tick(tk):
        l = []
        if tk >= 1:
            if tk + 2 < 7: l += [("X", tk+2), ("Z", tk+2)]
            if tk + 3 < 14: l += [("W", tk+3)]
        return l

    e("v_and_b32 v34, 31, v0")
    e("v_lshrrev_b32 v35, 4, v34")
    e("v_bfe_u32 v36, v34, 2, 1")
    e("v_lshl_add_u32 v35, v36, 1, v35")
    e("v_bfe_u32 v36, v34, 3, 1")
    e("v_lshlrev_b32 v35, 3, v35")
    e("v_lshl_add_u32 v35, v36, 2, v35")
    e("v_and_b32 v36, 3, v34")
    e("v_add_u32 v35, v35, v36")
    e("v_lshrrev_b32 v36, 5, v0")
    e(f"v_lshl_add_u32 v{VH}, v36, 5, v35")
    e(f"v_lshlrev_b32 v{VH}, 4, v{VH}")
    e("s_lshl_b32 s56, s54, 5")
    e("v_add_u32 v37, s56, v35")
    e(f"v_lshlrev_b32 v{AX}, 7, v37")
    e("v_bfe_u32 v38, v35, 1, 3")
    e("v_xor_b32 v38, v38, v36")
    e(f"v_lshl_add_u32 v{AX}, v38, 4, v{AX}")
    for kk in range(1, 4): e(f"v_xor_b32 v{AX+kk}, {kk<<5}, v{AX}")
    e("v_bfe_u32 v38, v0, 4, 1")
    e(f"v_lshlrev_b32 v{AZr}, 12, v38")
    e("s_lshl_b32 s56, s55, 4")
    e("v_and_b32 v40, 15, v0")
    e("v_add_u32 v39, s56, v40")
    e(f"v_lshl_add_u32 v{AZr}, v39, 7, v{AZr}")
    e("v_bfe_u32 v39, v40, 1, 3")
    e("v_xor_b32 v39, v39, v36")
    e(f"v_lshl_add_u32 v{AZr}, v39, 4, v{AZr}")
    e(f"v_add_u32 v{AZr}, {ZR}, v{AZr}")
    for kk in range(1, 4): e(f"v_xor_b32 v{AZr+kk}, {kk<<5}, v{AZr}")
    e(f"v_lshlrev_b32 v{AW0}, 13, v38")
    e("v_lshrrev_b32 v39, 2, v40")
    e("v_lshl_add_u32 v39, v36, 3, v39")
    e(f"v_lshl_add_u32 v{AW0}, v39, 7, v{AW0}")
    e("v_lshrrev_b32 v39, 3, v40")
    e("v_lshl_add_u32 v39, v38, 1, v39")
    e("s_lshl_b32 s56, s55, 1")
    e("v_xor_b32 v39, s56, v39")
    e(f"v_lshl_add_u32 v{AW0}, v39, 5, v{AW0}")
    e("v_and_b32 v39, 3, v40")
    e(f"v_lshl_add_u32 v{AW0}, v39, 3, v{AW0}")
    e(f"v_add_u32 v{AW0}, {WR}, v{AW0}")
    e(f"v_xor_b32 v{AW1}, 32, v{AW0}")
    e("s_lshl_b32 s56, s52, 2")
    e("s_add_u32 s56, s56, s54")
    e("s_mul_i32 s56, s56, 112")
    e("s_lshl_b32 s57, s53, 3")
    e("s_add_u32 s56, s56, s57")
    e("s_lshl_b32 s57, s55, 1")
    e("s_add_u32 s56, s56, s57")
    e("s_lshl_b32 s79, s56, 10")
    if WS_HF: e(f"s_add_u32 s79, s79, {WS_HF}")

    def params():
        e.wait(tp); yield
        e("s_bitcmp1_b32 s54, 0"); e("s_cselect_b64 s[40:41], -1, 0")
        e("s_bitcmp1_b32 s54, 1"); e("s_cselect_b64 s[42:43], -1, 0")
        e("s_mov_b32 s44, 0xffff0000"); e("s_mov_b32 s45, 0xffff0000")
        e("s_mov_b32 s46, 0"); e("s_mov_b32 s47, -1")
        e("v_lshlrev_b32 v43, 16, v43"); yield
        e("v_lshlrev_b32 v44, 16, v44"); yield
        e("v_lshlrev_b32 v45, 16, v45"); yield
        e(f"v_mul_f32 v45, {f32(LOG2E)}, v45"); yield
        e("v_exp_f32 v45, v45"); yield
        e("v_cvt_pk_bf16_f32 v45, v45, v45"); yield
        e("v_lshlrev_b32 v45, 16, v45"); yield
        e("v_mul_f32 v34, v45, v43"); yield
        e("v_mul_f32 v35, v45, v44"); yield
        e(f"v_mul_f32 v34, {f32(LOG2E)}, v34"); yield
        e("v_exp_f32 v34, v34"); yield
        e(f"v_mul_f32 v35, {f32(1.0/(2*3.141592653589793))}, v35"); yield
        e("v_fract_f32 v35, v35"); yield
        e("v_cos_f32 v36, v35"); yield
        e("v_sin_f32 v37, v35"); yield
        e(f"v_mul_f32 v{LR}, v34, v36"); yield
        e(f"v_mul_f32 v{LI}, v34, v37"); yield
        e(f"v_add_f32 v36, -1.0, v{LR}"); yield
        e("v_mul_f32 v38, v43, v43"); yield
        e("v_fmac_f32 v38, v44, v44"); yield
        e("v_rcp_f32 v38, v38"); yield
        e("v_mul_f32 v39, v36, v43"); yield
        e(f"v_fmac_f32 v39, v{LI}, v44"); yield
        e(f"v_mul_f32 v34, v{LI}, v43"); yield
        e("v_fma_f32 v34, -v36, v44, v34"); yield
        e("v_add_f32 v38, v38, v38"); yield
        e(f"v_mul_f32 v{CR}, v39, v38"); yield
        e(f"v_mul_f32 v{CI}, v34, v38"); yield
        yield from csq(e, 34, 35, LR, LI, 38)
        yield from csq(e, 36, 37, 34, 35, 38)
        yield from csq(e, L8R, L8I, 36, 37, 38)
        e(f"v_mov_b32 v{TR}, 1.0"); yield
        e(f"v_mov_b32 v{TI}, 0"); yield
        e(f"v_mov_b32 v34, v{L8R}"); yield
        e(f"v_mov_b32 v35, v{L8I}"); yield
        for b, m in enumerate(("s[44:45]", "s[46:47]", "s[40:41]", "s[42:43]")):
            yield from cmul(e, 36, 37, TR, TI, 34, 35, 38)
            e(f"v_cndmask_b32 v{TR}, v{TR}, v36, {m}"); yield
            e(f"v_cndmask_b32 v{TI}, v{TI}, v37, {m}"); yield
            e("v_mov_b32 v41, v34"); yield
            e("v_mov_b32 v42, v35"); yield
            yield from csq(e, 34, 35, 41, 42, 38)
        e(f"v_mov_b32 v{L128R}, v34"); yield
        e(f"v_mov_b32 v{L128I}, v35"); yield

    def zbuf(ks): return 96 + (ks & 1)*4
    def wbufA(ks, tl): return 104 + (ks & 1)*8 + tl*4
    def wbufB(ks, tl): return FB + (ks & 1)*8 + tl*4
    first = {}
    def mfma(acc, a, b):
        c = f"v[{acc}:{acc+15}]" if first.get(acc) else "0"
        first[acc] = True
        e(f"v_mfma_f32_32x32x16_bf16 v[{acc}:{acc+15}], v[{a}:{a+3}], v[{b}:{b+3}], {c}")
    rd_tok = {}
    def read_x(ks):
        kk = ks & 3; kc = ks >> 2
        rd_tok[("x", ks)] = [e(f"ds_read_b128 v[{XF+4*ks}:{XF+4*ks+3}], v{AX+kk} offset:{(kc%3)*16384}")]
    def read_z(ks):
        kk = ks & 3; kc = ks >> 2
        rd_tok[("z", ks)] = [e(f"ds_read_b128 v[{zbuf(ks)}:{zbuf(ks)+3}], v{AZr+kk} offset:{(kc%3)*8192}")]
    def read_w(ph, ks, tl, half):
        kk = ks & 3; w = (ks >> 2) + (0 if ph == "A" else 7)
        b = wbufA(ks, tl) if ph == "A" else wbufB(ks, tl)
        ad = AW0 if tl == 0 else AW1
        off = (w % 4)*16384 + kk*2048
        t = e(f"ds_read_b64_tr_b16 v[{b+2*half}:{b+2*half+1}], v{ad} offset:{off+512*half}")
        rd_tok.setdefault((ph, ks, tl), []).append(t)
    steps = [("A", ks) for ks in range(28)] + [("B", ks) for ks in range(28)]
    def tick_idx(ph, ks): return (ks >> 2) + (0 if ph == "A" else 7)
    def need_ents(tk): return [("X",tk),("Z",tk),("W",tk)] if tk < 7 else [("W",tk)]
    nbar = [0]
    def enter_tick(tk):
        while any(x not in ent_tok for x in need_ents(tk)): dmaq.popleft()()
        e.wait([ent_tok[x] for x in need_ents(tk)])
        if tk == 1: nonce_publish(e, 120, M_N)
        e.wait_all(vm=False)
        e("s_barrier")
        nbar[0] += 1
        if tk == 1: nonce_read(e, 121, M_N)
        queue(*issue_for_tick(tk))

    def main_stream():
        sp = env("SETPRIO", 0)
        if sp:
            lab = e.label("K1_SP")
            e("s_cmp_lt_u32 s48, 4" if sp == 1 else "s_cmp_ge_u32 s48, 4")
            e(f"s_cbranch_scc1 {lab}")
            e("s_setprio 1")
            e.raw(f"{lab}:")
        if not RB_LATE: rowbatch_compute()
        if PSTAMP: pr.stamp()
        enter_tick(0)
        if PSTAMP: pr.stamp()
        read_x(0); read_w("A", 0, 0, 0); read_w("A", 0, 0, 1); read_z(0); read_w("A", 0, 1, 0); read_w("A", 0, 1, 1)
        for n, (ph, ks) in enumerate(steps):
            nx = steps[n+1] if n + 1 < len(steps) else None
            x = XF + 4*ks
            if ph == "A":
                ops = [(AG[0], wbufA(ks,0), x, [("x", ks), (ph, ks, 0)]), (AZ, x, zbuf(ks), [("z", ks)]), (AG[1], wbufA(ks,1), x, [(ph, ks, 1)])]
            else:
                ops = [(AG[2], wbufB(ks,0), x, [(ph, ks, 0)]), (AG[3], wbufB(ks,1), x, [(ph, ks, 1)])]
            for si, (acc, a, b, keys) in enumerate(ops):
                e.wait([rd_tok[k] for k in keys])
                mfma(acc, a, b)
                dma_ok = False
                if nx is not None:
                    ph2, ks2 = nx
                    if si == 0 and (ks2 & 3) == 0: enter_tick(tick_idx(ph2, ks2))
                    if ph2 == "A":
                        if si == 0: read_x(ks2); read_w("A", ks2, 0, 0)
                        elif si == 1: read_w("A", ks2, 0, 1); read_z(ks2)
                        else: read_w("A", ks2, 1, 0); read_w("A", ks2, 1, 1); dma_ok = True
                    elif ph == "A":
                        if si == 0: read_w("B", ks2, 0, 0); read_w("B", ks2, 0, 1)
                        elif si == 1: read_w("B", ks2, 1, 0); read_w("B", ks2, 1, 1)
                        else: dma_ok = True
                    else:
                        read_w("B", ks2, si, 0); read_w("B", ks2, si, 1)
                        dma_ok = (si == 1)
                did = False
                if (dma_ok or (len(dmaq) > DMA_HURRY)) and dmaq:
                    dmaq.popleft()(); did = True
                yield (ph, ks, si, did)

    aux = {}
    def tagcheck(regs):
        e(f"v_xor_b32 v44, s98, v{regs[0]}")
        for r in regs[1:]:
            e(f"v_xor_b32 v45, s98, v{r}")
            e("v_or_b32 v44, v44, v45")
        e("v_cmp_ne_u32 vcc, 0, v44")
        e("s_cmp_eq_u64 vcc, 0")
    AXW1, AXW2 = 3, 4
    def only_wave(w, name):
        lab = e.label(name)
        e(f"s_cmp_lg_u32 s48, {w}")
        e(f"s_cbranch_scc1 {lab}")
        e.cond_begin()
        return lab
    def end_only(lab):
        e.cond_end()
        e.raw(f"{lab}:")
    def aux1_issue_raw():
        e("s_lshl_b32 s61, s52, 11")
        e(f"s_add_u32 s61, s61, {WS_STAT}")
        e("v_lshlrev_b32 v120, 4, v0")
        e("buffer_load_dwordx4 v[36:39], v120, s[32:35], s61 offen sc1")
        e("buffer_load_dwordx4 v[40:43], v120, s[32:35], s61 offen offset:1024 sc1")
        e("v_lshrrev_b32 v121, 5, v0")
        e("v_mul_u32_u24 v121, 448, v121")
        e("v_and_b32 v122, 31, v0")
        e("v_add_u32 v121, v121, v122")
        e("s_lshl_b32 s61, s53, 5")
        e("v_add_u32 v121, s61, v121")
        e("v_lshlrev_b32 v121, 3, v121")
        e(f"s_mov_b32 s61, {WS_CSB}")
        e("buffer_load_dwordx2 v[124:125], v121, s[32:35], s61 offen sc1")
    def aux1_issue():
        lab = only_wave(AXW1, "K1_A1I")
        aux1_issue_raw()
        end_only(lab)
        aux["a1_vm"] = e.vm_issued
    def aux1_finish():
        lab = only_wave(AXW1, "K1_A1F")
        e.raw(f"s_waitcnt vmcnt({min(63, e.vm_issued - aux['a1_vm'])})")
        tagged_retry(e, aux1_issue_raw, lambda: tagcheck([37, 39, 41, 43, 125]), "K1_A1", cnt="s63")
        e("v_rcp_f32 v37, v38")
        e("v_rcp_f32 v41, v42")
        e("v_lshlrev_b32 v120, 3, v0")
        e(f"v_add_u32 v120, {M_ST}, v120")
        e("ds_write_b64 v120, v[36:37]")
        e("ds_write_b64 v120, v[40:41] offset:512")
        e("v_lshlrev_b32 v120, 2, v0")
        e(f"v_add_u32 v120, {M_SD}, v120")
        e("ds_write_b32 v120, v38")
        e("ds_write_b32 v120, v42 offset:256")
        e(f"ds_write_b32 v120, v124 offset:{M_CB - M_SD}")
        e.raw("s_waitcnt lgkmcnt(0)")
        end_only(lab)
    def aux1_read():
        e(f"v_and_b32 v34, 0x1f0, v{VH}"); yield
        e("v_lshrrev_b32 v34, 1, v34"); yield
        e("s_lshl_b32 s56, s54, 8")
        e(f"s_add_u32 s56, s56, {M_ST}")
        e("v_add_u32 v35, s56, v34"); yield
        t1 = e("ds_read_b64 v[36:37], v35"); yield
        e("v_lshrrev_b32 v34, 1, v34"); yield
        e("s_lshl_b32 s56, s54, 7")
        e(f"s_add_u32 s56, s56, {M_SD}")
        e("v_add_u32 v34, s56, v34"); yield
        t2 = e(f"ds_read_b32 v{SD}, v34"); yield
        e("v_and_b32 v34, 15, v0"); yield
        e("s_lshl_b32 s56, s55, 6")
        e(f"s_add_u32 s56, s56, {M_CB}")
        e("v_lshlrev_b32 v34, 2, v34"); yield
        e("v_add_u32 v34, s56, v34"); yield
        t3 = [e(f"ds_read_b32 v{CSR}, v34"), e(f"ds_read_b32 v{CSI}, v34 offset:128")]; yield
        e("v_lshrrev_b32 v34, 4, v0"); yield
        e("s_lshl_b32 s56, s54, 8")
        e(f"s_add_u32 s56, s56, {M_ST}")
        e("v_lshlrev_b32 v34, 6, v34"); yield
        e("v_add_u32 v34, s56, v34"); yield
        e.wait(t1); yield
        e(f"v_mov_b32 v{M_}, v36"); yield
        e(f"v_mul_f32 v{NLR}, {f32(-LOG2E)}, v37"); yield
        aux["st"] = [e("ds_read_b128 v[36:39], v34"), e("ds_read_b128 v[40:43], v34 offset:16")]
        aux["lane"] = [t2, t3]
        yield
    def aux2_issue_raw():
        e("s_lshl_b32 s61, s53, 10")
        e(f"s_add_u32 s61, s61, {WS_CSW}")
        e("v_lshlrev_b32 v136, 4, v0")
        e("buffer_load_dwordx4 v[128:131], v136, s[32:35], s61 offen sc1")
        e(f"s_add_u32 s61, s61, {1792*8}")
        e("buffer_load_dwordx4 v[132:135], v136, s[32:35], s61 offen sc1")
    def aux2_issue():
        lab = only_wave(AXW2, "K1_A2I")
        aux2_issue_raw()
        end_only(lab)
        aux["a2_vm"] = e.vm_issued
    def tagcheck2(regs):
        e(f"v_xor_b32 v137, s98, v{regs[0]}")
        for r in regs[1:]:
            e(f"v_xor_b32 v138, s98, v{r}")
            e("v_or_b32 v137, v137, v138")
        e("v_cmp_ne_u32 vcc, 0, v137")
        e("s_cmp_eq_u64 vcc, 0")
    def aux2_finish():
        lab = only_wave(AXW2, "K1_A2F")
        e.raw(f"s_waitcnt vmcnt({min(63, e.vm_issued - aux['a2_vm'])})")
        tagged_retry(e, aux2_issue_raw, lambda: tagcheck2([129, 131, 133, 135]), "K1_A2", cnt="s63")
        e("v_mov_b32 v129, v130")
        e("v_mov_b32 v133, v134")
        e("v_lshlrev_b32 v136, 3, v0")
        e(f"v_add_u32 v136, {M_CS}, v136")
        e("ds_write_b64 v136, v[128:129]")
        e("ds_write_b64 v136, v[132:133] offset:512")
        e.raw("s_waitcnt lgkmcnt(0)")
        end_only(lab)
    def cs_base():
        e("v_lshrrev_b32 v46, 5, v0"); yield
        e("v_lshlrev_b32 v46, 4, v46"); yield
        e("s_lshl_b32 s56, s55, 7")
        e(f"s_add_u32 s56, s56, {M_CS}")
        e("v_add_u32 v46, s56, v46"); yield
    def cs_reads(tl, CSB):
        o = (tl >> 1)*256 + (tl & 1)*64
        aux[("cs", tl)] = [e(f"ds_read_b128 v[{CSB}:{CSB+3}], v46 offset:{o}"),
                           e(f"ds_read_b128 v[{CSB+4}:{CSB+7}], v46 offset:{o+32}"),
                           e(f"ds_read_b128 v[{CSB+8}:{CSB+11}], v46 offset:{o+512}"),
                           e(f"ds_read_b128 v[{CSB+12}:{CSB+15}], v46 offset:{o+544}")]
        yield

    def z_pass1():
        e.wait(aux["lane"]); yield
        for i in range(8):
            e(f"v_permlane16_swap_b32 v{AZ+i}, v{AZ+8+i}"); yield
        st = list(aux["st"])
        for g in range(4):
            b = 36 + (g & 1)*4
            e.wait(st[g]); yield
            for u in range(2):
                i = 2*g + u; mm = b + 2*u
                e(f"v_fma_f32 v{AZ+i}, -v{mm}, v{CSR}, v{AZ+i}"); yield
                e(f"v_fma_f32 v{AZ+8+i}, -v{mm}, v{CSI}, v{AZ+8+i}"); yield
            for u in range(2):
                i = 2*g + u; rr = b + 2*u + 1
                e(f"v_mul_f32 v{AZ+i}, v{AZ+i}, v{rr}"); yield
                e(f"v_mul_f32 v{AZ+8+i}, v{AZ+8+i}, v{rr}"); yield
            if g + 2 < 4:
                st.append(e(f"ds_read_b128 v[{b}:{b+3}], v34 offset:{(g+2)*16}")); yield
        pr_, pi_ = AZ, AZ + 8
        for i in range(1, 8):
            d = (44, 45) if (i & 1) else (ER, EI)
            yield from cfma_to(e, d[0], d[1], pr_, pi_, LR, LI, AZ+i, AZ+8+i)
            pr_, pi_ = d
        e(f"v_mul_f32 v36, v{CI}, v45"); yield
        e(f"v_mul_f32 v37, v{CI}, v44"); yield
        e(f"v_fma_f32 v{ER}, v{CR}, v44, -v36"); yield
        e(f"v_fma_f32 v{EI}, v{CR}, v45, v37"); yield
    def hier1():
        e(f"v_mov_b32 v1, v{ER}"); yield
        e(f"v_mov_b32 v2, v{ER}"); yield
        e(f"v_mov_b32 v3, v{EI}"); yield
        e(f"v_mov_b32 v4, v{EI}"); yield
        yield from csq(e, 7, 8, L8R, L8I, 34)
        e("v_permlane16_swap_b32 v1, v2"); yield
        e("v_permlane16_swap_b32 v3, v4"); yield
        yield from cfma_to(e, 5, 6, 1, 3, L8R, L8I, 2, 4)
        e("v_mov_b32 v28, v5"); yield
        e("v_mov_b32 v36, v5"); yield
        e("v_mov_b32 v29, v6"); yield
        e("v_mov_b32 v34, v6"); yield
        e("v_and_b32 v35, 15, v0"); yield
        e("s_lshl_b32 s56, s55, 4")
        e("v_add_u32 v35, s56, v35"); yield
        e("v_lshlrev_b32 v35, 3, v35"); yield
        e("v_permlane32_swap_b32 v28, v36"); yield
        e("v_permlane32_swap_b32 v29, v34"); yield
        e(f"v_add_u32 v35, {M_SEG}, v35"); yield
        yield from cfma_to(e, 5, 6, 28, 29, 7, 8, 36, 34)
        e("s_lshl_b32 s56, s54, 8")
        e("v_add_u32 v34, s56, v35"); yield
        e("v_mov_b32 v44, v5"); yield
        e("v_mov_b32 v45, v6"); yield
        e("ds_write_b64 v34, v[44:45]"); yield
    def hier2():
        tk = [e(f"ds_read_b64 v[{36+2*u}:{37+2*u}], v35 offset:{u*256}") for u in range(3)]
        yield
        yield from csq(e, 42, 43, 7, 8, 44)
        e.wait(tk); yield
        yield from cfma_to(e, 44, 45, 36, 37, 42, 43, 38, 39)
        yield from cfma_to(e, 2, 4, 44, 45, 42, 43, 40, 41)
        e("v_cndmask_b32 v2, v44, v2, s[40:41]"); yield
        e("v_cndmask_b32 v4, v45, v4, s[40:41]"); yield
        e("v_cndmask_b32 v36, 0, v36, s[40:41]"); yield
        e("v_cndmask_b32 v37, 0, v37, s[40:41]"); yield
        e("v_cndmask_b32 v36, v36, v2, s[42:43]"); yield
        e("v_cndmask_b32 v37, v37, v4, s[42:43]"); yield
        lab = e.label("K1_NOPUB")
        e("s_cmp_lg_u32 s54, 3")
        e(f"s_cbranch_scc1 {lab}")
        e.cond_begin()
        for _ in cfma_to(e, 38, 40, 36, 37, 42, 43, 5, 6): pass
        e("v_mov_b32 v39, s98"); e("v_mov_b32 v41, s98")
        e("v_and_b32 v34, 15, v0")
        e("v_add_u32 v34, s78, v34")
        e("v_lshlrev_b32 v34, 4, v34")
        e(f"s_mul_i32 s56, s52, {448*16}")
        e(f"s_add_u32 s56, s56, {WS_E}")
        e("s_mov_b64 s[58:59], exec")
        e("s_mov_b64 exec, 0xffff")
        e("buffer_store_dwordx4 v[38:41], v34, s[32:35], s56 offen sc1")
        e("s_mov_b64 exec, s[58:59]")
        e.cond_end()
        e.raw(f"{lab}:")
        yield
        yield from cfma_to(e, 38, 39, 36, 37, 7, 8, 28, 29)
        e("v_cndmask_b32 v36, v36, v38, s[46:47]"); yield
        e("v_cndmask_b32 v37, v37, v39, s[46:47]"); yield
        yield from cfma_to(e, 38, 39, 36, 37, L8R, L8I, 1, 3)
        e(f"v_cndmask_b32 v{PR}, v36, v38, s[44:45]"); yield
        e(f"v_cndmask_b32 v{PI}, v37, v39, s[44:45]"); yield
    def zscale():
        for i in range(0, 8, 2):
            for u in range(2):
                e(f"v_mul_f32 v{36+2*u}, v{CI}, v{AZ+8+i+u}"); yield
                e(f"v_mul_f32 v{37+2*u}, v{CI}, v{AZ+i+u}"); yield
            for u in range(2):
                e(f"v_fma_f32 v{AZ+i+u}, v{CR}, v{AZ+i+u}, -v{36+2*u}"); yield
                e(f"v_fma_f32 v{AZ+8+i+u}, v{CR}, v{AZ+8+i+u}, v{37+2*u}"); yield
    def gu_math(acc, CSB):
        for i in range(8):
            e(f"v_fma_f32 v{acc+i}, -v{M_}, v{CSB+i}, v{acc+i}"); yield
        for i in range(8):
            e(f"v_mul_f32 v{acc+i}, v{acc+i}, v{NLR}"); yield
        for i in range(8):
            e(f"v_exp_f32 v{acc+i}, v{acc+i}"); yield
            e(f"v_fma_f32 v{acc+8+i}, -v{M_}, v{CSB+8+i}, v{acc+8+i}"); yield
        for i in range(8):
            e(f"v_fma_f32 v{acc+i}, v{acc+i}, v{SD}, v{SD}"); yield
        for i in range(8):
            e(f"v_rcp_f32 v{acc+i}, v{acc+i}"); yield
        for i in range(8):
            e(f"v_mul_f32 v{acc+i}, v{acc+i}, v{acc+8+i}"); yield
        for p in range(4):
            e(f"v_cvt_pk_bf16_f32 v{acc+8+p}, v{acc+2*p}, v{acc+2*p+1}"); yield
    def gu_epi(tl, CSB):
        acc = AG[tl]
        e.wait(aux[("cs", tl)]); yield
        yield from gu_math(acc, CSB)
        e(f"s_add_u32 s56, s79, {((tl>>1)*4 + (tl&1))*1024}")
        aux[("hst", tl)] = e(f"buffer_store_dwordx4 v[{acc+8}:{acc+11}], v{VH}, s[32:35], s56 offen{STF}"); yield

    ebq = deque()
    def early_B_setup():
        e(f"v_lshrrev_b32 v{EBV}, 3, v0")
        e("s_lshl_b32 s57, s48, 3")
        e(f"v_add_u32 v{EBV}, s57, v{EBV}")
        e(f"v_mul_u32_u24 v{EBV}, 896, v{EBV}")
        e("v_and_b32 v11, 7, v0")
        e("v_bfe_u32 v12, v0, 4, 1")
        e("v_lshlrev_b32 v12, 2, v12")
        e("v_xor_b32 v11, v11, v12")
        e(f"v_lshl_add_u32 v{EBV}, v11, 4, v{EBV}")
        if os.environ.get("NOPF"):
            e("s_load_dwordx2 s[92:93], s[0:1], 96"); e.raw("s_waitcnt lgkmcnt(0)"); e.smem_out = False; e.lg_done = e.lg_issued
            e("s_and_b32 s93, s93, 0xffff")
        else:
            e("s_mov_b32 s92, s86"); e("s_and_b32 s93, s87, 0xffff")
        e(f"s_mov_b32 s94, {1792*448*2}"); e("s_mov_b32 s95, 0x20000")
        e("s_cmp_ge_u32 s53, 7")
        e("s_cselect_b32 s57, 7, 0")
        e("s_sub_u32 s57, s53, s57")
        e("s_and_b32 s70, s51, 3")
        e("s_lshl_b32 s70, s70, 2")
        e("s_lshl_b32 s71, s57, 1")
        e("s_add_u32 s70, s70, s71")
        e("s_cmp_ge_u32 s70, 14")
        e("s_cselect_b32 s71, 14, 0")
        e("s_sub_u32 s70, s70, s71")
        e("s_lshl_b32 s71, s57, 7")
        e("s_lshl_b32 s69, s48, 10")
    def early_B_queue(t0, t1):
        def mk(t):
            def f():
                e(f"s_add_u32 m0, s69, {t*8192}")
                e(f"s_mul_i32 s68, s70, {128*896}")
                e("s_add_u32 s68, s68, s71")
                e(f"buffer_load_dwordx4 v{EBV}, s[92:95], s68 offen lds")
                e("s_add_u32 s70, s70, 1"); e("s_cmp_eq_u32 s70, 14"); e("s_cselect_b32 s70, 0, s70")
            return f
        for t in range(t0, t1): ebq.append(mk(t))
    def drain_eb(gen, every=18):
        k = 0
        for _ in gen:
            k += 1
            if k % every == 0 and ebq: ebq.popleft()()
    M_PF = 162304
    def k2_touch(k, slot):
        PFT = 139 if slot < 18 else 160
        assert slot >= 6
        lab = e.label("K1_PF")
        e(f"s_cmp_lg_u32 s48, {k & 7}")
        e(f"s_cbranch_scc1 {lab}")
        e.cond_begin()
        if k < 7:
            e("s_mul_i32 s61, s51, 448"); e(f"s_add_u32 s61, s61, {64*k}"); base = "s[86:87]"; lim = 12543
        elif k < 9:
            e("s_mul_i32 s61, s51, 112"); e(f"s_add_u32 s61, s61, {64*(k-7)}"); base = "s[88:89]"; lim = 3135
        else:
            e("s_mul_i32 s61, s51, 112"); e(f"s_add_u32 s61, s61, {64*(k-9)}"); base = "s[90:91]"; lim = 3135
        e(f"v_add_u32 v{PFT}, s61, v0")
        e(f"v_min_u32 v{PFT}, {lim}, v{PFT}")
        e(f"s_mov_b32 m0, {M_PF}")
        e(f"v_lshlrev_b32 v{PFT}, 7, v{PFT}")
        e(f"global_load_lds_dword v{PFT}, {base}")
        e.cond_end()
        e.raw(f"{lab}:")
    EL = 160
    def e_issue_raw():
        e("v_lshrrev_b32 v180, 4, v0")
        e("v_and_b32 v181, 15, v0")
        e("v_add_u32 v181, s78, v181")
        e("v_lshlrev_b32 v181, 4, v181")
        e("s_sub_u32 s63, s52, 1")
        e(f"s_mov_b32 s61, {WS_E}")
        for m in range(4):
            e(f"v_add_u32 v{176+m}, {4*m}, v180")
            e(f"v_min_u32 v{176+m}, s63, v{176+m}")
            e(f"v_mul_u32_u24 v{176+m}, {448*16}, v{176+m}")
            e(f"v_add_u32 v{176+m}, v{176+m}, v181")
            e(f"buffer_load_dwordx4 v[{EL+4*m}:{EL+4*m+3}], v{176+m}, s[32:35], s61 offen sc1")
    def e_issue():
        lab = e.label("K1_EI")
        e("s_cmp_eq_u32 s52, 0")
        e(f"s_cbranch_scc1 {lab}")
        e.cond_begin(); e_issue_raw(); e.cond_end()
        e.raw(f"{lab}:")
    def e_consts():
        yield from csq(e, 182, 183, L128R, L128I, 188)
        yield from cmul(e, 184, 185, 182, 183, L128R, L128I, 188)
        yield from csq(e, 186, 187, 182, 183, 188)
        e("v_lshrrev_b32 v190, 4, v0"); yield
        e("s_sub_u32 s63, s52, 1")
        e("v_sub_u32 v190, s63, v190"); yield
        e("v_and_b32 v191, 3, v190"); yield
        e("v_ashrrev_i32 v190, 2, v190"); yield
        e("v_mov_b32 v192, 1.0"); yield
        e("v_mov_b32 v193, 0"); yield
        for k, (rr, ii) in enumerate(((L128R, L128I), (182, 183), (184, 185))):
            e(f"v_cmp_eq_u32 vcc, {k+1}, v191"); yield
            e(f"v_cndmask_b32 v192, v192, v{rr}, vcc"); yield
            e(f"v_cndmask_b32 v193, v193, v{ii}, vcc"); yield
    def e_check(nafter):
        skip = e.label("K1_ESK"); ok = e.label("K1_EOK"); chk = e.label("K1_ECK")
        e("s_cmp_eq_u32 s52, 0")
        e(f"s_cbranch_scc1 {skip}")
        e.cond_begin()
        e.raw(f"s_waitcnt vmcnt({nafter})")
        e("s_mov_b32 s62, 0")
        e.raw(f"{chk}:")
        e(f"v_xor_b32 v44, s98, v{EL+1}")
        for r in (EL+3, EL+5, EL+7, EL+9, EL+11, EL+13, EL+15):
            e(f"v_xor_b32 v45, s98, v{r}")
            e("v_or_b32 v44, v44, v45")
        e("v_cmp_ne_u32 vcc, 0, v44")
        e("s_cmp_eq_u64 vcc, 0")
        e(f"s_cbranch_scc1 {ok}")
        e("s_add_u32 s62, s62, 1")
        e("s_cmp_ge_u32 s62, 100000")
        e(f"s_cbranch_scc1 {ok}")
        e_issue_raw()
        e.raw("s_waitcnt vmcnt(0)")
        e(f"s_branch {chk}")
        e.raw(f"{ok}:")
        e.cond_end()
        e.raw(f"{skip}:")
    def carry_and_pass2():
        lab0 = e.label("K1_NOCARRY")
        e("v_mov_b32 v44, 0"); e("v_mov_b32 v45, 0")
        e("s_cmp_eq_u32 s52, 0")
        e(f"s_cbranch_scc1 {lab0}")
        for m in range(4):
            er, ei = EL+4*m, EL+4*m+2
            e(f"v_cmp_le_i32 vcc, {m}, v190")
            e(f"v_fma_f32 v{er}, v186, v44, v{er}")
            e(f"v_fma_f32 v{ei}, v186, v45, v{ei}")
            e(f"v_fma_f32 v{er}, -v187, v45, v{er}")
            e(f"v_fma_f32 v{ei}, v187, v44, v{ei}")
            e(f"v_cndmask_b32 v44, v44, v{er}, vcc")
            e(f"v_cndmask_b32 v45, v45, v{ei}, vcc")
        e("v_mul_f32 v40, v193, v45")
        e("v_mul_f32 v41, v193, v44")
        e("v_fma_f32 v44, v192, v44, -v40")
        e("v_fma_f32 v45, v192, v45, v41")
        e("v_mov_b32 v40, v44"); e("v_mov_b32 v41, v45")
        e("v_permlane16_swap_b32 v44, v40"); e("v_permlane16_swap_b32 v45, v41")
        e("v_add_f32 v44, v44, v40"); e("v_add_f32 v45, v45, v41")
        e("v_mov_b32 v40, v44"); e("v_mov_b32 v41, v45")
        e("v_permlane32_swap_b32 v44, v40"); e("v_permlane32_swap_b32 v45, v41")
        e("v_add_f32 v44, v44, v40"); e("v_add_f32 v45, v45, v41")
        e.raw(f"{lab0}:")
        e(f"v_fma_f32 v{PR}, v{TR}, v44, v{PR}")
        e(f"v_fma_f32 v{PI}, v{TR}, v45, v{PI}")
        e(f"v_fma_f32 v{PR}, -v{TI}, v45, v{PR}")
        e(f"v_fma_f32 v{PI}, v{TI}, v44, v{PI}")
        pr_, pi_ = PR, PI
        for i in range(8):
            zr, zi = AZ + i, AZ + 8 + i
            e(f"v_fma_f32 v{zr}, v{LR}, v{pr_}, v{zr}")
            e(f"v_fma_f32 v{zi}, v{LR}, v{pi_}, v{zi}")
            e(f"v_fma_f32 v{zr}, -v{LI}, v{pi_}, v{zr}")
            e(f"v_fma_f32 v{zi}, v{LI}, v{pr_}, v{zi}")
            pr_, pi_ = zr, zi
        for p in range(4):
            e(f"v_cvt_pk_bf16_f32 v{36+p}, v{AZ+2*p}, v{AZ+2*p+1}")
            e(f"v_cvt_pk_bf16_f32 v{40+p}, -v{AZ+8+2*p}, -v{AZ+8+2*p+1}")
        e("ds_write_b128 v1, v[36:39]")
        e("ds_write_b128 v1, v[40:43] offset:1024")
        e.wait_all(vm=False)
        tk = [e("ds_read_b64_tr_b16 v[36:37], v2"), e("ds_read_b64_tr_b16 v[38:39], v2 offset:256"),
              e("ds_read_b64_tr_b16 v[40:41], v2 offset:1024"), e("ds_read_b64_tr_b16 v[42:43], v2 offset:1280")]
        e.wait(tk)
        if fused:
            e("v_and_b32 v8, 15, v0"); e("v_min_u32 v8, 13, v8"); e("v_lshlrev_b32 v8, 2, v8")
            e("s_lshl_b32 s61, s52, 8"); e(f"s_add_u32 s61, s61, {WS_DONE}")
            e("buffer_load_dword v9, v8, s[32:35], s61 offen sc1")
        e(f"buffer_store_dwordx4 v[36:39], v3, s[32:35], s76 offen{STF}")
        e("s_add_u32 s76, s76, 4096")
        e(f"buffer_store_dwordx4 v[40:43], v3, s[32:35], s76 offen{STF}")
    def tail_addr():
        e("s_lshl_b32 s56, s48, 11")
        e(f"s_add_u32 s56, s56, {M_TR}")
        e("v_and_b32 v1, 15, v0"); yield
        e("v_lshlrev_b32 v1, 6, v1"); yield
        e("v_lshrrev_b32 v2, 4, v0"); yield
        e("v_lshl_add_u32 v1, v2, 4, v1"); yield
        e("v_add_u32 v1, s56, v1"); yield
        e("v_lshrrev_b32 v2, 5, v0"); yield
        e("v_bfe_u32 v3, v0, 2, 2"); yield
        e("v_lshl_add_u32 v2, v2, 3, v3"); yield
        e("v_lshlrev_b32 v2, 6, v2"); yield
        e("v_bfe_u32 v3, v0, 4, 1"); yield
        e("v_lshl_add_u32 v2, v3, 5, v2"); yield
        e("v_and_b32 v3, 3, v0"); yield
        e("v_lshl_add_u32 v2, v3, 3, v2"); yield
        e("v_add_u32 v2, s56, v2"); yield
        e("v_lshlrev_b32 v3, 4, v0"); yield
        e("s_lshl_b32 s56, s53, 1")
        e("s_add_u32 s56, s56, s55")
        e("s_lshr_b32 s57, s56, 2")
        e("s_lshl_b32 s57, s57, 3")
        e("s_and_b32 s56, s56, 3")
        e("s_add_u32 s56, s56, s57")
        e("s_lshl_b32 s57, s52, 2")
        e("s_add_u32 s57, s57, s54")
        e("s_mul_i32 s57, s57, 56")
        e("s_add_u32 s56, s56, s57")
        e("s_lshl_b32 s56, s56, 10")
        e(f"s_add_u32 s76, s56, {WS_hF}")
        yield

    def cost(i):
        if i.cls == "valu": return 2.0 if i.op in TRANS else 1.0
        if i.cls in ("ds", "vmem"): return 0.5
        return 0.1
    class Fill:
        def __init__(self): self.q = []; self.cur = None; self.barrier_at = None
        def add(self, *items): self.q += list(items)
        def run(self, budget, tick):
            spent = 0.0
            while spent < budget:
                if self.cur is None:
                    if not self.q: return
                    it = self.q[0]
                    if it == "barrier":
                        if self.barrier_at is None: self.barrier_at = tick
                        if tick <= self.barrier_at: return
                        self.barrier_at = None; self.q.pop(0); continue
                    if it == "aux2gate":
                        if "a2_tick" not in aux or tick <= aux["a2_tick"]: return
                        self.q.pop(0); continue
                    if it == "step17":
                        if tick < 13: return
                        self.q.pop(0); continue
                    self.q.pop(0); self.cur = it() if callable(it) else it
                n0 = len(e.ins)
                try: next(self.cur)
                except StopIteration: self.cur = None
                spent += sum(cost(i) for i in e.ins[n0:])
        def flush(self):
            while self.cur is not None or self.q:
                if self.cur is None:
                    it = self.q.pop(0)
                    if it == "step17": continue
                    if it == "barrier" or it == "aux2gate":
                        e.wait_all(vm=False); e("s_barrier"); self.barrier_at = None
                        continue
                    self.cur = it() if callable(it) else it
                for _ in self.cur: pass
                self.cur = None
    F = Fill()
    F.add(params)
    slot = {"A": 0, "B": 0}
    last = None
    for (ph, ks, si, did) in main_stream():
        if (ph, ks) != last and (ph, ks) in STAMPS: pr.stamp()
        last = (ph, ks)
        n = slot[ph]; slot[ph] += 1
        tk = nbar[0]
        if NOEPI:
            if ph == "A" and not did: F.run(BUDGET_A, tk)
            continue
        if ph == "A":
            if COOP and n == CT2: coop_touch(3, 4, 0, False, 226)
            if COOP and n == CT3: coop_touch(0, 4, 128, True, 226)
            if COOP and n == CT4: coop_touch(4, 3, 128, True, 226)
            if n == RB_SLOT and RB_LATE: rowbatch_compute()
            if n == PUB_SLOT: rowbatch_publish()
            if n == AUX_LOAD: F.flush(); aux1_issue()
            if n == AUX_FIN: aux1_finish(); F.add("barrier", aux1_read)
            if not did: F.run(BUDGET_A, tk)
        else:
            if n == 0:
                F.flush()
                if ZFIRST:
                    drain(z_pass1()); drain(hier1())
                    e.wait_all(vm=False); e("s_barrier")
                    drain(hier2())
                    F.add(zscale, cs_base, tail_addr, "aux2gate",
                          lambda: cs_reads(0, 128), lambda: cs_reads(1, 144), lambda: gu_epi(0, 128),
                          lambda: cs_reads(2, 128), lambda: gu_epi(1, 144), lambda: cs_reads(3, 144), "step17", e_consts)
                else:
                  F.add(z_pass1, hier1, "barrier", hier2, zscale, cs_base, "aux2gate",
                      lambda: cs_reads(0, 128), lambda: cs_reads(1, 144), lambda: gu_epi(0, 128),
                      lambda: cs_reads(2, 128), lambda: gu_epi(1, 144), lambda: cs_reads(3, 144), tail_addr)
            if fused and G.EARLY_B and n == 1:
                early_B_setup(); early_B_queue(0, G.EARLY_B1)
            if fused and n >= EB_SLOT and (n - EB_SLOT) % EB_GAP == 0 and ebq and (n & 1) == 0: ebq.popleft()()
            if n == AUX2_SLOT: aux2_issue()
            if n == AUX2_FIN: aux2_finish(); aux["a2_tick"] = tk
            if PF_SLOT >= 0 and n >= PF_SLOT and (n - PF_SLOT) % PF_GAP == 0 and (n - PF_SLOT) // PF_GAP < 11: k2_touch((n - PF_SLOT) // PF_GAP, n)
            if not did: F.run(BUDGET_B0 if n < BSW else BUDGET_B, tk)
    if NOEPI:
        pr.dump(32, 48)
        e.raw("K1_END:")
        e("s_endpgm")
        gen_helper(e)
        return 256
    e_issue(); aux["e_vm"] = e.vm_issued
    if fused and G.EARLY_B > G.EARLY_B1:
        while ebq: ebq.popleft()()
        e.wait_all(vm=False); e("s_barrier")
        early_B_queue(G.EARLY_B1, G.EARLY_B)
    if TAILST2: pr.stamp()
    F.flush()
    if TAILST2: pr.stamp()
    if not ZFIRST and not ECLATE: drain_eb(e_consts(), 12)
    drain_eb(gu_epi(2, 128), 10)
    if TAILST2: pr.stamp()
    drain_eb(gu_epi(3, 144), 10)
    while ebq: ebq.popleft()()
    if fused:
        e.wait(aux[("hst", 0)], aux[("hst", 1)])
        e("s_barrier")
        lab = e.label("K1_D0")
        e("s_lshl_b32 s61, s52, 8")
        e(f"s_add_u32 s61, s61, {WS_DONE}")
        e("s_lshl_b32 s63, s53, 2")
        e("v_mov_b32 v34, s63")
        e("v_mov_b32 v35, s98")
        e("s_cmp_lg_u32 s48, 0")
        e(f"s_cbranch_scc1 {lab}")
        e.cond_begin()
        e("s_mov_b64 exec, 1")
        e("buffer_store_dword v35, v34, s[32:35], s61 offen sc1")
        e("s_mov_b64 exec, -1")
        e.cond_end()
        e.raw(f"{lab}:")
    if not ZFIRST and ECLATE: drain(e_consts())
    if TAILST: pr.stamp()
    e_check(e.vm_issued - aux["e_vm"])
    if TAILST2: pr.stamp()
    carry_and_pass2()
    pr.stamp()
    pr.dump(32, 48)
    if fused:
        if G.PROFILE: e("s_mov_b64 exec, -1")
        G.gen_k2(e, fused=True)
    e.raw("K1_END:")
    e("s_endpgm")
    gen_helper(e)
    return 256
```

```python
import sys
sys.path.insert(0, "dev")
from asmlib import *

NAME = "recurrent_scan__ssm_conv_s5__glu_gated_glu__prompt"
WS_HF   = 0
WS_hF   = 64*112*1024
WS_STAT = WS_hF + 64*56*1024
WS_CSW  = WS_STAT + 2048*16
WS_CSB  = WS_CSW + 3584*8
WS_E    = WS_CSB + 896*8
WS_DONE = WS_E + 16*448*16
WS_END  = WS_DONE + 16*256
LOG2E = 1.4426950408889634
import struct, os
def f32(x): return "0x%08x" % struct.unpack("<I", struct.pack("<f", x))[0]

def srd(e, s, ptr, nbytes):
    e(f"s_mov_b32 s{s}, s{ptr}")
    e(f"s_and_b32 s{s+1}, s{ptr+1}, 0xffff")
    e(f"s_mov_b32 s{s+2}, {nbytes}")
    e(f"s_mov_b32 s{s+3}, 0x20000")

def bf16_round_pair(e, dst_lo, dst_hi, a, b, tmp):
    e(f"v_cvt_pk_bf16_f32 v{tmp}, v{a}, v{b}")
    yield
    e(f"v_lshlrev_b32 v{dst_lo}, 16, v{tmp}")
    yield
    e(f"v_and_b32 v{dst_hi}, 0xffff0000, v{tmp}")
    yield

PROFILE = False
WS_PROF = 12 << 20
class Prof:
    def __init__(self, e, kern): self.e = e; self.k = kern; self.n = 0
    def stamp(self):
        if not PROFILE: return
        e = self.e
        import os
        e.raw("s_memtime s[96:97]" if os.environ.get("CLK") == "cyc" else "s_memrealtime s[96:97]")
        e.raw("s_waitcnt lgkmcnt(0)"); e.lg_done = e.lg_issued
        e.raw(f"s_mov_b32 s{80+self.n}, s96"); self.n += 1
        assert self.n <= ((6 if not os.environ.get('NOPF') else 12) if self.k == 0 else 12)
    def dump(self, srd_ws, wave_s):
        if not PROFILE: return
        e = self.e
        e(f"s_lshl_b32 s96, s2, 3"); e(f"s_add_u32 s96, s96, s{wave_s}"); e("s_lshl_b32 s96, s96, 6")
        e(f"s_add_u32 s96, s96, {WS_PROF + self.k*256*8*64}")
        for i in range(16):
            e(f"v_mov_b32 v{200+i}, s{80+i}" if i < self.n else f"v_mov_b32 v{200+i}, 0")
        e("v_mov_b32 v216, 0")
        e("s_mov_b64 exec, 1")
        for q in range(4):
            e(f"buffer_store_dwordx4 v[{200+4*q}:{203+4*q}], v216, s[{srd_ws}:{srd_ws+3}], s96 offen offset:{16*q}")
        e("s_waitcnt vmcnt(0)")

def pull(gen, n):
    if gen is None: return None
    for _ in range(n):
        try: next(gen)
        except StopIteration: return None
    return gen
def drain(gen):
    if gen is None: return
    for _ in gen: pass

K2_R = 9
K2_STAGE = 16384
K2RA = int(os.environ.get("K2RA", "5"))
EARLY_B = int(os.environ.get("EARLY_B", "12"))
EARLY_B1 = int(os.environ.get("EARLY_B1", "9"))
def gen_k2(e, fused=False):
    global K2_R
    RA = K2RA if fused else K2_R
    RB = (20 - RA) if fused else K2_R
    if not fused: RA, RB = 9, 9
    def baseB(t): return (t % RB) * 8192
    def baseA(t): return RB * 8192 + (t % RA) * 8192
    if not fused:
        e.raw("k2_kernel:")
        e("s_cmp_ge_u32 s2, 224")
        e("s_cbranch_scc1 K2_END")
    else:
        e("s_setprio 0")
        e("s_lshl_b32 s76, s52, 8")
        e(f"s_add_u32 s76, s76, {WS_DONE}")
        e("s_lshl_b32 s79, s53, 2")
        e("s_and_b32 s71, s51, 3")
        e("s_cmp_ge_u32 s53, 7")
        e("s_cselect_b32 s49, 1, 0")
        e("s_cselect_b32 s50, 7, 0")
        e("s_sub_u32 s50, s53, s50")
        e("s_lshl_b32 s51, s52, 1")
        e("s_add_u32 s49, s49, s51")
        e("s_mov_b32 s72, s32"); e("s_mov_b32 s73, s33"); e("s_mov_b32 s74, s34"); e("s_mov_b32 s75, s35")
    e("s_load_dwordx2 s[4:5], s[0:1], 0")
    e("s_load_dwordx2 s[6:7], s[0:1], 40")
    e("s_load_dwordx2 s[8:9], s[0:1], 48")
    e("s_load_dwordx2 s[10:11], s[0:1], 64")
    e("s_load_dwordx2 s[12:13], s[0:1], 96")
    e("s_load_dwordx2 s[14:15], s[0:1], 104")
    t = e("s_load_dwordx2 s[16:17], s[0:1], 120")
    if not fused:
        e("v_lshrrev_b32 v1, 6, v0")
        e("v_and_b32 v0, 63, v0")
        e("v_readfirstlane_b32 s48, v1")
        e("s_and_b32 s49, s2, 7")
        e("s_lshl_b32 s49, s49, 2")
        e("s_lshr_b32 s50, s2, 3")
        e("s_and_b32 s51, s50, 3")
        e("s_mov_b32 s71, s51")
        e("s_add_u32 s49, s49, s51")
        e("s_lshr_b32 s50, s50, 2")
    e.wait(t)
    srd(e, 20, 4, 2048*448*2)
    srd(e, 24, 6, 448*448*2)
    srd(e, 28, 8, 448*448*2)
    srd(e, 32, 10, 448*2)
    srd(e, 36, 12, 1792*448*2)
    srd(e, 40, 14, 2048*448*4)
    srd(e, 44, 16, WS_END if not PROFILE else (16 << 20))
    if fused:
        e.raw("s_waitcnt vmcnt(2) lgkmcnt(0)")
        e("s_barrier")
        lab = e.label("F_NOADD")
        e("s_cmp_lg_u32 s48, 0")
        e(f"s_cbranch_scc1 {lab}")
        e("v_mov_b32 v2, s79")
        e("v_mov_b32 v3, s98")
        e("s_mov_b64 exec, 1")
        e("buffer_store_dword v3, v2, s[72:75], s76 offen offset:64 sc1")
        e("s_mov_b64 exec, -1")
        e.raw(f"{lab}:")
        e.lg_issued = e.lg_done = 0; e.vm_issued = e.vm_done = 0
    pr = Prof(e, 1); pr.stamp()
    e("s_cmp_ge_u32 s48, 4")
    e("s_cbranch_scc1 K2_LOADER")
    e("s_and_b32 s52, s48, 1")
    e("s_lshr_b32 s53, s48, 1")
    e("v_and_b32 v1, 31, v0")
    e("v_lshrrev_b32 v2, 5, v0")
    e("v_and_b32 v3, 15, v0")
    e("v_lshrrev_b32 v4, 4, v0")
    e("s_lshl_b32 s54, s49, 6")
    e("s_lshl_b32 s55, s52, 5")
    e("s_add_u32 s54, s54, s55")
    e("v_add_u32 v5, s54, v1")
    e("s_lshl_b32 s55, s50, 6")
    e("s_lshl_b32 s56, s53, 5")
    e("s_add_u32 s55, s55, s56")
    e("v_lshlrev_b32 v6, 2, v2")
    e("v_add_u32 v6, s55, v6")
    e("s_movk_i32 s57, 896")
    e("v_mul_lo_u32 v7, s57, v5")
    e("v_lshlrev_b32 v8, 1, v6")
    e("v_add_u32 v7, v7, v8")
    e("v_lshlrev_b32 v9, 4, v5")
    e(f"v_add_u32 v9, {WS_STAT}, v9")
    e("v_lshlrev_b32 v10, 1, v7")
    XR, DK, ST = 16, 24, 192
    toks = []
    for a in range(4): toks.append(e(f"buffer_load_dwordx2 v[{XR+2*a}:{XR+2*a+1}], v7, s[20:23], 0 offen offset:{16*a}"))
    for a in range(4): toks.append(e(f"buffer_load_dwordx2 v[{DK+2*a}:{DK+2*a+1}], v8, s[32:35], 0 offen offset:{16*a}"))
    toks.append(e(f"buffer_load_dwordx4 v[{ST}:{ST+3}], v9, s[44:47], 0 offen" + (" sc1" if fused else "")))
    epi_toks = toks
    e("s_lshl_b32 s57, s52, 12")
    e("v_lshlrev_b32 v11, 4, v0")
    e("v_add_u32 v11, s57, v11")
    e("v_lshrrev_b32 v13, 2, v3")
    e("v_lshl_add_u32 v13, v2, 2, v13")
    e("v_lshlrev_b32 v12, 7, v13")
    e("v_and_b32 v13, 1, v4")
    e("s_lshl_b32 s57, s53, 1")
    e("v_add_u32 v13, s57, v13")
    e("v_lshrrev_b32 v14, 3, v3")
    e("v_lshlrev_b32 v14, 1, v14")
    e("v_xor_b32 v13, v13, v14")
    e("v_lshl_add_u32 v12, v13, 5, v12")
    e("v_and_b32 v13, 3, v3")
    e("v_lshl_add_u32 v12, v13, 3, v12")
    e("s_lshl_b32 s57, s53, 5")
    e("v_add_u32 v13, s57, v1")
    e("v_lshlrev_b32 v13, 7, v13")
    e("v_lshrrev_b32 v14, 1, v1")
    e("v_and_b32 v14, 7, v14")
    e("v_xor_b32 v14, v14, v2")
    e("v_lshl_add_u32 v13, v14, 4, v13")
    PH, PW, PC = 11, 12, 13
    TH, TW = 14, 15
    ACCO, ACCY = 64, 80
    FR = 96
    XF, SK, G = 34, 160, 176
    T0 = 50
    def hfrag(set_, kk): return FR + set_*32 + kk*8
    def wfrag(set_, kk): return FR + set_*32 + kk*8 + 4

    def pre_epi():
        e.wait(epi_toks)
        yield
        e(f"v_rcp_f32 v{T0}, v{ST+2}")
        yield
        for p in range(8):
            xa, xb = XF+2*p, XF+2*p+1
            e(f"v_lshlrev_b32 v{xa}, 16, v{XR+p}"); yield
            e(f"v_and_b32 v{xb}, 0xffff0000, v{XR+p}"); yield
            e(f"v_sub_f32 v{T0+1}, v{xa}, v{ST}"); yield
            e(f"v_sub_f32 v{T0+2}, v{xb}, v{ST}"); yield
            yield from bf16_round_pair(e, T0+1, T0+2, T0+1, T0+2, T0+3)
            e(f"v_mul_f32 v{T0+1}, v{T0+1}, v{T0}"); yield
            e(f"v_mul_f32 v{T0+2}, v{T0+2}, v{T0}"); yield
            yield from bf16_round_pair(e, T0+1, T0+2, T0+1, T0+2, T0+3)
            e(f"v_lshlrev_b32 v{T0+4}, 16, v{DK+p}"); yield
            e(f"v_and_b32 v{T0+5}, 0xffff0000, v{DK+p}"); yield
            e(f"v_mul_f32 v{T0+1}, v{T0+1}, v{T0+4}"); yield
            e(f"v_mul_f32 v{T0+2}, v{T0+2}, v{T0+5}"); yield
            yield from bf16_round_pair(e, SK+2*p, SK+2*p+1, T0+1, T0+2, T0+3)
    def silu_epi():
        for p in range(8):
            a, b = T0+1, T0+2
            yield from bf16_round_pair(e, a, b, ACCO+2*p, ACCO+2*p+1, T0+3)
            e(f"v_mul_f32 v{T0+4}, {f32(-LOG2E)}, v{a}"); yield
            e(f"v_mul_f32 v{T0+5}, {f32(-LOG2E)}, v{b}"); yield
            e(f"v_exp_f32 v{T0+4}, v{T0+4}"); yield
            e(f"v_exp_f32 v{T0+5}, v{T0+5}"); yield
            e(f"v_add_f32 v{T0+4}, 1.0, v{T0+4}"); yield
            e(f"v_add_f32 v{T0+5}, 1.0, v{T0+5}"); yield
            e(f"v_rcp_f32 v{T0+4}, v{T0+4}"); yield
            e(f"v_rcp_f32 v{T0+5}, v{T0+5}"); yield
            e(f"v_mul_f32 v{a}, v{a}, v{T0+4}"); yield
            e(f"v_mul_f32 v{b}, v{b}, v{T0+5}"); yield
            yield from bf16_round_pair(e, G+2*p, G+2*p+1, a, b, T0+3)

    NST = 42
    REGB = fused and os.environ.get("REGB", "0") == "1"
    NREG = int(os.environ.get("NREG", "0")) if fused else 0
    HYB = fused and NREG > 0 and not REGB
    AFL = " sc1" if (fused and os.environ.get("ASC1", "0") == "1") else ""
    def cons_poll_setup():
        e("v_and_b32 v58, 15, v0")
        e("v_min_u32 v58, 13, v58")
        e("v_lshlrev_b32 v58, 2, v58")
    def cons_poll(off):
        top = e.label("F_POLL"); ok = e.label("F_POLLOK")
        c = "s80" if not PROFILE else "s95"
        e(f"s_mov_b32 {c}, 0")
        e.raw(f"{top}:")
        e(f"buffer_load_dword v59, v58, s[44:47], s76 offen offset:{off} sc1")
        e.raw("s_waitcnt vmcnt(0)")
        e("v_cmp_ne_u32 vcc, s98, v59")
        e("s_cmp_eq_u64 vcc, 0")
        e(f"s_cbranch_scc1 {ok}")
        e(f"s_add_u32 {c}, {c}, 1")
        e(f"s_cmp_lt_u32 {c}, 200000")
        e(f"s_cbranch_scc1 {top}")
        e.raw(f"{ok}:")
        e.vm_done = e.vm_issued
    tokA = {}
    if REGB:
        e("v_lshlrev_b32 v61, 4, v0")
        e("s_lshl_b32 s58, s49, 1")
        e("s_add_u32 s58, s58, s52")
        e("s_lshl_b32 s59, s53, 1")
        e("s_mul_i32 s56, s58, 112"); e("s_add_u32 s56, s56, s59"); e("s_lshl_b32 s56, s56, 10")
        e("s_mul_i32 s57, s58, 56"); e("s_add_u32 s57, s57, s59"); e("s_lshl_b32 s57, s57, 10"); e(f"s_add_u32 s57, s57, {WS_hF}")
        e("s_lshl_b32 s60, s52, 2"); e("s_add_u32 s60, s60, s59"); e("s_lshl_b32 s60, s60, 10")
        e("s_mul_i32 s65, s71, 7"); e("s_lshl_b32 s68, s50, 2"); e("s_add_u32 s65, s65, s68")
        e("s_cmp_ge_u32 s65, 28"); e("s_cselect_b32 s68, 28, 0"); e("s_sub_u32 s65, s65, s68")
        e("s_lshl_b32 s66, s71, 1"); e("s_add_u32 s66, s66, s50")
        e("s_cmp_ge_u32 s66, 7"); e("s_cselect_b32 s68, 7, 0"); e("s_sub_u32 s66, s66, s68")
        def c_issueA(t):
            base = baseA(t)
            if t < 28:
                e("s_lshl_b32 s69, s65, 12"); e("s_add_u32 s69, s69, s56")
            else:
                e("s_lshl_b32 s69, s66, 13"); e("s_add_u32 s69, s69, s57")
                if (t - 28) & 1: e("s_add_u32 s69, s69, 4096")
            for a in range(2):
                e(f"s_add_u32 m0, s60, {base + a*1024}")
                if a: e("s_add_u32 s69, s69, 1024")
                tok = e(f"buffer_load_dwordx4 v61, s[44:47], s69 offen{AFL} lds")
            if t < 28:
                e("s_add_u32 s65, s65, 1"); e("s_cmp_eq_u32 s65, 28"); e("s_cselect_b32 s65, 0, s65")
            elif (t - 28) & 1:
                e("s_add_u32 s66, s66, 1"); e("s_cmp_eq_u32 s66, 7"); e("s_cselect_b32 s66, 0, s66")
            tokA[t] = tok
        drain(pre_epi())
        cons_poll_setup()
        cons_poll(0)
        for t in range(RA - 2): c_issueA(t)
        nA = RA - 2
        fill = None
    else:
        fill = pre_epi()
        if HYB:
            cons_poll_setup()
            lab = e.label("F_GO")
            e("s_cmp_lg_u32 s48, 0")
            e(f"s_cbranch_scc1 {lab}")
            e.cond_begin(); cons_poll(0); e.cond_end()
            e.raw(f"{lab}:")
            e("s_barrier")
    first = {ACCO: True, ACCY: True}
    rtok = {}
    def mfmas(t):
        acc = ACCO if t < 28 else ACCY
        for kk in range(4):
            e.wait(rtok[(t, kk)])
            c = "0" if first[acc] else f"v[{acc}:{acc+15}]"
            first[acc] = False
            e(f"v_mfma_f32_32x32x16_bf16 v[{acc}:{acc+15}], v[{wfrag(t&1,kk)}:{wfrag(t&1,kk)+3}], v[{hfrag(t&1,kk)}:{hfrag(t&1,kk)+3}], {c}")
            yield
    for t in range(NST + 1):
        if t < NST:
            if fused and t == 3 and not REGB: e.raw("s_waitcnt vmcnt(0)"); e.vm_done = e.vm_issued
            if REGB: e.wait(tokA[t])
            e("s_barrier")
            if fused and t == 3:
                lab = e.label("F_NOH")
                e("s_cmp_lg_u32 s48, 0")
                e(f"s_cbranch_scc1 {lab}")
                e.cond_begin()
                e("v_mov_b32 v56, s79")
                e("v_mov_b32 v57, s98")
                e("s_mov_b64 exec, 1")
                e("buffer_store_dword v57, v56, s[72:75], s76 offen offset:128 sc1")
                e("s_mov_b64 exec, -1")
                e.cond_end()
                e.raw(f"{lab}:")
            if t in (0, 1, 8, 16, 28, 41): pr.stamp()
            if REGB and nA < NST and nA <= t + RA - 2:
                if nA == 25: cptok = e("buffer_load_dword v59, v58, s[44:47], s76 offen offset:64 sc1")
                if nA == 28:
                    ok = e.label("F_PCOK")
                    e.wait(cptok)
                    e("v_cmp_ne_u32 vcc, s98, v59"); e("s_cmp_eq_u64 vcc, 0"); e(f"s_cbranch_scc1 {ok}")
                    e.cond_begin(); cons_poll(64); e.cond_end()
                    e.raw(f"{ok}:")
                c_issueA(nA); nA += 1
            e(f"v_add_u32 v{TH}, {baseA(t)}, v{PH}")
            if t < 28: e(f"v_add_u32 v{TW}, {baseB(t)}, v{PW}")
            else:      e(f"v_add_u32 v{TW}, {baseB(t)}, v{PC}")
        mf = mfmas(t-1) if t >= 1 else None
        for kk in range(4):
            if t < NST:
                if mf is not None: mf = pull(mf, 1)
                tk_ = [e(f"ds_read_b128 v[{hfrag(t&1,kk)}:{hfrag(t&1,kk)+3}], v{TH} offset:{kk*1024}")]
                w = wfrag(t&1,kk)
                if t < 28:
                    tk_.append(e(f"ds_read_b64_tr_b16 v[{w}:{w+1}], v{TW} offset:{kk*2048}"))
                    tk_.append(e(f"ds_read_b64_tr_b16 v[{w+2}:{w+3}], v{TW} offset:{kk*2048+1024}"))
                else:
                    if kk == 0: tk_.append(e(f"ds_read_b128 v[{w}:{w+3}], v{TW}"))
                    else:
                        e(f"v_xor_b32 v{T0+8}, {kk<<5}, v{TW}")
                        tk_.append(e(f"ds_read_b128 v[{w}:{w+3}], v{T0+8}"))
                rtok[(t, kk)] = tk_
            elif mf is not None: mf = pull(mf, 1)
            fill = pull(fill, 6 if not REGB else 3)
        if t == 29:
            drain(fill); fill = silu_epi()
        if t < NST and not REGB: e.wait_all(vm=False, lg=True)
    drain(fill)
    for i in range(16):
        e(f"v_add_f32 v{SK+i}, v{ACCY+i}, v{SK+i}")
    for i in range(16):
        e(f"v_fma_f32 v{SK+i}, v{SK+i}, v{G+i}, v{XF+i}")
    for a in range(4):
        e(f"buffer_store_dwordx4 v[{SK+4*a}:{SK+4*a+3}], v10, s[40:43], 0 offen offset:{32*a}" + os.environ.get("OUTF", ""))
    pr.stamp()
    if PROFILE: e("s_waitcnt vmcnt(0)")
    pr.stamp()
    pr.dump(44, 48)
    e("s_endpgm")
    e2 = e
    e.raw("K2_LOADER:")
    e.lg_issued = e.lg_done = 0; e.vm_issued = e.vm_done = 0
    e("s_sub_u32 s52, s48, 4")
    e("s_and_b32 s53, s52, 1")
    e("s_lshr_b32 s54, s52, 1")
    e("v_lshlrev_b32 v1, 4, v0")
    e("v_lshrrev_b32 v2, 3, v0")
    e("s_lshl_b32 s55, s52, 4")
    e("v_add_u32 v2, s55, v2")
    e("s_movk_i32 s55, 896")
    e("v_mul_lo_u32 v2, s55, v2")
    e("v_and_b32 v3, 7, v0")
    e("v_lshrrev_b32 v4, 4, v0")
    e("v_and_b32 v5, 1, v4")
    e("v_lshlrev_b32 v5, 2, v5")
    e("v_xor_b32 v5, v5, v3")
    e("v_lshl_add_u32 v5, v5, 4, v2")
    e("v_xor_b32 v6, v4, v3")
    e("v_lshl_add_u32 v6, v6, 4, v2")
    e("v_add_u32 v7, 4, v4")
    e("v_xor_b32 v7, v7, v3")
    e("v_lshl_add_u32 v7, v7, 4, v2")
    e(f"v_add_u32 v7, {8*896}, v7")
    e("s_lshl_b32 s58, s49, 1")
    e("s_add_u32 s58, s58, s53")
    e("s_lshl_b32 s59, s54, 1")
    e("s_mul_i32 s56, s58, 112")
    e("s_add_u32 s56, s56, s59")
    e("s_lshl_b32 s56, s56, 10")
    if WS_HF: e(f"s_add_u32 s56, s56, {WS_HF}")
    e("s_mul_i32 s57, s58, 56")
    e("s_add_u32 s57, s57, s59")
    e("s_lshl_b32 s57, s57, 10")
    e(f"s_add_u32 s57, s57, {WS_hF}")
    e("s_lshl_b32 s60, s53, 2")
    e("s_add_u32 s60, s60, s59")
    e("s_lshl_b32 s60, s60, 10")
    e("s_lshl_b32 s61, s52, 11")
    e("s_lshl_b32 s62, s50, 7")
    e(f"s_mul_i32 s63, s50, {64*896}")
    if REGB:
        assert EARLY_B == 12
        e("s_mul_i32 s77, s71, 7"); e("s_lshl_b32 s68, s50, 2"); e("s_add_u32 s77, s77, s68")
        e("s_cmp_ge_u32 s77, 28"); e("s_cselect_b32 s68, 28, 0"); e("s_sub_u32 s77, s77, s68")
        e(f"s_add_u32 s77, s77, {EARLY_B}"); e("s_cmp_ge_u32 s77, 28"); e("s_cselect_b32 s68, 28, 0"); e("s_sub_u32 s77, s77, s68")
        e("s_lshl_b32 s78, s71, 1"); e("s_add_u32 s78, s78, s50")
        e("s_cmp_ge_u32 s78, 7"); e("s_cselect_b32 s68, 7, 0"); e("s_sub_u32 s78, s78, s68")
        def breg(t): return 16 + 8*(t - EARLY_B)
        tokR = {}
        def bload(t):
            part = (t - 28) & 1
            if t < 28:
                e(f"s_mul_i32 s70, s77, {64*896}"); e("s_add_u32 s70, s70, s62")
            else:
                e("s_lshl_b32 s70, s78, 7"); e("s_add_u32 s70, s70, s63")
            for a in range(2):
                r = breg(t) + 4*a
                if t < 28:
                    if a: e("s_add_u32 s70, s70, 7168")
                    tokR[t] = e(f"buffer_load_dwordx4 v[{r}:{r+3}], v5, s[36:39], s70 offen")
                else:
                    tokR[t] = e(f"buffer_load_dwordx4 v[{r}:{r+3}], v{6+a}, s[{24+4*part}:{27+4*part}], s70 offen")
            if t < 28:
                e("s_add_u32 s77, s77, 1"); e("s_cmp_eq_u32 s77, 28"); e("s_cselect_b32 s77, 0, s77")
            elif part:
                e("s_add_u32 s78, s78, 1"); e("s_cmp_eq_u32 s78, 7"); e("s_cselect_b32 s78, 0, s78")
        NINIT = int(os.environ.get("BINIT", "28"))
        nL = EARLY_B
        while nL < NINIT: bload(nL); nL += 1
        e("v_add_u32 v1, s61, v1")
        def bwrite(t):
            e.wait(tokR[t])
            base = baseB(t)
            e(f"v_add_u32 v2, {base}, v1")
            e(f"ds_write_b128 v2, v[{breg(t)}:{breg(t)+3}]")
            e(f"ds_write_b128 v2, v[{breg(t)+4}:{breg(t)+7}] offset:1024")
        pr = Prof(e, 1); pr.n = 1
        pr.stamp()
        for t in range(EARLY_B, RB - 2): bwrite(t)
        for t in range(NST):
            e.wait_all(vm=False, lg=True)
            if t in (0, 1, 8, 16, 28, 41): pr.stamp()
            e("s_barrier")
            if nL < NST and t >= int(os.environ.get("BSTART", "2")): bload(nL); nL += 1
            s_ = t + RB - 2
            if EARLY_B <= s_ < NST and s_ >= RB - 2: bwrite(s_)
        pr.dump(44, 48)
        e.raw("K2_END:")
        e("s_endpgm")
        return
    e("s_lshl_b32 s65, s71, 2")
    e("s_lshl_b32 s68, s50, 1")
    e("s_add_u32 s65, s65, s68")
    e("s_cmp_ge_u32 s65, 14")
    e("s_cselect_b32 s68, 14, 0")
    e("s_sub_u32 s65, s65, s68")
    e("s_lshl_b32 s66, s71, 1")
    e("s_add_u32 s66, s66, s50")
    e("s_cmp_ge_u32 s66, 7")
    e("s_cselect_b32 s68, 7, 0")
    e("s_sub_u32 s66, s66, s68")
    e("s_mov_b32 s77, s65"); e("s_mov_b32 s78, s66")
    stage_tok = {}
    AFL = " sc1" if (fused and os.environ.get("ASC1", "0") == "1") else ""
    def adv(t, o, m):
        if t < 28:
            e(f"s_add_u32 s{o}, s{o}, 1"); e(f"s_cmp_eq_u32 s{o}, 14"); e(f"s_cselect_b32 s{o}, 0, s{o}")
        elif (t - 28) & 1:
            e(f"s_add_u32 s{m}, s{m}, 1"); e(f"s_cmp_eq_u32 s{m}, 7"); e(f"s_cselect_b32 s{m}, 0, s{m}")
    def issueA(t):
        base = baseA(t)
        if t < 28:
            e("s_lshl_b32 s69, s65, 13")
            e("s_add_u32 s69, s69, s56")
            if t >= 14: e("s_add_u32 s69, s69, 4096")
        else:
            e("s_lshl_b32 s69, s66, 13")
            e("s_add_u32 s69, s69, s57")
            if (t - 28) & 1: e("s_add_u32 s69, s69, 4096")
        for a in range(2):
            e(f"s_add_u32 m0, s60, {base + a*1024}")
            if a: e("s_add_u32 s69, s69, 1024")
            tok = e(f"buffer_load_dwordx4 v1, s[44:47], s69 offen{AFL} lds")
        adv(t, 65, 66)
        return tok
    def issueB(t):
        base = baseB(t)
        part = (t - 28) & 1
        if t < 28:
            e(f"s_mul_i32 s70, s77, {128*896}")
            e("s_add_u32 s70, s70, s62")
            if t >= 14: e(f"s_add_u32 s70, s70, {64*896}")
        else:
            e("s_lshl_b32 s70, s78, 7")
            e("s_add_u32 s70, s70, s63")
        for a in range(2):
            e(f"s_add_u32 m0, s61, {base + a*1024}")
            if t < 28:
                if a: e("s_add_u32 s70, s70, 7168")
                tok = e("buffer_load_dwordx4 v5, s[36:39], s70 offen lds")
            else:
                tok = e(f"buffer_load_dwordx4 v{6+a}, s[{24+4*part}:{27+4*part}], s70 offen lds")
        adv(t, 77, 78)
        return tok
    def poll(off):
        top = e.label("F_POLL"); ok = e.label("F_POLLOK")
        e("v_and_b32 v8, 15, v0")
        e("v_min_u32 v8, 13, v8")
        e("v_lshlrev_b32 v8, 2, v8")
        e("s_mov_b32 s80, 0" if not PROFILE else "s_mov_b32 s95, 0")
        c = "s80" if not PROFILE else "s95"
        e.raw(f"{top}:")
        e(f"buffer_load_dword v9, v8, s[44:47], s76 offen offset:{off} sc1")
        e.raw("s_waitcnt vmcnt(0)")
        e("v_cmp_ne_u32 vcc, s98, v9")
        e("s_cmp_eq_u64 vcc, 0")
        e(f"s_cbranch_scc1 {ok}")
        e(f"s_add_u32 {c}, {c}, 1")
        e(f"s_cmp_lt_u32 {c}, 200000")
        e(f"s_cbranch_scc1 {top}")
        e.raw(f"{ok}:")
        e.vm_done = e.vm_issued
    def poll_issue(off):
        return e(f"buffer_load_dword v9, v8, s[44:47], s76 offen offset:{off} sc1")
    def poll_check(tok, off):
        ok = e.label("F_PCOK")
        e.wait(tok)
        e("v_cmp_ne_u32 vcc, s98, v9")
        e("s_cmp_eq_u64 vcc, 0")
        e(f"s_cbranch_scc1 {ok}")
        e.cond_begin()
        poll(off)
        e.cond_end()
        e.raw(f"{ok}:")
    pr = Prof(e, 1); pr.n = 1
    PRO = int(os.environ.get("K2PRO", "2"))
    tokA = {}; tokB = {}
    nA = 0; nB = 0
    if fused:
        for t in range(EARLY_B):
            tokB[t] = None; nB += 1; adv(t, 77, 78)
        if EARLY_B == 0:
            for t in range(RB - 1): tokB[t] = issueB(t); nB += 1
        if HYB:
            assert EARLY_B + NREG <= 28
            e("v_and_b32 v8, 15, v0"); e("v_min_u32 v8, 13, v8"); e("v_lshlrev_b32 v8, 2, v8")
            tokR = {}
            for t in range(EARLY_B, EARLY_B + NREG):
                e(f"s_mul_i32 s70, s77, {64*896}"); e("s_add_u32 s70, s70, s62")
                for a in range(2):
                    r = 16 + 8*(t - EARLY_B) + 4*a
                    if a: e("s_add_u32 s70, s70, 7168")
                    tokR[t] = e(f"buffer_load_dwordx4 v[{r}:{r+3}], v5, s[36:39], s70 offen")
                adv(t, 77, 78)
            e("v_add_u32 v10, s61, v1")
            e("s_barrier")
        else:
            ok0 = e.label("F_P0OK")
            e("v_cmp_ne_u32 vcc, s98, v9")
            e("s_cmp_eq_u64 vcc, 0")
            e(f"s_cbranch_scc1 {ok0}")
            e.cond_begin(); poll(0); e.cond_end()
            e.raw(f"{ok0}:")
        for t in range(PRO): tokA[t] = issueA(t); nA += 1
    else:
        for t in range(PRO):
            tokA[t] = issueA(t); tokB[t] = issueB(t); nA += 1; nB += 1
    pr.stamp()
    ptok = None
    for t in range(NST):
        e.wait(tokA[t], tokB[t])
        if HYB: e.wait_all(vm=False, lg=True) if e.lg_done < e.lg_issued else None
        if t in (0, 1, 8, 16, 28, 41): pr.stamp()
        e("s_barrier")
        k = 0
        while k < 2:
            did = False
            if nA < NST and nA <= t + RA - 1:
                if fused and nA == 11: ptok = poll_issue(64)
                if fused and nA == 14: poll_check(ptok, 64)
                if fused and nA == 24: ptok = poll_issue(128)
                if fused and nA == 28: poll_check(ptok, 128)
                tokA[nA] = issueA(nA); nA += 1; did = True
            if nB < NST and nB <= t + RB - 1 and nB <= nA + RB:
                if HYB and EARLY_B <= nB < EARLY_B + NREG:
                    e.wait(tokR[nB])
                    r = 16 + 8*(nB - EARLY_B)
                    e(f"v_add_u32 v11, {baseB(nB)}, v10")
                    e(f"ds_write_b128 v11, v[{r}:{r+3}]")
                    e(f"ds_write_b128 v11, v[{r+4}:{r+7}] offset:1024")
                    tokB[nB] = None
                else:
                    tokB[nB] = issueB(nB)
                nB += 1; did = True
            if not did: break
            k += 1
        assert nA > t + 1 or nA == NST or True
    pr.dump(44, 48)
    e.raw("K2_END:")
    e("s_endpgm")

def kd(name, vgpr, sgpr=102):
    acc = (vgpr + 3)//4*4
    return f""".amdhsa_kernel {name}
  .amdhsa_next_free_vgpr {vgpr}
  .amdhsa_next_free_sgpr {sgpr}
  .amdhsa_accum_offset {acc}
  .amdhsa_group_segment_fixed_size 0
  .amdhsa_kernarg_size 128
  .amdhsa_user_sgpr_count 2
  .amdhsa_user_sgpr_kernarg_segment_ptr 1
  .amdhsa_system_sgpr_workgroup_id_x 1
.end_amdhsa_kernel"""

def main():
    global PROFILE
    which = sys.argv[2] if len(sys.argv) > 2 else "k2"
    if len(sys.argv) > 3 and "prof" in sys.argv[3]: PROFILE = True
    hdr = open(f"cdna_kernels/{NAME}.s.ref").read().split("; Override launch")[0]
    out = [hdr.rstrip()]
    kernels = []
    fused = "fused" in which
    KN = NAME + "_kernel" if fused else "k1_kernel"
    if fused:
        if os.environ.get("PLAIN", "0") == "1": out.append("; @launch grid=(256,1,1) block=(512,1,1) lds=163840")
        else: out.append(f"; @launch kernel={KN} grid=(256,1,1) block=(512,1,1) lds=163840")
    else:
        if "k1" in which:
            out.append("; @launch kernel=k1_kernel grid=(256,1,1) block=(512,1,1) lds=163840")
        if "k2" in which:
            out.append(f"; @launch kernel=k2_kernel grid=(224,1,1) block=(512,1,1) lds={K2_R*K2_STAGE}")
    out.append('.amdgcn_target "amdgcn-amd-amdhsa--gfx950"\n.text')
    kds = []
    if fused:
        import gen_k1b as gen_k1
        gen_k1.G.PROFILE = PROFILE
        e = Emit(); vg = gen_k1.gen_k1(e, fused=True, kname=KN)
        out.append(f".globl {KN}\n.p2align 8\n.type {KN},@function"); out.append(e.finish()); kds.append(kd(KN, vg))
    else:
        if "k1" in which:
            import gen_k1b as gen_k1
            gen_k1.G.PROFILE = PROFILE
            e = Emit(); vg = gen_k1.gen_k1(e)
            out.append(".globl k1_kernel\n.p2align 8\n.type k1_kernel,@function"); out.append(e.finish()); kds.append(kd("k1_kernel", vg))
        if "k2" in which:
            e = Emit(); gen_k2(e)
            out.append(".globl k2_kernel\n.p2align 8\n.type k2_kernel,@function"); out.append(e.finish()); kds.append(kd("k2_kernel", 200 if not PROFILE else 224))
    out.append('.section .rodata,"a"\n.p2align 6')
    out.append("\n.p2align 6\n".join(kds))
    open(sys.argv[1], "w").write("\n".join(out) + "\n")
if __name__ == "__main__": main()
```

```python
import sys, os
sys.path.insert(0, "dev")
from asmlib import *
import gen as G
from gen import *
from k1_common import *
from collections import deque

env = lambda k, d: type(d)(os.environ.get(k, d)) if not isinstance(d, bool) else os.environ.get(k, "1" if d else "0") == "1"
STAMPS = eval(os.environ.get("STAMPS", '[("A",0),("A",27),("B",0),("B",27)]'))
NOEPI = env("NOEPI", False); NODMA = env("NODMA", False)
PRO_DMAS = env("PRO_DMAS", 10); ZLATE = env("ZLATE", True); MAP2 = env("MAP2", True); COOP = env("COOP", False); ROT = env("ROT", 1 if not COOP else 0)
CT2 = env("CT2", 1); CT3 = env("CT3", 22); CT4 = env("CT4", 34)
EB_SLOT = env("EB_SLOT", 4); EB_GAP = env("EB_GAP", 6); EBV = 13
PF_GAP = env("PF_GAP", 4); PF_SLOT = env("PF_SLOT", -1); AUX2_SLOT = env("AUX2_SLOT", 6); E_SLOT = env("E_SLOT", 48)
AUX2_FIN = env("AUX2_FIN", 26)
AUX_LOAD = env("AUX_LOAD", 44 if ZLATE else 50); AUX_FIN = env("AUX_FIN", 62 if ZLATE else 68); PUB_SLOT = env("PUB_SLOT", 9 if ZLATE else 11)
BUDGET_A = env("BUDGET_A", 4.0); BUDGET_B = env("BUDGET_B", 6.0); BUDGET_B0 = env("BUDGET_B0", 7.0)

DMAFLAG = os.environ.get("DMAFLAG", "")
if DMAFLAG: DMAFLAG = " " + DMAFLAG
BSW = env("BSW", 30); ECLATE = env("ECLATE", False); ZFIRST = env("ZFIRST", False); TAILST2 = env("TAILST2", False); TAILST = env("TAILST", True); PSTAMP = env("PSTAMP", False); DMA_HURRY = env("DMA_HURRY", 6); RB_LATE = env("RB_LATE", True); RB_SLOT = env("RB_SLOT", 7)
XR, ZR, WR = 0, 49152, 73728
MISC = 139264
M_ST = MISC; M_CS = MISC + 1024; M_SEG = MISC + 2048; M_N = MISC + 3072
M_SD = MISC + 3328; M_CB = MISC + 3840
M_PART = MISC + 3328
M_PB = MISC + 5376
M_TR = MISC + 6656
AX, AZr, AW0, AW1 = 1, 5, 9, 10
VX0, VX1, VZ, VW = 11, 12, 13, 14
LR, LI, CR, CI, L8R, L8I, L128R, L128I, TR, TI = 15, 16, 17, 18, 19, 20, 21, 22, 23, 24
M_, SD, NLR, CSR, CSI, PR, PI, ER, EI = 25, 26, 27, 28, 29, 30, 31, 32, 33
VH = 47

AZ = 48
AG = [64, 80, 96, 112]
XF = 128
FB = 240

def gen_k1(e, fused=False, kname="k1_kernel"):
    STF = os.environ.get("STF", " sc1") if fused else ""
    e.raw(f"{kname}:")
    e("s_cmp_ge_u32 s2, 256")
    e("s_cbranch_scc1 K1_END")
    if env("CODEPF", False): e("s_getpc_b64 s[84:85]")
    e.raw("K1_CODE_FIRST:")
    e("s_load_dwordx2 s[4:5], s[0:1], 0")
    e("s_load_dwordx2 s[6:7], s[0:1], 8")
    e("s_load_dwordx2 s[8:9], s[0:1], 24")
    e("s_load_dwordx2 s[10:11], s[0:1], 32")
    e("s_load_dwordx2 s[12:13], s[0:1], 80")
    e("s_load_dwordx2 s[14:15], s[0:1], 88")
    e("s_load_dwordx2 s[16:17], s[0:1], 112")
    e("s_load_dwordx2 s[18:19], s[0:1], 120")
    e("s_load_dwordx2 s[62:63], s[0:1], 16")
    e("s_load_dwordx2 s[86:87], s[0:1], 96")
    e("s_load_dwordx2 s[88:89], s[0:1], 40")
    e("s_load_dwordx2 s[90:91], s[0:1], 48")
    t = e("s_load_dwordx2 s[64:65], s[0:1], 56")
    e("v_lshrrev_b32 v1, 6, v0")
    e("v_and_b32 v0, 63, v0")
    e("v_readfirstlane_b32 s48, v1")
    e("s_sub_u32 s49, s2, 32")
    e("s_and_b32 s50, s49, 7")
    e("s_lshr_b32 s51, s49, 3")
    if MAP2:
        e("s_mul_i32 s54, s51, 37")
        e("s_lshr_b32 s54, s54, 8")
        e("s_mul_i32 s53, s54, 7")
        e("s_sub_u32 s55, s51, s53")
        e("s_and_b32 s52, s50, 3")
        e("s_lshl_b32 s53, s54, 2")
        e("s_add_u32 s52, s52, s53")
        e("s_lshl_b32 s51, s55, 2")
        e("s_add_u32 s51, s51, s54")
        e("s_lshr_b32 s53, s50, 2")
        e("s_mul_i32 s53, s53, 7")
        e("s_add_u32 s53, s53, s55")
    else:
        e("s_and_b32 s52, s50, 3")
        e("s_lshl_b32 s52, s52, 2")
        e("s_and_b32 s53, s51, 3")
        e("s_add_u32 s52, s52, s53")
        e("s_lshr_b32 s53, s50, 2")
        e("s_mul_i32 s53, s53, 7")
        e("s_lshr_b32 s54, s51, 2")
        e("s_add_u32 s53, s53, s54")
    e("s_and_b32 s54, s48, 3")
    e("s_lshr_b32 s55, s48, 2")
    e("v_lshrrev_b32 v40, 3, v0")
    e("v_and_b32 v41, 7, v0")
    e("v_lshrrev_b32 v42, 4, v0")
    e("s_movk_i32 s56, 896")
    e("s_lshl_b32 s57, s48, 4")
    e("v_add_u32 v43, s57, v40")
    e("v_mul_lo_u32 v43, s56, v43")
    e("v_xor_b32 v44, v41, v42")
    e(f"v_lshl_add_u32 v{VX0}, v44, 4, v43")
    e("v_add_u32 v44, 4, v42")
    e("v_xor_b32 v44, v41, v44")
    e(f"v_lshl_add_u32 v{VX1}, v44, 4, v43")
    e(f"v_add_u32 v{VX1}, {8*896}, v{VX1}")
    e("s_lshl_b32 s57, s54, 3")
    e("v_add_u32 v43, s57, v40")
    e("v_mul_lo_u32 v43, s56, v43")
    e("s_and_b32 s57, s48, 1")
    e("s_lshl_b32 s57, s57, 2")
    e("v_add_u32 v44, s57, v42")
    e("v_xor_b32 v44, v41, v44")
    e(f"v_lshl_add_u32 v{VZ}, v44, 4, v43")
    e("s_lshl_b32 s57, s54, 3")
    e("v_add_u32 v43, s57, v40")
    e("s_movk_i32 s56, 3584")
    e("v_mul_lo_u32 v43, s56, v43")
    e("v_and_b32 v44, 1, v42")
    e("s_lshl_b32 s57, s55, 1")
    e("v_add_u32 v44, s57, v44")
    e("v_lshlrev_b32 v44, 1, v44")
    e("v_xor_b32 v44, v41, v44")
    e(f"v_lshl_add_u32 v{VW}, v44, 4, v43")
    e(f"s_mul_i32 s66, s52, {128*896}")
    e(f"s_mul_i32 s67, s53, {32*896}")
    e("s_lshl_b32 s72, s53, 8")
    e("s_lshl_b32 s73, s48, 11")
    e("s_lshl_b32 s74, s48, 10")
    e(f"s_add_u32 s74, s74, {ZR}")
    e("s_lshl_b32 s75, s55, 13")
    e("s_lshl_b32 s76, s54, 10")
    e("s_add_u32 s75, s75, s76")
    e(f"s_add_u32 s75, s75, {WR}")
    e.wait(t)
    e("s_cmp_lt_u32 s2, 32")
    e("s_cbranch_scc1 K1_HELPER")
    srd(e, 20, 4, 2048*448*2)
    if ROT == 1:
        e("s_and_b32 s56, s51, 3")
        e("s_lshl_b32 s56, s56, 1")
        e("s_lshr_b32 s57, s51, 2")
        e("s_add_u32 s56, s56, s57")
        e("s_cmp_ge_u32 s56, 7")
        e("s_cselect_b32 s57, 7, 0")
        e("s_sub_u32 s77, s56, s57")
    else:
        e("s_mov_b32 s77, 0")
    e("s_mov_b32 s76, s77")
    e("s_lshl_b32 s4, s76, 7")
    e("s_add_u32 s4, s4, s66")
    e("s_sub_u32 s67, s67, s66")
    ent_tok = {}
    dmaq = deque()
    def entry_dmas(kind, kc):
        def mk(a, last):
            def f():
                if NODMA:
                    if last: ent_tok[(kind, kc)] = None
                    return
                if kind == "X":
                    e(f"s_add_u32 m0, s73, {XR + (kc%3)*16384 + a*1024}")
                    tok = e(f"buffer_load_dwordx4 v{VX0+a}, s[20:23], s{4+kc} offen{DMAFLAG} lds")
                elif kind == "ZC":
                    e(f"s_add_u32 m0, s74, {M_TR - ZR + kc*8192}")
                    e(f"s_add_u32 s77, s67, s{4+kc}")
                    tok = e(f"buffer_load_dwordx4 v{VZ}, s[24:27], s77 offen{DMAFLAG} lds")
                elif kind == "Z":
                    e(f"s_add_u32 m0, s74, {(kc%3)*8192}")
                    e(f"s_add_u32 s77, s67, s{4+kc}")
                    tok = e(f"buffer_load_dwordx4 v{VZ}, s[24:27], s77 offen{DMAFLAG} lds")
                else:
                    ch = kc % 7; colb = 0 if kc < 7 else 128
                    e(f"s_add_u32 m0, s75, {(kc%4)*16384 + a*4096}")
                    e(f"s_add_u32 s77, s{11+ch}, {32*a*3584 + colb}")
                    tok = e(f"buffer_load_dwordx4 v{VW}, s[28:31], s77 offen{DMAFLAG} lds")
                if last: ent_tok[(kind, kc)] = tok
            return f
        n = 1 if kind in ("Z", "ZC") else 2
        return [mk(a, a == n - 1) for a in range(n)]
    def queue(*ents):
        for (k, kc) in ents:
            for f in entry_dmas(k, kc): dmaq.append(f)
    def bz_w_srds():
        e("s_cmp_eq_u32 s55, 0")
        e("s_cselect_b32 s24, s8, s10")
        e("s_cselect_b32 s25, s9, s11")
        e("s_cselect_b32 s28, s12, s14")
        e("s_cselect_b32 s29, s13, s15")
        e("s_and_b32 s25, s25, 0xffff")
        e(f"s_mov_b32 s26, {448*448*2}")
        e("s_mov_b32 s27, 0x20000")
        e("s_and_b32 s29, s29, 0xffff")
        e(f"s_mov_b32 s30, {448*1792*2}")
        e("s_mov_b32 s31, 0x20000")
    M_PF0 = 162304
    def coop_setup():
        e("s_and_b32 s56, s51, 3")
        e("s_lshr_b32 s57, s51, 2")
        e("s_mov_b32 s64, 0")
        e("s_cmp_eq_u32 s54, 0"); e("s_cselect_b32 s64, 1, s64")
        e("s_cmp_eq_u32 s54, 1"); e("s_cselect_b32 s64, 2, s64")
        e("s_cmp_eq_u32 s48, 2"); e("s_cselect_b32 s64, 3, s64")
        e("s_or_b32 s58, s57, s48"); e("s_cmp_eq_u32 s58, 3")
        e("s_cmp_eq_u32 s48, 3"); e("s_cselect_b32 s58, 0, 1"); e("s_or_b32 s58, s58, s57")
        e("s_cmp_eq_u32 s58, 0"); e("s_cselect_b32 s64, 3, s64"); e("s_cselect_b32 s57, 7, s57")
        e(f"s_mul_i32 s58, s56, {16*3584}"); e("s_add_u32 s58, s58, s72")
        e(f"s_mul_i32 s59, s53, {32*896}"); e(f"s_mul_i32 s61, s56, {8*896}"); e("s_add_u32 s59, s59, s61")
        e(f"s_mul_i32 s61, s57, {16*896}"); e("s_add_u32 s61, s61, s66")
        e("s_cmp_eq_u32 s64, 1"); e("s_cselect_b32 s65, s58, s61")
        e("s_cselect_b32 s88, s28, s20"); e("s_cselect_b32 s89, s29, s21"); e("s_cselect_b32 s90, s30, s22")
        e("s_cmp_eq_u32 s64, 2"); e("s_cselect_b32 s65, s59, s65")
        e("s_cselect_b32 s88, s24, s88"); e("s_cselect_b32 s89, s25, s89"); e("s_cselect_b32 s90, s26, s90")
        e("s_mov_b32 s91, 0x20000")
    def coop_touch(c0, n, colb, wonly, tv):
        lab = e.label("K1_CT")
        if wonly: e("s_cmp_lg_u32 s64, 1")
        else: e("s_cmp_eq_u32 s64, 0")
        e(f"s_cbranch_scc1 {lab}")
        e.cond_begin()
        e("s_cmp_eq_u32 s64, 2")
        e("s_cselect_b32 s58, 7, 15")
        e("s_cselect_b32 s59, 3, 4")
        e(f"v_and_b32 v{tv}, s58, v0")
        e(f"v_lshrrev_b32 v{tv+1}, s59, v0")
        e(f"v_min_u32 v{tv+1}, {n-1}, v{tv+1}")
        e("s_cmp_eq_u32 s64, 1")
        e("s_movk_i32 s58, 896")
        e("s_cselect_b32 s58, 3584, s58")
        e("s_movk_i32 s59, 128")
        e(f"s_cselect_b32 s59, {64*3584}, s59")
        e(f"s_mov_b32 s61, {c0*128}")
        e(f"s_cselect_b32 s61, {c0*64*3584 + colb}, s61")
        e(f"v_mul_lo_u32 v{tv}, s58, v{tv}")
        e(f"v_mul_lo_u32 v{tv+1}, s59, v{tv+1}")
        e("s_add_u32 s61, s61, s65")
        e(f"s_mov_b32 m0, {M_PF0}")
        e(f"v_add_u32 v{tv}, v{tv}, v{tv+1}")
        e(f"buffer_load_dword v{tv}, s[88:91], s61 offen lds")
        e.cond_end()
        e.raw(f"{lab}:")
    srd(e, 68, 64, 896)
    if COOP:
        bz_w_srds()
        coop_setup()
        coop_touch(0, 3, 0, False, 34)
        queue(("X",0))
        for _ in range(2): dmaq.popleft()()
    else:
        queue(("X",0))
        for _ in range(2): dmaq.popleft()()
        bz_w_srds()
    if not ZLATE:
        queue(("Z",0))
        dmaq.popleft()()
    srd(e, 40, 6, 896)
    srd(e, 44, 62, 896)
    srd(e, 32, 18, WS_END if not G.PROFILE else (16 << 20))
    srd(e, 36, 16, 256)
    e("s_mov_b32 s60, 0")
    e("s_cmp_lt_u32 s48, 2")
    e("s_cselect_b32 s61, 1, 0")
    e("s_cmp_lt_u32 s53, 8")
    e("s_cselect_b32 s60, s61, 0")
    e("s_cmp_eq_u32 s48, 2")
    e("s_cselect_b32 s61, 2, 0")
    e("s_cmp_lt_u32 s52, 8")
    e("s_cselect_b32 s61, s61, 0")
    e("s_or_b32 s60, s60, s61")
    e("s_lshl_b32 s56, s52, 7")
    e("s_lshl_b32 s57, s53, 4")
    e("s_add_u32 s56, s56, s57")
    e("s_lshl_b32 s57, s48, 3")
    e("s_add_u32 s56, s56, s57")
    e("s_lshl_b32 s57, s53, 5")
    e("s_and_b32 s58, s52, 3")
    e("s_lshl_b32 s58, s58, 3")
    e("s_add_u32 s57, s57, s58")
    e("s_cmp_eq_u32 s60, 2")
    e("s_cselect_b32 s59, s57, s56")
    e("s_cmp_ge_u32 s52, 4")
    e("s_cselect_b32 s92, s10, s8")
    e("s_cselect_b32 s93, s11, s9")
    e("s_cselect_b32 s62, 448, 0")
    e("s_cmp_eq_u32 s60, 2")
    e("s_cselect_b32 s92, s92, s20")
    e("s_cselect_b32 s93, s93, s21")
    e(f"s_mov_b32 s94, {2048*448*2}")
    e(f"s_cselect_b32 s94, {448*448*2}, s94")
    e("s_cselect_b32 s62, s62, 0")
    e("s_and_b32 s93, s93, 0xffff")
    e("s_mov_b32 s95, 0x20000")
    e("s_add_u32 s62, s62, s59")
    e("s_mul_i32 s63, s59, 896")
    e(f"s_mul_i32 s11, s76, {64*3584}")
    e("s_add_u32 s11, s11, s72")
    queue(("W",0))
    for _ in range(2): dmaq.popleft()()
    pr = G.Prof(e, 0); pr.stamp()
    e("v_and_b32 v40, 15, v0")
    e("s_lshl_b32 s56, s53, 5")
    e("s_lshl_b32 s57, s55, 4")
    e("s_add_u32 s78, s56, s57")
    e("v_add_u32 v41, s78, v40")
    e("v_lshlrev_b32 v42, 1, v41")
    tp = [e("buffer_load_ushort v43, v42, s[40:43], 0 offen"),
          e("buffer_load_ushort v44, v42, s[44:47], 0 offen"),
          e("buffer_load_ushort v45, v42, s[68:71], 0 offen")]
    e("v_lshrrev_b32 v34, 3, v0")
    e("v_and_b32 v35, 7, v0")
    e("v_mul_u32_u24 v36, 896, v34")
    e("v_lshl_add_u32 v36, v35, 4, v36")
    RB = 192
    labrb = e.label("K1_NORB")
    e("s_cmp_eq_u32 s60, 0")
    e(f"s_cbranch_scc1 {labrb}")
    e.cond_begin()
    for k in range(7): e(f"buffer_load_dwordx4 v[{RB+4*k}:{RB+4*k+3}], v36, s[92:95], s63 offen offset:{128*k}")
    e.cond_end()
    e.raw(f"{labrb}:")
    def rowbatch_compute():
        lab = e.label("K1_NORC")
        e("s_cmp_eq_u32 s60, 0")
        e(f"s_cbranch_scc1 {lab}")
        e.cond_begin()
        e.raw(f"s_waitcnt vmcnt({min(63, e.vm_issued - vm_at_rb)})")
        e("s_mov_b32 s58, 0x3f803f80")
        e("v_mov_b32 v220, 0"); e("v_mov_b32 v221, 0"); e("v_mov_b32 v222, 0"); e("v_mov_b32 v223, 0")
        for k in range(28):
            e(f"v_dot2c_f32_bf16 v{220 + (k&1)}, s58, v{RB+k}")
            e(f"v_dot2c_f32_bf16 v{222 + (k&1)}, v{RB+k}, v{RB+k}")
        e("s_nop 2")
        e("v_add_f32 v220, v220, v221")
        e("v_add_f32 v221, v222, v223")
        for r_ in (220, 221):
            e(f"v_add_f32_dpp v{r_}, v{r_}, v{r_} quad_perm:[1,0,3,2] row_mask:0xf bank_mask:0xf")
            e(f"v_add_f32_dpp v{r_}, v{r_}, v{r_} quad_perm:[2,3,0,1] row_mask:0xf bank_mask:0xf")
            e(f"v_add_f32_dpp v{r_}, v{r_}, v{r_} row_half_mirror row_mask:0xf bank_mask:0xf")
        e("v_mov_b32 v224, v220")
        e(f"v_mul_f32 v220, {f32(1.0/448)}, v220")
        e(f"v_mul_f32 v221, {f32(1.0/448)}, v221")
        e("v_fma_f32 v221, -v220, v220, v221")
        e("v_max_f32 v221, 0, v221")
        e("v_cvt_pk_bf16_f32 v220, v220, v221")
        e("v_and_b32 v221, 0xffff0000, v220")
        e("v_lshlrev_b32 v220, 16, v220")
        e(f"v_add_f32 v221, {f32(1e-5)}, v221")
        e("v_cvt_pk_bf16_f32 v221, v221, v221")
        e("v_lshlrev_b32 v221, 16, v221")
        e("v_sqrt_f32 v221, v221")
        e("v_cvt_pk_bf16_f32 v221, v221, v221")
        e("v_lshlrev_b32 v221, 16, v221")
        e.cond_end()
        e.raw(f"{lab}:")
    def rowbatch_publish():
        lab = e.label("K1_NORP"); labx = e.label("K1_RPX")
        e("s_cmp_eq_u32 s60, 0")
        e(f"s_cbranch_scc1 {lab}")
        e.cond_begin()
        e("v_lshrrev_b32 v226, 3, v0")
        e("v_add_u32 v226, s62, v226")
        e("v_and_b32 v227, 7, v0")
        e("v_cmp_eq_u32 vcc, 0, v227")
        e("s_and_saveexec_b64 s[58:59], vcc")
        e("s_cmp_eq_u32 s60, 1")
        e(f"s_cbranch_scc1 {labx}")
        e("v_lshlrev_b32 v226, 3, v226")
        e("v_mov_b32 v228, v224"); e("v_mov_b32 v229, s98")
        e(f"s_mov_b32 s61, {WS_CSB}")
        e("buffer_store_dwordx2 v[228:229], v226, s[32:35], s61 offen sc1")
        e("s_mov_b64 exec, s[58:59]")
        e(f"s_branch {lab}")
        e.raw(f"{labx}:")
        e("v_lshlrev_b32 v226, 4, v226")
        e("v_mov_b32 v228, v220"); e("v_mov_b32 v229, s98"); e("v_mov_b32 v230, v221"); e("v_mov_b32 v231, s98")
        e(f"s_mov_b32 s61, {WS_STAT}")
        e("buffer_store_dwordx4 v[228:231], v226, s[32:35], s61 offen sc1")
        e("s_mov_b64 exec, s[58:59]")
        e.cond_end()
        e.raw(f"{lab}:")
    RBWAIT = [0]
    vm_at_rb = e.vm_issued
    def rot_entry(t):
        if ROT == 2 and t == 1:
            e("s_and_b32 s56, s51, 3"); e("s_lshl_b32 s56, s56, 1"); e("s_lshr_b32 s57, s51, 2"); e("s_add_u32 s56, s56, s57")
            e("s_cmp_ge_u32 s56, 6"); e("s_cselect_b32 s57, 6, 0"); e("s_sub_u32 s56, s56, s57")
            e("s_cmp_ge_u32 s56, 6"); e("s_cselect_b32 s57, 6, 0"); e("s_sub_u32 s56, s56, s57")
            e("s_add_u32 s76, s56, 1")
        elif ROT == 2:
            e("s_add_u32 s76, s76, 1"); e("s_cmp_eq_u32 s76, 7"); e("s_cselect_b32 s76, 1, s76")
        else:
            e("s_add_u32 s76, s76, 1")
            e("s_cmp_eq_u32 s76, 7")
            e("s_cselect_b32 s76, 0, s76")
        e(f"s_lshl_b32 s{4+t}, s76, 7")
        e(f"s_mul_i32 s{11+t}, s76, {64*3584}")
        e(f"s_add_u32 s{4+t}, s{4+t}, s66")
        e(f"s_add_u32 s{11+t}, s{11+t}, s72")
    for t in range(1, 7): rot_entry(t)
    if ZLATE:
        queue(("X",1),("W",1),("X",2),("Z",2),("W",2),("W",3))
        for _ in range(max(0, PRO_DMAS - 4)): dmaq.popleft()()
    else:
        queue(("X",1),("Z",1),("W",1),("X",2),("Z",2),("W",2),("W",3))
        for _ in range(max(0, PRO_DMAS - 5)): dmaq.popleft()()
    if PSTAMP: pr.stamp()
    nonce_cas(e, 120)
    def issue_for_tick(tk):
        l = []
        if tk >= 1:
            if tk + 2 < 7: l += [("X", tk+2), ("Z", tk+2)]
            if tk + 3 < 14: l += [("W", tk+3)]
            if ZLATE and tk == 2: l += [("ZC", 0), ("ZC", 1)]
        return l

    e("v_and_b32 v34, 31, v0")
    e("v_lshrrev_b32 v35, 4, v34")
    e("v_bfe_u32 v36, v34, 2, 1")
    e("v_lshl_add_u32 v35, v36, 1, v35")
    e("v_bfe_u32 v36, v34, 3, 1")
    e("v_lshlrev_b32 v35, 3, v35")
    e("v_lshl_add_u32 v35, v36, 2, v35")
    e("v_and_b32 v36, 3, v34")
    e("v_add_u32 v35, v35, v36")
    e("v_lshrrev_b32 v36, 5, v0")
    e(f"v_lshl_add_u32 v{VH}, v36, 5, v35")
    e(f"v_lshlrev_b32 v{VH}, 4, v{VH}")
    e("s_lshl_b32 s56, s54, 5")
    e("v_add_u32 v37, s56, v35")
    e(f"v_lshlrev_b32 v{AX}, 7, v37")
    e("v_bfe_u32 v38, v35, 1, 3")
    e("v_xor_b32 v38, v38, v36")
    e(f"v_lshl_add_u32 v{AX}, v38, 4, v{AX}")
    for kk in range(1, 4): e(f"v_xor_b32 v{AX+kk}, {kk<<5}, v{AX}")
    e("v_bfe_u32 v38, v0, 4, 1")
    e(f"v_lshlrev_b32 v{AZr}, 12, v38")
    e("s_lshl_b32 s56, s55, 4")
    e("v_and_b32 v40, 15, v0")
    e("v_add_u32 v39, s56, v40")
    e(f"v_lshl_add_u32 v{AZr}, v39, 7, v{AZr}")
    e("v_bfe_u32 v39, v40, 1, 3")
    e("v_xor_b32 v39, v39, v36")
    e(f"v_lshl_add_u32 v{AZr}, v39, 4, v{AZr}")
    e(f"v_add_u32 v{AZr}, {ZR}, v{AZr}")
    for kk in range(1, 4): e(f"v_xor_b32 v{AZr+kk}, {kk<<5}, v{AZr}")
    e(f"v_lshlrev_b32 v{AW0}, 13, v38")
    e("v_lshrrev_b32 v39, 2, v40")
    e("v_lshl_add_u32 v39, v36, 3, v39")
    e(f"v_lshl_add_u32 v{AW0}, v39, 7, v{AW0}")
    e("v_lshrrev_b32 v39, 3, v40")
    e("v_lshl_add_u32 v39, v38, 1, v39")
    e("s_lshl_b32 s56, s55, 1")
    e("v_xor_b32 v39, s56, v39")
    e(f"v_lshl_add_u32 v{AW0}, v39, 5, v{AW0}")
    e("v_and_b32 v39, 3, v40")
    e(f"v_lshl_add_u32 v{AW0}, v39, 3, v{AW0}")
    e(f"v_add_u32 v{AW0}, {WR}, v{AW0}")
    e(f"v_xor_b32 v{AW1}, 32, v{AW0}")
    e("s_lshl_b32 s56, s52, 2")
    e("s_add_u32 s56, s56, s54")
    e("s_mul_i32 s56, s56, 112")
    e("s_lshl_b32 s57, s53, 3")
    e("s_add_u32 s56, s56, s57")
    e("s_lshl_b32 s57, s55, 1")
    e("s_add_u32 s56, s56, s57")
    e("s_lshl_b32 s79, s56, 10")
    if WS_HF: e(f"s_add_u32 s79, s79, {WS_HF}")

    def params():
        e.wait(tp); yield
        e("s_bitcmp1_b32 s54, 0"); e("s_cselect_b64 s[40:41], -1, 0")
        e("s_bitcmp1_b32 s54, 1"); e("s_cselect_b64 s[42:43], -1, 0")
        e("s_mov_b32 s44, 0xffff0000"); e("s_mov_b32 s45, 0xffff0000")
        e("s_mov_b32 s46, 0"); e("s_mov_b32 s47, -1")
        e("v_lshlrev_b32 v43, 16, v43"); yield
        e("v_lshlrev_b32 v44, 16, v44"); yield
        e("v_lshlrev_b32 v45, 16, v45"); yield
        e(f"v_mul_f32 v45, {f32(LOG2E)}, v45"); yield
        e("v_exp_f32 v45, v45"); yield
        e("v_cvt_pk_bf16_f32 v45, v45, v45"); yield
        e("v_lshlrev_b32 v45, 16, v45"); yield
        e("v_mul_f32 v34, v45, v43"); yield
        e("v_mul_f32 v35, v45, v44"); yield
        e(f"v_mul_f32 v34, {f32(LOG2E)}, v34"); yield
        e("v_exp_f32 v34, v34"); yield
        e(f"v_mul_f32 v35, {f32(1.0/(2*3.141592653589793))}, v35"); yield
        e("v_fract_f32 v35, v35"); yield
        e("v_cos_f32 v36, v35"); yield
        e("v_sin_f32 v37, v35"); yield
        e(f"v_mul_f32 v{LR}, v34, v36"); yield
        e(f"v_mul_f32 v{LI}, v34, v37"); yield
        e(f"v_add_f32 v36, -1.0, v{LR}"); yield
        e("v_mul_f32 v38, v43, v43"); yield
        e("v_fmac_f32 v38, v44, v44"); yield
        e("v_rcp_f32 v38, v38"); yield
        e("v_mul_f32 v39, v36, v43"); yield
        e(f"v_fmac_f32 v39, v{LI}, v44"); yield
        e(f"v_mul_f32 v34, v{LI}, v43"); yield
        e("v_fma_f32 v34, -v36, v44, v34"); yield
        e("v_add_f32 v38, v38, v38"); yield
        e(f"v_mul_f32 v{CR}, v39, v38"); yield
        e(f"v_mul_f32 v{CI}, v34, v38"); yield
        yield from csq(e, 34, 35, LR, LI, 38)
        yield from csq(e, 36, 37, 34, 35, 38)
        yield from csq(e, L8R, L8I, 36, 37, 38)
        e(f"v_mov_b32 v{TR}, 1.0"); yield
        e(f"v_mov_b32 v{TI}, 0"); yield
        e(f"v_mov_b32 v34, v{L8R}"); yield
        e(f"v_mov_b32 v35, v{L8I}"); yield
        for b, m in enumerate(("s[44:45]", "s[46:47]", "s[40:41]", "s[42:43]")):
            yield from cmul(e, 36, 37, TR, TI, 34, 35, 38)
            e(f"v_cndmask_b32 v{TR}, v{TR}, v36, {m}"); yield
            e(f"v_cndmask_b32 v{TI}, v{TI}, v37, {m}"); yield
            e("v_mov_b32 v41, v34"); yield
            e("v_mov_b32 v42, v35"); yield
            yield from csq(e, 34, 35, 41, 42, 38)
        e(f"v_mov_b32 v{L128R}, v34"); yield
        e(f"v_mov_b32 v{L128I}, v35"); yield

    def zbuf(ks): return 96 + (ks & 1)*4
    def wbufA(ks, tl): return 104 + (ks & 1)*8 + tl*4
    def wbufB(ks, tl): return FB + (ks & 1)*8 + tl*4
    first = {}
    def mfma(acc, a, b):
        c = f"v[{acc}:{acc+15}]" if first.get(acc) else "0"
        first[acc] = True
        e(f"v_mfma_f32_32x32x16_bf16 v[{acc}:{acc+15}], v[{a}:{a+3}], v[{b}:{b+3}], {c}")
    rd_tok = {}
    def read_x(ks):
        kk = ks & 3; kc = ks >> 2
        rd_tok[("x", ks)] = [e(f"ds_read_b128 v[{XF+4*ks}:{XF+4*ks+3}], v{AX+kk} offset:{(kc%3)*16384}")]
    def read_z(ks):
        kk = ks & 3; kc = ks >> 2
        rd_tok[("z", ks)] = [e(f"ds_read_b128 v[{zbuf(ks)}:{zbuf(ks)+3}], v{AZr+kk} offset:{(kc%3)*8192}")]
    def read_w(ph, ks, tl, half):
        kk = ks & 3; w = (ks >> 2) + (0 if ph == "A" else 7)
        b = wbufA(ks, tl) if ph == "A" else wbufB(ks, tl)
        ad = AW0 if tl == 0 else AW1
        off = (w % 4)*16384 + kk*2048
        t = e(f"ds_read_b64_tr_b16 v[{b+2*half}:{b+2*half+1}], v{ad} offset:{off+512*half}")
        rd_tok.setdefault((ph, ks, tl), []).append(t)
    steps = [("A", ks) for ks in range(28)] + [("B", ks) for ks in range(28)]
    def tick_idx(ph, ks): return (ks >> 2) + (0 if ph == "A" else 7)
    def need_ents(tk):
        if tk >= 7: return [("W",tk)]
        if not ZLATE: return [("X",tk),("Z",tk),("W",tk)]
        l = [("X",tk),("W",tk)]
        if tk >= 2: l.append(("Z",tk))
        if tk >= 5: l.append(("ZC", tk - 5))
        return l
    nbar = [0]
    def enter_tick(tk):
        while any(x not in ent_tok for x in need_ents(tk)): dmaq.popleft()()
        e.wait([ent_tok[x] for x in need_ents(tk)])
        if tk == 1: nonce_publish(e, 120, M_N)
        e.wait_all(vm=False)
        e("s_barrier")
        nbar[0] += 1
        if tk == 1: nonce_read(e, 121, M_N)
        queue(*issue_for_tick(tk))

    def main_stream():
        sp = env("SETPRIO", 0)
        if sp:
            lab = e.label("K1_SP")
            e("s_cmp_lt_u32 s48, 4" if sp == 1 else "s_cmp_ge_u32 s48, 4")
            e(f"s_cbranch_scc1 {lab}")
            e("s_setprio 1")
            e.raw(f"{lab}:")
        if not RB_LATE: rowbatch_compute()
        if PSTAMP: pr.stamp()
        enter_tick(0)
        if PSTAMP: pr.stamp()
        def hasZ(ks): return (not ZLATE) or ks >= 8
        def hasC(ks): return ZLATE and ks >= 20
        def zcbuf(ks): return 248 + (ks & 1)*4
        def read_zc(ks):
            kc = ks - 20; kk = kc & 3
            e(f"v_add_u32 v46, {M_TR - ZR + (kc >> 2)*8192}, v{AZr+kk}")
            rd_tok[("zc", ks)] = [e(f"ds_read_b128 v[{zcbuf(ks)}:{zcbuf(ks)+3}], v46")]
        read_x(0); read_w("A", 0, 0, 0); read_w("A", 0, 0, 1)
        if hasZ(0): read_z(0)
        read_w("A", 0, 1, 0); read_w("A", 0, 1, 1)
        for n, (ph, ks) in enumerate(steps):
            nx = steps[n+1] if n + 1 < len(steps) else None
            x = XF + 4*ks
            if ph == "A":
                ops = [(AG[0], wbufA(ks,0), x, [("x", ks), (ph, ks, 0)])]
                if hasZ(ks): ops.append((AZ, x, zbuf(ks), [("z", ks)]))
                ops.append((AG[1], wbufA(ks,1), x, [(ph, ks, 1)]))
                if hasC(ks): ops.append((AZ, XF + 4*(ks - 20), zcbuf(ks), [("zc", ks)]))
            else:
                ops = [(AG[2], wbufB(ks,0), x, [(ph, ks, 0)]), (AG[3], wbufB(ks,1), x, [(ph, ks, 1)])]
            groups = [[] for _ in ops]
            if nx is not None:
                ph2, ks2 = nx
                if ph2 == "A":
                    rl = [lambda: read_x(ks2), lambda: read_w("A", ks2, 0, 0), lambda: read_w("A", ks2, 0, 1)]
                    if hasZ(ks2): rl.append(lambda: read_z(ks2))
                    rl += [lambda: read_w("A", ks2, 1, 0), lambda: read_w("A", ks2, 1, 1)]
                    if hasC(ks2): rl.append(lambda: read_zc(ks2))
                else:
                    rl = [lambda: read_w("B", ks2, 0, 0), lambda: read_w("B", ks2, 0, 1), lambda: read_w("B", ks2, 1, 0), lambda: read_w("B", ks2, 1, 1)]
                ns = len(ops)
                if ph == "A" and ph2 == "B": ns_use = 2
                else: ns_use = ns
                per = -(-len(rl) // ns_use)
                for k, f in enumerate(rl): groups[min(k // per, ns_use - 1)].append(f)
            for si, (acc, a, b, keys) in enumerate(ops):
                e.wait([rd_tok[k] for k in keys])
                mfma(acc, a, b)
                if nx is not None and si == 0 and (nx[1] & 3) == 0: enter_tick(tick_idx(nx[0], nx[1]))
                for f in groups[si]: f()
                dma_ok = (si == len(ops) - 1)
                did = False
                if (dma_ok or (len(dmaq) > DMA_HURRY)) and dmaq:
                    dmaq.popleft()(); did = True
                yield (ph, ks, si, did)

    aux = {}
    def tagcheck(regs):
        e(f"v_xor_b32 v44, s98, v{regs[0]}")
        for r in regs[1:]:
            e(f"v_xor_b32 v45, s98, v{r}")
            e("v_or_b32 v44, v44, v45")
        e("v_cmp_ne_u32 vcc, 0, v44")
        e("s_cmp_eq_u64 vcc, 0")
    AXW1, AXW2 = 3, 4
    def only_wave(w, name):
        lab = e.label(name)
        e(f"s_cmp_lg_u32 s48, {w}")
        e(f"s_cbranch_scc1 {lab}")
        e.cond_begin()
        return lab
    def end_only(lab):
        e.cond_end()
        e.raw(f"{lab}:")
    def aux1_issue_raw():
        e("s_lshl_b32 s61, s52, 11")
        e(f"s_add_u32 s61, s61, {WS_STAT}")
        e("v_lshlrev_b32 v120, 4, v0")
        e("buffer_load_dwordx4 v[36:39], v120, s[32:35], s61 offen sc1")
        e("buffer_load_dwordx4 v[40:43], v120, s[32:35], s61 offen offset:1024 sc1")
        e("v_lshrrev_b32 v121, 5, v0")
        e("v_mul_u32_u24 v121, 448, v121")
        e("v_and_b32 v122, 31, v0")
        e("v_add_u32 v121, v121, v122")
        e("s_lshl_b32 s61, s53, 5")
        e("v_add_u32 v121, s61, v121")
        e("v_lshlrev_b32 v121, 3, v121")
        e(f"s_mov_b32 s61, {WS_CSB}")
        e("buffer_load_dwordx2 v[124:125], v121, s[32:35], s61 offen sc1")
    def aux1_issue():
        lab = only_wave(AXW1, "K1_A1I")
        aux1_issue_raw()
        end_only(lab)
        aux["a1_vm"] = e.vm_issued
    def aux1_finish():
        lab = only_wave(AXW1, "K1_A1F")
        e.raw(f"s_waitcnt vmcnt({min(63, e.vm_issued - aux['a1_vm'])})")
        tagged_retry(e, aux1_issue_raw, lambda: tagcheck([37, 39, 41, 43, 125]), "K1_A1", cnt="s63")
        e("v_rcp_f32 v37, v38")
        e("v_rcp_f32 v41, v42")
        e("v_lshlrev_b32 v120, 3, v0")
        e(f"v_add_u32 v120, {M_ST}, v120")
        e("ds_write_b64 v120, v[36:37]")
        e("ds_write_b64 v120, v[40:41] offset:512")
        e("v_lshlrev_b32 v120, 2, v0")
        e(f"v_add_u32 v120, {M_SD}, v120")
        e("ds_write_b32 v120, v38")
        e("ds_write_b32 v120, v42 offset:256")
        e(f"ds_write_b32 v120, v124 offset:{M_CB - M_SD}")
        e.raw("s_waitcnt lgkmcnt(0)")
        end_only(lab)
    def aux1_read():
        e(f"v_and_b32 v34, 0x1f0, v{VH}"); yield
        e("v_lshrrev_b32 v34, 1, v34"); yield
        e("s_lshl_b32 s56, s54, 8")
        e(f"s_add_u32 s56, s56, {M_ST}")
        e("v_add_u32 v35, s56, v34"); yield
        t1 = e("ds_read_b64 v[36:37], v35"); yield
        e("v_lshrrev_b32 v34, 1, v34"); yield
        e("s_lshl_b32 s56, s54, 7")
        e(f"s_add_u32 s56, s56, {M_SD}")
        e("v_add_u32 v34, s56, v34"); yield
        t2 = e(f"ds_read_b32 v{SD}, v34"); yield
        e("v_and_b32 v34, 15, v0"); yield
        e("s_lshl_b32 s56, s55, 6")
        e(f"s_add_u32 s56, s56, {M_CB}")
        e("v_lshlrev_b32 v34, 2, v34"); yield
        e("v_add_u32 v34, s56, v34"); yield
        t3 = [e(f"ds_read_b32 v{CSR}, v34"), e(f"ds_read_b32 v{CSI}, v34 offset:128")]; yield
        e("v_lshrrev_b32 v34, 4, v0"); yield
        e("s_lshl_b32 s56, s54, 8")
        e(f"s_add_u32 s56, s56, {M_ST}")
        e("v_lshlrev_b32 v34, 6, v34"); yield
        e("v_add_u32 v34, s56, v34"); yield
        e.wait(t1); yield
        e(f"v_mov_b32 v{M_}, v36"); yield
        e(f"v_mul_f32 v{NLR}, {f32(-LOG2E)}, v37"); yield
        aux["st"] = [e("ds_read_b128 v[36:39], v34"), e("ds_read_b128 v[40:43], v34 offset:16")]
        aux["lane"] = [t2, t3]
        yield
    def aux2_issue_raw():
        e("s_lshl_b32 s61, s53, 10")
        e(f"s_add_u32 s61, s61, {WS_CSW}")
        e("v_lshlrev_b32 v136, 4, v0")
        e("buffer_load_dwordx4 v[128:131], v136, s[32:35], s61 offen sc1")
        e(f"s_add_u32 s61, s61, {1792*8}")
        e("buffer_load_dwordx4 v[132:135], v136, s[32:35], s61 offen sc1")
    def aux2_issue():
        lab = only_wave(AXW2, "K1_A2I")
        aux2_issue_raw()
        end_only(lab)
        aux["a2_vm"] = e.vm_issued
    def tagcheck2(regs):
        e(f"v_xor_b32 v137, s98, v{regs[0]}")
        for r in regs[1:]:
            e(f"v_xor_b32 v138, s98, v{r}")
            e("v_or_b32 v137, v137, v138")
        e("v_cmp_ne_u32 vcc, 0, v137")
        e("s_cmp_eq_u64 vcc, 0")
    def aux2_finish():
        lab = only_wave(AXW2, "K1_A2F")
        e.raw(f"s_waitcnt vmcnt({min(63, e.vm_issued - aux['a2_vm'])})")
        tagged_retry(e, aux2_issue_raw, lambda: tagcheck2([129, 131, 133, 135]), "K1_A2", cnt="s63")
        e("v_mov_b32 v129, v130")
        e("v_mov_b32 v133, v134")
        e("v_lshlrev_b32 v136, 3, v0")
        e(f"v_add_u32 v136, {M_CS}, v136")
        e("ds_write_b64 v136, v[128:129]")
        e("ds_write_b64 v136, v[132:133] offset:512")
        e.raw("s_waitcnt lgkmcnt(0)")
        end_only(lab)
    def cs_base():
        e("v_lshrrev_b32 v46, 5, v0"); yield
        e("v_lshlrev_b32 v46, 4, v46"); yield
        e("s_lshl_b32 s56, s55, 7")
        e(f"s_add_u32 s56, s56, {M_CS}")
        e("v_add_u32 v46, s56, v46"); yield
    def cs_reads(tl, CSB):
        o = (tl >> 1)*256 + (tl & 1)*64
        aux[("cs", tl)] = [e(f"ds_read_b128 v[{CSB}:{CSB+3}], v46 offset:{o}"),
                           e(f"ds_read_b128 v[{CSB+4}:{CSB+7}], v46 offset:{o+32}"),
                           e(f"ds_read_b128 v[{CSB+8}:{CSB+11}], v46 offset:{o+512}"),
                           e(f"ds_read_b128 v[{CSB+12}:{CSB+15}], v46 offset:{o+544}")]
        yield

    def z_pass1():
        e.wait(aux["lane"]); yield
        for i in range(8):
            e(f"v_permlane16_swap_b32 v{AZ+i}, v{AZ+8+i}"); yield
        st = list(aux["st"])
        for g in range(4):
            b = 36 + (g & 1)*4
            e.wait(st[g]); yield
            for u in range(2):
                i = 2*g + u; mm = b + 2*u
                e(f"v_fma_f32 v{AZ+i}, -v{mm}, v{CSR}, v{AZ+i}"); yield
                e(f"v_fma_f32 v{AZ+8+i}, -v{mm}, v{CSI}, v{AZ+8+i}"); yield
            for u in range(2):
                i = 2*g + u; rr = b + 2*u + 1
                e(f"v_mul_f32 v{AZ+i}, v{AZ+i}, v{rr}"); yield
                e(f"v_mul_f32 v{AZ+8+i}, v{AZ+8+i}, v{rr}"); yield
            if g + 2 < 4:
                st.append(e(f"ds_read_b128 v[{b}:{b+3}], v34 offset:{(g+2)*16}")); yield
        pr_, pi_ = AZ, AZ + 8
        for i in range(1, 8):
            d = (44, 45) if (i & 1) else (ER, EI)
            yield from cfma_to(e, d[0], d[1], pr_, pi_, LR, LI, AZ+i, AZ+8+i)
            pr_, pi_ = d
        e(f"v_mul_f32 v36, v{CI}, v45"); yield
        e(f"v_mul_f32 v37, v{CI}, v44"); yield
        e(f"v_fma_f32 v{ER}, v{CR}, v44, -v36"); yield
        e(f"v_fma_f32 v{EI}, v{CR}, v45, v37"); yield
    def hier1():
        e(f"v_mov_b32 v1, v{ER}"); yield
        e(f"v_mov_b32 v2, v{ER}"); yield
        e(f"v_mov_b32 v3, v{EI}"); yield
        e(f"v_mov_b32 v4, v{EI}"); yield
        yield from csq(e, 7, 8, L8R, L8I, 34)
        e("v_permlane16_swap_b32 v1, v2"); yield
        e("v_permlane16_swap_b32 v3, v4"); yield
        yield from cfma_to(e, 5, 6, 1, 3, L8R, L8I, 2, 4)
        e("v_mov_b32 v28, v5"); yield
        e("v_mov_b32 v36, v5"); yield
        e("v_mov_b32 v29, v6"); yield
        e("v_mov_b32 v34, v6"); yield
        e("v_and_b32 v35, 15, v0"); yield
        e("s_lshl_b32 s56, s55, 4")
        e("v_add_u32 v35, s56, v35"); yield
        e("v_lshlrev_b32 v35, 3, v35"); yield
        e("v_permlane32_swap_b32 v28, v36"); yield
        e("v_permlane32_swap_b32 v29, v34"); yield
        e(f"v_add_u32 v35, {M_SEG}, v35"); yield
        yield from cfma_to(e, 5, 6, 28, 29, 7, 8, 36, 34)
        e("s_lshl_b32 s56, s54, 8")
        e("v_add_u32 v34, s56, v35"); yield
        e("v_mov_b32 v44, v5"); yield
        e("v_mov_b32 v45, v6"); yield
        e("ds_write_b64 v34, v[44:45]"); yield
    def hier2():
        tk = [e(f"ds_read_b64 v[{36+2*u}:{37+2*u}], v35 offset:{u*256}") for u in range(3)]
        yield
        yield from csq(e, 42, 43, 7, 8, 44)
        e.wait(tk); yield
        yield from cfma_to(e, 44, 45, 36, 37, 42, 43, 38, 39)
        yield from cfma_to(e, 2, 4, 44, 45, 42, 43, 40, 41)
        e("v_cndmask_b32 v2, v44, v2, s[40:41]"); yield
        e("v_cndmask_b32 v4, v45, v4, s[40:41]"); yield
        e("v_cndmask_b32 v36, 0, v36, s[40:41]"); yield
        e("v_cndmask_b32 v37, 0, v37, s[40:41]"); yield
        e("v_cndmask_b32 v36, v36, v2, s[42:43]"); yield
        e("v_cndmask_b32 v37, v37, v4, s[42:43]"); yield
        lab = e.label("K1_NOPUB")
        e("s_cmp_lg_u32 s54, 3")
        e(f"s_cbranch_scc1 {lab}")
        e.cond_begin()
        for _ in cfma_to(e, 38, 40, 36, 37, 42, 43, 5, 6): pass
        e("v_mov_b32 v39, s98"); e("v_mov_b32 v41, s98")
        e("v_and_b32 v34, 15, v0")
        e("v_add_u32 v34, s78, v34")
        e("v_lshlrev_b32 v34, 4, v34")
        e(f"s_mul_i32 s56, s52, {448*16}")
        e(f"s_add_u32 s56, s56, {WS_E}")
        e("s_mov_b64 s[58:59], exec")
        e("s_mov_b64 exec, 0xffff")
        e("buffer_store_dwordx4 v[38:41], v34, s[32:35], s56 offen sc1")
        e("s_mov_b64 exec, s[58:59]")
        e.cond_end()
        e.raw(f"{lab}:")
        yield
        yield from cfma_to(e, 38, 39, 36, 37, 7, 8, 28, 29)
        e("v_cndmask_b32 v36, v36, v38, s[46:47]"); yield
        e("v_cndmask_b32 v37, v37, v39, s[46:47]"); yield
        yield from cfma_to(e, 38, 39, 36, 37, L8R, L8I, 1, 3)
        e(f"v_cndmask_b32 v{PR}, v36, v38, s[44:45]"); yield
        e(f"v_cndmask_b32 v{PI}, v37, v39, s[44:45]"); yield
    def zscale():
        for i in range(0, 8, 2):
            for u in range(2):
                e(f"v_mul_f32 v{36+2*u}, v{CI}, v{AZ+8+i+u}"); yield
                e(f"v_mul_f32 v{37+2*u}, v{CI}, v{AZ+i+u}"); yield
            for u in range(2):
                e(f"v_fma_f32 v{AZ+i+u}, v{CR}, v{AZ+i+u}, -v{36+2*u}"); yield
                e(f"v_fma_f32 v{AZ+8+i+u}, v{CR}, v{AZ+8+i+u}, v{37+2*u}"); yield
    def gu_math(acc, CSB):
        for i in range(8):
            e(f"v_fma_f32 v{acc+i}, -v{M_}, v{CSB+i}, v{acc+i}"); yield
        for i in range(8):
            e(f"v_mul_f32 v{acc+i}, v{acc+i}, v{NLR}"); yield
        for i in range(8):
            e(f"v_exp_f32 v{acc+i}, v{acc+i}"); yield
            e(f"v_fma_f32 v{acc+8+i}, -v{M_}, v{CSB+8+i}, v{acc+8+i}"); yield
        for i in range(8):
            e(f"v_fma_f32 v{acc+i}, v{acc+i}, v{SD}, v{SD}"); yield
        for i in range(8):
            e(f"v_rcp_f32 v{acc+i}, v{acc+i}"); yield
        for i in range(8):
            e(f"v_mul_f32 v{acc+i}, v{acc+i}, v{acc+8+i}"); yield
        for p in range(4):
            e(f"v_cvt_pk_bf16_f32 v{acc+8+p}, v{acc+2*p}, v{acc+2*p+1}"); yield
    def gu_epi(tl, CSB):
        acc = AG[tl]
        e.wait(aux[("cs", tl)]); yield
        yield from gu_math(acc, CSB)
        e(f"s_add_u32 s56, s79, {((tl>>1)*4 + (tl&1))*1024}")
        e(f"buffer_store_dwordx4 v[{acc+8}:{acc+11}], v{VH}, s[32:35], s56 offen{STF}"); yield

    ebq = deque()
    def early_B_setup():
        e(f"v_lshrrev_b32 v{EBV}, 3, v0")
        e("s_lshl_b32 s57, s48, 3")
        e(f"v_add_u32 v{EBV}, s57, v{EBV}")
        e(f"v_mul_u32_u24 v{EBV}, 896, v{EBV}")
        e("v_and_b32 v11, 7, v0")
        e("v_bfe_u32 v12, v0, 4, 1")
        e("v_lshlrev_b32 v12, 2, v12")
        e("v_xor_b32 v11, v11, v12")
        e(f"v_lshl_add_u32 v{EBV}, v11, 4, v{EBV}")
        if os.environ.get("NOPF"):
            e("s_load_dwordx2 s[92:93], s[0:1], 96"); e.raw("s_waitcnt lgkmcnt(0)"); e.smem_out = False; e.lg_done = e.lg_issued
            e("s_and_b32 s93, s93, 0xffff")
        else:
            e("s_mov_b32 s92, s86"); e("s_and_b32 s93, s87, 0xffff")
        e(f"s_mov_b32 s94, {1792*448*2}"); e("s_mov_b32 s95, 0x20000")
        e("s_cmp_ge_u32 s53, 7")
        e("s_cselect_b32 s57, 7, 0")
        e("s_sub_u32 s57, s53, s57")
        e("s_and_b32 s70, s51, 3")
        e("s_mul_i32 s70, s70, 7")
        e("s_lshl_b32 s71, s57, 2")
        e("s_add_u32 s70, s70, s71")
        e("s_cmp_ge_u32 s70, 28")
        e("s_cselect_b32 s71, 28, 0")
        e("s_sub_u32 s70, s70, s71")
        e("s_lshl_b32 s71, s57, 7")
        e("s_lshl_b32 s69, s48, 10")
    def early_B_queue(t0, t1):
        def mk(t):
            def f():
                e(f"s_add_u32 m0, s69, {t*8192}")
                e(f"s_mul_i32 s68, s70, {64*896}")
                e("s_add_u32 s68, s68, s71")
                e(f"buffer_load_dwordx4 v{EBV}, s[92:95], s68 offen lds")
                e("s_add_u32 s70, s70, 1"); e("s_cmp_eq_u32 s70, 28"); e("s_cselect_b32 s70, 0, s70")
            return f
        for t in range(t0, t1): ebq.append(mk(t))
    def drain_eb(gen, every=18):
        k = 0
        for _ in gen:
            k += 1
            if k % every == 0 and ebq: ebq.popleft()()
    M_PF = 162304
    def k2_touch(k, slot):
        PFT = 139 if slot < 18 else 160
        assert slot >= 6
        lab = e.label("K1_PF")
        e(f"s_cmp_lg_u32 s48, {k & 7}")
        e(f"s_cbranch_scc1 {lab}")
        e.cond_begin()
        if k < 7:
            e("s_mul_i32 s61, s51, 448"); e(f"s_add_u32 s61, s61, {64*k}"); base = "s[86:87]"; lim = 12543
        elif k < 9:
            e("s_mul_i32 s61, s51, 112"); e(f"s_add_u32 s61, s61, {64*(k-7)}"); base = "s[88:89]"; lim = 3135
        else:
            e("s_mul_i32 s61, s51, 112"); e(f"s_add_u32 s61, s61, {64*(k-9)}"); base = "s[90:91]"; lim = 3135
        e(f"v_add_u32 v{PFT}, s61, v0")
        e(f"v_min_u32 v{PFT}, {lim}, v{PFT}")
        e(f"s_mov_b32 m0, {M_PF}")
        e(f"v_lshlrev_b32 v{PFT}, 7, v{PFT}")
        e(f"global_load_lds_dword v{PFT}, {base}")
        e.cond_end()
        e.raw(f"{lab}:")
    EL = 160
    def e_issue_raw():
        e("v_lshrrev_b32 v180, 4, v0")
        e("v_and_b32 v181, 15, v0")
        e("v_add_u32 v181, s78, v181")
        e("v_lshlrev_b32 v181, 4, v181")
        e("s_sub_u32 s63, s52, 1")
        e(f"s_mov_b32 s61, {WS_E}")
        for m in range(4):
            e(f"v_add_u32 v{176+m}, {4*m}, v180")
            e(f"v_min_u32 v{176+m}, s63, v{176+m}")
            e(f"v_mul_u32_u24 v{176+m}, {448*16}, v{176+m}")
            e(f"v_add_u32 v{176+m}, v{176+m}, v181")
            e(f"buffer_load_dwordx4 v[{EL+4*m}:{EL+4*m+3}], v{176+m}, s[32:35], s61 offen sc1")
    def e_issue():
        lab = e.label("K1_EI")
        e("s_cmp_eq_u32 s52, 0")
        e(f"s_cbranch_scc1 {lab}")
        e.cond_begin(); e_issue_raw(); e.cond_end()
        e.raw(f"{lab}:")
    def e_consts():
        yield from csq(e, 182, 183, L128R, L128I, 188)
        yield from cmul(e, 184, 185, 182, 183, L128R, L128I, 188)
        yield from csq(e, 186, 187, 182, 183, 188)
        e("v_lshrrev_b32 v190, 4, v0"); yield
        e("s_sub_u32 s63, s52, 1")
        e("v_sub_u32 v190, s63, v190"); yield
        e("v_and_b32 v191, 3, v190"); yield
        e("v_ashrrev_i32 v190, 2, v190"); yield
        e("v_mov_b32 v192, 1.0"); yield
        e("v_mov_b32 v193, 0"); yield
        for k, (rr, ii) in enumerate(((L128R, L128I), (182, 183), (184, 185))):
            e(f"v_cmp_eq_u32 vcc, {k+1}, v191"); yield
            e(f"v_cndmask_b32 v192, v192, v{rr}, vcc"); yield
            e(f"v_cndmask_b32 v193, v193, v{ii}, vcc"); yield
    def e_check(nafter):
        skip = e.label("K1_ESK"); ok = e.label("K1_EOK"); chk = e.label("K1_ECK")
        e("s_cmp_eq_u32 s52, 0")
        e(f"s_cbranch_scc1 {skip}")
        e.cond_begin()
        e.raw(f"s_waitcnt vmcnt({nafter})")
        e("s_mov_b32 s62, 0")
        e.raw(f"{chk}:")
        e(f"v_xor_b32 v44, s98, v{EL+1}")
        for r in (EL+3, EL+5, EL+7, EL+9, EL+11, EL+13, EL+15):
            e(f"v_xor_b32 v45, s98, v{r}")
            e("v_or_b32 v44, v44, v45")
        e("v_cmp_ne_u32 vcc, 0, v44")
        e("s_cmp_eq_u64 vcc, 0")
        e(f"s_cbranch_scc1 {ok}")
        e("s_add_u32 s62, s62, 1")
        e("s_cmp_ge_u32 s62, 100000")
        e(f"s_cbranch_scc1 {ok}")
        e_issue_raw()
        e.raw("s_waitcnt vmcnt(0)")
        e(f"s_branch {chk}")
        e.raw(f"{ok}:")
        e.cond_end()
        e.raw(f"{skip}:")
    def carry_and_pass2():
        lab0 = e.label("K1_NOCARRY")
        e("v_mov_b32 v44, 0"); e("v_mov_b32 v45, 0")
        e("s_cmp_eq_u32 s52, 0")
        e(f"s_cbranch_scc1 {lab0}")
        for m in range(4):
            er, ei = EL+4*m, EL+4*m+2
            e(f"v_cmp_le_i32 vcc, {m}, v190")
            e(f"v_fma_f32 v{er}, v186, v44, v{er}")
            e(f"v_fma_f32 v{ei}, v186, v45, v{ei}")
            e(f"v_fma_f32 v{er}, -v187, v45, v{er}")
            e(f"v_fma_f32 v{ei}, v187, v44, v{ei}")
            e(f"v_cndmask_b32 v44, v44, v{er}, vcc")
            e(f"v_cndmask_b32 v45, v45, v{ei}, vcc")
        e("v_mul_f32 v40, v193, v45")
        e("v_mul_f32 v41, v193, v44")
        e("v_fma_f32 v44, v192, v44, -v40")
        e("v_fma_f32 v45, v192, v45, v41")
        e("v_mov_b32 v40, v44"); e("v_mov_b32 v41, v45")
        e("v_permlane16_swap_b32 v44, v40"); e("v_permlane16_swap_b32 v45, v41")
        e("v_add_f32 v44, v44, v40"); e("v_add_f32 v45, v45, v41")
        e("v_mov_b32 v40, v44"); e("v_mov_b32 v41, v45")
        e("v_permlane32_swap_b32 v44, v40"); e("v_permlane32_swap_b32 v45, v41")
        e("v_add_f32 v44, v44, v40"); e("v_add_f32 v45, v45, v41")
        e.raw(f"{lab0}:")
        e(f"v_fma_f32 v{PR}, v{TR}, v44, v{PR}")
        e(f"v_fma_f32 v{PI}, v{TR}, v45, v{PI}")
        e(f"v_fma_f32 v{PR}, -v{TI}, v45, v{PR}")
        e(f"v_fma_f32 v{PI}, v{TI}, v44, v{PI}")
        pr_, pi_ = PR, PI
        for i in range(8):
            zr, zi = AZ + i, AZ + 8 + i
            e(f"v_fma_f32 v{zr}, v{LR}, v{pr_}, v{zr}")
            e(f"v_fma_f32 v{zi}, v{LR}, v{pi_}, v{zi}")
            e(f"v_fma_f32 v{zr}, -v{LI}, v{pi_}, v{zr}")
            e(f"v_fma_f32 v{zi}, v{LI}, v{pr_}, v{zi}")
            pr_, pi_ = zr, zi
        for p in range(4):
            e(f"v_cvt_pk_bf16_f32 v{36+p}, v{AZ+2*p}, v{AZ+2*p+1}")
            e(f"v_cvt_pk_bf16_f32 v{40+p}, -v{AZ+8+2*p}, -v{AZ+8+2*p+1}")
        e("ds_write_b128 v1, v[36:39]")
        e("ds_write_b128 v1, v[40:43] offset:1024")
        e.wait_all(vm=False)
        tk = [e("ds_read_b64_tr_b16 v[36:37], v2"), e("ds_read_b64_tr_b16 v[38:39], v2 offset:256"),
              e("ds_read_b64_tr_b16 v[40:41], v2 offset:1024"), e("ds_read_b64_tr_b16 v[42:43], v2 offset:1280")]
        e.wait(tk)
        e(f"buffer_store_dwordx4 v[36:39], v3, s[32:35], s76 offen{STF}")
        e("s_add_u32 s76, s76, 4096")
        e(f"buffer_store_dwordx4 v[40:43], v3, s[32:35], s76 offen{STF}")
    def tail_addr():
        e("s_lshl_b32 s56, s48, 11")
        e(f"s_add_u32 s56, s56, {M_TR}")
        e("v_and_b32 v1, 15, v0"); yield
        e("v_lshlrev_b32 v1, 6, v1"); yield
        e("v_lshrrev_b32 v2, 4, v0"); yield
        e("v_lshl_add_u32 v1, v2, 4, v1"); yield
        e("v_add_u32 v1, s56, v1"); yield
        e("v_lshrrev_b32 v2, 5, v0"); yield
        e("v_bfe_u32 v3, v0, 2, 2"); yield
        e("v_lshl_add_u32 v2, v2, 3, v3"); yield
        e("v_lshlrev_b32 v2, 6, v2"); yield
        e("v_bfe_u32 v3, v0, 4, 1"); yield
        e("v_lshl_add_u32 v2, v3, 5, v2"); yield
        e("v_and_b32 v3, 3, v0"); yield
        e("v_lshl_add_u32 v2, v3, 3, v2"); yield
        e("v_add_u32 v2, s56, v2"); yield
        e("v_lshlrev_b32 v3, 4, v0"); yield
        e("s_lshl_b32 s56, s53, 1")
        e("s_add_u32 s56, s56, s55")
        e("s_lshr_b32 s57, s56, 2")
        e("s_lshl_b32 s57, s57, 3")
        e("s_and_b32 s56, s56, 3")
        e("s_add_u32 s56, s56, s57")
        e("s_lshl_b32 s57, s52, 2")
        e("s_add_u32 s57, s57, s54")
        e("s_mul_i32 s57, s57, 56")
        e("s_add_u32 s56, s56, s57")
        e("s_lshl_b32 s56, s56, 10")
        e(f"s_add_u32 s76, s56, {WS_hF}")
        yield

    def cost(i):
        if i.cls == "valu": return 2.0 if i.op in TRANS else 1.0
        if i.cls in ("ds", "vmem"): return 0.5
        return 0.1
    class Fill:
        def __init__(self): self.q = []; self.cur = None; self.barrier_at = None
        def add(self, *items): self.q += list(items)
        def run(self, budget, tick):
            spent = 0.0
            while spent < budget:
                if self.cur is None:
                    if not self.q: return
                    it = self.q[0]
                    if it == "barrier":
                        if self.barrier_at is None: self.barrier_at = tick
                        if tick <= self.barrier_at: return
                        self.barrier_at = None; self.q.pop(0); continue
                    if it == "aux2gate":
                        if "a2_tick" not in aux or tick <= aux["a2_tick"]: return
                        self.q.pop(0); continue
                    if it == "step17":
                        if tick < 13: return
                        self.q.pop(0); continue
                    self.q.pop(0); self.cur = it() if callable(it) else it
                n0 = len(e.ins)
                try: next(self.cur)
                except StopIteration: self.cur = None
                spent += sum(cost(i) for i in e.ins[n0:])
        def flush(self):
            while self.cur is not None or self.q:
                if self.cur is None:
                    it = self.q.pop(0)
                    if it == "step17": continue
                    if it == "barrier" or it == "aux2gate":
                        e.wait_all(vm=False); e("s_barrier"); self.barrier_at = None
                        continue
                    self.cur = it() if callable(it) else it
                for _ in self.cur: pass
                self.cur = None
    F = Fill()
    F.add(params)
    slot = {"A": 0, "B": 0}
    last = None
    for (ph, ks, si, did) in main_stream():
        if (ph, ks) != last and (ph, ks) in STAMPS: pr.stamp()
        last = (ph, ks)
        n = slot[ph]; slot[ph] += 1
        tk = nbar[0]
        if NOEPI:
            if ph == "A" and not did: F.run(BUDGET_A, tk)
            continue
        if ph == "A":
            if COOP and n == CT2: coop_touch(3, 4, 0, False, 226)
            if COOP and n == CT3: coop_touch(0, 4, 128, True, 226)
            if COOP and n == CT4: coop_touch(4, 3, 128, True, 226)
            if n == RB_SLOT and RB_LATE: rowbatch_compute()
            if n == PUB_SLOT: rowbatch_publish()
            if n == AUX_LOAD: F.flush(); aux1_issue()
            if n == AUX_FIN: aux1_finish(); F.add("barrier", aux1_read)
            if not did: F.run(BUDGET_A, tk)
        else:
            if n == 0:
                F.flush()
                if ZFIRST:
                    drain(z_pass1()); drain(hier1())
                    e.wait_all(vm=False); e("s_barrier")
                    drain(hier2())
                    F.add(zscale, cs_base, tail_addr, "aux2gate",
                          lambda: cs_reads(0, 128), lambda: cs_reads(1, 144), lambda: gu_epi(0, 128),
                          lambda: cs_reads(2, 128), lambda: gu_epi(1, 144), lambda: cs_reads(3, 144), "step17", e_consts)
                else:
                  F.add(z_pass1, hier1, "barrier", hier2, zscale, cs_base, "aux2gate",
                      lambda: cs_reads(0, 128), lambda: cs_reads(1, 144), lambda: gu_epi(0, 128),
                      lambda: cs_reads(2, 128), lambda: gu_epi(1, 144), lambda: cs_reads(3, 144), tail_addr)
            if fused and G.EARLY_B and n == 1:
                early_B_setup(); early_B_queue(0, G.EARLY_B1)
            if fused and n >= EB_SLOT and (n - EB_SLOT) % EB_GAP == 0 and ebq and (n & 1) == 0: ebq.popleft()()
            if n == AUX2_SLOT: aux2_issue()
            if n == AUX2_FIN: aux2_finish(); aux["a2_tick"] = tk
            if PF_SLOT >= 0 and n >= PF_SLOT and (n - PF_SLOT) % PF_GAP == 0 and (n - PF_SLOT) // PF_GAP < 11: k2_touch((n - PF_SLOT) // PF_GAP, n)
            if not did: F.run(BUDGET_B0 if n < BSW else BUDGET_B, tk)
    if NOEPI:
        pr.dump(32, 48)
        e.raw("K1_END:")
        e("s_endpgm")
        gen_helper(e)
        return 256
    e_issue(); aux["e_vm"] = e.vm_issued
    if fused and G.EARLY_B > G.EARLY_B1:
        while ebq: ebq.popleft()()
        e.wait_all(vm=False); e("s_barrier")
        early_B_queue(G.EARLY_B1, G.EARLY_B)
    if TAILST2: pr.stamp()
    F.flush()
    if TAILST2: pr.stamp()
    if not ZFIRST and not ECLATE: drain_eb(e_consts(), 12)
    drain_eb(gu_epi(2, 128), 10)
    if TAILST2: pr.stamp()
    drain_eb(gu_epi(3, 144), 10)
    while ebq: ebq.popleft()()
    if not ZFIRST and ECLATE: drain(e_consts())
    if TAILST: pr.stamp()
    e_check(e.vm_issued - aux["e_vm"])
    if TAILST2: pr.stamp()
    carry_and_pass2()
    pr.stamp()
    pr.dump(32, 48)
    if fused:
        if G.PROFILE: e("s_mov_b64 exec, -1")
        G.gen_k2(e, fused=True)
    e.raw("K1_END:")
    e("s_endpgm")
    gen_helper(e)
    return 256
```

```python
import sys, os
sys.path.insert(0, "dev")
from asmlib import *
import gen as G
from gen import *
from k1_common import *
from collections import deque

env = lambda k, d: type(d)(os.environ.get(k, d)) if not isinstance(d, bool) else os.environ.get(k, "1" if d else "0") == "1"
STAMPS = eval(os.environ.get("STAMPS", '[("A",0),("A",27),("B",0),("B",27)]'))
NOEPI = env("NOEPI", False); NODMA = env("NODMA", False)
PRO_DMAS = env("PRO_DMAS", 8); ZLATE = env("ZLATE", True); MAP2 = env("MAP2", True); COOP = env("COOP", False); ROT = env("ROT", 1 if not COOP else 0)
CT2 = env("CT2", 1); CT3 = env("CT3", 22); CT4 = env("CT4", 34)
EB_SLOT = env("EB_SLOT", 4); EB_GAP = env("EB_GAP", 6); EBV = 13
PF_GAP = env("PF_GAP", 4); PF_SLOT = env("PF_SLOT", -1); AUX2_SLOT = env("AUX2_SLOT", 6); E_SLOT = env("E_SLOT", 48)
AUX2_FIN = env("AUX2_FIN", 26)
NT = env("NT", 2)
AUX_LOAD = env("AUX_LOAD", 46 if ZLATE else 52); AUX_FIN = env("AUX_FIN", 62 if ZLATE else 68); PUB_SLOT = env("PUB_SLOT", 16 if ZLATE else 23)
BUDGET_A = env("BUDGET_A", 4.0); BUDGET_B = env("BUDGET_B", 6.0); BUDGET_B0 = env("BUDGET_B0", 7.0)

DMAFLAG = os.environ.get("DMAFLAG", "")
if DMAFLAG: DMAFLAG = " " + DMAFLAG
BSW = env("BSW", 30); ECLATE = env("ECLATE", False); ZFIRST = env("ZFIRST", False); TAILST2 = env("TAILST2", False); TAILST = env("TAILST", True); PSTAMP = env("PSTAMP", False); DMA_HURRY = env("DMA_HURRY", 6); RB_LATE = env("RB_LATE", True); RB_SLOT = env("RB_SLOT", 7)
XR, ZR, WR = 0, 49152, 73728
MISC = 139264
M_ST = MISC; M_CS = MISC + 1024; M_SEG = MISC + 2048; M_N = MISC + 3072
M_SD = MISC + 3328; M_CB = MISC + 3840
M_PART = MISC + 3328
M_PB = MISC + 5376
M_TR = MISC + 6656
AX, AZr, AW0, AW1 = 1, 5, 9, 10
VX0, VX1, VZ, VW = 11, 12, 13, 14
LR, LI, CR, CI, L8R, L8I, L128R, L128I, TR, TI = 15, 16, 17, 18, 19, 20, 21, 22, 23, 24
M_, SD, NLR, CSR, CSI, PR, PI, ER, EI = 25, 26, 27, 28, 29, 30, 31, 32, 33
VH = 47

AZ = 48
AG = [64, 80, 96, 112]
XF = 128
FB = 240

def gen_k1(e, fused=False, kname="k1_kernel"):
    STF = os.environ.get("STF", " sc1") if fused else ""
    e.raw(f"{kname}:")
    e("s_cmp_ge_u32 s2, 256")
    e("s_cbranch_scc1 K1_END")
    if env("CODEPF", False): e("s_getpc_b64 s[84:85]")
    e.raw("K1_CODE_FIRST:")
    e("s_load_dwordx2 s[4:5], s[0:1], 0")
    e("s_load_dwordx2 s[6:7], s[0:1], 8")
    e("s_load_dwordx2 s[8:9], s[0:1], 24")
    e("s_load_dwordx2 s[10:11], s[0:1], 32")
    e("s_load_dwordx2 s[12:13], s[0:1], 80")
    e("s_load_dwordx2 s[14:15], s[0:1], 88")
    e("s_load_dwordx2 s[16:17], s[0:1], 112")
    e("s_load_dwordx2 s[18:19], s[0:1], 120")
    e("s_load_dwordx2 s[62:63], s[0:1], 16")
    e("s_load_dwordx2 s[86:87], s[0:1], 96")
    e("s_load_dwordx2 s[88:89], s[0:1], 40")
    e("s_load_dwordx2 s[90:91], s[0:1], 48")
    t = e("s_load_dwordx2 s[64:65], s[0:1], 56")
    e("v_lshrrev_b32 v1, 6, v0")
    e("v_and_b32 v0, 63, v0")
    e("v_readfirstlane_b32 s48, v1")
    e("s_sub_u32 s49, s2, 32")
    e("s_and_b32 s50, s49, 7")
    e("s_lshr_b32 s51, s49, 3")
    if MAP2:
        e("s_mul_i32 s54, s51, 37")
        e("s_lshr_b32 s54, s54, 8")
        e("s_mul_i32 s53, s54, 7")
        e("s_sub_u32 s55, s51, s53")
        e("s_and_b32 s52, s50, 3")
        e("s_lshl_b32 s53, s54, 2")
        e("s_add_u32 s52, s52, s53")
        e("s_lshl_b32 s51, s55, 2")
        e("s_add_u32 s51, s51, s54")
        e("s_lshr_b32 s53, s50, 2")
        e("s_mul_i32 s53, s53, 7")
        e("s_add_u32 s53, s53, s55")
    else:
        e("s_and_b32 s52, s50, 3")
        e("s_lshl_b32 s52, s52, 2")
        e("s_and_b32 s53, s51, 3")
        e("s_add_u32 s52, s52, s53")
        e("s_lshr_b32 s53, s50, 2")
        e("s_mul_i32 s53, s53, 7")
        e("s_lshr_b32 s54, s51, 2")
        e("s_add_u32 s53, s53, s54")
    e("s_and_b32 s54, s48, 3")
    e("s_lshr_b32 s55, s48, 2")
    e("v_lshrrev_b32 v40, 3, v0")
    e("v_and_b32 v41, 7, v0")
    e("v_lshrrev_b32 v42, 4, v0")
    e("s_movk_i32 s56, 896")
    e("s_lshl_b32 s57, s48, 4")
    e("v_add_u32 v43, s57, v40")
    e("v_mul_lo_u32 v43, s56, v43")
    e("v_xor_b32 v44, v41, v42")
    e(f"v_lshl_add_u32 v{VX0}, v44, 4, v43")
    e("v_add_u32 v44, 4, v42")
    e("v_xor_b32 v44, v41, v44")
    e(f"v_lshl_add_u32 v{VX1}, v44, 4, v43")
    e(f"v_add_u32 v{VX1}, {8*896}, v{VX1}")
    e("s_lshl_b32 s57, s54, 3")
    e("v_add_u32 v43, s57, v40")
    e("v_mul_lo_u32 v43, s56, v43")
    e("s_and_b32 s57, s48, 1")
    e("s_lshl_b32 s57, s57, 2")
    e("v_add_u32 v44, s57, v42")
    e("v_xor_b32 v44, v41, v44")
    e(f"v_lshl_add_u32 v{VZ}, v44, 4, v43")
    e("s_lshl_b32 s57, s54, 3")
    e("v_add_u32 v43, s57, v40")
    e("s_movk_i32 s56, 3584")
    e("v_mul_lo_u32 v43, s56, v43")
    e("v_and_b32 v44, 1, v42")
    e("s_lshl_b32 s57, s55, 1")
    e("v_add_u32 v44, s57, v44")
    e("v_lshlrev_b32 v44, 1, v44")
    e("v_xor_b32 v44, v41, v44")
    e(f"v_lshl_add_u32 v{VW}, v44, 4, v43")
    e(f"s_mul_i32 s66, s52, {128*896}")
    e(f"s_mul_i32 s67, s53, {32*896}")
    e("s_lshl_b32 s72, s53, 8")
    e("s_lshl_b32 s73, s48, 11")
    e("s_lshl_b32 s74, s48, 10")
    e(f"s_add_u32 s74, s74, {ZR}")
    e("s_lshl_b32 s75, s55, 13")
    e("s_lshl_b32 s76, s54, 10")
    e("s_add_u32 s75, s75, s76")
    e(f"s_add_u32 s75, s75, {WR}")
    e.wait(t)
    e("s_cmp_lt_u32 s2, 32")
    e("s_cbranch_scc1 K1_HELPER")
    srd(e, 20, 4, 2048*448*2)
    if ROT == 1:
        e("s_and_b32 s56, s51, 3")
        e("s_lshl_b32 s56, s56, 1")
        e("s_lshr_b32 s57, s51, 2")
        e("s_add_u32 s56, s56, s57")
        e("s_cmp_ge_u32 s56, 7")
        e("s_cselect_b32 s57, 7, 0")
        e("s_sub_u32 s77, s56, s57")
    else:
        e("s_mov_b32 s77, 0")
    e("s_mov_b32 s76, s77")
    e("s_lshl_b32 s4, s76, 7")
    e("s_add_u32 s4, s4, s66")
    e("s_sub_u32 s67, s67, s66")
    ent_tok = {}
    dmaq = deque()
    def entry_dmas(kind, kc):
        def mk(a, last):
            def f():
                if NODMA:
                    if last: ent_tok[(kind, kc)] = None
                    return
                if kind == "X":
                    e(f"s_add_u32 m0, s73, {XR + (kc%3)*16384 + a*1024}")
                    tok = e(f"buffer_load_dwordx4 v{VX0+a}, s[20:23], s{4+kc} offen{DMAFLAG} lds")
                elif kind == "ZC":
                    e(f"s_add_u32 m0, s74, {M_TR - ZR + kc*8192}")
                    e(f"s_add_u32 s77, s67, s{4+kc}")
                    tok = e(f"buffer_load_dwordx4 v{VZ}, s[24:27], s77 offen{DMAFLAG} lds")
                elif kind == "Z":
                    e(f"s_add_u32 m0, s74, {(kc%3)*8192}")
                    e(f"s_add_u32 s77, s67, s{4+kc}")
                    tok = e(f"buffer_load_dwordx4 v{VZ}, s[24:27], s77 offen{DMAFLAG} lds")
                else:
                    ch = kc % 7; colb = 0 if kc < 7 else 128
                    e(f"s_add_u32 m0, s75, {(kc%4)*16384 + a*4096}")
                    e(f"s_add_u32 s77, s{11+ch}, {32*a*3584 + colb}")
                    tok = e(f"buffer_load_dwordx4 v{VW}, s[28:31], s77 offen{DMAFLAG} lds")
                if last: ent_tok[(kind, kc)] = tok
            return f
        n = 1 if kind in ("Z", "ZC") else 2
        return [mk(a, a == n - 1) for a in range(n)]
    def queue(*ents):
        for (k, kc) in ents:
            for f in entry_dmas(k, kc): dmaq.append(f)
    def bz_w_srds():
        e("s_cmp_eq_u32 s55, 0")
        e("s_cselect_b32 s24, s8, s10")
        e("s_cselect_b32 s25, s9, s11")
        e("s_cselect_b32 s28, s12, s14")
        e("s_cselect_b32 s29, s13, s15")
        e("s_and_b32 s25, s25, 0xffff")
        e(f"s_mov_b32 s26, {448*448*2}")
        e("s_mov_b32 s27, 0x20000")
        e("s_and_b32 s29, s29, 0xffff")
        e(f"s_mov_b32 s30, {448*1792*2}")
        e("s_mov_b32 s31, 0x20000")
    M_PF0 = 162304
    def coop_setup():
        e("s_and_b32 s56, s51, 3")
        e("s_lshr_b32 s57, s51, 2")
        e("s_mov_b32 s64, 0")
        e("s_cmp_eq_u32 s54, 0"); e("s_cselect_b32 s64, 1, s64")
        e("s_cmp_eq_u32 s54, 1"); e("s_cselect_b32 s64, 2, s64")
        e("s_cmp_eq_u32 s48, 2"); e("s_cselect_b32 s64, 3, s64")
        e("s_or_b32 s58, s57, s48"); e("s_cmp_eq_u32 s58, 3")
        e("s_cmp_eq_u32 s48, 3"); e("s_cselect_b32 s58, 0, 1"); e("s_or_b32 s58, s58, s57")
        e("s_cmp_eq_u32 s58, 0"); e("s_cselect_b32 s64, 3, s64"); e("s_cselect_b32 s57, 7, s57")
        e(f"s_mul_i32 s58, s56, {16*3584}"); e("s_add_u32 s58, s58, s72")
        e(f"s_mul_i32 s59, s53, {32*896}"); e(f"s_mul_i32 s61, s56, {8*896}"); e("s_add_u32 s59, s59, s61")
        e(f"s_mul_i32 s61, s57, {16*896}"); e("s_add_u32 s61, s61, s66")
        e("s_cmp_eq_u32 s64, 1"); e("s_cselect_b32 s65, s58, s61")
        e("s_cselect_b32 s88, s28, s20"); e("s_cselect_b32 s89, s29, s21"); e("s_cselect_b32 s90, s30, s22")
        e("s_cmp_eq_u32 s64, 2"); e("s_cselect_b32 s65, s59, s65")
        e("s_cselect_b32 s88, s24, s88"); e("s_cselect_b32 s89, s25, s89"); e("s_cselect_b32 s90, s26, s90")
        e("s_mov_b32 s91, 0x20000")
    def coop_touch(c0, n, colb, wonly, tv):
        lab = e.label("K1_CT")
        if wonly: e("s_cmp_lg_u32 s64, 1")
        else: e("s_cmp_eq_u32 s64, 0")
        e(f"s_cbranch_scc1 {lab}")
        e.cond_begin()
        e("s_cmp_eq_u32 s64, 2")
        e("s_cselect_b32 s58, 7, 15")
        e("s_cselect_b32 s59, 3, 4")
        e(f"v_and_b32 v{tv}, s58, v0")
        e(f"v_lshrrev_b32 v{tv+1}, s59, v0")
        e(f"v_min_u32 v{tv+1}, {n-1}, v{tv+1}")
        e("s_cmp_eq_u32 s64, 1")
        e("s_movk_i32 s58, 896")
        e("s_cselect_b32 s58, 3584, s58")
        e("s_movk_i32 s59, 128")
        e(f"s_cselect_b32 s59, {64*3584}, s59")
        e(f"s_mov_b32 s61, {c0*128}")
        e(f"s_cselect_b32 s61, {c0*64*3584 + colb}, s61")
        e(f"v_mul_lo_u32 v{tv}, s58, v{tv}")
        e(f"v_mul_lo_u32 v{tv+1}, s59, v{tv+1}")
        e("s_add_u32 s61, s61, s65")
        e(f"s_mov_b32 m0, {M_PF0}")
        e(f"v_add_u32 v{tv}, v{tv}, v{tv+1}")
        e(f"buffer_load_dword v{tv}, s[88:91], s61 offen lds")
        e.cond_end()
        e.raw(f"{lab}:")
    srd(e, 68, 64, 896)
    if COOP:
        bz_w_srds()
        coop_setup()
        coop_touch(0, 3, 0, False, 34)
        queue(("X",0))
        for _ in range(2): dmaq.popleft()()
    else:
        queue(("X",0))
        for _ in range(2): dmaq.popleft()()
        bz_w_srds()
    if not ZLATE:
        queue(("Z",0))
        dmaq.popleft()()
    srd(e, 40, 6, 896)
    srd(e, 44, 62, 896)
    srd(e, 32, 18, WS_END if not G.PROFILE else (16 << 20))
    srd(e, 36, 16, 256)
    e("s_mov_b32 s60, 0")
    e("s_cmp_lt_u32 s48, 2")
    e("s_cselect_b32 s61, 1, 0")
    e("s_cmp_lt_u32 s53, 8")
    e("s_cselect_b32 s60, s61, 0")
    e("s_cmp_eq_u32 s48, 2")
    e("s_cselect_b32 s61, 2, 0")
    e("s_cmp_lt_u32 s52, 8")
    e("s_cselect_b32 s61, s61, 0")
    e("s_or_b32 s60, s60, s61")
    e("s_lshl_b32 s56, s52, 7")
    e("s_lshl_b32 s57, s53, 4")
    e("s_add_u32 s56, s56, s57")
    e("s_lshl_b32 s57, s48, 3")
    e("s_add_u32 s56, s56, s57")
    e("s_lshl_b32 s57, s53, 5")
    e("s_and_b32 s58, s52, 3")
    e("s_lshl_b32 s58, s58, 3")
    e("s_add_u32 s57, s57, s58")
    e("s_cmp_eq_u32 s60, 2")
    e("s_cselect_b32 s59, s57, s56")
    e("s_cmp_ge_u32 s52, 4")
    e("s_cselect_b32 s92, s10, s8")
    e("s_cselect_b32 s93, s11, s9")
    e("s_cselect_b32 s62, 448, 0")
    e("s_cmp_eq_u32 s60, 2")
    e("s_cselect_b32 s92, s92, s20")
    e("s_cselect_b32 s93, s93, s21")
    e(f"s_mov_b32 s94, {2048*448*2}")
    e(f"s_cselect_b32 s94, {448*448*2}, s94")
    e("s_cselect_b32 s62, s62, 0")
    e("s_and_b32 s93, s93, 0xffff")
    e("s_mov_b32 s95, 0x20000")
    e("s_add_u32 s62, s62, s59")
    e("s_mul_i32 s63, s59, 896")
    e(f"s_mul_i32 s11, s76, {64*3584}")
    e("s_add_u32 s11, s11, s72")
    queue(("W",0))
    for _ in range(2): dmaq.popleft()()
    pr = G.Prof(e, 0); pr.stamp()
    e("v_and_b32 v40, 15, v0")
    e("s_lshl_b32 s56, s53, 5")
    e("s_lshl_b32 s57, s55, 4")
    e("s_add_u32 s78, s56, s57")
    e("v_add_u32 v41, s78, v40")
    e("v_lshlrev_b32 v42, 1, v41")
    tp = [e("buffer_load_ushort v43, v42, s[40:43], 0 offen"),
          e("buffer_load_ushort v44, v42, s[44:47], 0 offen"),
          e("buffer_load_ushort v45, v42, s[68:71], 0 offen")]
    e("v_lshrrev_b32 v34, 3, v0")
    e("v_and_b32 v35, 7, v0")
    e("v_mul_u32_u24 v36, 896, v34")
    e("v_lshl_add_u32 v36, v35, 4, v36")
    RB = 192
    labrb = e.label("K1_NORB")
    e("s_cmp_eq_u32 s60, 0")
    e(f"s_cbranch_scc1 {labrb}")
    e.cond_begin()
    for k in range(7): e(f"buffer_load_dwordx4 v[{RB+4*k}:{RB+4*k+3}], v36, s[92:95], s63 offen offset:{128*k}")
    e.cond_end()
    e.raw(f"{labrb}:")
    def rowbatch_compute():
        lab = e.label("K1_NORC")
        e("s_cmp_eq_u32 s60, 0")
        e(f"s_cbranch_scc1 {lab}")
        e.cond_begin()
        e.raw(f"s_waitcnt vmcnt({min(63, e.vm_issued - vm_at_rb)})")
        e("s_mov_b32 s58, 0x3f803f80")
        e("v_mov_b32 v220, 0"); e("v_mov_b32 v221, 0"); e("v_mov_b32 v222, 0"); e("v_mov_b32 v223, 0")
        for k in range(28):
            e(f"v_dot2c_f32_bf16 v{220 + (k&1)}, s58, v{RB+k}")
            e(f"v_dot2c_f32_bf16 v{222 + (k&1)}, v{RB+k}, v{RB+k}")
        e("s_nop 2")
        e("v_add_f32 v220, v220, v221")
        e("v_add_f32 v221, v222, v223")
        for r_ in (220, 221):
            e(f"v_add_f32_dpp v{r_}, v{r_}, v{r_} quad_perm:[1,0,3,2] row_mask:0xf bank_mask:0xf")
            e(f"v_add_f32_dpp v{r_}, v{r_}, v{r_} quad_perm:[2,3,0,1] row_mask:0xf bank_mask:0xf")
            e(f"v_add_f32_dpp v{r_}, v{r_}, v{r_} row_half_mirror row_mask:0xf bank_mask:0xf")
        e("v_mov_b32 v224, v220")
        e(f"v_mul_f32 v220, {f32(1.0/448)}, v220")
        e(f"v_mul_f32 v221, {f32(1.0/448)}, v221")
        e("v_fma_f32 v221, -v220, v220, v221")
        e("v_max_f32 v221, 0, v221")
        e("v_cvt_pk_bf16_f32 v220, v220, v221")
        e("v_and_b32 v221, 0xffff0000, v220")
        e("v_lshlrev_b32 v220, 16, v220")
        e(f"v_add_f32 v221, {f32(1e-5)}, v221")
        e("v_cvt_pk_bf16_f32 v221, v221, v221")
        e("v_lshlrev_b32 v221, 16, v221")
        e("v_sqrt_f32 v221, v221")
        e("v_cvt_pk_bf16_f32 v221, v221, v221")
        e("v_lshlrev_b32 v221, 16, v221")
        e.cond_end()
        e.raw(f"{lab}:")
    def rowbatch_publish():
        lab = e.label("K1_NORP"); labx = e.label("K1_RPX")
        e("s_cmp_eq_u32 s60, 0")
        e(f"s_cbranch_scc1 {lab}")
        e.cond_begin()
        e("v_lshrrev_b32 v226, 3, v0")
        e("v_add_u32 v226, s62, v226")
        e("v_and_b32 v227, 7, v0")
        e("v_cmp_eq_u32 vcc, 0, v227")
        e("s_and_saveexec_b64 s[58:59], vcc")
        e("s_cmp_eq_u32 s60, 1")
        e(f"s_cbranch_scc1 {labx}")
        e("v_lshlrev_b32 v226, 3, v226")
        e("v_mov_b32 v228, v224"); e("v_mov_b32 v229, s98")
        e(f"s_mov_b32 s61, {WS_CSB}")
        e("buffer_store_dwordx2 v[228:229], v226, s[32:35], s61 offen sc1")
        e("s_mov_b64 exec, s[58:59]")
        e(f"s_branch {lab}")
        e.raw(f"{labx}:")
        e("v_lshlrev_b32 v226, 4, v226")
        e("v_mov_b32 v228, v220"); e("v_mov_b32 v229, s98"); e("v_mov_b32 v230, v221"); e("v_mov_b32 v231, s98")
        e(f"s_mov_b32 s61, {WS_STAT}")
        e("buffer_store_dwordx4 v[228:231], v226, s[32:35], s61 offen sc1")
        e("s_mov_b64 exec, s[58:59]")
        e.cond_end()
        e.raw(f"{lab}:")
    RBWAIT = [0]
    vm_at_rb = e.vm_issued
    def rot_entry(t):
        if ROT == 2 and t == 1:
            e("s_and_b32 s56, s51, 3"); e("s_lshl_b32 s56, s56, 1"); e("s_lshr_b32 s57, s51, 2"); e("s_add_u32 s56, s56, s57")
            e("s_cmp_ge_u32 s56, 6"); e("s_cselect_b32 s57, 6, 0"); e("s_sub_u32 s56, s56, s57")
            e("s_cmp_ge_u32 s56, 6"); e("s_cselect_b32 s57, 6, 0"); e("s_sub_u32 s56, s56, s57")
            e("s_add_u32 s76, s56, 1")
        elif ROT == 2:
            e("s_add_u32 s76, s76, 1"); e("s_cmp_eq_u32 s76, 7"); e("s_cselect_b32 s76, 1, s76")
        else:
            e("s_add_u32 s76, s76, 1")
            e("s_cmp_eq_u32 s76, 7")
            e("s_cselect_b32 s76, 0, s76")
        e(f"s_lshl_b32 s{4+t}, s76, 7")
        e(f"s_mul_i32 s{11+t}, s76, {64*3584}")
        e(f"s_add_u32 s{4+t}, s{4+t}, s66")
        e(f"s_add_u32 s{11+t}, s{11+t}, s72")
    for t in range(1, 7): rot_entry(t)
    if ZLATE:
        queue(("X",1),("W",1),("X",2),("Z",2),("W",2),("W",3))
        for _ in range(max(0, PRO_DMAS - 4)): dmaq.popleft()()
    else:
        queue(("X",1),("Z",1),("W",1),("X",2),("Z",2),("W",2),("W",3))
        for _ in range(max(0, PRO_DMAS - 5)): dmaq.popleft()()
    if PSTAMP: pr.stamp()
    nonce_cas(e, 120)
    def issue_for_tick(tk):
        l = []
        if tk >= 1:
            if tk + 2 < 7: l += [("X", tk+2), ("Z", tk+2)]
            if tk + 3 < 14: l += [("W", tk+3)]
            if ZLATE and tk == 2: l += [("ZC", 0), ("ZC", 1)]
        return l

    e("v_and_b32 v34, 31, v0")
    e("v_lshrrev_b32 v35, 4, v34")
    e("v_bfe_u32 v36, v34, 2, 1")
    e("v_lshl_add_u32 v35, v36, 1, v35")
    e("v_bfe_u32 v36, v34, 3, 1")
    e("v_lshlrev_b32 v35, 3, v35")
    e("v_lshl_add_u32 v35, v36, 2, v35")
    e("v_and_b32 v36, 3, v34")
    e("v_add_u32 v35, v35, v36")
    e("v_lshrrev_b32 v36, 5, v0")
    e(f"v_lshl_add_u32 v{VH}, v36, 5, v35")
    e(f"v_lshlrev_b32 v{VH}, 4, v{VH}")
    e("s_lshl_b32 s56, s54, 5")
    e("v_add_u32 v37, s56, v35")
    e(f"v_lshlrev_b32 v{AX}, 7, v37")
    e("v_bfe_u32 v38, v35, 1, 3")
    e("v_xor_b32 v38, v38, v36")
    e(f"v_lshl_add_u32 v{AX}, v38, 4, v{AX}")
    for kk in range(1, 4): e(f"v_xor_b32 v{AX+kk}, {kk<<5}, v{AX}")
    e("v_bfe_u32 v38, v0, 4, 1")
    e(f"v_lshlrev_b32 v{AZr}, 12, v38")
    e("s_lshl_b32 s56, s55, 4")
    e("v_and_b32 v40, 15, v0")
    e("v_add_u32 v39, s56, v40")
    e(f"v_lshl_add_u32 v{AZr}, v39, 7, v{AZr}")
    e("v_bfe_u32 v39, v40, 1, 3")
    e("v_xor_b32 v39, v39, v36")
    e(f"v_lshl_add_u32 v{AZr}, v39, 4, v{AZr}")
    e(f"v_add_u32 v{AZr}, {ZR}, v{AZr}")
    for kk in range(1, 4): e(f"v_xor_b32 v{AZr+kk}, {kk<<5}, v{AZr}")
    e(f"v_lshlrev_b32 v{AW0}, 13, v38")
    e("v_lshrrev_b32 v39, 2, v40")
    e("v_lshl_add_u32 v39, v36, 3, v39")
    e(f"v_lshl_add_u32 v{AW0}, v39, 7, v{AW0}")
    e("v_lshrrev_b32 v39, 3, v40")
    e("v_lshl_add_u32 v39, v38, 1, v39")
    e("s_lshl_b32 s56, s55, 1")
    e("v_xor_b32 v39, s56, v39")
    e(f"v_lshl_add_u32 v{AW0}, v39, 5, v{AW0}")
    e("v_and_b32 v39, 3, v40")
    e(f"v_lshl_add_u32 v{AW0}, v39, 3, v{AW0}")
    e(f"v_add_u32 v{AW0}, {WR}, v{AW0}")
    e(f"v_xor_b32 v{AW1}, 32, v{AW0}")
    e("s_lshl_b32 s56, s52, 2")
    e("s_add_u32 s56, s56, s54")
    e("s_mul_i32 s56, s56, 112")
    e("s_lshl_b32 s57, s53, 3")
    e("s_add_u32 s56, s56, s57")
    e("s_lshl_b32 s57, s55, 1")
    e("s_add_u32 s56, s56, s57")
    e("s_lshl_b32 s79, s56, 10")
    if WS_HF: e(f"s_add_u32 s79, s79, {WS_HF}")

    def params():
        e.wait(tp); yield
        e("s_bitcmp1_b32 s54, 0"); e("s_cselect_b64 s[40:41], -1, 0")
        e("s_bitcmp1_b32 s54, 1"); e("s_cselect_b64 s[42:43], -1, 0")
        e("s_mov_b32 s44, 0xffff0000"); e("s_mov_b32 s45, 0xffff0000")
        e("s_mov_b32 s46, 0"); e("s_mov_b32 s47, -1")
        e("v_lshlrev_b32 v43, 16, v43"); yield
        e("v_lshlrev_b32 v44, 16, v44"); yield
        e("v_lshlrev_b32 v45, 16, v45"); yield
        e(f"v_mul_f32 v45, {f32(LOG2E)}, v45"); yield
        e("v_exp_f32 v45, v45"); yield
        e("v_cvt_pk_bf16_f32 v45, v45, v45"); yield
        e("v_lshlrev_b32 v45, 16, v45"); yield
        e("v_mul_f32 v34, v45, v43"); yield
        e("v_mul_f32 v35, v45, v44"); yield
        e(f"v_mul_f32 v34, {f32(LOG2E)}, v34"); yield
        e("v_exp_f32 v34, v34"); yield
        e(f"v_mul_f32 v35, {f32(1.0/(2*3.141592653589793))}, v35"); yield
        e("v_fract_f32 v35, v35"); yield
        e("v_cos_f32 v36, v35"); yield
        e("v_sin_f32 v37, v35"); yield
        e(f"v_mul_f32 v{LR}, v34, v36"); yield
        e(f"v_mul_f32 v{LI}, v34, v37"); yield
        e(f"v_add_f32 v36, -1.0, v{LR}"); yield
        e("v_mul_f32 v38, v43, v43"); yield
        e("v_fmac_f32 v38, v44, v44"); yield
        e("v_rcp_f32 v38, v38"); yield
        e("v_mul_f32 v39, v36, v43"); yield
        e(f"v_fmac_f32 v39, v{LI}, v44"); yield
        e(f"v_mul_f32 v34, v{LI}, v43"); yield
        e("v_fma_f32 v34, -v36, v44, v34"); yield
        e("v_add_f32 v38, v38, v38"); yield
        e(f"v_mul_f32 v{CR}, v39, v38"); yield
        e(f"v_mul_f32 v{CI}, v34, v38"); yield
        yield from csq(e, 34, 35, LR, LI, 38)
        yield from csq(e, 36, 37, 34, 35, 38)
        yield from csq(e, L8R, L8I, 36, 37, 38)
        e(f"v_mov_b32 v{TR}, 1.0"); yield
        e(f"v_mov_b32 v{TI}, 0"); yield
        e(f"v_mov_b32 v34, v{L8R}"); yield
        e(f"v_mov_b32 v35, v{L8I}"); yield
        for b, m in enumerate(("s[44:45]", "s[46:47]", "s[40:41]", "s[42:43]")):
            yield from cmul(e, 36, 37, TR, TI, 34, 35, 38)
            e(f"v_cndmask_b32 v{TR}, v{TR}, v36, {m}"); yield
            e(f"v_cndmask_b32 v{TI}, v{TI}, v37, {m}"); yield
            e("v_mov_b32 v41, v34"); yield
            e("v_mov_b32 v42, v35"); yield
            yield from csq(e, 34, 35, 41, 42, 38)
        e(f"v_mov_b32 v{L128R}, v34"); yield
        e(f"v_mov_b32 v{L128I}, v35"); yield

    def zbuf(ks): return 96 + (ks & 1)*4
    def wbufA(ks, tl): return 104 + (ks & 1)*8 + tl*4
    def wbufB(ks, tl): return FB + (ks & 1)*8 + tl*4
    first = {}
    def mfma(acc, a, b):
        c = f"v[{acc}:{acc+15}]" if first.get(acc) else "0"
        first[acc] = True
        e(f"v_mfma_f32_32x32x16_bf16 v[{acc}:{acc+15}], v[{a}:{a+3}], v[{b}:{b+3}], {c}")
    rd_tok = {}
    def read_x(ks):
        kk = ks & 3; kc = ks >> 2
        rd_tok[("x", ks)] = [e(f"ds_read_b128 v[{XF+4*ks}:{XF+4*ks+3}], v{AX+kk} offset:{(kc%3)*16384}")]
    def read_z(ks):
        kk = ks & 3; kc = ks >> 2
        rd_tok[("z", ks)] = [e(f"ds_read_b128 v[{zbuf(ks)}:{zbuf(ks)+3}], v{AZr+kk} offset:{(kc%3)*8192}")]
    def read_w(ph, ks, tl, half):
        kk = ks & 3; w = (ks >> 2) + (0 if ph == "A" else 7)
        b = wbufA(ks, tl) if ph == "A" else wbufB(ks, tl)
        ad = AW0 if tl == 0 else AW1
        off = (w % 4)*16384 + kk*2048
        t = e(f"ds_read_b64_tr_b16 v[{b+2*half}:{b+2*half+1}], v{ad} offset:{off+512*half}")
        rd_tok.setdefault((ph, ks, tl), []).append(t)
    steps = [("A", ks) for ks in range(28)] + [("B", ks) for ks in range(28)]
    def tick_idx(ph, ks): return (ks >> 2) + (0 if ph == "A" else 7)
    def need_ents(tk):
        if tk >= 7: return [("W",tk)]
        if not ZLATE: return [("X",tk),("Z",tk),("W",tk)]
        l = [("X",tk),("W",tk)]
        if tk >= 2: l.append(("Z",tk))
        if tk >= 5: l.append(("ZC", tk - 5))
        return l
    nbar = [0]
    def enter_tick(tk):
        while any(x not in ent_tok for x in need_ents(tk)): dmaq.popleft()()
        e.wait([ent_tok[x] for x in need_ents(tk)])
        if tk == NT: nonce_publish(e, 120, M_N)
        e.wait_all(vm=False)
        e("s_barrier")
        nbar[0] += 1
        if tk == NT: nonce_read(e, 121, M_N)
        queue(*issue_for_tick(tk))

    def main_stream():
        sp = env("SETPRIO", 0)
        if sp:
            lab = e.label("K1_SP")
            e("s_cmp_lt_u32 s48, 4" if sp == 1 else "s_cmp_ge_u32 s48, 4")
            e(f"s_cbranch_scc1 {lab}")
            e("s_setprio 1")
            e.raw(f"{lab}:")
        if not RB_LATE: rowbatch_compute()
        if PSTAMP: pr.stamp()
        enter_tick(0)
        if PSTAMP: pr.stamp()
        def hasZ(ks): return (not ZLATE) or ks >= 8
        def hasC(ks): return ZLATE and ks >= 20
        def zcbuf(ks): return 248 + (ks & 1)*4
        def read_zc(ks):
            kc = ks - 20; kk = kc & 3
            e(f"v_add_u32 v46, {M_TR - ZR + (kc >> 2)*8192}, v{AZr+kk}")
            rd_tok[("zc", ks)] = [e(f"ds_read_b128 v[{zcbuf(ks)}:{zcbuf(ks)+3}], v46")]
        read_x(0); read_w("A", 0, 0, 0); read_w("A", 0, 0, 1)
        if hasZ(0): read_z(0)
        read_w("A", 0, 1, 0); read_w("A", 0, 1, 1)
        for n, (ph, ks) in enumerate(steps):
            nx = steps[n+1] if n + 1 < len(steps) else None
            x = XF + 4*ks
            if ph == "A":
                ops = [(AG[0], wbufA(ks,0), x, [("x", ks), (ph, ks, 0)])]
                if hasZ(ks): ops.append((AZ, x, zbuf(ks), [("z", ks)]))
                ops.append((AG[1], wbufA(ks,1), x, [(ph, ks, 1)]))
                if hasC(ks): ops.append((AZ, XF + 4*(ks - 20), zcbuf(ks), [("zc", ks)]))
            else:
                ops = [(AG[2], wbufB(ks,0), x, [(ph, ks, 0)]), (AG[3], wbufB(ks,1), x, [(ph, ks, 1)])]
            groups = [[] for _ in ops]
            if nx is not None:
                ph2, ks2 = nx
                if ph2 == "A":
                    rl = [lambda: read_x(ks2), lambda: read_w("A", ks2, 0, 0), lambda: read_w("A", ks2, 0, 1)]
                    if hasZ(ks2): rl.append(lambda: read_z(ks2))
                    rl += [lambda: read_w("A", ks2, 1, 0), lambda: read_w("A", ks2, 1, 1)]
                    if hasC(ks2): rl.append(lambda: read_zc(ks2))
                else:
                    rl = [lambda: read_w("B", ks2, 0, 0), lambda: read_w("B", ks2, 0, 1), lambda: read_w("B", ks2, 1, 0), lambda: read_w("B", ks2, 1, 1)]
                ns = len(ops)
                if ph == "A" and ph2 == "B": ns_use = 2
                else: ns_use = ns
                per = -(-len(rl) // ns_use)
                for k, f in enumerate(rl): groups[min(k // per, ns_use - 1)].append(f)
            for si, (acc, a, b, keys) in enumerate(ops):
                e.wait([rd_tok[k] for k in keys])
                mfma(acc, a, b)
                if nx is not None and si == 0 and (nx[1] & 3) == 0: enter_tick(tick_idx(nx[0], nx[1]))
                for f in groups[si]: f()
                dma_ok = (si == len(ops) - 1)
                did = False
                if (dma_ok or (len(dmaq) > DMA_HURRY)) and dmaq:
                    dmaq.popleft()(); did = True
                yield (ph, ks, si, did)

    aux = {}
    def tagcheck(regs):
        e(f"v_xor_b32 v44, s98, v{regs[0]}")
        for r in regs[1:]:
            e(f"v_xor_b32 v45, s98, v{r}")
            e("v_or_b32 v44, v44, v45")
        e("v_cmp_ne_u32 vcc, 0, v44")
        e("s_cmp_eq_u64 vcc, 0")
    AXW1, AXW2 = 3, 4
    def only_wave(w, name):
        lab = e.label(name)
        e(f"s_cmp_lg_u32 s48, {w}")
        e(f"s_cbranch_scc1 {lab}")
        e.cond_begin()
        return lab
    def end_only(lab):
        e.cond_end()
        e.raw(f"{lab}:")
    def aux1_issue_raw():
        e("s_lshl_b32 s61, s52, 11")
        e(f"s_add_u32 s61, s61, {WS_STAT}")
        e("v_lshlrev_b32 v120, 4, v0")
        e("buffer_load_dwordx4 v[36:39], v120, s[32:35], s61 offen sc1")
        e("buffer_load_dwordx4 v[40:43], v120, s[32:35], s61 offen offset:1024 sc1")
        e("v_lshrrev_b32 v121, 5, v0")
        e("v_mul_u32_u24 v121, 448, v121")
        e("v_and_b32 v122, 31, v0")
        e("v_add_u32 v121, v121, v122")
        e("s_lshl_b32 s61, s53, 5")
        e("v_add_u32 v121, s61, v121")
        e("v_lshlrev_b32 v121, 3, v121")
        e(f"s_mov_b32 s61, {WS_CSB}")
        e("buffer_load_dwordx2 v[124:125], v121, s[32:35], s61 offen sc1")
    def aux1_issue():
        lab = only_wave(AXW1, "K1_A1I")
        aux1_issue_raw()
        end_only(lab)
        aux["a1_vm"] = e.vm_issued
    def aux1_finish():
        lab = only_wave(AXW1, "K1_A1F")
        e.raw(f"s_waitcnt vmcnt({min(63, e.vm_issued - aux['a1_vm'])})")
        tagged_retry(e, aux1_issue_raw, lambda: tagcheck([37, 39, 41, 43, 125]), "K1_A1", cnt="s63")
        e("v_rcp_f32 v37, v38")
        e("v_rcp_f32 v41, v42")
        e("v_lshlrev_b32 v120, 3, v0")
        e(f"v_add_u32 v120, {M_ST}, v120")
        e("ds_write_b64 v120, v[36:37]")
        e("ds_write_b64 v120, v[40:41] offset:512")
        e("v_lshlrev_b32 v120, 2, v0")
        e(f"v_add_u32 v120, {M_SD}, v120")
        e("ds_write_b32 v120, v38")
        e("ds_write_b32 v120, v42 offset:256")
        e(f"ds_write_b32 v120, v124 offset:{M_CB - M_SD}")
        e.raw("s_waitcnt lgkmcnt(0)")
        end_only(lab)
    def aux1_read():
        e(f"v_and_b32 v34, 0x1f0, v{VH}"); yield
        e("v_lshrrev_b32 v34, 1, v34"); yield
        e("s_lshl_b32 s56, s54, 8")
        e(f"s_add_u32 s56, s56, {M_ST}")
        e("v_add_u32 v35, s56, v34"); yield
        t1 = e("ds_read_b64 v[36:37], v35"); yield
        e("v_lshrrev_b32 v34, 1, v34"); yield
        e("s_lshl_b32 s56, s54, 7")
        e(f"s_add_u32 s56, s56, {M_SD}")
        e("v_add_u32 v34, s56, v34"); yield
        t2 = e(f"ds_read_b32 v{SD}, v34"); yield
        e("v_and_b32 v34, 15, v0"); yield
        e("s_lshl_b32 s56, s55, 6")
        e(f"s_add_u32 s56, s56, {M_CB}")
        e("v_lshlrev_b32 v34, 2, v34"); yield
        e("v_add_u32 v34, s56, v34"); yield
        t3 = [e(f"ds_read_b32 v{CSR}, v34"), e(f"ds_read_b32 v{CSI}, v34 offset:128")]; yield
        e("v_lshrrev_b32 v34, 4, v0"); yield
        e("s_lshl_b32 s56, s54, 8")
        e(f"s_add_u32 s56, s56, {M_ST}")
        e("v_lshlrev_b32 v34, 6, v34"); yield
        e("v_add_u32 v34, s56, v34"); yield
        e.wait(t1); yield
        e(f"v_mov_b32 v{M_}, v36"); yield
        e(f"v_mul_f32 v{NLR}, {f32(-LOG2E)}, v37"); yield
        aux["st"] = [e("ds_read_b128 v[36:39], v34"), e("ds_read_b128 v[40:43], v34 offset:16")]
        aux["lane"] = [t2, t3]
        yield
    def aux2_issue_raw():
        e("s_lshl_b32 s61, s53, 10")
        e(f"s_add_u32 s61, s61, {WS_CSW}")
        e("v_lshlrev_b32 v136, 4, v0")
        e("buffer_load_dwordx4 v[128:131], v136, s[32:35], s61 offen sc1")
        e(f"s_add_u32 s61, s61, {1792*8}")
        e("buffer_load_dwordx4 v[132:135], v136, s[32:35], s61 offen sc1")
    def aux2_issue():
        lab = only_wave(AXW2, "K1_A2I")
        aux2_issue_raw()
        end_only(lab)
        aux["a2_vm"] = e.vm_issued
    def tagcheck2(regs):
        e(f"v_xor_b32 v137, s98, v{regs[0]}")
        for r in regs[1:]:
            e(f"v_xor_b32 v138, s98, v{r}")
            e("v_or_b32 v137, v137, v138")
        e("v_cmp_ne_u32 vcc, 0, v137")
        e("s_cmp_eq_u64 vcc, 0")
    def aux2_finish():
        lab = only_wave(AXW2, "K1_A2F")
        e.raw(f"s_waitcnt vmcnt({min(63, e.vm_issued - aux['a2_vm'])})")
        tagged_retry(e, aux2_issue_raw, lambda: tagcheck2([129, 131, 133, 135]), "K1_A2", cnt="s63")
        e("v_mov_b32 v129, v130")
        e("v_mov_b32 v133, v134")
        e("v_lshlrev_b32 v136, 3, v0")
        e(f"v_add_u32 v136, {M_CS}, v136")
        e("ds_write_b64 v136, v[128:129]")
        e("ds_write_b64 v136, v[132:133] offset:512")
        e.raw("s_waitcnt lgkmcnt(0)")
        end_only(lab)
    def cs_base():
        e("v_lshrrev_b32 v46, 5, v0"); yield
        e("v_lshlrev_b32 v46, 4, v46"); yield
        e("s_lshl_b32 s56, s55, 7")
        e(f"s_add_u32 s56, s56, {M_CS}")
        e("v_add_u32 v46, s56, v46"); yield
    def cs_reads(tl, CSB):
        o = (tl >> 1)*256 + (tl & 1)*64
        aux[("cs", tl)] = [e(f"ds_read_b128 v[{CSB}:{CSB+3}], v46 offset:{o}"),
                           e(f"ds_read_b128 v[{CSB+4}:{CSB+7}], v46 offset:{o+32}"),
                           e(f"ds_read_b128 v[{CSB+8}:{CSB+11}], v46 offset:{o+512}"),
                           e(f"ds_read_b128 v[{CSB+12}:{CSB+15}], v46 offset:{o+544}")]
        yield

    def z_pass1():
        e.wait(aux["lane"]); yield
        for i in range(8):
            e(f"v_permlane16_swap_b32 v{AZ+i}, v{AZ+8+i}"); yield
        st = list(aux["st"])
        for g in range(4):
            b = 36 + (g & 1)*4
            e.wait(st[g]); yield
            for u in range(2):
                i = 2*g + u; mm = b + 2*u
                e(f"v_fma_f32 v{AZ+i}, -v{mm}, v{CSR}, v{AZ+i}"); yield
                e(f"v_fma_f32 v{AZ+8+i}, -v{mm}, v{CSI}, v{AZ+8+i}"); yield
            for u in range(2):
                i = 2*g + u; rr = b + 2*u + 1
                e(f"v_mul_f32 v{AZ+i}, v{AZ+i}, v{rr}"); yield
                e(f"v_mul_f32 v{AZ+8+i}, v{AZ+8+i}, v{rr}"); yield
            if g + 2 < 4:
                st.append(e(f"ds_read_b128 v[{b}:{b+3}], v34 offset:{(g+2)*16}")); yield
        pr_, pi_ = AZ, AZ + 8
        for i in range(1, 8):
            d = (44, 45) if (i & 1) else (ER, EI)
            yield from cfma_to(e, d[0], d[1], pr_, pi_, LR, LI, AZ+i, AZ+8+i)
            pr_, pi_ = d
        e(f"v_mul_f32 v36, v{CI}, v45"); yield
        e(f"v_mul_f32 v37, v{CI}, v44"); yield
        e(f"v_fma_f32 v{ER}, v{CR}, v44, -v36"); yield
        e(f"v_fma_f32 v{EI}, v{CR}, v45, v37"); yield
    def hier1():
        e(f"v_mov_b32 v1, v{ER}"); yield
        e(f"v_mov_b32 v2, v{ER}"); yield
        e(f"v_mov_b32 v3, v{EI}"); yield
        e(f"v_mov_b32 v4, v{EI}"); yield
        yield from csq(e, 7, 8, L8R, L8I, 34)
        e("v_permlane16_swap_b32 v1, v2"); yield
        e("v_permlane16_swap_b32 v3, v4"); yield
        yield from cfma_to(e, 5, 6, 1, 3, L8R, L8I, 2, 4)
        e("v_mov_b32 v28, v5"); yield
        e("v_mov_b32 v36, v5"); yield
        e("v_mov_b32 v29, v6"); yield
        e("v_mov_b32 v34, v6"); yield
        e("v_and_b32 v35, 15, v0"); yield
        e("s_lshl_b32 s56, s55, 4")
        e("v_add_u32 v35, s56, v35"); yield
        e("v_lshlrev_b32 v35, 3, v35"); yield
        e("v_permlane32_swap_b32 v28, v36"); yield
        e("v_permlane32_swap_b32 v29, v34"); yield
        e(f"v_add_u32 v35, {M_SEG}, v35"); yield
        yield from cfma_to(e, 5, 6, 28, 29, 7, 8, 36, 34)
        e("s_lshl_b32 s56, s54, 8")
        e("v_add_u32 v34, s56, v35"); yield
        e("v_mov_b32 v44, v5"); yield
        e("v_mov_b32 v45, v6"); yield
        e("ds_write_b64 v34, v[44:45]"); yield
    def hier2():
        tk = [e(f"ds_read_b64 v[{36+2*u}:{37+2*u}], v35 offset:{u*256}") for u in range(3)]
        yield
        yield from csq(e, 42, 43, 7, 8, 44)
        e.wait(tk); yield
        yield from cfma_to(e, 44, 45, 36, 37, 42, 43, 38, 39)
        yield from cfma_to(e, 2, 4, 44, 45, 42, 43, 40, 41)
        e("v_cndmask_b32 v2, v44, v2, s[40:41]"); yield
        e("v_cndmask_b32 v4, v45, v4, s[40:41]"); yield
        e("v_cndmask_b32 v36, 0, v36, s[40:41]"); yield
        e("v_cndmask_b32 v37, 0, v37, s[40:41]"); yield
        e("v_cndmask_b32 v36, v36, v2, s[42:43]"); yield
        e("v_cndmask_b32 v37, v37, v4, s[42:43]"); yield
        lab = e.label("K1_NOPUB")
        e("s_cmp_lg_u32 s54, 3")
        e(f"s_cbranch_scc1 {lab}")
        e.cond_begin()
        for _ in cfma_to(e, 38, 40, 36, 37, 42, 43, 5, 6): pass
        e("v_mov_b32 v39, s98"); e("v_mov_b32 v41, s98")
        e("v_and_b32 v34, 15, v0")
        e("v_add_u32 v34, s78, v34")
        e("v_lshlrev_b32 v34, 4, v34")
        e(f"s_mul_i32 s56, s52, {448*16}")
        e(f"s_add_u32 s56, s56, {WS_E}")
        e("s_mov_b64 s[58:59], exec")
        e("s_mov_b64 exec, 0xffff")
        e("buffer_store_dwordx4 v[38:41], v34, s[32:35], s56 offen sc1")
        e("s_mov_b64 exec, s[58:59]")
        e.cond_end()
        e.raw(f"{lab}:")
        yield
        yield from cfma_to(e, 38, 39, 36, 37, 7, 8, 28, 29)
        e("v_cndmask_b32 v36, v36, v38, s[46:47]"); yield
        e("v_cndmask_b32 v37, v37, v39, s[46:47]"); yield
        yield from cfma_to(e, 38, 39, 36, 37, L8R, L8I, 1, 3)
        e(f"v_cndmask_b32 v{PR}, v36, v38, s[44:45]"); yield
        e(f"v_cndmask_b32 v{PI}, v37, v39, s[44:45]"); yield
    def zscale():
        for i in range(0, 8, 2):
            for u in range(2):
                e(f"v_mul_f32 v{36+2*u}, v{CI}, v{AZ+8+i+u}"); yield
                e(f"v_mul_f32 v{37+2*u}, v{CI}, v{AZ+i+u}"); yield
            for u in range(2):
                e(f"v_fma_f32 v{AZ+i+u}, v{CR}, v{AZ+i+u}, -v{36+2*u}"); yield
                e(f"v_fma_f32 v{AZ+8+i+u}, v{CR}, v{AZ+8+i+u}, v{37+2*u}"); yield
    def gu_math(acc, CSB):
        for i in range(8):
            e(f"v_fma_f32 v{acc+i}, -v{M_}, v{CSB+i}, v{acc+i}"); yield
        for i in range(8):
            e(f"v_mul_f32 v{acc+i}, v{acc+i}, v{NLR}"); yield
        for i in range(8):
            e(f"v_exp_f32 v{acc+i}, v{acc+i}"); yield
            e(f"v_fma_f32 v{acc+8+i}, -v{M_}, v{CSB+8+i}, v{acc+8+i}"); yield
        for i in range(8):
            e(f"v_fma_f32 v{acc+i}, v{acc+i}, v{SD}, v{SD}"); yield
        for i in range(8):
            e(f"v_rcp_f32 v{acc+i}, v{acc+i}"); yield
        for i in range(8):
            e(f"v_mul_f32 v{acc+i}, v{acc+i}, v{acc+8+i}"); yield
        for p in range(4):
            e(f"v_cvt_pk_bf16_f32 v{acc+8+p}, v{acc+2*p}, v{acc+2*p+1}"); yield
    def gu_epi(tl, CSB):
        acc = AG[tl]
        e.wait(aux[("cs", tl)]); yield
        yield from gu_math(acc, CSB)
        e(f"s_add_u32 s56, s79, {((tl>>1)*4 + (tl&1))*1024}")
        e(f"buffer_store_dwordx4 v[{acc+8}:{acc+11}], v{VH}, s[32:35], s56 offen{STF}"); yield

    ebq = deque()
    def early_B_setup():
        e(f"v_lshrrev_b32 v{EBV}, 3, v0")
        e("s_lshl_b32 s57, s48, 3")
        e(f"v_add_u32 v{EBV}, s57, v{EBV}")
        e(f"v_mul_u32_u24 v{EBV}, 896, v{EBV}")
        e("v_and_b32 v11, 7, v0")
        e("v_bfe_u32 v12, v0, 4, 1")
        e("v_lshlrev_b32 v12, 2, v12")
        e("v_xor_b32 v11, v11, v12")
        e(f"v_lshl_add_u32 v{EBV}, v11, 4, v{EBV}")
        if os.environ.get("NOPF"):
            e("s_load_dwordx2 s[92:93], s[0:1], 96"); e.raw("s_waitcnt lgkmcnt(0)"); e.smem_out = False; e.lg_done = e.lg_issued
            e("s_and_b32 s93, s93, 0xffff")
        else:
            e("s_mov_b32 s92, s86"); e("s_and_b32 s93, s87, 0xffff")
        e(f"s_mov_b32 s94, {1792*448*2}"); e("s_mov_b32 s95, 0x20000")
        e("s_cmp_ge_u32 s53, 7")
        e("s_cselect_b32 s57, 7, 0")
        e("s_sub_u32 s57, s53, s57")
        e("s_and_b32 s70, s51, 3")
        e("s_mul_i32 s70, s70, 7")
        e("s_lshl_b32 s71, s57, 2")
        e("s_add_u32 s70, s70, s71")
        e("s_cmp_ge_u32 s70, 28")
        e("s_cselect_b32 s71, 28, 0")
        e("s_sub_u32 s70, s70, s71")
        e("s_lshl_b32 s71, s57, 7")
        e("s_lshl_b32 s69, s48, 10")
    def early_B_queue(t0, t1):
        def mk(t):
            def f():
                e(f"s_add_u32 m0, s69, {t*8192}")
                e(f"s_mul_i32 s68, s70, {64*896}")
                e("s_add_u32 s68, s68, s71")
                e(f"buffer_load_dwordx4 v{EBV}, s[92:95], s68 offen lds")
                e("s_add_u32 s70, s70, 1"); e("s_cmp_eq_u32 s70, 28"); e("s_cselect_b32 s70, 0, s70")
            return f
        for t in range(t0, t1): ebq.append(mk(t))
    def drain_eb(gen, every=18):
        k = 0
        for _ in gen:
            k += 1
            if k % every == 0 and ebq: ebq.popleft()()
    M_PF = 162304
    def k2_touch(k, slot):
        PFT = 139 if slot < 18 else 160
        assert slot >= 6
        lab = e.label("K1_PF")
        e(f"s_cmp_lg_u32 s48, {k & 7}")
        e(f"s_cbranch_scc1 {lab}")
        e.cond_begin()
        if k < 7:
            e("s_mul_i32 s61, s51, 448"); e(f"s_add_u32 s61, s61, {64*k}"); base = "s[86:87]"; lim = 12543
        elif k < 9:
            e("s_mul_i32 s61, s51, 112"); e(f"s_add_u32 s61, s61, {64*(k-7)}"); base = "s[88:89]"; lim = 3135
        else:
            e("s_mul_i32 s61, s51, 112"); e(f"s_add_u32 s61, s61, {64*(k-9)}"); base = "s[90:91]"; lim = 3135
        e(f"v_add_u32 v{PFT}, s61, v0")
        e(f"v_min_u32 v{PFT}, {lim}, v{PFT}")
        e(f"s_mov_b32 m0, {M_PF}")
        e(f"v_lshlrev_b32 v{PFT}, 7, v{PFT}")
        e(f"global_load_lds_dword v{PFT}, {base}")
        e.cond_end()
        e.raw(f"{lab}:")
    EL = 160
    def e_issue_raw():
        e("v_lshrrev_b32 v180, 4, v0")
        e("v_and_b32 v181, 15, v0")
        e("v_add_u32 v181, s78, v181")
        e("v_lshlrev_b32 v181, 4, v181")
        e("s_sub_u32 s63, s52, 1")
        e(f"s_mov_b32 s61, {WS_E}")
        for m in range(4):
            e(f"v_add_u32 v{176+m}, {4*m}, v180")
            e(f"v_min_u32 v{176+m}, s63, v{176+m}")
            e(f"v_mul_u32_u24 v{176+m}, {448*16}, v{176+m}")
            e(f"v_add_u32 v{176+m}, v{176+m}, v181")
            e(f"buffer_load_dwordx4 v[{EL+4*m}:{EL+4*m+3}], v{176+m}, s[32:35], s61 offen sc1")
    def e_issue():
        lab = e.label("K1_EI")
        e("s_cmp_eq_u32 s52, 0")
        e(f"s_cbranch_scc1 {lab}")
        e.cond_begin(); e_issue_raw(); e.cond_end()
        e.raw(f"{lab}:")
    def e_consts():
        yield from csq(e, 182, 183, L128R, L128I, 188)
        yield from cmul(e, 184, 185, 182, 183, L128R, L128I, 188)
        yield from csq(e, 186, 187, 182, 183, 188)
        e("v_lshrrev_b32 v190, 4, v0"); yield
        e("s_sub_u32 s63, s52, 1")
        e("v_sub_u32 v190, s63, v190"); yield
        e("v_and_b32 v191, 3, v190"); yield
        e("v_ashrrev_i32 v190, 2, v190"); yield
        e("v_mov_b32 v192, 1.0"); yield
        e("v_mov_b32 v193, 0"); yield
        for k, (rr, ii) in enumerate(((L128R, L128I), (182, 183), (184, 185))):
            e(f"v_cmp_eq_u32 vcc, {k+1}, v191"); yield
            e(f"v_cndmask_b32 v192, v192, v{rr}, vcc"); yield
            e(f"v_cndmask_b32 v193, v193, v{ii}, vcc"); yield
    def e_check(nafter):
        skip = e.label("K1_ESK"); ok = e.label("K1_EOK"); chk = e.label("K1_ECK")
        e("s_cmp_eq_u32 s52, 0")
        e(f"s_cbranch_scc1 {skip}")
        e.cond_begin()
        e.raw(f"s_waitcnt vmcnt({nafter})")
        e("s_mov_b32 s62, 0")
        e.raw(f"{chk}:")
        e(f"v_xor_b32 v44, s98, v{EL+1}")
        for r in (EL+3, EL+5, EL+7, EL+9, EL+11, EL+13, EL+15):
            e(f"v_xor_b32 v45, s98, v{r}")
            e("v_or_b32 v44, v44, v45")
        e("v_cmp_ne_u32 vcc, 0, v44")
        e("s_cmp_eq_u64 vcc, 0")
        e(f"s_cbranch_scc1 {ok}")
        e("s_add_u32 s62, s62, 1")
        e("s_cmp_ge_u32 s62, 100000")
        e(f"s_cbranch_scc1 {ok}")
        e_issue_raw()
        e.raw("s_waitcnt vmcnt(0)")
        e(f"s_branch {chk}")
        e.raw(f"{ok}:")
        e.cond_end()
        e.raw(f"{skip}:")
    def carry_and_pass2():
        lab0 = e.label("K1_NOCARRY")
        e("v_mov_b32 v44, 0"); e("v_mov_b32 v45, 0")
        e("s_cmp_eq_u32 s52, 0")
        e(f"s_cbranch_scc1 {lab0}")
        for m in range(4):
            er, ei = EL+4*m, EL+4*m+2
            e(f"v_cmp_le_i32 vcc, {m}, v190")
            e(f"v_fma_f32 v{er}, v186, v44, v{er}")
            e(f"v_fma_f32 v{ei}, v186, v45, v{ei}")
            e(f"v_fma_f32 v{er}, -v187, v45, v{er}")
            e(f"v_fma_f32 v{ei}, v187, v44, v{ei}")
            e(f"v_cndmask_b32 v44, v44, v{er}, vcc")
            e(f"v_cndmask_b32 v45, v45, v{ei}, vcc")
        e("v_mul_f32 v40, v193, v45")
        e("v_mul_f32 v41, v193, v44")
        e("v_fma_f32 v44, v192, v44, -v40")
        e("v_fma_f32 v45, v192, v45, v41")
        e("v_mov_b32 v40, v44"); e("v_mov_b32 v41, v45")
        e("v_permlane16_swap_b32 v44, v40"); e("v_permlane16_swap_b32 v45, v41")
        e("v_add_f32 v44, v44, v40"); e("v_add_f32 v45, v45, v41")
        e("v_mov_b32 v40, v44"); e("v_mov_b32 v41, v45")
        e("v_permlane32_swap_b32 v44, v40"); e("v_permlane32_swap_b32 v45, v41")
        e("v_add_f32 v44, v44, v40"); e("v_add_f32 v45, v45, v41")
        e.raw(f"{lab0}:")
        e(f"v_fma_f32 v{PR}, v{TR}, v44, v{PR}")
        e(f"v_fma_f32 v{PI}, v{TR}, v45, v{PI}")
        e(f"v_fma_f32 v{PR}, -v{TI}, v45, v{PR}")
        e(f"v_fma_f32 v{PI}, v{TI}, v44, v{PI}")
        pr_, pi_ = PR, PI
        for i in range(8):
            zr, zi = AZ + i, AZ + 8 + i
            e(f"v_fma_f32 v{zr}, v{LR}, v{pr_}, v{zr}")
            e(f"v_fma_f32 v{zi}, v{LR}, v{pi_}, v{zi}")
            e(f"v_fma_f32 v{zr}, -v{LI}, v{pi_}, v{zr}")
            e(f"v_fma_f32 v{zi}, v{LI}, v{pr_}, v{zi}")
            pr_, pi_ = zr, zi
        for p in range(4):
            e(f"v_cvt_pk_bf16_f32 v{36+p}, v{AZ+2*p}, v{AZ+2*p+1}")
            e(f"v_cvt_pk_bf16_f32 v{40+p}, -v{AZ+8+2*p}, -v{AZ+8+2*p+1}")
        e("ds_write_b128 v1, v[36:39]")
        e("ds_write_b128 v1, v[40:43] offset:1024")
        e.wait_all(vm=False)
        tk = [e("ds_read_b64_tr_b16 v[36:37], v2"), e("ds_read_b64_tr_b16 v[38:39], v2 offset:256"),
              e("ds_read_b64_tr_b16 v[40:41], v2 offset:1024"), e("ds_read_b64_tr_b16 v[42:43], v2 offset:1280")]
        e.wait(tk)
        e(f"buffer_store_dwordx4 v[36:39], v3, s[32:35], s76 offen{STF}")
        e("s_add_u32 s76, s76, 4096")
        e(f"buffer_store_dwordx4 v[40:43], v3, s[32:35], s76 offen{STF}")
    def tail_addr():
        e("s_lshl_b32 s56, s48, 11")
        e(f"s_add_u32 s56, s56, {M_TR}")
        e("v_and_b32 v1, 15, v0"); yield
        e("v_lshlrev_b32 v1, 6, v1"); yield
        e("v_lshrrev_b32 v2, 4, v0"); yield
        e("v_lshl_add_u32 v1, v2, 4, v1"); yield
        e("v_add_u32 v1, s56, v1"); yield
        e("v_lshrrev_b32 v2, 5, v0"); yield
        e("v_bfe_u32 v3, v0, 2, 2"); yield
        e("v_lshl_add_u32 v2, v2, 3, v3"); yield
        e("v_lshlrev_b32 v2, 6, v2"); yield
        e("v_bfe_u32 v3, v0, 4, 1"); yield
        e("v_lshl_add_u32 v2, v3, 5, v2"); yield
        e("v_and_b32 v3, 3, v0"); yield
        e("v_lshl_add_u32 v2, v3, 3, v2"); yield
        e("v_add_u32 v2, s56, v2"); yield
        e("v_lshlrev_b32 v3, 4, v0"); yield
        e("s_lshl_b32 s56, s53, 1")
        e("s_add_u32 s56, s56, s55")
        e("s_lshr_b32 s57, s56, 2")
        e("s_lshl_b32 s57, s57, 3")
        e("s_and_b32 s56, s56, 3")
        e("s_add_u32 s56, s56, s57")
        e("s_lshl_b32 s57, s52, 2")
        e("s_add_u32 s57, s57, s54")
        e("s_mul_i32 s57, s57, 56")
        e("s_add_u32 s56, s56, s57")
        e("s_lshl_b32 s56, s56, 10")
        e(f"s_add_u32 s76, s56, {WS_hF}")
        yield

    def cost(i):
        if i.cls == "valu": return 2.0 if i.op in TRANS else 1.0
        if i.cls in ("ds", "vmem"): return 0.5
        return 0.1
    class Fill:
        def __init__(self): self.q = []; self.cur = None; self.barrier_at = None
        def add(self, *items): self.q += list(items)
        def run(self, budget, tick):
            spent = 0.0
            while spent < budget:
                if self.cur is None:
                    if not self.q: return
                    it = self.q[0]
                    if it == "barrier":
                        if self.barrier_at is None: self.barrier_at = tick
                        if tick <= self.barrier_at: return
                        self.barrier_at = None; self.q.pop(0); continue
                    if it == "aux2gate":
                        if "a2_tick" not in aux or tick <= aux["a2_tick"]: return
                        self.q.pop(0); continue
                    if it == "step17":
                        if tick < 13: return
                        self.q.pop(0); continue
                    self.q.pop(0); self.cur = it() if callable(it) else it
                n0 = len(e.ins)
                try: next(self.cur)
                except StopIteration: self.cur = None
                spent += sum(cost(i) for i in e.ins[n0:])
        def flush(self):
            while self.cur is not None or self.q:
                if self.cur is None:
                    it = self.q.pop(0)
                    if it == "step17": continue
                    if it == "barrier" or it == "aux2gate":
                        e.wait_all(vm=False); e("s_barrier"); self.barrier_at = None
                        continue
                    self.cur = it() if callable(it) else it
                for _ in self.cur: pass
                self.cur = None
    F = Fill()
    F.add(params)
    slot = {"A": 0, "B": 0}
    last = None
    for (ph, ks, si, did) in main_stream():
        if (ph, ks) != last and (ph, ks) in STAMPS: pr.stamp()
        last = (ph, ks)
        n = slot[ph]; slot[ph] += 1
        tk = nbar[0]
        if NOEPI:
            if ph == "A" and not did: F.run(BUDGET_A, tk)
            continue
        if ph == "A":
            if COOP and n == CT2: coop_touch(3, 4, 0, False, 226)
            if COOP and n == CT3: coop_touch(0, 4, 128, True, 226)
            if COOP and n == CT4: coop_touch(4, 3, 128, True, 226)
            if n == RB_SLOT and RB_LATE: rowbatch_compute()
            if n == PUB_SLOT: rowbatch_publish()
            if n == AUX_LOAD: F.flush(); aux1_issue()
            if n == AUX_FIN: aux1_finish(); F.add("barrier", aux1_read)
            if not did: F.run(BUDGET_A, tk)
        else:
            if n == 0:
                F.flush()
                if ZFIRST:
                    drain(z_pass1()); drain(hier1())
                    e.wait_all(vm=False); e("s_barrier")
                    drain(hier2())
                    F.add(zscale, cs_base, tail_addr, "aux2gate",
                          lambda: cs_reads(0, 128), lambda: cs_reads(1, 144), lambda: gu_epi(0, 128),
                          lambda: cs_reads(2, 128), lambda: gu_epi(1, 144), lambda: cs_reads(3, 144), "step17", e_consts)
                else:
                  F.add(z_pass1, hier1, "barrier", hier2, zscale, cs_base, "aux2gate",
                      lambda: cs_reads(0, 128), lambda: cs_reads(1, 144), lambda: gu_epi(0, 128),
                      lambda: cs_reads(2, 128), lambda: gu_epi(1, 144), lambda: cs_reads(3, 144), tail_addr)
            if fused and G.EARLY_B and n == 1:
                early_B_setup(); early_B_queue(0, G.EARLY_B1)
            if fused and n >= EB_SLOT and (n - EB_SLOT) % EB_GAP == 0 and ebq and (n & 1) == 0: ebq.popleft()()
            if n == AUX2_SLOT: aux2_issue()
            if n == AUX2_FIN: aux2_finish(); aux["a2_tick"] = tk
            if PF_SLOT >= 0 and n >= PF_SLOT and (n - PF_SLOT) % PF_GAP == 0 and (n - PF_SLOT) // PF_GAP < 11: k2_touch((n - PF_SLOT) // PF_GAP, n)
            if not did: F.run(BUDGET_B0 if n < BSW else BUDGET_B, tk)
    if NOEPI:
        pr.dump(32, 48)
        e.raw("K1_END:")
        e("s_endpgm")
        gen_helper(e)
        return 256
    e_issue(); aux["e_vm"] = e.vm_issued
    if fused and G.EARLY_B > G.EARLY_B1:
        while ebq: ebq.popleft()()
        e.wait_all(vm=False); e("s_barrier")
        early_B_queue(G.EARLY_B1, G.EARLY_B)
    if TAILST2: pr.stamp()
    F.flush()
    if TAILST2: pr.stamp()
    if not ZFIRST and not ECLATE: drain_eb(e_consts(), 12)
    drain_eb(gu_epi(2, 128), 10)
    if TAILST2: pr.stamp()
    drain_eb(gu_epi(3, 144), 10)
    while ebq: ebq.popleft()()
    if not ZFIRST and ECLATE: drain(e_consts())
    if TAILST: pr.stamp()
    e_check(e.vm_issued - aux["e_vm"])
    if TAILST2: pr.stamp()
    carry_and_pass2()
    pr.stamp()
    pr.dump(32, 48)
    if fused:
        if G.PROFILE: e("s_mov_b64 exec, -1")
        G.gen_k2(e, fused=True)
    e.raw("K1_END:")
    e("s_endpgm")
    gen_helper(e)
    return 256
```

```python
import sys, os
sys.path.insert(0, "dev")
from asmlib import *
import gen as G
from gen import *
from collections import deque

def cmul(e, dr, di, ar, ai, br, bi, t):
    e(f"v_mul_f32 v{t}, v{ai}, v{bi}"); yield
    e(f"v_mul_f32 v{t+1}, v{ai}, v{br}"); yield
    e(f"v_fma_f32 v{t}, v{ar}, v{br}, -v{t}"); yield
    e(f"v_fma_f32 v{di}, v{ar}, v{bi}, v{t+1}"); yield
    e(f"v_mov_b32 v{dr}, v{t}"); yield
def csq(e, dr, di, ar, ai, t):
    e(f"v_mul_f32 v{t}, v{ai}, v{ai}"); yield
    e(f"v_mul_f32 v{t+1}, v{ar}, v{ai}"); yield
    e(f"v_fma_f32 v{dr}, v{ar}, v{ar}, -v{t}"); yield
    e(f"v_add_f32 v{di}, v{t+1}, v{t+1}"); yield
def cfma(e, hr, hi, lr, li, br, bi, t):
    e(f"v_fma_f32 v{t}, v{lr}, v{hr}, v{br}"); yield
    e(f"v_fma_f32 v{t+1}, v{lr}, v{hi}, v{bi}"); yield
    e(f"v_fma_f32 v{t}, -v{li}, v{hi}, v{t}"); yield
    e(f"v_fma_f32 v{hi}, v{li}, v{hr}, v{t+1}"); yield
    e(f"v_mov_b32 v{hr}, v{t}"); yield
def cfma_to(e, dr, di, hr, hi, lr, li, br, bi):
    e(f"v_fma_f32 v{dr}, v{lr}, v{hr}, v{br}"); yield
    e(f"v_fma_f32 v{di}, v{lr}, v{hi}, v{bi}"); yield
    e(f"v_fma_f32 v{dr}, -v{li}, v{hi}, v{dr}"); yield
    e(f"v_fma_f32 v{di}, v{li}, v{hr}, v{di}"); yield

def gen_helper(e):
    e.raw("K1_HELPER:")
    e.lg_issued = e.lg_done = 0; e.vm_issued = e.vm_done = 0
    if os.environ.get("CODEPF", "0") == "1":
        lab = e.label("K1H_CP")
        e("s_cmp_lg_u32 s48, 7")
        e(f"s_cbranch_scc1 {lab}")
        e("v_lshlrev_b32 v10, 7, v0")
        for k in range(4):
            e("v_min_u32 v11, K1_CODE_LAST-K1_CODE_FIRST, v10")
            e(f"global_load_dword v{20+k}, v11, s[84:85]")
            if k < 3: e("v_add_u32 v10, 8192, v10")
        e.raw(f"{lab}:")
    if os.environ.get("TLBW", "0") == "1":
        lab = e.label("K1H_TW")
        e("s_cmp_lg_u32 s48, 6")
        e(f"s_cbranch_scc1 {lab}")
        tl = e("s_load_dwordx2 s[82:83], s[0:1], 104")
        e.raw("s_waitcnt lgkmcnt(0)"); e.smem_out = False
        e("v_lshlrev_b32 v10, 16, v0")
        e(f"v_min_u32 v11, {2048*448*4 - 4}, v10")
        e("global_load_dword v20, v11, s[82:83]")
        for k in range(3):
            e(f"v_min_u32 v11, {WS_END - 4}, v10")
            e(f"global_load_dword v{21+k}, v11, s[18:19]")
            if k < 2: e(f"v_add_u32 v10, {64*65536}, v10")
        e.raw(f"{lab}:")
    HW = os.environ.get("HWARM", "1") == "1"
    e("s_cmp_ge_u32 s2, 28")
    e("s_cbranch_scc1 K1H_WARM" if HW else "s_cbranch_scc1 K1_END")
    srd(e, 32, 18, WS_END if not G.PROFILE else (16 << 20))
    pr = G.Prof(e, 0); pr.stamp()
    srd(e, 36, 16, 256)
    e("s_cmp_ge_u32 s2, 14")
    e("s_cselect_b32 s28, s14, s12")
    e("s_cselect_b32 s29, s15, s13")
    e("s_cselect_b32 s54, 14, 0")
    e("s_cselect_b32 s56, 1792, 0")
    e("s_and_b32 s29, s29, 0xffff")
    e("s_sub_u32 s54, s2, s54")
    e(f"s_mov_b32 s30, {448*1792*2}")
    e("s_mov_b32 s31, 0x20000")
    e("v_lshrrev_b32 v4, 4, v0")
    e("s_movk_i32 s50, 3584")
    e("v_mul_lo_u32 v4, s50, v4")
    e("v_and_b32 v5, 15, v0")
    e("v_lshl_add_u32 v4, v5, 4, v4")
    e(f"s_mul_i32 s55, s48, {56*3584}")
    e("s_lshl_b32 s57, s54, 8")
    e("s_add_u32 s55, s55, s57")
    nonce_cas(e, 12)
    if os.environ.get("HDELAY", "0") == "1":
        nonce_publish(e, 12, 32768)
        e("s_barrier")
    WL = 72
    U = 128
    wt = []
    for n in range(14):
        e(f"s_add_u32 s57, s55, {n*4*3584}")
        wt.append(e(f"buffer_load_dwordx4 v[{WL+4*n}:{WL+4*n+3}], v4, s[28:31], s57 offen"))
    A = 16
    for n in range(14):
        e.wait(wt[n])
        if n == 0:
            pr.stamp()
            if os.environ.get("HDELAY", "0") != "1": nonce_publish(e, 12, 32768)
        for d in range(4):
            src = WL + 4*n + d
            if n == 0:
                e(f"v_lshlrev_b32 v{A+2*d}, 16, v{src}")
                e(f"v_and_b32 v{A+2*d+1}, 0xffff0000, v{src}")
            else:
                e(f"v_lshlrev_b32 v6, 16, v{src}")
                e(f"v_and_b32 v7, 0xffff0000, v{src}")
                e(f"v_add_f32 v{A+2*d}, v{A+2*d}, v6")
                e(f"v_add_f32 v{A+2*d+1}, v{A+2*d+1}, v7")
    pr.stamp()
    e("v_lshrrev_b32 v6, 4, v0")
    e("s_lshl_b32 s57, s48, 2")
    e("v_add_u32 v6, s57, v6")
    e("v_lshlrev_b32 v6, 9, v6")
    e("v_lshl_add_u32 v6, v5, 5, v6")
    e(f"ds_write_b128 v6, v[{A}:{A+3}]")
    e(f"ds_write_b128 v6, v[{A+4}:{A+7}] offset:16")
    e.wait_all(vm=False)
    e("s_barrier")
    e("s_cmp_ge_u32 s48, 2")
    e("s_cbranch_scc1 K1H_WARM" if HW else "s_cbranch_scc1 K1_END")
    nonce_read(e, 13, 32768)
    e("s_lshl_b32 s57, s48, 6")
    e("v_add_u32 v6, s57, v0")
    e("v_lshlrev_b32 v7, 2, v6")
    for p in range(32): e(f"ds_read_b32 v{U+p}, v7 offset:{p*512}")
    e.wait_all(vm=False)
    for st in (16, 8, 4, 2, 1):
        for p in range(st): e(f"v_add_f32 v{U+p}, v{U+p}, v{U+p+st}")
    e("s_lshl_b32 s57, s54, 7")
    e("s_add_u32 s57, s57, s56")
    e("v_add_u32 v6, s57, v6")
    e("v_lshlrev_b32 v6, 3, v6")
    e(f"v_add_u32 v6, {WS_CSW}, v6")
    e(f"v_mov_b32 v{U+1}, s98")
    e(f"buffer_store_dwordx2 v[{U}:{U+1}], v6, s[32:35], 0 offen sc1")
    pr.stamp()
    pr.dump(32, 48)
    if HW:
        if G.PROFILE: e("s_mov_b64 exec, -1")
        e.raw("K1H_WARM:")
        e("s_lshl_b32 s49, s2, 3"); e("s_add_u32 s49, s49, s48")
        e("s_mul_i32 s50, s49, 49")
        e("v_min_u32 v6, 48, v0")
        e("v_add_u32 v6, s50, v6"); e("v_lshlrev_b32 v6, 7, v6")
        e("global_load_dword v7, v6, s[86:87]")
        e("s_mul_i32 s50, s49, 13")
        e("v_and_b32 v6, 15, v0"); e("v_min_u32 v6, 12, v6")
        e("v_add_u32 v6, s50, v6"); e("v_min_u32 v6, 3135, v6"); e("v_lshlrev_b32 v6, 7, v6")
        e("global_load_dword v8, v6, s[88:89]")
        e("global_load_dword v9, v6, s[90:91]")
        e("s_waitcnt vmcnt(0)")
    e.raw("K1_CODE_LAST:")
    e("s_endpgm")

NW = int(os.environ.get("NW", "0"))
def nonce_cas(e, v, srd="s[36:39]"):
    lab = e.label("K1_NC")
    e(f"v_mov_b32 v{v+2}, 0")
    e(f"s_cmp_lg_u32 s48, {NW}")
    e(f"s_cbranch_scc1 {lab}")
    e.cond_begin()
    e.raw("s_memrealtime s[100:101]")
    e.raw("s_waitcnt lgkmcnt(0)")
    e("s_or_b32 s99, s100, 1")
    e(f"v_mov_b32 v{v}, s99")
    e(f"v_mov_b32 v{v+1}, 0")
    e("s_mov_b64 s[58:59], exec")
    e("s_mov_b64 exec, 1")
    e(f"buffer_atomic_cmpswap v[{v}:{v+1}], v{v+2}, {srd}, 0 offen sc0")
    e("s_mov_b64 exec, s[58:59]")
    e.cond_end()
    e.raw(f"{lab}:")
    e.vm_at_cas = e.vm_issued
def nonce_publish(e, v, lds, srd="s[36:39]"):
    lab = e.label("K1_NP")
    e(f"s_cmp_lg_u32 s48, {NW}")
    e(f"s_cbranch_scc1 {lab}")
    e.cond_begin()
    e.raw(f"s_waitcnt vmcnt({min(63, e.vm_issued - e.vm_at_cas)})")
    e(f"v_readfirstlane_b32 s100, v{v}")
    e("s_cmp_eq_u32 s100, 0")
    e("s_cselect_b32 s100, s99, s100")
    e(f"v_mov_b32 v{v}, s100")
    e(f"v_mov_b32 v{v+1}, {lds}")
    e(f"ds_write_b32 v{v+1}, v{v}")
    e.raw("s_waitcnt lgkmcnt(0)")
    e.cond_end()
    e.raw(f"{lab}:")
def nonce_read(e, v, lds):
    e(f"v_mov_b32 v{v}, {lds}")
    t = e(f"ds_read_b32 v{v}, v{v}")
    e.wait(t)
    e(f"v_readfirstlane_b32 s98, v{v}")

def tagged_retry(e, issue, check, name, maxit=100000, cnt="s61"):
    ok = e.label(name + "_OK"); top = e.label(name + "_RT")
    check()
    e(f"s_cbranch_scc1 {ok}")
    e.cond_begin()
    e(f"s_mov_b32 {cnt}, 0")
    e.raw(f"{top}:")
    issue()
    e.raw("s_waitcnt vmcnt(0)")
    check()
    e(f"s_cbranch_scc1 {ok}")
    e(f"s_add_u32 {cnt}, {cnt}, 1")
    e(f"s_cmp_lt_u32 {cnt}, {maxit}")
    e(f"s_cbranch_scc1 {top}")
    e.cond_end()
    e.raw(f"{ok}:")
```

```python
import sys
sys.path.insert(0, "dev")
from asmlib import *

NAME = "recurrent_scan__ssm_conv_s5__glu_gated_glu__prompt"
WS_HF   = 0
WS_hF   = 64*112*1024
WS_STAT = WS_hF + 64*56*1024
WS_CSW  = WS_STAT + 2048*16
WS_CSB  = WS_CSW + 3584*8
WS_E    = WS_CSB + 896*8
WS_DONE = WS_E + 16*448*16
WS_END  = WS_DONE + 16*128
LOG2E = 1.4426950408889634
import struct, os
def f32(x): return "0x%08x" % struct.unpack("<I", struct.pack("<f", x))[0]

def srd(e, s, ptr, nbytes):
    e(f"s_mov_b32 s{s}, s{ptr}")
    e(f"s_and_b32 s{s+1}, s{ptr+1}, 0xffff")
    e(f"s_mov_b32 s{s+2}, {nbytes}")
    e(f"s_mov_b32 s{s+3}, 0x20000")

def bf16_round_pair(e, dst_lo, dst_hi, a, b, tmp):
    e(f"v_cvt_pk_bf16_f32 v{tmp}, v{a}, v{b}")
    yield
    e(f"v_lshlrev_b32 v{dst_lo}, 16, v{tmp}")
    yield
    e(f"v_and_b32 v{dst_hi}, 0xffff0000, v{tmp}")
    yield

PROFILE = False
WS_PROF = 12 << 20
class Prof:
    def __init__(self, e, kern): self.e = e; self.k = kern; self.n = 0
    def stamp(self):
        if not PROFILE: return
        e = self.e
        import os
        e.raw("s_memtime s[96:97]" if os.environ.get("CLK") == "cyc" else "s_memrealtime s[96:97]")
        e.raw("s_waitcnt lgkmcnt(0)"); e.lg_done = e.lg_issued
        e.raw(f"s_mov_b32 s{80+self.n}, s96"); self.n += 1
        assert self.n <= ((6 if not os.environ.get('NOPF') else 12) if self.k == 0 else 12)
    def dump(self, srd_ws, wave_s):
        if not PROFILE: return
        e = self.e
        e(f"s_lshl_b32 s96, s2, 3"); e(f"s_add_u32 s96, s96, s{wave_s}"); e("s_lshl_b32 s96, s96, 6")
        e(f"s_add_u32 s96, s96, {WS_PROF + self.k*256*8*64}")
        for i in range(16):
            e(f"v_mov_b32 v{200+i}, s{80+i}" if i < self.n else f"v_mov_b32 v{200+i}, 0")
        e("v_mov_b32 v216, 0")
        e("s_mov_b64 exec, 1")
        for q in range(4):
            e(f"buffer_store_dwordx4 v[{200+4*q}:{203+4*q}], v216, s[{srd_ws}:{srd_ws+3}], s96 offen offset:{16*q}")
        e("s_waitcnt vmcnt(0)")

def pull(gen, n):
    if gen is None: return None
    for _ in range(n):
        try: next(gen)
        except StopIteration: return None
    return gen
def drain(gen):
    if gen is None: return
    for _ in gen: pass

K2_R = 9
K2_STAGE = 16384
K2RA = int(os.environ.get("K2RA", "5"))
EARLY_B = int(os.environ.get("EARLY_B", "12"))
EARLY_B1 = int(os.environ.get("EARLY_B1", "9"))
def gen_k2(e, fused=False):
    global K2_R
    RA = K2RA if fused else K2_R
    RB = (20 - RA) if fused else K2_R
    if not fused: RA, RB = 9, 9
    def baseB(t): return (t % RB) * 8192
    def baseA(t): return RB * 8192 + (t % RA) * 8192
    if not fused:
        e.raw("k2_kernel:")
        e("s_cmp_ge_u32 s2, 224")
        e("s_cbranch_scc1 K2_END")
    else:
        e("s_setprio 0")
        e("s_lshl_b32 s76, s52, 7")
        e(f"s_add_u32 s76, s76, {WS_DONE}")
        e("s_lshl_b32 s79, s53, 2")
        e("s_and_b32 s71, s51, 3")
        e("s_cmp_ge_u32 s53, 7")
        e("s_cselect_b32 s49, 1, 0")
        e("s_cselect_b32 s50, 7, 0")
        e("s_sub_u32 s50, s53, s50")
        e("s_lshl_b32 s51, s52, 1")
        e("s_add_u32 s49, s49, s51")
        e("s_mov_b32 s72, s32"); e("s_mov_b32 s73, s33"); e("s_mov_b32 s74, s34"); e("s_mov_b32 s75, s35")
    e("s_load_dwordx2 s[4:5], s[0:1], 0")
    e("s_load_dwordx2 s[6:7], s[0:1], 40")
    e("s_load_dwordx2 s[8:9], s[0:1], 48")
    e("s_load_dwordx2 s[10:11], s[0:1], 64")
    e("s_load_dwordx2 s[12:13], s[0:1], 96")
    e("s_load_dwordx2 s[14:15], s[0:1], 104")
    t = e("s_load_dwordx2 s[16:17], s[0:1], 120")
    if not fused:
        e("v_lshrrev_b32 v1, 6, v0")
        e("v_and_b32 v0, 63, v0")
        e("v_readfirstlane_b32 s48, v1")
        e("s_and_b32 s49, s2, 7")
        e("s_lshl_b32 s49, s49, 2")
        e("s_lshr_b32 s50, s2, 3")
        e("s_and_b32 s51, s50, 3")
        e("s_mov_b32 s71, s51")
        e("s_add_u32 s49, s49, s51")
        e("s_lshr_b32 s50, s50, 2")
    e.wait(t)
    srd(e, 20, 4, 2048*448*2)
    srd(e, 24, 6, 448*448*2)
    srd(e, 28, 8, 448*448*2)
    srd(e, 32, 10, 448*2)
    srd(e, 36, 12, 1792*448*2)
    srd(e, 40, 14, 2048*448*4)
    srd(e, 44, 16, WS_END if not PROFILE else (16 << 20))
    if fused:
        e.raw("s_waitcnt vmcnt(2) lgkmcnt(0)")
        e("s_barrier")
        lab = e.label("F_NOADD")
        e("s_cmp_lg_u32 s48, 0")
        e(f"s_cbranch_scc1 {lab}")
        e("v_mov_b32 v2, s79")
        e("v_mov_b32 v3, s98")
        e("s_mov_b64 exec, 1")
        e("buffer_store_dword v3, v2, s[72:75], s76 offen sc1")
        e("s_mov_b64 exec, -1")
        e.raw(f"{lab}:")
        e.lg_issued = e.lg_done = 0; e.vm_issued = e.vm_done = 0
    pr = Prof(e, 1); pr.stamp()
    e("s_cmp_ge_u32 s48, 4")
    e("s_cbranch_scc1 K2_LOADER")
    e("s_and_b32 s52, s48, 1")
    e("s_lshr_b32 s53, s48, 1")
    e("v_and_b32 v1, 31, v0")
    e("v_lshrrev_b32 v2, 5, v0")
    e("v_and_b32 v3, 15, v0")
    e("v_lshrrev_b32 v4, 4, v0")
    e("s_lshl_b32 s54, s49, 6")
    e("s_lshl_b32 s55, s52, 5")
    e("s_add_u32 s54, s54, s55")
    e("v_add_u32 v5, s54, v1")
    e("s_lshl_b32 s55, s50, 6")
    e("s_lshl_b32 s56, s53, 5")
    e("s_add_u32 s55, s55, s56")
    e("v_lshlrev_b32 v6, 2, v2")
    e("v_add_u32 v6, s55, v6")
    e("s_movk_i32 s57, 896")
    e("v_mul_lo_u32 v7, s57, v5")
    e("v_lshlrev_b32 v8, 1, v6")
    e("v_add_u32 v7, v7, v8")
    e("v_lshlrev_b32 v9, 4, v5")
    e(f"v_add_u32 v9, {WS_STAT}, v9")
    e("v_lshlrev_b32 v10, 1, v7")
    XR, DK, ST = 16, 24, 192
    toks = []
    for a in range(4): toks.append(e(f"buffer_load_dwordx2 v[{XR+2*a}:{XR+2*a+1}], v7, s[20:23], 0 offen offset:{16*a}"))
    for a in range(4): toks.append(e(f"buffer_load_dwordx2 v[{DK+2*a}:{DK+2*a+1}], v8, s[32:35], 0 offen offset:{16*a}"))
    toks.append(e(f"buffer_load_dwordx4 v[{ST}:{ST+3}], v9, s[44:47], 0 offen" + (" sc1" if fused else "")))
    epi_toks = toks
    e("s_lshl_b32 s57, s52, 12")
    e("v_lshlrev_b32 v11, 4, v0")
    e("v_add_u32 v11, s57, v11")
    e("v_lshrrev_b32 v13, 2, v3")
    e("v_lshl_add_u32 v13, v2, 2, v13")
    e("v_lshlrev_b32 v12, 7, v13")
    e("v_and_b32 v13, 1, v4")
    e("s_lshl_b32 s57, s53, 1")
    e("v_add_u32 v13, s57, v13")
    e("v_lshrrev_b32 v14, 3, v3")
    e("v_lshlrev_b32 v14, 1, v14")
    e("v_xor_b32 v13, v13, v14")
    e("v_lshl_add_u32 v12, v13, 5, v12")
    e("v_and_b32 v13, 3, v3")
    e("v_lshl_add_u32 v12, v13, 3, v12")
    e("s_lshl_b32 s57, s53, 5")
    e("v_add_u32 v13, s57, v1")
    e("v_lshlrev_b32 v13, 7, v13")
    e("v_lshrrev_b32 v14, 1, v1")
    e("v_and_b32 v14, 7, v14")
    e("v_xor_b32 v14, v14, v2")
    e("v_lshl_add_u32 v13, v14, 4, v13")
    PH, PW, PC = 11, 12, 13
    TH, TW = 14, 15
    ACCO, ACCY = 64, 80
    FR = 96
    XF, SK, G = 34, 160, 176
    T0 = 50
    def hfrag(set_, kk): return FR + set_*32 + kk*8
    def wfrag(set_, kk): return FR + set_*32 + kk*8 + 4

    def pre_epi():
        e.wait(epi_toks)
        yield
        e(f"v_rcp_f32 v{T0}, v{ST+2}")
        yield
        for p in range(8):
            xa, xb = XF+2*p, XF+2*p+1
            e(f"v_lshlrev_b32 v{xa}, 16, v{XR+p}"); yield
            e(f"v_and_b32 v{xb}, 0xffff0000, v{XR+p}"); yield
            e(f"v_sub_f32 v{T0+1}, v{xa}, v{ST}"); yield
            e(f"v_sub_f32 v{T0+2}, v{xb}, v{ST}"); yield
            yield from bf16_round_pair(e, T0+1, T0+2, T0+1, T0+2, T0+3)
            e(f"v_mul_f32 v{T0+1}, v{T0+1}, v{T0}"); yield
            e(f"v_mul_f32 v{T0+2}, v{T0+2}, v{T0}"); yield
            yield from bf16_round_pair(e, T0+1, T0+2, T0+1, T0+2, T0+3)
            e(f"v_lshlrev_b32 v{T0+4}, 16, v{DK+p}"); yield
            e(f"v_and_b32 v{T0+5}, 0xffff0000, v{DK+p}"); yield
            e(f"v_mul_f32 v{T0+1}, v{T0+1}, v{T0+4}"); yield
            e(f"v_mul_f32 v{T0+2}, v{T0+2}, v{T0+5}"); yield
            yield from bf16_round_pair(e, SK+2*p, SK+2*p+1, T0+1, T0+2, T0+3)
    def silu_epi():
        for p in range(8):
            a, b = T0+1, T0+2
            yield from bf16_round_pair(e, a, b, ACCO+2*p, ACCO+2*p+1, T0+3)
            e(f"v_mul_f32 v{T0+4}, {f32(-LOG2E)}, v{a}"); yield
            e(f"v_mul_f32 v{T0+5}, {f32(-LOG2E)}, v{b}"); yield
            e(f"v_exp_f32 v{T0+4}, v{T0+4}"); yield
            e(f"v_exp_f32 v{T0+5}, v{T0+5}"); yield
            e(f"v_add_f32 v{T0+4}, 1.0, v{T0+4}"); yield
            e(f"v_add_f32 v{T0+5}, 1.0, v{T0+5}"); yield
            e(f"v_rcp_f32 v{T0+4}, v{T0+4}"); yield
            e(f"v_rcp_f32 v{T0+5}, v{T0+5}"); yield
            e(f"v_mul_f32 v{a}, v{a}, v{T0+4}"); yield
            e(f"v_mul_f32 v{b}, v{b}, v{T0+5}"); yield
            yield from bf16_round_pair(e, G+2*p, G+2*p+1, a, b, T0+3)

    NST = 42
    REGB = fused and os.environ.get("REGB", "0") == "1"
    NREG = int(os.environ.get("NREG", "0")) if fused else 0
    HYB = fused and NREG > 0 and not REGB
    AFL = " sc1" if (fused and os.environ.get("ASC1", "0") == "1") else ""
    def cons_poll_setup():
        e("v_and_b32 v58, 15, v0")
        e("v_min_u32 v58, 13, v58")
        e("v_lshlrev_b32 v58, 2, v58")
    def cons_poll(off):
        top = e.label("F_POLL"); ok = e.label("F_POLLOK")
        c = "s80" if not PROFILE else "s95"
        e(f"s_mov_b32 {c}, 0")
        e.raw(f"{top}:")
        e(f"buffer_load_dword v59, v58, s[44:47], s76 offen offset:{off} sc1")
        e.raw("s_waitcnt vmcnt(0)")
        e("v_cmp_ne_u32 vcc, s98, v59")
        e("s_cmp_eq_u64 vcc, 0")
        e(f"s_cbranch_scc1 {ok}")
        e(f"s_add_u32 {c}, {c}, 1")
        e(f"s_cmp_lt_u32 {c}, 200000")
        e(f"s_cbranch_scc1 {top}")
        e.raw(f"{ok}:")
        e.vm_done = e.vm_issued
    tokA = {}
    if REGB:
        e("v_lshlrev_b32 v61, 4, v0")
        e("s_lshl_b32 s58, s49, 1")
        e("s_add_u32 s58, s58, s52")
        e("s_lshl_b32 s59, s53, 1")
        e("s_mul_i32 s56, s58, 112"); e("s_add_u32 s56, s56, s59"); e("s_lshl_b32 s56, s56, 10")
        e("s_mul_i32 s57, s58, 56"); e("s_add_u32 s57, s57, s59"); e("s_lshl_b32 s57, s57, 10"); e(f"s_add_u32 s57, s57, {WS_hF}")
        e("s_lshl_b32 s60, s52, 2"); e("s_add_u32 s60, s60, s59"); e("s_lshl_b32 s60, s60, 10")
        e("s_mul_i32 s65, s71, 7"); e("s_lshl_b32 s68, s50, 2"); e("s_add_u32 s65, s65, s68")
        e("s_cmp_ge_u32 s65, 28"); e("s_cselect_b32 s68, 28, 0"); e("s_sub_u32 s65, s65, s68")
        e("s_lshl_b32 s66, s71, 1"); e("s_add_u32 s66, s66, s50")
        e("s_cmp_ge_u32 s66, 7"); e("s_cselect_b32 s68, 7, 0"); e("s_sub_u32 s66, s66, s68")
        def c_issueA(t):
            base = baseA(t)
            if t < 28:
                e("s_lshl_b32 s69, s65, 12"); e("s_add_u32 s69, s69, s56")
            else:
                e("s_lshl_b32 s69, s66, 13"); e("s_add_u32 s69, s69, s57")
                if (t - 28) & 1: e("s_add_u32 s69, s69, 4096")
            for a in range(2):
                e(f"s_add_u32 m0, s60, {base + a*1024}")
                if a: e("s_add_u32 s69, s69, 1024")
                tok = e(f"buffer_load_dwordx4 v61, s[44:47], s69 offen{AFL} lds")
            if t < 28:
                e("s_add_u32 s65, s65, 1"); e("s_cmp_eq_u32 s65, 28"); e("s_cselect_b32 s65, 0, s65")
            elif (t - 28) & 1:
                e("s_add_u32 s66, s66, 1"); e("s_cmp_eq_u32 s66, 7"); e("s_cselect_b32 s66, 0, s66")
            tokA[t] = tok
        drain(pre_epi())
        cons_poll_setup()
        cons_poll(0)
        for t in range(RA - 2): c_issueA(t)
        nA = RA - 2
        fill = None
    else:
        fill = pre_epi()
        if HYB:
            cons_poll_setup()
            lab = e.label("F_GO")
            e("s_cmp_lg_u32 s48, 0")
            e(f"s_cbranch_scc1 {lab}")
            e.cond_begin(); cons_poll(0); e.cond_end()
            e.raw(f"{lab}:")
            e("s_barrier")
    first = {ACCO: True, ACCY: True}
    rtok = {}
    def mfmas(t):
        acc = ACCO if t < 28 else ACCY
        for kk in range(4):
            e.wait(rtok[(t, kk)])
            c = "0" if first[acc] else f"v[{acc}:{acc+15}]"
            first[acc] = False
            e(f"v_mfma_f32_32x32x16_bf16 v[{acc}:{acc+15}], v[{wfrag(t&1,kk)}:{wfrag(t&1,kk)+3}], v[{hfrag(t&1,kk)}:{hfrag(t&1,kk)+3}], {c}")
            yield
    for t in range(NST + 1):
        if t < NST:
            if fused and t == 3 and not REGB: e.raw("s_waitcnt vmcnt(0)"); e.vm_done = e.vm_issued
            if REGB: e.wait(tokA[t])
            e("s_barrier")
            if fused and t == 3:
                lab = e.label("F_NOH")
                e("s_cmp_lg_u32 s48, 0")
                e(f"s_cbranch_scc1 {lab}")
                e.cond_begin()
                e("v_mov_b32 v56, s79")
                e("v_mov_b32 v57, s98")
                e("s_mov_b64 exec, 1")
                e("buffer_store_dword v57, v56, s[72:75], s76 offen offset:64 sc1")
                e("s_mov_b64 exec, -1")
                e.cond_end()
                e.raw(f"{lab}:")
            if t in (0, 1, 8, 16, 28, 41): pr.stamp()
            if REGB and nA < NST and nA <= t + RA - 2:
                if nA == 25: cptok = e("buffer_load_dword v59, v58, s[44:47], s76 offen offset:64 sc1")
                if nA == 28:
                    ok = e.label("F_PCOK")
                    e.wait(cptok)
                    e("v_cmp_ne_u32 vcc, s98, v59"); e("s_cmp_eq_u64 vcc, 0"); e(f"s_cbranch_scc1 {ok}")
                    e.cond_begin(); cons_poll(64); e.cond_end()
                    e.raw(f"{ok}:")
                c_issueA(nA); nA += 1
            e(f"v_add_u32 v{TH}, {baseA(t)}, v{PH}")
            if t < 28: e(f"v_add_u32 v{TW}, {baseB(t)}, v{PW}")
            else:      e(f"v_add_u32 v{TW}, {baseB(t)}, v{PC}")
        mf = mfmas(t-1) if t >= 1 else None
        for kk in range(4):
            if t < NST:
                if mf is not None: mf = pull(mf, 1)
                tk_ = [e(f"ds_read_b128 v[{hfrag(t&1,kk)}:{hfrag(t&1,kk)+3}], v{TH} offset:{kk*1024}")]
                w = wfrag(t&1,kk)
                if t < 28:
                    tk_.append(e(f"ds_read_b64_tr_b16 v[{w}:{w+1}], v{TW} offset:{kk*2048}"))
                    tk_.append(e(f"ds_read_b64_tr_b16 v[{w+2}:{w+3}], v{TW} offset:{kk*2048+1024}"))
                else:
                    if kk == 0: tk_.append(e(f"ds_read_b128 v[{w}:{w+3}], v{TW}"))
                    else:
                        e(f"v_xor_b32 v{T0+8}, {kk<<5}, v{TW}")
                        tk_.append(e(f"ds_read_b128 v[{w}:{w+3}], v{T0+8}"))
                rtok[(t, kk)] = tk_
            elif mf is not None: mf = pull(mf, 1)
            fill = pull(fill, 6 if not REGB else 3)
        if t == 29:
            drain(fill); fill = silu_epi()
        if t < NST and not REGB: e.wait_all(vm=False, lg=True)
    drain(fill)
    for i in range(16):
        e(f"v_add_f32 v{SK+i}, v{ACCY+i}, v{SK+i}")
    for i in range(16):
        e(f"v_fma_f32 v{SK+i}, v{SK+i}, v{G+i}, v{XF+i}")
    for a in range(4):
        e(f"buffer_store_dwordx4 v[{SK+4*a}:{SK+4*a+3}], v10, s[40:43], 0 offen offset:{32*a}" + os.environ.get("OUTF", ""))
    pr.stamp()
    if PROFILE: e("s_waitcnt vmcnt(0)")
    pr.stamp()
    pr.dump(44, 48)
    e("s_endpgm")
    e2 = e
    e.raw("K2_LOADER:")
    e.lg_issued = e.lg_done = 0; e.vm_issued = e.vm_done = 0
    if os.environ.get("LPRIO", "0") != "0": e(f"s_setprio {os.environ.get('LPRIO')}")
    e("s_sub_u32 s52, s48, 4")
    e("s_and_b32 s53, s52, 1")
    e("s_lshr_b32 s54, s52, 1")
    e("v_lshlrev_b32 v1, 4, v0")
    e("v_lshrrev_b32 v2, 3, v0")
    e("s_lshl_b32 s55, s52, 4")
    e("v_add_u32 v2, s55, v2")
    e("s_movk_i32 s55, 896")
    e("v_mul_lo_u32 v2, s55, v2")
    e("v_and_b32 v3, 7, v0")
    e("v_lshrrev_b32 v4, 4, v0")
    e("v_and_b32 v5, 1, v4")
    e("v_lshlrev_b32 v5, 2, v5")
    e("v_xor_b32 v5, v5, v3")
    e("v_lshl_add_u32 v5, v5, 4, v2")
    e("v_xor_b32 v6, v4, v3")
    e("v_lshl_add_u32 v6, v6, 4, v2")
    e("v_add_u32 v7, 4, v4")
    e("v_xor_b32 v7, v7, v3")
    e("v_lshl_add_u32 v7, v7, 4, v2")
    e(f"v_add_u32 v7, {8*896}, v7")
    e("s_lshl_b32 s58, s49, 1")
    e("s_add_u32 s58, s58, s53")
    e("s_lshl_b32 s59, s54, 1")
    e("s_mul_i32 s56, s58, 112")
    e("s_add_u32 s56, s56, s59")
    e("s_lshl_b32 s56, s56, 10")
    if WS_HF: e(f"s_add_u32 s56, s56, {WS_HF}")
    e("s_mul_i32 s57, s58, 56")
    e("s_add_u32 s57, s57, s59")
    e("s_lshl_b32 s57, s57, 10")
    e(f"s_add_u32 s57, s57, {WS_hF}")
    e("s_lshl_b32 s60, s53, 2")
    e("s_add_u32 s60, s60, s59")
    e("s_lshl_b32 s60, s60, 10")
    e("s_lshl_b32 s61, s52, 11")
    e("s_lshl_b32 s62, s50, 7")
    e(f"s_mul_i32 s63, s50, {64*896}")
    if REGB:
        assert EARLY_B == 12
        e("s_mul_i32 s77, s71, 7"); e("s_lshl_b32 s68, s50, 2"); e("s_add_u32 s77, s77, s68")
        e("s_cmp_ge_u32 s77, 28"); e("s_cselect_b32 s68, 28, 0"); e("s_sub_u32 s77, s77, s68")
        e(f"s_add_u32 s77, s77, {EARLY_B}"); e("s_cmp_ge_u32 s77, 28"); e("s_cselect_b32 s68, 28, 0"); e("s_sub_u32 s77, s77, s68")
        e("s_lshl_b32 s78, s71, 1"); e("s_add_u32 s78, s78, s50")
        e("s_cmp_ge_u32 s78, 7"); e("s_cselect_b32 s68, 7, 0"); e("s_sub_u32 s78, s78, s68")
        def breg(t): return 16 + 8*(t - EARLY_B)
        tokR = {}
        def bload(t):
            part = (t - 28) & 1
            if t < 28:
                e(f"s_mul_i32 s70, s77, {64*896}"); e("s_add_u32 s70, s70, s62")
            else:
                e("s_lshl_b32 s70, s78, 7"); e("s_add_u32 s70, s70, s63")
            for a in range(2):
                r = breg(t) + 4*a
                if t < 28:
                    if a: e("s_add_u32 s70, s70, 7168")
                    tokR[t] = e(f"buffer_load_dwordx4 v[{r}:{r+3}], v5, s[36:39], s70 offen")
                else:
                    tokR[t] = e(f"buffer_load_dwordx4 v[{r}:{r+3}], v{6+a}, s[{24+4*part}:{27+4*part}], s70 offen")
            if t < 28:
                e("s_add_u32 s77, s77, 1"); e("s_cmp_eq_u32 s77, 28"); e("s_cselect_b32 s77, 0, s77")
            elif part:
                e("s_add_u32 s78, s78, 1"); e("s_cmp_eq_u32 s78, 7"); e("s_cselect_b32 s78, 0, s78")
        NINIT = int(os.environ.get("BINIT", "28"))
        nL = EARLY_B
        while nL < NINIT: bload(nL); nL += 1
        e("v_add_u32 v1, s61, v1")
        def bwrite(t):
            e.wait(tokR[t])
            base = baseB(t)
            e(f"v_add_u32 v2, {base}, v1")
            e(f"ds_write_b128 v2, v[{breg(t)}:{breg(t)+3}]")
            e(f"ds_write_b128 v2, v[{breg(t)+4}:{breg(t)+7}] offset:1024")
        pr = Prof(e, 1); pr.n = 1
        pr.stamp()
        for t in range(EARLY_B, RB - 2): bwrite(t)
        for t in range(NST):
            e.wait_all(vm=False, lg=True)
            if t in (0, 1, 8, 16, 28, 41): pr.stamp()
            e("s_barrier")
            if nL < NST and t >= int(os.environ.get("BSTART", "2")): bload(nL); nL += 1
            s_ = t + RB - 2
            if EARLY_B <= s_ < NST and s_ >= RB - 2: bwrite(s_)
        pr.dump(44, 48)
        e.raw("K2_END:")
        e("s_endpgm")
        return
    if os.environ.get("K2ROT", "1") == "1":
        e("s_mul_i32 s65, s71, 7")
        e("s_lshl_b32 s68, s50, 2")
        e("s_add_u32 s65, s65, s68")
        e("s_cmp_ge_u32 s65, 28")
        e("s_cselect_b32 s68, 28, 0")
        e("s_sub_u32 s65, s65, s68")
        e("s_lshl_b32 s66, s71, 1")
        e("s_add_u32 s66, s66, s50")
        e("s_cmp_ge_u32 s66, 7")
        e("s_cselect_b32 s68, 7, 0")
        e("s_sub_u32 s66, s66, s68")
    else:
        e("s_mov_b32 s65, 0"); e("s_mov_b32 s66, 0")
    e("s_mov_b32 s77, s65"); e("s_mov_b32 s78, s66")
    stage_tok = {}
    AFL = " sc1" if (fused and os.environ.get("ASC1", "0") == "1") else ""
    def adv(t, o, m):
        if t < 28:
            e(f"s_add_u32 s{o}, s{o}, 1"); e(f"s_cmp_eq_u32 s{o}, 28"); e(f"s_cselect_b32 s{o}, 0, s{o}")
        elif (t - 28) & 1:
            e(f"s_add_u32 s{m}, s{m}, 1"); e(f"s_cmp_eq_u32 s{m}, 7"); e(f"s_cselect_b32 s{m}, 0, s{m}")
    def issueA(t):
        base = baseA(t)
        if t < 28:
            e("s_lshl_b32 s69, s65, 12")
            e("s_add_u32 s69, s69, s56")
        else:
            e("s_lshl_b32 s69, s66, 13")
            e("s_add_u32 s69, s69, s57")
            if (t - 28) & 1: e("s_add_u32 s69, s69, 4096")
        for a in range(2):
            e(f"s_add_u32 m0, s60, {base + a*1024}")
            if a: e("s_add_u32 s69, s69, 1024")
            tok = e(f"buffer_load_dwordx4 v1, s[44:47], s69 offen{AFL} lds")
        adv(t, 65, 66)
        return tok
    def issueB(t):
        base = baseB(t)
        part = (t - 28) & 1
        if t < 28:
            e(f"s_mul_i32 s70, s77, {64*896}")
            e("s_add_u32 s70, s70, s62")
        else:
            e("s_lshl_b32 s70, s78, 7")
            e("s_add_u32 s70, s70, s63")
        for a in range(2):
            e(f"s_add_u32 m0, s61, {base + a*1024}")
            if t < 28:
                if a: e("s_add_u32 s70, s70, 7168")
                tok = e("buffer_load_dwordx4 v5, s[36:39], s70 offen lds")
            else:
                tok = e(f"buffer_load_dwordx4 v{6+a}, s[{24+4*part}:{27+4*part}], s70 offen lds")
        adv(t, 77, 78)
        return tok
    def poll(off):
        top = e.label("F_POLL"); ok = e.label("F_POLLOK")
        e("v_and_b32 v8, 15, v0")
        e("v_min_u32 v8, 13, v8")
        e("v_lshlrev_b32 v8, 2, v8")
        e("s_mov_b32 s80, 0" if not PROFILE else "s_mov_b32 s95, 0")
        c = "s80" if not PROFILE else "s95"
        e.raw(f"{top}:")
        e(f"buffer_load_dword v9, v8, s[44:47], s76 offen offset:{off} sc1")
        e.raw("s_waitcnt vmcnt(0)")
        e("v_cmp_ne_u32 vcc, s98, v9")
        e("s_cmp_eq_u64 vcc, 0")
        e(f"s_cbranch_scc1 {ok}")
        e(f"s_add_u32 {c}, {c}, 1")
        e(f"s_cmp_lt_u32 {c}, 200000")
        e(f"s_cbranch_scc1 {top}")
        e.raw(f"{ok}:")
        e.vm_done = e.vm_issued
    def poll_issue(off):
        return e(f"buffer_load_dword v9, v8, s[44:47], s76 offen offset:{off} sc1")
    def poll_check(tok, off):
        ok = e.label("F_PCOK")
        e.wait(tok)
        e("v_cmp_ne_u32 vcc, s98, v9")
        e("s_cmp_eq_u64 vcc, 0")
        e(f"s_cbranch_scc1 {ok}")
        e.cond_begin()
        poll(off)
        e.cond_end()
        e.raw(f"{ok}:")
    pr = Prof(e, 1); pr.n = 1
    PRO = int(os.environ.get("K2PRO", "2"))
    tokA = {}; tokB = {}
    nA = 0; nB = 0
    if fused:
        for t in range(EARLY_B):
            tokB[t] = None; nB += 1; adv(t, 77, 78)
        if EARLY_B == 0:
            for t in range(RB - 1): tokB[t] = issueB(t); nB += 1
        if HYB:
            assert EARLY_B + NREG <= 28
            e("v_and_b32 v8, 15, v0"); e("v_min_u32 v8, 13, v8"); e("v_lshlrev_b32 v8, 2, v8")
            tokR = {}
            for t in range(EARLY_B, EARLY_B + NREG):
                e(f"s_mul_i32 s70, s77, {64*896}"); e("s_add_u32 s70, s70, s62")
                for a in range(2):
                    r = 16 + 8*(t - EARLY_B) + 4*a
                    if a: e("s_add_u32 s70, s70, 7168")
                    tokR[t] = e(f"buffer_load_dwordx4 v[{r}:{r+3}], v5, s[36:39], s70 offen")
                adv(t, 77, 78)
            e("v_add_u32 v10, s61, v1")
            e("s_barrier")
        else:
            poll(0)
        for t in range(PRO): tokA[t] = issueA(t); nA += 1
    else:
        for t in range(PRO):
            tokA[t] = issueA(t); tokB[t] = issueB(t); nA += 1; nB += 1
    pr.stamp()
    ptok = None
    for t in range(NST):
        e.wait(tokA[t], tokB[t])
        if HYB: e.wait_all(vm=False, lg=True) if e.lg_done < e.lg_issued else None
        if t in (0, 1, 8, 16, 28, 41): pr.stamp()
        e("s_barrier")
        k = 0
        while k < 2:
            did = False
            if nA < NST and nA <= t + RA - 1:
                if fused and nA == 24: ptok = poll_issue(64)
                if fused and nA == 28: poll_check(ptok, 64)
                tokA[nA] = issueA(nA); nA += 1; did = True
            if nB < NST and nB <= t + RB - 1 and nB <= nA + RB:
                if HYB and EARLY_B <= nB < EARLY_B + NREG:
                    e.wait(tokR[nB])
                    r = 16 + 8*(nB - EARLY_B)
                    e(f"v_add_u32 v11, {baseB(nB)}, v10")
                    e(f"ds_write_b128 v11, v[{r}:{r+3}]")
                    e(f"ds_write_b128 v11, v[{r+4}:{r+7}] offset:1024")
                    tokB[nB] = None
                else:
                    tokB[nB] = issueB(nB)
                nB += 1; did = True
            if not did: break
            k += 1
        assert nA > t + 1 or nA == NST or True
    pr.dump(44, 48)
    e.raw("K2_END:")
    e("s_endpgm")

def kd(name, vgpr, sgpr=102):
    acc = (vgpr + 3)//4*4
    return f""".amdhsa_kernel {name}
  .amdhsa_next_free_vgpr {vgpr}
  .amdhsa_next_free_sgpr {sgpr}
  .amdhsa_accum_offset {acc}
  .amdhsa_group_segment_fixed_size 0
  .amdhsa_kernarg_size 128
  .amdhsa_user_sgpr_count 2
  .amdhsa_user_sgpr_kernarg_segment_ptr 1
  .amdhsa_system_sgpr_workgroup_id_x 1
.end_amdhsa_kernel"""

def main():
    global PROFILE
    which = sys.argv[2] if len(sys.argv) > 2 else "k2"
    if len(sys.argv) > 3 and "prof" in sys.argv[3]: PROFILE = True
    hdr = open(f"cdna_kernels/{NAME}.s.ref").read().split("; Override launch")[0]
    out = [hdr.rstrip()]
    kernels = []
    fused = "fused" in which
    KN = NAME + "_kernel" if fused else "k1_kernel"
    if fused:
        if os.environ.get("PLAIN", "0") == "1": out.append("; @launch grid=(256,1,1) block=(512,1,1) lds=163840")
        else: out.append(f"; @launch kernel={KN} grid=(256,1,1) block=(512,1,1) lds=163840")
    else:
        if "k1" in which:
            out.append("; @launch kernel=k1_kernel grid=(256,1,1) block=(512,1,1) lds=163840")
        if "k2" in which:
            out.append(f"; @launch kernel=k2_kernel grid=(224,1,1) block=(512,1,1) lds={K2_R*K2_STAGE}")
    out.append('.amdgcn_target "amdgcn-amd-amdhsa--gfx950"\n.text')
    kds = []
    if fused:
        import gen_k1b as gen_k1
        gen_k1.G.PROFILE = PROFILE
        e = Emit(); vg = gen_k1.gen_k1(e, fused=True, kname=KN)
        out.append(f".globl {KN}\n.p2align 8\n.type {KN},@function"); out.append(e.finish()); kds.append(kd(KN, vg))
    else:
        if "k1" in which:
            import gen_k1b as gen_k1
            gen_k1.G.PROFILE = PROFILE
            e = Emit(); vg = gen_k1.gen_k1(e)
            out.append(".globl k1_kernel\n.p2align 8\n.type k1_kernel,@function"); out.append(e.finish()); kds.append(kd("k1_kernel", vg))
        if "k2" in which:
            e = Emit(); gen_k2(e)
            out.append(".globl k2_kernel\n.p2align 8\n.type k2_kernel,@function"); out.append(e.finish()); kds.append(kd("k2_kernel", 200 if not PROFILE else 224))
    out.append('.section .rodata,"a"\n.p2align 6')
    out.append("\n.p2align 6\n".join(kds))
    open(sys.argv[1], "w").write("\n".join(out) + "\n")
if __name__ == "__main__": main()
```

```python
import sys, os
sys.path.insert(0, "dev")
from asmlib import *
import gen as G
from gen import *
from k1_common import *
from collections import deque

env = lambda k, d: type(d)(os.environ.get(k, d)) if not isinstance(d, bool) else os.environ.get(k, "1" if d else "0") == "1"
STAMPS = eval(os.environ.get("STAMPS", '[("A",0),("A",27),("B",0),("B",27)]'))
NOEPI = env("NOEPI", False); NODMA = env("NODMA", False)
PRO_DMAS = env("PRO_DMAS", 10); ZLATE = env("ZLATE", False); MAP2 = env("MAP2", True); COOP = env("COOP", False); ROT = env("ROT", 1 if not COOP else 0)
CT2 = env("CT2", 1); CT3 = env("CT3", 22); CT4 = env("CT4", 34)
EB_SLOT = env("EB_SLOT", 4); EB_GAP = env("EB_GAP", 6); EBV = 13
PF_GAP = env("PF_GAP", 4); PF_SLOT = env("PF_SLOT", -1); AUX2_SLOT = env("AUX2_SLOT", 6); E_SLOT = env("E_SLOT", 48)
AUX2_FIN = env("AUX2_FIN", 26)
NT = env("NT", 1)
AUX_LOAD = env("AUX_LOAD", 46 if ZLATE else 50); AUX_FIN = env("AUX_FIN", 62 if ZLATE else 68); PUB_SLOT = env("PUB_SLOT", 16 if ZLATE else 11)
BUDGET_A = env("BUDGET_A", 4.0); BUDGET_B = env("BUDGET_B", 6.0); BUDGET_B0 = env("BUDGET_B0", 7.0)

DMAFLAG = os.environ.get("DMAFLAG", "")
if DMAFLAG: DMAFLAG = " " + DMAFLAG
BSW = env("BSW", 30); ECLATE = env("ECLATE", True); ZFIRST = env("ZFIRST", False); TAILST2 = env("TAILST2", False); TAILST = env("TAILST", True); PSTAMP = env("PSTAMP", False); DMA_HURRY = env("DMA_HURRY", 6); RB_LATE = env("RB_LATE", True); RB_SLOT = env("RB_SLOT", 7)
XR, ZR, WR = 0, 49152, 73728
MISC = 139264
M_ST = MISC; M_CS = MISC + 1024; M_SEG = MISC + 2048; M_N = MISC + 3072
M_SD = MISC + 3328; M_CB = MISC + 3840
M_PART = MISC + 3328
M_PB = MISC + 5376
M_TR = MISC + 6656
AX, AZr, AW0, AW1 = 1, 5, 9, 10
VX0, VX1, VZ, VW = 11, 12, 13, 14
LR, LI, CR, CI, L8R, L8I, L128R, L128I, TR, TI = 15, 16, 17, 18, 19, 20, 21, 22, 23, 24
M_, SD, NLR, CSR, CSI, PR, PI, ER, EI = 25, 26, 27, 28, 29, 30, 31, 32, 33
VH = 47

AZ = 48
AG = [64, 80, 96, 112]
XF = 128
FB = 240

def gen_k1(e, fused=False, kname="k1_kernel"):
    STF = os.environ.get("STF", " sc1") if fused else ""
    e.raw(f"{kname}:")
    e("s_cmp_ge_u32 s2, 256")
    e("s_cbranch_scc1 K1_END")
    if env("CODEPF", False): e("s_getpc_b64 s[84:85]")
    e.raw("K1_CODE_FIRST:")
    e("s_load_dwordx2 s[4:5], s[0:1], 0")
    e("s_load_dwordx2 s[6:7], s[0:1], 8")
    e("s_load_dwordx2 s[8:9], s[0:1], 24")
    e("s_load_dwordx2 s[10:11], s[0:1], 32")
    e("s_load_dwordx2 s[12:13], s[0:1], 80")
    e("s_load_dwordx2 s[14:15], s[0:1], 88")
    e("s_load_dwordx2 s[16:17], s[0:1], 112")
    e("s_load_dwordx2 s[18:19], s[0:1], 120")
    e("s_load_dwordx2 s[62:63], s[0:1], 16")
    e("s_load_dwordx2 s[86:87], s[0:1], 96")
    e("s_load_dwordx2 s[88:89], s[0:1], 40")
    e("s_load_dwordx2 s[90:91], s[0:1], 48")
    t = e("s_load_dwordx2 s[64:65], s[0:1], 56")
    e("v_lshrrev_b32 v1, 6, v0")
    e("v_and_b32 v0, 63, v0")
    e("v_readfirstlane_b32 s48, v1")
    e("s_sub_u32 s49, s2, 32")
    e("s_and_b32 s50, s49, 7")
    e("s_lshr_b32 s51, s49, 3")
    if MAP2:
        e("s_mul_i32 s54, s51, 37")
        e("s_lshr_b32 s54, s54, 8")
        e("s_mul_i32 s53, s54, 7")
        e("s_sub_u32 s55, s51, s53")
        e("s_and_b32 s52, s50, 3")
        e("s_lshl_b32 s53, s54, 2")
        e("s_add_u32 s52, s52, s53")
        e("s_lshl_b32 s51, s55, 2")
        e("s_add_u32 s51, s51, s54")
        e("s_lshr_b32 s53, s50, 2")
        e("s_mul_i32 s53, s53, 7")
        e("s_add_u32 s53, s53, s55")
    else:
        e("s_and_b32 s52, s50, 3")
        e("s_lshl_b32 s52, s52, 2")
        e("s_and_b32 s53, s51, 3")
        e("s_add_u32 s52, s52, s53")
        e("s_lshr_b32 s53, s50, 2")
        e("s_mul_i32 s53, s53, 7")
        e("s_lshr_b32 s54, s51, 2")
        e("s_add_u32 s53, s53, s54")
    e("s_and_b32 s54, s48, 3")
    e("s_lshr_b32 s55, s48, 2")
    e("v_lshrrev_b32 v40, 3, v0")
    e("v_and_b32 v41, 7, v0")
    e("v_lshrrev_b32 v42, 4, v0")
    e("s_movk_i32 s56, 896")
    e("s_lshl_b32 s57, s48, 4")
    e("v_add_u32 v43, s57, v40")
    e("v_mul_lo_u32 v43, s56, v43")
    e("v_xor_b32 v44, v41, v42")
    e(f"v_lshl_add_u32 v{VX0}, v44, 4, v43")
    e("v_add_u32 v44, 4, v42")
    e("v_xor_b32 v44, v41, v44")
    e(f"v_lshl_add_u32 v{VX1}, v44, 4, v43")
    e(f"v_add_u32 v{VX1}, {8*896}, v{VX1}")
    e("s_lshl_b32 s57, s54, 3")
    e("v_add_u32 v43, s57, v40")
    e("v_mul_lo_u32 v43, s56, v43")
    e("s_and_b32 s57, s48, 1")
    e("s_lshl_b32 s57, s57, 2")
    e("v_add_u32 v44, s57, v42")
    e("v_xor_b32 v44, v41, v44")
    e(f"v_lshl_add_u32 v{VZ}, v44, 4, v43")
    e("s_lshl_b32 s57, s54, 3")
    e("v_add_u32 v43, s57, v40")
    e("s_movk_i32 s56, 3584")
    e("v_mul_lo_u32 v43, s56, v43")
    e("v_and_b32 v44, 1, v42")
    e("s_lshl_b32 s57, s55, 1")
    e("v_add_u32 v44, s57, v44")
    e("v_lshlrev_b32 v44, 1, v44")
    e("v_xor_b32 v44, v41, v44")
    e(f"v_lshl_add_u32 v{VW}, v44, 4, v43")
    e(f"s_mul_i32 s66, s52, {128*896}")
    e(f"s_mul_i32 s67, s53, {32*896}")
    e("s_lshl_b32 s72, s53, 8")
    e("s_lshl_b32 s73, s48, 11")
    e("s_lshl_b32 s74, s48, 10")
    e(f"s_add_u32 s74, s74, {ZR}")
    e("s_lshl_b32 s75, s55, 13")
    e("s_lshl_b32 s76, s54, 10")
    e("s_add_u32 s75, s75, s76")
    e(f"s_add_u32 s75, s75, {WR}")
    e.wait(t)
    e("s_cmp_lt_u32 s2, 32")
    e("s_cbranch_scc1 K1_HELPER")
    srd(e, 20, 4, 2048*448*2)
    if ROT == 1:
        e("s_and_b32 s56, s51, 3")
        e("s_lshl_b32 s56, s56, 1")
        e("s_lshr_b32 s57, s51, 2")
        e("s_add_u32 s56, s56, s57")
        e("s_cmp_ge_u32 s56, 7")
        e("s_cselect_b32 s57, 7, 0")
        e("s_sub_u32 s77, s56, s57")
    else:
        e("s_mov_b32 s77, 0")
    e("s_mov_b32 s76, s77")
    e("s_lshl_b32 s4, s76, 7")
    e("s_add_u32 s4, s4, s66")
    e("s_sub_u32 s67, s67, s66")
    ent_tok = {}
    dmaq = deque()
    def entry_dmas(kind, kc):
        def mk(a, last):
            def f():
                if NODMA:
                    if last: ent_tok[(kind, kc)] = None
                    return
                if kind == "X":
                    e(f"s_add_u32 m0, s73, {XR + (kc%3)*16384 + a*1024}")
                    tok = e(f"buffer_load_dwordx4 v{VX0+a}, s[20:23], s{4+kc} offen{DMAFLAG} lds")
                elif kind == "ZC":
                    e(f"s_add_u32 m0, s74, {M_TR - ZR + kc*8192}")
                    e(f"s_add_u32 s77, s67, s{4+kc}")
                    tok = e(f"buffer_load_dwordx4 v{VZ}, s[24:27], s77 offen{DMAFLAG} lds")
                elif kind == "Z":
                    e(f"s_add_u32 m0, s74, {(kc%3)*8192}")
                    e(f"s_add_u32 s77, s67, s{4+kc}")
                    tok = e(f"buffer_load_dwordx4 v{VZ}, s[24:27], s77 offen{DMAFLAG} lds")
                else:
                    ch = kc % 7; colb = 0 if kc < 7 else 128
                    e(f"s_add_u32 m0, s75, {(kc%4)*16384 + a*4096}")
                    e(f"s_add_u32 s77, s{11+ch}, {32*a*3584 + colb}")
                    tok = e(f"buffer_load_dwordx4 v{VW}, s[28:31], s77 offen{DMAFLAG} lds")
                if last: ent_tok[(kind, kc)] = tok
            return f
        n = 1 if kind in ("Z", "ZC") else 2
        return [mk(a, a == n - 1) for a in range(n)]
    def queue(*ents):
        for (k, kc) in ents:
            for f in entry_dmas(k, kc): dmaq.append(f)
    def bz_w_srds():
        e("s_cmp_eq_u32 s55, 0")
        e("s_cselect_b32 s24, s8, s10")
        e("s_cselect_b32 s25, s9, s11")
        e("s_cselect_b32 s28, s12, s14")
        e("s_cselect_b32 s29, s13, s15")
        e("s_and_b32 s25, s25, 0xffff")
        e(f"s_mov_b32 s26, {448*448*2}")
        e("s_mov_b32 s27, 0x20000")
        e("s_and_b32 s29, s29, 0xffff")
        e(f"s_mov_b32 s30, {448*1792*2}")
        e("s_mov_b32 s31, 0x20000")
    M_PF0 = 162304
    def coop_setup():
        e("s_and_b32 s56, s51, 3")
        e("s_lshr_b32 s57, s51, 2")
        e("s_mov_b32 s64, 0")
        e("s_cmp_eq_u32 s54, 0"); e("s_cselect_b32 s64, 1, s64")
        e("s_cmp_eq_u32 s54, 1"); e("s_cselect_b32 s64, 2, s64")
        e("s_cmp_eq_u32 s48, 2"); e("s_cselect_b32 s64, 3, s64")
        e("s_or_b32 s58, s57, s48"); e("s_cmp_eq_u32 s58, 3")
        e("s_cmp_eq_u32 s48, 3"); e("s_cselect_b32 s58, 0, 1"); e("s_or_b32 s58, s58, s57")
        e("s_cmp_eq_u32 s58, 0"); e("s_cselect_b32 s64, 3, s64"); e("s_cselect_b32 s57, 7, s57")
        e(f"s_mul_i32 s58, s56, {16*3584}"); e("s_add_u32 s58, s58, s72")
        e(f"s_mul_i32 s59, s53, {32*896}"); e(f"s_mul_i32 s61, s56, {8*896}"); e("s_add_u32 s59, s59, s61")
        e(f"s_mul_i32 s61, s57, {16*896}"); e("s_add_u32 s61, s61, s66")
        e("s_cmp_eq_u32 s64, 1"); e("s_cselect_b32 s65, s58, s61")
        e("s_cselect_b32 s88, s28, s20"); e("s_cselect_b32 s89, s29, s21"); e("s_cselect_b32 s90, s30, s22")
        e("s_cmp_eq_u32 s64, 2"); e("s_cselect_b32 s65, s59, s65")
        e("s_cselect_b32 s88, s24, s88"); e("s_cselect_b32 s89, s25, s89"); e("s_cselect_b32 s90, s26, s90")
        e("s_mov_b32 s91, 0x20000")
    def coop_touch(c0, n, colb, wonly, tv):
        lab = e.label("K1_CT")
        if wonly: e("s_cmp_lg_u32 s64, 1")
        else: e("s_cmp_eq_u32 s64, 0")
        e(f"s_cbranch_scc1 {lab}")
        e.cond_begin()
        e("s_cmp_eq_u32 s64, 2")
        e("s_cselect_b32 s58, 7, 15")
        e("s_cselect_b32 s59, 3, 4")
        e(f"v_and_b32 v{tv}, s58, v0")
        e(f"v_lshrrev_b32 v{tv+1}, s59, v0")
        e(f"v_min_u32 v{tv+1}, {n-1}, v{tv+1}")
        e("s_cmp_eq_u32 s64, 1")
        e("s_movk_i32 s58, 896")
        e("s_cselect_b32 s58, 3584, s58")
        e("s_movk_i32 s59, 128")
        e(f"s_cselect_b32 s59, {64*3584}, s59")
        e(f"s_mov_b32 s61, {c0*128}")
        e(f"s_cselect_b32 s61, {c0*64*3584 + colb}, s61")
        e(f"v_mul_lo_u32 v{tv}, s58, v{tv}")
        e(f"v_mul_lo_u32 v{tv+1}, s59, v{tv+1}")
        e("s_add_u32 s61, s61, s65")
        e(f"s_mov_b32 m0, {M_PF0}")
        e(f"v_add_u32 v{tv}, v{tv}, v{tv+1}")
        e(f"buffer_load_dword v{tv}, s[88:91], s61 offen lds")
        e.cond_end()
        e.raw(f"{lab}:")
    srd(e, 68, 64, 896)
    if COOP:
        bz_w_srds()
        coop_setup()
        coop_touch(0, 3, 0, False, 34)
        queue(("X",0))
        for _ in range(2): dmaq.popleft()()
    else:
        queue(("X",0))
        for _ in range(2): dmaq.popleft()()
        bz_w_srds()
    if not ZLATE:
        queue(("Z",0))
        dmaq.popleft()()
    srd(e, 40, 6, 896)
    srd(e, 44, 62, 896)
    srd(e, 32, 18, WS_END if not G.PROFILE else (16 << 20))
    srd(e, 36, 16, 256)
    e("s_mov_b32 s60, 0")
    e("s_cmp_lt_u32 s48, 2")
    e("s_cselect_b32 s61, 1, 0")
    e("s_cmp_lt_u32 s53, 8")
    e("s_cselect_b32 s60, s61, 0")
    e("s_cmp_eq_u32 s48, 2")
    e("s_cselect_b32 s61, 2, 0")
    e("s_cmp_lt_u32 s52, 8")
    e("s_cselect_b32 s61, s61, 0")
    e("s_or_b32 s60, s60, s61")
    e("s_lshl_b32 s56, s52, 7")
    e("s_lshl_b32 s57, s53, 4")
    e("s_add_u32 s56, s56, s57")
    e("s_lshl_b32 s57, s48, 3")
    e("s_add_u32 s56, s56, s57")
    e("s_lshl_b32 s57, s53, 5")
    e("s_and_b32 s58, s52, 3")
    e("s_lshl_b32 s58, s58, 3")
    e("s_add_u32 s57, s57, s58")
    e("s_cmp_eq_u32 s60, 2")
    e("s_cselect_b32 s59, s57, s56")
    e("s_cmp_ge_u32 s52, 4")
    e("s_cselect_b32 s92, s10, s8")
    e("s_cselect_b32 s93, s11, s9")
    e("s_cselect_b32 s62, 448, 0")
    e("s_cmp_eq_u32 s60, 2")
    e("s_cselect_b32 s92, s92, s20")
    e("s_cselect_b32 s93, s93, s21")
    e(f"s_mov_b32 s94, {2048*448*2}")
    e(f"s_cselect_b32 s94, {448*448*2}, s94")
    e("s_cselect_b32 s62, s62, 0")
    e("s_and_b32 s93, s93, 0xffff")
    e("s_mov_b32 s95, 0x20000")
    e("s_add_u32 s62, s62, s59")
    e("s_mul_i32 s63, s59, 896")
    e(f"s_mul_i32 s11, s76, {64*3584}")
    e("s_add_u32 s11, s11, s72")
    queue(("W",0))
    for _ in range(2): dmaq.popleft()()
    pr = G.Prof(e, 0); pr.stamp()
    e("v_and_b32 v40, 15, v0")
    e("s_lshl_b32 s56, s53, 5")
    e("s_lshl_b32 s57, s55, 4")
    e("s_add_u32 s78, s56, s57")
    e("v_add_u32 v41, s78, v40")
    e("v_lshlrev_b32 v42, 1, v41")
    tp = [e("buffer_load_ushort v43, v42, s[40:43], 0 offen"),
          e("buffer_load_ushort v44, v42, s[44:47], 0 offen"),
          e("buffer_load_ushort v45, v42, s[68:71], 0 offen")]
    e("v_lshrrev_b32 v34, 3, v0")
    e("v_and_b32 v35, 7, v0")
    e("v_mul_u32_u24 v36, 896, v34")
    e("v_lshl_add_u32 v36, v35, 4, v36")
    RB = 192
    labrb = e.label("K1_NORB")
    e("s_cmp_eq_u32 s60, 0")
    e(f"s_cbranch_scc1 {labrb}")
    e.cond_begin()
    for k in range(7): e(f"buffer_load_dwordx4 v[{RB+4*k}:{RB+4*k+3}], v36, s[92:95], s63 offen offset:{128*k}")
    e.cond_end()
    e.raw(f"{labrb}:")
    def rowbatch_compute():
        lab = e.label("K1_NORC")
        e("s_cmp_eq_u32 s60, 0")
        e(f"s_cbranch_scc1 {lab}")
        e.cond_begin()
        e.raw(f"s_waitcnt vmcnt({min(63, e.vm_issued - vm_at_rb)})")
        e("s_mov_b32 s58, 0x3f803f80")
        e("v_mov_b32 v220, 0"); e("v_mov_b32 v221, 0"); e("v_mov_b32 v222, 0"); e("v_mov_b32 v223, 0")
        for k in range(28):
            e(f"v_dot2c_f32_bf16 v{220 + (k&1)}, s58, v{RB+k}")
            e(f"v_dot2c_f32_bf16 v{222 + (k&1)}, v{RB+k}, v{RB+k}")
        e("s_nop 2")
        e("v_add_f32 v220, v220, v221")
        e("v_add_f32 v221, v222, v223")
        for r_ in (220, 221):
            e(f"v_add_f32_dpp v{r_}, v{r_}, v{r_} quad_perm:[1,0,3,2] row_mask:0xf bank_mask:0xf")
            e(f"v_add_f32_dpp v{r_}, v{r_}, v{r_} quad_perm:[2,3,0,1] row_mask:0xf bank_mask:0xf")
            e(f"v_add_f32_dpp v{r_}, v{r_}, v{r_} row_half_mirror row_mask:0xf bank_mask:0xf")
        e("v_mov_b32 v224, v220")
        e(f"v_mul_f32 v220, {f32(1.0/448)}, v220")
        e(f"v_mul_f32 v221, {f32(1.0/448)}, v221")
        e("v_fma_f32 v221, -v220, v220, v221")
        e("v_max_f32 v221, 0, v221")
        e("v_cvt_pk_bf16_f32 v220, v220, v221")
        e("v_and_b32 v221, 0xffff0000, v220")
        e("v_lshlrev_b32 v220, 16, v220")
        e(f"v_add_f32 v221, {f32(1e-5)}, v221")
        e("v_cvt_pk_bf16_f32 v221, v221, v221")
        e("v_lshlrev_b32 v221, 16, v221")
        e("v_sqrt_f32 v221, v221")
        e("v_cvt_pk_bf16_f32 v221, v221, v221")
        e("v_lshlrev_b32 v221, 16, v221")
        e.cond_end()
        e.raw(f"{lab}:")
    def rowbatch_publish():
        lab = e.label("K1_NORP"); labx = e.label("K1_RPX")
        e("s_cmp_eq_u32 s60, 0")
        e(f"s_cbranch_scc1 {lab}")
        e.cond_begin()
        e("v_lshrrev_b32 v226, 3, v0")
        e("v_add_u32 v226, s62, v226")
        e("v_and_b32 v227, 7, v0")
        e("v_cmp_eq_u32 vcc, 0, v227")
        e("s_and_saveexec_b64 s[58:59], vcc")
        e("s_cmp_eq_u32 s60, 1")
        e(f"s_cbranch_scc1 {labx}")
        e("v_lshlrev_b32 v226, 3, v226")
        e("v_mov_b32 v228, v224"); e("v_mov_b32 v229, s98")
        e(f"s_mov_b32 s61, {WS_CSB}")
        e("buffer_store_dwordx2 v[228:229], v226, s[32:35], s61 offen sc1")
        e("s_mov_b64 exec, s[58:59]")
        e(f"s_branch {lab}")
        e.raw(f"{labx}:")
        e("v_lshlrev_b32 v226, 4, v226")
        e("v_mov_b32 v228, v220"); e("v_mov_b32 v229, s98"); e("v_mov_b32 v230, v221"); e("v_mov_b32 v231, s98")
        e(f"s_mov_b32 s61, {WS_STAT}")
        e("buffer_store_dwordx4 v[228:231], v226, s[32:35], s61 offen sc1")
        e("s_mov_b64 exec, s[58:59]")
        e.cond_end()
        e.raw(f"{lab}:")
    RBWAIT = [0]
    vm_at_rb = e.vm_issued
    def rot_entry(t):
        if ROT == 2 and t == 1:
            e("s_and_b32 s56, s51, 3"); e("s_lshl_b32 s56, s56, 1"); e("s_lshr_b32 s57, s51, 2"); e("s_add_u32 s56, s56, s57")
            e("s_cmp_ge_u32 s56, 6"); e("s_cselect_b32 s57, 6, 0"); e("s_sub_u32 s56, s56, s57")
            e("s_cmp_ge_u32 s56, 6"); e("s_cselect_b32 s57, 6, 0"); e("s_sub_u32 s56, s56, s57")
            e("s_add_u32 s76, s56, 1")
        elif ROT == 2:
            e("s_add_u32 s76, s76, 1"); e("s_cmp_eq_u32 s76, 7"); e("s_cselect_b32 s76, 1, s76")
        else:
            e("s_add_u32 s76, s76, 1")
            e("s_cmp_eq_u32 s76, 7")
            e("s_cselect_b32 s76, 0, s76")
        e(f"s_lshl_b32 s{4+t}, s76, 7")
        e(f"s_mul_i32 s{11+t}, s76, {64*3584}")
        e(f"s_add_u32 s{4+t}, s{4+t}, s66")
        e(f"s_add_u32 s{11+t}, s{11+t}, s72")
    for t in range(1, 7): rot_entry(t)
    if ZLATE:
        queue(("X",1),("W",1),("X",2),("Z",2),("W",2),("W",3))
        for _ in range(max(0, PRO_DMAS - 4)): dmaq.popleft()()
    else:
        queue(("X",1),("Z",1),("W",1),("X",2),("Z",2),("W",2),("W",3))
        for _ in range(max(0, PRO_DMAS - 5)): dmaq.popleft()()
    if PSTAMP: pr.stamp()
    nonce_cas(e, 120)
    def issue_for_tick(tk):
        l = []
        if tk >= 1:
            if tk + 2 < 7: l += [("X", tk+2), ("Z", tk+2)]
            if tk + 3 < 14: l += [("W", tk+3)]
            if ZLATE and tk == 2: l += [("ZC", 0), ("ZC", 1)]
        return l

    e("v_and_b32 v34, 31, v0")
    e("v_lshrrev_b32 v35, 4, v34")
    e("v_bfe_u32 v36, v34, 2, 1")
    e("v_lshl_add_u32 v35, v36, 1, v35")
    e("v_bfe_u32 v36, v34, 3, 1")
    e("v_lshlrev_b32 v35, 3, v35")
    e("v_lshl_add_u32 v35, v36, 2, v35")
    e("v_and_b32 v36, 3, v34")
    e("v_add_u32 v35, v35, v36")
    e("v_lshrrev_b32 v36, 5, v0")
    e(f"v_lshl_add_u32 v{VH}, v36, 5, v35")
    e(f"v_lshlrev_b32 v{VH}, 4, v{VH}")
    e("s_lshl_b32 s56, s54, 5")
    e("v_add_u32 v37, s56, v35")
    e(f"v_lshlrev_b32 v{AX}, 7, v37")
    e("v_bfe_u32 v38, v35, 1, 3")
    e("v_xor_b32 v38, v38, v36")
    e(f"v_lshl_add_u32 v{AX}, v38, 4, v{AX}")
    for kk in range(1, 4): e(f"v_xor_b32 v{AX+kk}, {kk<<5}, v{AX}")
    e("v_bfe_u32 v38, v0, 4, 1")
    e(f"v_lshlrev_b32 v{AZr}, 12, v38")
    e("s_lshl_b32 s56, s55, 4")
    e("v_and_b32 v40, 15, v0")
    e("v_add_u32 v39, s56, v40")
    e(f"v_lshl_add_u32 v{AZr}, v39, 7, v{AZr}")
    e("v_bfe_u32 v39, v40, 1, 3")
    e("v_xor_b32 v39, v39, v36")
    e(f"v_lshl_add_u32 v{AZr}, v39, 4, v{AZr}")
    e(f"v_add_u32 v{AZr}, {ZR}, v{AZr}")
    for kk in range(1, 4): e(f"v_xor_b32 v{AZr+kk}, {kk<<5}, v{AZr}")
    e(f"v_lshlrev_b32 v{AW0}, 13, v38")
    e("v_lshrrev_b32 v39, 2, v40")
    e("v_lshl_add_u32 v39, v36, 3, v39")
    e(f"v_lshl_add_u32 v{AW0}, v39, 7, v{AW0}")
    e("v_lshrrev_b32 v39, 3, v40")
    e("v_lshl_add_u32 v39, v38, 1, v39")
    e("s_lshl_b32 s56, s55, 1")
    e("v_xor_b32 v39, s56, v39")
    e(f"v_lshl_add_u32 v{AW0}, v39, 5, v{AW0}")
    e("v_and_b32 v39, 3, v40")
    e(f"v_lshl_add_u32 v{AW0}, v39, 3, v{AW0}")
    e(f"v_add_u32 v{AW0}, {WR}, v{AW0}")
    e(f"v_xor_b32 v{AW1}, 32, v{AW0}")
    e("s_lshl_b32 s56, s52, 2")
    e("s_add_u32 s56, s56, s54")
    e("s_mul_i32 s56, s56, 112")
    e("s_lshl_b32 s57, s53, 3")
    e("s_add_u32 s56, s56, s57")
    e("s_lshl_b32 s57, s55, 1")
    e("s_add_u32 s56, s56, s57")
    e("s_lshl_b32 s79, s56, 10")
    if WS_HF: e(f"s_add_u32 s79, s79, {WS_HF}")

    def params():
        e.wait(tp); yield
        e("s_bitcmp1_b32 s54, 0"); e("s_cselect_b64 s[40:41], -1, 0")
        e("s_bitcmp1_b32 s54, 1"); e("s_cselect_b64 s[42:43], -1, 0")
        e("s_mov_b32 s44, 0xffff0000"); e("s_mov_b32 s45, 0xffff0000")
        e("s_mov_b32 s46, 0"); e("s_mov_b32 s47, -1")
        e("v_lshlrev_b32 v43, 16, v43"); yield
        e("v_lshlrev_b32 v44, 16, v44"); yield
        e("v_lshlrev_b32 v45, 16, v45"); yield
        e(f"v_mul_f32 v45, {f32(LOG2E)}, v45"); yield
        e("v_exp_f32 v45, v45"); yield
        e("v_cvt_pk_bf16_f32 v45, v45, v45"); yield
        e("v_lshlrev_b32 v45, 16, v45"); yield
        e("v_mul_f32 v34, v45, v43"); yield
        e("v_mul_f32 v35, v45, v44"); yield
        e(f"v_mul_f32 v34, {f32(LOG2E)}, v34"); yield
        e("v_exp_f32 v34, v34"); yield
        e(f"v_mul_f32 v35, {f32(1.0/(2*3.141592653589793))}, v35"); yield
        e("v_fract_f32 v35, v35"); yield
        e("v_cos_f32 v36, v35"); yield
        e("v_sin_f32 v37, v35"); yield
        e(f"v_mul_f32 v{LR}, v34, v36"); yield
        e(f"v_mul_f32 v{LI}, v34, v37"); yield
        e(f"v_add_f32 v36, -1.0, v{LR}"); yield
        e("v_mul_f32 v38, v43, v43"); yield
        e("v_fmac_f32 v38, v44, v44"); yield
        e("v_rcp_f32 v38, v38"); yield
        e("v_mul_f32 v39, v36, v43"); yield
        e(f"v_fmac_f32 v39, v{LI}, v44"); yield
        e(f"v_mul_f32 v34, v{LI}, v43"); yield
        e("v_fma_f32 v34, -v36, v44, v34"); yield
        e("v_add_f32 v38, v38, v38"); yield
        e(f"v_mul_f32 v{CR}, v39, v38"); yield
        e(f"v_mul_f32 v{CI}, v34, v38"); yield
        yield from csq(e, 34, 35, LR, LI, 38)
        yield from csq(e, 36, 37, 34, 35, 38)
        yield from csq(e, L8R, L8I, 36, 37, 38)
        e(f"v_mov_b32 v{TR}, 1.0"); yield
        e(f"v_mov_b32 v{TI}, 0"); yield
        e(f"v_mov_b32 v34, v{L8R}"); yield
        e(f"v_mov_b32 v35, v{L8I}"); yield
        for b, m in enumerate(("s[44:45]", "s[46:47]", "s[40:41]", "s[42:43]")):
            yield from cmul(e, 36, 37, TR, TI, 34, 35, 38)
            e(f"v_cndmask_b32 v{TR}, v{TR}, v36, {m}"); yield
            e(f"v_cndmask_b32 v{TI}, v{TI}, v37, {m}"); yield
            e("v_mov_b32 v41, v34"); yield
            e("v_mov_b32 v42, v35"); yield
            yield from csq(e, 34, 35, 41, 42, 38)
        e(f"v_mov_b32 v{L128R}, v34"); yield
        e(f"v_mov_b32 v{L128I}, v35"); yield

    def zbuf(ks): return 96 + (ks & 1)*4
    def wbufA(ks, tl): return 104 + (ks & 1)*8 + tl*4
    def wbufB(ks, tl): return FB + (ks & 1)*8 + tl*4
    first = {}
    def mfma(acc, a, b):
        c = f"v[{acc}:{acc+15}]" if first.get(acc) else "0"
        first[acc] = True
        e(f"v_mfma_f32_32x32x16_bf16 v[{acc}:{acc+15}], v[{a}:{a+3}], v[{b}:{b+3}], {c}")
    rd_tok = {}
    def read_x(ks):
        kk = ks & 3; kc = ks >> 2
        rd_tok[("x", ks)] = [e(f"ds_read_b128 v[{XF+4*ks}:{XF+4*ks+3}], v{AX+kk} offset:{(kc%3)*16384}")]
    def read_z(ks):
        kk = ks & 3; kc = ks >> 2
        rd_tok[("z", ks)] = [e(f"ds_read_b128 v[{zbuf(ks)}:{zbuf(ks)+3}], v{AZr+kk} offset:{(kc%3)*8192}")]
    def read_w(ph, ks, tl, half):
        kk = ks & 3; w = (ks >> 2) + (0 if ph == "A" else 7)
        b = wbufA(ks, tl) if ph == "A" else wbufB(ks, tl)
        ad = AW0 if tl == 0 else AW1
        off = (w % 4)*16384 + kk*2048
        t = e(f"ds_read_b64_tr_b16 v[{b+2*half}:{b+2*half+1}], v{ad} offset:{off+512*half}")
        rd_tok.setdefault((ph, ks, tl), []).append(t)
    steps = [("A", ks) for ks in range(28)] + [("B", ks) for ks in range(28)]
    def tick_idx(ph, ks): return (ks >> 2) + (0 if ph == "A" else 7)
    def need_ents(tk):
        if tk >= 7: return [("W",tk)]
        if not ZLATE: return [("X",tk),("Z",tk),("W",tk)]
        l = [("X",tk),("W",tk)]
        if tk >= 2: l.append(("Z",tk))
        if tk >= 5: l.append(("ZC", tk - 5))
        return l
    nbar = [0]
    def enter_tick(tk):
        while any(x not in ent_tok for x in need_ents(tk)): dmaq.popleft()()
        e.wait([ent_tok[x] for x in need_ents(tk)])
        if tk == NT: nonce_publish(e, 120, M_N)
        e.wait_all(vm=False)
        e("s_barrier")
        nbar[0] += 1
        if tk == NT: nonce_read(e, 121, M_N)
        queue(*issue_for_tick(tk))

    def main_stream():
        sp = env("SETPRIO", 0)
        if sp:
            lab = e.label("K1_SP")
            e("s_cmp_lt_u32 s48, 4" if sp == 1 else "s_cmp_ge_u32 s48, 4")
            e(f"s_cbranch_scc1 {lab}")
            e("s_setprio 1")
            e.raw(f"{lab}:")
        if not RB_LATE: rowbatch_compute()
        if PSTAMP: pr.stamp()
        enter_tick(0)
        if PSTAMP: pr.stamp()
        def hasZ(ks): return (not ZLATE) or ks >= 8
        def hasC(ks): return ZLATE and ks >= 20
        def zcbuf(ks): return 248 + (ks & 1)*4
        def read_zc(ks):
            kc = ks - 20; kk = kc & 3
            e(f"v_add_u32 v46, {M_TR - ZR + (kc >> 2)*8192}, v{AZr+kk}")
            rd_tok[("zc", ks)] = [e(f"ds_read_b128 v[{zcbuf(ks)}:{zcbuf(ks)+3}], v46")]
        read_x(0); read_w("A", 0, 0, 0); read_w("A", 0, 0, 1)
        if hasZ(0): read_z(0)
        read_w("A", 0, 1, 0); read_w("A", 0, 1, 1)
        for n, (ph, ks) in enumerate(steps):
            nx = steps[n+1] if n + 1 < len(steps) else None
            x = XF + 4*ks
            if ph == "A":
                ops = [(AG[0], wbufA(ks,0), x, [("x", ks), (ph, ks, 0)])]
                if hasZ(ks): ops.append((AZ, x, zbuf(ks), [("z", ks)]))
                ops.append((AG[1], wbufA(ks,1), x, [(ph, ks, 1)]))
                if hasC(ks): ops.append((AZ, XF + 4*(ks - 20), zcbuf(ks), [("zc", ks)]))
            else:
                ops = [(AG[2], wbufB(ks,0), x, [(ph, ks, 0)]), (AG[3], wbufB(ks,1), x, [(ph, ks, 1)])]
            groups = [[] for _ in ops]
            if nx is not None:
                ph2, ks2 = nx
                if ph2 == "A":
                    rl = [lambda: read_x(ks2), lambda: read_w("A", ks2, 0, 0), lambda: read_w("A", ks2, 0, 1)]
                    if hasZ(ks2): rl.append(lambda: read_z(ks2))
                    rl += [lambda: read_w("A", ks2, 1, 0), lambda: read_w("A", ks2, 1, 1)]
                    if hasC(ks2): rl.append(lambda: read_zc(ks2))
                else:
                    rl = [lambda: read_w("B", ks2, 0, 0), lambda: read_w("B", ks2, 0, 1), lambda: read_w("B", ks2, 1, 0), lambda: read_w("B", ks2, 1, 1)]
                ns = len(ops)
                if ph == "A" and ph2 == "B": ns_use = 2
                else: ns_use = ns
                per = -(-len(rl) // ns_use)
                for k, f in enumerate(rl): groups[min(k // per, ns_use - 1)].append(f)
            for si, (acc, a, b, keys) in enumerate(ops):
                e.wait([rd_tok[k] for k in keys])
                mfma(acc, a, b)
                if nx is not None and si == 0 and (nx[1] & 3) == 0: enter_tick(tick_idx(nx[0], nx[1]))
                for f in groups[si]: f()
                dma_ok = (si == len(ops) - 1)
                did = False
                if (dma_ok or (len(dmaq) > DMA_HURRY)) and dmaq:
                    dmaq.popleft()(); did = True
                yield (ph, ks, si, did)

    aux = {}
    def tagcheck(regs):
        e(f"v_xor_b32 v44, s98, v{regs[0]}")
        for r in regs[1:]:
            e(f"v_xor_b32 v45, s98, v{r}")
            e("v_or_b32 v44, v44, v45")
        e("v_cmp_ne_u32 vcc, 0, v44")
        e("s_cmp_eq_u64 vcc, 0")
    AXW1, AXW2 = 3, 4
    def only_wave(w, name):
        lab = e.label(name)
        e(f"s_cmp_lg_u32 s48, {w}")
        e(f"s_cbranch_scc1 {lab}")
        e.cond_begin()
        return lab
    def end_only(lab):
        e.cond_end()
        e.raw(f"{lab}:")
    def aux1_issue_raw():
        e("s_lshl_b32 s61, s52, 11")
        e(f"s_add_u32 s61, s61, {WS_STAT}")
        e("v_lshlrev_b32 v120, 4, v0")
        e("buffer_load_dwordx4 v[36:39], v120, s[32:35], s61 offen sc1")
        e("buffer_load_dwordx4 v[40:43], v120, s[32:35], s61 offen offset:1024 sc1")
        e("v_lshrrev_b32 v121, 5, v0")
        e("v_mul_u32_u24 v121, 448, v121")
        e("v_and_b32 v122, 31, v0")
        e("v_add_u32 v121, v121, v122")
        e("s_lshl_b32 s61, s53, 5")
        e("v_add_u32 v121, s61, v121")
        e("v_lshlrev_b32 v121, 3, v121")
        e(f"s_mov_b32 s61, {WS_CSB}")
        e("buffer_load_dwordx2 v[124:125], v121, s[32:35], s61 offen sc1")
    def aux1_issue():
        lab = only_wave(AXW1, "K1_A1I")
        aux1_issue_raw()
        end_only(lab)
        aux["a1_vm"] = e.vm_issued
    def aux1_finish():
        lab = only_wave(AXW1, "K1_A1F")
        e.raw(f"s_waitcnt vmcnt({min(63, e.vm_issued - aux['a1_vm'])})")
        tagged_retry(e, aux1_issue_raw, lambda: tagcheck([37, 39, 41, 43, 125]), "K1_A1", cnt="s63")
        e("v_rcp_f32 v37, v38")
        e("v_rcp_f32 v41, v42")
        e("v_lshlrev_b32 v120, 3, v0")
        e(f"v_add_u32 v120, {M_ST}, v120")
        e("ds_write_b64 v120, v[36:37]")
        e("ds_write_b64 v120, v[40:41] offset:512")
        e("v_lshlrev_b32 v120, 2, v0")
        e(f"v_add_u32 v120, {M_SD}, v120")
        e("ds_write_b32 v120, v38")
        e("ds_write_b32 v120, v42 offset:256")
        e(f"ds_write_b32 v120, v124 offset:{M_CB - M_SD}")
        e.raw("s_waitcnt lgkmcnt(0)")
        end_only(lab)
    def aux1_read():
        e(f"v_and_b32 v34, 0x1f0, v{VH}"); yield
        e("v_lshrrev_b32 v34, 1, v34"); yield
        e("s_lshl_b32 s56, s54, 8")
        e(f"s_add_u32 s56, s56, {M_ST}")
        e("v_add_u32 v35, s56, v34"); yield
        t1 = e("ds_read_b64 v[36:37], v35"); yield
        e("v_lshrrev_b32 v34, 1, v34"); yield
        e("s_lshl_b32 s56, s54, 7")
        e(f"s_add_u32 s56, s56, {M_SD}")
        e("v_add_u32 v34, s56, v34"); yield
        t2 = e(f"ds_read_b32 v{SD}, v34"); yield
        e("v_and_b32 v34, 15, v0"); yield
        e("s_lshl_b32 s56, s55, 6")
        e(f"s_add_u32 s56, s56, {M_CB}")
        e("v_lshlrev_b32 v34, 2, v34"); yield
        e("v_add_u32 v34, s56, v34"); yield
        t3 = [e(f"ds_read_b32 v{CSR}, v34"), e(f"ds_read_b32 v{CSI}, v34 offset:128")]; yield
        e("v_lshrrev_b32 v34, 4, v0"); yield
        e("s_lshl_b32 s56, s54, 8")
        e(f"s_add_u32 s56, s56, {M_ST}")
        e("v_lshlrev_b32 v34, 6, v34"); yield
        e("v_add_u32 v34, s56, v34"); yield
        e.wait(t1); yield
        e(f"v_mov_b32 v{M_}, v36"); yield
        e(f"v_mul_f32 v{NLR}, {f32(-LOG2E)}, v37"); yield
        aux["st"] = [e("ds_read_b128 v[36:39], v34"), e("ds_read_b128 v[40:43], v34 offset:16")]
        aux["lane"] = [t2, t3]
        yield
    def aux2_issue_raw():
        e("s_lshl_b32 s61, s53, 10")
        e(f"s_add_u32 s61, s61, {WS_CSW}")
        e("v_lshlrev_b32 v136, 4, v0")
        e("buffer_load_dwordx4 v[128:131], v136, s[32:35], s61 offen sc1")
        e(f"s_add_u32 s61, s61, {1792*8}")
        e("buffer_load_dwordx4 v[132:135], v136, s[32:35], s61 offen sc1")
    def aux2_issue():
        lab = only_wave(AXW2, "K1_A2I")
        aux2_issue_raw()
        end_only(lab)
        aux["a2_vm"] = e.vm_issued
    def tagcheck2(regs):
        e(f"v_xor_b32 v137, s98, v{regs[0]}")
        for r in regs[1:]:
            e(f"v_xor_b32 v138, s98, v{r}")
            e("v_or_b32 v137, v137, v138")
        e("v_cmp_ne_u32 vcc, 0, v137")
        e("s_cmp_eq_u64 vcc, 0")
    def aux2_finish():
        lab = only_wave(AXW2, "K1_A2F")
        e.raw(f"s_waitcnt vmcnt({min(63, e.vm_issued - aux['a2_vm'])})")
        tagged_retry(e, aux2_issue_raw, lambda: tagcheck2([129, 131, 133, 135]), "K1_A2", cnt="s63")
        e("v_mov_b32 v129, v130")
        e("v_mov_b32 v133, v134")
        e("v_lshlrev_b32 v136, 3, v0")
        e(f"v_add_u32 v136, {M_CS}, v136")
        e("ds_write_b64 v136, v[128:129]")
        e("ds_write_b64 v136, v[132:133] offset:512")
        e.raw("s_waitcnt lgkmcnt(0)")
        end_only(lab)
    def cs_base():
        e("v_lshrrev_b32 v46, 5, v0"); yield
        e("v_lshlrev_b32 v46, 4, v46"); yield
        e("s_lshl_b32 s56, s55, 7")
        e(f"s_add_u32 s56, s56, {M_CS}")
        e("v_add_u32 v46, s56, v46"); yield
    def cs_reads(tl, CSB):
        o = (tl >> 1)*256 + (tl & 1)*64
        aux[("cs", tl)] = [e(f"ds_read_b128 v[{CSB}:{CSB+3}], v46 offset:{o}"),
                           e(f"ds_read_b128 v[{CSB+4}:{CSB+7}], v46 offset:{o+32}"),
                           e(f"ds_read_b128 v[{CSB+8}:{CSB+11}], v46 offset:{o+512}"),
                           e(f"ds_read_b128 v[{CSB+12}:{CSB+15}], v46 offset:{o+544}")]
        yield

    def z_pass1():
        e.wait(aux["lane"]); yield
        for i in range(8):
            e(f"v_permlane16_swap_b32 v{AZ+i}, v{AZ+8+i}"); yield
        st = list(aux["st"])
        for g in range(4):
            b = 36 + (g & 1)*4
            e.wait(st[g]); yield
            for u in range(2):
                i = 2*g + u; mm = b + 2*u
                e(f"v_fma_f32 v{AZ+i}, -v{mm}, v{CSR}, v{AZ+i}"); yield
                e(f"v_fma_f32 v{AZ+8+i}, -v{mm}, v{CSI}, v{AZ+8+i}"); yield
            for u in range(2):
                i = 2*g + u; rr = b + 2*u + 1
                e(f"v_mul_f32 v{AZ+i}, v{AZ+i}, v{rr}"); yield
                e(f"v_mul_f32 v{AZ+8+i}, v{AZ+8+i}, v{rr}"); yield
            if g + 2 < 4:
                st.append(e(f"ds_read_b128 v[{b}:{b+3}], v34 offset:{(g+2)*16}")); yield
        pr_, pi_ = AZ, AZ + 8
        for i in range(1, 8):
            d = (44, 45) if (i & 1) else (ER, EI)
            yield from cfma_to(e, d[0], d[1], pr_, pi_, LR, LI, AZ+i, AZ+8+i)
            pr_, pi_ = d
        e(f"v_mul_f32 v36, v{CI}, v45"); yield
        e(f"v_mul_f32 v37, v{CI}, v44"); yield
        e(f"v_fma_f32 v{ER}, v{CR}, v44, -v36"); yield
        e(f"v_fma_f32 v{EI}, v{CR}, v45, v37"); yield
    def hier1():
        e(f"v_mov_b32 v1, v{ER}"); yield
        e(f"v_mov_b32 v2, v{ER}"); yield
        e(f"v_mov_b32 v3, v{EI}"); yield
        e(f"v_mov_b32 v4, v{EI}"); yield
        yield from csq(e, 7, 8, L8R, L8I, 34)
        e("v_permlane16_swap_b32 v1, v2"); yield
        e("v_permlane16_swap_b32 v3, v4"); yield
        yield from cfma_to(e, 5, 6, 1, 3, L8R, L8I, 2, 4)
        e("v_mov_b32 v28, v5"); yield
        e("v_mov_b32 v36, v5"); yield
        e("v_mov_b32 v29, v6"); yield
        e("v_mov_b32 v34, v6"); yield
        e("v_and_b32 v35, 15, v0"); yield
        e("s_lshl_b32 s56, s55, 4")
        e("v_add_u32 v35, s56, v35"); yield
        e("v_lshlrev_b32 v35, 3, v35"); yield
        e("v_permlane32_swap_b32 v28, v36"); yield
        e("v_permlane32_swap_b32 v29, v34"); yield
        e(f"v_add_u32 v35, {M_SEG}, v35"); yield
        yield from cfma_to(e, 5, 6, 28, 29, 7, 8, 36, 34)
        e("s_lshl_b32 s56, s54, 8")
        e("v_add_u32 v34, s56, v35"); yield
        e("v_mov_b32 v44, v5"); yield
        e("v_mov_b32 v45, v6"); yield
        e("ds_write_b64 v34, v[44:45]"); yield
    def hier2():
        tk = [e(f"ds_read_b64 v[{36+2*u}:{37+2*u}], v35 offset:{u*256}") for u in range(3)]
        yield
        yield from csq(e, 42, 43, 7, 8, 44)
        e.wait(tk); yield
        yield from cfma_to(e, 44, 45, 36, 37, 42, 43, 38, 39)
        yield from cfma_to(e, 2, 4, 44, 45, 42, 43, 40, 41)
        e("v_cndmask_b32 v2, v44, v2, s[40:41]"); yield
        e("v_cndmask_b32 v4, v45, v4, s[40:41]"); yield
        e("v_cndmask_b32 v36, 0, v36, s[40:41]"); yield
        e("v_cndmask_b32 v37, 0, v37, s[40:41]"); yield
        e("v_cndmask_b32 v36, v36, v2, s[42:43]"); yield
        e("v_cndmask_b32 v37, v37, v4, s[42:43]"); yield
        lab = e.label("K1_NOPUB")
        e("s_cmp_lg_u32 s54, 3")
        e(f"s_cbranch_scc1 {lab}")
        e.cond_begin()
        for _ in cfma_to(e, 38, 40, 36, 37, 42, 43, 5, 6): pass
        e("v_mov_b32 v39, s98"); e("v_mov_b32 v41, s98")
        e("v_and_b32 v34, 15, v0")
        e("v_add_u32 v34, s78, v34")
        e("v_lshlrev_b32 v34, 4, v34")
        e(f"s_mul_i32 s56, s52, {448*16}")
        e(f"s_add_u32 s56, s56, {WS_E}")
        e("s_mov_b64 s[58:59], exec")
        e("s_mov_b64 exec, 0xffff")
        e("buffer_store_dwordx4 v[38:41], v34, s[32:35], s56 offen sc1")
        e("s_mov_b64 exec, s[58:59]")
        e.cond_end()
        e.raw(f"{lab}:")
        yield
        yield from cfma_to(e, 38, 39, 36, 37, 7, 8, 28, 29)
        e("v_cndmask_b32 v36, v36, v38, s[46:47]"); yield
        e("v_cndmask_b32 v37, v37, v39, s[46:47]"); yield
        yield from cfma_to(e, 38, 39, 36, 37, L8R, L8I, 1, 3)
        e(f"v_cndmask_b32 v{PR}, v36, v38, s[44:45]"); yield
        e(f"v_cndmask_b32 v{PI}, v37, v39, s[44:45]"); yield
    def zscale():
        for i in range(0, 8, 2):
            for u in range(2):
                e(f"v_mul_f32 v{36+2*u}, v{CI}, v{AZ+8+i+u}"); yield
                e(f"v_mul_f32 v{37+2*u}, v{CI}, v{AZ+i+u}"); yield
            for u in range(2):
                e(f"v_fma_f32 v{AZ+i+u}, v{CR}, v{AZ+i+u}, -v{36+2*u}"); yield
                e(f"v_fma_f32 v{AZ+8+i+u}, v{CR}, v{AZ+8+i+u}, v{37+2*u}"); yield
    def gu_math(acc, CSB):
        for i in range(8):
            e(f"v_fma_f32 v{acc+i}, -v{M_}, v{CSB+i}, v{acc+i}"); yield
        for i in range(8):
            e(f"v_mul_f32 v{acc+i}, v{acc+i}, v{NLR}"); yield
        for i in range(8):
            e(f"v_exp_f32 v{acc+i}, v{acc+i}"); yield
            e(f"v_fma_f32 v{acc+8+i}, -v{M_}, v{CSB+8+i}, v{acc+8+i}"); yield
        for i in range(8):
            e(f"v_fma_f32 v{acc+i}, v{acc+i}, v{SD}, v{SD}"); yield
        for i in range(8):
            e(f"v_rcp_f32 v{acc+i}, v{acc+i}"); yield
        for i in range(8):
            e(f"v_mul_f32 v{acc+i}, v{acc+i}, v{acc+8+i}"); yield
        for p in range(4):
            e(f"v_cvt_pk_bf16_f32 v{acc+8+p}, v{acc+2*p}, v{acc+2*p+1}"); yield
    def gu_epi(tl, CSB):
        acc = AG[tl]
        e.wait(aux[("cs", tl)]); yield
        yield from gu_math(acc, CSB)
        e(f"s_add_u32 s56, s79, {((tl>>1)*4 + (tl&1))*1024}")
        e(f"buffer_store_dwordx4 v[{acc+8}:{acc+11}], v{VH}, s[32:35], s56 offen{STF}"); yield

    ebq = deque()
    def early_B_setup():
        e(f"v_lshrrev_b32 v{EBV}, 3, v0")
        e("s_lshl_b32 s57, s48, 3")
        e(f"v_add_u32 v{EBV}, s57, v{EBV}")
        e(f"v_mul_u32_u24 v{EBV}, 896, v{EBV}")
        e("v_and_b32 v11, 7, v0")
        e("v_bfe_u32 v12, v0, 4, 1")
        e("v_lshlrev_b32 v12, 2, v12")
        e("v_xor_b32 v11, v11, v12")
        e(f"v_lshl_add_u32 v{EBV}, v11, 4, v{EBV}")
        if os.environ.get("NOPF"):
            e("s_load_dwordx2 s[92:93], s[0:1], 96"); e.raw("s_waitcnt lgkmcnt(0)"); e.smem_out = False; e.lg_done = e.lg_issued
            e("s_and_b32 s93, s93, 0xffff")
        else:
            e("s_mov_b32 s92, s86"); e("s_and_b32 s93, s87, 0xffff")
        e(f"s_mov_b32 s94, {1792*448*2}"); e("s_mov_b32 s95, 0x20000")
        e("s_cmp_ge_u32 s53, 7")
        e("s_cselect_b32 s57, 7, 0")
        e("s_sub_u32 s57, s53, s57")
        e("s_and_b32 s70, s51, 3")
        e("s_mul_i32 s70, s70, 7")
        e("s_lshl_b32 s71, s57, 2")
        e("s_add_u32 s70, s70, s71")
        e("s_cmp_ge_u32 s70, 28")
        e("s_cselect_b32 s71, 28, 0")
        e("s_sub_u32 s70, s70, s71")
        e("s_lshl_b32 s71, s57, 7")
        e("s_lshl_b32 s69, s48, 10")
    def early_B_queue(t0, t1):
        def mk(t):
            def f():
                e(f"s_add_u32 m0, s69, {t*8192}")
                e(f"s_mul_i32 s68, s70, {64*896}")
                e("s_add_u32 s68, s68, s71")
                e(f"buffer_load_dwordx4 v{EBV}, s[92:95], s68 offen lds")
                e("s_add_u32 s70, s70, 1"); e("s_cmp_eq_u32 s70, 28"); e("s_cselect_b32 s70, 0, s70")
            return f
        for t in range(t0, t1): ebq.append(mk(t))
    def drain_eb(gen, every=18):
        k = 0
        for _ in gen:
            k += 1
            if k % every == 0 and ebq: ebq.popleft()()
    M_PF = 162304
    def k2_touch(k, slot):
        PFT = 139 if slot < 18 else 160
        assert slot >= 6
        lab = e.label("K1_PF")
        e(f"s_cmp_lg_u32 s48, {k & 7}")
        e(f"s_cbranch_scc1 {lab}")
        e.cond_begin()
        if k < 7:
            e("s_mul_i32 s61, s51, 448"); e(f"s_add_u32 s61, s61, {64*k}"); base = "s[86:87]"; lim = 12543
        elif k < 9:
            e("s_mul_i32 s61, s51, 112"); e(f"s_add_u32 s61, s61, {64*(k-7)}"); base = "s[88:89]"; lim = 3135
        else:
            e("s_mul_i32 s61, s51, 112"); e(f"s_add_u32 s61, s61, {64*(k-9)}"); base = "s[90:91]"; lim = 3135
        e(f"v_add_u32 v{PFT}, s61, v0")
        e(f"v_min_u32 v{PFT}, {lim}, v{PFT}")
        e(f"s_mov_b32 m0, {M_PF}")
        e(f"v_lshlrev_b32 v{PFT}, 7, v{PFT}")
        e(f"global_load_lds_dword v{PFT}, {base}")
        e.cond_end()
        e.raw(f"{lab}:")
    EL = 160
    def e_issue_raw():
        e("v_lshrrev_b32 v180, 4, v0")
        e("v_and_b32 v181, 15, v0")
        e("v_add_u32 v181, s78, v181")
        e("v_lshlrev_b32 v181, 4, v181")
        e("s_sub_u32 s63, s52, 1")
        e(f"s_mov_b32 s61, {WS_E}")
        for m in range(4):
            e(f"v_add_u32 v{176+m}, {4*m}, v180")
            e(f"v_min_u32 v{176+m}, s63, v{176+m}")
            e(f"v_mul_u32_u24 v{176+m}, {448*16}, v{176+m}")
            e(f"v_add_u32 v{176+m}, v{176+m}, v181")
            e(f"buffer_load_dwordx4 v[{EL+4*m}:{EL+4*m+3}], v{176+m}, s[32:35], s61 offen sc1")
    def e_issue():
        lab = e.label("K1_EI")
        e("s_cmp_eq_u32 s52, 0")
        e(f"s_cbranch_scc1 {lab}")
        e.cond_begin(); e_issue_raw(); e.cond_end()
        e.raw(f"{lab}:")
    def e_consts():
        yield from csq(e, 182, 183, L128R, L128I, 188)
        yield from cmul(e, 184, 185, 182, 183, L128R, L128I, 188)
        yield from csq(e, 186, 187, 182, 183, 188)
        e("v_lshrrev_b32 v190, 4, v0"); yield
        e("s_sub_u32 s63, s52, 1")
        e("v_sub_u32 v190, s63, v190"); yield
        e("v_and_b32 v191, 3, v190"); yield
        e("v_ashrrev_i32 v190, 2, v190"); yield
        e("v_mov_b32 v192, 1.0"); yield
        e("v_mov_b32 v193, 0"); yield
        for k, (rr, ii) in enumerate(((L128R, L128I), (182, 183), (184, 185))):
            e(f"v_cmp_eq_u32 vcc, {k+1}, v191"); yield
            e(f"v_cndmask_b32 v192, v192, v{rr}, vcc"); yield
            e(f"v_cndmask_b32 v193, v193, v{ii}, vcc"); yield
    def e_check(nafter):
        skip = e.label("K1_ESK"); ok = e.label("K1_EOK"); chk = e.label("K1_ECK")
        e("s_cmp_eq_u32 s52, 0")
        e(f"s_cbranch_scc1 {skip}")
        e.cond_begin()
        e.raw(f"s_waitcnt vmcnt({nafter})")
        e("s_mov_b32 s62, 0")
        e.raw(f"{chk}:")
        e(f"v_xor_b32 v44, s98, v{EL+1}")
        for r in (EL+3, EL+5, EL+7, EL+9, EL+11, EL+13, EL+15):
            e(f"v_xor_b32 v45, s98, v{r}")
            e("v_or_b32 v44, v44, v45")
        e("v_cmp_ne_u32 vcc, 0, v44")
        e("s_cmp_eq_u64 vcc, 0")
        e(f"s_cbranch_scc1 {ok}")
        e("s_add_u32 s62, s62, 1")
        e("s_cmp_ge_u32 s62, 100000")
        e(f"s_cbranch_scc1 {ok}")
        e_issue_raw()
        e.raw("s_waitcnt vmcnt(0)")
        e(f"s_branch {chk}")
        e.raw(f"{ok}:")
        e.cond_end()
        e.raw(f"{skip}:")
    def carry_and_pass2():
        lab0 = e.label("K1_NOCARRY")
        e("v_mov_b32 v44, 0"); e("v_mov_b32 v45, 0")
        e("s_cmp_eq_u32 s52, 0")
        e(f"s_cbranch_scc1 {lab0}")
        for m in range(4):
            er, ei = EL+4*m, EL+4*m+2
            e(f"v_cmp_le_i32 vcc, {m}, v190")
            e(f"v_fma_f32 v{er}, v186, v44, v{er}")
            e(f"v_fma_f32 v{ei}, v186, v45, v{ei}")
            e(f"v_fma_f32 v{er}, -v187, v45, v{er}")
            e(f"v_fma_f32 v{ei}, v187, v44, v{ei}")
            e(f"v_cndmask_b32 v44, v44, v{er}, vcc")
            e(f"v_cndmask_b32 v45, v45, v{ei}, vcc")
        e("v_mul_f32 v40, v193, v45")
        e("v_mul_f32 v41, v193, v44")
        e("v_fma_f32 v44, v192, v44, -v40")
        e("v_fma_f32 v45, v192, v45, v41")
        e("v_mov_b32 v40, v44"); e("v_mov_b32 v41, v45")
        e("v_permlane16_swap_b32 v44, v40"); e("v_permlane16_swap_b32 v45, v41")
        e("v_add_f32 v44, v44, v40"); e("v_add_f32 v45, v45, v41")
        e("v_mov_b32 v40, v44"); e("v_mov_b32 v41, v45")
        e("v_permlane32_swap_b32 v44, v40"); e("v_permlane32_swap_b32 v45, v41")
        e("v_add_f32 v44, v44, v40"); e("v_add_f32 v45, v45, v41")
        e.raw(f"{lab0}:")
        e(f"v_fma_f32 v{PR}, v{TR}, v44, v{PR}")
        e(f"v_fma_f32 v{PI}, v{TR}, v45, v{PI}")
        e(f"v_fma_f32 v{PR}, -v{TI}, v45, v{PR}")
        e(f"v_fma_f32 v{PI}, v{TI}, v44, v{PI}")
        pr_, pi_ = PR, PI
        for i in range(8):
            zr, zi = AZ + i, AZ + 8 + i
            e(f"v_fma_f32 v{zr}, v{LR}, v{pr_}, v{zr}")
            e(f"v_fma_f32 v{zi}, v{LR}, v{pi_}, v{zi}")
            e(f"v_fma_f32 v{zr}, -v{LI}, v{pi_}, v{zr}")
            e(f"v_fma_f32 v{zi}, v{LI}, v{pr_}, v{zi}")
            pr_, pi_ = zr, zi
        for p in range(4):
            e(f"v_cvt_pk_bf16_f32 v{36+p}, v{AZ+2*p}, v{AZ+2*p+1}")
            e(f"v_cvt_pk_bf16_f32 v{40+p}, -v{AZ+8+2*p}, -v{AZ+8+2*p+1}")
        e("ds_write_b128 v1, v[36:39]")
        e("ds_write_b128 v1, v[40:43] offset:1024")
        e.wait_all(vm=False)
        tk = [e("ds_read_b64_tr_b16 v[36:37], v2"), e("ds_read_b64_tr_b16 v[38:39], v2 offset:256"),
              e("ds_read_b64_tr_b16 v[40:41], v2 offset:1024"), e("ds_read_b64_tr_b16 v[42:43], v2 offset:1280")]
        e.wait(tk)
        e(f"buffer_store_dwordx4 v[36:39], v3, s[32:35], s76 offen{STF}")
        e("s_add_u32 s76, s76, 4096")
        e(f"buffer_store_dwordx4 v[40:43], v3, s[32:35], s76 offen{STF}")
    def tail_addr():
        e("s_lshl_b32 s56, s48, 11")
        e(f"s_add_u32 s56, s56, {M_TR}")
        e("v_and_b32 v1, 15, v0"); yield
        e("v_lshlrev_b32 v1, 6, v1"); yield
        e("v_lshrrev_b32 v2, 4, v0"); yield
        e("v_lshl_add_u32 v1, v2, 4, v1"); yield
        e("v_add_u32 v1, s56, v1"); yield
        e("v_lshrrev_b32 v2, 5, v0"); yield
        e("v_bfe_u32 v3, v0, 2, 2"); yield
        e("v_lshl_add_u32 v2, v2, 3, v3"); yield
        e("v_lshlrev_b32 v2, 6, v2"); yield
        e("v_bfe_u32 v3, v0, 4, 1"); yield
        e("v_lshl_add_u32 v2, v3, 5, v2"); yield
        e("v_and_b32 v3, 3, v0"); yield
        e("v_lshl_add_u32 v2, v3, 3, v2"); yield
        e("v_add_u32 v2, s56, v2"); yield
        e("v_lshlrev_b32 v3, 4, v0"); yield
        e("s_lshl_b32 s56, s53, 1")
        e("s_add_u32 s56, s56, s55")
        e("s_lshr_b32 s57, s56, 2")
        e("s_lshl_b32 s57, s57, 3")
        e("s_and_b32 s56, s56, 3")
        e("s_add_u32 s56, s56, s57")
        e("s_lshl_b32 s57, s52, 2")
        e("s_add_u32 s57, s57, s54")
        e("s_mul_i32 s57, s57, 56")
        e("s_add_u32 s56, s56, s57")
        e("s_lshl_b32 s56, s56, 10")
        e(f"s_add_u32 s76, s56, {WS_hF}")
        yield

    def cost(i):
        if i.cls == "valu": return 2.0 if i.op in TRANS else 1.0
        if i.cls in ("ds", "vmem"): return 0.5
        return 0.1
    class Fill:
        def __init__(self): self.q = []; self.cur = None; self.barrier_at = None
        def add(self, *items): self.q += list(items)
        def run(self, budget, tick):
            spent = 0.0
            while spent < budget:
                if self.cur is None:
                    if not self.q: return
                    it = self.q[0]
                    if it == "barrier":
                        if self.barrier_at is None: self.barrier_at = tick
                        if tick <= self.barrier_at: return
                        self.barrier_at = None; self.q.pop(0); continue
                    if it == "aux2gate":
                        if "a2_tick" not in aux or tick <= aux["a2_tick"]: return
                        self.q.pop(0); continue
                    if it == "step17":
                        if tick < 13: return
                        self.q.pop(0); continue
                    self.q.pop(0); self.cur = it() if callable(it) else it
                n0 = len(e.ins)
                try: next(self.cur)
                except StopIteration: self.cur = None
                spent += sum(cost(i) for i in e.ins[n0:])
        def flush(self):
            while self.cur is not None or self.q:
                if self.cur is None:
                    it = self.q.pop(0)
                    if it == "step17": continue
                    if it == "barrier" or it == "aux2gate":
                        e.wait_all(vm=False); e("s_barrier"); self.barrier_at = None
                        continue
                    self.cur = it() if callable(it) else it
                for _ in self.cur: pass
                self.cur = None
    F = Fill()
    F.add(params)
    slot = {"A": 0, "B": 0}
    last = None
    for (ph, ks, si, did) in main_stream():
        if (ph, ks) != last and (ph, ks) in STAMPS: pr.stamp()
        last = (ph, ks)
        n = slot[ph]; slot[ph] += 1
        tk = nbar[0]
        if NOEPI:
            if ph == "A" and not did: F.run(BUDGET_A, tk)
            continue
        if ph == "A":
            if COOP and n == CT2: coop_touch(3, 4, 0, False, 226)
            if COOP and n == CT3: coop_touch(0, 4, 128, True, 226)
            if COOP and n == CT4: coop_touch(4, 3, 128, True, 226)
            if n == RB_SLOT and RB_LATE: rowbatch_compute()
            if n == PUB_SLOT: rowbatch_publish()
            if n == AUX_LOAD: F.flush(); aux1_issue()
            if n == AUX_FIN: aux1_finish(); F.add("barrier", aux1_read)
            if not did: F.run(BUDGET_A, tk)
        else:
            if n == 0:
                F.flush()
                if ZFIRST:
                    drain(z_pass1()); drain(hier1())
                    e.wait_all(vm=False); e("s_barrier")
                    drain(hier2())
                    F.add(zscale, cs_base, tail_addr, "aux2gate",
                          lambda: cs_reads(0, 128), lambda: cs_reads(1, 144), lambda: gu_epi(0, 128),
                          lambda: cs_reads(2, 128), lambda: gu_epi(1, 144), lambda: cs_reads(3, 144), "step17", e_consts)
                else:
                  F.add(z_pass1, hier1, "barrier", hier2, zscale, cs_base, "aux2gate",
                      lambda: cs_reads(0, 128), lambda: cs_reads(1, 144), lambda: gu_epi(0, 128),
                      lambda: cs_reads(2, 128), lambda: gu_epi(1, 144), lambda: cs_reads(3, 144), tail_addr)
            if fused and G.EARLY_B and n == 1:
                early_B_setup(); early_B_queue(0, G.EARLY_B1)
            if fused and n >= EB_SLOT and (n - EB_SLOT) % EB_GAP == 0 and ebq and (n & 1) == 0: ebq.popleft()()
            if n == AUX2_SLOT: aux2_issue()
            if n == AUX2_FIN: aux2_finish(); aux["a2_tick"] = tk
            if PF_SLOT >= 0 and n >= PF_SLOT and (n - PF_SLOT) % PF_GAP == 0 and (n - PF_SLOT) // PF_GAP < 11: k2_touch((n - PF_SLOT) // PF_GAP, n)
            if not did: F.run(BUDGET_B0 if n < BSW else BUDGET_B, tk)
    if NOEPI:
        pr.dump(32, 48)
        e.raw("K1_END:")
        e("s_endpgm")
        gen_helper(e)
        return 256
    e_issue(); aux["e_vm"] = e.vm_issued
    if fused and G.EARLY_B > G.EARLY_B1:
        while ebq: ebq.popleft()()
        e.wait_all(vm=False); e("s_barrier")
        early_B_queue(G.EARLY_B1, G.EARLY_B)
    if TAILST2: pr.stamp()
    F.flush()
    if TAILST2: pr.stamp()
    if not ZFIRST and not ECLATE: drain_eb(e_consts(), 12)
    drain_eb(gu_epi(2, 128), 10)
    if TAILST2: pr.stamp()
    drain_eb(gu_epi(3, 144), 10)
    while ebq: ebq.popleft()()
    if not ZFIRST and ECLATE: drain(e_consts())
    if TAILST: pr.stamp()
    e_check(e.vm_issued - aux["e_vm"])
    if TAILST2: pr.stamp()
    carry_and_pass2()
    pr.stamp()
    pr.dump(32, 48)
    if fused:
        if G.PROFILE: e("s_mov_b64 exec, -1")
        G.gen_k2(e, fused=True)
    e.raw("K1_END:")
    e("s_endpgm")
    gen_helper(e)
    return 256
```

```python
import sys
sys.path.insert(0, "dev")
from asmlib import *

NAME = "recurrent_scan__ssm_conv_s5__glu_gated_glu__prompt"
WS_HF   = 0
WS_hF   = 64*112*1024
WS_STAT = WS_hF + 64*56*1024
WS_CSW  = WS_STAT + 2048*16
WS_CSB  = WS_CSW + 3584*8
WS_E    = WS_CSB + 896*8
WS_DONE = WS_E + 16*448*16
WS_END  = WS_DONE + 16*128
LOG2E = 1.4426950408889634
import struct, os
def f32(x): return "0x%08x" % struct.unpack("<I", struct.pack("<f", x))[0]

def srd(e, s, ptr, nbytes):
    e(f"s_mov_b32 s{s}, s{ptr}")
    e(f"s_and_b32 s{s+1}, s{ptr+1}, 0xffff")
    e(f"s_mov_b32 s{s+2}, {nbytes}")
    e(f"s_mov_b32 s{s+3}, 0x20000")

def bf16_round_pair(e, dst_lo, dst_hi, a, b, tmp):
    e(f"v_cvt_pk_bf16_f32 v{tmp}, v{a}, v{b}")
    yield
    e(f"v_lshlrev_b32 v{dst_lo}, 16, v{tmp}")
    yield
    e(f"v_and_b32 v{dst_hi}, 0xffff0000, v{tmp}")
    yield

PROFILE = False
WS_PROF = 12 << 20
class Prof:
    def __init__(self, e, kern): self.e = e; self.k = kern; self.n = 0
    def stamp(self):
        if not PROFILE: return
        e = self.e
        import os
        e.raw("s_memtime s[96:97]" if os.environ.get("CLK") == "cyc" else "s_memrealtime s[96:97]")
        e.raw("s_waitcnt lgkmcnt(0)"); e.lg_done = e.lg_issued
        e.raw(f"s_mov_b32 s{80+self.n}, s96"); self.n += 1
        assert self.n <= ((6 if not os.environ.get('NOPF') else 12) if self.k == 0 else 12)
    def dump(self, srd_ws, wave_s):
        if not PROFILE: return
        e = self.e
        e(f"s_lshl_b32 s96, s2, 3"); e(f"s_add_u32 s96, s96, s{wave_s}"); e("s_lshl_b32 s96, s96, 6")
        e(f"s_add_u32 s96, s96, {WS_PROF + self.k*256*8*64}")
        for i in range(16):
            e(f"v_mov_b32 v{200+i}, s{80+i}" if i < self.n else f"v_mov_b32 v{200+i}, 0")
        e("v_mov_b32 v216, 0")
        e("s_mov_b64 exec, 1")
        for q in range(4):
            e(f"buffer_store_dwordx4 v[{200+4*q}:{203+4*q}], v216, s[{srd_ws}:{srd_ws+3}], s96 offen offset:{16*q}")
        e("s_waitcnt vmcnt(0)")

def pull(gen, n):
    if gen is None: return None
    for _ in range(n):
        try: next(gen)
        except StopIteration: return None
    return gen
def drain(gen):
    if gen is None: return
    for _ in gen: pass

K2_R = 9
K2_STAGE = 16384
K2RA = int(os.environ.get("K2RA", "5"))
EARLY_B = int(os.environ.get("EARLY_B", "12"))
EARLY_B1 = int(os.environ.get("EARLY_B1", "9"))
def gen_k2(e, fused=False):
    global K2_R
    RA = K2RA if fused else K2_R
    RB = (20 - RA) if fused else K2_R
    if not fused: RA, RB = 9, 9
    def baseB(t): return (t % RB) * 8192
    def baseA(t): return RB * 8192 + (t % RA) * 8192
    if not fused:
        e.raw("k2_kernel:")
        e("s_cmp_ge_u32 s2, 224")
        e("s_cbranch_scc1 K2_END")
    else:
        e("s_setprio 0")
        e("s_lshl_b32 s76, s52, 7")
        e(f"s_add_u32 s76, s76, {WS_DONE}")
        e("s_lshl_b32 s79, s53, 2")
        e("s_and_b32 s71, s51, 3")
        e("s_cmp_ge_u32 s53, 7")
        e("s_cselect_b32 s49, 1, 0")
        e("s_cselect_b32 s50, 7, 0")
        e("s_sub_u32 s50, s53, s50")
        e("s_lshl_b32 s51, s52, 1")
        e("s_add_u32 s49, s49, s51")
        e("s_mov_b32 s72, s32"); e("s_mov_b32 s73, s33"); e("s_mov_b32 s74, s34"); e("s_mov_b32 s75, s35")
    e("s_load_dwordx2 s[4:5], s[0:1], 0")
    e("s_load_dwordx2 s[6:7], s[0:1], 40")
    e("s_load_dwordx2 s[8:9], s[0:1], 48")
    e("s_load_dwordx2 s[10:11], s[0:1], 64")
    e("s_load_dwordx2 s[12:13], s[0:1], 96")
    e("s_load_dwordx2 s[14:15], s[0:1], 104")
    t = e("s_load_dwordx2 s[16:17], s[0:1], 120")
    if not fused:
        e("v_lshrrev_b32 v1, 6, v0")
        e("v_and_b32 v0, 63, v0")
        e("v_readfirstlane_b32 s48, v1")
        e("s_and_b32 s49, s2, 7")
        e("s_lshl_b32 s49, s49, 2")
        e("s_lshr_b32 s50, s2, 3")
        e("s_and_b32 s51, s50, 3")
        e("s_mov_b32 s71, s51")
        e("s_add_u32 s49, s49, s51")
        e("s_lshr_b32 s50, s50, 2")
    e.wait(t)
    srd(e, 20, 4, 2048*448*2)
    srd(e, 24, 6, 448*448*2)
    srd(e, 28, 8, 448*448*2)
    srd(e, 32, 10, 448*2)
    srd(e, 36, 12, 1792*448*2)
    srd(e, 40, 14, 2048*448*4)
    srd(e, 44, 16, WS_END if not PROFILE else (16 << 20))
    if fused:
        e.raw("s_waitcnt vmcnt(2) lgkmcnt(0)")
        e("s_barrier")
        lab = e.label("F_NOADD")
        e("s_cmp_lg_u32 s48, 0")
        e(f"s_cbranch_scc1 {lab}")
        e("v_mov_b32 v2, s79")
        e("v_mov_b32 v3, s98")
        e("s_mov_b64 exec, 1")
        e("buffer_store_dword v3, v2, s[72:75], s76 offen sc1")
        e("s_mov_b64 exec, -1")
        e.raw(f"{lab}:")
        e.lg_issued = e.lg_done = 0; e.vm_issued = e.vm_done = 0
    pr = Prof(e, 1); pr.stamp()
    e("s_cmp_ge_u32 s48, 4")
    e("s_cbranch_scc1 K2_LOADER")
    e("s_and_b32 s52, s48, 1")
    e("s_lshr_b32 s53, s48, 1")
    e("v_and_b32 v1, 31, v0")
    e("v_lshrrev_b32 v2, 5, v0")
    e("v_and_b32 v3, 15, v0")
    e("v_lshrrev_b32 v4, 4, v0")
    e("s_lshl_b32 s54, s49, 6")
    e("s_lshl_b32 s55, s52, 5")
    e("s_add_u32 s54, s54, s55")
    e("v_add_u32 v5, s54, v1")
    e("s_lshl_b32 s55, s50, 6")
    e("s_lshl_b32 s56, s53, 5")
    e("s_add_u32 s55, s55, s56")
    e("v_lshlrev_b32 v6, 2, v2")
    e("v_add_u32 v6, s55, v6")
    e("s_movk_i32 s57, 896")
    e("v_mul_lo_u32 v7, s57, v5")
    e("v_lshlrev_b32 v8, 1, v6")
    e("v_add_u32 v7, v7, v8")
    e("v_lshlrev_b32 v9, 4, v5")
    e(f"v_add_u32 v9, {WS_STAT}, v9")
    e("v_lshlrev_b32 v10, 1, v7")
    XR, DK, ST = 16, 24, 192
    toks = []
    for a in range(4): toks.append(e(f"buffer_load_dwordx2 v[{XR+2*a}:{XR+2*a+1}], v7, s[20:23], 0 offen offset:{16*a}"))
    for a in range(4): toks.append(e(f"buffer_load_dwordx2 v[{DK+2*a}:{DK+2*a+1}], v8, s[32:35], 0 offen offset:{16*a}"))
    toks.append(e(f"buffer_load_dwordx4 v[{ST}:{ST+3}], v9, s[44:47], 0 offen" + (" sc1" if fused else "")))
    epi_toks = toks
    e("s_lshl_b32 s57, s52, 12")
    e("v_lshlrev_b32 v11, 4, v0")
    e("v_add_u32 v11, s57, v11")
    e("v_lshrrev_b32 v13, 2, v3")
    e("v_lshl_add_u32 v13, v2, 2, v13")
    e("v_lshlrev_b32 v12, 7, v13")
    e("v_and_b32 v13, 1, v4")
    e("s_lshl_b32 s57, s53, 1")
    e("v_add_u32 v13, s57, v13")
    e("v_lshrrev_b32 v14, 3, v3")
    e("v_lshlrev_b32 v14, 1, v14")
    e("v_xor_b32 v13, v13, v14")
    e("v_lshl_add_u32 v12, v13, 5, v12")
    e("v_and_b32 v13, 3, v3")
    e("v_lshl_add_u32 v12, v13, 3, v12")
    e("s_lshl_b32 s57, s53, 5")
    e("v_add_u32 v13, s57, v1")
    e("v_lshlrev_b32 v13, 7, v13")
    e("v_lshrrev_b32 v14, 1, v1")
    e("v_and_b32 v14, 7, v14")
    e("v_xor_b32 v14, v14, v2")
    e("v_lshl_add_u32 v13, v14, 4, v13")
    PH, PW, PC = 11, 12, 13
    TH, TW = 14, 15
    ACCO, ACCY = 64, 80
    FR = 96
    XF, SK, G = 34, 160, 176
    T0 = 50
    def hfrag(set_, kk): return FR + set_*32 + kk*8
    def wfrag(set_, kk): return FR + set_*32 + kk*8 + 4

    def pre_epi():
        e.wait(epi_toks)
        yield
        e(f"v_rcp_f32 v{T0}, v{ST+2}")
        yield
        for p in range(8):
            xa, xb = XF+2*p, XF+2*p+1
            e(f"v_lshlrev_b32 v{xa}, 16, v{XR+p}"); yield
            e(f"v_and_b32 v{xb}, 0xffff0000, v{XR+p}"); yield
            e(f"v_sub_f32 v{T0+1}, v{xa}, v{ST}"); yield
            e(f"v_sub_f32 v{T0+2}, v{xb}, v{ST}"); yield
            yield from bf16_round_pair(e, T0+1, T0+2, T0+1, T0+2, T0+3)
            e(f"v_mul_f32 v{T0+1}, v{T0+1}, v{T0}"); yield
            e(f"v_mul_f32 v{T0+2}, v{T0+2}, v{T0}"); yield
            yield from bf16_round_pair(e, T0+1, T0+2, T0+1, T0+2, T0+3)
            e(f"v_lshlrev_b32 v{T0+4}, 16, v{DK+p}"); yield
            e(f"v_and_b32 v{T0+5}, 0xffff0000, v{DK+p}"); yield
            e(f"v_mul_f32 v{T0+1}, v{T0+1}, v{T0+4}"); yield
            e(f"v_mul_f32 v{T0+2}, v{T0+2}, v{T0+5}"); yield
            yield from bf16_round_pair(e, SK+2*p, SK+2*p+1, T0+1, T0+2, T0+3)
    def silu_epi():
        for p in range(8):
            a, b = T0+1, T0+2
            yield from bf16_round_pair(e, a, b, ACCO+2*p, ACCO+2*p+1, T0+3)
            e(f"v_mul_f32 v{T0+4}, {f32(-LOG2E)}, v{a}"); yield
            e(f"v_mul_f32 v{T0+5}, {f32(-LOG2E)}, v{b}"); yield
            e(f"v_exp_f32 v{T0+4}, v{T0+4}"); yield
            e(f"v_exp_f32 v{T0+5}, v{T0+5}"); yield
            e(f"v_add_f32 v{T0+4}, 1.0, v{T0+4}"); yield
            e(f"v_add_f32 v{T0+5}, 1.0, v{T0+5}"); yield
            e(f"v_rcp_f32 v{T0+4}, v{T0+4}"); yield
            e(f"v_rcp_f32 v{T0+5}, v{T0+5}"); yield
            e(f"v_mul_f32 v{a}, v{a}, v{T0+4}"); yield
            e(f"v_mul_f32 v{b}, v{b}, v{T0+5}"); yield
            yield from bf16_round_pair(e, G+2*p, G+2*p+1, a, b, T0+3)

    NST = 42
    REGB = fused and os.environ.get("REGB", "0") == "1"
    LAG = int(os.environ.get("LAG", "1")) if fused else 0
    NREG = int(os.environ.get("NREG", "0")) if fused else 0
    HYB = fused and NREG > 0 and not REGB
    AFL = " sc1" if (fused and os.environ.get("ASC1", "0") == "1") else ""
    def cons_poll_setup():
        e("v_and_b32 v58, 15, v0")
        e("v_min_u32 v58, 13, v58")
        e("v_lshlrev_b32 v58, 2, v58")
    def cons_poll(off):
        top = e.label("F_POLL"); ok = e.label("F_POLLOK")
        c = "s80" if not PROFILE else "s95"
        e(f"s_mov_b32 {c}, 0")
        e.raw(f"{top}:")
        e(f"buffer_load_dword v59, v58, s[44:47], s76 offen offset:{off} sc1")
        e.raw("s_waitcnt vmcnt(0)")
        e("v_cmp_ne_u32 vcc, s98, v59")
        e("s_cmp_eq_u64 vcc, 0")
        e(f"s_cbranch_scc1 {ok}")
        e(f"s_add_u32 {c}, {c}, 1")
        e(f"s_cmp_lt_u32 {c}, 200000")
        e(f"s_cbranch_scc1 {top}")
        e.raw(f"{ok}:")
        e.vm_done = e.vm_issued
    tokA = {}
    if REGB:
        e("v_lshlrev_b32 v61, 4, v0")
        e("s_lshl_b32 s58, s49, 1")
        e("s_add_u32 s58, s58, s52")
        e("s_lshl_b32 s59, s53, 1")
        e("s_mul_i32 s56, s58, 112"); e("s_add_u32 s56, s56, s59"); e("s_lshl_b32 s56, s56, 10")
        e("s_mul_i32 s57, s58, 56"); e("s_add_u32 s57, s57, s59"); e("s_lshl_b32 s57, s57, 10"); e(f"s_add_u32 s57, s57, {WS_hF}")
        e("s_lshl_b32 s60, s52, 2"); e("s_add_u32 s60, s60, s59"); e("s_lshl_b32 s60, s60, 10")
        e("s_mul_i32 s65, s71, 7"); e("s_lshl_b32 s68, s50, 2"); e("s_add_u32 s65, s65, s68")
        e("s_cmp_ge_u32 s65, 28"); e("s_cselect_b32 s68, 28, 0"); e("s_sub_u32 s65, s65, s68")
        e("s_lshl_b32 s66, s71, 1"); e("s_add_u32 s66, s66, s50")
        e("s_cmp_ge_u32 s66, 7"); e("s_cselect_b32 s68, 7, 0"); e("s_sub_u32 s66, s66, s68")
        def c_issueA(t):
            base = baseA(t)
            if t < 28:
                e("s_lshl_b32 s69, s65, 12"); e("s_add_u32 s69, s69, s56")
            else:
                e("s_lshl_b32 s69, s66, 13"); e("s_add_u32 s69, s69, s57")
                if (t - 28) & 1: e("s_add_u32 s69, s69, 4096")
            for a in range(2):
                e(f"s_add_u32 m0, s60, {base + a*1024}")
                if a: e("s_add_u32 s69, s69, 1024")
                tok = e(f"buffer_load_dwordx4 v61, s[44:47], s69 offen{AFL} lds")
            if t < 28:
                e("s_add_u32 s65, s65, 1"); e("s_cmp_eq_u32 s65, 28"); e("s_cselect_b32 s65, 0, s65")
            elif (t - 28) & 1:
                e("s_add_u32 s66, s66, 1"); e("s_cmp_eq_u32 s66, 7"); e("s_cselect_b32 s66, 0, s66")
            tokA[t] = tok
        drain(pre_epi())
        cons_poll_setup()
        cons_poll(0)
        for t in range(RA - 2): c_issueA(t)
        nA = RA - 2
        fill = None
    else:
        if fused and os.environ.get("PREEPI", "0") == "1":
            drain(pre_epi()); fill = None
        else:
            fill = pre_epi()
        if HYB:
            cons_poll_setup()
            lab = e.label("F_GO")
            e("s_cmp_lg_u32 s48, 0")
            e(f"s_cbranch_scc1 {lab}")
            e.cond_begin(); cons_poll(0); e.cond_end()
            e.raw(f"{lab}:")
            e("s_barrier")
    first = {ACCO: True, ACCY: True}
    rtok = {}
    def mfmas(t):
        acc = ACCO if t < 28 else ACCY
        for kk in range(4):
            e.wait(rtok[(t, kk)])
            c = "0" if first[acc] else f"v[{acc}:{acc+15}]"
            first[acc] = False
            e(f"v_mfma_f32_32x32x16_bf16 v[{acc}:{acc+15}], v[{wfrag(t&1,kk)}:{wfrag(t&1,kk)+3}], v[{hfrag(t&1,kk)}:{hfrag(t&1,kk)+3}], {c}")
            yield
    for t in range(NST + 1):
        if t < NST:
            if fused and t == 3 and not REGB: e.raw("s_waitcnt vmcnt(0)"); e.vm_done = e.vm_issued
            if REGB: e.wait(tokA[t])
            e("s_barrier")
            if fused and t == 3:
                lab = e.label("F_NOH")
                e("s_cmp_lg_u32 s48, 0")
                e(f"s_cbranch_scc1 {lab}")
                e.cond_begin()
                e("v_mov_b32 v56, s79")
                e("v_mov_b32 v57, s98")
                e("s_mov_b64 exec, 1")
                e("buffer_store_dword v57, v56, s[72:75], s76 offen offset:64 sc1")
                e("s_mov_b64 exec, -1")
                e.cond_end()
                e.raw(f"{lab}:")
            if t in (0, 1, 8, 16, 28, 41): pr.stamp()
            if REGB and nA < NST and nA <= t + RA - 2:
                if nA == 25: cptok = e("buffer_load_dword v59, v58, s[44:47], s76 offen offset:64 sc1")
                if nA == 28:
                    ok = e.label("F_PCOK")
                    e.wait(cptok)
                    e("v_cmp_ne_u32 vcc, s98, v59"); e("s_cmp_eq_u64 vcc, 0"); e(f"s_cbranch_scc1 {ok}")
                    e.cond_begin(); cons_poll(64); e.cond_end()
                    e.raw(f"{ok}:")
                c_issueA(nA); nA += 1
            e(f"v_add_u32 v{TH}, {baseA(t)}, v{PH}")
            if t < 28: e(f"v_add_u32 v{TW}, {baseB(t)}, v{PW}")
            else:      e(f"v_add_u32 v{TW}, {baseB(t)}, v{PC}")
        mf = mfmas(t-1) if t >= 1 else None
        for kk in range(4):
            if t < NST:
                if mf is not None: mf = pull(mf, 1)
                tk_ = [e(f"ds_read_b128 v[{hfrag(t&1,kk)}:{hfrag(t&1,kk)+3}], v{TH} offset:{kk*1024}")]
                w = wfrag(t&1,kk)
                if t < 28:
                    tk_.append(e(f"ds_read_b64_tr_b16 v[{w}:{w+1}], v{TW} offset:{kk*2048}"))
                    tk_.append(e(f"ds_read_b64_tr_b16 v[{w+2}:{w+3}], v{TW} offset:{kk*2048+1024}"))
                else:
                    if kk == 0: tk_.append(e(f"ds_read_b128 v[{w}:{w+3}], v{TW}"))
                    else:
                        e(f"v_xor_b32 v{T0+8}, {kk<<5}, v{TW}")
                        tk_.append(e(f"ds_read_b128 v[{w}:{w+3}], v{T0+8}"))
                rtok[(t, kk)] = tk_
            elif mf is not None: mf = pull(mf, 1)
            fill = pull(fill, int(os.environ.get("SILU_N", "4")) if (fused and t >= 29) else (6 if not REGB else 3))
        if t == 29:
            drain(fill); fill = silu_epi()
        if t < NST and not REGB and not LAG: e.wait_all(vm=False, lg=True)
    drain(fill)
    for i in range(16):
        e(f"v_add_f32 v{SK+i}, v{ACCY+i}, v{SK+i}")
    for i in range(16):
        e(f"v_fma_f32 v{SK+i}, v{SK+i}, v{G+i}, v{XF+i}")
    for a in range(4):
        e(f"buffer_store_dwordx4 v[{SK+4*a}:{SK+4*a+3}], v10, s[40:43], 0 offen offset:{32*a}" + os.environ.get("OUTF", ""))
    pr.stamp()
    if PROFILE: e("s_waitcnt vmcnt(0)")
    pr.stamp()
    pr.dump(44, 48)
    e("s_endpgm")
    e2 = e
    e.raw("K2_LOADER:")
    e.lg_issued = e.lg_done = 0; e.vm_issued = e.vm_done = 0
    if os.environ.get("LPRIO", "0") != "0": e(f"s_setprio {os.environ.get('LPRIO')}")
    e("s_sub_u32 s52, s48, 4")
    e("s_and_b32 s53, s52, 1")
    e("s_lshr_b32 s54, s52, 1")
    e("v_lshlrev_b32 v1, 4, v0")
    e("v_lshrrev_b32 v2, 3, v0")
    e("s_lshl_b32 s55, s52, 4")
    e("v_add_u32 v2, s55, v2")
    e("s_movk_i32 s55, 896")
    e("v_mul_lo_u32 v2, s55, v2")
    e("v_and_b32 v3, 7, v0")
    e("v_lshrrev_b32 v4, 4, v0")
    e("v_and_b32 v5, 1, v4")
    e("v_lshlrev_b32 v5, 2, v5")
    e("v_xor_b32 v5, v5, v3")
    e("v_lshl_add_u32 v5, v5, 4, v2")
    e("v_xor_b32 v6, v4, v3")
    e("v_lshl_add_u32 v6, v6, 4, v2")
    e("v_add_u32 v7, 4, v4")
    e("v_xor_b32 v7, v7, v3")
    e("v_lshl_add_u32 v7, v7, 4, v2")
    e(f"v_add_u32 v7, {8*896}, v7")
    e("s_lshl_b32 s58, s49, 1")
    e("s_add_u32 s58, s58, s53")
    e("s_lshl_b32 s59, s54, 1")
    e("s_mul_i32 s56, s58, 112")
    e("s_add_u32 s56, s56, s59")
    e("s_lshl_b32 s56, s56, 10")
    if WS_HF: e(f"s_add_u32 s56, s56, {WS_HF}")
    e("s_mul_i32 s57, s58, 56")
    e("s_add_u32 s57, s57, s59")
    e("s_lshl_b32 s57, s57, 10")
    e(f"s_add_u32 s57, s57, {WS_hF}")
    e("s_lshl_b32 s60, s53, 2")
    e("s_add_u32 s60, s60, s59")
    e("s_lshl_b32 s60, s60, 10")
    e("s_lshl_b32 s61, s52, 11")
    e("s_lshl_b32 s62, s50, 7")
    e(f"s_mul_i32 s63, s50, {64*896}")
    if REGB:
        assert EARLY_B == 12
        e("s_mul_i32 s77, s71, 7"); e("s_lshl_b32 s68, s50, 2"); e("s_add_u32 s77, s77, s68")
        e("s_cmp_ge_u32 s77, 28"); e("s_cselect_b32 s68, 28, 0"); e("s_sub_u32 s77, s77, s68")
        e(f"s_add_u32 s77, s77, {EARLY_B}"); e("s_cmp_ge_u32 s77, 28"); e("s_cselect_b32 s68, 28, 0"); e("s_sub_u32 s77, s77, s68")
        e("s_lshl_b32 s78, s71, 1"); e("s_add_u32 s78, s78, s50")
        e("s_cmp_ge_u32 s78, 7"); e("s_cselect_b32 s68, 7, 0"); e("s_sub_u32 s78, s78, s68")
        def breg(t): return 16 + 8*(t - EARLY_B)
        tokR = {}
        def bload(t):
            part = (t - 28) & 1
            if t < 28:
                e(f"s_mul_i32 s70, s77, {64*896}"); e("s_add_u32 s70, s70, s62")
            else:
                e("s_lshl_b32 s70, s78, 7"); e("s_add_u32 s70, s70, s63")
            for a in range(2):
                r = breg(t) + 4*a
                if t < 28:
                    if a: e("s_add_u32 s70, s70, 7168")
                    tokR[t] = e(f"buffer_load_dwordx4 v[{r}:{r+3}], v5, s[36:39], s70 offen")
                else:
                    tokR[t] = e(f"buffer_load_dwordx4 v[{r}:{r+3}], v{6+a}, s[{24+4*part}:{27+4*part}], s70 offen")
            if t < 28:
                e("s_add_u32 s77, s77, 1"); e("s_cmp_eq_u32 s77, 28"); e("s_cselect_b32 s77, 0, s77")
            elif part:
                e("s_add_u32 s78, s78, 1"); e("s_cmp_eq_u32 s78, 7"); e("s_cselect_b32 s78, 0, s78")
        NINIT = int(os.environ.get("BINIT", "28"))
        nL = EARLY_B
        while nL < NINIT: bload(nL); nL += 1
        e("v_add_u32 v1, s61, v1")
        def bwrite(t):
            e.wait(tokR[t])
            base = baseB(t)
            e(f"v_add_u32 v2, {base}, v1")
            e(f"ds_write_b128 v2, v[{breg(t)}:{breg(t)+3}]")
            e(f"ds_write_b128 v2, v[{breg(t)+4}:{breg(t)+7}] offset:1024")
        pr = Prof(e, 1); pr.n = 1
        pr.stamp()
        for t in range(EARLY_B, RB - 2): bwrite(t)
        for t in range(NST):
            e.wait_all(vm=False, lg=True)
            if t in (0, 1, 8, 16, 28, 41): pr.stamp()
            e("s_barrier")
            if nL < NST and t >= int(os.environ.get("BSTART", "2")): bload(nL); nL += 1
            s_ = t + RB - 2
            if EARLY_B <= s_ < NST and s_ >= RB - 2: bwrite(s_)
        pr.dump(44, 48)
        e.raw("K2_END:")
        e("s_endpgm")
        return
    if os.environ.get("K2ROT", "1") == "1":
        e("s_mul_i32 s65, s71, 7")
        e("s_lshl_b32 s68, s50, 2")
        e("s_add_u32 s65, s65, s68")
        e("s_cmp_ge_u32 s65, 28")
        e("s_cselect_b32 s68, 28, 0")
        e("s_sub_u32 s65, s65, s68")
        e("s_lshl_b32 s66, s71, 1")
        e("s_add_u32 s66, s66, s50")
        e("s_cmp_ge_u32 s66, 7")
        e("s_cselect_b32 s68, 7, 0")
        e("s_sub_u32 s66, s66, s68")
    else:
        e("s_mov_b32 s65, 0"); e("s_mov_b32 s66, 0")
    e("s_mov_b32 s77, s65"); e("s_mov_b32 s78, s66")
    stage_tok = {}
    AFL = " sc1" if (fused and os.environ.get("ASC1", "0") == "1") else ""
    def adv(t, o, m):
        if t < 28:
            e(f"s_add_u32 s{o}, s{o}, 1"); e(f"s_cmp_eq_u32 s{o}, 28"); e(f"s_cselect_b32 s{o}, 0, s{o}")
        elif (t - 28) & 1:
            e(f"s_add_u32 s{m}, s{m}, 1"); e(f"s_cmp_eq_u32 s{m}, 7"); e(f"s_cselect_b32 s{m}, 0, s{m}")
    def issueA(t):
        base = baseA(t)
        if t < 28:
            e("s_lshl_b32 s69, s65, 12")
            e("s_add_u32 s69, s69, s56")
        else:
            e("s_lshl_b32 s69, s66, 13")
            e("s_add_u32 s69, s69, s57")
            if (t - 28) & 1: e("s_add_u32 s69, s69, 4096")
        for a in range(2):
            e(f"s_add_u32 m0, s60, {base + a*1024}")
            if a: e("s_add_u32 s69, s69, 1024")
            tok = e(f"buffer_load_dwordx4 v1, s[44:47], s69 offen{AFL} lds")
        adv(t, 65, 66)
        return tok
    def issueB(t):
        base = baseB(t)
        part = (t - 28) & 1
        if t < 28:
            e(f"s_mul_i32 s70, s77, {64*896}")
            e("s_add_u32 s70, s70, s62")
        else:
            e("s_lshl_b32 s70, s78, 7")
            e("s_add_u32 s70, s70, s63")
        for a in range(2):
            e(f"s_add_u32 m0, s61, {base + a*1024}")
            if t < 28:
                if a: e("s_add_u32 s70, s70, 7168")
                tok = e("buffer_load_dwordx4 v5, s[36:39], s70 offen lds")
            else:
                tok = e(f"buffer_load_dwordx4 v{6+a}, s[{24+4*part}:{27+4*part}], s70 offen lds")
        adv(t, 77, 78)
        return tok
    def poll(off):
        top = e.label("F_POLL"); ok = e.label("F_POLLOK")
        e("v_and_b32 v8, 15, v0")
        e("v_min_u32 v8, 13, v8")
        e("v_lshlrev_b32 v8, 2, v8")
        e("s_mov_b32 s80, 0" if not PROFILE else "s_mov_b32 s95, 0")
        c = "s80" if not PROFILE else "s95"
        e.raw(f"{top}:")
        e(f"buffer_load_dword v9, v8, s[44:47], s76 offen offset:{off} sc1")
        e.raw("s_waitcnt vmcnt(0)")
        e("v_cmp_ne_u32 vcc, s98, v9")
        e("s_cmp_eq_u64 vcc, 0")
        e(f"s_cbranch_scc1 {ok}")
        e(f"s_add_u32 {c}, {c}, 1")
        e(f"s_cmp_lt_u32 {c}, 200000")
        e(f"s_cbranch_scc1 {top}")
        e.raw(f"{ok}:")
        e.vm_done = e.vm_issued
    def poll_issue(off):
        return e(f"buffer_load_dword v9, v8, s[44:47], s76 offen offset:{off} sc1")
    def poll_check(tok, off):
        ok = e.label("F_PCOK")
        e.wait(tok)
        e("v_cmp_ne_u32 vcc, s98, v9")
        e("s_cmp_eq_u64 vcc, 0")
        e(f"s_cbranch_scc1 {ok}")
        e.cond_begin()
        poll(off)
        e.cond_end()
        e.raw(f"{ok}:")
    pr = Prof(e, 1); pr.n = 1
    PRO = int(os.environ.get("K2PRO", "2"))
    tokA = {}; tokB = {}
    nA = 0; nB = 0
    if fused:
        for t in range(EARLY_B):
            tokB[t] = None; nB += 1; adv(t, 77, 78)
        if EARLY_B == 0:
            for t in range(RB - 1): tokB[t] = issueB(t); nB += 1
        if HYB:
            assert EARLY_B + NREG <= 28
            e("v_and_b32 v8, 15, v0"); e("v_min_u32 v8, 13, v8"); e("v_lshlrev_b32 v8, 2, v8")
            tokR = {}
            for t in range(EARLY_B, EARLY_B + NREG):
                e(f"s_mul_i32 s70, s77, {64*896}"); e("s_add_u32 s70, s70, s62")
                for a in range(2):
                    r = 16 + 8*(t - EARLY_B) + 4*a
                    if a: e("s_add_u32 s70, s70, 7168")
                    tokR[t] = e(f"buffer_load_dwordx4 v[{r}:{r+3}], v5, s[36:39], s70 offen")
                adv(t, 77, 78)
            e("v_add_u32 v10, s61, v1")
            e("s_barrier")
        else:
            poll(0)
        for t in range(PRO): tokA[t] = issueA(t); nA += 1
    else:
        for t in range(PRO):
            tokA[t] = issueA(t); tokB[t] = issueB(t); nA += 1; nB += 1
    pr.stamp()
    ptok = None
    for t in range(NST):
        e.wait(tokA[t], tokB[t])
        if HYB: e.wait_all(vm=False, lg=True) if e.lg_done < e.lg_issued else None
        if t in (0, 1, 8, 16, 28, 41): pr.stamp()
        e("s_barrier")
        k = 0
        while k < 2:
            did = False
            if nA < NST and nA <= t + RA - 1 - LAG:
                if fused and nA == 24: ptok = poll_issue(64)
                if fused and nA == 28: poll_check(ptok, 64)
                tokA[nA] = issueA(nA); nA += 1; did = True
            if nB < NST and nB <= t + RB - 1 - LAG and nB <= nA + RB:
                if HYB and EARLY_B <= nB < EARLY_B + NREG:
                    e.wait(tokR[nB])
                    r = 16 + 8*(nB - EARLY_B)
                    e(f"v_add_u32 v11, {baseB(nB)}, v10")
                    e(f"ds_write_b128 v11, v[{r}:{r+3}]")
                    e(f"ds_write_b128 v11, v[{r+4}:{r+7}] offset:1024")
                    tokB[nB] = None
                else:
                    tokB[nB] = issueB(nB)
                nB += 1; did = True
            if not did: break
            k += 1
        assert nA > t + 1 or nA == NST or True
    pr.dump(44, 48)
    e.raw("K2_END:")
    e("s_endpgm")

def kd(name, vgpr, sgpr=102):
    acc = (vgpr + 3)//4*4
    return f""".amdhsa_kernel {name}
  .amdhsa_next_free_vgpr {vgpr}
  .amdhsa_next_free_sgpr {sgpr}
  .amdhsa_accum_offset {acc}
  .amdhsa_group_segment_fixed_size 0
  .amdhsa_kernarg_size 128
  .amdhsa_user_sgpr_count 2
  .amdhsa_user_sgpr_kernarg_segment_ptr 1
  .amdhsa_system_sgpr_workgroup_id_x 1
.end_amdhsa_kernel"""

def main():
    global PROFILE
    which = sys.argv[2] if len(sys.argv) > 2 else "k2"
    if len(sys.argv) > 3 and "prof" in sys.argv[3]: PROFILE = True
    hdr = open(f"cdna_kernels/{NAME}.s.ref").read().split("; Override launch")[0]
    out = [hdr.rstrip()]
    kernels = []
    fused = "fused" in which
    KN = NAME + "_kernel" if fused else "k1_kernel"
    if fused:
        if os.environ.get("PLAIN", "0") == "1": out.append("; @launch grid=(256,1,1) block=(512,1,1) lds=163840")
        else: out.append(f"; @launch kernel={KN} grid=(256,1,1) block=(512,1,1) lds=163840")
    else:
        if "k1" in which:
            out.append("; @launch kernel=k1_kernel grid=(256,1,1) block=(512,1,1) lds=163840")
        if "k2" in which:
            out.append(f"; @launch kernel=k2_kernel grid=(224,1,1) block=(512,1,1) lds={K2_R*K2_STAGE}")
    out.append('.amdgcn_target "amdgcn-amd-amdhsa--gfx950"\n.text')
    kds = []
    if fused:
        import gen_k1b as gen_k1
        gen_k1.G.PROFILE = PROFILE
        e = Emit(); vg = gen_k1.gen_k1(e, fused=True, kname=KN)
        out.append(f".globl {KN}\n.p2align 8\n.type {KN},@function"); out.append(e.finish()); kds.append(kd(KN, vg))
    else:
        if "k1" in which:
            import gen_k1b as gen_k1
            gen_k1.G.PROFILE = PROFILE
            e = Emit(); vg = gen_k1.gen_k1(e)
            out.append(".globl k1_kernel\n.p2align 8\n.type k1_kernel,@function"); out.append(e.finish()); kds.append(kd("k1_kernel", vg))
        if "k2" in which:
            e = Emit(); gen_k2(e)
            out.append(".globl k2_kernel\n.p2align 8\n.type k2_kernel,@function"); out.append(e.finish()); kds.append(kd("k2_kernel", 200 if not PROFILE else 224))
    out.append('.section .rodata,"a"\n.p2align 6')
    out.append("\n.p2align 6\n".join(kds))
    open(sys.argv[1], "w").write("\n".join(out) + "\n")
if __name__ == "__main__": main()
```

```python
import sys, os
sys.path.insert(0, "dev")
from asmlib import *
import gen as G
from gen import *
from k1_common import *
from collections import deque

env = lambda k, d: type(d)(os.environ.get(k, d)) if not isinstance(d, bool) else os.environ.get(k, "1" if d else "0") == "1"
STAMPS = eval(os.environ.get("STAMPS", '[("A",0),("A",27),("B",0),("B",27)]'))
NOEPI = env("NOEPI", False); NODMA = env("NODMA", False)
PRO_DMAS = env("PRO_DMAS", 10); ZLATE = env("ZLATE", False); MAP2 = env("MAP2", True); COOP = env("COOP", False); ROT = env("ROT", 2 if not COOP else 0)
CT2 = env("CT2", 1); CT3 = env("CT3", 22); CT4 = env("CT4", 34)
EB_SLOT = env("EB_SLOT", 4); EB_GAP = env("EB_GAP", 6); EBV = 13
PF_GAP = env("PF_GAP", 4); PF_SLOT = env("PF_SLOT", -1); AUX2_SLOT = env("AUX2_SLOT", 6); E_SLOT = env("E_SLOT", 48)
AUX2_FIN = env("AUX2_FIN", 26)
NT = env("NT", 1)
AUX_LOAD = env("AUX_LOAD", 46 if ZLATE else 50); AUX_FIN = env("AUX_FIN", 62 if ZLATE else 68); PUB_SLOT = env("PUB_SLOT", 16 if ZLATE else 11)
BUDGET_A = env("BUDGET_A", 4.0); BUDGET_B = env("BUDGET_B", 6.0); BUDGET_B0 = env("BUDGET_B0", 7.0)

DMAFLAG = os.environ.get("DMAFLAG", "")
if DMAFLAG: DMAFLAG = " " + DMAFLAG
BSW = env("BSW", 30); ECLATE = env("ECLATE", True); ZFIRST = env("ZFIRST", False); TAILST2 = env("TAILST2", False); TAILST = env("TAILST", True); PSTAMP = env("PSTAMP", False); DMA_HURRY = env("DMA_HURRY", 6); RB_LATE = env("RB_LATE", True); RB_SLOT = env("RB_SLOT", 7)
TRC = env("TRC", 2.0)
WAIT1 = env("WAIT1", False)
TLAG = env("TLAG", False)
NZ = 4 if TLAG else 3
XR, ZR = 0, 49152
WR = ZR + NZ*8192
MISC = WR + 65536
M_ST = MISC; M_CS = MISC + 1024; M_SEG = MISC + 2048; M_N = MISC + 3072
M_SD = MISC + 3328; M_CB = MISC + 3840
M_PART = MISC + 3328
M_PB = MISC + 5376
M_TR = 114688 if TLAG else MISC + 6656
AX, AZr, AW0, AW1 = 1, 5, 9, 10
VX0, VX1, VZ, VW = 11, 12, 13, 14
LR, LI, CR, CI, L8R, L8I, L128R, L128I, TR, TI = 15, 16, 17, 18, 19, 20, 21, 22, 23, 24
M_, SD, NLR, CSR, CSI, PR, PI, ER, EI = 25, 26, 27, 28, 29, 30, 31, 32, 33
VH = 47

AZ = 48
AG = [64, 80, 96, 112]
XF = 128
FB = 240

def gen_k1(e, fused=False, kname="k1_kernel"):
    STF = os.environ.get("STF", " sc1") if fused else ""
    e.raw(f"{kname}:")
    e("s_cmp_ge_u32 s2, 256")
    e("s_cbranch_scc1 K1_END")
    if env("CODEPF", False): e("s_getpc_b64 s[84:85]")
    e.raw("K1_CODE_FIRST:")
    e("s_load_dwordx2 s[4:5], s[0:1], 0")
    e("s_load_dwordx2 s[6:7], s[0:1], 8")
    e("s_load_dwordx2 s[8:9], s[0:1], 24")
    e("s_load_dwordx2 s[10:11], s[0:1], 32")
    e("s_load_dwordx2 s[12:13], s[0:1], 80")
    e("s_load_dwordx2 s[14:15], s[0:1], 88")
    e("s_load_dwordx2 s[16:17], s[0:1], 112")
    e("s_load_dwordx2 s[18:19], s[0:1], 120")
    e("s_load_dwordx2 s[62:63], s[0:1], 16")
    e("s_load_dwordx2 s[86:87], s[0:1], 96")
    e("s_load_dwordx2 s[88:89], s[0:1], 40")
    e("s_load_dwordx2 s[90:91], s[0:1], 48")
    t = e("s_load_dwordx2 s[64:65], s[0:1], 56")
    e("v_lshrrev_b32 v1, 6, v0")
    e("v_and_b32 v0, 63, v0")
    e("v_readfirstlane_b32 s48, v1")
    e("s_sub_u32 s49, s2, 32")
    e("s_and_b32 s50, s49, 7")
    e("s_lshr_b32 s51, s49, 3")
    if MAP2:
        e("s_mul_i32 s54, s51, 37")
        e("s_lshr_b32 s54, s54, 8")
        e("s_mul_i32 s53, s54, 7")
        e("s_sub_u32 s55, s51, s53")
        e("s_and_b32 s52, s50, 3")
        e("s_lshl_b32 s53, s54, 2")
        e("s_add_u32 s52, s52, s53")
        e("s_lshl_b32 s51, s55, 2")
        e("s_add_u32 s51, s51, s54")
        e("s_lshr_b32 s53, s50, 2")
        e("s_mul_i32 s53, s53, 7")
        e("s_add_u32 s53, s53, s55")
    else:
        e("s_and_b32 s52, s50, 3")
        e("s_lshl_b32 s52, s52, 2")
        e("s_and_b32 s53, s51, 3")
        e("s_add_u32 s52, s52, s53")
        e("s_lshr_b32 s53, s50, 2")
        e("s_mul_i32 s53, s53, 7")
        e("s_lshr_b32 s54, s51, 2")
        e("s_add_u32 s53, s53, s54")
    e("s_and_b32 s54, s48, 3")
    e("s_lshr_b32 s55, s48, 2")
    e("v_lshrrev_b32 v40, 3, v0")
    e("v_and_b32 v41, 7, v0")
    e("v_lshrrev_b32 v42, 4, v0")
    e("s_movk_i32 s56, 896")
    e("s_lshl_b32 s57, s48, 4")
    e("v_add_u32 v43, s57, v40")
    e("v_mul_lo_u32 v43, s56, v43")
    e("v_xor_b32 v44, v41, v42")
    e(f"v_lshl_add_u32 v{VX0}, v44, 4, v43")
    e("v_add_u32 v44, 4, v42")
    e("v_xor_b32 v44, v41, v44")
    e(f"v_lshl_add_u32 v{VX1}, v44, 4, v43")
    e(f"v_add_u32 v{VX1}, {8*896}, v{VX1}")
    e("s_lshl_b32 s57, s54, 3")
    e("v_add_u32 v43, s57, v40")
    e("v_mul_lo_u32 v43, s56, v43")
    e("s_and_b32 s57, s48, 1")
    e("s_lshl_b32 s57, s57, 2")
    e("v_add_u32 v44, s57, v42")
    e("v_xor_b32 v44, v41, v44")
    e(f"v_lshl_add_u32 v{VZ}, v44, 4, v43")
    e("s_lshl_b32 s57, s54, 3")
    e("v_add_u32 v43, s57, v40")
    e("s_movk_i32 s56, 3584")
    e("v_mul_lo_u32 v43, s56, v43")
    e("v_and_b32 v44, 1, v42")
    e("s_lshl_b32 s57, s55, 1")
    e("v_add_u32 v44, s57, v44")
    e("v_lshlrev_b32 v44, 1, v44")
    e("v_xor_b32 v44, v41, v44")
    e(f"v_lshl_add_u32 v{VW}, v44, 4, v43")
    e(f"s_mul_i32 s66, s52, {128*896}")
    e(f"s_mul_i32 s67, s53, {32*896}")
    e("s_lshl_b32 s72, s53, 8")
    e("s_lshl_b32 s73, s48, 11")
    e("s_lshl_b32 s74, s48, 10")
    e(f"s_add_u32 s74, s74, {ZR}")
    e("s_lshl_b32 s75, s55, 13")
    e("s_lshl_b32 s76, s54, 10")
    e("s_add_u32 s75, s75, s76")
    e(f"s_add_u32 s75, s75, {WR}")
    e.wait(t)
    e("s_cmp_lt_u32 s2, 32")
    e("s_cbranch_scc1 K1_HELPER")
    srd(e, 20, 4, 2048*448*2)
    if ROT == 1:
        e("s_and_b32 s56, s51, 3")
        e("s_lshl_b32 s56, s56, 1")
        e("s_lshr_b32 s57, s51, 2")
        e("s_add_u32 s56, s56, s57")
        e("s_cmp_ge_u32 s56, 7")
        e("s_cselect_b32 s57, 7, 0")
        e("s_sub_u32 s77, s56, s57")
    else:
        e("s_mov_b32 s77, 0")
    e("s_mov_b32 s76, s77")
    e("s_lshl_b32 s4, s76, 7")
    e("s_add_u32 s4, s4, s66")
    e("s_sub_u32 s67, s67, s66")
    ent_tok = {}
    dmaq = deque()
    def entry_dmas(kind, kc):
        def mk(a, last):
            def f():
                if NODMA:
                    if last: ent_tok[(kind, kc)] = None
                    return
                if kind == "X":
                    e(f"s_add_u32 m0, s73, {XR + (kc%3)*16384 + a*1024}")
                    tok = e(f"buffer_load_dwordx4 v{VX0+a}, s[20:23], s{4+kc} offen{DMAFLAG} lds")
                elif kind == "ZC":
                    e(f"s_add_u32 m0, s74, {M_TR - ZR + kc*8192}")
                    e(f"s_add_u32 s77, s67, s{4+kc}")
                    tok = e(f"buffer_load_dwordx4 v{VZ}, s[24:27], s77 offen{DMAFLAG} lds")
                elif kind == "Z":
                    e(f"s_add_u32 m0, s74, {(kc%NZ)*8192}")
                    e(f"s_add_u32 s77, s67, s{4+kc}")
                    tok = e(f"buffer_load_dwordx4 v{VZ}, s[24:27], s77 offen{DMAFLAG} lds")
                else:
                    ch = kc % 7; colb = 0 if kc < 7 else 128
                    e(f"s_add_u32 m0, s75, {(kc%4)*16384 + a*4096}")
                    e(f"s_add_u32 s77, s{11+ch}, {32*a*3584 + colb}")
                    tok = e(f"buffer_load_dwordx4 v{VW}, s[28:31], s77 offen{DMAFLAG} lds")
                if last: ent_tok[(kind, kc)] = tok
            return f
        n = 1 if kind in ("Z", "ZC") else 2
        return [mk(a, a == n - 1) for a in range(n)]
    def queue(*ents):
        for (k, kc) in ents:
            for f in entry_dmas(k, kc): dmaq.append(f)
    def bz_w_srds():
        e("s_cmp_eq_u32 s55, 0")
        e("s_cselect_b32 s24, s8, s10")
        e("s_cselect_b32 s25, s9, s11")
        e("s_cselect_b32 s28, s12, s14")
        e("s_cselect_b32 s29, s13, s15")
        e("s_and_b32 s25, s25, 0xffff")
        e(f"s_mov_b32 s26, {448*448*2}")
        e("s_mov_b32 s27, 0x20000")
        e("s_and_b32 s29, s29, 0xffff")
        e(f"s_mov_b32 s30, {448*1792*2}")
        e("s_mov_b32 s31, 0x20000")
    M_PF0 = 162304
    def coop_setup():
        e("s_and_b32 s56, s51, 3")
        e("s_lshr_b32 s57, s51, 2")
        e("s_mov_b32 s64, 0")
        e("s_cmp_eq_u32 s54, 0"); e("s_cselect_b32 s64, 1, s64")
        e("s_cmp_eq_u32 s54, 1"); e("s_cselect_b32 s64, 2, s64")
        e("s_cmp_eq_u32 s48, 2"); e("s_cselect_b32 s64, 3, s64")
        e("s_or_b32 s58, s57, s48"); e("s_cmp_eq_u32 s58, 3")
        e("s_cmp_eq_u32 s48, 3"); e("s_cselect_b32 s58, 0, 1"); e("s_or_b32 s58, s58, s57")
        e("s_cmp_eq_u32 s58, 0"); e("s_cselect_b32 s64, 3, s64"); e("s_cselect_b32 s57, 7, s57")
        e(f"s_mul_i32 s58, s56, {16*3584}"); e("s_add_u32 s58, s58, s72")
        e(f"s_mul_i32 s59, s53, {32*896}"); e(f"s_mul_i32 s61, s56, {8*896}"); e("s_add_u32 s59, s59, s61")
        e(f"s_mul_i32 s61, s57, {16*896}"); e("s_add_u32 s61, s61, s66")
        e("s_cmp_eq_u32 s64, 1"); e("s_cselect_b32 s65, s58, s61")
        e("s_cselect_b32 s88, s28, s20"); e("s_cselect_b32 s89, s29, s21"); e("s_cselect_b32 s90, s30, s22")
        e("s_cmp_eq_u32 s64, 2"); e("s_cselect_b32 s65, s59, s65")
        e("s_cselect_b32 s88, s24, s88"); e("s_cselect_b32 s89, s25, s89"); e("s_cselect_b32 s90, s26, s90")
        e("s_mov_b32 s91, 0x20000")
    def coop_touch(c0, n, colb, wonly, tv):
        lab = e.label("K1_CT")
        if wonly: e("s_cmp_lg_u32 s64, 1")
        else: e("s_cmp_eq_u32 s64, 0")
        e(f"s_cbranch_scc1 {lab}")
        e.cond_begin()
        e("s_cmp_eq_u32 s64, 2")
        e("s_cselect_b32 s58, 7, 15")
        e("s_cselect_b32 s59, 3, 4")
        e(f"v_and_b32 v{tv}, s58, v0")
        e(f"v_lshrrev_b32 v{tv+1}, s59, v0")
        e(f"v_min_u32 v{tv+1}, {n-1}, v{tv+1}")
        e("s_cmp_eq_u32 s64, 1")
        e("s_movk_i32 s58, 896")
        e("s_cselect_b32 s58, 3584, s58")
        e("s_movk_i32 s59, 128")
        e(f"s_cselect_b32 s59, {64*3584}, s59")
        e(f"s_mov_b32 s61, {c0*128}")
        e(f"s_cselect_b32 s61, {c0*64*3584 + colb}, s61")
        e(f"v_mul_lo_u32 v{tv}, s58, v{tv}")
        e(f"v_mul_lo_u32 v{tv+1}, s59, v{tv+1}")
        e("s_add_u32 s61, s61, s65")
        e(f"s_mov_b32 m0, {M_PF0}")
        e(f"v_add_u32 v{tv}, v{tv}, v{tv+1}")
        e(f"buffer_load_dword v{tv}, s[88:91], s61 offen lds")
        e.cond_end()
        e.raw(f"{lab}:")
    srd(e, 68, 64, 896)
    if COOP:
        bz_w_srds()
        coop_setup()
        coop_touch(0, 3, 0, False, 34)
        queue(("X",0))
        for _ in range(2): dmaq.popleft()()
    else:
        queue(("X",0))
        for _ in range(2): dmaq.popleft()()
        bz_w_srds()
    if not ZLATE:
        queue(("Z",0))
        dmaq.popleft()()
    srd(e, 40, 6, 896)
    srd(e, 44, 62, 896)
    srd(e, 32, 18, WS_END if not G.PROFILE else (16 << 20))
    srd(e, 36, 16, 256)
    e("s_mov_b32 s60, 0")
    e("s_cmp_lt_u32 s48, 2")
    e("s_cselect_b32 s61, 1, 0")
    e("s_cmp_lt_u32 s53, 8")
    e("s_cselect_b32 s60, s61, 0")
    e("s_cmp_eq_u32 s48, 2")
    e("s_cselect_b32 s61, 2, 0")
    e("s_cmp_lt_u32 s52, 8")
    e("s_cselect_b32 s61, s61, 0")
    e("s_or_b32 s60, s60, s61")
    e("s_lshl_b32 s56, s52, 7")
    e("s_lshl_b32 s57, s53, 4")
    e("s_add_u32 s56, s56, s57")
    e("s_lshl_b32 s57, s48, 3")
    e("s_add_u32 s56, s56, s57")
    e("s_lshl_b32 s57, s53, 5")
    e("s_and_b32 s58, s52, 3")
    e("s_lshl_b32 s58, s58, 3")
    e("s_add_u32 s57, s57, s58")
    e("s_cmp_eq_u32 s60, 2")
    e("s_cselect_b32 s59, s57, s56")
    e("s_cmp_ge_u32 s52, 4")
    e("s_cselect_b32 s92, s10, s8")
    e("s_cselect_b32 s93, s11, s9")
    e("s_cselect_b32 s62, 448, 0")
    e("s_cmp_eq_u32 s60, 2")
    e("s_cselect_b32 s92, s92, s20")
    e("s_cselect_b32 s93, s93, s21")
    e(f"s_mov_b32 s94, {2048*448*2}")
    e(f"s_cselect_b32 s94, {448*448*2}, s94")
    e("s_cselect_b32 s62, s62, 0")
    e("s_and_b32 s93, s93, 0xffff")
    e("s_mov_b32 s95, 0x20000")
    e("s_add_u32 s62, s62, s59")
    e("s_mul_i32 s63, s59, 896")
    e(f"s_mul_i32 s11, s76, {64*3584}")
    e("s_add_u32 s11, s11, s72")
    queue(("W",0))
    for _ in range(2): dmaq.popleft()()
    pr = G.Prof(e, 0); pr.stamp()
    e("v_and_b32 v40, 15, v0")
    e("s_lshl_b32 s56, s53, 5")
    e("s_lshl_b32 s57, s55, 4")
    e("s_add_u32 s78, s56, s57")
    e("v_add_u32 v41, s78, v40")
    e("v_lshlrev_b32 v42, 1, v41")
    tp = [e("buffer_load_ushort v43, v42, s[40:43], 0 offen"),
          e("buffer_load_ushort v44, v42, s[44:47], 0 offen"),
          e("buffer_load_ushort v45, v42, s[68:71], 0 offen")]
    e("v_lshrrev_b32 v34, 3, v0")
    e("v_and_b32 v35, 7, v0")
    e("v_mul_u32_u24 v36, 896, v34")
    e("v_lshl_add_u32 v36, v35, 4, v36")
    RB = 192
    labrb = e.label("K1_NORB")
    e("s_cmp_eq_u32 s60, 0")
    e(f"s_cbranch_scc1 {labrb}")
    e.cond_begin()
    for k in range(7): e(f"buffer_load_dwordx4 v[{RB+4*k}:{RB+4*k+3}], v36, s[92:95], s63 offen offset:{128*k}")
    e.cond_end()
    e.raw(f"{labrb}:")
    def rowbatch_compute():
        lab = e.label("K1_NORC")
        e("s_cmp_eq_u32 s60, 0")
        e(f"s_cbranch_scc1 {lab}")
        e.cond_begin()
        e.raw(f"s_waitcnt vmcnt({min(63, e.vm_issued - vm_at_rb)})")
        e("s_mov_b32 s58, 0x3f803f80")
        e("v_mov_b32 v220, 0"); e("v_mov_b32 v221, 0"); e("v_mov_b32 v222, 0"); e("v_mov_b32 v223, 0")
        for k in range(28):
            e(f"v_dot2c_f32_bf16 v{220 + (k&1)}, s58, v{RB+k}")
            e(f"v_dot2c_f32_bf16 v{222 + (k&1)}, v{RB+k}, v{RB+k}")
        e("s_nop 2")
        e("v_add_f32 v220, v220, v221")
        e("v_add_f32 v221, v222, v223")
        for r_ in (220, 221):
            e(f"v_add_f32_dpp v{r_}, v{r_}, v{r_} quad_perm:[1,0,3,2] row_mask:0xf bank_mask:0xf")
            e(f"v_add_f32_dpp v{r_}, v{r_}, v{r_} quad_perm:[2,3,0,1] row_mask:0xf bank_mask:0xf")
            e(f"v_add_f32_dpp v{r_}, v{r_}, v{r_} row_half_mirror row_mask:0xf bank_mask:0xf")
        e("v_mov_b32 v224, v220")
        e(f"v_mul_f32 v220, {f32(1.0/448)}, v220")
        e(f"v_mul_f32 v221, {f32(1.0/448)}, v221")
        e("v_fma_f32 v221, -v220, v220, v221")
        e("v_max_f32 v221, 0, v221")
        e("v_cvt_pk_bf16_f32 v220, v220, v221")
        e("v_and_b32 v221, 0xffff0000, v220")
        e("v_lshlrev_b32 v220, 16, v220")
        e(f"v_add_f32 v221, {f32(1e-5)}, v221")
        e("v_cvt_pk_bf16_f32 v221, v221, v221")
        e("v_lshlrev_b32 v221, 16, v221")
        e("v_sqrt_f32 v221, v221")
        e("v_cvt_pk_bf16_f32 v221, v221, v221")
        e("v_lshlrev_b32 v221, 16, v221")
        e.cond_end()
        e.raw(f"{lab}:")
    def rowbatch_publish():
        lab = e.label("K1_NORP"); labx = e.label("K1_RPX")
        e("s_cmp_eq_u32 s60, 0")
        e(f"s_cbranch_scc1 {lab}")
        e.cond_begin()
        e("v_lshrrev_b32 v226, 3, v0")
        e("v_add_u32 v226, s62, v226")
        e("v_and_b32 v227, 7, v0")
        e("v_cmp_eq_u32 vcc, 0, v227")
        e("s_and_saveexec_b64 s[58:59], vcc")
        e("s_cmp_eq_u32 s60, 1")
        e(f"s_cbranch_scc1 {labx}")
        e("v_lshlrev_b32 v226, 3, v226")
        e("v_mov_b32 v228, v224"); e("v_mov_b32 v229, s98")
        e(f"s_mov_b32 s61, {WS_CSB}")
        e("buffer_store_dwordx2 v[228:229], v226, s[32:35], s61 offen sc1")
        e("s_mov_b64 exec, s[58:59]")
        e(f"s_branch {lab}")
        e.raw(f"{labx}:")
        e("v_lshlrev_b32 v226, 4, v226")
        e("v_mov_b32 v228, v220"); e("v_mov_b32 v229, s98"); e("v_mov_b32 v230, v221"); e("v_mov_b32 v231, s98")
        e(f"s_mov_b32 s61, {WS_STAT}")
        e("buffer_store_dwordx4 v[228:231], v226, s[32:35], s61 offen sc1")
        e("s_mov_b64 exec, s[58:59]")
        e.cond_end()
        e.raw(f"{lab}:")
    RBWAIT = [0]
    vm_at_rb = e.vm_issued
    def rot_entry(t):
        if ROT == 2 and t == 1:
            e("s_and_b32 s56, s51, 3"); e("s_lshl_b32 s56, s56, 1"); e("s_lshr_b32 s57, s51, 2"); e("s_add_u32 s56, s56, s57")
            e("s_cmp_ge_u32 s56, 6"); e("s_cselect_b32 s57, 6, 0"); e("s_sub_u32 s56, s56, s57")
            e("s_cmp_ge_u32 s56, 6"); e("s_cselect_b32 s57, 6, 0"); e("s_sub_u32 s56, s56, s57")
            e("s_add_u32 s76, s56, 1")
        elif ROT == 2:
            e("s_add_u32 s76, s76, 1"); e("s_cmp_eq_u32 s76, 7"); e("s_cselect_b32 s76, 1, s76")
        else:
            e("s_add_u32 s76, s76, 1")
            e("s_cmp_eq_u32 s76, 7")
            e("s_cselect_b32 s76, 0, s76")
        e(f"s_lshl_b32 s{4+t}, s76, 7")
        e(f"s_mul_i32 s{11+t}, s76, {64*3584}")
        e(f"s_add_u32 s{4+t}, s{4+t}, s66")
        e(f"s_add_u32 s{11+t}, s{11+t}, s72")
    for t in range(1, 7): rot_entry(t)
    if ZLATE:
        queue(("X",1),("W",1),("X",2),("Z",2),("W",2),("W",3))
        for _ in range(max(0, PRO_DMAS - 4)): dmaq.popleft()()
    else:
        queue(("X",1),("Z",1),("W",1),("X",2),("Z",2),("W",2),("W",3))
        for _ in range(max(0, PRO_DMAS - 5)): dmaq.popleft()()
    if PSTAMP: pr.stamp()
    nonce_cas(e, 120)
    def issue_for_tick(tk):
        l = []
        if tk >= 1:
            if tk + 2 < 7: l += [("X", tk+2), ("Z", tk+2)]
            if TLAG:
                if tk >= 2 and tk + 2 < 14: l += [("W", tk+2)]
            elif tk + 3 < 14: l += [("W", tk+3)]
            if ZLATE and tk == 2: l += [("ZC", 0), ("ZC", 1)]
        return l

    e("v_and_b32 v34, 31, v0")
    e("v_lshrrev_b32 v35, 4, v34")
    e("v_bfe_u32 v36, v34, 2, 1")
    e("v_lshl_add_u32 v35, v36, 1, v35")
    e("v_bfe_u32 v36, v34, 3, 1")
    e("v_lshlrev_b32 v35, 3, v35")
    e("v_lshl_add_u32 v35, v36, 2, v35")
    e("v_and_b32 v36, 3, v34")
    e("v_add_u32 v35, v35, v36")
    e("v_lshrrev_b32 v36, 5, v0")
    e(f"v_lshl_add_u32 v{VH}, v36, 5, v35")
    e(f"v_lshlrev_b32 v{VH}, 4, v{VH}")
    e("s_lshl_b32 s56, s54, 5")
    e("v_add_u32 v37, s56, v35")
    e(f"v_lshlrev_b32 v{AX}, 7, v37")
    e("v_bfe_u32 v38, v35, 1, 3")
    e("v_xor_b32 v38, v38, v36")
    e(f"v_lshl_add_u32 v{AX}, v38, 4, v{AX}")
    for kk in range(1, 4): e(f"v_xor_b32 v{AX+kk}, {kk<<5}, v{AX}")
    e("v_bfe_u32 v38, v0, 4, 1")
    e(f"v_lshlrev_b32 v{AZr}, 12, v38")
    e("s_lshl_b32 s56, s55, 4")
    e("v_and_b32 v40, 15, v0")
    e("v_add_u32 v39, s56, v40")
    e(f"v_lshl_add_u32 v{AZr}, v39, 7, v{AZr}")
    e("v_bfe_u32 v39, v40, 1, 3")
    e("v_xor_b32 v39, v39, v36")
    e(f"v_lshl_add_u32 v{AZr}, v39, 4, v{AZr}")
    e(f"v_add_u32 v{AZr}, {ZR}, v{AZr}")
    for kk in range(1, 4): e(f"v_xor_b32 v{AZr+kk}, {kk<<5}, v{AZr}")
    e(f"v_lshlrev_b32 v{AW0}, 13, v38")
    e("v_lshrrev_b32 v39, 2, v40")
    e("v_lshl_add_u32 v39, v36, 3, v39")
    e(f"v_lshl_add_u32 v{AW0}, v39, 7, v{AW0}")
    e("v_lshrrev_b32 v39, 3, v40")
    e("v_lshl_add_u32 v39, v38, 1, v39")
    e("s_lshl_b32 s56, s55, 1")
    e("v_xor_b32 v39, s56, v39")
    e(f"v_lshl_add_u32 v{AW0}, v39, 5, v{AW0}")
    e("v_and_b32 v39, 3, v40")
    e(f"v_lshl_add_u32 v{AW0}, v39, 3, v{AW0}")
    e(f"v_add_u32 v{AW0}, {WR}, v{AW0}")
    e(f"v_xor_b32 v{AW1}, 32, v{AW0}")
    e("s_lshl_b32 s56, s52, 2")
    e("s_add_u32 s56, s56, s54")
    e("s_mul_i32 s56, s56, 112")
    e("s_lshl_b32 s57, s53, 3")
    e("s_add_u32 s56, s56, s57")
    e("s_lshl_b32 s57, s55, 1")
    e("s_add_u32 s56, s56, s57")
    e("s_lshl_b32 s79, s56, 10")
    if WS_HF: e(f"s_add_u32 s79, s79, {WS_HF}")

    def params():
        e.wait(tp); yield
        e("s_bitcmp1_b32 s54, 0"); e("s_cselect_b64 s[40:41], -1, 0")
        e("s_bitcmp1_b32 s54, 1"); e("s_cselect_b64 s[42:43], -1, 0")
        e("s_mov_b32 s44, 0xffff0000"); e("s_mov_b32 s45, 0xffff0000")
        e("s_mov_b32 s46, 0"); e("s_mov_b32 s47, -1")
        e("v_lshlrev_b32 v43, 16, v43"); yield
        e("v_lshlrev_b32 v44, 16, v44"); yield
        e("v_lshlrev_b32 v45, 16, v45"); yield
        e(f"v_mul_f32 v45, {f32(LOG2E)}, v45"); yield
        e("v_exp_f32 v45, v45"); yield
        e("v_cvt_pk_bf16_f32 v45, v45, v45"); yield
        e("v_lshlrev_b32 v45, 16, v45"); yield
        e("v_mul_f32 v34, v45, v43"); yield
        e("v_mul_f32 v35, v45, v44"); yield
        e(f"v_mul_f32 v34, {f32(LOG2E)}, v34"); yield
        e("v_exp_f32 v34, v34"); yield
        e(f"v_mul_f32 v35, {f32(1.0/(2*3.141592653589793))}, v35"); yield
        e("v_fract_f32 v35, v35"); yield
        e("v_cos_f32 v36, v35"); yield
        e("v_sin_f32 v37, v35"); yield
        e(f"v_mul_f32 v{LR}, v34, v36"); yield
        e(f"v_mul_f32 v{LI}, v34, v37"); yield
        e(f"v_add_f32 v36, -1.0, v{LR}"); yield
        e("v_mul_f32 v38, v43, v43"); yield
        e("v_fmac_f32 v38, v44, v44"); yield
        e("v_rcp_f32 v38, v38"); yield
        e("v_mul_f32 v39, v36, v43"); yield
        e(f"v_fmac_f32 v39, v{LI}, v44"); yield
        e(f"v_mul_f32 v34, v{LI}, v43"); yield
        e("v_fma_f32 v34, -v36, v44, v34"); yield
        e("v_add_f32 v38, v38, v38"); yield
        e(f"v_mul_f32 v{CR}, v39, v38"); yield
        e(f"v_mul_f32 v{CI}, v34, v38"); yield
        yield from csq(e, 34, 35, LR, LI, 38)
        yield from csq(e, 36, 37, 34, 35, 38)
        yield from csq(e, L8R, L8I, 36, 37, 38)
        e(f"v_mov_b32 v{TR}, 1.0"); yield
        e(f"v_mov_b32 v{TI}, 0"); yield
        e(f"v_mov_b32 v34, v{L8R}"); yield
        e(f"v_mov_b32 v35, v{L8I}"); yield
        for b, m in enumerate(("s[44:45]", "s[46:47]", "s[40:41]", "s[42:43]")):
            yield from cmul(e, 36, 37, TR, TI, 34, 35, 38)
            e(f"v_cndmask_b32 v{TR}, v{TR}, v36, {m}"); yield
            e(f"v_cndmask_b32 v{TI}, v{TI}, v37, {m}"); yield
            e("v_mov_b32 v41, v34"); yield
            e("v_mov_b32 v42, v35"); yield
            yield from csq(e, 34, 35, 41, 42, 38)
        e(f"v_mov_b32 v{L128R}, v34"); yield
        e(f"v_mov_b32 v{L128I}, v35"); yield

    def zbuf(ks): return 96 + (ks & 1)*4
    def wbufA(ks, tl): return 104 + (ks & 1)*8 + tl*4
    def wbufB(ks, tl): return FB + (ks & 1)*8 + tl*4
    first = {}
    def mfma(acc, a, b):
        c = f"v[{acc}:{acc+15}]" if first.get(acc) else "0"
        first[acc] = True
        e(f"v_mfma_f32_32x32x16_bf16 v[{acc}:{acc+15}], v[{a}:{a+3}], v[{b}:{b+3}], {c}")
    rd_tok = {}
    def read_x(ks):
        kk = ks & 3; kc = ks >> 2
        rd_tok[("x", ks)] = [e(f"ds_read_b128 v[{XF+4*ks}:{XF+4*ks+3}], v{AX+kk} offset:{(kc%3)*16384}")]
    def read_z(ks):
        kk = ks & 3; kc = ks >> 2
        rd_tok[("z", ks)] = [e(f"ds_read_b128 v[{zbuf(ks)}:{zbuf(ks)+3}], v{AZr+kk} offset:{(kc%NZ)*8192}")]
    def read_w(ph, ks, tl, half):
        kk = ks & 3; w = (ks >> 2) + (0 if ph == "A" else 7)
        b = wbufA(ks, tl) if ph == "A" else wbufB(ks, tl)
        ad = AW0 if tl == 0 else AW1
        off = (w % 4)*16384 + kk*2048
        t = e(f"ds_read_b64_tr_b16 v[{b+2*half}:{b+2*half+1}], v{ad} offset:{off+512*half}")
        rd_tok.setdefault((ph, ks, tl), []).append(t)
    steps = [("A", ks) for ks in range(28)] + [("B", ks) for ks in range(28)]
    def tick_idx(ph, ks): return (ks >> 2) + (0 if ph == "A" else 7)
    def need_ents(tk):
        if tk >= 7: return [("W",tk)]
        if not ZLATE: return [("X",tk),("Z",tk),("W",tk)]
        l = [("X",tk),("W",tk)]
        if tk >= 2: l.append(("Z",tk))
        if tk >= 5: l.append(("ZC", tk - 5))
        return l
    nbar = [0]
    pendw = []
    def enter_tick(tk):
        while any(x not in ent_tok for x in need_ents(tk)): dmaq.popleft()()
        e.wait([ent_tok[x] for x in need_ents(tk)])
        if tk == NT: nonce_publish(e, 120, M_N)
        if TLAG:
            e.wait(pendw); pendw.clear()
        else:
            e.wait_all(vm=False)
        e("s_barrier")
        nbar[0] += 1
        if tk == NT: nonce_read(e, 121, M_N)
        queue(*issue_for_tick(tk))

    def main_stream():
        sp = env("SETPRIO", 0)
        if sp:
            lab = e.label("K1_SP")
            e("s_cmp_lt_u32 s48, 4" if sp == 1 else "s_cmp_ge_u32 s48, 4")
            e(f"s_cbranch_scc1 {lab}")
            e("s_setprio 1")
            e.raw(f"{lab}:")
        if not RB_LATE: rowbatch_compute()
        if PSTAMP: pr.stamp()
        enter_tick(0)
        if PSTAMP: pr.stamp()
        def hasZ(ks): return (not ZLATE) or ks >= 8
        def hasC(ks): return ZLATE and ks >= 20
        def zcbuf(ks): return 248 + (ks & 1)*4
        def read_zc(ks):
            kc = ks - 20; kk = kc & 3
            e(f"v_add_u32 v46, {M_TR - ZR + (kc >> 2)*8192}, v{AZr+kk}")
            rd_tok[("zc", ks)] = [e(f"ds_read_b128 v[{zcbuf(ks)}:{zcbuf(ks)+3}], v46")]
        read_x(0); read_w("A", 0, 0, 0); read_w("A", 0, 0, 1)
        if hasZ(0): read_z(0)
        read_w("A", 0, 1, 0); read_w("A", 0, 1, 1)
        for n, (ph, ks) in enumerate(steps):
            nx = steps[n+1] if n + 1 < len(steps) else None
            x = XF + 4*ks
            if ph == "A":
                ops = [(AG[0], wbufA(ks,0), x, [("x", ks), (ph, ks, 0)])]
                if hasZ(ks): ops.append((AZ, x, zbuf(ks), [("z", ks)]))
                ops.append((AG[1], wbufA(ks,1), x, [(ph, ks, 1)]))
                if hasC(ks): ops.append((AZ, XF + 4*(ks - 20), zcbuf(ks), [("zc", ks)]))
            else:
                ops = [(AG[2], wbufB(ks,0), x, [(ph, ks, 0)]), (AG[3], wbufB(ks,1), x, [(ph, ks, 1)])]
            groups = [[] for _ in ops]
            if nx is not None:
                ph2, ks2 = nx
                if ph2 == "A":
                    rl = [lambda: read_x(ks2), lambda: read_w("A", ks2, 0, 0), lambda: read_w("A", ks2, 0, 1)]
                    if hasZ(ks2): rl.append(lambda: read_z(ks2))
                    rl += [lambda: read_w("A", ks2, 1, 0), lambda: read_w("A", ks2, 1, 1)]
                    if hasC(ks2): rl.append(lambda: read_zc(ks2))
                else:
                    rl = [lambda: read_w("B", ks2, 0, 0), lambda: read_w("B", ks2, 0, 1), lambda: read_w("B", ks2, 1, 0), lambda: read_w("B", ks2, 1, 1)]
                ns = len(ops)
                if ph == "A" and ph2 == "B": ns_use = 2
                elif WAIT1 and ph == "A": ns_use = 2
                else: ns_use = ns
                per = -(-len(rl) // ns_use)
                for k, f in enumerate(rl): groups[min(k // per, ns_use - 1)].append(f)
            if WAIT1 and ph == "A": e.wait([rd_tok[k] for (_, _, _, keys) in ops for k in keys])
            for si, (acc, a, b, keys) in enumerate(ops):
                e.wait([rd_tok[k] for k in keys])
                mfma(acc, a, b)
                if nx is not None and si == 0 and (nx[1] & 3) == 0: enter_tick(tick_idx(nx[0], nx[1]))
                for f in groups[si]: f()
                dma_ok = (si == len(ops) - 1)
                did = False
                if (dma_ok or (len(dmaq) > DMA_HURRY)) and dmaq:
                    dmaq.popleft()(); did = True
                yield (ph, ks, si, did)

    aux = {}
    def tagcheck(regs):
        e(f"v_xor_b32 v44, s98, v{regs[0]}")
        for r in regs[1:]:
            e(f"v_xor_b32 v45, s98, v{r}")
            e("v_or_b32 v44, v44, v45")
        e("v_cmp_ne_u32 vcc, 0, v44")
        e("s_cmp_eq_u64 vcc, 0")
    AXW1, AXW2 = 3, 4
    def only_wave(w, name):
        lab = e.label(name)
        e(f"s_cmp_lg_u32 s48, {w}")
        e(f"s_cbranch_scc1 {lab}")
        e.cond_begin()
        return lab
    def end_only(lab):
        e.cond_end()
        e.raw(f"{lab}:")
    def aux1_issue_raw():
        e("s_lshl_b32 s61, s52, 11")
        e(f"s_add_u32 s61, s61, {WS_STAT}")
        e("v_lshlrev_b32 v120, 4, v0")
        e("buffer_load_dwordx4 v[36:39], v120, s[32:35], s61 offen sc1")
        e("buffer_load_dwordx4 v[40:43], v120, s[32:35], s61 offen offset:1024 sc1")
        e("v_lshrrev_b32 v121, 5, v0")
        e("v_mul_u32_u24 v121, 448, v121")
        e("v_and_b32 v122, 31, v0")
        e("v_add_u32 v121, v121, v122")
        e("s_lshl_b32 s61, s53, 5")
        e("v_add_u32 v121, s61, v121")
        e("v_lshlrev_b32 v121, 3, v121")
        e(f"s_mov_b32 s61, {WS_CSB}")
        e("buffer_load_dwordx2 v[124:125], v121, s[32:35], s61 offen sc1")
    def aux1_issue():
        lab = only_wave(AXW1, "K1_A1I")
        aux1_issue_raw()
        end_only(lab)
        aux["a1_vm"] = e.vm_issued
    def aux1_finish():
        lab = only_wave(AXW1, "K1_A1F")
        e.raw(f"s_waitcnt vmcnt({min(63, e.vm_issued - aux['a1_vm'])})")
        tagged_retry(e, aux1_issue_raw, lambda: tagcheck([37, 39, 41, 43, 125]), "K1_A1", cnt="s63")
        e("v_rcp_f32 v37, v38")
        e("v_rcp_f32 v41, v42")
        e("v_lshlrev_b32 v120, 3, v0")
        e(f"v_add_u32 v120, {M_ST}, v120")
        e("ds_write_b64 v120, v[36:37]")
        e("ds_write_b64 v120, v[40:41] offset:512")
        e("v_lshlrev_b32 v120, 2, v0")
        e(f"v_add_u32 v120, {M_SD}, v120")
        e("ds_write_b32 v120, v38")
        e("ds_write_b32 v120, v42 offset:256")
        e(f"ds_write_b32 v120, v124 offset:{M_CB - M_SD}")
        e.raw("s_waitcnt lgkmcnt(0)")
        end_only(lab)
    def aux1_read():
        e(f"v_and_b32 v34, 0x1f0, v{VH}"); yield
        e("v_lshrrev_b32 v34, 1, v34"); yield
        e("s_lshl_b32 s56, s54, 8")
        e(f"s_add_u32 s56, s56, {M_ST}")
        e("v_add_u32 v35, s56, v34"); yield
        t1 = e("ds_read_b64 v[36:37], v35"); yield
        e("v_lshrrev_b32 v34, 1, v34"); yield
        e("s_lshl_b32 s56, s54, 7")
        e(f"s_add_u32 s56, s56, {M_SD}")
        e("v_add_u32 v34, s56, v34"); yield
        t2 = e(f"ds_read_b32 v{SD}, v34"); yield
        e("v_and_b32 v34, 15, v0"); yield
        e("s_lshl_b32 s56, s55, 6")
        e(f"s_add_u32 s56, s56, {M_CB}")
        e("v_lshlrev_b32 v34, 2, v34"); yield
        e("v_add_u32 v34, s56, v34"); yield
        t3 = [e(f"ds_read_b32 v{CSR}, v34"), e(f"ds_read_b32 v{CSI}, v34 offset:128")]; yield
        e("v_lshrrev_b32 v34, 4, v0"); yield
        e("s_lshl_b32 s56, s54, 8")
        e(f"s_add_u32 s56, s56, {M_ST}")
        e("v_lshlrev_b32 v34, 6, v34"); yield
        e("v_add_u32 v34, s56, v34"); yield
        e.wait(t1); yield
        e(f"v_mov_b32 v{M_}, v36"); yield
        e(f"v_mul_f32 v{NLR}, {f32(-LOG2E)}, v37"); yield
        aux["st"] = [e("ds_read_b128 v[36:39], v34"), e("ds_read_b128 v[40:43], v34 offset:16")]
        aux["lane"] = [t2, t3]
        yield
    def aux2_issue_raw():
        e("s_lshl_b32 s61, s53, 10")
        e(f"s_add_u32 s61, s61, {WS_CSW}")
        e("v_lshlrev_b32 v136, 4, v0")
        e("buffer_load_dwordx4 v[128:131], v136, s[32:35], s61 offen sc1")
        e(f"s_add_u32 s61, s61, {1792*8}")
        e("buffer_load_dwordx4 v[132:135], v136, s[32:35], s61 offen sc1")
    def aux2_issue():
        lab = only_wave(AXW2, "K1_A2I")
        aux2_issue_raw()
        end_only(lab)
        aux["a2_vm"] = e.vm_issued
    def tagcheck2(regs):
        e(f"v_xor_b32 v137, s98, v{regs[0]}")
        for r in regs[1:]:
            e(f"v_xor_b32 v138, s98, v{r}")
            e("v_or_b32 v137, v137, v138")
        e("v_cmp_ne_u32 vcc, 0, v137")
        e("s_cmp_eq_u64 vcc, 0")
    def aux2_finish():
        lab = only_wave(AXW2, "K1_A2F")
        e.raw(f"s_waitcnt vmcnt({min(63, e.vm_issued - aux['a2_vm'])})")
        tagged_retry(e, aux2_issue_raw, lambda: tagcheck2([129, 131, 133, 135]), "K1_A2", cnt="s63")
        e("v_mov_b32 v129, v130")
        e("v_mov_b32 v133, v134")
        e("v_lshlrev_b32 v136, 3, v0")
        e(f"v_add_u32 v136, {M_CS}, v136")
        e("ds_write_b64 v136, v[128:129]")
        e("ds_write_b64 v136, v[132:133] offset:512")
        e.raw("s_waitcnt lgkmcnt(0)")
        end_only(lab)
    def cs_base():
        e("v_lshrrev_b32 v46, 5, v0"); yield
        e("v_lshlrev_b32 v46, 4, v46"); yield
        e("s_lshl_b32 s56, s55, 7")
        e(f"s_add_u32 s56, s56, {M_CS}")
        e("v_add_u32 v46, s56, v46"); yield
    def cs_reads(tl, CSB):
        o = (tl >> 1)*256 + (tl & 1)*64
        aux[("cs", tl)] = [e(f"ds_read_b128 v[{CSB}:{CSB+3}], v46 offset:{o}"),
                           e(f"ds_read_b128 v[{CSB+4}:{CSB+7}], v46 offset:{o+32}"),
                           e(f"ds_read_b128 v[{CSB+8}:{CSB+11}], v46 offset:{o+512}"),
                           e(f"ds_read_b128 v[{CSB+12}:{CSB+15}], v46 offset:{o+544}")]
        yield

    def z_pass1():
        e.wait(aux["lane"]); yield
        for i in range(8):
            e(f"v_permlane16_swap_b32 v{AZ+i}, v{AZ+8+i}"); yield
        st = list(aux["st"])
        for g in range(4):
            b = 36 + (g & 1)*4
            e.wait(st[g]); yield
            for u in range(2):
                i = 2*g + u; mm = b + 2*u
                e(f"v_fma_f32 v{AZ+i}, -v{mm}, v{CSR}, v{AZ+i}"); yield
                e(f"v_fma_f32 v{AZ+8+i}, -v{mm}, v{CSI}, v{AZ+8+i}"); yield
            for u in range(2):
                i = 2*g + u; rr = b + 2*u + 1
                e(f"v_mul_f32 v{AZ+i}, v{AZ+i}, v{rr}"); yield
                e(f"v_mul_f32 v{AZ+8+i}, v{AZ+8+i}, v{rr}"); yield
            if g + 2 < 4:
                st.append(e(f"ds_read_b128 v[{b}:{b+3}], v34 offset:{(g+2)*16}")); yield
        pr_, pi_ = AZ, AZ + 8
        for i in range(1, 8):
            d = (44, 45) if (i & 1) else (ER, EI)
            yield from cfma_to(e, d[0], d[1], pr_, pi_, LR, LI, AZ+i, AZ+8+i)
            pr_, pi_ = d
        e(f"v_mul_f32 v36, v{CI}, v45"); yield
        e(f"v_mul_f32 v37, v{CI}, v44"); yield
        e(f"v_fma_f32 v{ER}, v{CR}, v44, -v36"); yield
        e(f"v_fma_f32 v{EI}, v{CR}, v45, v37"); yield
    def hier1():
        e(f"v_mov_b32 v1, v{ER}"); yield
        e(f"v_mov_b32 v2, v{ER}"); yield
        e(f"v_mov_b32 v3, v{EI}"); yield
        e(f"v_mov_b32 v4, v{EI}"); yield
        yield from csq(e, 7, 8, L8R, L8I, 34)
        e("v_permlane16_swap_b32 v1, v2"); yield
        e("v_permlane16_swap_b32 v3, v4"); yield
        yield from cfma_to(e, 5, 6, 1, 3, L8R, L8I, 2, 4)
        e("v_mov_b32 v28, v5"); yield
        e("v_mov_b32 v36, v5"); yield
        e("v_mov_b32 v29, v6"); yield
        e("v_mov_b32 v34, v6"); yield
        e("v_and_b32 v35, 15, v0"); yield
        e("s_lshl_b32 s56, s55, 4")
        e("v_add_u32 v35, s56, v35"); yield
        e("v_lshlrev_b32 v35, 3, v35"); yield
        e("v_permlane32_swap_b32 v28, v36"); yield
        e("v_permlane32_swap_b32 v29, v34"); yield
        e(f"v_add_u32 v35, {M_SEG}, v35"); yield
        yield from cfma_to(e, 5, 6, 28, 29, 7, 8, 36, 34)
        e("s_lshl_b32 s56, s54, 8")
        e("v_add_u32 v34, s56, v35"); yield
        e("v_mov_b32 v44, v5"); yield
        e("v_mov_b32 v45, v6"); yield
        pendw.append(e("ds_write_b64 v34, v[44:45]")); yield
    def hier2():
        tk = [e(f"ds_read_b64 v[{36+2*u}:{37+2*u}], v35 offset:{u*256}") for u in range(3)]
        yield
        yield from csq(e, 42, 43, 7, 8, 44)
        e.wait(tk); yield
        yield from cfma_to(e, 44, 45, 36, 37, 42, 43, 38, 39)
        yield from cfma_to(e, 2, 4, 44, 45, 42, 43, 40, 41)
        e("v_cndmask_b32 v2, v44, v2, s[40:41]"); yield
        e("v_cndmask_b32 v4, v45, v4, s[40:41]"); yield
        e("v_cndmask_b32 v36, 0, v36, s[40:41]"); yield
        e("v_cndmask_b32 v37, 0, v37, s[40:41]"); yield
        e("v_cndmask_b32 v36, v36, v2, s[42:43]"); yield
        e("v_cndmask_b32 v37, v37, v4, s[42:43]"); yield
        lab = e.label("K1_NOPUB")
        e("s_cmp_lg_u32 s54, 3")
        e(f"s_cbranch_scc1 {lab}")
        e.cond_begin()
        for _ in cfma_to(e, 38, 40, 36, 37, 42, 43, 5, 6): pass
        e("v_mov_b32 v39, s98"); e("v_mov_b32 v41, s98")
        e("v_and_b32 v34, 15, v0")
        e("v_add_u32 v34, s78, v34")
        e("v_lshlrev_b32 v34, 4, v34")
        e(f"s_mul_i32 s56, s52, {448*16}")
        e(f"s_add_u32 s56, s56, {WS_E}")
        e("s_mov_b64 s[58:59], exec")
        e("s_mov_b64 exec, 0xffff")
        e("buffer_store_dwordx4 v[38:41], v34, s[32:35], s56 offen sc1")
        e("s_mov_b64 exec, s[58:59]")
        e.cond_end()
        e.raw(f"{lab}:")
        yield
        yield from cfma_to(e, 38, 39, 36, 37, 7, 8, 28, 29)
        e("v_cndmask_b32 v36, v36, v38, s[46:47]"); yield
        e("v_cndmask_b32 v37, v37, v39, s[46:47]"); yield
        yield from cfma_to(e, 38, 39, 36, 37, L8R, L8I, 1, 3)
        e(f"v_cndmask_b32 v{PR}, v36, v38, s[44:45]"); yield
        e(f"v_cndmask_b32 v{PI}, v37, v39, s[44:45]"); yield
    def zscale():
        for i in range(0, 8, 2):
            for u in range(2):
                e(f"v_mul_f32 v{36+2*u}, v{CI}, v{AZ+8+i+u}"); yield
                e(f"v_mul_f32 v{37+2*u}, v{CI}, v{AZ+i+u}"); yield
            for u in range(2):
                e(f"v_fma_f32 v{AZ+i+u}, v{CR}, v{AZ+i+u}, -v{36+2*u}"); yield
                e(f"v_fma_f32 v{AZ+8+i+u}, v{CR}, v{AZ+8+i+u}, v{37+2*u}"); yield
    def gu_math(acc, CSB):
        for i in range(8):
            e(f"v_fma_f32 v{acc+i}, -v{M_}, v{CSB+i}, v{acc+i}"); yield
        for i in range(8):
            e(f"v_mul_f32 v{acc+i}, v{acc+i}, v{NLR}"); yield
        for i in range(8):
            e(f"v_exp_f32 v{acc+i}, v{acc+i}"); yield
            e(f"v_fma_f32 v{acc+8+i}, -v{M_}, v{CSB+8+i}, v{acc+8+i}"); yield
        for i in range(8):
            e(f"v_fma_f32 v{acc+i}, v{acc+i}, v{SD}, v{SD}"); yield
        for i in range(8):
            e(f"v_rcp_f32 v{acc+i}, v{acc+i}"); yield
        for i in range(8):
            e(f"v_mul_f32 v{acc+i}, v{acc+i}, v{acc+8+i}"); yield
        for p in range(4):
            e(f"v_cvt_pk_bf16_f32 v{acc+8+p}, v{acc+2*p}, v{acc+2*p+1}"); yield
    def gu_epi(tl, CSB):
        acc = AG[tl]
        e.wait(aux[("cs", tl)]); yield
        yield from gu_math(acc, CSB)
        e(f"s_add_u32 s56, s79, {((tl>>1)*4 + (tl&1))*1024}")
        e(f"buffer_store_dwordx4 v[{acc+8}:{acc+11}], v{VH}, s[32:35], s56 offen{STF}"); yield

    ebq = deque()
    def early_B_setup():
        e(f"v_lshrrev_b32 v{EBV}, 3, v0")
        e("s_lshl_b32 s57, s48, 3")
        e(f"v_add_u32 v{EBV}, s57, v{EBV}")
        e(f"v_mul_u32_u24 v{EBV}, 896, v{EBV}")
        e("v_and_b32 v11, 7, v0")
        e("v_bfe_u32 v12, v0, 4, 1")
        e("v_lshlrev_b32 v12, 2, v12")
        e("v_xor_b32 v11, v11, v12")
        e(f"v_lshl_add_u32 v{EBV}, v11, 4, v{EBV}")
        if os.environ.get("NOPF"):
            e("s_load_dwordx2 s[92:93], s[0:1], 96"); e.raw("s_waitcnt lgkmcnt(0)"); e.smem_out = False; e.lg_done = e.lg_issued
            e("s_and_b32 s93, s93, 0xffff")
        else:
            e("s_mov_b32 s92, s86"); e("s_and_b32 s93, s87, 0xffff")
        e(f"s_mov_b32 s94, {1792*448*2}"); e("s_mov_b32 s95, 0x20000")
        e("s_cmp_ge_u32 s53, 7")
        e("s_cselect_b32 s57, 7, 0")
        e("s_sub_u32 s57, s53, s57")
        e("s_and_b32 s70, s51, 3")
        e("s_mul_i32 s70, s70, 7")
        e("s_lshl_b32 s71, s57, 2")
        e("s_add_u32 s70, s70, s71")
        e("s_cmp_ge_u32 s70, 28")
        e("s_cselect_b32 s71, 28, 0")
        e("s_sub_u32 s70, s70, s71")
        e("s_lshl_b32 s71, s57, 7")
        e("s_lshl_b32 s69, s48, 10")
    def early_B_queue(t0, t1):
        def mk(t):
            def f():
                e(f"s_add_u32 m0, s69, {t*8192}")
                e(f"s_mul_i32 s68, s70, {64*896}")
                e("s_add_u32 s68, s68, s71")
                e(f"buffer_load_dwordx4 v{EBV}, s[92:95], s68 offen lds")
                e("s_add_u32 s70, s70, 1"); e("s_cmp_eq_u32 s70, 28"); e("s_cselect_b32 s70, 0, s70")
            return f
        for t in range(t0, t1): ebq.append(mk(t))
    def drain_eb(gen, every=18):
        k = 0
        for _ in gen:
            k += 1
            if k % every == 0 and ebq: ebq.popleft()()
    M_PF = 162304
    def k2_touch(k, slot):
        PFT = 139 if slot < 18 else 160
        assert slot >= 6
        lab = e.label("K1_PF")
        e(f"s_cmp_lg_u32 s48, {k & 7}")
        e(f"s_cbranch_scc1 {lab}")
        e.cond_begin()
        if k < 7:
            e("s_mul_i32 s61, s51, 448"); e(f"s_add_u32 s61, s61, {64*k}"); base = "s[86:87]"; lim = 12543
        elif k < 9:
            e("s_mul_i32 s61, s51, 112"); e(f"s_add_u32 s61, s61, {64*(k-7)}"); base = "s[88:89]"; lim = 3135
        else:
            e("s_mul_i32 s61, s51, 112"); e(f"s_add_u32 s61, s61, {64*(k-9)}"); base = "s[90:91]"; lim = 3135
        e(f"v_add_u32 v{PFT}, s61, v0")
        e(f"v_min_u32 v{PFT}, {lim}, v{PFT}")
        e(f"s_mov_b32 m0, {M_PF}")
        e(f"v_lshlrev_b32 v{PFT}, 7, v{PFT}")
        e(f"global_load_lds_dword v{PFT}, {base}")
        e.cond_end()
        e.raw(f"{lab}:")
    EL = 160
    def e_issue_raw():
        e("v_lshrrev_b32 v180, 4, v0")
        e("v_and_b32 v181, 15, v0")
        e("v_add_u32 v181, s78, v181")
        e("v_lshlrev_b32 v181, 4, v181")
        e("s_sub_u32 s63, s52, 1")
        e(f"s_mov_b32 s61, {WS_E}")
        for m in range(4):
            e(f"v_add_u32 v{176+m}, {4*m}, v180")
            e(f"v_min_u32 v{176+m}, s63, v{176+m}")
            e(f"v_mul_u32_u24 v{176+m}, {448*16}, v{176+m}")
            e(f"v_add_u32 v{176+m}, v{176+m}, v181")
            e(f"buffer_load_dwordx4 v[{EL+4*m}:{EL+4*m+3}], v{176+m}, s[32:35], s61 offen sc1")
    def e_issue():
        lab = e.label("K1_EI")
        e("s_cmp_eq_u32 s52, 0")
        e(f"s_cbranch_scc1 {lab}")
        e.cond_begin(); e_issue_raw(); e.cond_end()
        e.raw(f"{lab}:")
    def e_consts():
        yield from csq(e, 182, 183, L128R, L128I, 188)
        yield from cmul(e, 184, 185, 182, 183, L128R, L128I, 188)
        yield from csq(e, 186, 187, 182, 183, 188)
        e("v_lshrrev_b32 v190, 4, v0"); yield
        e("s_sub_u32 s63, s52, 1")
        e("v_sub_u32 v190, s63, v190"); yield
        e("v_and_b32 v191, 3, v190"); yield
        e("v_ashrrev_i32 v190, 2, v190"); yield
        e("v_mov_b32 v192, 1.0"); yield
        e("v_mov_b32 v193, 0"); yield
        for k, (rr, ii) in enumerate(((L128R, L128I), (182, 183), (184, 185))):
            e(f"v_cmp_eq_u32 vcc, {k+1}, v191"); yield
            e(f"v_cndmask_b32 v192, v192, v{rr}, vcc"); yield
            e(f"v_cndmask_b32 v193, v193, v{ii}, vcc"); yield
    def e_check(nafter):
        skip = e.label("K1_ESK"); ok = e.label("K1_EOK"); chk = e.label("K1_ECK")
        e("s_cmp_eq_u32 s52, 0")
        e(f"s_cbranch_scc1 {skip}")
        e.cond_begin()
        e.raw(f"s_waitcnt vmcnt({nafter})")
        e("s_mov_b32 s62, 0")
        e.raw(f"{chk}:")
        e(f"v_xor_b32 v44, s98, v{EL+1}")
        for r in (EL+3, EL+5, EL+7, EL+9, EL+11, EL+13, EL+15):
            e(f"v_xor_b32 v45, s98, v{r}")
            e("v_or_b32 v44, v44, v45")
        e("v_cmp_ne_u32 vcc, 0, v44")
        e("s_cmp_eq_u64 vcc, 0")
        e(f"s_cbranch_scc1 {ok}")
        e("s_add_u32 s62, s62, 1")
        e("s_cmp_ge_u32 s62, 100000")
        e(f"s_cbranch_scc1 {ok}")
        e_issue_raw()
        e.raw("s_waitcnt vmcnt(0)")
        e(f"s_branch {chk}")
        e.raw(f"{ok}:")
        e.cond_end()
        e.raw(f"{skip}:")
    def carry_and_pass2():
        lab0 = e.label("K1_NOCARRY")
        e("v_mov_b32 v44, 0"); e("v_mov_b32 v45, 0")
        e("s_cmp_eq_u32 s52, 0")
        e(f"s_cbranch_scc1 {lab0}")
        for m in range(4):
            er, ei = EL+4*m, EL+4*m+2
            e(f"v_cmp_le_i32 vcc, {m}, v190")
            e(f"v_fma_f32 v{er}, v186, v44, v{er}")
            e(f"v_fma_f32 v{ei}, v186, v45, v{ei}")
            e(f"v_fma_f32 v{er}, -v187, v45, v{er}")
            e(f"v_fma_f32 v{ei}, v187, v44, v{ei}")
            e(f"v_cndmask_b32 v44, v44, v{er}, vcc")
            e(f"v_cndmask_b32 v45, v45, v{ei}, vcc")
        e("v_mul_f32 v40, v193, v45")
        e("v_mul_f32 v41, v193, v44")
        e("v_fma_f32 v44, v192, v44, -v40")
        e("v_fma_f32 v45, v192, v45, v41")
        e("v_mov_b32 v40, v44"); e("v_mov_b32 v41, v45")
        e("v_permlane16_swap_b32 v44, v40"); e("v_permlane16_swap_b32 v45, v41")
        e("v_add_f32 v44, v44, v40"); e("v_add_f32 v45, v45, v41")
        e("v_mov_b32 v40, v44"); e("v_mov_b32 v41, v45")
        e("v_permlane32_swap_b32 v44, v40"); e("v_permlane32_swap_b32 v45, v41")
        e("v_add_f32 v44, v44, v40"); e("v_add_f32 v45, v45, v41")
        e.raw(f"{lab0}:")
        e(f"v_fma_f32 v{PR}, v{TR}, v44, v{PR}")
        e(f"v_fma_f32 v{PI}, v{TR}, v45, v{PI}")
        e(f"v_fma_f32 v{PR}, -v{TI}, v45, v{PR}")
        e(f"v_fma_f32 v{PI}, v{TI}, v44, v{PI}")
        pr_, pi_ = PR, PI
        for i in range(8):
            zr, zi = AZ + i, AZ + 8 + i
            e(f"v_fma_f32 v{zr}, v{LR}, v{pr_}, v{zr}")
            e(f"v_fma_f32 v{zi}, v{LR}, v{pi_}, v{zi}")
            e(f"v_fma_f32 v{zr}, -v{LI}, v{pi_}, v{zr}")
            e(f"v_fma_f32 v{zi}, v{LI}, v{pr_}, v{zi}")
            pr_, pi_ = zr, zi
        for p in range(4):
            e(f"v_cvt_pk_bf16_f32 v{36+p}, v{AZ+2*p}, v{AZ+2*p+1}")
            e(f"v_cvt_pk_bf16_f32 v{40+p}, -v{AZ+8+2*p}, -v{AZ+8+2*p+1}")
        e("ds_write_b128 v1, v[36:39]")
        e("ds_write_b128 v1, v[40:43] offset:1024")
        e.wait_all(vm=False)
        tk = [e("ds_read_b64_tr_b16 v[36:37], v2"), e("ds_read_b64_tr_b16 v[38:39], v2 offset:256"),
              e("ds_read_b64_tr_b16 v[40:41], v2 offset:1024"), e("ds_read_b64_tr_b16 v[42:43], v2 offset:1280")]
        e.wait(tk)
        e(f"buffer_store_dwordx4 v[36:39], v3, s[32:35], s76 offen{STF}")
        e("s_add_u32 s76, s76, 4096")
        e(f"buffer_store_dwordx4 v[40:43], v3, s[32:35], s76 offen{STF}")
    def tail_addr():
        e("s_lshl_b32 s56, s48, 11")
        e(f"s_add_u32 s56, s56, {M_TR}")
        e("v_and_b32 v1, 15, v0"); yield
        e("v_lshlrev_b32 v1, 6, v1"); yield
        e("v_lshrrev_b32 v2, 4, v0"); yield
        e("v_lshl_add_u32 v1, v2, 4, v1"); yield
        e("v_add_u32 v1, s56, v1"); yield
        e("v_lshrrev_b32 v2, 5, v0"); yield
        e("v_bfe_u32 v3, v0, 2, 2"); yield
        e("v_lshl_add_u32 v2, v2, 3, v3"); yield
        e("v_lshlrev_b32 v2, 6, v2"); yield
        e("v_bfe_u32 v3, v0, 4, 1"); yield
        e("v_lshl_add_u32 v2, v3, 5, v2"); yield
        e("v_and_b32 v3, 3, v0"); yield
        e("v_lshl_add_u32 v2, v3, 3, v2"); yield
        e("v_add_u32 v2, s56, v2"); yield
        e("v_lshlrev_b32 v3, 4, v0"); yield
        e("s_lshl_b32 s56, s53, 1")
        e("s_add_u32 s56, s56, s55")
        e("s_lshr_b32 s57, s56, 2")
        e("s_lshl_b32 s57, s57, 3")
        e("s_and_b32 s56, s56, 3")
        e("s_add_u32 s56, s56, s57")
        e("s_lshl_b32 s57, s52, 2")
        e("s_add_u32 s57, s57, s54")
        e("s_mul_i32 s57, s57, 56")
        e("s_add_u32 s56, s56, s57")
        e("s_lshl_b32 s56, s56, 10")
        e(f"s_add_u32 s76, s56, {WS_hF}")
        yield

    def cost(i):
        if i.cls == "valu": return TRC if i.op in TRANS else 1.0
        if i.cls in ("ds", "vmem"): return 0.5
        return 0.1
    class Fill:
        def __init__(self): self.q = []; self.cur = None; self.barrier_at = None
        def add(self, *items): self.q += list(items)
        def run(self, budget, tick):
            spent = 0.0
            while spent < budget:
                if self.cur is None:
                    if not self.q: return
                    it = self.q[0]
                    if it == "barrier":
                        if self.barrier_at is None: self.barrier_at = tick
                        if tick <= self.barrier_at: return
                        self.barrier_at = None; self.q.pop(0); continue
                    if it == "aux2gate":
                        if "a2_tick" not in aux or tick <= aux["a2_tick"]: return
                        self.q.pop(0); continue
                    if it == "step17":
                        if tick < 13: return
                        self.q.pop(0); continue
                    self.q.pop(0); self.cur = it() if callable(it) else it
                n0 = len(e.ins)
                try: next(self.cur)
                except StopIteration: self.cur = None
                spent += sum(cost(i) for i in e.ins[n0:])
        def flush(self):
            while self.cur is not None or self.q:
                if self.cur is None:
                    it = self.q.pop(0)
                    if it == "step17": continue
                    if it == "barrier" or it == "aux2gate":
                        e.wait_all(vm=False); e("s_barrier"); self.barrier_at = None
                        continue
                    self.cur = it() if callable(it) else it
                for _ in self.cur: pass
                self.cur = None
    F = Fill()
    F.add(params)
    slot = {"A": 0, "B": 0}
    last = None
    for (ph, ks, si, did) in main_stream():
        if (ph, ks) != last and (ph, ks) in STAMPS: pr.stamp()
        last = (ph, ks)
        n = slot[ph]; slot[ph] += 1
        tk = nbar[0]
        if NOEPI:
            if ph == "A" and not did: F.run(BUDGET_A, tk)
            continue
        if ph == "A":
            if COOP and n == CT2: coop_touch(3, 4, 0, False, 226)
            if COOP and n == CT3: coop_touch(0, 4, 128, True, 226)
            if COOP and n == CT4: coop_touch(4, 3, 128, True, 226)
            if n == RB_SLOT and RB_LATE: rowbatch_compute()
            if n == PUB_SLOT: rowbatch_publish()
            if n == AUX_LOAD: F.flush(); aux1_issue()
            if n == AUX_FIN: aux1_finish(); F.add("barrier", aux1_read)
            if not did: F.run(BUDGET_A, tk)
        else:
            if n == 0:
                F.flush()
                if ZFIRST:
                    drain(z_pass1()); drain(hier1())
                    e.wait_all(vm=False); e("s_barrier")
                    drain(hier2())
                    F.add(zscale, cs_base, tail_addr, "aux2gate",
                          lambda: cs_reads(0, 128), lambda: cs_reads(1, 144), lambda: gu_epi(0, 128),
                          lambda: cs_reads(2, 128), lambda: gu_epi(1, 144), lambda: cs_reads(3, 144), "step17", e_consts)
                else:
                  F.add(z_pass1, hier1, "barrier", hier2, zscale, cs_base, "aux2gate",
                      lambda: cs_reads(0, 128), lambda: cs_reads(1, 144), lambda: gu_epi(0, 128),
                      lambda: cs_reads(2, 128), lambda: gu_epi(1, 144), lambda: cs_reads(3, 144), tail_addr)
            if fused and G.EARLY_B and n == 1:
                early_B_setup(); early_B_queue(0, G.EARLY_B1)
            if fused and n >= EB_SLOT and (n - EB_SLOT) % EB_GAP == 0 and ebq and (n & 1) == 0: ebq.popleft()()
            if n == AUX2_SLOT: aux2_issue()
            if n == AUX2_FIN: aux2_finish(); aux["a2_tick"] = tk
            if PF_SLOT >= 0 and n >= PF_SLOT and (n - PF_SLOT) % PF_GAP == 0 and (n - PF_SLOT) // PF_GAP < 11: k2_touch((n - PF_SLOT) // PF_GAP, n)
            if not did: F.run(BUDGET_B0 if n < BSW else BUDGET_B, tk)
    if NOEPI:
        pr.dump(32, 48)
        e.raw("K1_END:")
        e("s_endpgm")
        gen_helper(e)
        return 256
    e_issue(); aux["e_vm"] = e.vm_issued
    if fused and G.EARLY_B > G.EARLY_B1:
        while ebq: ebq.popleft()()
        e.wait_all(vm=False); e("s_barrier")
        early_B_queue(G.EARLY_B1, G.EARLY_B)
    if TAILST2: pr.stamp()
    F.flush()
    if TAILST2: pr.stamp()
    if not ZFIRST and not ECLATE: drain_eb(e_consts(), 12)
    drain_eb(gu_epi(2, 128), 10)
    if TAILST2: pr.stamp()
    drain_eb(gu_epi(3, 144), 10)
    while ebq: ebq.popleft()()
    if not ZFIRST and ECLATE: drain(e_consts())
    if TAILST: pr.stamp()
    e_check(e.vm_issued - aux["e_vm"])
    if TAILST2: pr.stamp()
    carry_and_pass2()
    pr.stamp()
    pr.dump(32, 48)
    if fused:
        if G.PROFILE: e("s_mov_b64 exec, -1")
        G.gen_k2(e, fused=True)
    e.raw("K1_END:")
    e("s_endpgm")
    gen_helper(e)
    return 256
```

```python
import sys, os
sys.path.insert(0, "dev")
from asmlib import *
import gen as G
from gen import *
from collections import deque

def cmul(e, dr, di, ar, ai, br, bi, t):
    e(f"v_mul_f32 v{t}, v{ai}, v{bi}"); yield
    e(f"v_mul_f32 v{t+1}, v{ai}, v{br}"); yield
    e(f"v_fma_f32 v{t}, v{ar}, v{br}, -v{t}"); yield
    e(f"v_fma_f32 v{di}, v{ar}, v{bi}, v{t+1}"); yield
    e(f"v_mov_b32 v{dr}, v{t}"); yield
def csq(e, dr, di, ar, ai, t):
    e(f"v_mul_f32 v{t}, v{ai}, v{ai}"); yield
    e(f"v_mul_f32 v{t+1}, v{ar}, v{ai}"); yield
    e(f"v_fma_f32 v{dr}, v{ar}, v{ar}, -v{t}"); yield
    e(f"v_add_f32 v{di}, v{t+1}, v{t+1}"); yield
def cfma(e, hr, hi, lr, li, br, bi, t):
    e(f"v_fma_f32 v{t}, v{lr}, v{hr}, v{br}"); yield
    e(f"v_fma_f32 v{t+1}, v{lr}, v{hi}, v{bi}"); yield
    e(f"v_fma_f32 v{t}, -v{li}, v{hi}, v{t}"); yield
    e(f"v_fma_f32 v{hi}, v{li}, v{hr}, v{t+1}"); yield
    e(f"v_mov_b32 v{hr}, v{t}"); yield
def cfma_to(e, dr, di, hr, hi, lr, li, br, bi):
    e(f"v_fma_f32 v{dr}, v{lr}, v{hr}, v{br}"); yield
    e(f"v_fma_f32 v{di}, v{lr}, v{hi}, v{bi}"); yield
    e(f"v_fma_f32 v{dr}, -v{li}, v{hi}, v{dr}"); yield
    e(f"v_fma_f32 v{di}, v{li}, v{hr}, v{di}"); yield

def gen_helper(e):
    e.raw("K1_HELPER:")
    e.lg_issued = e.lg_done = 0; e.vm_issued = e.vm_done = 0
    if os.environ.get("CODEPF", "0") == "1":
        lab = e.label("K1H_CP")
        e("s_cmp_lg_u32 s48, 7")
        e(f"s_cbranch_scc1 {lab}")
        e("v_lshlrev_b32 v10, 7, v0")
        for k in range(4):
            e("v_min_u32 v11, K1_CODE_LAST-K1_CODE_FIRST, v10")
            e(f"global_load_dword v{20+k}, v11, s[84:85]")
            if k < 3: e("v_add_u32 v10, 8192, v10")
        e.raw(f"{lab}:")
    if os.environ.get("TLBW", "0") == "1":
        lab = e.label("K1H_TW")
        e("s_cmp_lg_u32 s48, 6")
        e(f"s_cbranch_scc1 {lab}")
        tl = e("s_load_dwordx2 s[82:83], s[0:1], 104")
        e.raw("s_waitcnt lgkmcnt(0)"); e.smem_out = False
        e("v_lshlrev_b32 v10, 16, v0")
        e(f"v_min_u32 v11, {2048*448*4 - 4}, v10")
        e("global_load_dword v20, v11, s[82:83]")
        for k in range(3):
            e(f"v_min_u32 v11, {WS_END - 4}, v10")
            e(f"global_load_dword v{21+k}, v11, s[18:19]")
            if k < 2: e(f"v_add_u32 v10, {64*65536}, v10")
        e.raw(f"{lab}:")
    HW = os.environ.get("HWARM", "1") == "1"
    if os.environ.get("HMAP", "1") == "1":
        e("s_lshr_b32 s52, s2, 3"); e("s_lshl_b32 s52, s52, 2"); e("s_and_b32 s53, s2, 3"); e("s_add_u32 s52, s52, s53")
        e("s_cmp_ge_u32 s52, 14")
        e("s_cbranch_scc1 K1H_WARM" if HW else "s_cbranch_scc1 K1_END")
        e("s_bfe_u32 s53, s2, 0x10002")
        e("s_mul_i32 s53, s53, 7")
        srd(e, 32, 18, WS_END if not G.PROFILE else (16 << 20))
        pr = G.Prof(e, 0); pr.stamp()
        srd(e, 36, 16, 256)
        e("s_cmp_ge_u32 s52, 7")
        e("s_cselect_b32 s28, s14, s12")
        e("s_cselect_b32 s29, s15, s13")
        e("s_cselect_b32 s54, 7, 0")
        e("s_cselect_b32 s56, 1792, 0")
        e("s_and_b32 s29, s29, 0xffff")
        e("s_sub_u32 s54, s52, s54")
        e("s_add_u32 s54, s54, s53")
    else:
        e("s_cmp_ge_u32 s2, 28")
        e("s_cbranch_scc1 K1H_WARM" if HW else "s_cbranch_scc1 K1_END")
        srd(e, 32, 18, WS_END if not G.PROFILE else (16 << 20))
        pr = G.Prof(e, 0); pr.stamp()
        srd(e, 36, 16, 256)
        e("s_cmp_ge_u32 s2, 14")
        e("s_cselect_b32 s28, s14, s12")
        e("s_cselect_b32 s29, s15, s13")
        e("s_cselect_b32 s54, 14, 0")
        e("s_cselect_b32 s56, 1792, 0")
        e("s_and_b32 s29, s29, 0xffff")
        e("s_sub_u32 s54, s2, s54")
    e(f"s_mov_b32 s30, {448*1792*2}")
    e("s_mov_b32 s31, 0x20000")
    e("v_lshrrev_b32 v4, 4, v0")
    e("s_movk_i32 s50, 3584")
    e("v_mul_lo_u32 v4, s50, v4")
    e("v_and_b32 v5, 15, v0")
    e("v_lshl_add_u32 v4, v5, 4, v4")
    e(f"s_mul_i32 s55, s48, {56*3584}")
    e("s_lshl_b32 s57, s54, 8")
    e("s_add_u32 s55, s55, s57")
    nonce_cas(e, 12)
    if os.environ.get("HDELAY", "0") == "1":
        nonce_publish(e, 12, 32768)
        e("s_barrier")
    WL = 72
    U = 128
    wt = []
    for n in range(14):
        e(f"s_add_u32 s57, s55, {n*4*3584}")
        wt.append(e(f"buffer_load_dwordx4 v[{WL+4*n}:{WL+4*n+3}], v4, s[28:31], s57 offen"))
    A = 16
    for n in range(14):
        e.wait(wt[n])
        if n == 0:
            pr.stamp()
            if os.environ.get("HDELAY", "0") != "1": nonce_publish(e, 12, 32768)
        for d in range(4):
            src = WL + 4*n + d
            if n == 0:
                e(f"v_lshlrev_b32 v{A+2*d}, 16, v{src}")
                e(f"v_and_b32 v{A+2*d+1}, 0xffff0000, v{src}")
            else:
                e(f"v_lshlrev_b32 v6, 16, v{src}")
                e(f"v_and_b32 v7, 0xffff0000, v{src}")
                e(f"v_add_f32 v{A+2*d}, v{A+2*d}, v6")
                e(f"v_add_f32 v{A+2*d+1}, v{A+2*d+1}, v7")
    pr.stamp()
    e("v_lshrrev_b32 v6, 4, v0")
    e("s_lshl_b32 s57, s48, 2")
    e("v_add_u32 v6, s57, v6")
    e("v_lshlrev_b32 v6, 9, v6")
    e("v_lshl_add_u32 v6, v5, 5, v6")
    e(f"ds_write_b128 v6, v[{A}:{A+3}]")
    e(f"ds_write_b128 v6, v[{A+4}:{A+7}] offset:16")
    e.wait_all(vm=False)
    e("s_barrier")
    e("s_cmp_ge_u32 s48, 2")
    e("s_cbranch_scc1 K1H_WARM" if HW else "s_cbranch_scc1 K1_END")
    nonce_read(e, 13, 32768)
    e("s_lshl_b32 s57, s48, 6")
    e("v_add_u32 v6, s57, v0")
    e("v_lshlrev_b32 v7, 2, v6")
    for p in range(32): e(f"ds_read_b32 v{U+p}, v7 offset:{p*512}")
    e.wait_all(vm=False)
    for st in (16, 8, 4, 2, 1):
        for p in range(st): e(f"v_add_f32 v{U+p}, v{U+p}, v{U+p+st}")
    e("s_lshl_b32 s57, s54, 7")
    e("s_add_u32 s57, s57, s56")
    e("v_add_u32 v6, s57, v6")
    e("v_lshlrev_b32 v6, 3, v6")
    e(f"v_add_u32 v6, {WS_CSW}, v6")
    e(f"v_mov_b32 v{U+1}, s98")
    e(f"buffer_store_dwordx2 v[{U}:{U+1}], v6, s[32:35], 0 offen sc1")
    pr.stamp()
    pr.dump(32, 48)
    if HW:
        if G.PROFILE: e("s_mov_b64 exec, -1")
        e.raw("K1H_WARM:")
        e("s_lshl_b32 s49, s2, 3"); e("s_add_u32 s49, s49, s48")
        e("s_mul_i32 s50, s49, 49")
        e("v_min_u32 v6, 48, v0")
        e("v_add_u32 v6, s50, v6"); e("v_lshlrev_b32 v6, 7, v6")
        e("global_load_dword v7, v6, s[86:87]")
        e("s_mul_i32 s50, s49, 13")
        e("v_and_b32 v6, 15, v0"); e("v_min_u32 v6, 12, v6")
        e("v_add_u32 v6, s50, v6"); e("v_min_u32 v6, 3135, v6"); e("v_lshlrev_b32 v6, 7, v6")
        e("global_load_dword v8, v6, s[88:89]")
        e("global_load_dword v9, v6, s[90:91]")
        e("s_waitcnt vmcnt(0)")
    e.raw("K1_CODE_LAST:")
    e("s_endpgm")

NW = int(os.environ.get("NW", "0"))
def nonce_cas(e, v, srd="s[36:39]"):
    lab = e.label("K1_NC")
    e(f"v_mov_b32 v{v+2}, 0")
    e(f"s_cmp_lg_u32 s48, {NW}")
    e(f"s_cbranch_scc1 {lab}")
    e.cond_begin()
    e.raw("s_memrealtime s[100:101]")
    e.raw("s_waitcnt lgkmcnt(0)")
    e("s_or_b32 s99, s100, 1")
    e(f"v_mov_b32 v{v}, s99")
    e(f"v_mov_b32 v{v+1}, 0")
    e("s_mov_b64 s[58:59], exec")
    e("s_mov_b64 exec, 1")
    e(f"buffer_atomic_cmpswap v[{v}:{v+1}], v{v+2}, {srd}, 0 offen sc0")
    e("s_mov_b64 exec, s[58:59]")
    e.cond_end()
    e.raw(f"{lab}:")
    e.vm_at_cas = e.vm_issued
def nonce_publish(e, v, lds, srd="s[36:39]"):
    lab = e.label("K1_NP")
    e(f"s_cmp_lg_u32 s48, {NW}")
    e(f"s_cbranch_scc1 {lab}")
    e.cond_begin()
    e.raw(f"s_waitcnt vmcnt({min(63, e.vm_issued - e.vm_at_cas)})")
    e(f"v_readfirstlane_b32 s100, v{v}")
    e("s_cmp_eq_u32 s100, 0")
    e("s_cselect_b32 s100, s99, s100")
    e(f"v_mov_b32 v{v}, s100")
    e(f"v_mov_b32 v{v+1}, {lds}")
    e(f"ds_write_b32 v{v+1}, v{v}")
    e.raw("s_waitcnt lgkmcnt(0)")
    e.cond_end()
    e.raw(f"{lab}:")
def nonce_read(e, v, lds):
    e(f"v_mov_b32 v{v}, {lds}")
    t = e(f"ds_read_b32 v{v}, v{v}")
    e.wait(t)
    e(f"v_readfirstlane_b32 s98, v{v}")

def tagged_retry(e, issue, check, name, maxit=100000, cnt="s61"):
    ok = e.label(name + "_OK"); top = e.label(name + "_RT")
    check()
    e(f"s_cbranch_scc1 {ok}")
    e.cond_begin()
    e(f"s_mov_b32 {cnt}, 0")
    e.raw(f"{top}:")
    issue()
    e.raw("s_waitcnt vmcnt(0)")
    check()
    e(f"s_cbranch_scc1 {ok}")
    e(f"s_add_u32 {cnt}, {cnt}, 1")
    e(f"s_cmp_lt_u32 {cnt}, {maxit}")
    e(f"s_cbranch_scc1 {top}")
    e.cond_end()
    e.raw(f"{ok}:")
```

```python
import sys
sys.path.insert(0, "dev")
from asmlib import *

NAME = "recurrent_scan__ssm_conv_s5__glu_gated_glu__prompt"
WS_HF   = 0
WS_hF   = 64*112*1024
WS_STAT = WS_hF + 64*56*1024
WS_CSW  = WS_STAT + 2048*16
WS_CSB  = WS_CSW + 3584*8
WS_E    = WS_CSB + 896*8
WS_DONE = WS_E + 16*448*16
WS_END  = WS_DONE + 16*128
LOG2E = 1.4426950408889634
import struct, os
def f32(x): return "0x%08x" % struct.unpack("<I", struct.pack("<f", x))[0]

def srd(e, s, ptr, nbytes):
    e(f"s_mov_b32 s{s}, s{ptr}")
    e(f"s_and_b32 s{s+1}, s{ptr+1}, 0xffff")
    e(f"s_mov_b32 s{s+2}, {nbytes}")
    e(f"s_mov_b32 s{s+3}, 0x20000")

def bf16_round_pair(e, dst_lo, dst_hi, a, b, tmp):
    e(f"v_cvt_pk_bf16_f32 v{tmp}, v{a}, v{b}")
    yield
    e(f"v_lshlrev_b32 v{dst_lo}, 16, v{tmp}")
    yield
    e(f"v_and_b32 v{dst_hi}, 0xffff0000, v{tmp}")
    yield

PROFILE = False
WS_PROF = 12 << 20
class Prof:
    def __init__(self, e, kern): self.e = e; self.k = kern; self.n = 0
    def stamp(self):
        if not PROFILE: return
        e = self.e
        import os
        e.raw("s_memtime s[96:97]" if os.environ.get("CLK") == "cyc" else "s_memrealtime s[96:97]")
        e.raw("s_waitcnt lgkmcnt(0)"); e.lg_done = e.lg_issued
        e.raw(f"s_mov_b32 s{80+self.n}, s96"); self.n += 1
        assert self.n <= ((6 if not os.environ.get('NOPF') else 12) if self.k == 0 else 12)
    def dump(self, srd_ws, wave_s):
        if not PROFILE: return
        e = self.e
        e(f"s_lshl_b32 s96, s2, 3"); e(f"s_add_u32 s96, s96, s{wave_s}"); e("s_lshl_b32 s96, s96, 6")
        e(f"s_add_u32 s96, s96, {WS_PROF + self.k*256*8*64}")
        for i in range(16):
            e(f"v_mov_b32 v{200+i}, s{80+i}" if i < self.n else f"v_mov_b32 v{200+i}, 0")
        e("v_mov_b32 v216, 0")
        e("s_mov_b64 exec, 1")
        for q in range(4):
            e(f"buffer_store_dwordx4 v[{200+4*q}:{203+4*q}], v216, s[{srd_ws}:{srd_ws+3}], s96 offen offset:{16*q}")
        e("s_waitcnt vmcnt(0)")

def pull(gen, n):
    if gen is None: return None
    for _ in range(n):
        try: next(gen)
        except StopIteration: return None
    return gen
def drain(gen):
    if gen is None: return
    for _ in gen: pass

K2_R = 9
K2_STAGE = 16384
K2RA = int(os.environ.get("K2RA", "5"))
EARLY_B = int(os.environ.get("EARLY_B", "12"))
EARLY_B1 = int(os.environ.get("EARLY_B1", "9"))
def gen_k2(e, fused=False):
    global K2_R
    RA = K2RA if fused else K2_R
    RB = (20 - RA) if fused else K2_R
    if not fused: RA, RB = 9, 9
    def baseB(t): return (t % RB) * 8192
    def baseA(t): return RB * 8192 + (t % RA) * 8192
    if not fused:
        e.raw("k2_kernel:")
        e("s_cmp_ge_u32 s2, 224")
        e("s_cbranch_scc1 K2_END")
    else:
        e("s_setprio 0")
        e("s_lshl_b32 s76, s52, 7")
        e(f"s_add_u32 s76, s76, {WS_DONE}")
        e("s_lshl_b32 s79, s53, 2")
        e("s_and_b32 s71, s51, 3")
        e("s_cmp_ge_u32 s53, 7")
        e("s_cselect_b32 s49, 1, 0")
        e("s_cselect_b32 s50, 7, 0")
        e("s_sub_u32 s50, s53, s50")
        e("s_lshl_b32 s51, s52, 1")
        e("s_add_u32 s49, s49, s51")
        e("s_mov_b32 s72, s32"); e("s_mov_b32 s73, s33"); e("s_mov_b32 s74, s34"); e("s_mov_b32 s75, s35")
    e("s_load_dwordx2 s[4:5], s[0:1], 0")
    e("s_load_dwordx2 s[6:7], s[0:1], 40")
    e("s_load_dwordx2 s[8:9], s[0:1], 48")
    e("s_load_dwordx2 s[10:11], s[0:1], 64")
    e("s_load_dwordx2 s[12:13], s[0:1], 96")
    e("s_load_dwordx2 s[14:15], s[0:1], 104")
    t = e("s_load_dwordx2 s[16:17], s[0:1], 120")
    if not fused:
        e("v_lshrrev_b32 v1, 6, v0")
        e("v_and_b32 v0, 63, v0")
        e("v_readfirstlane_b32 s48, v1")
        e("s_and_b32 s49, s2, 7")
        e("s_lshl_b32 s49, s49, 2")
        e("s_lshr_b32 s50, s2, 3")
        e("s_and_b32 s51, s50, 3")
        e("s_mov_b32 s71, s51")
        e("s_add_u32 s49, s49, s51")
        e("s_lshr_b32 s50, s50, 2")
    e.wait(t)
    srd(e, 20, 4, 2048*448*2)
    srd(e, 24, 6, 448*448*2)
    srd(e, 28, 8, 448*448*2)
    srd(e, 32, 10, 448*2)
    srd(e, 36, 12, 1792*448*2)
    srd(e, 40, 14, 2048*448*4)
    srd(e, 44, 16, WS_END if not PROFILE else (16 << 20))
    if fused:
        e.raw("s_waitcnt vmcnt(2) lgkmcnt(0)")
        e("s_barrier")
        lab = e.label("F_NOADD")
        e("s_cmp_lg_u32 s48, 0")
        e(f"s_cbranch_scc1 {lab}")
        e("v_mov_b32 v2, s79")
        e("v_mov_b32 v3, s98")
        e("s_mov_b64 exec, 1")
        e("buffer_store_dword v3, v2, s[72:75], s76 offen sc1")
        e("s_mov_b64 exec, -1")
        e.raw(f"{lab}:")
        e.lg_issued = e.lg_done = 0; e.vm_issued = e.vm_done = 0
    pr = Prof(e, 1); pr.stamp()
    e("s_cmp_ge_u32 s48, 4")
    e("s_cbranch_scc1 K2_LOADER")
    e("s_and_b32 s52, s48, 1")
    e("s_lshr_b32 s53, s48, 1")
    e("v_and_b32 v1, 31, v0")
    e("v_lshrrev_b32 v2, 5, v0")
    e("v_and_b32 v3, 15, v0")
    e("v_lshrrev_b32 v4, 4, v0")
    e("s_lshl_b32 s54, s49, 6")
    e("s_lshl_b32 s55, s52, 5")
    e("s_add_u32 s54, s54, s55")
    e("v_add_u32 v5, s54, v1")
    e("s_lshl_b32 s55, s50, 6")
    e("s_lshl_b32 s56, s53, 5")
    e("s_add_u32 s55, s55, s56")
    e("v_lshlrev_b32 v6, 2, v2")
    e("v_add_u32 v6, s55, v6")
    e("s_movk_i32 s57, 896")
    e("v_mul_lo_u32 v7, s57, v5")
    e("v_lshlrev_b32 v8, 1, v6")
    e("v_add_u32 v7, v7, v8")
    e("v_lshlrev_b32 v9, 4, v5")
    e(f"v_add_u32 v9, {WS_STAT}, v9")
    e("v_lshlrev_b32 v10, 1, v7")
    XR, DK, ST = 16, 24, 192
    toks = []
    for a in range(4): toks.append(e(f"buffer_load_dwordx2 v[{XR+2*a}:{XR+2*a+1}], v7, s[20:23], 0 offen offset:{16*a}"))
    for a in range(4): toks.append(e(f"buffer_load_dwordx2 v[{DK+2*a}:{DK+2*a+1}], v8, s[32:35], 0 offen offset:{16*a}"))
    toks.append(e(f"buffer_load_dwordx4 v[{ST}:{ST+3}], v9, s[44:47], 0 offen" + (" sc1" if fused else "")))
    epi_toks = toks
    e("s_lshl_b32 s57, s52, 12")
    e("v_lshlrev_b32 v11, 4, v0")
    e("v_add_u32 v11, s57, v11")
    e("v_lshrrev_b32 v13, 2, v3")
    e("v_lshl_add_u32 v13, v2, 2, v13")
    e("v_lshlrev_b32 v12, 7, v13")
    e("v_and_b32 v13, 1, v4")
    e("s_lshl_b32 s57, s53, 1")
    e("v_add_u32 v13, s57, v13")
    e("v_lshrrev_b32 v14, 3, v3")
    e("v_lshlrev_b32 v14, 1, v14")
    e("v_xor_b32 v13, v13, v14")
    e("v_lshl_add_u32 v12, v13, 5, v12")
    e("v_and_b32 v13, 3, v3")
    e("v_lshl_add_u32 v12, v13, 3, v12")
    e("s_lshl_b32 s57, s53, 5")
    e("v_add_u32 v13, s57, v1")
    e("v_lshlrev_b32 v13, 7, v13")
    e("v_lshrrev_b32 v14, 1, v1")
    e("v_and_b32 v14, 7, v14")
    e("v_xor_b32 v14, v14, v2")
    e("v_lshl_add_u32 v13, v14, 4, v13")
    PH, PW, PC = 11, 12, 13
    TH, TW = 14, 15
    ACCO, ACCY = 64, 80
    FR = 96
    XF, SK, G = 34, 160, 176
    T0 = 50
    def hfrag(set_, kk): return FR + set_*32 + kk*8
    def wfrag(set_, kk): return FR + set_*32 + kk*8 + 4

    def pre_epi():
        e.wait(epi_toks)
        yield
        e(f"v_rcp_f32 v{T0}, v{ST+2}")
        yield
        for p in range(8):
            xa, xb = XF+2*p, XF+2*p+1
            e(f"v_lshlrev_b32 v{xa}, 16, v{XR+p}"); yield
            e(f"v_and_b32 v{xb}, 0xffff0000, v{XR+p}"); yield
            e(f"v_sub_f32 v{T0+1}, v{xa}, v{ST}"); yield
            e(f"v_sub_f32 v{T0+2}, v{xb}, v{ST}"); yield
            yield from bf16_round_pair(e, T0+1, T0+2, T0+1, T0+2, T0+3)
            e(f"v_mul_f32 v{T0+1}, v{T0+1}, v{T0}"); yield
            e(f"v_mul_f32 v{T0+2}, v{T0+2}, v{T0}"); yield
            yield from bf16_round_pair(e, T0+1, T0+2, T0+1, T0+2, T0+3)
            e(f"v_lshlrev_b32 v{T0+4}, 16, v{DK+p}"); yield
            e(f"v_and_b32 v{T0+5}, 0xffff0000, v{DK+p}"); yield
            e(f"v_mul_f32 v{T0+1}, v{T0+1}, v{T0+4}"); yield
            e(f"v_mul_f32 v{T0+2}, v{T0+2}, v{T0+5}"); yield
            yield from bf16_round_pair(e, SK+2*p, SK+2*p+1, T0+1, T0+2, T0+3)
    def silu_epi():
        for p in range(8):
            a, b = T0+1, T0+2
            yield from bf16_round_pair(e, a, b, ACCO+2*p, ACCO+2*p+1, T0+3)
            e(f"v_mul_f32 v{T0+4}, {f32(-LOG2E)}, v{a}"); yield
            e(f"v_mul_f32 v{T0+5}, {f32(-LOG2E)}, v{b}"); yield
            e(f"v_exp_f32 v{T0+4}, v{T0+4}"); yield
            e(f"v_exp_f32 v{T0+5}, v{T0+5}"); yield
            e(f"v_add_f32 v{T0+4}, 1.0, v{T0+4}"); yield
            e(f"v_add_f32 v{T0+5}, 1.0, v{T0+5}"); yield
            e(f"v_rcp_f32 v{T0+4}, v{T0+4}"); yield
            e(f"v_rcp_f32 v{T0+5}, v{T0+5}"); yield
            e(f"v_mul_f32 v{a}, v{a}, v{T0+4}"); yield
            e(f"v_mul_f32 v{b}, v{b}, v{T0+5}"); yield
            yield from bf16_round_pair(e, G+2*p, G+2*p+1, a, b, T0+3)

    NST = 42
    REGB = fused and os.environ.get("REGB", "0") == "1"
    LAG = int(os.environ.get("LAG", "1")) if fused else 0
    NREG = int(os.environ.get("NREG", "0")) if fused else 0
    HYB = fused and NREG > 0 and not REGB
    AFL = " sc1" if (fused and os.environ.get("ASC1", "0") == "1") else ""
    def cons_poll_setup():
        e("v_and_b32 v58, 15, v0")
        e("v_min_u32 v58, 13, v58")
        e("v_lshlrev_b32 v58, 2, v58")
    def cons_poll(off):
        top = e.label("F_POLL"); ok = e.label("F_POLLOK")
        c = "s80" if not PROFILE else "s95"
        e(f"s_mov_b32 {c}, 0")
        e.raw(f"{top}:")
        e(f"buffer_load_dword v59, v58, s[44:47], s76 offen offset:{off} sc1")
        e.raw("s_waitcnt vmcnt(0)")
        e("v_cmp_ne_u32 vcc, s98, v59")
        e("s_cmp_eq_u64 vcc, 0")
        e(f"s_cbranch_scc1 {ok}")
        e(f"s_add_u32 {c}, {c}, 1")
        e(f"s_cmp_lt_u32 {c}, 200000")
        e(f"s_cbranch_scc1 {top}")
        e.raw(f"{ok}:")
        e.vm_done = e.vm_issued
    tokA = {}
    if REGB:
        e("v_lshlrev_b32 v61, 4, v0")
        e("s_lshl_b32 s58, s49, 1")
        e("s_add_u32 s58, s58, s52")
        e("s_lshl_b32 s59, s53, 1")
        e("s_mul_i32 s56, s58, 112"); e("s_add_u32 s56, s56, s59"); e("s_lshl_b32 s56, s56, 10")
        e("s_mul_i32 s57, s58, 56"); e("s_add_u32 s57, s57, s59"); e("s_lshl_b32 s57, s57, 10"); e(f"s_add_u32 s57, s57, {WS_hF}")
        e("s_lshl_b32 s60, s52, 2"); e("s_add_u32 s60, s60, s59"); e("s_lshl_b32 s60, s60, 10")
        e("s_mul_i32 s65, s71, 7"); e("s_lshl_b32 s68, s50, 2"); e("s_add_u32 s65, s65, s68")
        e("s_cmp_ge_u32 s65, 28"); e("s_cselect_b32 s68, 28, 0"); e("s_sub_u32 s65, s65, s68")
        e("s_lshl_b32 s66, s71, 1"); e("s_add_u32 s66, s66, s50")
        e("s_cmp_ge_u32 s66, 7"); e("s_cselect_b32 s68, 7, 0"); e("s_sub_u32 s66, s66, s68")
        def c_issueA(t):
            base = baseA(t)
            if t < 28:
                e("s_lshl_b32 s69, s65, 12"); e("s_add_u32 s69, s69, s56")
            else:
                e("s_lshl_b32 s69, s66, 13"); e("s_add_u32 s69, s69, s57")
                if (t - 28) & 1: e("s_add_u32 s69, s69, 4096")
            for a in range(2):
                e(f"s_add_u32 m0, s60, {base + a*1024}")
                if a: e("s_add_u32 s69, s69, 1024")
                tok = e(f"buffer_load_dwordx4 v61, s[44:47], s69 offen{AFL} lds")
            if t < 28:
                e("s_add_u32 s65, s65, 1"); e("s_cmp_eq_u32 s65, 28"); e("s_cselect_b32 s65, 0, s65")
            elif (t - 28) & 1:
                e("s_add_u32 s66, s66, 1"); e("s_cmp_eq_u32 s66, 7"); e("s_cselect_b32 s66, 0, s66")
            tokA[t] = tok
        drain(pre_epi())
        cons_poll_setup()
        cons_poll(0)
        for t in range(RA - 2): c_issueA(t)
        nA = RA - 2
        fill = None
    else:
        if fused and os.environ.get("PREEPI", "0") == "1":
            drain(pre_epi()); fill = None
        else:
            fill = pre_epi()
        if HYB:
            cons_poll_setup()
            lab = e.label("F_GO")
            e("s_cmp_lg_u32 s48, 0")
            e(f"s_cbranch_scc1 {lab}")
            e.cond_begin(); cons_poll(0); e.cond_end()
            e.raw(f"{lab}:")
            e("s_barrier")
    first = {ACCO: True, ACCY: True}
    rtok = {}
    def mfmas(t):
        acc = ACCO if t < 28 else ACCY
        for kk in range(4):
            e.wait(rtok[(t, kk)])
            c = "0" if first[acc] else f"v[{acc}:{acc+15}]"
            first[acc] = False
            e(f"v_mfma_f32_32x32x16_bf16 v[{acc}:{acc+15}], v[{wfrag(t&1,kk)}:{wfrag(t&1,kk)+3}], v[{hfrag(t&1,kk)}:{hfrag(t&1,kk)+3}], {c}")
            yield
    for t in range(NST + 1):
        if t < NST:
            if fused and t == 3 and not REGB: e.raw("s_waitcnt vmcnt(0)"); e.vm_done = e.vm_issued
            if REGB: e.wait(tokA[t])
            e("s_barrier")
            if fused and t == 3:
                lab = e.label("F_NOH")
                e("s_cmp_lg_u32 s48, 0")
                e(f"s_cbranch_scc1 {lab}")
                e.cond_begin()
                e("v_mov_b32 v56, s79")
                e("v_mov_b32 v57, s98")
                e("s_mov_b64 exec, 1")
                e("buffer_store_dword v57, v56, s[72:75], s76 offen offset:64 sc1")
                e("s_mov_b64 exec, -1")
                e.cond_end()
                e.raw(f"{lab}:")
            if t in (0, 1, 8, 16, 28, 41): pr.stamp()
            if REGB and nA < NST and nA <= t + RA - 2:
                if nA == 25: cptok = e("buffer_load_dword v59, v58, s[44:47], s76 offen offset:64 sc1")
                if nA == 28:
                    ok = e.label("F_PCOK")
                    e.wait(cptok)
                    e("v_cmp_ne_u32 vcc, s98, v59"); e("s_cmp_eq_u64 vcc, 0"); e(f"s_cbranch_scc1 {ok}")
                    e.cond_begin(); cons_poll(64); e.cond_end()
                    e.raw(f"{ok}:")
                c_issueA(nA); nA += 1
            e(f"v_add_u32 v{TH}, {baseA(t)}, v{PH}")
            if t < 28: e(f"v_add_u32 v{TW}, {baseB(t)}, v{PW}")
            else:      e(f"v_add_u32 v{TW}, {baseB(t)}, v{PC}")
        mf = mfmas(t-1) if t >= 1 else None
        for kk in range(4):
            if t < NST:
                if mf is not None: mf = pull(mf, 1)
                tk_ = [e(f"ds_read_b128 v[{hfrag(t&1,kk)}:{hfrag(t&1,kk)+3}], v{TH} offset:{kk*1024}")]
                w = wfrag(t&1,kk)
                if t < 28:
                    tk_.append(e(f"ds_read_b64_tr_b16 v[{w}:{w+1}], v{TW} offset:{kk*2048}"))
                    tk_.append(e(f"ds_read_b64_tr_b16 v[{w+2}:{w+3}], v{TW} offset:{kk*2048+1024}"))
                else:
                    if kk == 0: tk_.append(e(f"ds_read_b128 v[{w}:{w+3}], v{TW}"))
                    else:
                        e(f"v_xor_b32 v{T0+8}, {kk<<5}, v{TW}")
                        tk_.append(e(f"ds_read_b128 v[{w}:{w+3}], v{T0+8}"))
                rtok[(t, kk)] = tk_
            elif mf is not None: mf = pull(mf, 1)
            fill = pull(fill, int(os.environ.get("SILU_N", "4")) if (fused and t >= 29) else (6 if not REGB else 3))
        if t == 29:
            drain(fill); fill = silu_epi()
        if t < NST and not REGB and not LAG: e.wait_all(vm=False, lg=True)
    drain(fill)
    for i in range(16):
        e(f"v_add_f32 v{SK+i}, v{ACCY+i}, v{SK+i}")
    for i in range(16):
        e(f"v_fma_f32 v{SK+i}, v{SK+i}, v{G+i}, v{XF+i}")
    if fused and os.environ.get("OUTT", "0") == "1":
        e("s_mul_i32 s56, s48, 4608")
        e("v_and_b32 v1, 31, v0")
        e("v_mul_u32_u24 v1, 144, v1")
        e("v_lshrrev_b32 v2, 5, v0")
        e("v_lshl_add_u32 v1, v2, 4, v1")
        e("v_add_u32 v1, s56, v1")
        for a in range(4): e(f"ds_write_b128 v1, v[{SK+4*a}:{SK+4*a+3}] offset:{32*a}")
        e("v_lshrrev_b32 v2, 3, v0")
        e("v_and_b32 v3, 7, v0")
        e("v_mul_u32_u24 v4, 144, v2")
        e("v_lshl_add_u32 v4, v3, 4, v4")
        e("v_add_u32 v4, s56, v4")
        e("s_lshl_b32 s57, s49, 6"); e("s_lshl_b32 s58, s52, 5"); e("s_add_u32 s57, s57, s58")
        e("v_add_u32 v2, s57, v2")
        e("v_mul_u32_u24 v2, 1792, v2")
        e("s_lshl_b32 s57, s50, 8"); e("s_lshl_b32 s58, s53, 7"); e("s_add_u32 s57, s57, s58")
        e("v_lshl_add_u32 v2, v3, 4, v2")
        e("v_add_u32 v2, s57, v2")
        e.wait_all(vm=False)
        tk = [e(f"ds_read_b128 v[{FR+4*m}:{FR+4*m+3}], v4 offset:{m*8*144}") for m in range(4)]
        for m in range(4):
            e.wait(tk[m])
            if m: e(f"s_add_u32 s59, s59, {8*1792}")
            else: e("s_mov_b32 s59, 0")
            e(f"buffer_store_dwordx4 v[{FR+4*m}:{FR+4*m+3}], v2, s[40:43], s59 offen")
    else:
        for a in range(4):
            e(f"buffer_store_dwordx4 v[{SK+4*a}:{SK+4*a+3}], v10, s[40:43], 0 offen offset:{32*a}" + os.environ.get("OUTF", ""))
    pr.stamp()
    if PROFILE: e("s_waitcnt vmcnt(0)")
    pr.stamp()
    pr.dump(44, 48)
    e("s_endpgm")
    e2 = e
    e.raw("K2_LOADER:")
    e.lg_issued = e.lg_done = 0; e.vm_issued = e.vm_done = 0
    if os.environ.get("LPRIO", "0") != "0": e(f"s_setprio {os.environ.get('LPRIO')}")
    e("s_sub_u32 s52, s48, 4")
    e("s_and_b32 s53, s52, 1")
    e("s_lshr_b32 s54, s52, 1")
    e("v_lshlrev_b32 v1, 4, v0")
    e("v_lshrrev_b32 v2, 3, v0")
    e("s_lshl_b32 s55, s52, 4")
    e("v_add_u32 v2, s55, v2")
    e("s_movk_i32 s55, 896")
    e("v_mul_lo_u32 v2, s55, v2")
    e("v_and_b32 v3, 7, v0")
    e("v_lshrrev_b32 v4, 4, v0")
    e("v_and_b32 v5, 1, v4")
    e("v_lshlrev_b32 v5, 2, v5")
    e("v_xor_b32 v5, v5, v3")
    e("v_lshl_add_u32 v5, v5, 4, v2")
    e("v_xor_b32 v6, v4, v3")
    e("v_lshl_add_u32 v6, v6, 4, v2")
    e("v_add_u32 v7, 4, v4")
    e("v_xor_b32 v7, v7, v3")
    e("v_lshl_add_u32 v7, v7, 4, v2")
    e(f"v_add_u32 v7, {8*896}, v7")
    e("s_lshl_b32 s58, s49, 1")
    e("s_add_u32 s58, s58, s53")
    e("s_lshl_b32 s59, s54, 1")
    e("s_mul_i32 s56, s58, 112")
    e("s_add_u32 s56, s56, s59")
    e("s_lshl_b32 s56, s56, 10")
    if WS_HF: e(f"s_add_u32 s56, s56, {WS_HF}")
    e("s_mul_i32 s57, s58, 56")
    e("s_add_u32 s57, s57, s59")
    e("s_lshl_b32 s57, s57, 10")
    e(f"s_add_u32 s57, s57, {WS_hF}")
    e("s_lshl_b32 s60, s53, 2")
    e("s_add_u32 s60, s60, s59")
    e("s_lshl_b32 s60, s60, 10")
    e("s_lshl_b32 s61, s52, 11")
    e("s_lshl_b32 s62, s50, 7")
    e(f"s_mul_i32 s63, s50, {64*896}")
    if REGB:
        assert EARLY_B == 12
        e("s_mul_i32 s77, s71, 7"); e("s_lshl_b32 s68, s50, 2"); e("s_add_u32 s77, s77, s68")
        e("s_cmp_ge_u32 s77, 28"); e("s_cselect_b32 s68, 28, 0"); e("s_sub_u32 s77, s77, s68")
        e(f"s_add_u32 s77, s77, {EARLY_B}"); e("s_cmp_ge_u32 s77, 28"); e("s_cselect_b32 s68, 28, 0"); e("s_sub_u32 s77, s77, s68")
        e("s_lshl_b32 s78, s71, 1"); e("s_add_u32 s78, s78, s50")
        e("s_cmp_ge_u32 s78, 7"); e("s_cselect_b32 s68, 7, 0"); e("s_sub_u32 s78, s78, s68")
        def breg(t): return 16 + 8*(t - EARLY_B)
        tokR = {}
        def bload(t):
            part = (t - 28) & 1
            if t < 28:
                e(f"s_mul_i32 s70, s77, {64*896}"); e("s_add_u32 s70, s70, s62")
            else:
                e("s_lshl_b32 s70, s78, 7"); e("s_add_u32 s70, s70, s63")
            for a in range(2):
                r = breg(t) + 4*a
                if t < 28:
                    if a: e("s_add_u32 s70, s70, 7168")
                    tokR[t] = e(f"buffer_load_dwordx4 v[{r}:{r+3}], v5, s[36:39], s70 offen")
                else:
                    tokR[t] = e(f"buffer_load_dwordx4 v[{r}:{r+3}], v{6+a}, s[{24+4*part}:{27+4*part}], s70 offen")
            if t < 28:
                e("s_add_u32 s77, s77, 1"); e("s_cmp_eq_u32 s77, 28"); e("s_cselect_b32 s77, 0, s77")
            elif part:
                e("s_add_u32 s78, s78, 1"); e("s_cmp_eq_u32 s78, 7"); e("s_cselect_b32 s78, 0, s78")
        NINIT = int(os.environ.get("BINIT", "28"))
        nL = EARLY_B
        while nL < NINIT: bload(nL); nL += 1
        e("v_add_u32 v1, s61, v1")
        def bwrite(t):
            e.wait(tokR[t])
            base = baseB(t)
            e(f"v_add_u32 v2, {base}, v1")
            e(f"ds_write_b128 v2, v[{breg(t)}:{breg(t)+3}]")
            e(f"ds_write_b128 v2, v[{breg(t)+4}:{breg(t)+7}] offset:1024")
        pr = Prof(e, 1); pr.n = 1
        pr.stamp()
        for t in range(EARLY_B, RB - 2): bwrite(t)
        for t in range(NST):
            e.wait_all(vm=False, lg=True)
            if t in (0, 1, 8, 16, 28, 41): pr.stamp()
            e("s_barrier")
            if nL < NST and t >= int(os.environ.get("BSTART", "2")): bload(nL); nL += 1
            s_ = t + RB - 2
            if EARLY_B <= s_ < NST and s_ >= RB - 2: bwrite(s_)
        pr.dump(44, 48)
        e.raw("K2_END:")
        e("s_endpgm")
        return
    if os.environ.get("K2ROT", "1") == "1":
        e("s_mul_i32 s65, s71, 7")
        e("s_lshl_b32 s68, s50, 2")
        e("s_add_u32 s65, s65, s68")
        e("s_cmp_ge_u32 s65, 28")
        e("s_cselect_b32 s68, 28, 0")
        e("s_sub_u32 s65, s65, s68")
        e("s_lshl_b32 s66, s71, 1")
        e("s_add_u32 s66, s66, s50")
        e("s_cmp_ge_u32 s66, 7")
        e("s_cselect_b32 s68, 7, 0")
        e("s_sub_u32 s66, s66, s68")
    else:
        e("s_mov_b32 s65, 0"); e("s_mov_b32 s66, 0")
    e("s_mov_b32 s77, s65"); e("s_mov_b32 s78, s66")
    stage_tok = {}
    AFL = " sc1" if (fused and os.environ.get("ASC1", "0") == "1") else ""
    def adv(t, o, m):
        if t < 28:
            e(f"s_add_u32 s{o}, s{o}, 1"); e(f"s_cmp_eq_u32 s{o}, 28"); e(f"s_cselect_b32 s{o}, 0, s{o}")
        elif (t - 28) & 1:
            e(f"s_add_u32 s{m}, s{m}, 1"); e(f"s_cmp_eq_u32 s{m}, 7"); e(f"s_cselect_b32 s{m}, 0, s{m}")
    def issueA(t):
        base = baseA(t)
        if t < 28:
            e("s_lshl_b32 s69, s65, 12")
            e("s_add_u32 s69, s69, s56")
        else:
            e("s_lshl_b32 s69, s66, 13")
            e("s_add_u32 s69, s69, s57")
            if (t - 28) & 1: e("s_add_u32 s69, s69, 4096")
        for a in range(2):
            e(f"s_add_u32 m0, s60, {base + a*1024}")
            if a: e("s_add_u32 s69, s69, 1024")
            tok = e(f"buffer_load_dwordx4 v1, s[44:47], s69 offen{AFL} lds")
        adv(t, 65, 66)
        return tok
    def issueB(t):
        base = baseB(t)
        part = (t - 28) & 1
        if t < 28:
            e(f"s_mul_i32 s70, s77, {64*896}")
            e("s_add_u32 s70, s70, s62")
        else:
            e("s_lshl_b32 s70, s78, 7")
            e("s_add_u32 s70, s70, s63")
        for a in range(2):
            e(f"s_add_u32 m0, s61, {base + a*1024}")
            if t < 28:
                if a: e("s_add_u32 s70, s70, 7168")
                tok = e("buffer_load_dwordx4 v5, s[36:39], s70 offen lds")
            else:
                tok = e(f"buffer_load_dwordx4 v{6+a}, s[{24+4*part}:{27+4*part}], s70 offen lds")
        adv(t, 77, 78)
        return tok
    def poll(off):
        top = e.label("F_POLL"); ok = e.label("F_POLLOK")
        e("v_and_b32 v8, 15, v0")
        e("v_min_u32 v8, 13, v8")
        e("v_lshlrev_b32 v8, 2, v8")
        e("s_mov_b32 s80, 0" if not PROFILE else "s_mov_b32 s95, 0")
        c = "s80" if not PROFILE else "s95"
        e.raw(f"{top}:")
        e(f"buffer_load_dword v9, v8, s[44:47], s76 offen offset:{off} sc1")
        e.raw("s_waitcnt vmcnt(0)")
        e("v_cmp_ne_u32 vcc, s98, v9")
        e("s_cmp_eq_u64 vcc, 0")
        e(f"s_cbranch_scc1 {ok}")
        e(f"s_add_u32 {c}, {c}, 1")
        e(f"s_cmp_lt_u32 {c}, 200000")
        e(f"s_cbranch_scc1 {top}")
        e.raw(f"{ok}:")
        e.vm_done = e.vm_issued
    def poll_issue(off):
        return e(f"buffer_load_dword v9, v8, s[44:47], s76 offen offset:{off} sc1")
    def poll_check(tok, off):
        ok = e.label("F_PCOK")
        e.wait(tok)
        e("v_cmp_ne_u32 vcc, s98, v9")
        e("s_cmp_eq_u64 vcc, 0")
        e(f"s_cbranch_scc1 {ok}")
        e.cond_begin()
        poll(off)
        e.cond_end()
        e.raw(f"{ok}:")
    pr = Prof(e, 1); pr.n = 1
    PRO = int(os.environ.get("K2PRO", "2"))
    tokA = {}; tokB = {}
    nA = 0; nB = 0
    if fused:
        for t in range(EARLY_B):
            tokB[t] = None; nB += 1; adv(t, 77, 78)
        if EARLY_B == 0:
            for t in range(RB - 1): tokB[t] = issueB(t); nB += 1
        if HYB:
            assert EARLY_B + NREG <= 28
            e("v_and_b32 v8, 15, v0"); e("v_min_u32 v8, 13, v8"); e("v_lshlrev_b32 v8, 2, v8")
            tokR = {}
            for t in range(EARLY_B, EARLY_B + NREG):
                e(f"s_mul_i32 s70, s77, {64*896}"); e("s_add_u32 s70, s70, s62")
                for a in range(2):
                    r = 16 + 8*(t - EARLY_B) + 4*a
                    if a: e("s_add_u32 s70, s70, 7168")
                    tokR[t] = e(f"buffer_load_dwordx4 v[{r}:{r+3}], v5, s[36:39], s70 offen")
                adv(t, 77, 78)
            e("v_add_u32 v10, s61, v1")
            e("s_barrier")
        else:
            poll(0)
        for t in range(PRO): tokA[t] = issueA(t); nA += 1
    else:
        for t in range(PRO):
            tokA[t] = issueA(t); tokB[t] = issueB(t); nA += 1; nB += 1
    pr.stamp()
    ptok = None
    for t in range(NST):
        e.wait(tokA[t], tokB[t])
        if HYB: e.wait_all(vm=False, lg=True) if e.lg_done < e.lg_issued else None
        if t in (0, 1, 8, 16, 28, 41): pr.stamp()
        e("s_barrier")
        k = 0
        while k < 2:
            did = False
            if nA < NST and nA <= t + RA - 1 - LAG:
                if fused and nA == 24: ptok = poll_issue(64)
                if fused and nA == 28: poll_check(ptok, 64)
                tokA[nA] = issueA(nA); nA += 1; did = True
            if nB < NST and nB <= t + RB - 1 - LAG and nB <= nA + RB:
                if HYB and EARLY_B <= nB < EARLY_B + NREG:
                    e.wait(tokR[nB])
                    r = 16 + 8*(nB - EARLY_B)
                    e(f"v_add_u32 v11, {baseB(nB)}, v10")
                    e(f"ds_write_b128 v11, v[{r}:{r+3}]")
                    e(f"ds_write_b128 v11, v[{r+4}:{r+7}] offset:1024")
                    tokB[nB] = None
                else:
                    tokB[nB] = issueB(nB)
                nB += 1; did = True
            if not did: break
            k += 1
        assert nA > t + 1 or nA == NST or True
    pr.dump(44, 48)
    e.raw("K2_END:")
    e("s_endpgm")

def kd(name, vgpr, sgpr=102):
    acc = (vgpr + 3)//4*4
    return f""".amdhsa_kernel {name}
  .amdhsa_next_free_vgpr {vgpr}
  .amdhsa_next_free_sgpr {sgpr}
  .amdhsa_accum_offset {acc}
  .amdhsa_group_segment_fixed_size 0
  .amdhsa_kernarg_size 128
  .amdhsa_user_sgpr_count 2
  .amdhsa_user_sgpr_kernarg_segment_ptr 1
  .amdhsa_system_sgpr_workgroup_id_x 1
.end_amdhsa_kernel"""

def main():
    global PROFILE
    which = sys.argv[2] if len(sys.argv) > 2 else "k2"
    if len(sys.argv) > 3 and "prof" in sys.argv[3]: PROFILE = True
    hdr = open(f"cdna_kernels/{NAME}.s.ref").read().split("; Override launch")[0]
    out = [hdr.rstrip()]
    kernels = []
    fused = "fused" in which
    KN = NAME + "_kernel" if fused else "k1_kernel"
    if fused:
        if os.environ.get("PLAIN", "0") == "1": out.append("; @launch grid=(256,1,1) block=(512,1,1) lds=163840")
        else: out.append(f"; @launch kernel={KN} grid=(256,1,1) block=(512,1,1) lds=163840")
    else:
        if "k1" in which:
            out.append("; @launch kernel=k1_kernel grid=(256,1,1) block=(512,1,1) lds=163840")
        if "k2" in which:
            out.append(f"; @launch kernel=k2_kernel grid=(224,1,1) block=(512,1,1) lds={K2_R*K2_STAGE}")
    out.append('.amdgcn_target "amdgcn-amd-amdhsa--gfx950"\n.text')
    kds = []
    if fused:
        import gen_k1b as gen_k1
        gen_k1.G.PROFILE = PROFILE
        e = Emit(); vg = gen_k1.gen_k1(e, fused=True, kname=KN)
        out.append(f".globl {KN}\n.p2align 8\n.type {KN},@function"); out.append(e.finish()); kds.append(kd(KN, vg))
    else:
        if "k1" in which:
            import gen_k1b as gen_k1
            gen_k1.G.PROFILE = PROFILE
            e = Emit(); vg = gen_k1.gen_k1(e)
            out.append(".globl k1_kernel\n.p2align 8\n.type k1_kernel,@function"); out.append(e.finish()); kds.append(kd("k1_kernel", vg))
        if "k2" in which:
            e = Emit(); gen_k2(e)
            out.append(".globl k2_kernel\n.p2align 8\n.type k2_kernel,@function"); out.append(e.finish()); kds.append(kd("k2_kernel", 200 if not PROFILE else 224))
    out.append('.section .rodata,"a"\n.p2align 6')
    out.append("\n.p2align 6\n".join(kds))
    open(sys.argv[1], "w").write("\n".join(out) + "\n")
if __name__ == "__main__": main()
```
